```python
import torch

def _softmax(x, axis=-1):
    return torch.softmax(x, dim=axis)
def _gelu(x):
    return torch.nn.functional.gelu(x, approximate="tanh")
def _silu(x):
    return torch.nn.functional.silu(x)
def _sigmoid(x):
    return torch.sigmoid(x)
def _layernorm(x, axis=-1, eps=1e-5):
    m = x.mean(dim=axis, keepdim=True)
    v = x.var(dim=axis, keepdim=True, unbiased=False)
    return (x - m) / torch.sqrt(v + eps)
def _scatter_add(tgt, idx, src, axis=0):
    return tgt.clone().index_add_(axis, idx, src)
def _segment_sum(src, seg, n):
    out = torch.zeros((n,) + src.shape[1:], dtype=src.dtype)
    return out.index_add_(0, seg, src)
def _pad(x, pw):
    flat = tuple(v for pair in reversed(pw) for v in pair)
    return torch.nn.functional.pad(x, flat)

kernel_name = 'interleave_layers__sliding_local_dilated__mixer_channel_mlp__prompt'

def setup_inputs():

    _w = (lambda a: (lambda t: t.to(torch.bfloat16) if t.is_floating_point() else t)(torch.as_tensor(a)))
    def _A_setup():
        B, S, D = 1, 2048, 576
        return {
            "x": _w((lambda *s: torch.randn(*s, dtype=torch.bfloat16) * 0.05)(B, S, D)),
            "wqkv": _w((lambda *s: torch.randn(*s, dtype=torch.bfloat16) * 0.05)(D, 3 * D)),
            "wo": _w((lambda *s: torch.randn(*s, dtype=torch.bfloat16) * 0.05)(D, D)),
        }
    _A_in = _A_setup()

    def _B_setup():
        B, S, D, F = 1, 2048, 576, 4608
        return {
            "x": _w((lambda *s: torch.randn(*s, dtype=torch.bfloat16) * 0.05)(B, S, D)),
            "w1": _w((lambda *s: torch.randn(*s, dtype=torch.bfloat16) * 3.2)(D, F) * (D ** -0.5)),
            "b1": _w((lambda *s: torch.randn(*s, dtype=torch.bfloat16) * 0.8)(F)),
            "w2": _w((lambda *s: torch.randn(*s, dtype=torch.bfloat16) * 0.2)(F, D) * (F ** -0.5)),
            "b2": _w((lambda *s: torch.randn(*s, dtype=torch.bfloat16) * 0.2)(D)),
        }
    _B_in = _B_setup()

    return {
        "A_x": _A_in["x"],
        "A_wqkv": _A_in["wqkv"],
        "A_wo": _A_in["wo"],
        "B_x": _B_in["x"],
        "B_w1": _B_in["w1"],
        "B_b1": _B_in["b1"],
        "B_w2": _B_in["w2"],
        "B_b2": _B_in["b2"],
    }

def reference(A_x, A_wqkv, A_wo, B_x, B_w1, B_b1, B_w2, B_b2):
    def _A_ref(x, wqkv, wo):
        B, S, D = x.shape
        H = 32; Dh = D // H
        W, dil = 8, 2
        qkv = (lambda x, *d: x.permute(*d))((x @ wqkv).reshape(B, S, 3, H, Dh), 2, 0, 3, 1, 4)
        q, k, v = qkv[0], qkv[1], qkv[2]
        scale = Dh ** -0.5
        pos = torch.arange(S)
        off = torch.arange(W) * dil
        idx = pos[:, None] - off[None, :]
        mask = idx >= 0
        idx_c = torch.where(mask, idx, 0).reshape(-1)
        kg = k[:, :, idx_c, :].reshape(B, H, S, W, Dh)
        vg = v[:, :, idx_c, :].reshape(B, H, S, W, Dh)
        logits = torch.einsum("bhsd,bhswd->bhsw", q, kg) * scale
        logits = torch.where(mask[None, None, :, :], logits, -1e9)
        attn = _softmax(logits, axis=-1)
        o = torch.einsum("bhsw,bhswd->bhsd", attn, vg)
        return (lambda x, *d: x.permute(*d))(o, 0, 2, 1, 3).reshape(B, S, D) @ wo

    def _B_ref(x, w1, b1, w2, b2):
        y = _layernorm(x, axis=-1)
        h = _gelu(torch.einsum("bsd,df->bsf", y, w1) + b1)
        return torch.einsum("bsf,fd->bsd", h, w2) + b2

    x = A_x
    x = x + _A_ref(_layernorm(x, axis=-1), A_wqkv, A_wo)
    x = x + _B_ref(_layernorm(x, axis=-1), B_w1, B_b1, B_w2, B_b2)
    x = x + _A_ref(_layernorm(x, axis=-1), A_wqkv, A_wo)
    x = x + _B_ref(_layernorm(x, axis=-1), B_w1, B_b1, B_w2, B_b2)
    return x
```

```python
import re

TRANS = ("v_exp_f32", "v_log_f32", "v_rcp_f32", "v_rsq_f32", "v_sqrt_f32", "v_sin_f32", "v_cos_f32")
REG_RE = re.compile(r"^(-|\|)?(abs\()?([vas])(\d+)\)?\|?$")
RNG_RE = re.compile(r"^(-)?([vas])\[(\d+):(\d+)\]$")


def regs_of(op):
    op = op.strip()
    m = REG_RE.match(op)
    if m:
        return [(m.group(3), int(m.group(4)))]
    m = RNG_RE.match(op)
    if m:
        return [(m.group(2), i) for i in range(int(m.group(3)), int(m.group(4)) + 1)]
    if op == "vcc":
        return [("s", 106), ("s", 107)]
    if op == "m0":
        return [("s", 124)]
    if op == "exec":
        return [("s", 126), ("s", 127)]
    return []


class Ins:
    __slots__ = ("text", "mn", "cls", "wr", "rd", "srcc", "ab", "data", "states", "dpp", "label", "target")

    def __init__(self, text):
        self.text = text
        self.label = None
        self.target = None
        self.wr, self.rd, self.srcc, self.ab, self.data = set(), set(), set(), set(), set()
        self.states = 1
        self.dpp = False
        t = text.split(";")[0].strip()
        if t.endswith(":"):
            self.cls = "label"
            self.mn = ""
            self.label = t[:-1]
            self.states = 0
            return
        if t.startswith(".") or not t:
            self.cls = "dir"
            self.mn = ""
            self.states = 0
            return
        parts = t.split(None, 1)
        mn = parts[0]
        self.mn = mn
        rest = parts[1] if len(parts) > 1 else ""
        ops = [o.strip() for o in rest.split(",")] if rest else []
        mods = []
        if ops:
            sp = ops[-1].split()
            ops[-1] = sp[0]
            mods = sp[1:]
        R = [regs_of(o) for o in ops]
        if mn == "s_nop":
            self.cls = "nop"
            self.states = int(ops[0], 0) + 1
        elif mn.startswith("v_mfma"):
            self.cls = "mfma"
            self.wr = set(R[0])
            self.ab = set(R[1]) | set(R[2])
            self.srcc = set(R[3])
            self.rd = self.ab | self.srcc
        elif mn.startswith("buffer_load") or mn.startswith("global_load"):
            if "lds" in mods or "_lds_" in mn:
                self.cls = "dma"
                for r in R:
                    self.rd |= set(r)
                self.rd.add(("s", 124))
            else:
                self.cls = "vload"
                self.wr = set(R[0])
                for r in R[1:]:
                    self.rd |= set(r)
        elif mn.startswith("buffer_store") or mn.startswith("buffer_atomic"):
            self.cls = "vstore"
            for r in R:
                self.rd |= set(r)
            if "x4" in mn or "x3" in mn:
                self.data = set(R[0])
        elif mn.startswith("global_store") or mn.startswith("global_atomic"):
            self.cls = "vstore"
            for r in R:
                self.rd |= set(r)
            if "x4" in mn or "x3" in mn:
                self.data = set(R[1])
        elif mn.startswith("ds_read") or mn.startswith("ds_bpermute") or mn.startswith("ds_swizzle"):
            self.cls = "dsread"
            self.wr = set(R[0])
            for r in R[1:]:
                self.rd |= set(r)
        elif mn.startswith("ds_write") or mn.startswith("ds_add"):
            self.cls = "dswrite"
            for r in R:
                self.rd |= set(r)
        elif mn.startswith("v_"):
            self.cls = "valu"
            base = mn.replace("_e32", "").replace("_e64", "").replace("_dpp", "")
            self.dpp = mn.endswith("_dpp")
            if base.startswith("v_permlane"):
                self.wr = set(R[0]) | set(R[1])
                self.rd = set(R[0]) | set(R[1])
                self.cls = "perm"
            elif base.startswith("v_cmp"):
                self.wr = set(R[0])
                for r in R[1:]:
                    self.rd |= set(r)
            elif base in ("v_add_co_u32", "v_sub_co_u32", "v_addc_co_u32"):
                self.wr = set(R[0]) | set(R[1])
                for r in R[2:]:
                    self.rd |= set(r)
            else:
                self.wr = set(R[0])
                for r in R[1:]:
                    self.rd |= set(r)
                if base in ("v_fmac_f32", "v_dot2c_f32_bf16") or self.dpp:
                    self.rd |= set(R[0])
                if base in ("v_readfirstlane_b32", "v_readlane_b32"):
                    self.cls = "rdlane"
                if base in TRANS:
                    self.cls = "trans"
        elif mn.startswith("s_"):
            self.cls = "salu"
            if mn.startswith("s_cbranch") or mn == "s_branch":
                self.target = ops[0]
                self.cls = "branch"
            elif mn.startswith("s_cmp") or mn in ("s_waitcnt", "s_barrier", "s_endpgm", "s_sleep", "s_setprio"):
                for r in R:
                    self.rd |= set(r)
            else:
                if R:
                    self.wr = set(R[0])
                for r in R[1:]:
                    self.rd |= set(r)
        else:
            self.cls = "other"


VALU_LIKE = ("valu", "trans", "perm", "rdlane")


def need(p, c):
    n = 0
    pv = p.cls in VALU_LIKE
    cv = c.cls in VALU_LIKE
    if pv:
        vw = {r for r in p.wr if r[0] in "va"}
        sw = {r for r in p.wr if r[0] == "s"}
        if c.cls == "mfma" and vw & c.rd:
            n = max(n, 2)
        if c.cls == "perm" and vw & c.rd:
            n = max(n, 2)
        if c.dpp and vw & c.rd:
            n = max(n, 2)
        if c.cls == "rdlane" and vw & c.rd:
            n = max(n, 1)
        if p.cls == "trans" and cv and c.cls != "trans" and vw & c.rd:
            n = max(n, 1)
        if p.cls == "trans" and c.cls == "trans" and vw & c.rd:
            n = max(n, 1)
        if sw & c.rd:
            if cv:
                n = max(n, 2)
            if c.cls in ("vload", "vstore", "dma"):
                n = max(n, 5)
            if c.cls in ("salu", "branch"):
                n = max(n, 2)
    if p.cls == "mfma":
        if c.cls == "mfma":
            if p.wr & c.ab:
                n = max(n, 8)
            if p.wr & c.srcc and p.wr != c.srcc:
                n = max(n, 6)
            if p.wr & c.wr and not (p.wr == c.srcc):
                n = max(n, 6)
        elif cv or c.cls in ("vload", "vstore", "dma", "dsread", "dswrite"):
            if p.wr & (c.rd | c.wr):
                n = max(n, 8)
        if cv and p.srcc & c.wr:
            n = max(n, 3)
    if p.cls == "salu" and ("s", 124) in p.wr and c.cls == "dma":
        n = max(n, 1)
    if p.cls == "vstore" and p.data and p.data & c.wr:
        n = max(n, 2)
    return n


class Asm:
    def __init__(self):
        self.ins = []

    def __call__(self, text):
        for line in text.split("\n"):
            line = line.strip()
            if line:
                self.emit(line)

    def emit(self, text):
        c = Ins(text)
        if c.cls not in ("label", "dir"):
            dist = 0
            pad = 0
            for p in reversed(self.ins[-40:]):
                if p.cls == "branch" and p.mn == "s_branch":
                    break
                if p.mn == "s_endpgm":
                    break
                if dist >= 12:
                    break
                n = need(p, c)
                if n > dist:
                    pad = max(pad, n - dist)
                dist += p.states
            if pad:
                self.ins.append(Ins("s_nop %d" % (pad - 1)))
        self.ins.append(c)

    def check_branch_seams(self):
        labels = {i.label: k for k, i in enumerate(self.ins) if i.label}
        errs = []
        for k, b in enumerate(self.ins):
            if b.cls != "branch" or b.target not in labels:
                continue
            tail = [i for i in self.ins[max(0, k - 24):k + 1] if i.cls not in ("label", "dir")]
            t = labels[b.target]
            head = [i for i in self.ins[t:t + 24] if i.cls not in ("label", "dir")]
            for hi, c in enumerate(head):
                d0 = sum(x.states for x in head[:hi])
                dist = d0
                for p in reversed(tail):
                    if dist >= 12:
                        break
                    n = need(p, c)
                    if n > dist:
                        errs.append("seam hazard: [%s] -> [%s] need %d have %d (branch %s)" % (p.text, c.text, n, dist, b.text))
                    dist += p.states
        return errs

    def text(self):
        out = []
        for i in self.ins:
            if i.cls == "label" or (i.cls == "dir" and not i.text.startswith(";")):
                out.append(i.text)
            else:
                out.append("    " + i.text)
        return "\n".join(out) + "\n"


def vr(b, n=1, k="v"):
    return "%s%d" % (k, b) if n == 1 else "%s[%d:%d]" % (k, b, b + n - 1)


def f32bits(x):
    import struct
    return "0x%08x" % struct.unpack("<I", struct.pack("<f", x))[0]
```

```python
import sys, math
from asmlib import Asm, vr, f32bits

NAME = "interleave_layers__sliding_local_dilated__mixer_channel_mlp__prompt"
ACT = 2048 * 576 * 2
TB = 73728
WQKVP = 0
WOP = WQKVP + 2304 * 1024
W1P = WOP + 864 * 1024
W2P = W1P + 5184 * 1024
B1P = W2P + 5184 * 1024
YB = [14 * 1024 * 1024 + i * ACT for i in range(4)]
XB = [None] + [YB[3] + ACT + i * ACT for i in range(3)]
PART = [32 * 1024 * 1024 + i * 8 * ACT for i in range(4)]
WS_BYTES = 268435456
OOB = 0x80000000
ST = " sc1"

KA_X, KA_WQKV, KA_WO, KA_BX, KA_W1, KA_B1, KA_W2, KA_B2, KA_OUT, KA_DBG, KA_WS = [8 * i for i in range(11)]

a = Asm()


def srd(d, base, off, nbytes):
    if off == 0:
        a("s_mov_b32 s%d, s%d" % (d, base))
        a("s_mov_b32 s%d, s%d" % (d + 1, base + 1))
    else:
        a("s_add_u32 s%d, s%d, %s" % (d, base, off if isinstance(off, str) else hex(off)))
        a("s_addc_u32 s%d, s%d, 0" % (d + 1, base + 1))
    a("s_mov_b32 s%d, %s" % (d + 2, hex(nbytes)))
    a("s_mov_b32 s%d, 0x20000" % (d + 3))


def entry(label):
    a(".p2align 8")
    a(".globl %s" % label)
    a(".type %s,@function" % label)
    a("%s:" % label)


class VM:
    def __init__(self):
        self.ops = []

    def op(self, text, tag):
        a(text)
        self.ops.append(tag)

    def wait(self, tag):
        last = max(i for i, t in enumerate(self.ops) if t == tag)
        n = len(self.ops) - 1 - last
        assert n <= 63
        a("s_waitcnt vmcnt(%d)" % n)


def round_pairs(regs, tmp):
    n = len(regs) // 2
    for k in range(n):
        a("v_cvt_pk_bf16_f32 v%d, v%d, v%d" % (tmp + k, regs[2 * k], regs[2 * k + 1]))
    for k in range(n):
        a("v_lshlrev_b32 v%d, 16, v%d" % (regs[2 * k], tmp + k))
        a("v_and_b32 v%d, 0xffff0000, v%d" % (regs[2 * k + 1], tmp + k))


def round1(r):
    a("v_cvt_pk_bf16_f32 v%d, v%d, v%d" % (r, r, r))
    a("v_and_b32 v%d, 0xffff0000, v%d" % (r, r))


def r_body():
    a("R_body:")
    a("s_lshr_b32 s3, s2, 3")
    a("s_bfe_u32 s4, s2, 0x10002")
    a("s_and_b32 s5, s2, 3")
    a("v_lshrrev_b32 v1, 4, v0")
    a("v_and_b32 v2, 15, v0")
    a("v_lshlrev_b32 v2, 4, v2")
    a("v_lshl_add_u32 v3, v1, 11, v2")
    a("v_lshrrev_b32 v4, 5, v0")
    a("v_and_b32 v5, 1, v1")
    a("v_bfe_u32 v6, v0, 2, 2")
    a("v_and_b32 v7, 3, v0")
    a("v_lshlrev_b32 v8, 6, v4")
    a("v_lshl_add_u32 v8, v6, 4, v8")
    a("v_lshl_add_u32 v9, v5, 4, v7")
    a("v_mul_u32_u24 v9, 1152, v9")
    a("v_add_u32 v9, v9, v8")
    a("s_lshl_b32 s6, s3, 6")
    a("s_lshl_b32 s7, s4, 5")
    a("s_add_u32 s6, s6, s7")
    a("s_lshl_b32 s7, s5, 2")
    a("s_add_u32 s6, s6, s7")
    a("s_mul_i32 s6, s6, 1152")
    a("s_mul_i32 s7, s3, %d" % TB)
    a("s_lshl_b32 s8, s5, 8")
    a("s_add_u32 s7, s7, s8")
    a("s_lshl_b32 s8, s4, 10")
    a("s_add_u32 s9, s7, s8")
    a("s_mul_i32 s8, s4, 36864")
    a("s_add_u32 s10, s7, s8")
    a("v_mul_u32_u24 v10, 18432, v5")
    a("v_lshl_add_u32 v10, v4, 10, v10")
    a("v_add_u32 v10, v10, v2")
    a("v_lshl_add_u32 v11, v5, 2, v7")
    a("v_mul_u32_u24 v11, 48, v11")
    a("v_lshrrev_b32 v12, 6, v0")
    a("v_lshl_add_u32 v12, v12, 2, v11")
    a("s_waitcnt lgkmcnt(0)")
    srd(36, 20, 0, ACT)
    srd(40, 22, 0, ACT)
    srd(44, 24, "s26", 8 * ACT)
    srd(48, 24, "s27", ACT)
    srd(52, 30, 0, 1152)
    X = 16
    B2 = 20
    P = 24
    AC = 56
    T = 64
    a("buffer_load_dwordx4 v[%d:%d], v9, s[36:39], s6 offen" % (X, X + 3))
    a("s_bitcmp1_b32 s28, 0")
    a("s_cbranch_scc0 R_nopart")
    for j in range(8):
        a("buffer_load_dwordx4 v[%d:%d], v3, s[44:47], s9 offen" % (P + 4 * j, P + 4 * j + 3))
        if j < 7:
            a("s_add_u32 s9, s9, %d" % ACT)
    a("buffer_load_dwordx4 v[%d:%d], v8, s[52:55], 0 offen" % (B2, B2 + 3))
    for j in range(8):
        a("s_waitcnt vmcnt(%d)" % (8 - j))
        for k in range(4):
            src = P + 4 * j + k
            if j == 0:
                a("v_lshlrev_b32 v%d, 16, v%d" % (AC + 2 * k, src))
                a("v_and_b32 v%d, 0xffff0000, v%d" % (AC + 2 * k + 1, src))
            else:
                a("v_lshlrev_b32 v%d, 16, v%d" % (T + 2 * k, src))
                a("v_and_b32 v%d, 0xffff0000, v%d" % (T + 2 * k + 1, src))
        if j:
            for k in range(4):
                a("v_pk_add_f32 v[%d:%d], v[%d:%d], v[%d:%d]" % (AC + 2 * k, AC + 2 * k + 1, AC + 2 * k, AC + 2 * k + 1, T + 2 * k, T + 2 * k + 1))
    for r in range(4):
        a("v_permlane16_swap_b32 v%d, v%d" % (AC + r, AC + 4 + r))
    acc = list(range(AC, AC + 8))
    round_pairs(acc, T)
    a("s_bitcmp1_b32 s28, 1")
    a("s_cbranch_scc0 R_nob2")
    a("s_waitcnt vmcnt(0)")
    for k in range(4):
        a("v_lshlrev_b32 v%d, 16, v%d" % (T + 2 * k, B2 + k))
        a("v_and_b32 v%d, 0xffff0000, v%d" % (T + 2 * k + 1, B2 + k))
    for k in range(8):
        a("v_add_f32 v%d, v%d, v%d" % (AC + k, AC + k, T + k))
    round_pairs(acc, T)
    a("R_nob2:")
    for k in range(4):
        a("v_lshlrev_b32 v%d, 16, v%d" % (T + 2 * k, X + k))
        a("v_and_b32 v%d, 0xffff0000, v%d" % (T + 2 * k + 1, X + k))
    for k in range(8):
        a("v_add_f32 v%d, v%d, v%d" % (AC + k, AC + k, T + k))
    for k in range(4):
        a("v_cvt_pk_bf16_f32 v%d, v%d, v%d" % (X + k, AC + 2 * k, AC + 2 * k + 1))
    a("buffer_store_dwordx4 v[%d:%d], v9, s[40:43], s6 offen%s" % (X, X + 3, ST))
    a("s_bitcmp1_b32 s28, 2")
    a("s_cbranch_scc1 R_ln")
    a("s_endpgm")
    a("R_nopart:")
    a("s_waitcnt vmcnt(0)")
    a("R_ln:")
    for k in range(4):
        a("v_lshlrev_b32 v%d, 16, v%d" % (AC + 2 * k, X + k))
        a("v_and_b32 v%d, 0xffff0000, v%d" % (AC + 2 * k + 1, X + k))

    def reduce(sreg, ldsoff, out):
        a("v_add_f32_dpp v%d, v%d, v%d row_ror:4 row_mask:0xf bank_mask:0xf" % (sreg, sreg, sreg))
        a("v_add_f32_dpp v%d, v%d, v%d row_ror:8 row_mask:0xf bank_mask:0xf" % (sreg, sreg, sreg))
        a("v_mov_b32 v%d, v%d" % (sreg + 1, sreg))
        a("v_permlane32_swap_b32 v%d, v%d" % (sreg, sreg + 1))
        a("v_add_f32 v%d, v%d, v%d" % (sreg, sreg, sreg + 1))
        a("ds_write_b32 v12, v%d offset:%d" % (sreg, ldsoff))
        a("s_waitcnt lgkmcnt(0)")
        a("s_barrier")
        a("ds_read_b128 v[%d:%d], v11 offset:%d" % (P, P + 3, ldsoff))
        a("ds_read_b128 v[%d:%d], v11 offset:%d" % (P + 4, P + 7, ldsoff + 16))
        a("ds_read_b32 v%d, v11 offset:%d" % (P + 8, ldsoff + 32))
        a("s_waitcnt lgkmcnt(0)")
        a("v_pk_add_f32 v[%d:%d], v[%d:%d], v[%d:%d]" % (P, P + 1, P, P + 1, P + 2, P + 3))
        a("v_pk_add_f32 v[%d:%d], v[%d:%d], v[%d:%d]" % (P + 4, P + 5, P + 4, P + 5, P + 6, P + 7))
        a("v_pk_add_f32 v[%d:%d], v[%d:%d], v[%d:%d]" % (P, P + 1, P, P + 1, P + 4, P + 5))
        a("v_add_f32 v%d, v%d, v%d" % (P, P, P + 1))
        a("v_add_f32 v%d, v%d, v%d" % (P, P, P + 8))
        a("v_mul_f32 v%d, %s, v%d" % (out, f32bits(1.0 / 576.0), P))

    S = T + 8
    MEAN, VAR, M, SD, RS = T + 10, T + 11, T + 12, T + 13, T + 14
    a("v_pk_add_f32 v[%d:%d], v[%d:%d], v[%d:%d]" % (T, T + 1, AC, AC + 1, AC + 2, AC + 3))
    a("v_pk_add_f32 v[%d:%d], v[%d:%d], v[%d:%d]" % (T + 2, T + 3, AC + 4, AC + 5, AC + 6, AC + 7))
    a("v_pk_add_f32 v[%d:%d], v[%d:%d], v[%d:%d]" % (T, T + 1, T, T + 1, T + 2, T + 3))
    a("v_add_f32 v%d, v%d, v%d" % (S, T, T + 1))
    reduce(S, 0, MEAN)
    for k in range(8):
        a("v_sub_f32 v%d, v%d, v%d" % (T + k, AC + k, MEAN))
    a("v_mul_f32 v%d, v%d, v%d" % (S, T, T))
    for k in range(1, 8):
        a("v_fmac_f32 v%d, v%d, v%d" % (S, T + k, T + k))
    reduce(S, 512, VAR)

    def ln_scalars(mean, var):
        a("v_cvt_pk_bf16_f32 v%d, v%d, v%d" % (M, var, mean))
        a("v_lshlrev_b32 v%d, 16, v%d" % (SD, M))
        a("v_and_b32 v%d, 0xffff0000, v%d" % (M, M))
        a("v_add_f32 v%d, %s, v%d" % (SD, f32bits(1e-5), SD))
        round1(SD)
        a("v_sqrt_f32 v%d, v%d" % (SD, SD))
        round1(SD)
        a("v_rcp_f32 v%d, v%d" % (RS, SD))

    def ln_apply():
        for k in range(8):
            a("v_sub_f32 v%d, v%d, v%d" % (AC + k, AC + k, M))
        round_pairs(acc, T)
        for k in range(8):
            a("v_mul_f32 v%d, v%d, v%d" % (AC + k, AC + k, RS))

    ln_scalars(MEAN, VAR)
    ln_apply()
    a("s_bitcmp1_b32 s28, 3")
    a("s_cbranch_scc0 R_single")
    round_pairs(acc, T)
    a("v_sub_f32 v%d, v%d, v%d" % (MEAN, MEAN, M))
    a("v_mul_f32 v%d, v%d, v%d" % (MEAN, MEAN, RS))
    a("v_mul_f32 v%d, v%d, v%d" % (VAR, VAR, RS))
    a("v_mul_f32 v%d, v%d, v%d" % (VAR, VAR, RS))
    ln_scalars(MEAN, VAR)
    ln_apply()
    a("R_single:")
    for k in range(4):
        a("v_cvt_pk_bf16_f32 v%d, v%d, v%d" % (T + k, AC + 2 * k, AC + 2 * k + 1))
    a("buffer_store_dwordx4 v[%d:%d], v10, s[48:51], s10 offen%s" % (T, T + 3, ST))
    a("s_endpgm")


def r_entry(label, xsrc, xdst, part, ydst, flags):
    entry(label)
    a("s_cmp_ge_u32 s2, 256")
    a("s_cbranch_scc1 L_exit")
    a("s_load_dwordx2 s[24:25], s[0:1], %d" % KA_WS)
    a("s_load_dwordx2 s[30:31], s[0:1], %d" % KA_B2)
    a("s_load_dwordx2 s[20:21], s[0:1], %d" % (xsrc[1] if xsrc[0] == "ka" else KA_WS))
    a("s_load_dwordx2 s[22:23], s[0:1], %d" % (xdst[1] if xdst[0] == "ka" else KA_WS))
    a("s_mov_b32 s26, %s" % hex(part))
    a("s_mov_b32 s27, %s" % hex(ydst))
    a("s_mov_b32 s28, %d" % flags)
    if xsrc[0] == "ws" or xdst[0] == "ws":
        a("s_waitcnt lgkmcnt(0)")
        if xsrc[0] == "ws":
            a("s_add_u32 s20, s20, %s" % hex(xsrc[1]))
            a("s_addc_u32 s21, s21, 0")
        if xdst[0] == "ws":
            a("s_add_u32 s22, s22, %s" % hex(xdst[1]))
            a("s_addc_u32 s23, s23, 0")
    a("s_branch R_body")


P_LN, P_QKV, P_WO, P_W1, P_W2, P_B1, P_END = 0, 256, 320, 352, 424, 496, 497


def p_kernel():
    entry("p_kernel")
    a("s_cmp_ge_u32 s2, %d" % P_END)
    a("s_cbranch_scc1 L_exit")
    a("s_cmp_ge_u32 s2, %d" % P_QKV)
    a("s_cbranch_scc1 P_w")
    a("s_load_dwordx2 s[24:25], s[0:1], %d" % KA_WS)
    a("s_load_dwordx2 s[30:31], s[0:1], %d" % KA_B2)
    a("s_load_dwordx2 s[20:21], s[0:1], %d" % KA_X)
    a("s_load_dwordx2 s[22:23], s[0:1], %d" % KA_WS)
    a("s_mov_b32 s26, 0")
    a("s_mov_b32 s27, %s" % hex(YB[0]))
    a("s_mov_b32 s28, 4")
    a("s_branch R_body")
    a("P_w:")
    a("s_load_dwordx16 s[4:19], s[0:1], 0")
    a("s_load_dwordx2 s[24:25], s[0:1], %d" % KA_WS)
    a("v_lshrrev_b32 v1, 6, v0")
    a("v_readfirstlane_b32 s3, v1")
    a("v_and_b32 v1, 63, v0")
    a("v_lshlrev_b32 v2, 4, v1")
    a("v_lshrrev_b32 v3, 4, v1")
    a("v_and_b32 v4, 15, v1")
    a("s_waitcnt lgkmcnt(0)")
    srd(40, 24, 0, B1P + 18432)
    a("s_cmp_ge_u32 s2, %d" % P_W1)
    a("s_cbranch_scc1 P_w12")
    a("s_cmp_ge_u32 s2, %d" % P_WO)
    a("s_cbranch_scc1 P_wo")
    srd(36, 6, 0, 576 * 1728 * 2)
    a("s_sub_u32 s20, s2, %d" % P_QKV)
    a("s_mul_i32 s20, s20, 9")
    a("s_add_u32 s20, s20, s3")
    a("s_mul_i32 s21, s20, 3641")
    a("s_lshr_b32 s21, s21, 16")
    a("s_mul_i32 s22, s21, 18")
    a("s_sub_u32 s22, s20, s22")
    a("s_mul_i32 s22, s22, %d" % (32 * 3456))
    a("s_mul_i32 s21, s21, 36")
    a("s_add_u32 s44, s22, s21")
    for j in range(1, 8):
        a("s_add_u32 s%d, s44, %d" % (44 + j, j * 3456))
    a("v_mul_u32_u24 v5, %d, v3" % (8 * 3456))
    a("v_lshl_add_u32 v6, v4, 1, v5")
    a("v_lshrrev_b32 v7, 1, v4")
    a("v_mul_u32_u24 v7, 1152, v7")
    a("v_and_b32 v8, 1, v4")
    a("v_lshl_add_u32 v7, v8, 1, v7")
    a("v_add3_u32 v7, v7, v5, 32")
    a("v_mov_b32 v8, %s" % hex(OOB))
    a("v_cmp_gt_u32 vcc, 6, v4")
    a("v_cndmask_b32 v7, v8, v7, vcc")
    for t in range(4):
        for j in range(8):
            if t < 3:
                a("buffer_load_ushort v%d, v6, s[36:39], s%d offen offset:%d" % (16 + t * 8 + j, 44 + j, t * 1152))
            else:
                a("buffer_load_ushort v%d, v7, s[36:39], s%d offen" % (16 + t * 8 + j, 44 + j))
    a("s_lshl_b32 s20, s20, 12")
    for t in range(4):
        a("s_waitcnt vmcnt(%d)" % (24 - 8 * t + t))
        for k in range(4):
            a("v_lshl_or_b32 v%d, v%d, 16, v%d" % (48 + t * 4 + k, 16 + t * 8 + 2 * k + 1, 16 + t * 8 + 2 * k))
        a("buffer_store_dwordx4 v[%d:%d], v2, s[40:43], s20 offen offset:%d%s" % (48 + t * 4, 51 + t * 4, t * 1024, ST))
    a("s_endpgm")
    a("P_wo:")
    srd(36, 8, 0, 576 * 576 * 2)
    a("s_sub_u32 s20, s2, %d" % P_WO)
    a("s_lshr_b32 s21, s20, 2")
    a("s_and_b32 s22, s20, 3")
    a("s_mul_i32 s22, s22, 9")
    a("s_add_u32 s22, s22, s3")
    a("s_mul_i32 s20, s20, 9")
    a("s_add_u32 s20, s20, s3")
    a("s_mul_i32 s21, s21, %d" % (72 * 1152))
    a("s_lshr_b32 s23, s22, 1")
    a("s_lshl_b32 s23, s23, 6")
    a("s_add_u32 s21, s21, s23")
    a("s_and_b32 s23, s22, 1")
    a("s_lshl_b32 s23, s23, 3")
    a("s_add_u32 s44, s21, s23")
    for hd in range(1, 4):
        a("s_add_u32 s%d, s44, %d" % (44 + hd, hd * 18 * 1152))
    a("v_lshrrev_b32 v5, 2, v4")
    a("v_lshlrev_b32 v5, 4, v5")
    a("v_and_b32 v6, 3, v4")
    a("v_lshl_add_u32 v5, v6, 1, v5")
    a("v_mul_u32_u24 v6, %d, v3" % (4 * 1152))
    a("v_add_u32 v6, v6, v5")
    a("v_add_u32 v7, %d, v5" % (16 * 1152))
    a("v_mov_b32 v8, %s" % hex(OOB))
    a("v_cmp_eq_u32 vcc, 0, v3")
    a("v_cndmask_b32 v7, v8, v7, vcc")
    for st in range(3):
        for j in range(8):
            if st < 2:
                a("buffer_load_ushort v%d, v6, s[36:39], s%d offen offset:%d" % (16 + st * 8 + j, 44 + 2 * st + (j >> 2), (j & 3) * 1152))
            else:
                a("buffer_load_ushort v%d, v7, s[36:39], s%d offen offset:%d" % (16 + st * 8 + j, 44 + (j >> 1), (j & 1) * 1152))
    a("s_mul_i32 s20, s20, 3072")
    a("s_add_u32 s20, s20, %s" % hex(WOP))
    for t in range(3):
        a("s_waitcnt vmcnt(%d)" % (16 - 8 * t + t))
        for k in range(4):
            a("v_lshl_or_b32 v%d, v%d, 16, v%d" % (48 + t * 4 + k, 16 + t * 8 + 2 * k + 1, 16 + t * 8 + 2 * k))
        a("buffer_store_dwordx4 v[%d:%d], v2, s[40:43], s20 offen offset:%d%s" % (48 + t * 4, 51 + t * 4, t * 1024, ST))
    a("s_endpgm")
    a("P_w12:")
    a("s_cmp_ge_u32 s2, %d" % P_B1)
    a("s_cbranch_scc1 P_b1")
    a("v_lshrrev_b32 v5, 3, v1")
    a("v_and_b32 v6, 7, v1")
    a("v_lshlrev_b32 v6, 4, v6")
    a("v_bfe_u32 v7, v1, 2, 2")
    a("v_and_b32 v8, 3, v1")
    a("s_lshl_b32 s21, s3, 13")
    a("s_cmp_ge_u32 s2, %d" % P_W2)
    a("s_cbranch_scc1 P_w2")

    def w12(stride, second, tloff, dst_tl, dst_ks):
        for n in range(8):
            a("s_add_u32 m0, s21, %d" % (n * 1024))
            a("buffer_load_dwordx4 v9, s[36:39], s22 offen lds")
            if n < 7:
                a("s_add_u32 s22, s22, %d" % (8 * stride))
        for ks in range(2):
            a("s_waitcnt vmcnt(%d)" % (4 if ks == 0 else 4))
            for tl in range(4):
                b = 16 + (ks * 4 + tl) * 4
                o = ks * 4096 + tloff(tl)
                a("ds_read_b64_tr_b16 v[%d:%d], v10 offset:%d" % (b, b + 1, o))
                a("ds_read_b64_tr_b16 v[%d:%d], v10 offset:%d" % (b + 2, b + 3, o + second))
            for tl in range(4):
                b = 16 + (ks * 4 + tl) * 4
                a("s_waitcnt lgkmcnt(%d)" % (6 - 2 * tl))
                a("s_add_u32 s26, s23, %d" % (tl * dst_tl + ks * dst_ks))
                a("buffer_store_dwordx4 v[%d:%d], v2, s[40:43], s26 offen%s" % (b, b + 3, ST))
        a("s_endpgm")

    srd(36, 12, 0, 576 * 4608 * 2)
    a("s_sub_u32 s20, s2, %d" % P_W1)
    a("s_mul_i32 s22, s3, %d" % (64 * 9216))
    a("s_lshl_b32 s23, s20, 7")
    a("s_add_u32 s22, s22, s23")
    a("v_mul_u32_u24 v9, 9216, v5")
    a("v_add_u32 v9, v9, v6")
    a("v_lshl_add_u32 v10, v3, 3, v7")
    a("v_lshlrev_b32 v10, 7, v10")
    a("v_lshl_add_u32 v10, v8, 3, v10")
    a("v_add_u32 v10, s21, v10")
    a("s_mul_i32 s23, s20, %d" % (4 * 18432))
    a("s_lshl_b32 s26, s3, 11")
    a("s_add_u32 s23, s23, s26")
    a("s_add_u32 s23, s23, %s" % hex(W1P))
    w12(9216, 512, lambda tl: tl * 32, 18432, 1024)
    a("P_w2:")
    srd(36, 16, 0, 576 * 4608 * 2)
    a("s_sub_u32 s20, s2, %d" % P_W2)
    a("s_mul_i32 s22, s20, %d" % (64 * 1152))
    a("s_lshl_b32 s23, s3, 7")
    a("s_add_u32 s22, s22, s23")
    a("v_mul_u32_u24 v9, 1152, v5")
    a("v_add_u32 v9, v9, v6")
    a("v_lshl_add_u32 v10, v3, 2, v7")
    a("v_lshlrev_b32 v10, 7, v10")
    a("v_lshl_add_u32 v10, v8, 4, v10")
    a("v_add_u32 v10, s21, v10")
    a("s_mul_i32 s26, s20, 57")
    a("s_lshr_b32 s26, s26, 9")
    a("s_mul_i32 s27, s26, 9")
    a("s_sub_u32 s27, s20, s27")
    a("s_mul_i32 s23, s26, %d" % (36 * 18432))
    a("s_mul_i32 s26, s3, %d" % (4 * 18432))
    a("s_add_u32 s23, s23, s26")
    a("s_lshl_b32 s27, s27, 11")
    a("s_add_u32 s23, s23, s27")
    a("s_add_u32 s23, s23, %s" % hex(W2P))
    w12(1152, 2048, lambda tl: (tl >> 1) * 64 + (tl & 1) * 8, 18432, 1024)
    a("P_b1:")
    srd(36, 14, 0, 4608 * 2)
    a("v_lshlrev_b32 v5, 4, v0")
    a("buffer_load_dwordx4 v[16:19], v5, s[36:39], 0 offen")
    a("v_lshlrev_b32 v5, 5, v0")
    a("s_mov_b32 s20, %s" % hex(B1P))
    a("s_waitcnt vmcnt(0)")
    for k in range(4):
        a("v_lshlrev_b32 v%d, 16, v%d" % (20 + 2 * k, 16 + k))
        a("v_and_b32 v%d, 0xffff0000, v%d" % (21 + 2 * k, 16 + k))
    a("buffer_store_dwordx4 v[20:23], v5, s[40:43], s20 offen%s" % ST)
    a("buffer_store_dwordx4 v[24:27], v5, s[40:43], s20 offen offset:16%s" % ST)
    a("s_endpgm")


def lane_common():
    a("v_lshrrev_b32 v1, 6, v0")
    a("v_readfirstlane_b32 s3, v1")
    a("v_and_b32 v1, 63, v0")
    a("v_lshlrev_b32 v2, 4, v1")
    a("v_lshrrev_b32 v3, 4, v1")
    a("v_and_b32 v4, 15, v1")
    a("v_lshrrev_b32 v5, 2, v4")
    a("v_lshlrev_b32 v5, 8, v5")
    a("v_lshl_add_u32 v5, v3, 6, v5")
    a("v_and_b32 v6, 3, v1")
    a("v_lshl_add_u32 v5, v6, 4, v5")


A_LDS_SCR = 92160
A_LDS_OX = A_LDS_SCR + 8192
A_LDS = A_LDS_OX + 12288


def a_body():
    a("A_body:")
    vm = VM()
    lane_common()
    a("s_and_b32 s4, s2, 7")
    a("s_lshr_b32 s5, s2, 3")
    a("s_mul_i32 s6, s5, 43")
    a("s_lshr_b32 s6, s6, 8")
    a("s_mul_i32 s6, s6, 6")
    a("s_sub_u32 s6, s5, s6")
    KY, KW = 56, 62
    for G in range(6):
        a("s_mul_i32 s%d, s6, 3072" % (KY + G))
        a("s_mul_i32 s%d, s6, 12288" % (KW + G))
        if G < 5:
            a("s_add_u32 s6, s6, 1")
            a("s_cmp_eq_u32 s6, 6")
            a("s_cselect_b32 s6, 0, s6")
    a("s_lshl_b32 s7, s5, 2")
    a("s_add_u32 s8, s7, s3")
    a("s_mul_i32 s8, s8, 18432")
    a("v_add_u32 v7, s8, v5")
    a("s_min_u32 s9, s3, 2")
    a("s_sub_u32 s8, s7, 1")
    a("s_mul_i32 s8, s8, 18")
    a("s_add_u32 s8, s8, s9")
    a("s_lshl_b32 s8, s8, 10")
    a("s_cmp_eq_u32 s5, 0")
    a("s_cselect_b32 s8, %s, s8" % hex(OOB))
    a("v_add_u32 v8, s8, v5")
    a("s_add_u32 s10, s3, 1")
    a("s_mul_i32 s10, s10, 18432")
    a("s_lshl_b32 s11, s9, 10")
    a("s_lshl_b32 s12, s4, 2")
    a("s_add_u32 s12, s12, s3")
    a("s_mul_i32 s12, s12, 73728")
    a("v_add_u32 v9, s12, v2")
    a("v_add_u32 v10, 4096, v9")
    a("v_add_u32 v11, 8192, v9")
    a("s_mul_i32 s12, s4, 36")
    a("s_mul_i32 s13, s3, 9")
    a("s_add_u32 s12, s12, s13")
    a("s_mul_i32 s12, s12, 3072")
    a("s_add_u32 s12, s12, %s" % hex(WOP))
    a("v_add_u32 v12, 46080, v2")
    a("s_waitcnt lgkmcnt(0)")
    srd(36, 24, "s26", ACT)
    srd(40, 24, 0, W1P)
    a("s_mul_i32 s13, s4, %d" % ACT)
    a("s_add_u32 s13, s13, s27")
    srd(44, 24, "s13", ACT)

    def ydma(G):
        a("s_add_u32 m0, s10, %d" % (G * 3072))
        for i in range(3):
            vm.op("buffer_load_dwordx4 v7, s[36:39], s%d offen offset:%d lds" % (KY + G, i * 1024), ("y", G))
        a("s_add_u32 m0, s11, %d" % (G * 3072))
        vm.op("buffer_load_dwordx4 v8, s[36:39], s%d offen lds" % (KY + G), ("y", G))

    def wslot(i, t):
        return ((i % 9) * 4 + t) * 4

    def wload(i):
        for t in range(4):
            b = wslot(i, t)
            vm.op("buffer_load_dwordx4 a[%d:%d], v%d, s[40:43], s%d offen offset:%d" % (b, b + 3, 9 + i % 3, KW + i // 3, t * 1024), ("w", i))

    for G in range(3):
        ydma(G)
        for i in range(3 * G, 3 * G + 3):
            wload(i)
    for G in range(3, 6):
        ydma(G)

    QA, KA, VA, CA = 16, 32, 52, 72
    YF = 92
    MSK = 132
    SM = 136
    G0M = 140
    a("v_and_b32 v13, 1, v4")
    a("v_cmp_eq_u32 s[70:71], 1, v13")
    a("v_lshl_add_u32 v14, v3, 2, v13")
    a("v_cmp_ge_u32 s[72:73], v4, v14")
    a("v_add_u32 v14, 2, v14")
    a("v_cmp_ge_u32 s[74:75], v4, v14")
    a("v_mov_b32 v13, 0xffff")
    a("v_mov_b32 v14, 0xffff0000")
    a("v_cndmask_b32 v13, v13, v14, s[70:71]")
    a("v_cndmask_b32 v%d, v13, 0, s[72:73]" % (MSK + 0))
    a("v_cndmask_b32 v%d, v13, 0, s[74:75]" % (MSK + 1))
    a("v_cndmask_b32 v%d, 0, v13, s[72:73]" % (MSK + 2))
    a("v_cndmask_b32 v%d, 0, v13, s[74:75]" % (MSK + 3))
    a("s_cmp_eq_u32 s5, 0")
    a("s_cselect_b32 s14, %s, 0" % f32bits(-1e9 * math.sqrt(18.0)))
    for k in range(4):
        a("v_mov_b32 v%d, s14" % (SM + k))
    a("v_cmp_eq_u32 vcc, 0, v3")
    a("v_cndmask_b32 v%d, 0, -1, vcc" % G0M)
    a("s_lshl_b32 s14, s3, 11")
    a("s_add_u32 s14, s14, %d" % A_LDS_SCR)
    a("v_lshlrev_b32 v141, 9, v3")
    a("v_lshl_add_u32 v141, v4, 1, v141")
    a("v_add_u32 v141, s14, v141")
    a("v_and_b32 v142, 1, v4")
    a("v_mul_u32_u24 v142, 160, v142")
    a("v_lshl_add_u32 v142, v3, 3, v142")
    a("s_add_u32 s14, s14, 512")
    a("v_add_u32 v142, s14, v142")
    a("s_lshr_b32 s14, s3, 1")
    a("s_lshl_b32 s14, s14, 10")
    a("s_and_b32 s15, s3, 1")
    a("s_lshl_b32 s15, s15, 3")
    a("s_add_u32 s14, s14, s15")
    a("s_add_u32 s14, s14, %d" % A_LDS_OX)
    a("v_add_u32 v143, s14, v2")
    a("s_lshl_b32 s14, s3, 2")
    a("s_add_u32 s14, s14, %d" % (A_LDS_OX + 2048))
    a("v_add_u32 v144, s14, v2")
    a("v_add_u32 v145, %d, v2" % A_LDS_OX)
    a("s_mul_i32 s14, s5, %d" % TB)
    a("s_mul_i32 s15, s3, 18432")
    a("s_add_u32 s14, s14, s15")
    a("v_add_u32 v146, s14, v5")

    def yread(i):
        for T in range(5):
            off = (T * 18 + i) * 1024
            base = 2
            if off >= 46080:
                off -= 46080
                base = 12
            b = YF + (i % 2) * 20 + T * 4
            a("ds_read_b128 v[%d:%d], v%d offset:%d" % (b, b + 3, base, off))

    vm.wait(("y", 0))
    a("s_barrier")
    yread(0)
    for i in range(18):
        if i + 1 < 18:
            if (i + 1) % 3 == 0:
                vm.wait(("y", (i + 1) // 3))
                a("s_barrier")
            yread(i + 1)
            a("s_waitcnt lgkmcnt(5)")
        else:
            a("s_waitcnt lgkmcnt(0)")
        vm.wait(("w", i))
        for T in range(5):
            y = "v[%d:%d]" % (YF + (i % 2) * 20 + T * 4, YF + (i % 2) * 20 + T * 4 + 3)
            for t, base in ((1, KA), (2, VA), (3, CA), (0, QA)):
                if t == 0 and T == 0:
                    continue
                d = base + (T - 1 if t == 0 else T) * 4
                w = "a[%d:%d]" % (wslot(i, t), wslot(i, t) + 3)
                c = "0" if i == 0 else "v[%d:%d]" % (d, d + 3)
                A_, B_ = (y, w) if t == 2 else (w, y)
                a("v_mfma_f32_16x16x32_bf16 v[%d:%d], %s, %s, %s" % (d, d + 3, A_, B_, c))
        if i < 9:
            wload(i + 9)
        else:
            for st in range(3):
                b = wslot(i, st)
                vm.op("buffer_load_dwordx4 a[%d:%d], v2, s[40:43], s12 offen offset:%d" % (b, b + 3, st * 1024), ("wo", i - 9))
            a("s_add_u32 s12, s12, 3072")

    QO, KO, VP, X0, V2 = 148, 164, 184, 194, 196
    for T in range(5):
        xd = X0 if T == 0 else QO + (T - 1) * 4 + 2
        a("v_cvt_pk_bf16_f32 v%d, v%d, v%d" % (xd, CA + T * 4, CA + T * 4 + 1))
        a("ds_write_b16 v141, v%d offset:%d" % (xd, T * 32))
        a("ds_write_b16_d16_hi v141, v%d offset:%d" % (xd, T * 32 + 160))
    for T in range(5):
        a("v_cvt_pk_bf16_f32 v%d, v%d, v%d" % (KO + T * 4 + 2, CA + T * 4 + 2, CA + T * 4 + 3))
        a("v_cvt_pk_bf16_f32 v%d, v%d, v%d" % (KO + T * 4, KA + T * 4, KA + T * 4 + 1))
        a("v_cvt_pk_bf16_f32 v%d, v%d, v%d" % (KO + T * 4 + 1, KA + T * 4 + 2, KA + T * 4 + 3))
        a("v_mov_b32 v%d, 0" % (KO + T * 4 + 3))
        if T:
            q = QO + (T - 1) * 4
            a("v_cvt_pk_bf16_f32 v%d, v%d, v%d" % (q, QA + (T - 1) * 4, QA + (T - 1) * 4 + 1))
            a("v_cvt_pk_bf16_f32 v%d, v%d, v%d" % (q + 1, QA + (T - 1) * 4 + 2, QA + (T - 1) * 4 + 3))
            a("v_mov_b32 v%d, 0" % (q + 3))
    for T in range(5):
        a("ds_read_b64 v[%d:%d], v142 offset:%d" % (V2 + 2 * T, V2 + 2 * T + 1, T * 32))
    SP = YF
    for T in range(1, 5):
        q = "v[%d:%d]" % (QO + (T - 1) * 4, QO + (T - 1) * 4 + 3)
        sp = SP + (T - 1) * 8
        c = "v[%d:%d]" % (SM, SM + 3) if T == 1 else "0"
        a("v_mfma_f32_16x16x32_bf16 v[%d:%d], v[%d:%d], %s, %s" % (sp, sp + 3, KO + (T - 1) * 4, KO + (T - 1) * 4 + 3, q, c))
        a("v_mfma_f32_16x16x32_bf16 v[%d:%d], v[%d:%d], %s, 0" % (sp + 4, sp + 7, KO + T * 4, KO + T * 4 + 3, q))
    for T in range(5):
        a("v_cvt_pk_bf16_f32 v%d, v%d, v%d" % (VP + 2 * T, VA + T * 4, VA + T * 4 + 1))
        a("v_cvt_pk_bf16_f32 v%d, v%d, v%d" % (VP + 2 * T + 1, VA + T * 4 + 2, VA + T * 4 + 3))
    cs = (18.0 ** -0.5) * math.log2(math.e)
    a("s_mov_b32 s14, %s" % f32bits(cs))
    W = lambda T, k: 16 + (T - 1) * 8 + k
    Ts = range(1, 5)
    for T in Ts:
        sp = SP + (T - 1) * 8
        a("v_cndmask_b32 v%d, v%d, v%d, s[70:71]" % (W(T, 2), sp + 4, sp + 5))
        a("v_cndmask_b32 v%d, v%d, v%d, s[70:71]" % (W(T, 3), sp + 0, sp + 1))
        a("v_cndmask_b32 v%d, v%d, v%d, s[70:71]" % (W(T, 4), sp + 6, sp + 7))
        a("v_cndmask_b32 v%d, v%d, v%d, s[70:71]" % (W(T, 5), sp + 2, sp + 3))
        a("v_cndmask_b32 v%d, v%d, v%d, s[72:73]" % (W(T, 0), W(T, 3), W(T, 2)))
        a("v_cndmask_b32 v%d, v%d, v%d, s[74:75]" % (W(T, 1), W(T, 5), W(T, 4)))
        a("v_max_f32 v%d, v%d, v%d" % (W(T, 2), W(T, 0), W(T, 1)))
        a("v_mov_b32 v%d, v%d" % (W(T, 3), W(T, 2)))

    def xlane(op):
        for T in Ts:
            a("v_permlane16_swap_b32 v%d, v%d" % (W(T, 2), W(T, 3)))
        for T in Ts:
            a("%s v%d, v%d, v%d" % (op, W(T, 2), W(T, 2), W(T, 3)))
            a("v_mov_b32 v%d, v%d" % (W(T, 3), W(T, 2)))
        for T in Ts:
            a("v_permlane32_swap_b32 v%d, v%d" % (W(T, 2), W(T, 3)))
        for T in Ts:
            a("%s v%d, v%d, v%d" % (op, W(T, 2), W(T, 2), W(T, 3)))

    xlane("v_max_f32")
    for T in Ts:
        a("v_sub_f32 v%d, v%d, v%d" % (W(T, 0), W(T, 0), W(T, 2)))
        a("v_sub_f32 v%d, v%d, v%d" % (W(T, 1), W(T, 1), W(T, 2)))
        a("v_mul_f32 v%d, s14, v%d" % (W(T, 0), W(T, 0)))
        a("v_mul_f32 v%d, s14, v%d" % (W(T, 1), W(T, 1)))
    for T in Ts:
        a("v_exp_f32 v%d, v%d" % (W(T, 0), W(T, 0)))
        a("v_exp_f32 v%d, v%d" % (W(T, 1), W(T, 1)))
    for T in Ts:
        a("v_add_f32 v%d, v%d, v%d" % (W(T, 2), W(T, 0), W(T, 1)))
        a("v_mov_b32 v%d, v%d" % (W(T, 3), W(T, 2)))
    xlane("v_add_f32")
    for T in Ts:
        a("v_rcp_f32 v%d, v%d" % (W(T, 2), W(T, 2)))
    for T in Ts:
        a("v_mul_f32 v%d, v%d, v%d" % (W(T, 0), W(T, 0), W(T, 2)))
        a("v_mul_f32 v%d, v%d, v%d" % (W(T, 1), W(T, 1), W(T, 2)))
        a("v_cvt_pk_bf16_f32 v%d, v%d, v%d" % (W(T, 0), W(T, 0), W(T, 0)))
        a("v_cvt_pk_bf16_f32 v%d, v%d, v%d" % (W(T, 1), W(T, 1), W(T, 1)))
        a("v_and_b32 v%d, v%d, v%d" % (W(T, 4), W(T, 0), MSK + 0))
        a("v_and_b32 v%d, v%d, v%d" % (W(T, 5), W(T, 1), MSK + 1))
        a("v_and_b32 v%d, v%d, v%d" % (W(T, 6), W(T, 0), MSK + 2))
        a("v_and_b32 v%d, v%d, v%d" % (W(T, 7), W(T, 1), MSK + 3))
    a("s_waitcnt lgkmcnt(0)")
    for T in Ts:
        sp = SP + (T - 1) * 8
        p = "v[%d:%d]" % (W(T, 4), W(T, 7))
        a("v_mfma_f32_16x16x32_bf16 v[%d:%d], v[%d:%d], %s, 0" % (sp, sp + 3, VP + 2 * (T - 1), VP + 2 * (T - 1) + 3, p))
        a("v_mfma_f32_16x16x32_bf16 v[%d:%d], v[%d:%d], %s, 0" % (sp + 4, sp + 7, V2 + 2 * (T - 1), V2 + 2 * (T - 1) + 3, p))
    for T in Ts:
        sp = SP + (T - 1) * 8
        o = 48 + (T - 1) * 4
        a("v_cvt_pk_bf16_f32 v%d, v%d, v%d" % (o, sp, sp + 1))
        a("v_cvt_pk_bf16_f32 v%d, v%d, v%d" % (o + 1, sp + 2, sp + 3))
        a("v_cvt_pk_bf16_f32 v%d, v%d, v%d" % (o + 2, sp + 4, sp + 5))
        a("v_and_b32 v%d, v%d, v%d" % (o + 2, o + 2, G0M))
        a("ds_write_b64 v143, v[%d:%d] offset:%d" % (o, o + 1, (T - 1) * 3072))
        a("ds_write_b32 v144, v%d offset:%d" % (o + 2, (T - 1) * 3072))
    a("s_waitcnt lgkmcnt(0)")
    a("s_barrier")
    OF = 148
    for T in range(4):
        for st in range(3):
            b = OF + (T * 3 + st) * 4
            a("ds_read_b128 v[%d:%d], v145 offset:%d" % (b, b + 3, (T * 3 + st) * 1024))
    a("s_mov_b32 s14, 0")
    AC2 = 64

    def wo_epi(tl):
        ac = AC2 + (tl % 2) * 16
        pk = 96 + (tl % 2) * 8
        for T in range(4):
            a("v_cvt_pk_bf16_f32 v%d, v%d, v%d" % (pk + 2 * T, ac + 4 * T, ac + 4 * T + 1))
            a("v_cvt_pk_bf16_f32 v%d, v%d, v%d" % (pk + 2 * T + 1, ac + 4 * T + 2, ac + 4 * T + 3))
        vm.op("buffer_store_dwordx4 v[%d:%d], v146, s[44:47], s14 offen%s" % (pk, pk + 3, ST), "st")
        vm.op("buffer_store_dwordx4 v[%d:%d], v146, s[44:47], s14 offen offset:1024%s" % (pk + 4, pk + 7, ST), "st")
        a("s_add_u32 s14, s14, 2048")

    for tl in range(9):
        vm.wait(("wo", tl))
        if tl == 0:
            a("s_waitcnt lgkmcnt(0)")
        ac = AC2 + (tl % 2) * 16
        for st in range(3):
            for T in range(4):
                w = wslot(tl + 9, st)
                o = OF + (T * 3 + st) * 4
                c = "0" if st == 0 else "v[%d:%d]" % (ac + 4 * T, ac + 4 * T + 3)
                a("v_mfma_f32_16x16x32_bf16 v[%d:%d], a[%d:%d], v[%d:%d], %s" % (ac + 4 * T, ac + 4 * T + 3, w, w + 3, o, o + 3, c))
            if st == 1 and tl > 0:
                wo_epi(tl - 1)
    wo_epi(8)
    a("s_endpgm")


def am_entry(label, body, yoff, part):
    entry(label)
    a("s_cmp_ge_u32 s2, 256")
    a("s_cbranch_scc1 L_exit")
    a("s_load_dwordx2 s[24:25], s[0:1], %d" % KA_WS)
    a("s_mov_b32 s26, %s" % hex(yoff))
    a("s_mov_b32 s27, %s" % hex(part))
    a("s_branch %s" % body)


M_LDS = 2 * TB


def m_body():
    a("M_body:")
    lane_common()
    RING, ACC, FIN, BIAS, TMP, PK = 16, 88, 104, 120, 124, 148
    C1 = 15

    def fr(T, s):
        k = s * 4 + T
        return "a[%d:%d]" % (k * 4, k * 4 + 3) if k < 64 else "v[%d:%d]" % (224 + (k - 64) * 4, 224 + (k - 64) * 4 + 3)

    a("s_and_b32 s4, s2, 7")
    a("s_lshr_b32 s5, s2, 3")
    a("s_mul_i32 s6, s5, 57")
    a("s_lshr_b32 s6, s6, 9")
    a("s_mul_i32 s6, s6, 9")
    a("s_sub_u32 s6, s5, s6")
    a("s_lshl_b32 s7, s5, 2")
    a("s_add_u32 s7, s7, s3")
    a("s_mul_i32 s7, s7, 18432")
    a("v_add_u32 v6, s7, v5")
    a("s_mul_i32 s8, s3, 18432")
    a("s_mul_i32 s9, s4, 36")
    a("s_mul_i32 s10, s3, 9")
    a("s_add_u32 s9, s9, s10")
    a("s_mul_i32 s11, s9, 18432")
    a("v_add_u32 v7, s11, v2")
    for k in range(1, 5):
        a("v_add_u32 v%d, %d, v7" % (7 + k, 4096 * k))
    a("s_lshl_b32 s11, s9, 6")
    a("s_add_u32 s11, s11, %s" % hex(B1P - W1P))
    a("v_lshl_add_u32 v12, v3, 4, s11")
    a("v_add_u32 v13, 36864, v2")
    a("s_mul_i32 s11, s5, %d" % TB)
    a("s_add_u32 s11, s11, s8")
    a("v_add_u32 v14, s11, v5")
    a("v_mov_b32 v%d, %s" % (C1, f32bits(-2.0 * math.sqrt(2.0 / math.pi) * math.log2(math.e) * 0.044715)))
    a("s_waitcnt lgkmcnt(0)")
    srd(36, 24, "s26", ACT)
    srd(40, 24, W1P, B1P + 18432 - W1P)
    a("s_mul_i32 s11, s4, %d" % ACT)
    a("s_add_u32 s11, s11, s27")
    srd(44, 24, "s11", ACT)
    for s in range(18):
        if s % 4 == 0:
            a("s_add_u32 m0, s8, %d" % (s * 1024))
            a("s_mov_b32 s11, %d" % (s * 1024))
        a("buffer_load_dwordx4 v6, s[36:39], s11 offen offset:%d lds" % ((s % 4) * 1024))

    def wload(s, soff):
        b = RING + s * 4
        a("buffer_load_dwordx4 v[%d:%d], v%d, s[40:43], %s offen offset:%d" % (b, b + 3, 7 + s // 4, soff, (s % 4) * 1024))

    a("s_mul_i32 s12, s6, 18432")
    a("s_lshl_b32 s13, s6, 6")
    a("buffer_load_dwordx4 v[%d:%d], v12, s[40:43], s13 offen" % (BIAS, BIAS + 3))
    for s in range(18):
        wload(s, "s12")

    def act_read(ldsbase):
        for s in range(18):
            for T in range(4):
                off = (T * 18 + s) * 1024
                base = "v2"
                if off >= 36864:
                    off -= 36864
                    base = "v13"
                a("ds_read_b128 %s, %s offset:%d" % (fr(T, s), base, off))

    a("s_waitcnt vmcnt(19)")
    a("s_barrier")
    act_read(0)
    HW = 160
    def hw_addr():
        a("s_add_u32 s14, s10, s6")
        a("s_lshr_b32 s15, s14, 1")
        a("s_lshl_b32 s15, s15, 10")
        a("s_and_b32 s14, s14, 1")
        a("s_lshl_b32 s14, s14, 3")
        a("s_add_u32 s14, s14, s15")
        a("s_add_u32 s16, s14, %d" % TB)
    hw_addr()
    a("v_add_u32 v%d, s16, v2" % HW)
    a("s_mov_b32 s17, 0")
    a("s_waitcnt lgkmcnt(0)")

    def gelu_ops():
        ops = []
        c0 = f32bits(-2.0 * math.sqrt(2.0 / math.pi) * math.log2(math.e))
        for T in range(4):
            x = [FIN + 4 * T + r for r in range(4)]
            t = [TMP + (T % 2) * 8 + r for r in range(4)]
            pk = TMP + (T % 2) * 8 + 4
            for r in range(4):
                ops.append(("v_mul_f32 v%d, v%d, v%d" % (t[r], x[r], x[r]), 4))
            for r in range(4):
                ops.append(("v_fmaak_f32 v%d, v%d, v%d, %s" % (t[r], t[r], C1, c0), 4))
            for r in range(4):
                ops.append(("v_mul_f32 v%d, v%d, v%d" % (t[r], t[r], x[r]), 4))
            for r in range(4):
                ops.append(("v_exp_f32 v%d, v%d" % (t[r], t[r]), 8))
            for r in range(4):
                ops.append(("v_add_f32 v%d, 1.0, v%d" % (t[r], t[r]), 4))
            for r in range(4):
                ops.append(("v_rcp_f32 v%d, v%d" % (t[r], t[r]), 8))
            for r in range(4):
                ops.append(("v_mul_f32 v%d, v%d, v%d" % (t[r], t[r], x[r]), 4))
            ops.append(("v_cvt_pk_bf16_f32 v%d, v%d, v%d" % (pk, t[0], t[1]), 4))
            ops.append(("v_cvt_pk_bf16_f32 v%d, v%d, v%d" % (pk + 1, t[2], t[3]), 4))
            ops.append(("ds_write_b64 v%d, v[%d:%d] offset:%d" % (HW, pk, pk + 1, T * 18432), 4))
        return ops

    def out_ops():
        ops = []
        for T in range(4):
            ops.append(("v_cvt_pk_bf16_f32 v%d, v%d, v%d" % (PK + 2 * T, FIN + 4 * T, FIN + 4 * T + 1), 4))
            ops.append(("v_cvt_pk_bf16_f32 v%d, v%d, v%d" % (PK + 2 * T + 1, FIN + 4 * T + 2, FIN + 4 * T + 3), 4))
            if T % 2 == 1:
                ops.append(("buffer_store_dwordx4 v[%d:%d], v14, s[44:47], s18 offen offset:%d%s" % (PK + 2 * T - 2, PK + 2 * T + 1, (T // 2) * 1024, ST), 4))
        return ops

    def tile_loop(label, gemm, fill, first_gap, last_gap, nextra):
        a("%s:" % label)
        total = sum(c for _, c in fill)
        ngaps = last_gap - first_gap + 1
        fi = 0
        spent = 0
        m = 0
        for s in range(18):
            if s % 2 == 0:
                a("s_waitcnt vmcnt(%d)" % (16 + nextra(s)))
            for T in range(4):
                w = "v[%d:%d]" % (RING + s * 4, RING + s * 4 + 3)
                d = (FIN if s == 17 else ACC) + 4 * T
                if s == 0:
                    c = "v[%d:%d]" % (BIAS, BIAS + 3) if gemm == 1 else "0"
                else:
                    c = "v[%d:%d]" % (ACC + 4 * T, ACC + 4 * T + 3)
                a("v_mfma_f32_16x16x32_bf16 v[%d:%d], %s, %s, %s" % (d, d + 3, w, fr(T, s), c))
                if T == 3:
                    wload(s, "s19")
                    if s == 0 and gemm == 1:
                        a("buffer_load_dwordx4 v[%d:%d], v12, s[40:43], s13 offen" % (BIAS, BIAS + 3))
                if first_gap <= m <= last_gap:
                    budget = total * (m - first_gap + 1) / ngaps
                    while fi < len(fill) and spent + fill[fi][1] / 2 <= budget:
                        a(fill[fi][0])
                        spent += fill[fi][1]
                        fi += 1
                m += 1
        assert fi == len(fill), (fi, len(fill))

    def next_tile():
        a("s_add_u32 s20, s6, 1")
        a("s_cmp_eq_u32 s20, 9")
        a("s_cselect_b32 s20, 0, s20")
        a("s_mul_i32 s19, s20, 18432")
        a("s_lshl_b32 s13, s20, 6")

    next_tile()
    a("M_g1_top:")
    a("s_cmp_eq_u32 s17, 8")
    a("s_cselect_b32 s21, %s, 0" % hex(W2P - W1P))
    a("s_add_u32 s19, s19, s21")
    tile_loop("M_g1", 1, gelu_ops(), 3, 66, lambda s: 1 if s > 0 else 0)
    hw_addr()
    a("v_add_u32 v%d, s16, v2" % HW)
    a("s_mov_b32 s6, s20")
    next_tile()
    a("s_add_u32 s17, s17, 1")
    a("s_cmp_lt_u32 s17, 9")
    a("s_cbranch_scc1 M_g1_top")
    for op, _ in gelu_ops():
        a(op)
    a("s_waitcnt lgkmcnt(0)")
    a("s_barrier")
    a("v_add_u32 v2, %d, v2" % TB)
    a("v_add_u32 v13, %d, v13" % TB)
    act_read(TB)
    a("s_mov_b32 s17, 0")
    a("s_mov_b32 s18, %s" % hex(OOB))
    a("s_mov_b32 s22, %s" % hex(W2P - W1P))
    a("s_waitcnt lgkmcnt(0)")
    a("M_g2_top:")
    a("s_cmp_eq_u32 s17, 8")
    a("s_cselect_b32 s21, %s, s22" % hex(OOB))
    a("s_add_u32 s19, s19, s21")
    tile_loop("M_g2", 2, out_ops(), 8, 20, lambda s: 0 if s < 6 else 2)
    a("s_lshl_b32 s18, s6, 11")
    a("s_mov_b32 s6, s20")
    next_tile()
    a("s_add_u32 s17, s17, 1")
    a("s_cmp_lt_u32 s17, 9")
    a("s_cbranch_scc1 M_g2_top")
    for op, _ in out_ops():
        a(op)
    a("s_endpgm")


def descriptor(label, vgpr, accum, sgpr=96):
    return """.amdhsa_kernel %s
  .amdhsa_next_free_vgpr %d
  .amdhsa_next_free_sgpr %d
  .amdhsa_accum_offset %d
  .amdhsa_group_segment_fixed_size 0
  .amdhsa_kernarg_size 88
  .amdhsa_user_sgpr_count 2
  .amdhsa_user_sgpr_kernarg_segment_ptr 1
  .amdhsa_system_sgpr_workgroup_id_x 1
.end_amdhsa_kernel
""" % (label, vgpr, sgpr, accum)


def build():
    launches = [
        ("p_kernel", P_END, 576, 73728, 80, 80),
        ("a1_kernel", 256, 256, A_LDS, 208 + 144, 208),
        ("r1_kernel", 256, 576, 1024, 80, 80),
        ("m1_kernel", 256, 256, M_LDS, 512, 256),
        ("r2_kernel", 256, 576, 1024, 80, 80),
        ("a2_kernel", 256, 256, A_LDS, 208 + 144, 208),
        ("r3_kernel", 256, 576, 1024, 80, 80),
        ("m2_kernel", 256, 256, M_LDS, 512, 256),
        ("r4_kernel", 256, 576, 1024, 80, 80),
    ]
    p_kernel()
    a("L_exit:")
    a("s_endpgm")
    r_body()
    r_entry("r1_kernel", ("ka", KA_X), ("ws", XB[1]), PART[0], YB[1], 1 | 4 | 8)
    r_entry("r2_kernel", ("ws", XB[1]), ("ws", XB[2]), PART[1], YB[2], 1 | 2 | 4)
    r_entry("r3_kernel", ("ws", XB[2]), ("ws", XB[3]), PART[2], YB[3], 1 | 4 | 8)
    r_entry("r4_kernel", ("ws", XB[3]), ("ka", KA_OUT), PART[3], YB[0], 1 | 2)
    am_entry("a1_kernel", "A_body", YB[0], PART[0])
    am_entry("a2_kernel", "A_body", YB[2], PART[2])
    a_body()
    am_entry("m1_kernel", "M_body", YB[1], PART[1])
    am_entry("m2_kernel", "M_body", YB[3], PART[3])
    m_body()
    errs = a.check_branch_seams()
    for e in errs:
        print("WARN", e, file=sys.stderr)
    head = "; generated by work/gen.py (hand-written generator)\n"
    for l, g, b, lds, _, _ in launches:
        head += "; @launch kernel=%s grid=(%d,1,1) block=(%d,1,1) lds=%d\n" % (l, g, b, lds)
    head += '.amdgcn_target "amdgcn-amd-amdhsa--gfx950"\n.text\n'
    tail = '.section .rodata,"a"\n'
    for l, g, b, lds, v, ac in launches:
        tail += ".p2align 6\n" + descriptor(l, v, ac)
    return head + a.text() + tail


if __name__ == "__main__":
    out = sys.argv[1] if len(sys.argv) > 1 else "cdna_kernels/%s.s" % NAME
    open(out, "w").write(build())
    print("wrote", out)
```

```python
import sys, math
from asmlib import Asm, vr, f32bits

NAME = "interleave_layers__sliding_local_dilated__mixer_channel_mlp__prompt"
ACT = 2048 * 576 * 2
TB = 73728
WQKVP = 0
WOP = WQKVP + 2304 * 1024
W1P = WOP + 864 * 1024
W2P = W1P + 5184 * 1024
B1P = W2P + 5184 * 1024
YB = [14 * 1024 * 1024 + i * ACT for i in range(4)]
XB = [None] + [YB[3] + ACT + i * ACT for i in range(3)]
PART = [32 * 1024 * 1024 + i * 8 * ACT for i in range(4)]
WS_BYTES = 268435456
OOB = 0x80000000
import os
MAPB = int(os.environ.get("MAPB", "2"))
MROT = int(os.environ.get("MROT", "3"))
AROT = int(os.environ.get("AROT", "3"))
ABL = os.environ.get("ABL", "")
PKG = int(os.environ.get("PKG", "0"))
MST = os.environ.get("MST", " sc1").replace("_", " ")
MG0 = int(os.environ.get("MG0", "8"))
MG1 = int(os.environ.get("MG1", "20"))
ARD = int(os.environ.get("ARD", "3"))
MRING = int(os.environ.get("MRING", "36"))
APRE = int(os.environ.get("APRE", "3"))
ST = " sc1"

KA_X, KA_WQKV, KA_WO, KA_BX, KA_W1, KA_B1, KA_W2, KA_B2, KA_OUT, KA_DBG, KA_WS = [8 * i for i in range(11)]

a = Asm()
import os
PROF = os.environ.get("PROF", "")
STAMP = 200 * 1024 * 1024


def stamp(k):
    if PROF:
        a("s_memtime s[%d:%d]" % (76 + 2 * k, 77 + 2 * k))


def stamp_flush(n, wave_sgpr, slot_sgpr):
    if not PROF:
        return
    a("s_waitcnt vmcnt(0)")
    stamp(n)
    a("s_memrealtime s[74:75]")
    a("s_waitcnt lgkmcnt(0)")
    srd(96, 24, STAMP, 1 << 24)
    a("s_lshl_b32 s100, s2, 4")
    a("s_add_u32 s100, s100, %s" % wave_sgpr)
    a("s_lshl_b32 s100, s100, 6")
    a("s_lshl_b32 s101, %s, 19" % slot_sgpr)
    a("s_add_u32 s100, s100, s101")
    a("v_mov_b32 v1, 0")
    for k in range(n + 1):
        a("v_mov_b32 v2, s%d" % (76 + 2 * k))
        a("buffer_store_dword v2, v1, s[96:99], s100 offen offset:%d" % (4 * k))
    a("v_mov_b32 v2, s74")
    a("buffer_store_dword v2, v1, s[96:99], s100 offen offset:60")


def srd(d, base, off, nbytes):
    if off == 0:
        a("s_mov_b32 s%d, s%d" % (d, base))
        a("s_mov_b32 s%d, s%d" % (d + 1, base + 1))
    else:
        a("s_add_u32 s%d, s%d, %s" % (d, base, off if isinstance(off, str) else hex(off)))
        a("s_addc_u32 s%d, s%d, 0" % (d + 1, base + 1))
    a("s_mov_b32 s%d, %s" % (d + 2, hex(nbytes)))
    a("s_mov_b32 s%d, 0x20000" % (d + 3))


def entry(label):
    a(".p2align 8")
    a(".globl %s" % label)
    a(".type %s,@function" % label)
    a("%s:" % label)


class VM:
    def __init__(self, cnt="vmcnt", maxn=63):
        self.ops = []
        self.cnt = cnt
        self.maxn = maxn
        self.done = -1

    def op(self, text, tag):
        a(text)
        self.ops.append(tag)

    def wait(self, tag, only_if_needed=True):
        last = max(i for i, t in enumerate(self.ops) if t == tag)
        if last <= self.done:
            return
        n = min(len(self.ops) - 1 - last, self.maxn)
        self.done = len(self.ops) - 1 - n
        a("s_waitcnt %s(%d)" % (self.cnt, n))


def round_pairs(regs, tmp):
    n = len(regs) // 2
    for k in range(n):
        a("v_cvt_pk_bf16_f32 v%d, v%d, v%d" % (tmp + k, regs[2 * k], regs[2 * k + 1]))
    for k in range(n):
        a("v_lshlrev_b32 v%d, 16, v%d" % (regs[2 * k], tmp + k))
        a("v_and_b32 v%d, 0xffff0000, v%d" % (regs[2 * k + 1], tmp + k))


def round1(r):
    a("v_cvt_pk_bf16_f32 v%d, v%d, v%d" % (r, r, r))
    a("v_and_b32 v%d, 0xffff0000, v%d" % (r, r))


def r_body():
    a("R_body:")
    a("s_lshr_b32 s3, s2, 1")
    a("s_and_b32 s4, s2, 1")
    a("v_lshrrev_b32 v1, 3, v0")
    a("v_and_b32 v7, 7, v0")
    a("v_lshlrev_b32 v8, 4, v1")
    a("v_lshlrev_b32 v3, 8, v1")
    a("v_lshl_add_u32 v3, v7, 4, v3")
    a("v_mul_u32_u24 v9, 1152, v7")
    a("v_add_u32 v9, v9, v8")
    a("s_mul_i32 s6, s2, %d" % (8 * 1152))
    a("s_mul_i32 s10, s3, 18432")
    a("s_lshl_b32 s7, s4, 7")
    a("s_add_u32 s10, s10, s7")
    a("s_lshr_b32 s8, s2, 3")
    a("s_mul_i32 s8, s8, %d" % (7 * TB))
    a("s_add_u32 s9, s10, s8")
    a("s_bitcmp1_b32 s28, 4")
    a("s_cselect_b32 s11, s6, s10")
    a("s_cselect_b64 vcc, -1, 0")
    a("v_cndmask_b32 v4, v3, v9, vcc")
    a("s_bitcmp1_b32 s28, 5")
    a("s_cselect_b32 s12, s6, s10")
    a("s_cselect_b64 vcc, -1, 0")
    a("v_cndmask_b32 v5, v3, v9, vcc")
    a("v_mul_u32_u24 v11, 48, v7")
    a("v_lshrrev_b32 v12, 6, v0")
    a("v_lshl_add_u32 v12, v12, 2, v11")
    a("s_waitcnt lgkmcnt(0)")
    srd(36, 20, 0, ACT)
    srd(44, 24, "s26", 8 * ACT)
    X = 16
    B2 = 20
    P = 24
    AC = 56
    T = 64
    a("buffer_load_dwordx4 v[%d:%d], v4, s[36:39], s11 offen" % (X, X + 3))
    srd(48, 24, "s27", ACT)
    a("s_bitcmp1_b32 s28, 0")
    a("s_cbranch_scc0 R_nopart")
    for j in range(8):
        a("buffer_load_dwordx4 v[%d:%d], v3, s[44:47], s9 offen" % (P + 4 * j, P + 4 * j + 3))
        if j < 7:
            a("s_add_u32 s9, s9, %d" % TB)
    srd(52, 30, 0, 1152)
    a("buffer_load_dwordx4 v[%d:%d], v8, s[52:55], 0 offen" % (B2, B2 + 3))
    srd(40, 22, 0, ACT)
    for j in range(8):
        a("s_waitcnt vmcnt(%d)" % (8 - j))
        for k in range(4):
            src = P + 4 * j + k
            if j == 0:
                a("v_lshlrev_b32 v%d, 16, v%d" % (AC + 2 * k, src))
                a("v_and_b32 v%d, 0xffff0000, v%d" % (AC + 2 * k + 1, src))
            else:
                a("v_lshlrev_b32 v%d, 16, v%d" % (T + 2 * k, src))
                a("v_and_b32 v%d, 0xffff0000, v%d" % (T + 2 * k + 1, src))
        if j:
            for k in range(4):
                a("v_pk_add_f32 v[%d:%d], v[%d:%d], v[%d:%d]" % (AC + 2 * k, AC + 2 * k + 1, AC + 2 * k, AC + 2 * k + 1, T + 2 * k, T + 2 * k + 1))
    acc = list(range(AC, AC + 8))
    round_pairs(acc, T)
    a("s_bitcmp1_b32 s28, 1")
    a("s_cbranch_scc0 R_nob2")
    a("s_waitcnt vmcnt(0)")
    for k in range(4):
        a("v_lshlrev_b32 v%d, 16, v%d" % (T + 2 * k, B2 + k))
        a("v_and_b32 v%d, 0xffff0000, v%d" % (T + 2 * k + 1, B2 + k))
    for k in range(8):
        a("v_add_f32 v%d, v%d, v%d" % (AC + k, AC + k, T + k))
    round_pairs(acc, T)
    a("R_nob2:")
    for k in range(4):
        a("v_lshlrev_b32 v%d, 16, v%d" % (T + 2 * k, X + k))
        a("v_and_b32 v%d, 0xffff0000, v%d" % (T + 2 * k + 1, X + k))
    for k in range(8):
        a("v_add_f32 v%d, v%d, v%d" % (AC + k, AC + k, T + k))
    for k in range(4):
        a("v_cvt_pk_bf16_f32 v%d, v%d, v%d" % (X + k, AC + 2 * k, AC + 2 * k + 1))
    a("buffer_store_dwordx4 v[%d:%d], v5, s[40:43], s12 offen%s" % (X, X + 3, ST))
    a("s_bitcmp1_b32 s28, 2")
    a("s_cbranch_scc1 R_ln")
    a("s_endpgm")
    a("R_nopart:")
    a("s_waitcnt vmcnt(0)")
    a("R_ln:")
    for k in range(4):
        a("v_lshlrev_b32 v%d, 16, v%d" % (AC + 2 * k, X + k))
        a("v_and_b32 v%d, 0xffff0000, v%d" % (AC + 2 * k + 1, X + k))

    def reduce(sreg, ldsoff, out):
        a("v_add_f32_dpp v%d, v%d, v%d row_ror:8 row_mask:0xf bank_mask:0xf" % (sreg, sreg, sreg))
        a("v_mov_b32 v%d, v%d" % (sreg + 1, sreg))
        a("v_permlane16_swap_b32 v%d, v%d" % (sreg, sreg + 1))
        a("v_add_f32 v%d, v%d, v%d" % (sreg, sreg, sreg + 1))
        a("v_mov_b32 v%d, v%d" % (sreg + 1, sreg))
        a("v_permlane32_swap_b32 v%d, v%d" % (sreg, sreg + 1))
        a("v_add_f32 v%d, v%d, v%d" % (sreg, sreg, sreg + 1))
        a("ds_write_b32 v12, v%d offset:%d" % (sreg, ldsoff))
        a("s_waitcnt lgkmcnt(0)")
        a("s_barrier")
        a("ds_read_b128 v[%d:%d], v11 offset:%d" % (P, P + 3, ldsoff))
        a("ds_read_b128 v[%d:%d], v11 offset:%d" % (P + 4, P + 7, ldsoff + 16))
        a("ds_read_b32 v%d, v11 offset:%d" % (P + 8, ldsoff + 32))
        a("s_waitcnt lgkmcnt(0)")
        a("v_pk_add_f32 v[%d:%d], v[%d:%d], v[%d:%d]" % (P, P + 1, P, P + 1, P + 2, P + 3))
        a("v_pk_add_f32 v[%d:%d], v[%d:%d], v[%d:%d]" % (P + 4, P + 5, P + 4, P + 5, P + 6, P + 7))
        a("v_pk_add_f32 v[%d:%d], v[%d:%d], v[%d:%d]" % (P, P + 1, P, P + 1, P + 4, P + 5))
        a("v_add_f32 v%d, v%d, v%d" % (P, P, P + 1))
        a("v_add_f32 v%d, v%d, v%d" % (P, P, P + 8))
        a("v_mul_f32 v%d, %s, v%d" % (out, f32bits(1.0 / 576.0), P))

    S = T + 8
    MEAN, VAR, M, SD, RS = T + 10, T + 11, T + 12, T + 13, T + 14
    a("v_pk_add_f32 v[%d:%d], v[%d:%d], v[%d:%d]" % (T, T + 1, AC, AC + 1, AC + 2, AC + 3))
    a("v_pk_add_f32 v[%d:%d], v[%d:%d], v[%d:%d]" % (T + 2, T + 3, AC + 4, AC + 5, AC + 6, AC + 7))
    a("v_pk_add_f32 v[%d:%d], v[%d:%d], v[%d:%d]" % (T, T + 1, T, T + 1, T + 2, T + 3))
    a("v_add_f32 v%d, v%d, v%d" % (S, T, T + 1))
    reduce(S, 0, MEAN)
    for k in range(8):
        a("v_sub_f32 v%d, v%d, v%d" % (T + k, AC + k, MEAN))
    a("v_mul_f32 v%d, v%d, v%d" % (S, T, T))
    for k in range(1, 8):
        a("v_fmac_f32 v%d, v%d, v%d" % (S, T + k, T + k))
    reduce(S, 512, VAR)

    def ln_scalars(mean, var):
        a("v_cvt_pk_bf16_f32 v%d, v%d, v%d" % (M, var, mean))
        a("v_lshlrev_b32 v%d, 16, v%d" % (SD, M))
        a("v_and_b32 v%d, 0xffff0000, v%d" % (M, M))
        a("v_add_f32 v%d, %s, v%d" % (SD, f32bits(1e-5), SD))
        round1(SD)
        a("v_sqrt_f32 v%d, v%d" % (SD, SD))
        round1(SD)
        a("v_rcp_f32 v%d, v%d" % (RS, SD))

    def ln_apply():
        for k in range(8):
            a("v_sub_f32 v%d, v%d, v%d" % (AC + k, AC + k, M))
        round_pairs(acc, T)
        for k in range(8):
            a("v_mul_f32 v%d, v%d, v%d" % (AC + k, AC + k, RS))

    ln_scalars(MEAN, VAR)
    ln_apply()
    a("s_bitcmp1_b32 s28, 3")
    a("s_cbranch_scc0 R_single")
    round_pairs(acc, T)
    a("v_sub_f32 v%d, v%d, v%d" % (MEAN, MEAN, M))
    a("v_mul_f32 v%d, v%d, v%d" % (MEAN, MEAN, RS))
    a("v_mul_f32 v%d, v%d, v%d" % (VAR, VAR, RS))
    a("v_mul_f32 v%d, v%d, v%d" % (VAR, VAR, RS))
    ln_scalars(MEAN, VAR)
    ln_apply()
    a("R_single:")
    for k in range(4):
        a("v_cvt_pk_bf16_f32 v%d, v%d, v%d" % (T + k, AC + 2 * k, AC + 2 * k + 1))
    a("buffer_store_dwordx4 v[%d:%d], v3, s[48:51], s10 offen%s" % (T, T + 3, ST))
    a("s_endpgm")


def r_entry(label, xsrc, xdst, part, ydst, flags):
    entry(label)
    a("s_cmp_ge_u32 s2, 256")
    a("s_cbranch_scc1 L_exit")
    a("s_load_dwordx2 s[24:25], s[0:1], %d" % KA_WS)
    a("s_load_dwordx2 s[30:31], s[0:1], %d" % KA_B2)
    a("s_load_dwordx2 s[20:21], s[0:1], %d" % (xsrc[1] if xsrc[0] == "ka" else KA_WS))
    a("s_load_dwordx2 s[22:23], s[0:1], %d" % (xdst[1] if xdst[0] == "ka" else KA_WS))
    a("s_mov_b32 s26, %s" % hex(part))
    a("s_mov_b32 s27, %s" % hex(ydst))
    a("s_mov_b32 s28, %d" % (flags | (16 if xsrc[0] == "ka" else 0) | (32 if xdst[0] == "ka" else 0)))
    if xsrc[0] == "ws" or xdst[0] == "ws":
        a("s_waitcnt lgkmcnt(0)")
        if xsrc[0] == "ws":
            a("s_add_u32 s20, s20, %s" % hex(xsrc[1]))
            a("s_addc_u32 s21, s21, 0")
        if xdst[0] == "ws":
            a("s_add_u32 s22, s22, %s" % hex(xdst[1]))
            a("s_addc_u32 s23, s23, 0")
    a("s_branch R_body")


P_LN, P_QKV, P_WO, P_W1, P_W2, P_B1, P_END = 0, 256, 320, 352, 424, 496, 497


def p_kernel():
    entry("p_kernel")
    a("s_cmp_ge_u32 s2, %d" % P_END)
    a("s_cbranch_scc1 L_exit")
    a("s_cmp_ge_u32 s2, %d" % P_QKV)
    a("s_cbranch_scc1 P_w")
    a("s_load_dwordx2 s[24:25], s[0:1], %d" % KA_WS)
    a("s_load_dwordx2 s[30:31], s[0:1], %d" % KA_B2)
    a("s_load_dwordx2 s[20:21], s[0:1], %d" % KA_X)
    a("s_load_dwordx2 s[22:23], s[0:1], %d" % KA_WS)
    a("s_mov_b32 s26, 0")
    a("s_mov_b32 s27, %s" % hex(YB[0]))
    a("s_mov_b32 s28, %d" % (4 | 16))
    a("s_branch R_body")
    a("P_w:")
    a("s_load_dwordx16 s[4:19], s[0:1], 0")
    a("s_load_dwordx2 s[24:25], s[0:1], %d" % KA_WS)
    a("v_lshrrev_b32 v1, 6, v0")
    a("v_readfirstlane_b32 s3, v1")
    a("v_and_b32 v1, 63, v0")
    a("v_lshlrev_b32 v2, 4, v1")
    a("v_lshrrev_b32 v3, 4, v1")
    a("v_and_b32 v4, 15, v1")
    a("s_waitcnt lgkmcnt(0)")
    srd(40, 24, 0, B1P + 18432)
    a("s_cmp_ge_u32 s2, %d" % P_W1)
    a("s_cbranch_scc1 P_w12")
    a("s_cmp_ge_u32 s2, %d" % P_WO)
    a("s_cbranch_scc1 P_wo")
    srd(36, 6, 0, 576 * 1728 * 2)
    a("s_sub_u32 s20, s2, %d" % P_QKV)
    a("s_mul_i32 s20, s20, 9")
    a("s_add_u32 s20, s20, s3")
    a("s_mul_i32 s21, s20, 3641")
    a("s_lshr_b32 s21, s21, 16")
    a("s_mul_i32 s22, s21, 18")
    a("s_sub_u32 s22, s20, s22")
    a("s_mul_i32 s22, s22, %d" % (32 * 3456))
    a("s_mul_i32 s21, s21, 36")
    a("s_add_u32 s44, s22, s21")
    for j in range(1, 8):
        a("s_add_u32 s%d, s44, %d" % (44 + j, j * 3456))
    a("v_mul_u32_u24 v5, %d, v3" % (8 * 3456))
    a("v_lshl_add_u32 v6, v4, 1, v5")
    a("v_lshrrev_b32 v7, 1, v4")
    a("v_mul_u32_u24 v7, 1152, v7")
    a("v_and_b32 v8, 1, v4")
    a("v_lshl_add_u32 v7, v8, 1, v7")
    a("v_add3_u32 v7, v7, v5, 32")
    a("v_mov_b32 v8, %s" % hex(OOB))
    a("v_cmp_gt_u32 vcc, 6, v4")
    a("v_cndmask_b32 v7, v8, v7, vcc")
    for t in range(4):
        for j in range(8):
            if t < 3:
                a("buffer_load_ushort v%d, v6, s[36:39], s%d offen offset:%d" % (16 + t * 8 + j, 44 + j, t * 1152))
            else:
                a("buffer_load_ushort v%d, v7, s[36:39], s%d offen" % (16 + t * 8 + j, 44 + j))
    a("s_lshl_b32 s20, s20, 12")
    for t in range(4):
        a("s_waitcnt vmcnt(%d)" % (24 - 8 * t + t))
        for k in range(4):
            a("v_lshl_or_b32 v%d, v%d, 16, v%d" % (48 + t * 4 + k, 16 + t * 8 + 2 * k + 1, 16 + t * 8 + 2 * k))
        a("buffer_store_dwordx4 v[%d:%d], v2, s[40:43], s20 offen offset:%d%s" % (48 + t * 4, 51 + t * 4, t * 1024, ST))
    a("s_endpgm")
    a("P_wo:")
    srd(36, 8, 0, 576 * 576 * 2)
    a("s_sub_u32 s20, s2, %d" % P_WO)
    a("s_lshr_b32 s21, s20, 2")
    a("s_and_b32 s22, s20, 3")
    a("s_mul_i32 s22, s22, 9")
    a("s_add_u32 s22, s22, s3")
    a("s_mul_i32 s20, s20, 9")
    a("s_add_u32 s20, s20, s3")
    a("s_mul_i32 s21, s21, %d" % (72 * 1152))
    a("s_lshl_b32 s23, s22, 5")
    a("s_add_u32 s44, s21, s23")
    for hd in range(1, 4):
        a("s_add_u32 s%d, s44, %d" % (44 + hd, hd * 18 * 1152))
    a("v_lshlrev_b32 v5, 1, v4")
    a("v_mul_u32_u24 v6, %d, v3" % (4 * 1152))
    a("v_add_u32 v6, v6, v5")
    a("v_add_u32 v7, %d, v5" % (16 * 1152))
    a("v_mov_b32 v8, %s" % hex(OOB))
    a("v_cmp_eq_u32 vcc, 0, v3")
    a("v_cndmask_b32 v7, v8, v7, vcc")
    for st in range(3):
        for j in range(8):
            if st < 2:
                a("buffer_load_ushort v%d, v6, s[36:39], s%d offen offset:%d" % (16 + st * 8 + j, 44 + 2 * st + (j >> 2), (j & 3) * 1152))
            else:
                a("buffer_load_ushort v%d, v7, s[36:39], s%d offen offset:%d" % (16 + st * 8 + j, 44 + (j >> 1), (j & 1) * 1152))
    a("s_mul_i32 s20, s20, 3072")
    a("s_add_u32 s20, s20, %s" % hex(WOP))
    for t in range(3):
        a("s_waitcnt vmcnt(%d)" % (16 - 8 * t + t))
        for k in range(4):
            a("v_lshl_or_b32 v%d, v%d, 16, v%d" % (48 + t * 4 + k, 16 + t * 8 + 2 * k + 1, 16 + t * 8 + 2 * k))
        a("buffer_store_dwordx4 v[%d:%d], v2, s[40:43], s20 offen offset:%d%s" % (48 + t * 4, 51 + t * 4, t * 1024, ST))
    a("s_endpgm")
    a("P_w12:")
    a("s_cmp_ge_u32 s2, %d" % P_B1)
    a("s_cbranch_scc1 P_b1")
    a("v_lshrrev_b32 v5, 3, v1")
    a("v_and_b32 v6, 7, v1")
    a("v_lshlrev_b32 v6, 4, v6")
    a("v_bfe_u32 v7, v1, 2, 2")
    a("v_and_b32 v8, 3, v1")
    a("s_lshl_b32 s21, s3, 13")
    a("s_cmp_ge_u32 s2, %d" % P_W2)
    a("s_cbranch_scc1 P_w2")

    def w12(stride, second, tloff, dst_tl, dst_ks):
        for n in range(8):
            a("s_add_u32 m0, s21, %d" % (n * 1024))
            a("buffer_load_dwordx4 v9, s[36:39], s22 offen lds")
            if n < 7:
                a("s_add_u32 s22, s22, %d" % (8 * stride))
        for ks in range(2):
            a("s_waitcnt vmcnt(%d)" % (4 if ks == 0 else 4))
            for tl in range(4):
                b = 16 + (ks * 4 + tl) * 4
                o = ks * 4096 + tloff(tl)
                a("ds_read_b64_tr_b16 v[%d:%d], v10 offset:%d" % (b, b + 1, o))
                a("ds_read_b64_tr_b16 v[%d:%d], v10 offset:%d" % (b + 2, b + 3, o + second))
            for tl in range(4):
                b = 16 + (ks * 4 + tl) * 4
                a("s_waitcnt lgkmcnt(%d)" % (6 - 2 * tl))
                a("s_add_u32 s26, s23, %d" % (tl * dst_tl + ks * dst_ks))
                a("buffer_store_dwordx4 v[%d:%d], v2, s[40:43], s26 offen%s" % (b, b + 3, ST))
        a("s_endpgm")

    srd(36, 12, 0, 576 * 4608 * 2)
    a("s_sub_u32 s20, s2, %d" % P_W1)
    a("s_mul_i32 s22, s3, %d" % (64 * 9216))
    a("s_lshl_b32 s23, s20, 7")
    a("s_add_u32 s22, s22, s23")
    a("v_mul_u32_u24 v9, 9216, v5")
    a("v_add_u32 v9, v9, v6")
    a("v_lshl_add_u32 v10, v3, 3, v7")
    a("v_lshlrev_b32 v10, 7, v10")
    a("v_lshl_add_u32 v10, v8, 3, v10")
    a("v_add_u32 v10, s21, v10")
    a("s_mul_i32 s23, s20, %d" % (4 * 18432))
    a("s_lshl_b32 s26, s3, 11")
    a("s_add_u32 s23, s23, s26")
    a("s_add_u32 s23, s23, %s" % hex(W1P))
    w12(9216, 512, lambda tl: tl * 32, 18432, 1024)
    a("P_w2:")
    srd(36, 16, 0, 576 * 4608 * 2)
    a("s_sub_u32 s20, s2, %d" % P_W2)
    a("s_mul_i32 s22, s20, %d" % (64 * 1152))
    a("s_lshl_b32 s23, s3, 7")
    a("s_add_u32 s22, s22, s23")
    a("v_mul_u32_u24 v9, 1152, v5")
    a("v_add_u32 v9, v9, v6")
    a("v_lshl_add_u32 v10, v3, 2, v7")
    a("v_lshlrev_b32 v10, 7, v10")
    a("v_lshl_add_u32 v10, v8, 3, v10")
    a("v_add_u32 v10, s21, v10")
    a("s_mul_i32 s26, s20, 57")
    a("s_lshr_b32 s26, s26, 9")
    a("s_mul_i32 s27, s26, 9")
    a("s_sub_u32 s27, s20, s27")
    a("s_mul_i32 s23, s26, %d" % (36 * 18432))
    a("s_mul_i32 s26, s3, %d" % (4 * 18432))
    a("s_add_u32 s23, s23, s26")
    a("s_lshl_b32 s27, s27, 11")
    a("s_add_u32 s23, s23, s27")
    a("s_add_u32 s23, s23, %s" % hex(W2P))
    w12(1152, 2048, lambda tl: tl * 32, 18432, 1024)
    a("P_b1:")
    srd(36, 14, 0, 4608 * 2)
    a("v_lshlrev_b32 v5, 4, v0")
    a("buffer_load_dwordx4 v[16:19], v5, s[36:39], 0 offen")
    a("v_lshlrev_b32 v5, 5, v0")
    a("s_mov_b32 s20, %s" % hex(B1P))
    a("s_waitcnt vmcnt(0)")
    for k in range(4):
        a("v_lshlrev_b32 v%d, 16, v%d" % (20 + 2 * k, 16 + k))
        a("v_and_b32 v%d, 0xffff0000, v%d" % (21 + 2 * k, 16 + k))
    a("buffer_store_dwordx4 v[20:23], v5, s[40:43], s20 offen%s" % ST)
    a("buffer_store_dwordx4 v[24:27], v5, s[40:43], s20 offen offset:16%s" % ST)
    a("s_endpgm")


def wg_map():
    b = MAPB
    spx = 8 // b
    tpx = 32 // spx
    lb = {1: 0, 2: 1, 4: 2, 8: 3}
    a("s_and_b32 s6, s2, 7")
    a("s_lshr_b32 s7, s2, 3")
    a("s_and_b32 s4, s6, %d" % (b - 1))
    a("s_lshl_b32 s4, s4, %d" % lb[spx])
    a("s_and_b32 s8, s7, %d" % (spx - 1))
    a("s_add_u32 s4, s4, s8")
    a("s_lshr_b32 s5, s6, %d" % lb[b])
    a("s_mul_i32 s5, s5, %d" % tpx)
    a("s_lshr_b32 s8, s7, %d" % lb[spx])
    a("s_add_u32 s5, s5, s8")


def mod_small(dst, src, n):
    if n == 1:
        a("s_mov_b32 %s, 0" % dst)
        return
    m = -(-4096 // n)
    assert all((t * m) >> 12 == t // n for t in range(32))
    a("s_mul_i32 %s, %s, %d" % (dst, src, m))
    a("s_lshr_b32 %s, %s, 12" % (dst, dst))
    a("s_mul_i32 %s, %s, %d" % (dst, dst, n))
    a("s_sub_u32 %s, %s, %s" % (dst, src, dst))


def lane_common():
    a("v_lshrrev_b32 v1, 6, v0")
    a("v_readfirstlane_b32 s3, v1")
    a("v_and_b32 v1, 63, v0")
    a("v_lshlrev_b32 v2, 4, v1")
    a("v_lshrrev_b32 v3, 4, v1")
    a("v_and_b32 v4, 15, v1")
    a("v_and_b32 v5, 1, v3")
    a("v_mul_u32_u24 v5, 18432, v5")
    a("v_lshl_add_u32 v5, v4, 4, v5")
    a("v_lshrrev_b32 v6, 5, v1")
    a("v_lshl_add_u32 v5, v6, 8, v5")


A_LDS_SCR = 92160
A_LDS_OX = A_LDS_SCR + 8192
A_LDS = A_LDS_OX + 12288


def a_body():
    a("A_body:")
    stamp(0)
    vm = VM()
    lane_common()
    wg_map()
    if AROT == 66:
        a("s_and_b32 s6, s4, 3")
        a("s_mul_i32 s6, s6, 3")
        a("s_bfe_u32 s7, s4, 0x10001")
        a("s_add_u32 s6, s6, s7")
        a("s_and_b32 s7, s5, 15")
        a("s_add_u32 s7, s7, s6")
        mod_small("s6", "s7", 6)
    else:
        mod_small("s6", "s5", AROT)
        a("s_mul_i32 s6, s6, %d" % (6 // AROT))
    KY, KW = 56, 62
    for G in range(6):
        a("s_mul_i32 s%d, s6, 3072" % (KY + G))
        a("s_mul_i32 s%d, s6, 12288" % (KW + G))
        if G < 5:
            a("s_add_u32 s6, s6, 1")
            a("s_cmp_eq_u32 s6, 6")
            a("s_cselect_b32 s6, 0, s6")
    a("s_lshl_b32 s7, s5, 2")
    a("s_add_u32 s8, s7, s3")
    a("s_mul_i32 s8, s8, 18432")
    a("v_add_u32 v7, s8, v2")
    a("s_min_u32 s9, s3, 2")
    a("s_sub_u32 s8, s7, 1")
    a("s_mul_i32 s8, s8, 18")
    a("s_add_u32 s8, s8, s9")
    a("s_lshl_b32 s8, s8, 10")
    a("s_cmp_eq_u32 s5, 0")
    a("s_cselect_b32 s8, %s, s8" % hex(OOB))
    a("v_add_u32 v8, s8, v2")
    a("s_add_u32 s10, s3, 1")
    a("s_mul_i32 s10, s10, 18432")
    a("s_lshl_b32 s11, s9, 10")
    a("s_lshl_b32 s12, s4, 2")
    a("s_add_u32 s12, s12, s3")
    a("s_mul_i32 s12, s12, 73728")
    a("v_add_u32 v9, s12, v2")
    a("v_add_u32 v10, 4096, v9")
    a("v_add_u32 v11, 8192, v9")
    a("s_mul_i32 s12, s4, 36")
    a("s_mul_i32 s13, s3, 9")
    a("s_add_u32 s12, s12, s13")
    a("s_mul_i32 s12, s12, 3072")
    a("s_add_u32 s12, s12, %s" % hex(WOP))
    a("v_add_u32 v12, 46080, v2")
    a("s_waitcnt lgkmcnt(0)")
    if os.environ.get("KST"):
        stamp(5)
    srd(36, 24, "s26", ACT)
    srd(40, 24, 0, W1P)
    srd(44, 24, "s27", 8 * ACT)

    def ydma1(G, k):
        def f():
            if "anoy" in ABL and G >= 2:
                vm.ops.append(("y", G))
                return
            if k < 3:
                a("s_add_u32 m0, s10, %d" % (G * 3072))
                vm.op("buffer_load_dwordx4 v7, s[36:39], s%d offen offset:%d lds" % (KY + G, k * 1024), ("y", G))
            else:
                a("s_add_u32 m0, s11, %d" % (G * 3072))
                vm.op("buffer_load_dwordx4 v8, s[36:39], s%d offen lds" % (KY + G), ("y", G))
        return f

    def wslot(i, t):
        return ((i % 9) * 4 + t) * 4

    def wload1(i, t):
        def f():
            b = wslot(i, t)
            if "anow" in ABL and i >= APRE:
                vm.ops.append(("w", i))
                return
            vm.op("buffer_load_dwordx4 a[%d:%d], v%d, s[40:43], s%d offen offset:%d" % (b, b + 3, 9 + i % 3, KW + i // 3, t * 1024), ("w", i))
        return f

    for k in range(4):
        ydma1(0, k)()
    for t in range(4):
        wload1(0, t)()
    for k in range(4):
        ydma1(1, k)()
    for i in range(1, APRE):
        for t in range(4):
            wload1(i, t)()

    QA, KA, VA, CA = 16, 32, 52, 72
    YF = 92
    MSK = 132
    SM = 136
    G0M = 140
    a("v_and_b32 v13, 1, v4")
    a("v_cmp_eq_u32 s[70:71], 1, v13")
    a("v_lshl_add_u32 v14, v3, 2, v13")
    a("v_cmp_ge_u32 s[72:73], v4, v14")
    a("v_add_u32 v14, 2, v14")
    a("v_cmp_ge_u32 s[74:75], v4, v14")
    a("v_mov_b32 v13, 0xffff")
    a("v_mov_b32 v14, 0xffff0000")
    a("v_cndmask_b32 v13, v13, v14, s[70:71]")
    a("v_cndmask_b32 v%d, v13, 0, s[72:73]" % (MSK + 0))
    a("v_cndmask_b32 v%d, v13, 0, s[74:75]" % (MSK + 1))
    a("v_cndmask_b32 v%d, 0, v13, s[72:73]" % (MSK + 2))
    a("v_cndmask_b32 v%d, 0, v13, s[74:75]" % (MSK + 3))
    a("s_cmp_eq_u32 s5, 0")
    a("s_cselect_b32 s14, %s, 0" % f32bits(-1e9 * math.sqrt(18.0)))
    for k in range(4):
        a("v_mov_b32 v%d, s14" % (SM + k))
    a("v_cmp_eq_u32 vcc, 0, v3")
    a("v_cndmask_b32 v%d, 0, -1, vcc" % G0M)
    a("s_lshl_b32 s14, s3, 11")
    a("s_add_u32 s14, s14, %d" % A_LDS_SCR)
    a("v_lshlrev_b32 v141, 9, v3")
    a("v_lshl_add_u32 v141, v4, 1, v141")
    a("v_add_u32 v141, s14, v141")
    a("v_and_b32 v142, 1, v4")
    a("v_mul_u32_u24 v142, 160, v142")
    a("v_lshl_add_u32 v142, v3, 3, v142")
    a("s_add_u32 s14, s14, 512")
    a("v_add_u32 v142, s14, v142")
    a("s_lshr_b32 s14, s3, 1")
    a("s_lshl_b32 s14, s14, 10")
    a("s_and_b32 s15, s3, 1")
    a("s_lshl_b32 s15, s15, 3")
    a("s_add_u32 s14, s14, s15")
    a("s_add_u32 s14, s14, %d" % A_LDS_OX)
    a("v_add_u32 v143, s14, v2")
    a("s_lshl_b32 s14, s3, 2")
    a("s_add_u32 s14, s14, %d" % (A_LDS_OX + 2048))
    a("v_add_u32 v144, s14, v2")
    a("v_add_u32 v145, %d, v2" % A_LDS_OX)
    a("s_lshl_b32 s14, s5, 3")
    a("s_add_u32 s14, s14, s4")
    a("s_mul_i32 s14, s14, %d" % TB)
    a("s_mul_i32 s15, s3, 4608")
    a("s_add_u32 s14, s14, s15")
    a("v_add_u32 v146, s14, v5")
    a("v_add_u32 v147, 36864, v146")

    def woload1(tl, st):
        def f():
            b = wslot(tl, st)
            vm.op("buffer_load_dwordx4 a[%d:%d], v2, s[40:43], s12 offen offset:%d" % (b, b + 3, st * 1024), ("wo", tl))
            if st == 2:
                a("s_add_u32 s12, s12, 3072")
        return f

    def yread1(i, T):
        def f():
            off = (T * 18 + i) * 1024
            base = 2
            if off >= 46080:
                off -= 46080
                base = 12
            b = YF + (i % 2) * 20 + T * 4
            a("ds_read_b128 v[%d:%d], v%d offset:%d" % (b, b + 3, base, off))
        return f

    stamp(1)
    vm.wait(("y", 0))
    a("s_barrier")
    stamp(2)
    for T in range(5):
        yread1(0, T)()
    for i in range(18):
        if i + 1 < 18 and (i + 1) % 3 == 0:
            vm.wait(("y", (i + 1) // 3))
            a("s_barrier")
        a("s_waitcnt lgkmcnt(0)")
        vm.wait(("w", i))
        mem = []
        if i // 3 + 2 < 6:
            mem += [ydma1(i // 3 + 2, k) for k in ((0, 3), (1,), (2,))[i % 3]]
        if i + APRE < 18:
            mem += [wload1(i + APRE, t) for t in range(4)]
        else:
            mem += [woload1(i + APRE - 18, st) for st in range(3)]
        rds = [yread1(i + 1, T) for T in range(5)] if i + 1 < 18 else []
        slots = {}
        for k, f in enumerate(mem):
            slots.setdefault(1 + (k * 18) // len(mem), []).append(f)
        for k, f in enumerate(rds):
            slots.setdefault(ARD * k, []).append(f)
        m = 0
        for T in range(5):
            y = "v[%d:%d]" % (YF + (i % 2) * 20 + T * 4, YF + (i % 2) * 20 + T * 4 + 3)
            for t, base in ((1, KA), (2, VA), (3, CA), (0, QA)):
                if t == 0 and T == 0:
                    continue
                d = base + (T - 1 if t == 0 else T) * 4
                w = "a[%d:%d]" % (wslot(i, t), wslot(i, t) + 3)
                c = "0" if i == 0 else "v[%d:%d]" % (d, d + 3)
                A_, B_ = (y, w) if t == 2 else (w, y)
                a("v_mfma_f32_16x16x32_bf16 v[%d:%d], %s, %s, %s" % (d, d + 3, A_, B_, c))
                for f in slots.get(m, []):
                    f()
                m += 1
    for tl in range(APRE, 9):
        for st in range(3):
            woload1(tl, st)()

    stamp(3)
    QO, KO, VP, X0, V2 = 148, 164, 184, 194, 196
    for T in range(5):
        xd = X0 if T == 0 else QO + (T - 1) * 4 + 2
        a("v_cvt_pk_bf16_f32 v%d, v%d, v%d" % (xd, CA + T * 4, CA + T * 4 + 1))
        a("ds_write_b16 v141, v%d offset:%d" % (xd, T * 32))
        a("ds_write_b16_d16_hi v141, v%d offset:%d" % (xd, T * 32 + 160))
    for T in range(5):
        a("v_cvt_pk_bf16_f32 v%d, v%d, v%d" % (KO + T * 4 + 2, CA + T * 4 + 2, CA + T * 4 + 3))
        a("v_cvt_pk_bf16_f32 v%d, v%d, v%d" % (KO + T * 4, KA + T * 4, KA + T * 4 + 1))
        a("v_cvt_pk_bf16_f32 v%d, v%d, v%d" % (KO + T * 4 + 1, KA + T * 4 + 2, KA + T * 4 + 3))
        a("v_mov_b32 v%d, 0" % (KO + T * 4 + 3))
        if T:
            q = QO + (T - 1) * 4
            a("v_cvt_pk_bf16_f32 v%d, v%d, v%d" % (q, QA + (T - 1) * 4, QA + (T - 1) * 4 + 1))
            a("v_cvt_pk_bf16_f32 v%d, v%d, v%d" % (q + 1, QA + (T - 1) * 4 + 2, QA + (T - 1) * 4 + 3))
            a("v_mov_b32 v%d, 0" % (q + 3))
    for T in range(5):
        a("ds_read_b64 v[%d:%d], v142 offset:%d" % (V2 + 2 * T, V2 + 2 * T + 1, T * 32))
    SP = YF
    for T in range(1, 5):
        q = "v[%d:%d]" % (QO + (T - 1) * 4, QO + (T - 1) * 4 + 3)
        sp = SP + (T - 1) * 8
        c = "v[%d:%d]" % (SM, SM + 3) if T == 1 else "0"
        a("v_mfma_f32_16x16x32_bf16 v[%d:%d], v[%d:%d], %s, %s" % (sp, sp + 3, KO + (T - 1) * 4, KO + (T - 1) * 4 + 3, q, c))
        a("v_mfma_f32_16x16x32_bf16 v[%d:%d], v[%d:%d], %s, 0" % (sp + 4, sp + 7, KO + T * 4, KO + T * 4 + 3, q))
    for T in range(5):
        a("v_cvt_pk_bf16_f32 v%d, v%d, v%d" % (VP + 2 * T, VA + T * 4, VA + T * 4 + 1))
        a("v_cvt_pk_bf16_f32 v%d, v%d, v%d" % (VP + 2 * T + 1, VA + T * 4 + 2, VA + T * 4 + 3))
    cs = (18.0 ** -0.5) * math.log2(math.e)
    a("s_mov_b32 s14, %s" % f32bits(cs))
    W = lambda T, k: 16 + (T - 1) * 8 + k
    Ts = range(1, 5)
    for T in Ts:
        sp = SP + (T - 1) * 8
        a("v_cndmask_b32 v%d, v%d, v%d, s[70:71]" % (W(T, 2), sp + 4, sp + 5))
        a("v_cndmask_b32 v%d, v%d, v%d, s[70:71]" % (W(T, 3), sp + 0, sp + 1))
        a("v_cndmask_b32 v%d, v%d, v%d, s[70:71]" % (W(T, 4), sp + 6, sp + 7))
        a("v_cndmask_b32 v%d, v%d, v%d, s[70:71]" % (W(T, 5), sp + 2, sp + 3))
        a("v_cndmask_b32 v%d, v%d, v%d, s[72:73]" % (W(T, 0), W(T, 3), W(T, 2)))
        a("v_cndmask_b32 v%d, v%d, v%d, s[74:75]" % (W(T, 1), W(T, 5), W(T, 4)))
        a("v_max_f32 v%d, v%d, v%d" % (W(T, 2), W(T, 0), W(T, 1)))
        a("v_mov_b32 v%d, v%d" % (W(T, 3), W(T, 2)))

    def xlane(op):
        for T in Ts:
            a("v_permlane16_swap_b32 v%d, v%d" % (W(T, 2), W(T, 3)))
        for T in Ts:
            a("%s v%d, v%d, v%d" % (op, W(T, 2), W(T, 2), W(T, 3)))
            a("v_mov_b32 v%d, v%d" % (W(T, 3), W(T, 2)))
        for T in Ts:
            a("v_permlane32_swap_b32 v%d, v%d" % (W(T, 2), W(T, 3)))
        for T in Ts:
            a("%s v%d, v%d, v%d" % (op, W(T, 2), W(T, 2), W(T, 3)))

    xlane("v_max_f32")
    for T in Ts:
        a("v_sub_f32 v%d, v%d, v%d" % (W(T, 0), W(T, 0), W(T, 2)))
        a("v_sub_f32 v%d, v%d, v%d" % (W(T, 1), W(T, 1), W(T, 2)))
        a("v_mul_f32 v%d, s14, v%d" % (W(T, 0), W(T, 0)))
        a("v_mul_f32 v%d, s14, v%d" % (W(T, 1), W(T, 1)))
    for T in Ts:
        a("v_exp_f32 v%d, v%d" % (W(T, 0), W(T, 0)))
        a("v_exp_f32 v%d, v%d" % (W(T, 1), W(T, 1)))
    for T in Ts:
        a("v_add_f32 v%d, v%d, v%d" % (W(T, 2), W(T, 0), W(T, 1)))
        a("v_mov_b32 v%d, v%d" % (W(T, 3), W(T, 2)))
    xlane("v_add_f32")
    for T in Ts:
        a("v_rcp_f32 v%d, v%d" % (W(T, 2), W(T, 2)))
    for T in Ts:
        a("v_mul_f32 v%d, v%d, v%d" % (W(T, 0), W(T, 0), W(T, 2)))
        a("v_mul_f32 v%d, v%d, v%d" % (W(T, 1), W(T, 1), W(T, 2)))
        a("v_cvt_pk_bf16_f32 v%d, v%d, v%d" % (W(T, 0), W(T, 0), W(T, 0)))
        a("v_cvt_pk_bf16_f32 v%d, v%d, v%d" % (W(T, 1), W(T, 1), W(T, 1)))
        a("v_and_b32 v%d, v%d, v%d" % (W(T, 4), W(T, 0), MSK + 0))
        a("v_and_b32 v%d, v%d, v%d" % (W(T, 5), W(T, 1), MSK + 1))
        a("v_and_b32 v%d, v%d, v%d" % (W(T, 6), W(T, 0), MSK + 2))
        a("v_and_b32 v%d, v%d, v%d" % (W(T, 7), W(T, 1), MSK + 3))
    a("s_waitcnt lgkmcnt(0)")
    for T in Ts:
        sp = SP + (T - 1) * 8
        p = "v[%d:%d]" % (W(T, 4), W(T, 7))
        a("v_mfma_f32_16x16x32_bf16 v[%d:%d], v[%d:%d], %s, 0" % (sp, sp + 3, VP + 2 * (T - 1), VP + 2 * (T - 1) + 3, p))
        a("v_mfma_f32_16x16x32_bf16 v[%d:%d], v[%d:%d], %s, 0" % (sp + 4, sp + 7, V2 + 2 * (T - 1), V2 + 2 * (T - 1) + 3, p))
    for T in Ts:
        sp = SP + (T - 1) * 8
        o = 48 + (T - 1) * 4
        a("v_cvt_pk_bf16_f32 v%d, v%d, v%d" % (o, sp, sp + 1))
        a("v_cvt_pk_bf16_f32 v%d, v%d, v%d" % (o + 1, sp + 2, sp + 3))
        a("v_cvt_pk_bf16_f32 v%d, v%d, v%d" % (o + 2, sp + 4, sp + 5))
        a("v_and_b32 v%d, v%d, v%d" % (o + 2, o + 2, G0M))
        a("ds_write_b64 v143, v[%d:%d] offset:%d" % (o, o + 1, (T - 1) * 3072))
        a("ds_write_b32 v144, v%d offset:%d" % (o + 2, (T - 1) * 3072))
    a("s_waitcnt lgkmcnt(0)")
    stamp(4)
    a("s_barrier")
    if not os.environ.get("KST"):
        stamp(5)
    OF = 148
    for T in range(4):
        for st in range(3):
            b = OF + (T * 3 + st) * 4
            a("ds_read_b128 v[%d:%d], v145 offset:%d" % (b, b + 3, (T * 3 + st) * 1024))
    a("s_mov_b32 s14, 0")
    AC2 = 64

    def wo_epi(tl):
        ac = AC2 + (tl % 2) * 16
        pk = 96 + (tl % 2) * 8
        for T in range(4):
            a("v_cvt_pk_bf16_f32 v%d, v%d, v%d" % (pk + 2 * T, ac + 4 * T, ac + 4 * T + 1))
            a("v_cvt_pk_bf16_f32 v%d, v%d, v%d" % (pk + 2 * T + 1, ac + 4 * T + 2, ac + 4 * T + 3))
        for h in range(2):
            a("v_permlane16_swap_b32 v%d, v%d" % (pk + 4 * h, pk + 4 * h + 2))
            a("v_permlane16_swap_b32 v%d, v%d" % (pk + 4 * h + 1, pk + 4 * h + 3))
        vm.op("buffer_store_dwordx4 v[%d:%d], v146, s[44:47], s14 offen%s" % (pk, pk + 3, ST), "st")
        vm.op("buffer_store_dwordx4 v[%d:%d], v147, s[44:47], s14 offen%s" % (pk + 4, pk + 7, ST), "st")
        a("s_add_u32 s14, s14, 512")

    for tl in range(9):
        vm.wait(("wo", tl))
        if tl == 0:
            a("s_waitcnt lgkmcnt(0)")
        ac = AC2 + (tl % 2) * 16
        for st in range(3):
            for T in range(4):
                w = wslot(tl, st)
                o = OF + (T * 3 + st) * 4
                c = "0" if st == 0 else "v[%d:%d]" % (ac + 4 * T, ac + 4 * T + 3)
                a("v_mfma_f32_16x16x32_bf16 v[%d:%d], a[%d:%d], v[%d:%d], %s" % (ac + 4 * T, ac + 4 * T + 3, w, w + 3, o, o + 3, c))
            if st == 1 and tl > 0:
                wo_epi(tl - 1)
    wo_epi(8)
    stamp(6)
    stamp_flush(7, "s3", "s29")
    a("s_endpgm")


def am_entry(label, body, yoff, part, slot):
    entry(label)
    a("s_mov_b32 s29, %d" % slot)
    a("s_cmp_ge_u32 s2, 256")
    a("s_cbranch_scc1 L_exit")
    a("s_load_dwordx2 s[24:25], s[0:1], %d" % KA_WS)
    a("s_mov_b32 s26, %s" % hex(yoff))
    a("s_mov_b32 s27, %s" % hex(part))
    a("s_branch %s" % body)


M_LDS = 2 * TB


def m_body():
    a("M_body:")
    stamp(0)
    vm = VM()
    lg = VM("lgkmcnt", 15)
    lane_common()
    NR = MRING
    ACC, FIN, BIAS, TMP, PK, HW, C1 = 88, 104, 120, 124, 140, 148, 15

    def ring(q):
        k = q % NR
        return 16 + k * 4 if k < 18 else 152 + (k - 18) * 4

    def fr(T, s):
        k = s * 4 + T
        return "a[%d:%d]" % (k * 4, k * 4 + 3) if k < 64 else "v[%d:%d]" % (224 + (k - 64) * 4, 224 + (k - 64) * 4 + 3)

    wg_map()
    a("s_lshl_b32 s7, s5, 2")
    a("s_add_u32 s7, s7, s3")
    a("s_mul_i32 s7, s7, 18432")
    a("v_add_u32 v6, s7, v2")
    a("s_mul_i32 s8, s3, 18432")
    a("s_mul_i32 s9, s4, 36")
    a("s_add_u32 s9, s9, s3")
    a("s_mul_i32 s11, s9, 18432")
    a("v_add_u32 v7, s11, v2")
    for k in range(1, 5):
        a("v_add_u32 v%d, %d, v7" % (7 + k, 4096 * k))
    a("s_lshl_b32 s11, s9, 6")
    a("s_add_u32 s11, s11, %s" % hex(B1P - W1P))
    a("v_lshl_add_u32 v12, v3, 4, s11")
    a("s_waitcnt lgkmcnt(0)")
    srd(36, 24, "s26", ACT)
    srd(40, 24, W1P, B1P + 18432 - W1P)
    WS = 48
    for n in range(9):
        a("s_mov_b32 s%d, %d" % (WS + n, n * 4 * 18432))

    def ydma(s):
        if s % 3 == 0:
            a("s_add_u32 m0, s8, %d" % (s * 1024))
            a("s_mov_b32 s11, %d" % (s * 1024))
        vm.op("buffer_load_dwordx4 v6, s[36:39], s11 offen offset:%d lds" % ((s % 3) * 1024), ("y", s // 6))

    def wload(q):
        n, s = divmod(q, 18)
        b = ring(q)
        vm.op("buffer_load_dwordx4 v[%d:%d], v%d, s[40:43], s%d offen offset:%d" % (b, b + 3, 7 + s // 4, WS + n, (s % 4) * 1024), ("w", q))

    def bload(n):
        vm.op("buffer_load_dwordx4 v[%d:%d], v12, s[40:43], 0 offen offset:%d" % (BIAS, BIAS + 3, n * 256), ("b", n))

    for g in range(3):
        for s in range(6 * g, 6 * g + 6):
            ydma(s)
        if g == 0:
            bload(0)
        for s in range(6 * g, 6 * g + 6):
            if g < 2:
                wload(s)
    srd(44, 24, "s27", 8 * ACT)
    mod_small("s6", "s5", MROT)
    a("s_mul_i32 s6, s6, %d" % (9 // MROT))
    a("s_mul_i32 s10, s3, %d" % (8 * 18432))
    a("s_add_u32 s10, s10, %s" % hex(W2P - W1P))
    for n in range(9):
        a("s_mul_i32 s%d, s6, 18432" % (WS + 9 + n))
        a("s_add_u32 s%d, s%d, s10" % (WS + 9 + n, WS + 9 + n))
        a("s_lshl_b32 s%d, s6, 9" % (WS + 18 + n))
        if n < 8:
            a("s_add_u32 s6, s6, 1")
            a("s_cmp_eq_u32 s6, 9")
            a("s_cselect_b32 s6, 0, s6")
    a("v_add_u32 v13, 36864, v2")
    a("v_add_u32 v149, %d, v2" % TB)
    a("v_add_u32 v150, %d, v2" % (TB + 36864))
    a("s_lshl_b32 s11, s5, 3")
    a("s_add_u32 s11, s11, s4")
    a("s_mul_i32 s11, s11, %d" % TB)
    a("s_mul_i32 s14, s3, 4608")
    a("s_add_u32 s11, s11, s14")
    a("v_add_u32 v14, s11, v5")
    a("v_add_u32 v5, 36864, v14")
    a("v_mov_b32 v%d, %s" % (C1, f32bits(-2.0 * math.sqrt(2.0 / math.pi) * math.log2(math.e) * 0.044715)))
    a("s_lshr_b32 s14, s3, 1")
    a("s_lshl_b32 s14, s14, 10")
    a("s_and_b32 s15, s3, 1")
    a("s_lshl_b32 s15, s15, 3")
    a("s_add_u32 s14, s14, s15")
    a("v_add_u32 v%d, s14, v149" % HW)
    a("v_add_u32 v151, s14, v150")

    def act_read(s, second):
        for T in range(4):
            off = ((T % 2) * 18 + s) * 1024
            base = ((2, 13), (149, 150))[second][T // 2]
            lg.op("ds_read_b128 %s, v%d offset:%d" % (fr(T, s), base, off), ("act", second, s))

    def gelu_ops(tl):
        ops = []
        c0 = f32bits(-2.0 * math.sqrt(2.0 / math.pi) * math.log2(math.e))
        for T in range(4):
            x = [FIN + 4 * T + r for r in range(4)]
            t = [TMP + (T % 2) * 8 + r for r in range(4)]
            pk = TMP + (T % 2) * 8 + 4
            if "nogelu" in ABL:
                continue
            for r in range(4):
                ops.append(("v_mul_f32 v%d, v%d, v%d" % (t[r], x[r], x[r]), 4))
            for r in range(4):
                ops.append(("v_fmaak_f32 v%d, v%d, v%d, %s" % (t[r], t[r], C1, c0), 4))
            for r in range(4):
                ops.append(("v_mul_f32 v%d, v%d, v%d" % (t[r], t[r], x[r]), 4))
            for r in range(4):
                ops.append(("v_exp_f32 v%d, v%d" % (t[r], t[r]), 8))
            for r in range(4):
                ops.append(("v_add_f32 v%d, 1.0, v%d" % (t[r], t[r]), 4))
            for r in range(4):
                ops.append(("v_rcp_f32 v%d, v%d" % (t[r], t[r]), 8))
            for r in range(4):
                ops.append(("v_mul_f32 v%d, v%d, v%d" % (t[r], t[r], x[r]), 4))
            ops.append(("v_cvt_pk_bf16_f32 v%d, v%d, v%d" % (pk, t[0], t[1]), 4))
            ops.append(("v_cvt_pk_bf16_f32 v%d, v%d, v%d" % (pk + 1, t[2], t[3]), 4))
            ops.append(("ds_write_b64 v%d, v[%d:%d] offset:%d" % ((HW, 151)[T // 2], pk, pk + 1, (T % 2) * 18432 + tl * 2048), 4))
        return ops

    def out_ops(n2):
        ops = []
        for T in range(4):
            ops.append(("v_cvt_pk_bf16_f32 v%d, v%d, v%d" % (PK + 2 * T, FIN + 4 * T, FIN + 4 * T + 1), 4))
            ops.append(("v_cvt_pk_bf16_f32 v%d, v%d, v%d" % (PK + 2 * T + 1, FIN + 4 * T + 2, FIN + 4 * T + 3), 4))
            if T % 2 == 1 and "nostore" not in ABL:
                ops.append(("v_permlane16_swap_b32 v%d, v%d" % (PK + 2 * T - 2, PK + 2 * T), 4))
                ops.append(("v_permlane16_swap_b32 v%d, v%d" % (PK + 2 * T - 1, PK + 2 * T + 1), 4))
                ops.append(("buffer_store_dwordx4 v[%d:%d], v%d, s[44:47], s%d offen%s" % (PK + 2 * T - 2, PK + 2 * T + 1, (14, 5)[T // 2], WS + 18 + n2, MST), 4))
        return ops

    def emit_fill(op):
        if op.startswith("ds_"):
            lg.op(op, "hw")
        elif op.startswith("buffer_store"):
            vm.op(op, "st")
        else:
            a(op)

    NQ = 18 * 18
    first = 12
    sched = {}
    for q in range(first, NQ):
        if q < 18:
            c = -1
        else:
            c = max(q - NR, int((q - 18) * 162.0 / (162 + NR - 18)))
        sched.setdefault(c, []).append(q)
    AHEAD = 3
    for n in range(18):
        gemm = 1 if n < 9 else 2
        if n == 0:
            fill, g0, g1 = [], 0, 0
        elif n <= 9:
            fill, g0, g1 = gelu_ops(n - 1), 3, (66 if n < 9 else 50)
        else:
            fill, g0, g1 = out_ops(n - 10), MG0, MG1
        rd = n in (0, 9)
        if n == 0:
            stamp(1)
            vm.wait(("y", 0))
            a("s_barrier")
            for q in sched[-1]:
                wload(q)
            stamp(2)
        if n == 9:
            stamp(3)
            lg.wait("hw")
            a("s_barrier")
            stamp(4)
        if n == 10:
            stamp(5)
        if n == 1:
            stamp(7)
        if rd:
            for s in range(AHEAD):
                act_read(s, n == 9)
        total = sum(c for _, c in fill)
        fi = spent = m = 0
        for s in range(18):
            q = n * 18 + s
            if rd:
                sa = s + AHEAD
                if sa < 18:
                    if n == 0 and sa % 6 == 0:
                        vm.wait(("y", sa // 6))
                        a("s_barrier")
                    if n == 9 and sa == 16:
                        assert fi == len(fill)
                        lg.wait("hw")
                        a("s_barrier")
                lg.wait(("act", n == 9, s))
            if s % 2 == 0:
                vm.wait(("w", q + 1))
                if s == 0 and gemm == 1:
                    vm.wait(("b", n), only_if_needed=True)
            for T in range(4):
                w = "v[%d:%d]" % (ring(q), ring(q) + 3)
                d = (FIN if s == 17 else ACC) + 4 * T
                if s == 0:
                    c = "v[%d:%d]" % (BIAS, BIAS + 3) if gemm == 1 else "0"
                else:
                    c = "v[%d:%d]" % (ACC + 4 * T, ACC + 4 * T + 3)
                a("v_mfma_f32_16x16x32_bf16 v[%d:%d], %s, %s, %s" % (d, d + 3, w, fr(T, s), c))
                if rd and s + AHEAD < 18:
                    sa = s + AHEAD
                    off = ((T % 2) * 18 + sa) * 1024
                    base = ((2, 13), (149, 150))[n == 9][T // 2]
                    lg.op("ds_read_b128 %s, v%d offset:%d" % (fr(T, sa), base, off), ("act", n == 9, sa))
                ql = sched.get(q, []) if T == 3 else (sched.get(q - 1, [])[1:] if T == 1 else [])
                if T == 3:
                    ql = ql[:1]
                for x in ql:
                    if "noload" not in ABL or x < 36:
                        wload(x)
                    else:
                        vm.ops.append(("w", x))
                if T == 3 and s == 0 and n < 8:
                    bload(n + 1)
                if fill and g0 <= m <= g1:
                    budget = total * (m - g0 + 1) / (g1 - g0 + 1)
                    while fi < len(fill) and spent + fill[fi][1] / 2 <= budget:
                        emit_fill(fill[fi][0])
                        spent += fill[fi][1]
                        fi += 1
                m += 1
        assert fi == len(fill), (n, fi, len(fill))
    stamp(6)
    for op, _ in out_ops(8):
        emit_fill(op)
    stamp_flush(8, "s3", "s29")
    a("s_endpgm")


def descriptor(label, vgpr, accum, sgpr=102 if PROF else 96):
    return """.amdhsa_kernel %s
  .amdhsa_next_free_vgpr %d
  .amdhsa_next_free_sgpr %d
  .amdhsa_accum_offset %d
  .amdhsa_group_segment_fixed_size 0
  .amdhsa_kernarg_size 88
  .amdhsa_user_sgpr_count 2
  .amdhsa_user_sgpr_kernarg_segment_ptr 1
  .amdhsa_system_sgpr_workgroup_id_x 1
.end_amdhsa_kernel
""" % (label, vgpr, sgpr, accum)


def build():
    launches = [
        ("p_kernel", P_END, 576, 73728, 80, 80),
        ("a1_kernel", 256, 256, A_LDS, 208 + 144, 208),
        ("r1_kernel", 256, 576, 1024, 80, 80),
        ("m1_kernel", 256, 256, M_LDS, 512, 256),
        ("r2_kernel", 256, 576, 1024, 80, 80),
        ("a2_kernel", 256, 256, A_LDS, 208 + 144, 208),
        ("r3_kernel", 256, 576, 1024, 80, 80),
        ("m2_kernel", 256, 256, M_LDS, 512, 256),
        ("r4_kernel", 256, 576, 1024, 80, 80),
    ]
    p_kernel()
    a("L_exit:")
    a("s_endpgm")
    r_body()
    r_entry("r1_kernel", ("ka", KA_X), ("ws", XB[1]), PART[0], YB[1], 1 | 4 | 8)
    r_entry("r2_kernel", ("ws", XB[1]), ("ws", XB[2]), PART[1], YB[2], 1 | 2 | 4)
    r_entry("r3_kernel", ("ws", XB[2]), ("ws", XB[3]), PART[2], YB[3], 1 | 4 | 8)
    r_entry("r4_kernel", ("ws", XB[3]), ("ka", KA_OUT), PART[3], YB[0], 1 | 2)
    am_entry("a1_kernel", "A_body", YB[0], PART[0], 0)
    am_entry("a2_kernel", "A_body", YB[2], PART[2], 2)
    a_body()
    am_entry("m1_kernel", "M_body", YB[1], PART[1], 1)
    am_entry("m2_kernel", "M_body", YB[3], PART[3], 3)
    m_body()
    errs = a.check_branch_seams()
    for e in errs:
        print("WARN", e, file=sys.stderr)
    head = "; generated by work/gen.py (hand-written generator)\n"
    for l, g, b, lds, _, _ in launches:
        head += "; @launch kernel=%s grid=(%d,1,1) block=(%d,1,1) lds=%d\n" % (l, g, b, lds)
    head += '.amdgcn_target "amdgcn-amd-amdhsa--gfx950"\n.text\n'
    tail = '.section .rodata,"a"\n'
    for l, g, b, lds, v, ac in launches:
        tail += ".p2align 6\n" + descriptor(l, v, ac)
    return head + a.text() + tail


if __name__ == "__main__":
    out = sys.argv[1] if len(sys.argv) > 1 else "cdna_kernels/%s.s" % NAME
    open(out, "w").write(build())
    print("wrote", out)
```

```python
import sys, math, os
from asmlib import Asm, f32bits

NAME = "interleave_layers__sliding_local_dilated__mixer_channel_mlp__prompt"
ACT = 2048 * 576 * 2
TB = 73728
WOS = 82944
WQKVP = 0
WOP = WQKVP + 2304 * 1024
W1P = WOP + 672 * 1024
W2P = W1P + 5184 * 1024
AUG = W2P + 5184 * 1024
CNT = AUG + 72 * 1024
LB = CNT + 4096
oY, oO, oXA, oX1 = 0, ACT, 2 * ACT, 3 * ACT
oST = 4 * ACT
oPART = 4 * ACT + 128 * 1024
LS = oPART + 8 * ACT
WS_USED = LB + 2 * LS
WS_BYTES = 268435456
OOB = 0x80000000
ST = " sc1"
LD = " sc1"
STAMP = 200 * 1024 * 1024

E = lambda n, d: int(os.environ.get(n, str(d)))
PROF = os.environ.get("PROF", "")
MAPB = E("MAPB", 2)
MROT = E("MROT", 3)
AROT = E("AROT", 2)
APRE = E("APRE", 3)
PF = E("PF", 14)
NR = 32
SPIN = 1 << 16

KA_X, KA_WQKV, KA_WO, KA_BX, KA_W1, KA_B1, KA_W2, KA_B2, KA_OUT, KA_DBG, KA_WS = [8 * i for i in range(11)]
a = Asm()
MF = "v_mfma_f32_16x16x32_bf16"
q4 = lambda b, k="v": "%s[%d:%d]" % (k, b, b + 3)
q2 = lambda b: "v[%d:%d]" % (b, b + 1)


def srd(d, base, off, nbytes):
    if off == 0:
        a("s_mov_b32 s%d, s%d" % (d, base))
        a("s_mov_b32 s%d, s%d" % (d + 1, base + 1))
    else:
        a("s_add_u32 s%d, s%d, %s" % (d, base, off if isinstance(off, str) else hex(off)))
        a("s_addc_u32 s%d, s%d, 0" % (d + 1, base + 1))
    a("s_mov_b32 s%d, %s" % (d + 2, hex(nbytes)))
    a("s_mov_b32 s%d, 0x20000" % (d + 3))


def entry(label):
    a(".p2align 8")
    a(".globl %s" % label)
    a(".type %s,@function" % label)
    a("%s:" % label)


class VM:
    def __init__(self, cnt="vmcnt", maxn=63):
        self.ops, self.cnt, self.maxn, self.done = [], cnt, maxn, -1

    def op(self, text, tag):
        a(text)
        self.ops.append(tag)

    def wait(self, tag):
        last = max(i for i, t in enumerate(self.ops) if t == tag)
        if last <= self.done:
            return
        n = min(len(self.ops) - 1 - last, self.maxn)
        self.done = len(self.ops) - 1 - n
        a("s_waitcnt %s(%d)" % (self.cnt, n))

    def all(self):
        self.done = len(self.ops) - 1
        a("s_waitcnt %s(0)" % self.cnt)


def stamp(k):
    if PROF:
        a("s_memtime s[98:99]")
        a("s_waitcnt lgkmcnt(0)")
        a("v_mov_b32 v0, s98")
        a("buffer_store_dword v0, off, s[92:95], s96 offset:%d" % (4 * k))


def unpack(dst, src):
    a("v_lshlrev_b32 v%d, 16, v%d" % (dst, src))
    a("v_and_b32 v%d, 0xffff0000, v%d" % (dst + 1, src))


def cvt(d, x, y):
    a("v_cvt_pk_bf16_f32 v%d, v%d, v%d" % (d, x, y))


def round1(r):
    cvt(r, r, r)
    a("v_and_b32 v%d, 0xffff0000, v%d" % (r, r))


def ln_scalars(mean, var, M, SD, emit=None):
    e = emit or a
    e("v_cvt_pk_bf16_f32 v%d, v%d, v%d" % (M, var, mean))
    e("v_lshlrev_b32 v%d, 16, v%d" % (SD, M))
    e("v_and_b32 v%d, 0xffff0000, v%d" % (M, M))
    e("v_add_f32 v%d, %s, v%d" % (SD, f32bits(1e-5), SD))
    e("v_cvt_pk_bf16_f32 v%d, v%d, v%d" % (SD, SD, SD))
    e("v_and_b32 v%d, 0xffff0000, v%d" % (SD, SD))
    e("v_sqrt_f32 v%d, v%d" % (SD, SD))
    e("v_cvt_pk_bf16_f32 v%d, v%d, v%d" % (SD, SD, SD))
    e("v_and_b32 v%d, 0xffff0000, v%d" % (SD, SD))


def xsum(r, t, rows16=True, rows32=True, ror8=False):
    if ror8:
        a("v_add_f32_dpp v%d, v%d, v%d row_ror:8 row_mask:0xf bank_mask:0xf" % (r, r, r))
    a("v_mov_b32 v%d, v%d" % (t, r))
    a("v_permlane16_swap_b32 v%d, v%d" % (r, t))
    a("v_add_f32 v%d, v%d, v%d" % (r, r, t))
    a("v_mov_b32 v%d, v%d" % (t, r))
    a("v_permlane32_swap_b32 v%d, v%d" % (r, t))
    a("v_add_f32 v%d, v%d, v%d" % (r, r, t))


def mod_small(dst, src, n):
    if n == 1:
        a("s_mov_b32 %s, 0" % dst)
        return
    m = -(-4096 // n)
    assert all((t * m) >> 12 == t // n for t in range(32))
    a("s_mul_i32 %s, %s, %d" % (dst, src, m))
    a("s_lshr_b32 %s, %s, 12" % (dst, dst))
    a("s_mul_i32 %s, %s, %d" % (dst, dst, n))
    a("s_sub_u32 %s, %s, %s" % (dst, src, dst))


P_QKV, P_LN, P_WO, P_W1, P_W2, P_MISC, P_END = 0, 64, 320, 360, 432, 504, 505


def p_kernel():
    entry("p_kernel")
    a("s_cmp_ge_u32 s2, %d" % P_END)
    a("s_cbranch_scc1 L_exit")
    a("s_load_dwordx16 s[4:19], s[0:1], 0")
    a("s_load_dwordx2 s[24:25], s[0:1], %d" % KA_WS)
    a("v_lshrrev_b32 v1, 6, v0")
    a("v_readfirstlane_b32 s3, v1")
    a("v_and_b32 v1, 63, v0")
    a("v_lshlrev_b32 v2, 4, v1")
    a("v_lshrrev_b32 v3, 4, v1")
    a("v_and_b32 v4, 15, v1")
    a("s_waitcnt lgkmcnt(0)")
    srd(40, 24, 0, WS_USED)
    a("s_cmp_ge_u32 s2, %d" % P_W1)
    a("s_cbranch_scc1 P_w12")
    a("s_cmp_ge_u32 s2, %d" % P_WO)
    a("s_cbranch_scc1 P_wo")
    a("s_cmp_ge_u32 s2, %d" % P_LN)
    a("s_cbranch_scc1 P_ln")
    srd(36, 6, 0, 576 * 1728 * 2)
    a("s_mul_i32 s20, s2, 9")
    a("s_add_u32 s20, s20, s3")
    a("s_mul_i32 s21, s20, 3641")
    a("s_lshr_b32 s21, s21, 16")
    a("s_mul_i32 s22, s21, 18")
    a("s_sub_u32 s22, s20, s22")
    a("s_mul_i32 s22, s22, %d" % (32 * 3456))
    a("s_mul_i32 s21, s21, 36")
    a("s_add_u32 s44, s22, s21")
    for j in range(1, 8):
        a("s_add_u32 s%d, s44, %d" % (44 + j, j * 3456))
    a("v_mul_u32_u24 v5, %d, v3" % (8 * 3456))
    a("v_lshl_add_u32 v6, v4, 1, v5")
    a("v_lshrrev_b32 v7, 1, v4")
    a("v_mul_u32_u24 v7, 1152, v7")
    a("v_and_b32 v8, 1, v4")
    a("v_lshl_add_u32 v7, v8, 1, v7")
    a("v_add3_u32 v7, v7, v5, 32")
    a("v_mov_b32 v8, %s" % hex(OOB))
    a("v_cmp_gt_u32 vcc, 6, v4")
    a("v_cndmask_b32 v7, v8, v7, vcc")
    for t in range(4):
        for j in range(8):
            if t < 3:
                a("buffer_load_ushort v%d, v6, s[36:39], s%d offen offset:%d" % (16 + t * 8 + j, 44 + j, t * 1152))
            else:
                a("buffer_load_ushort v%d, v7, s[36:39], s%d offen" % (16 + t * 8 + j, 44 + j))
    a("s_lshl_b32 s20, s20, 12")
    for t in range(4):
        a("s_waitcnt vmcnt(%d)" % (24 - 8 * t + t))
        for k in range(4):
            a("v_lshl_or_b32 v%d, v%d, 16, v%d" % (48 + t * 4 + k, 16 + t * 8 + 2 * k + 1, 16 + t * 8 + 2 * k))
        a("buffer_store_dwordx4 %s, v2, s[40:43], s20 offen offset:%d%s" % (q4(48 + t * 4), t * 1024, ST))
    a("s_endpgm")

    a("P_ln:")
    srd(36, 4, 0, ACT)
    a("s_sub_u32 s20, s2, %d" % P_LN)
    a("v_lshrrev_b32 v1, 3, v0")
    a("v_and_b32 v7, 7, v0")
    a("v_lshlrev_b32 v8, 4, v1")
    a("v_mul_u32_u24 v9, 1152, v7")
    a("v_add_u32 v9, v9, v8")
    a("s_mul_i32 s21, s20, %d" % (8 * 1152))
    a("buffer_load_dwordx4 v[16:19], v9, s[36:39], s21 offen")
    a("v_lshlrev_b32 v3, 8, v1")
    a("v_lshl_add_u32 v3, v7, 4, v3")
    a("s_lshr_b32 s22, s20, 1")
    a("s_mul_i32 s22, s22, 18432")
    a("s_and_b32 s23, s20, 1")
    a("s_lshl_b32 s23, s23, 7")
    a("s_add_u32 s22, s22, s23")
    a("s_add_u32 s23, s22, %s" % hex(LB + oXA))
    a("s_add_u32 s22, s22, %s" % hex(LB + oY))
    a("v_mul_u32_u24 v11, 48, v7")
    a("v_lshrrev_b32 v12, 6, v0")
    a("v_lshl_add_u32 v12, v12, 2, v11")
    AC, T, P = 24, 32, 48
    a("s_waitcnt vmcnt(0)")
    a("buffer_store_dwordx4 v[16:19], v3, s[40:43], s23 offen%s" % ST)
    for k in range(4):
        unpack(AC + 2 * k, 16 + k)

    def reduce9(s, ldsoff, out):
        xsum(s, s + 1, ror8=True)
        a("ds_write_b32 v12, v%d offset:%d" % (s, ldsoff))
        a("s_waitcnt lgkmcnt(0)")
        a("s_barrier")
        a("ds_read_b128 %s, v11 offset:%d" % (q4(P), ldsoff))
        a("ds_read_b128 %s, v11 offset:%d" % (q4(P + 4), ldsoff + 16))
        a("ds_read_b32 v%d, v11 offset:%d" % (P + 8, ldsoff + 32))
        a("s_waitcnt lgkmcnt(0)")
        a("v_pk_add_f32 %s, %s, %s" % (q2(P), q2(P), q2(P + 2)))
        a("v_pk_add_f32 %s, %s, %s" % (q2(P + 4), q2(P + 4), q2(P + 6)))
        a("v_pk_add_f32 %s, %s, %s" % (q2(P), q2(P), q2(P + 4)))
        a("v_add_f32 v%d, v%d, v%d" % (P, P, P + 1))
        a("v_add_f32 v%d, v%d, v%d" % (P, P, P + 8))
        a("v_mul_f32 v%d, %s, v%d" % (out, f32bits(1.0 / 576.0), P))

    S, MEAN, VAR, M, SD = 40, 42, 43, 44, 45
    a("v_pk_add_f32 %s, %s, %s" % (q2(T), q2(AC), q2(AC + 2)))
    a("v_pk_add_f32 %s, %s, %s" % (q2(T + 2), q2(AC + 4), q2(AC + 6)))
    a("v_pk_add_f32 %s, %s, %s" % (q2(T), q2(T), q2(T + 2)))
    a("v_add_f32 v%d, v%d, v%d" % (S, T, T + 1))
    reduce9(S, 0, MEAN)
    for k in range(8):
        a("v_sub_f32 v%d, v%d, v%d" % (T + k, AC + k, MEAN))
    a("v_mul_f32 v%d, v%d, v%d" % (S, T, T))
    for k in range(1, 8):
        a("v_fmac_f32 v%d, v%d, v%d" % (S, T + k, T + k))
    reduce9(S, 512, VAR)
    ln_scalars(MEAN, VAR, M, SD)
    a("v_rcp_f32 v%d, v%d" % (SD, SD))
    for k in range(8):
        a("v_sub_f32 v%d, v%d, v%d" % (AC + k, AC + k, M))
    for k in range(4):
        cvt(T + k, AC + 2 * k, AC + 2 * k + 1)
    for k in range(4):
        unpack(AC + 2 * k, T + k)
    for k in range(8):
        a("v_mul_f32 v%d, v%d, v%d" % (AC + k, AC + k, SD))
    for k in range(4):
        cvt(T + k, AC + 2 * k, AC + 2 * k + 1)
    a("buffer_store_dwordx4 %s, v3, s[40:43], s22 offen%s" % (q4(T), ST))
    a("s_endpgm")

    a("P_wo:")
    srd(36, 8, 0, 576 * 576 * 2)
    a("s_sub_u32 s20, s2, %d" % P_WO)
    a("s_mul_i32 s21, s20, 205")
    a("s_lshr_b32 s21, s21, 10")
    a("s_mul_i32 s22, s21, 5")
    a("s_sub_u32 s22, s20, s22")
    a("s_mul_i32 s23, s21, 144")
    a("s_lshl_b32 s26, s22, 5")
    a("s_add_u32 s23, s23, s26")
    a("s_mul_i32 s27, s21, %d" % WOS)
    a("s_mul_i32 s26, s3, %d" % (2 * 4608))
    a("s_add_u32 s27, s27, s26")
    a("s_lshl_b32 s26, s22, 10")
    a("s_add_u32 s27, s27, s26")
    a("s_add_u32 s27, s27, %s" % hex(WOP))
    a("s_add_u32 s28, s27, 4608")
    a("v_lshlrev_b32 v9, 7, v3")
    a("v_lshl_add_u32 v9, v4, 4, v9")
    a("v_mov_b32 v8, %s" % hex(OOB))
    a("v_cmp_gt_u32 vcc, 8, v4")
    a("v_cndmask_b32 v9, v8, v9, vcc")
    a("s_cmp_eq_u32 s22, 4")
    a("s_cselect_b64 vcc, -1, 0")
    a("v_cndmask_b32 v9, v2, v9, vcc")
    a("v_lshlrev_b32 v5, 1, v4")
    a("s_cmp_eq_u32 s3, 8")
    a("s_cbranch_scc1 P_wo_tail")
    a("s_mul_i32 s44, s3, %d" % (72 * 1152))
    a("s_add_u32 s44, s44, s23")
    for hd in range(1, 4):
        a("s_add_u32 s%d, s44, %d" % (44 + hd, hd * 18 * 1152))
    a("v_mul_u32_u24 v6, %d, v3" % (4 * 1152))
    a("v_add_u32 v6, v6, v5")
    for st in range(2):
        for j in range(8):
            a("buffer_load_ushort v%d, v6, s[36:39], s%d offen offset:%d" % (16 + st * 8 + j, 44 + 2 * st + (j >> 2), (j & 3) * 1152))
    a("s_branch P_wo_st")
    a("P_wo_tail:")
    a("v_mul_u32_u24 v6, %d, v3" % (72 * 1152))
    a("v_add_u32 v6, v6, v5")
    for st in range(2):
        for hd in range(4):
            a("s_add_u32 s%d, s23, %d" % (44 + st * 4 + hd, (st * 288 + hd * 18 + 16) * 1152))
    for st in range(2):
        for j in range(8):
            a("buffer_load_ushort v%d, v6, s[36:39], s%d offen offset:%d" % (16 + st * 8 + j, 44 + st * 4 + (j >> 1), (j & 1) * 1152))
    a("P_wo_st:")
    for t in range(2):
        a("s_waitcnt vmcnt(%d)" % (8 - 8 * t + t))
        for k in range(4):
            a("v_lshl_or_b32 v%d, v%d, 16, v%d" % (48 + t * 4 + k, 16 + t * 8 + 2 * k + 1, 16 + t * 8 + 2 * k))
        a("buffer_store_dwordx4 %s, v9, s[40:43], s%d offen%s" % (q4(48 + t * 4), 27 + t, ST))
    a("s_endpgm")

    a("P_w12:")
    a("s_cmp_ge_u32 s2, %d" % P_MISC)
    a("s_cbranch_scc1 P_misc")
    a("v_lshrrev_b32 v5, 3, v1")
    a("v_and_b32 v6, 7, v1")
    a("v_lshlrev_b32 v6, 4, v6")
    a("v_bfe_u32 v7, v1, 2, 2")
    a("v_and_b32 v8, 3, v1")
    a("s_lshl_b32 s21, s3, 13")
    a("s_cmp_ge_u32 s2, %d" % P_W2)
    a("s_cbranch_scc1 P_w2")

    def w12(stride, second):
        for n in range(8):
            a("s_add_u32 m0, s21, %d" % (n * 1024))
            a("buffer_load_dwordx4 v9, s[36:39], s22 offen lds")
            if n < 7:
                a("s_add_u32 s22, s22, %d" % (8 * stride))
        for ks in range(2):
            a("s_waitcnt vmcnt(4)")
            for tl in range(4):
                b = 16 + (ks * 4 + tl) * 4
                o = ks * 4096 + tl * 32
                a("ds_read_b64_tr_b16 %s, v10 offset:%d" % (q2(b), o))
                a("ds_read_b64_tr_b16 %s, v10 offset:%d" % (q2(b + 2), o + second))
            for tl in range(4):
                b = 16 + (ks * 4 + tl) * 4
                a("s_waitcnt lgkmcnt(%d)" % (6 - 2 * tl))
                a("s_add_u32 s26, s23, %d" % (tl * 18432 + ks * 1024))
                a("buffer_store_dwordx4 %s, v2, s[40:43], s26 offen%s" % (q4(b), ST))

    srd(36, 12, 0, 576 * 4608 * 2)
    a("s_sub_u32 s20, s2, %d" % P_W1)
    a("s_mul_i32 s22, s3, %d" % (64 * 9216))
    a("s_lshl_b32 s23, s20, 7")
    a("s_add_u32 s22, s22, s23")
    a("v_mul_u32_u24 v9, 9216, v5")
    a("v_add_u32 v9, v9, v6")
    a("v_lshl_add_u32 v10, v3, 3, v7")
    a("v_lshlrev_b32 v10, 7, v10")
    a("v_lshl_add_u32 v10, v8, 3, v10")
    a("v_add_u32 v10, s21, v10")
    a("s_mul_i32 s23, s20, %d" % (4 * 18432))
    a("s_lshl_b32 s26, s3, 11")
    a("s_add_u32 s23, s23, s26")
    a("s_add_u32 s23, s23, %s" % hex(W1P))
    for k in range(4):
        a("v_mov_b32 v%d, 0x3f803f80" % (12 + k))
    w12(9216, 512)
    for tl in range(4):
        a("%s %s, %s, v[12:15], 0" % (MF, q4(48 + tl * 4), q4(16 + tl * 4)))
    for tl in range(4):
        a("%s %s, %s, v[12:15], %s" % (MF, q4(48 + tl * 4), q4(32 + tl * 4), q4(48 + tl * 4)))
    a("s_lshl_b32 s26, s3, 8")
    a("s_add_u32 s26, s26, 73728")
    a("v_lshlrev_b32 v11, 4, v3")
    a("v_add_u32 v11, s26, v11")
    srd(36, 14, 0, 4608 * 2)
    a("s_lshl_b32 s27, s20, 7")
    a("v_lshlrev_b32 v5, 1, v1")
    a("buffer_load_ushort v64, v5, s[36:39], s27 offen")
    for tl in range(4):
        a("ds_write_b128 v11, %s offset:%d" % (q4(48 + tl * 4), tl * 64))
    a("s_waitcnt lgkmcnt(0)")
    a("s_barrier")
    a("s_cmp_lg_u32 s3, 0")
    a("s_cbranch_scc1 L_exit")
    a("v_lshlrev_b32 v11, 2, v1")
    a("v_add_u32 v11, 73728, v11")
    for w in range(9):
        a("ds_read_b32 v%d, v11 offset:%d" % (48 + w, w * 256))
    a("s_waitcnt lgkmcnt(0)")
    for w in range(1, 9):
        a("v_add_f32 v48, v48, v%d" % (48 + w))
    a("v_sub_f32 v48, 0, v48")
    cvt(60, 48, 48)
    a("v_and_b32 v49, 0xffff0000, v60")
    a("v_sub_f32 v49, v48, v49")
    cvt(49, 49, 49)
    a("v_and_b32 v49, 0xffff, v49")
    a("s_waitcnt vmcnt(0)")
    a("v_lshl_or_b32 v61, v64, 16, v49")
    a("v_mov_b32 v62, v64")
    a("v_mov_b32 v63, 0")
    a("s_lshl_b32 s27, s20, 10")
    a("s_add_u32 s27, s27, %s" % hex(AUG))
    a("buffer_store_dwordx4 v[60:63], v2, s[40:43], s27 offen%s" % ST)
    a("s_endpgm")

    a("P_w2:")
    srd(36, 16, 0, 576 * 4608 * 2)
    a("s_sub_u32 s20, s2, %d" % P_W2)
    a("s_mul_i32 s22, s20, %d" % (64 * 1152))
    a("s_lshl_b32 s23, s3, 7")
    a("s_add_u32 s22, s22, s23")
    a("v_mul_u32_u24 v9, 1152, v5")
    a("v_add_u32 v9, v9, v6")
    a("v_lshl_add_u32 v10, v3, 2, v7")
    a("v_lshlrev_b32 v10, 7, v10")
    a("v_lshl_add_u32 v10, v8, 3, v10")
    a("v_add_u32 v10, s21, v10")
    a("s_mul_i32 s26, s20, 57")
    a("s_lshr_b32 s26, s26, 9")
    a("s_mul_i32 s27, s26, 9")
    a("s_sub_u32 s27, s20, s27")
    a("s_mul_i32 s23, s26, %d" % (36 * 18432))
    a("s_mul_i32 s26, s3, %d" % (4 * 18432))
    a("s_add_u32 s23, s23, s26")
    a("s_lshl_b32 s27, s27, 11")
    a("s_add_u32 s23, s23, s27")
    a("s_add_u32 s23, s23, %s" % hex(W2P))
    w12(1152, 2048)
    a("s_endpgm")

    a("P_misc:")
    for k in range(4):
        a("v_mov_b32 v%d, 0" % (16 + k))
    a("v_lshlrev_b32 v5, 4, v0")
    srd(36, 24, CNT, 4096)
    a("buffer_store_dwordx4 v[16:19], v5, s[36:39], 0 offen%s" % ST)
    a("s_getpc_b64 s[20:21]")
    a("P_pc:")
    a("s_add_u32 s36, s20, main_kernel-P_pc")
    a("s_addc_u32 s37, s21, 0")
    a("s_mov_b32 s38, L_code_end-main_kernel")
    a("s_mov_b32 s39, 0x20000")
    a("s_mov_b32 s22, 0")
    for k in range(7):
        a("buffer_load_dwordx4 %s, v5, s[36:39], s22 offen" % q4(20 + 4 * k))
        a("s_add_u32 s22, s22, 9216")
    a("s_waitcnt vmcnt(0)")
    a("L_exit:")
    a("s_endpgm")


L_SCR, L_OX, L_Y, L_WA, L_WB = 0, 8192, 20480, 112640, 20480
MAIN_LDS = 163840
uid = [0]


def main_kernel():
    entry("main_kernel")
    a("s_cmp_ge_u32 s2, 256")
    a("s_cbranch_scc1 L_exit2")
    a("s_load_dwordx2 s[24:25], s[0:1], %d" % KA_WS)
    a("s_load_dwordx4 s[28:31], s[0:1], %d" % KA_B2)
    vm = VM()
    lg = VM("lgkmcnt", 15)
    a("v_lshrrev_b32 v1, 6, v0")
    a("v_readfirstlane_b32 s3, v1")
    a("v_and_b32 v1, 63, v0")
    a("v_lshlrev_b32 v2, 4, v1")
    a("v_lshrrev_b32 v3, 4, v1")
    a("v_and_b32 v4, 15, v1")
    b = MAPB
    spx = 8 // b
    tpx = 32 // spx
    lb = {1: 0, 2: 1, 4: 2, 8: 3}
    a("s_and_b32 s6, s2, 7")
    a("s_lshr_b32 s7, s2, 3")
    a("s_and_b32 s4, s6, %d" % (b - 1))
    a("s_lshl_b32 s4, s4, %d" % lb[spx])
    a("s_and_b32 s8, s7, %d" % (spx - 1))
    a("s_add_u32 s4, s4, s8")
    a("s_lshr_b32 s5, s6, %d" % lb[b])
    a("s_mul_i32 s5, s5, %d" % tpx)
    a("s_lshr_b32 s8, s7, %d" % lb[spx])
    a("s_add_u32 s5, s5, s8")
    a("s_mov_b32 s44, %s" % hex(LB))
    a("s_mov_b32 s45, 0")
    a("s_mov_b32 s46, 8")
    a("s_mul_i32 s47, s5, %d" % TB)

    KY, KW = 48, 54

    def k1_setup(rot):
        if rot:
            mod_small("s6", "s5", AROT)
            a("s_mul_i32 s6, s6, %d" % (6 // AROT))
        else:
            a("s_mov_b32 s6, 0")
        for G in range(6):
            a("s_mul_i32 s%d, s6, 3072" % (KY + G))
            a("s_add_u32 s%d, s%d, s44" % (KY + G, KY + G))
            a("s_mul_i32 s%d, s6, 12288" % (KW + G))
            if G < 5:
                a("s_add_u32 s6, s6, 1")
                a("s_cmp_eq_u32 s6, 6")
                a("s_cselect_b32 s6, 0, s6")
        a("s_mul_i32 s8, s3, 18432")
        a("s_add_u32 s8, s8, s47")
        a("v_add_u32 v7, s8, v2")
        a("s_min_u32 s9, s3, 2")
        a("s_lshl_b32 s11, s9, 10")
        a("s_add_u32 s8, s47, s11")
        a("s_sub_u32 s8, s8, 18432")
        a("s_cmp_eq_u32 s5, 0")
        a("s_cselect_b32 s8, %s, s8" % hex(OOB))
        a("v_add_u32 v8, s8, v2")
        a("s_add_u32 s11, s11, %d" % L_Y)
        a("s_mul_i32 s10, s3, 18432")
        a("s_add_u32 s10, s10, %d" % (L_Y + 18432))
        a("v_add_u32 v5, %d, v2" % L_Y)
        a("v_add_u32 v6, %d, v2" % (L_Y + 46080))

    def kw_voffs():
        a("s_lshl_b32 s12, s4, 2")
        a("s_add_u32 s12, s12, s3")
        a("s_mul_i32 s12, s12, 73728")
        a("v_add_u32 v9, s12, v2")
        a("v_add_u32 v10, 4096, v9")
        a("v_add_u32 v11, 8192, v9")

    k1_setup(True)
    kw_voffs()
    a("s_waitcnt lgkmcnt(0)")
    srd(40, 24, 0, WS_USED)
    a("s_lshl_b32 s6, s5, 7")
    a("s_add_u32 s6, s6, %s" % hex(CNT))
    a("s_add_u32 s20, s24, s6")
    a("s_addc_u32 s21, s25, 0")
    a("s_max_u32 s7, s5, 1")
    a("s_lshl_b32 s7, s7, 7")
    a("s_add_u32 s7, s7, %s" % hex(CNT - 128))
    a("s_add_u32 s22, s24, s7")
    a("s_addc_u32 s23, s25, 0")
    if PROF:
        srd(92, 24, STAMP, 1 << 20)
        a("s_lshl_b32 s96, s2, 2")
        a("s_add_u32 s96, s96, s3")
        a("s_lshl_b32 s96, s96, 8")
    stamp(0)

    def hop(tag, pre_a=(), pre_b=(), neighbor=False):
        uid[0] += 1
        u = uid[0]
        for f in pre_a:
            f()
        vm.wait(tag)
        lg.all()
        a("s_barrier")
        a("s_cmp_lg_u32 s3, 0")
        a("s_cbranch_scc1 H%d_a" % u)
        a("s_mov_b32 s16, 1")
        a("s_atomic_add s16, s[20:21], 0x0 glc")
        if neighbor:
            a("s_mov_b32 s17, 0")
            a("s_atomic_add s17, s[22:23], 0x0 glc")
        a("H%d_a:" % u)
        for f in pre_b:
            f()
        a("s_cmp_lg_u32 s3, 0")
        a("s_cbranch_scc1 H%d_b" % u)
        a("s_mov_b32 s18, %d" % SPIN)
        a("s_waitcnt lgkmcnt(0)")
        a("s_add_u32 s16, s16, 1")
        a("H%d_l:" % u)
        if neighbor:
            a("s_min_u32 s16, s16, s17")
        a("s_cmp_ge_u32 s16, s46")
        a("s_cbranch_scc1 H%d_b" % u)
        a("s_sub_u32 s18, s18, 1")
        a("s_cbranch_scc1 H%d_b" % u)
        a("s_mov_b32 s16, 0")
        a("s_atomic_add s16, s[20:21], 0x0 glc")
        if neighbor:
            a("s_mov_b32 s17, 0")
            a("s_atomic_add s17, s[22:23], 0x0 glc")
        a("s_waitcnt lgkmcnt(0)")
        a("s_branch H%d_l" % u)
        a("H%d_b:" % u)
        lg.all()
        a("s_add_u32 s46, s46, 8")
        a("s_barrier")

    QA, KA, VA, CA, YF = 16, 32, 52, 72, 92
    MSK, SM = 132, 136

    def wslot(i, t):
        return ((i % 16) * 4 + t) * 4

    def wload1(i, t, sreg=None):
        def f():
            s = sreg or "s%d" % (KW + i // 3)
            vm.op("buffer_load_dwordx4 %s, v%d, s[40:43], %s offen offset:%d" % (q4(wslot(i, t), "a"), 9 + i % 3, s, t * 1024), ("w", i))
        return f

    def ydma1(G, k):
        def f():
            if k < 3:
                a("s_add_u32 m0, s10, %d" % (G * 3072))
                vm.op("buffer_load_dwordx4 v7, s[40:43], s%d offen offset:%d%s lds" % (KY + G, k * 1024, LD), ("y", G))
            else:
                a("s_add_u32 m0, s11, %d" % (G * 3072))
                vm.op("buffer_load_dwordx4 v8, s[40:43], s%d offen%s lds" % (KY + G, LD), ("y", G))
        return f

    def yread1(i, T):
        def f():
            off = (T * 18 + i) * 1024
            base = 5
            if off >= 46080:
                off -= 46080
                base = 6
            a("ds_read_b128 %s, v%d offset:%d" % (q4(YF + (i % 2) * 20 + T * 4), base, off))
        return f

    def wodma(region, n):
        def f():
            a("s_add_u32 m0, s%d, %d" % ((13, 14)[region], (n // 4) * 4096))
            a("s_add_u32 s15, s%d, %d" % ((60, 61)[region], (n // 4) * 4096))
            vm.op("buffer_load_dwordx4 v2, s[40:43], s15 offen offset:%d lds" % ((n % 4) * 1024), "wo")
        return f

    def attn_consts():
        a("v_and_b32 v13, 1, v4")
        a("v_cmp_eq_u32 s[70:71], 1, v13")
        a("v_lshl_add_u32 v14, v3, 2, v13")
        a("v_cmp_ge_u32 s[72:73], v4, v14")
        a("v_add_u32 v14, 2, v14")
        a("v_cmp_ge_u32 s[74:75], v4, v14")
        a("v_mov_b32 v13, 0xffff")
        a("v_mov_b32 v14, 0xffff0000")
        a("v_cndmask_b32 v13, v13, v14, s[70:71]")
        a("v_cndmask_b32 v%d, v13, 0, s[72:73]" % (MSK + 0))
        a("v_cndmask_b32 v%d, v13, 0, s[74:75]" % (MSK + 1))
        a("v_cndmask_b32 v%d, 0, v13, s[72:73]" % (MSK + 2))
        a("v_cndmask_b32 v%d, 0, v13, s[74:75]" % (MSK + 3))
        a("s_cmp_eq_u32 s5, 0")
        a("s_cselect_b32 s14, %s, 0" % f32bits(-1e9 * math.sqrt(18.0)))
        for k in range(4):
            a("v_mov_b32 v%d, s14" % (SM + k))
        a("s_lshl_b32 s14, s3, 11")
        a("v_lshlrev_b32 v141, 9, v3")
        a("v_lshl_add_u32 v141, v4, 1, v141")
        a("v_add_u32 v141, s14, v141")
        a("v_and_b32 v142, 1, v4")
        a("v_mul_u32_u24 v142, 160, v142")
        a("v_lshl_add_u32 v142, v3, 3, v142")
        a("s_add_u32 s14, s14, 512")
        a("v_add_u32 v142, s14, v142")
        a("s_lshr_b32 s14, s3, 1")
        a("s_lshl_b32 s14, s14, 10")
        a("s_and_b32 s15, s3, 1")
        a("s_lshl_b32 s15, s15, 3")
        a("s_add_u32 s14, s14, s15")
        a("s_add_u32 s14, s14, %d" % L_OX)
        a("v_add_u32 v143, s14, v2")
        a("s_lshl_b32 s14, s3, 2")
        a("s_add_u32 s14, s14, %d" % (L_OX + 2048))
        a("v_add_u32 v144, s14, v2")
        a("s_mul_i32 s14, s3, 3072")
        a("s_add_u32 s14, s14, %d" % L_OX)
        a("v_add_u32 v145, s14, v2")
        a("s_mul_i32 s60, s4, %d" % WOS)
        a("s_add_u32 s60, s60, %s" % hex(WOP))
        a("s_mul_i32 s14, s3, 9216")
        a("s_add_u32 s61, s60, s14")
        a("s_add_u32 s61, s61, 46080")
        a("s_add_u32 s14, s14, %d" % L_WB)
        a("s_mul_i32 s13, s3, 12288")
        a("s_add_u32 s60, s60, s13")
        a("s_add_u32 s13, s13, %d" % L_WA)

    def qkv(pre):
        if not pre:
            for k in range(4):
                ydma1(0, k)()
            for t in range(4):
                wload1(0, t)()
            for k in range(4):
                ydma1(1, k)()
            for i in range(1, APRE):
                for t in range(4):
                    wload1(i, t)()
            attn_consts()
            ahead_y = 2
        else:
            for i in range(pre):
                vm.ops.append(("w", i))
            for G in range(3):
                for k in range(4):
                    ydma1(G, k)()
            ahead_y = 3
        vm.wait(("y", 0))
        a("s_barrier")
        for T in range(5):
            yread1(0, T)()
        wo_list = [wodma(0, n) for n in range(12)]
        for i in range(18):
            if i + 1 < 18 and (i + 1) % 3 == 0:
                vm.wait(("y", (i + 1) // 3))
                a("s_barrier")
            a("s_waitcnt lgkmcnt(0)")
            vm.wait(("w", i))
            mem = []
            if i // 3 + ahead_y < 6:
                mem += [ydma1(i // 3 + ahead_y, k) for k in ((0, 3), (1,), (2,))[i % 3]]
            nxt = i + APRE
            if pre:
                nxt = pre + i - 1 if i >= 1 else None
                if nxt is not None and nxt - 16 >= i:
                    nxt = None
            if nxt is not None and nxt < 18:
                mem += [wload1(nxt, t) for t in range(4)]
            elif i >= (6 if pre else 0):
                take = 2 if pre else 4
                mem += wo_list[:take]
                wo_list = wo_list[take:]
            rds = [yread1(i + 1, T) for T in range(5)] if i + 1 < 18 else []
            slots = {}
            for k, f in enumerate(mem):
                slots.setdefault(1 + (k * 18) // len(mem), []).append(f)
            for k, f in enumerate(rds):
                slots.setdefault(2 * k, []).append(f)
            m = 0
            for T in range(5):
                y = q4(YF + (i % 2) * 20 + T * 4)
                for t, base in ((1, KA), (2, VA), (3, CA), (0, QA)):
                    if t == 0 and T == 0:
                        continue
                    d = base + (T - 1 if t == 0 else T) * 4
                    w = q4(wslot(i, t), "a")
                    c = "0" if i == 0 else q4(d)
                    A_, B_ = (y, w) if t == 2 else (w, y)
                    a("%s %s, %s, %s, %s" % (MF, q4(d), A_, B_, c))
                    for f in slots.get(m, []):
                        f()
                    m += 1
        assert not wo_list, len(wo_list)

    qkv(0)
    a("s_branch K1_attn")
    a("K1_second:")
    vm.done = -1
    vm.ops = []
    qkv(PF)
    a("K1_attn:")
    vm.ops = []
    vm.done = -1
    stamp(1)
    a("s_barrier")
    side = [wodma(1, n) for n in range(9)]
    XR = 208

    def k2_addr():
        a("s_mul_i32 s62, s3, 18432")
        a("s_add_u32 s62, s62, s47")
        a("s_add_u32 s62, s62, s44")
        a("s_mul_i32 s63, s4, 2304")
        a("s_add_u32 s63, s63, s62")
        a("v_and_b32 v220, 1, v3")
        a("v_lshlrev_b32 v220, 9, v220")
        a("v_lshl_add_u32 v220, v4, 4, v220")
        a("v_lshrrev_b32 v221, 5, v1")
        a("v_lshl_add_u32 v220, v221, 8, v220")
        a("v_mov_b32 v221, %s" % hex(OOB))
        a("v_cmp_eq_u32 vcc, 0, v3")
        a("v_cndmask_b32 v221, v221, v220, vcc")
        a("v_cndmask_b32 v222, 0, -1, vcc")
        a("s_add_u32 s64, s63, %s" % hex(oXA))
        a("s_add_u32 s65, s63, %s" % hex(oX1))

    def xload(kk):
        def f():
            vm.op("buffer_load_dwordx4 %s, v%d, s[40:43], s64 offen offset:%d%s" % (q4(XR + 4 * kk), 220 if kk < 2 else 221, kk * 1024, LD), "x")
        return f

    k2_addr()
    side += [xload(k) for k in range(3)]
    cnt = [0]

    def v(text):
        a(text)
        cnt[0] += 1
        if cnt[0] % 12 == 0 and side:
            side.pop(0)()

    QO, KO, VP, X0, V2 = 148, 164, 184, 194, 196
    for T in range(5):
        xd = X0 if T == 0 else QO + (T - 1) * 4 + 2
        v("v_cvt_pk_bf16_f32 v%d, v%d, v%d" % (xd, CA + T * 4, CA + T * 4 + 1))
        a("ds_write_b16 v141, v%d offset:%d" % (xd, T * 32))
        a("ds_write_b16_d16_hi v141, v%d offset:%d" % (xd, T * 32 + 160))
    for T in range(5):
        v("v_cvt_pk_bf16_f32 v%d, v%d, v%d" % (KO + T * 4 + 2, CA + T * 4 + 2, CA + T * 4 + 3))
        v("v_cvt_pk_bf16_f32 v%d, v%d, v%d" % (KO + T * 4, KA + T * 4, KA + T * 4 + 1))
        v("v_cvt_pk_bf16_f32 v%d, v%d, v%d" % (KO + T * 4 + 1, KA + T * 4 + 2, KA + T * 4 + 3))
        v("v_mov_b32 v%d, 0" % (KO + T * 4 + 3))
        if T:
            q = QO + (T - 1) * 4
            v("v_cvt_pk_bf16_f32 v%d, v%d, v%d" % (q, QA + (T - 1) * 4, QA + (T - 1) * 4 + 1))
            v("v_cvt_pk_bf16_f32 v%d, v%d, v%d" % (q + 1, QA + (T - 1) * 4 + 2, QA + (T - 1) * 4 + 3))
            v("v_mov_b32 v%d, 0" % (q + 3))
    for T in range(5):
        a("ds_read_b64 %s, v142 offset:%d" % (q2(V2 + 2 * T), T * 32))
    SP = YF
    Ts = range(1, 5)
    for T in Ts:
        q = q4(QO + (T - 1) * 4)
        sp = SP + (T - 1) * 8
        a("%s %s, %s, %s, %s" % (MF, q4(sp), q4(KO + (T - 1) * 4), q, q4(SM) if T == 1 else "0"))
        a("%s %s, %s, %s, 0" % (MF, q4(sp + 4), q4(KO + T * 4), q))
    for T in range(5):
        v("v_cvt_pk_bf16_f32 v%d, v%d, v%d" % (VP + 2 * T, VA + T * 4, VA + T * 4 + 1))
        v("v_cvt_pk_bf16_f32 v%d, v%d, v%d" % (VP + 2 * T + 1, VA + T * 4 + 2, VA + T * 4 + 3))
    a("s_mov_b32 s19, %s" % f32bits((18.0 ** -0.5) * math.log2(math.e)))
    W = lambda T, k: 16 + (T - 1) * 8 + k
    for T in Ts:
        sp = SP + (T - 1) * 8
        v("v_cndmask_b32 v%d, v%d, v%d, s[70:71]" % (W(T, 2), sp + 4, sp + 5))
        v("v_cndmask_b32 v%d, v%d, v%d, s[70:71]" % (W(T, 3), sp + 0, sp + 1))
        v("v_cndmask_b32 v%d, v%d, v%d, s[70:71]" % (W(T, 4), sp + 6, sp + 7))
        v("v_cndmask_b32 v%d, v%d, v%d, s[70:71]" % (W(T, 5), sp + 2, sp + 3))
        v("v_cndmask_b32 v%d, v%d, v%d, s[72:73]" % (W(T, 0), W(T, 3), W(T, 2)))
        v("v_cndmask_b32 v%d, v%d, v%d, s[74:75]" % (W(T, 1), W(T, 5), W(T, 4)))
        v("v_max_f32 v%d, v%d, v%d" % (W(T, 2), W(T, 0), W(T, 1)))
        v("v_mov_b32 v%d, v%d" % (W(T, 3), W(T, 2)))

    def xlane(op):
        for T in Ts:
            v("v_permlane16_swap_b32 v%d, v%d" % (W(T, 2), W(T, 3)))
        for T in Ts:
            v("%s v%d, v%d, v%d" % (op, W(T, 2), W(T, 2), W(T, 3)))
            v("v_mov_b32 v%d, v%d" % (W(T, 3), W(T, 2)))
        for T in Ts:
            v("v_permlane32_swap_b32 v%d, v%d" % (W(T, 2), W(T, 3)))
        for T in Ts:
            v("%s v%d, v%d, v%d" % (op, W(T, 2), W(T, 2), W(T, 3)))

    xlane("v_max_f32")
    for T in Ts:
        v("v_sub_f32 v%d, v%d, v%d" % (W(T, 0), W(T, 0), W(T, 2)))
        v("v_sub_f32 v%d, v%d, v%d" % (W(T, 1), W(T, 1), W(T, 2)))
        v("v_mul_f32 v%d, s19, v%d" % (W(T, 0), W(T, 0)))
        v("v_mul_f32 v%d, s19, v%d" % (W(T, 1), W(T, 1)))
    for T in Ts:
        v("v_exp_f32 v%d, v%d" % (W(T, 0), W(T, 0)))
        v("v_exp_f32 v%d, v%d" % (W(T, 1), W(T, 1)))
    for T in Ts:
        v("v_add_f32 v%d, v%d, v%d" % (W(T, 2), W(T, 0), W(T, 1)))
        v("v_mov_b32 v%d, v%d" % (W(T, 3), W(T, 2)))
    xlane("v_add_f32")
    for T in Ts:
        v("v_rcp_f32 v%d, v%d" % (W(T, 2), W(T, 2)))
    for T in Ts:
        v("v_mul_f32 v%d, v%d, v%d" % (W(T, 0), W(T, 0), W(T, 2)))
        v("v_mul_f32 v%d, v%d, v%d" % (W(T, 1), W(T, 1), W(T, 2)))
        v("v_cvt_pk_bf16_f32 v%d, v%d, v%d" % (W(T, 0), W(T, 0), W(T, 0)))
        v("v_cvt_pk_bf16_f32 v%d, v%d, v%d" % (W(T, 1), W(T, 1), W(T, 1)))
        v("v_and_b32 v%d, v%d, v%d" % (W(T, 4), W(T, 0), MSK + 0))
        v("v_and_b32 v%d, v%d, v%d" % (W(T, 5), W(T, 1), MSK + 1))
        v("v_and_b32 v%d, v%d, v%d" % (W(T, 6), W(T, 0), MSK + 2))
        v("v_and_b32 v%d, v%d, v%d" % (W(T, 7), W(T, 1), MSK + 3))
    while side:
        side.pop(0)()
    a("s_waitcnt lgkmcnt(0)")
    for T in Ts:
        sp = SP + (T - 1) * 8
        p = q4(W(T, 4))
        a("%s %s, %s, %s, 0" % (MF, q4(sp), q4(VP + 2 * (T - 1)), p))
        a("%s %s, %s, %s, 0" % (MF, q4(sp + 4), q4(V2 + 2 * (T - 1)), p))
    a("s_add_u32 s66, s62, %s" % hex(oO))
    a("s_lshl_b32 s67, s4, 11")
    a("s_add_u32 s67, s67, s66")
    a("s_lshl_b32 s68, s4, 8")
    a("s_add_u32 s68, s68, s66")
    a("s_add_u32 s68, s68, 16384")
    for T in Ts:
        sp = SP + (T - 1) * 8
        o = 48 + (T - 1) * 4
        cvt(o, sp, sp + 1)
        cvt(o + 1, sp + 2, sp + 3)
        cvt(o + 2, sp + 4, sp + 5)
        a("ds_write_b64 v143, %s offset:%d" % (q2(o), (T - 1) * 3072))
        a("ds_write_b32 v144, v%d offset:%d" % (o + 2, (T - 1) * 3072))
    a("s_waitcnt lgkmcnt(0)")
    a("s_barrier")
    for st in range(3):
        a("ds_read_b128 %s, v145 offset:%d" % (q4(224 + st * 4), st * 1024))
    for st in range(3):
        a("s_waitcnt lgkmcnt(%d)" % (2 - st))
        if st < 2:
            vm.op("buffer_store_dwordx4 %s, v2, s[40:43], s67 offen offset:%d%s" % (q4(224 + st * 4), st * 1024, ST), "st")
        else:
            vm.op("buffer_store_dwordx4 %s, v221, s[40:43], s68 offen%s" % (q4(232), ST), "st")
    stamp(2)

    WS = 48
    ACC, FIN, AUGW, TMP, KC, AB = 144, 160, 176, 180, 192, 204
    PK = 204

    def ring(q):
        return 16 + (q % NR) * 4

    def m_voffs():
        a("s_mul_i32 s9, s4, 36")
        a("s_add_u32 s9, s9, s3")
        a("s_mul_i32 s11, s9, 18432")
        a("s_add_u32 s11, s11, %s" % hex(W1P))
        a("v_add_u32 v7, s11, v2")
        for k in range(1, 5):
            a("v_add_u32 v%d, %d, v7" % (7 + k, 4096 * k))
        a("s_lshl_b32 s11, s9, 8")
        a("s_add_u32 s11, s11, %s" % hex(AUG))
        a("v_lshl_add_u32 v12, v4, 4, s11")
        for n in range(9):
            a("s_mov_b32 s%d, %d" % (WS + n, n * 4 * 18432))

    W2T, STT = 76, 57
    sst = lambda n: (57 + n) if n < 3 else (85 + n - 3)

    def mload(q):
        def f():
            n, s = divmod(q, 18)
            sr = WS + n if n < 9 else W2T + n - 9
            vm.op("buffer_load_dwordx4 %s, v%d, s[40:43], s%d offen offset:%d" % (q4(ring(q)), 7 + s // 4, sr, (s % 4) * 1024), ("m", q))
        return f

    def aload(n):
        vm.op("buffer_load_dwordx4 %s, v12, s[40:43], s%d offen" % (q4(AUGW), 91), ("aug", n))

    def kslot(ks, tl):
        return ((ks % 12) * 5 + tl) * 4

    def kread(ks, tl):
        def f():
            base, off = (13, ks * 4608) if ks < 10 else (14, (ks - 10) * 4608)
            if tl == 4:
                base += 2
            lg.op("ds_read_b128 %s, v%d offset:%d" % (q4(kslot(ks, tl), "a"), base if base != 16 else 6, off + tl * 1024), ("k", ks))
        return f

    def k2_pre():
        a("v_add_u32 v13, %d, v2" % L_WA)
        a("v_add_u32 v14, %d, v2" % L_WB)
        a("v_and_b32 v15, 7, v4")
        a("v_lshlrev_b32 v15, 4, v15")
        a("v_lshl_add_u32 v15, v3, 7, v15")
        a("v_add_u32 v6, %d, v15" % L_WB)
        a("v_add_u32 v15, %d, v15" % L_WA)
        for ks in range(12):
            for tl in range(5):
                kread(ks, tl)()

    XU = 224
    def x_unpack():
        for k in range(12):
            unpack(XU + 2 * k, XR + k)

    m_voffs()
    hop("st", pre_a=[mload(q) for q in range(8)],
        pre_b=[k2_pre] + [mload(q) for q in range(8, 18)] + [x_unpack])
    stamp(3)

    OFR, KAC = 88, 160
    a("v_add_u32 v5, 4096, v2")
    for ks in range(18):
        if ks % 8 == 0:
            a("s_add_u32 s15, s66, %d" % (ks * 1024))
        vm.op("buffer_load_dwordx4 %s, v%d, s[40:43], s15 offen offset:%d%s" % (q4(OFR + ks * 4), (2, 5)[(ks % 8) // 4], (ks % 4) * 1024, LD), ("o", ks))
    for ks in range(18):
        vm.wait(("o", ks))
        lg.wait(("k", ks))
        for tl in range(5):
            a("%s %s, %s, %s, %s" % (MF, q4(KAC + tl * 4), q4(kslot(ks, tl), "a"), q4(OFR + ks * 4), "0" if ks == 0 else q4(KAC + tl * 4)))
            if ks < 6:
                kread(ks + 12, tl)()
    TP, TU = 180, 88
    for tl in range(5):
        cvt(TP + 2 * tl, KAC + 4 * tl, KAC + 4 * tl + 1)
        cvt(TP + 2 * tl + 1, KAC + 4 * tl + 2, KAC + 4 * tl + 3)
    for kk in range(3):
        a("v_permlane16_swap_b32 v%d, v%d" % (TP + 4 * kk, TP + 4 * kk + 2))
        a("v_permlane16_swap_b32 v%d, v%d" % (TP + 4 * kk + 1, TP + 4 * kk + 3))
    for k in range(8, 12):
        a("v_and_b32 v%d, v%d, v222" % (TP + k, TP + k))
    for kk in range(3):
        for k in range(4 * kk, 4 * kk + 4):
            unpack(TU + 2 * k, TP + k)
        for k in range(4 * kk, 4 * kk + 4):
            a("v_pk_add_f32 %s, %s, %s" % (q2(TU + 2 * k), q2(TU + 2 * k), q2(XU + 2 * k)))
        for k in range(4 * kk, 4 * kk + 4):
            cvt(XR + k, TU + 2 * k, TU + 2 * k + 1)
        vm.op("buffer_store_dwordx4 %s, v%d, s[40:43], s65 offen offset:%d%s" % (q4(XR + 4 * kk), 220 if kk < 2 else 221, kk * 1024, ST), "st")
    for k in range(12):
        unpack(TU + 2 * k, XR + k)
    S0 = 112
    a("v_pk_add_f32 %s, %s, %s" % (q2(S0), q2(TU), q2(TU + 2)))
    a("v_pk_add_f32 %s, %s, %s" % (q2(S0 + 2), q2(TU + 4), q2(TU + 6)))
    for k in range(4, 12, 2):
        a("v_pk_add_f32 %s, %s, %s" % (q2(S0), q2(S0), q2(TU + 2 * k)))
        a("v_pk_add_f32 %s, %s, %s" % (q2(S0 + 2), q2(S0 + 2), q2(TU + 2 * k + 2)))
    a("v_pk_add_f32 %s, %s, %s" % (q2(S0), q2(S0), q2(S0 + 2)))
    a("v_add_f32 v%d, v%d, v%d" % (S0, S0, S0 + 1))
    xsum(S0, S0 + 1)
    a("v_mul_f32 v%d, %s, v%d" % (S0 + 4, f32bits(1.0 / 72.0), S0))
    a("v_sub_f32 v%d, 0, v%d" % (S0 + 6, S0 + 4))
    a("v_mov_b32 v%d, v%d" % (S0 + 7, S0 + 6))
    a("v_and_b32 v%d, v%d, v222" % (S0 + 8, S0 + 6))
    a("v_mov_b32 v%d, v%d" % (S0 + 9, S0 + 8))
    for k in range(12):
        a("v_pk_add_f32 %s, %s, %s" % (q2(TU + 2 * k), q2(TU + 2 * k), q2(S0 + 6 if k < 8 else S0 + 8)))
    a("v_pk_mul_f32 %s, %s, %s" % (q2(S0), q2(TU), q2(TU)))
    a("v_pk_mul_f32 %s, %s, %s" % (q2(S0 + 2), q2(TU + 2), q2(TU + 2)))
    for k in range(2, 12):
        r = S0 + 2 * (k % 2)
        a("v_pk_fma_f32 %s, %s, %s, %s" % (q2(r), q2(TU + 2 * k), q2(TU + 2 * k), q2(r)))
    a("v_pk_add_f32 %s, %s, %s" % (q2(S0), q2(S0), q2(S0 + 2)))
    a("v_add_f32 v%d, v%d, v%d" % (S0 + 5, S0, S0 + 1))
    xsum(S0 + 5, S0 + 1)
    a("s_lshl_b32 s15, s5, 12")
    a("s_add_u32 s69, s15, s44")
    a("s_add_u32 s69, s69, %s" % hex(oST))
    a("s_lshl_b32 s15, s4, 9")
    a("s_lshl_b32 s19, s3, 7")
    a("s_add_u32 s15, s15, s19")
    a("s_add_u32 s15, s15, s69")
    a("v_lshrrev_b32 v%d, 1, v221" % (S0 + 1))
    vm.op("buffer_store_dwordx2 %s, v%d, s[40:43], s15 offen%s" % (q2(S0 + 4), S0 + 1, ST), "st")
    stamp(4)

    def m_setup():
        mod_small("s6", "s5", MROT)
        a("s_mul_i32 s6, s6, %d" % (9 // MROT))
        a("s_mul_i32 s10, s3, %d" % (8 * 18432))
        a("s_add_u32 s10, s10, %s" % hex(W2P - W1P))
        a("s_lshl_b32 s11, s5, 3")
        a("s_add_u32 s11, s11, s4")
        a("s_mul_i32 s11, s11, %d" % TB)
        a("s_add_u32 s11, s11, s44")
        a("s_add_u32 s11, s11, %s" % hex(oPART))
        a("s_mul_i32 s14, s3, 4608")
        a("s_add_u32 s11, s11, s14")
        for n in range(9):
            a("s_mul_i32 s%d, s6, 18432" % (W2T + n))
            a("s_add_u32 s%d, s%d, s10" % (W2T + n, W2T + n))
            a("s_lshl_b32 s%d, s6, 9" % sst(n))
            a("s_add_u32 s%d, s%d, s11" % (sst(n), sst(n)))
            if n < 8:
                a("s_add_u32 s6, s6, 1")
                a("s_cmp_eq_u32 s6, 9")
                a("s_cselect_b32 s6, 0, s6")
        a("v_add_u32 v13, 36864, v2")
        a("v_add_u32 v14, %d, v2" % TB)
        a("v_add_u32 v15, %d, v2" % (TB + 36864))
        a("v_and_b32 v5, 1, v3")
        a("v_mul_u32_u24 v5, 18432, v5")
        a("v_lshl_add_u32 v5, v4, 4, v5")
        a("v_lshrrev_b32 v6, 5, v1")
        a("v_lshl_add_u32 v5, v6, 8, v5")
        a("v_add_u32 v6, 36864, v5")
        a("s_lshr_b32 s14, s3, 1")
        a("s_lshl_b32 s14, s14, 10")
        a("s_and_b32 s15, s3, 1")
        a("s_lshl_b32 s15, s15, 3")
        a("s_add_u32 s14, s14, s15")
        a("v_add_u32 v222, s14, v14")
        a("v_add_u32 v223, s14, v15")
        a("v_lshlrev_b32 v220, 3, v1")
        a("s_mul_i32 s8, s3, 18432")
        a("s_add_u32 s62, s62, %s" % hex(oX1))
        a("s_mov_b32 s91, 0")

    hop("st", pre_a=[mload(q) for q in range(26, 32)],
        pre_b=[m_setup, lambda: aload(0)] + [mload(q) for q in range(18, 26)])
    stamp(5)

    def fr(T, s):
        k = s * 4 + T
        return q4(k * 4, "a") if k < 64 else q4(224 + (k - 64) * 4)

    for s in range(18):
        if s % 3 == 0:
            a("s_add_u32 m0, s8, %d" % (s * 1024))
            a("s_add_u32 s11, s62, %d" % (s * 1024))
        vm.op("buffer_load_dwordx4 v2, s[40:43], s11 offen offset:%d%s lds" % ((s % 3) * 1024, LD), ("y", s // 6))
        if s == 5:
            for j in range(8):
                vm.op("buffer_load_dwordx2 %s, v220, s[40:43], s69 offen offset:%d%s" % (q2(FIN + 2 * j), j * 512, LD), "stat")

    c0 = -2.0 * math.sqrt(2.0 / math.pi) * math.log2(math.e)

    def stat_ops():
        ops = []
        e = lambda t, c=4: ops.append((t, c))
        m = lambda j: FIN + 2 * j
        t0 = TMP
        MEAN, VAR, M1, S1, M2, S2, RS = t0, t0 + 1, t0 + 2, t0 + 3, t0 + 4, t0 + 5, t0 + 6
        ops.append(("WAIT", 0))
        e("v_add_f32 v%d, v%d, v%d" % (MEAN, m(0), m(1)))
        e("v_add_f32 v%d, v%d, v%d" % (VAR, m(0) + 1, m(1) + 1))
        for j in range(2, 8):
            e("v_add_f32 v%d, v%d, v%d" % (MEAN, MEAN, m(j)))
            e("v_add_f32 v%d, v%d, v%d" % (VAR, VAR, m(j) + 1))
        e("v_mul_f32 v%d, %s, v%d" % (MEAN, f32bits(0.125), MEAN))
        e("v_mul_f32 v%d, %s, v%d" % (VAR, f32bits(1.0 / 72.0), VAR))
        for j in range(8):
            e("v_sub_f32 v%d, v%d, v%d" % (m(j), m(j), MEAN))
        for j in range(8):
            e("v_fmac_f32 v%d, v%d, v%d" % (VAR, m(j), m(j)))
        e("v_mul_f32 v%d, %s, v%d" % (VAR, f32bits(0.125), VAR))
        ln_scalars(MEAN, VAR, M1, S1, e)
        e("v_rcp_f32 v%d, v%d" % (RS, S1), 8)
        e("v_sub_f32 v%d, v%d, v%d" % (MEAN, MEAN, M1))
        e("v_mul_f32 v%d, v%d, v%d" % (MEAN, MEAN, RS))
        e("v_mul_f32 v%d, v%d, v%d" % (VAR, VAR, RS))
        e("v_mul_f32 v%d, v%d, v%d" % (VAR, VAR, RS))
        ln_scalars(MEAN, VAR, M2, S2, e)
        MU, R = M1, S1
        e("v_fmac_f32 v%d, v%d, v%d" % (MU, M2, S1))
        e("v_mul_f32 v%d, v%d, v%d" % (R, S1, S2))
        D0, D1, D2, H = t0 + 7, t0 + 8, t0 + 9, t0 + 10
        e("v_cvt_pk_bf16_f32 v%d, v%d, v%d" % (D1, MU, R))
        e("v_lshlrev_b32 v%d, 16, v%d" % (H, D1))
        e("v_sub_f32 v%d, v%d, v%d" % (H, MU, H))
        e("v_cvt_pk_bf16_f32 v%d, v%d, v%d" % (D0, MU, H))
        e("v_and_b32 v%d, 0xffff0000, v%d" % (H, D1))
        e("v_sub_f32 v%d, v%d, v%d" % (H, R, H))
        e("v_cvt_pk_bf16_f32 v%d, v%d, 0" % (D2, H))
        for T in range(4):
            e("v_cmp_eq_u32 vcc, %d, v3" % T)
            for k, d in enumerate((D0, D1, D2)):
                e("v_cndmask_b32 v%d, 0, v%d, vcc" % (AB + 4 * T + k, d))
            e("v_mov_b32 v%d, 0" % (AB + 4 * T + 3))
        r0, r1, r2, r3 = KC + 8, KC + 9, KC + 10, KC + 11
        e("v_mov_b32 v%d, v%d" % (r0, R))
        e("v_mov_b32 v%d, v%d" % (r2, R))
        e("v_permlane32_swap_b32 v%d, v%d" % (r0, r2))
        e("v_mov_b32 v%d, v%d" % (r1, r0))
        e("v_mov_b32 v%d, v%d" % (r3, r2))
        e("v_permlane16_swap_b32 v%d, v%d" % (r0, r1))
        e("v_permlane16_swap_b32 v%d, v%d" % (r2, r3))
        for T in range(4):
            e("v_rcp_f32 v%d, v%d" % (KC + T, KC + 8 + T), 8)
        for T in range(4):
            e("v_mul_f32 v%d, v%d, v%d" % (KC + 4 + T, KC + T, KC + T))
            e("v_mul_f32 v%d, %s, v%d" % (KC + T, f32bits(c0), KC + T))
            e("v_mul_f32 v%d, v%d, v%d" % (KC + 4 + T, KC + 4 + T, KC + T))
            e("v_mul_f32 v%d, %s, v%d" % (KC + 4 + T, f32bits(0.044715), KC + 4 + T))
        return ops

    def gelu_ops(tl):
        ops = []
        for T in range(4):
            x = [FIN + 4 * T + r for r in range(4)]
            t = [TMP + (T % 2) * 6 + r for r in range(4)]
            pk = TMP + (T % 2) * 6 + 4
            for r in range(4):
                ops.append(("v_mul_f32 v%d, v%d, v%d" % (t[r], x[r], x[r]), 4))
            for r in range(4):
                ops.append(("v_fma_f32 v%d, v%d, v%d, v%d" % (t[r], t[r], KC + 4 + T, KC + T), 4))
            for r in range(4):
                ops.append(("v_mul_f32 v%d, v%d, v%d" % (t[r], t[r], x[r]), 4))
            for r in range(4):
                ops.append(("v_exp_f32 v%d, v%d" % (t[r], t[r]), 8))
            for r in range(4):
                ops.append(("v_fma_f32 v%d, v%d, v%d, v%d" % (t[r], t[r], KC + 8 + T, KC + 8 + T), 4))
            for r in range(4):
                ops.append(("v_rcp_f32 v%d, v%d" % (t[r], t[r]), 8))
            for r in range(4):
                ops.append(("v_mul_f32 v%d, v%d, v%d" % (t[r], t[r], x[r]), 4))
            ops.append(("v_cvt_pk_bf16_f32 v%d, v%d, v%d" % (pk, t[0], t[1]), 4))
            ops.append(("v_cvt_pk_bf16_f32 v%d, v%d, v%d" % (pk + 1, t[2], t[3]), 4))
            ops.append(("ds_write_b64 v%d, %s offset:%d" % ((222, 223)[T // 2], q2(pk), (T % 2) * 18432 + tl * 2048), 4))
        return ops

    def out_ops(n2):
        ops = []
        for T in range(4):
            ops.append(("v_cvt_pk_bf16_f32 v%d, v%d, v%d" % (PK + 2 * T, FIN + 4 * T, FIN + 4 * T + 1), 4))
            ops.append(("v_cvt_pk_bf16_f32 v%d, v%d, v%d" % (PK + 2 * T + 1, FIN + 4 * T + 2, FIN + 4 * T + 3), 4))
            if T % 2 == 1:
                ops.append(("v_permlane16_swap_b32 v%d, v%d" % (PK + 2 * T - 2, PK + 2 * T), 4))
                ops.append(("v_permlane16_swap_b32 v%d, v%d" % (PK + 2 * T - 1, PK + 2 * T + 1), 4))
                ops.append(("buffer_store_dwordx4 %s, v%d, s[40:43], s%d offen%s" % (q4(PK + 2 * T - 2), (5, 6)[T // 2], sst(n2), ST), 4))
        return ops

    def emit_fill(op):
        if op == "WAIT":
            vm.wait("stat")
        elif op.startswith("ds_"):
            lg.op(op, "hw")
        elif op.startswith("buffer_store"):
            vm.op(op, "st")
        else:
            a(op)

    def act1(T, s, second):
        off = ((T % 2) * 18 + s) * 1024
        base = ((2, 13), (14, 15))[second][T // 2]
        lg.op("ds_read_b128 %s, v%d offset:%d" % (fr(T, s), base, off), ("act", second, s))

    NQ = 18 * 18
    AHEAD = 3
    for n in range(18):
        gemm = 1 if n < 9 else 2
        npos = 19 if gemm == 1 else 18
        if n == 0:
            fill, g0, g1 = stat_ops(), 8, 68
        elif n <= 9:
            fill, g0, g1 = gelu_ops(n - 1), 3, (70 if n < 9 else 50)
        else:
            fill, g0, g1 = out_ops(n - 10), 8, 24
        rd = n in (0, 9)
        if n == 0:
            vm.wait(("y", 0))
            a("s_barrier")
        if n == 1:
            stamp(6)
        if n == 9:
            stamp(7)
            lg.wait("hw")
            a("s_barrier")
        if n == 10:
            stamp(8)
        if rd:
            for s in range(AHEAD):
                for T in range(4):
                    act1(T, s, n == 9)
        total = sum(c for _, c in fill)
        fi = spent = m = 0
        for s in range(npos):
            q = n * 18 + s
            if rd and s < 18:
                sa = s + AHEAD
                if sa < 18:
                    if n == 0 and sa % 6 == 0:
                        vm.wait(("y", sa // 6))
                        a("s_barrier")
                    if n == 9 and sa == 16:
                        assert fi == len(fill)
                        lg.wait("hw")
                        a("s_barrier")
                lg.wait(("act", n == 9, s))
            if s == 18:
                assert fi == len(fill)
                vm.wait(("aug", n))
            elif s % 2 == 0:
                vm.wait(("m", q)); vm.wait(("m", q + 1))
            for T in range(4):
                last = s == npos - 1
                d = (FIN if last else ACC) + 4 * T
                c = "0" if s == 0 else q4(ACC + 4 * T)
                if s == 18:
                    a("%s %s, %s, %s, %s" % (MF, q4(d), q4(AUGW), q4(AB + 4 * T), c))
                else:
                    a("%s %s, %s, %s, %s" % (MF, q4(d), q4(ring(q)), fr(T, s), c))
                if rd and s + AHEAD < 18:
                    act1(T, s + AHEAD, n == 9)
                if T == 3:
                    if s < 18 and q + NR < NQ:
                        mload(q + NR)()
                    if s == 18 and n < 8:
                        a("s_add_u32 s91, s91, 1024")
                        aload(n + 1)
                if fill and g0 <= m <= g1:
                    budget = total * (m - g0 + 1) / (g1 - g0 + 1)
                    while fi < len(fill) and spent + fill[fi][1] / 2 <= budget:
                        emit_fill(fill[fi][0])
                        spent += fill[fi][1]
                        fi += 1
                m += 1
        assert fi == len(fill), (n, fi, len(fill))
    for op, _ in out_ops(8):
        emit_fill(op)
    stamp(9)

    PR, DT, XQ, BQ, SEL, XP = 16, 88, 108, 128, 148, 156

    def r_setup():
        kw_voffs()
        a("s_cmp_eq_u32 s45, 0")
        a("s_cselect_b32 s60, 0, %s" % hex(OOB))
        for G in range(1, 6):
            a("s_add_u32 s%d, s60, %d" % (60 + G, G * 12288))
        a("s_lshr_b32 s6, s4, 1")
        a("s_mul_i32 s6, s6, 18432")
        a("s_and_b32 s7, s4, 1")
        a("s_lshl_b32 s7, s7, 7")
        a("s_add_u32 s6, s6, s7")
        a("s_mul_i32 s7, s3, 4608")
        a("s_add_u32 s6, s6, s7")
        a("s_add_u32 s6, s6, s44")
        a("s_lshl_b32 s7, s47, 3")
        a("s_add_u32 s48, s6, s7")
        a("s_add_u32 s48, s48, %s" % hex(oPART))
        a("s_add_u32 s49, s48, %d" % (4 * TB))
        a("s_add_u32 s50, s48, 4096")
        a("s_add_u32 s51, s49, 4096")
        a("s_add_u32 s6, s6, s47")
        a("s_add_u32 s52, s6, %s" % hex(oX1))
        a("s_add_u32 s53, s52, 4096")
        a("s_add_u32 s54, s6, %s" % hex(LS + oXA))
        a("s_add_u32 s55, s6, %s" % hex(LS + oY))
        a("v_and_b32 v176, 7, v1")
        a("v_bfe_u32 v177, v1, 3, 1")
        a("v_lshlrev_b32 v178, 4, v176")
        a("v_lshl_add_u32 v178, v177, 8, v178")
        a("v_mul_u32_u24 v179, %d, v3" % TB)
        a("v_add_u32 v179, v179, v178")
        a("v_and_b32 v180, 1, v3")
        a("v_lshrrev_b32 v181, 1, v3")
        a("v_lshl_add_u32 v182, v181, 9, v178")
        a("v_lshl_add_u32 v183, v180, 10, v182")
        a("v_lshl_add_u32 v182, v180, 3, v182")
        a("v_lshlrev_b32 v184, 4, v177")
        a("v_lshl_add_u32 v184, v181, 5, v184")
        a("v_mul_u32_u24 v185, 1152, v176")
        a("v_add_u32 v185, v185, v184")
        a("v_lshl_add_u32 v185, v180, 6, v185")
        a("v_lshl_add_u32 v184, v180, 3, v184")
        a("v_mov_b32 v188, %s" % hex(OOB))
        a("v_cmp_eq_u32 vcc, 0, v3")
        a("v_add_u32 v186, 4096, v183")
        a("v_cndmask_b32 v186, v188, v186, vcc")
        a("v_cndmask_b32 v187, v188, v185, vcc")
        a("v_cmp_gt_u32 vcc, 2, v3")
        a("v_cndmask_b32 v188, 0, -1, vcc")
        srd(36, 28, 0, 1152)
        a("s_mul_i32 s56, s3, 288")
        for k in range(5):
            vm.op("buffer_load_dwordx2 %s, v182, s[40:43], s%d offen offset:%d%s" % (q2(XP + 2 * k), 52 if k < 4 else 53, (k % 4) * 1024, LD), "rx")
            vm.op("buffer_load_dwordx2 %s, v184, s[36:39], s56 offen offset:%d" % (q2(XP + 10 + 2 * k), k * 64), "rx")
        a("v_and_b32 v189, 1, v4")
        a("v_lshlrev_b32 v189, 4, v189")
        a("v_mov_b32 v190, 0x3f80")
        a("v_lshlrev_b32 v189, v189, v190")
        a("v_lshrrev_b32 v190, 1, v4")
        for k in range(8):
            a("v_cmp_eq_u32 vcc, %d, v190" % k)
            a("v_cndmask_b32 v%d, 0, v189, vcc" % (SEL + k))
        a("v_mul_u32_u24 v190, 16, v176")
        a("s_lshl_b32 s7, s3, 2")
        a("v_add_u32 v191, s7, v190")

    def r_unpack():
        vm.wait("rx")
        for k in range(8, 10):
            a("v_and_b32 v%d, v%d, v188" % (XP + k, XP + k))
            a("v_and_b32 v%d, v%d, v188" % (XP + 10 + k, XP + 10 + k))
        for k in range(10):
            unpack(XQ + 2 * k, XP + k)
            unpack(BQ + 2 * k, XP + 10 + k)

    kpf = [wload1(i, t, "s%d" % (60 + i // 3)) for i in range(PF) for t in range(4)]
    n1, n2, n3 = E("PFA", 0), E("PFB", 16), E("PFC", 12)
    hop("st", pre_a=[r_setup] + kpf[:n1], pre_b=[r_unpack] + kpf[n1:n1 + n2])
    kpf = kpf[n1 + n2:]
    stamp(10)
    order = [(k, st, hf) for k in range(5) for st in range(2) for hf in range(2) if not (k == 4 and st == 1)]
    for n, (k, st, hf) in enumerate(order):
        vm.op("buffer_load_dwordx4 %s, v179, s[40:43], s%d offen offset:%d%s" % (q4(PR + 4 * n), 48 + hf + (2 if k == 4 else 0), ((4 * k + 2 * st) * 256) % 4096, LD), ("p", n))
    for f in kpf[:n3]:
        f()
    kpf = kpf[n3:]
    for n, (k, st, hf) in enumerate(order):
        vm.wait(("p", n))
        a("%s %s, %s, %s, %s" % (MF, q4(DT + 4 * k), q4(SEL + 4 * st), q4(PR + 4 * n), q4(BQ + 4 * k) if (st == 0 and hf == 0) else q4(DT + 4 * k)))
    TK = 192
    for k in range(10):
        cvt(TK + k, DT + 2 * k, DT + 2 * k + 1)
    for k in range(10):
        unpack(DT + 2 * k, TK + k)
    for k in range(10):
        a("v_pk_add_f32 %s, %s, %s" % (q2(DT + 2 * k), q2(DT + 2 * k), q2(XQ + 2 * k)))
    for k in range(10):
        cvt(TK + k, DT + 2 * k, DT + 2 * k + 1)
    for k in range(10):
        unpack(DT + 2 * k, TK + k)
    for kk in range(3):
        a("v_permlane16_swap_b32 v%d, v%d" % (TK + 4 * kk, TK + 4 * kk + 2))
        a("v_permlane16_swap_b32 v%d, v%d" % (TK + 4 * kk + 1, TK + 4 * kk + 3))
    a("s_cmp_eq_u32 s45, 0")
    a("s_cbranch_scc1 R_mid")
    srd(36, 30, 0, ACT)
    a("s_lshl_b32 s6, s5, 3")
    a("s_add_u32 s6, s6, s4")
    a("s_mul_i32 s6, s6, %d" % (8 * 1152))
    a("s_add_u32 s6, s6, s56")
    for kk in range(3):
        a("buffer_store_dwordx4 %s, v%d, s[36:39], s6 offen offset:%d" % (q4(TK + 4 * kk), 185 if kk < 2 else 187, kk * 128))
    stamp(11)
    a("L_exit2:")
    a("s_endpgm")
    a("R_mid:")
    for kk in range(3):
        vm.op("buffer_store_dwordx4 %s, v%d, s[40:43], s54 offen offset:%d%s" % (q4(TK + 4 * kk), 183 if kk < 2 else 186, (kk % 2) * 2048, ST), "st")
    S0 = XQ

    def reduce4(s, ldsoff, out):
        xsum(s, s + 1, ror8=True)
        a("ds_write_b32 v191, v%d offset:%d" % (s, ldsoff))
        a("s_waitcnt lgkmcnt(0)")
        a("s_barrier")
        a("ds_read_b128 %s, v190 offset:%d" % (q4(S0 + 4), ldsoff))
        a("s_waitcnt lgkmcnt(0)")
        a("v_pk_add_f32 %s, %s, %s" % (q2(S0 + 4), q2(S0 + 4), q2(S0 + 6)))
        a("v_add_f32 v%d, v%d, v%d" % (S0 + 4, S0 + 4, S0 + 5))
        a("v_mul_f32 v%d, %s, v%d" % (out, f32bits(1.0 / 576.0), S0 + 4))

    a("v_pk_add_f32 %s, %s, %s" % (q2(S0), q2(DT), q2(DT + 2)))
    a("v_pk_add_f32 %s, %s, %s" % (q2(S0 + 2), q2(DT + 4), q2(DT + 6)))
    for k in range(4, 10, 2):
        a("v_pk_add_f32 %s, %s, %s" % (q2(S0), q2(S0), q2(DT + 2 * k)))
        a("v_pk_add_f32 %s, %s, %s" % (q2(S0 + 2), q2(S0 + 2), q2(DT + 2 * k + 2)))
    a("v_pk_add_f32 %s, %s, %s" % (q2(S0), q2(S0), q2(S0 + 2)))
    a("v_add_f32 v%d, v%d, v%d" % (S0, S0, S0 + 1))
    MEAN, VAR, M, SD = S0 + 8, S0 + 9, S0 + 10, S0 + 12
    reduce4(S0, 0, MEAN)
    a("v_sub_f32 v%d, 0, v%d" % (S0 + 14, MEAN))
    a("v_mov_b32 v%d, v%d" % (S0 + 15, S0 + 14))
    a("v_and_b32 v%d, v%d, v188" % (S0 + 16, S0 + 14))
    a("v_mov_b32 v%d, v%d" % (S0 + 17, S0 + 16))
    for k in range(10):
        a("v_pk_add_f32 %s, %s, %s" % (q2(BQ + 2 * k), q2(DT + 2 * k), q2(S0 + 14 if k < 8 else S0 + 16)))
    a("v_pk_mul_f32 %s, %s, %s" % (q2(S0), q2(BQ), q2(BQ)))
    a("v_pk_mul_f32 %s, %s, %s" % (q2(S0 + 2), q2(BQ + 2), q2(BQ + 2)))
    for k in range(2, 10):
        r = S0 + 2 * (k % 2)
        a("v_pk_fma_f32 %s, %s, %s, %s" % (q2(r), q2(BQ + 2 * k), q2(BQ + 2 * k), q2(r)))
    a("v_pk_add_f32 %s, %s, %s" % (q2(S0), q2(S0), q2(S0 + 2)))
    a("v_add_f32 v%d, v%d, v%d" % (S0, S0, S0 + 1))
    reduce4(S0, 256, VAR)
    ln_scalars(MEAN, VAR, M, SD)
    a("v_rcp_f32 v%d, v%d" % (SD, SD))
    a("v_sub_f32 v%d, 0, v%d" % (M, M))
    a("v_mov_b32 v%d, v%d" % (M + 1, M))
    a("v_mov_b32 v%d, v%d" % (SD + 1, SD))
    for k in range(10):
        a("v_pk_add_f32 %s, %s, %s" % (q2(DT + 2 * k), q2(DT + 2 * k), q2(M)))
    TY = 204
    for k in range(10):
        cvt(TY + k, DT + 2 * k, DT + 2 * k + 1)
    for k in range(10):
        unpack(DT + 2 * k, TY + k)
    for k in range(10):
        a("v_pk_mul_f32 %s, %s, %s" % (q2(DT + 2 * k), q2(DT + 2 * k), q2(SD)))
    for k in range(10):
        cvt(TY + k, DT + 2 * k, DT + 2 * k + 1)
    for kk in range(3):
        a("v_permlane16_swap_b32 v%d, v%d" % (TY + 4 * kk, TY + 4 * kk + 2))
        a("v_permlane16_swap_b32 v%d, v%d" % (TY + 4 * kk + 1, TY + 4 * kk + 3))
    for kk in range(3):
        vm.op("buffer_store_dwordx4 %s, v%d, s[40:43], s55 offen offset:%d%s" % (q4(TY + 4 * kk), 183 if kk < 2 else 186, (kk % 2) * 2048, ST), "st")
    stamp(11)

    def next_layer():
        a("s_add_u32 s44, s44, %s" % hex(LS))
        a("s_mov_b32 s45, 1")
        k1_setup(False)
        attn_consts()

    hop("st", pre_a=kpf[:10], pre_b=kpf[10:] + [next_layer], neighbor=True)
    if PROF:
        a("s_add_u32 s96, s96, 128")
    stamp(0)
    a("s_branch K1_second")
    a("L_code_end:")
    a("s_endpgm")


def descriptor(label, vgpr, accum, sgpr):
    return """.amdhsa_kernel %s
  .amdhsa_next_free_vgpr %d
  .amdhsa_next_free_sgpr %d
  .amdhsa_accum_offset %d
  .amdhsa_group_segment_fixed_size 0
  .amdhsa_kernarg_size 88
  .amdhsa_user_sgpr_count 2
  .amdhsa_user_sgpr_kernarg_segment_ptr 1
  .amdhsa_system_sgpr_workgroup_id_x 1
.end_amdhsa_kernel
""" % (label, vgpr, sgpr, accum)


def build():
    launches = [
        ("p_kernel", P_END, 576, 73728 + 2304, 72, 72, 64),
        ("main_kernel", 256, 256, MAIN_LDS, 512, 256, 102),
    ]
    p_kernel()
    main_kernel()
    for e in a.check_branch_seams():
        print("WARN", e, file=sys.stderr)
    head = "; generated by work/gen2.py (hand-written generator)\n"
    for l, g, b, lds, _, _, _ in launches:
        head += "; @launch kernel=%s grid=(%d,1,1) block=(%d,1,1) lds=%d\n" % (l, g, b, lds)
    head += '.amdgcn_target "amdgcn-amd-amdhsa--gfx950"\n.text\n'
    tail = '.section .rodata,"a"\n'
    for l, g, b, lds, v, ac, sg in launches:
        tail += ".p2align 6\n" + descriptor(l, v, ac, sg)
    return head + a.text() + tail


if __name__ == "__main__":
    out = sys.argv[1] if len(sys.argv) > 1 else "cdna_kernels/%s.s" % NAME
    open(out, "w").write(build())
    print("wrote", out)
```

```python
import sys, math, os
from asmlib import Asm, f32bits

NAME = "interleave_layers__sliding_local_dilated__mixer_channel_mlp__prompt"
ACT = 2048 * 576 * 2
TB = 73728
WOS = 82944
WQKVP = 0
WOP = WQKVP + 2304 * 1024
W1P = WOP + 672 * 1024
W2P = W1P + 5184 * 1024
AUG = W2P + 5184 * 1024
CNT = AUG + 72 * 1024
LB = CNT + 4096
oY, oO, oXA, oX1 = 0, ACT, 2 * ACT, 3 * ACT
oST = 4 * ACT
oPART = 4 * ACT + 128 * 1024
LS = oPART + 8 * ACT
WS_USED = LB + 2 * LS
WS_BYTES = 268435456
OOB = 0x80000000
ST = " sc1"
LD = " sc1"
STAMP = 200 * 1024 * 1024

E = lambda n, d: int(os.environ.get(n, str(d)))
PROF = os.environ.get("PROF", "")
MAPB = E("MAPB", 2)
MROT = E("MROT", 3)
AROT = E("AROT", 2)
APRE = E("APRE", 3)
PF = E("PF", 14)
K2PRE = E("K2PRE", 6)
TOUCH = E("TOUCH", 0)
NR = 32
SPIN = 1 << 16

KA_X, KA_WQKV, KA_WO, KA_BX, KA_W1, KA_B1, KA_W2, KA_B2, KA_OUT, KA_DBG, KA_WS = [8 * i for i in range(11)]
a = Asm()
MF = "v_mfma_f32_16x16x32_bf16"
q4 = lambda b, k="v": "%s[%d:%d]" % (k, b, b + 3)
q2 = lambda b: "v[%d:%d]" % (b, b + 1)


def srd(d, base, off, nbytes):
    if off == 0:
        a("s_mov_b32 s%d, s%d" % (d, base))
        a("s_mov_b32 s%d, s%d" % (d + 1, base + 1))
    else:
        a("s_add_u32 s%d, s%d, %s" % (d, base, off if isinstance(off, str) else hex(off)))
        a("s_addc_u32 s%d, s%d, 0" % (d + 1, base + 1))
    a("s_mov_b32 s%d, %s" % (d + 2, hex(nbytes)))
    a("s_mov_b32 s%d, 0x20000" % (d + 3))


def entry(label):
    a(".p2align 8")
    a(".globl %s" % label)
    a(".type %s,@function" % label)
    a("%s:" % label)


class VM:
    def __init__(self, cnt="vmcnt", maxn=63):
        self.ops, self.cnt, self.maxn, self.done = [], cnt, maxn, -1

    def op(self, text, tag):
        a(text)
        self.ops.append(tag)

    def wait(self, tag):
        last = max(i for i, t in enumerate(self.ops) if t == tag)
        if last <= self.done:
            return
        n = min(len(self.ops) - 1 - last, self.maxn)
        self.done = len(self.ops) - 1 - n
        a("s_waitcnt %s(%d)" % (self.cnt, n))

    def all(self):
        self.done = len(self.ops) - 1
        a("s_waitcnt %s(0)" % self.cnt)


def stamp(k):
    if PROF:
        a("s_memtime s[98:99]")
        a("s_memrealtime s[100:101]")
        a("s_waitcnt lgkmcnt(0)")
        a("v_mov_b32 v0, s98")
        a("buffer_store_dword v0, off, s[92:95], s96 offset:%d" % (4 * k))
        a("v_mov_b32 v0, s100")
        a("buffer_store_dword v0, off, s[92:95], s96 offset:%d" % (4 * k + 64))


def rstamp(k):
    if PROF:
        a("s_memrealtime s[98:99]")
        a("s_waitcnt lgkmcnt(0)")
        a("v_mov_b32 v0, s98")
        a("buffer_store_dword v0, off, s[92:95], s96 offset:%d" % (4 * k))


def unpack(dst, src):
    a("v_lshlrev_b32 v%d, 16, v%d" % (dst, src))
    a("v_and_b32 v%d, 0xffff0000, v%d" % (dst + 1, src))


def cvt(d, x, y):
    a("v_cvt_pk_bf16_f32 v%d, v%d, v%d" % (d, x, y))


def round1(r):
    cvt(r, r, r)
    a("v_and_b32 v%d, 0xffff0000, v%d" % (r, r))


def ln_scalars(mean, var, M, SD, emit=None):
    e = emit or a
    e("v_cvt_pk_bf16_f32 v%d, v%d, v%d" % (M, var, mean))
    e("v_lshlrev_b32 v%d, 16, v%d" % (SD, M))
    e("v_and_b32 v%d, 0xffff0000, v%d" % (M, M))
    e("v_add_f32 v%d, %s, v%d" % (SD, f32bits(1e-5), SD))
    e("v_cvt_pk_bf16_f32 v%d, v%d, v%d" % (SD, SD, SD))
    e("v_and_b32 v%d, 0xffff0000, v%d" % (SD, SD))
    e("v_sqrt_f32 v%d, v%d" % (SD, SD))
    e("v_cvt_pk_bf16_f32 v%d, v%d, v%d" % (SD, SD, SD))
    e("v_and_b32 v%d, 0xffff0000, v%d" % (SD, SD))


def xsum(r, t, rows16=True, rows32=True, ror8=False):
    if ror8:
        a("v_add_f32_dpp v%d, v%d, v%d row_ror:8 row_mask:0xf bank_mask:0xf" % (r, r, r))
    a("v_mov_b32 v%d, v%d" % (t, r))
    a("v_permlane16_swap_b32 v%d, v%d" % (r, t))
    a("v_add_f32 v%d, v%d, v%d" % (r, r, t))
    a("v_mov_b32 v%d, v%d" % (t, r))
    a("v_permlane32_swap_b32 v%d, v%d" % (r, t))
    a("v_add_f32 v%d, v%d, v%d" % (r, r, t))


def mod_small(dst, src, n):
    if n == 1:
        a("s_mov_b32 %s, 0" % dst)
        return
    m = -(-4096 // n)
    assert all((t * m) >> 12 == t // n for t in range(32))
    a("s_mul_i32 %s, %s, %d" % (dst, src, m))
    a("s_lshr_b32 %s, %s, 12" % (dst, dst))
    a("s_mul_i32 %s, %s, %d" % (dst, dst, n))
    a("s_sub_u32 %s, %s, %s" % (dst, src, dst))


P_QKV, P_LN, P_W1, P_W2, P_MISC, P_END = 0, 72, 328, 400, 472, 473


def p_kernel():
    entry("p_kernel")
    a("s_cmp_ge_u32 s2, %d" % P_END)
    a("s_cbranch_scc1 L_exit")
    if PROF:
        a("s_memrealtime s[56:57]")
    a("s_load_dwordx16 s[4:19], s[0:1], 0")
    a("s_load_dwordx2 s[24:25], s[0:1], %d" % KA_WS)
    a("v_lshrrev_b32 v1, 6, v0")
    a("v_readfirstlane_b32 s3, v1")
    a("v_and_b32 v1, 63, v0")
    a("v_lshlrev_b32 v2, 4, v1")
    a("v_lshrrev_b32 v3, 4, v1")
    a("v_and_b32 v4, 15, v1")
    a("v_lshlrev_b32 v5, 4, v0")
    a("s_waitcnt lgkmcnt(0)")
    srd(40, 24, 0, WS_USED)
    a("s_cmp_ge_u32 s2, %d" % P_W1)
    a("s_cbranch_scc1 P_w12")
    a("s_cmp_ge_u32 s2, %d" % P_LN)
    a("s_cbranch_scc1 P_ln")
    srd(36, 6, 0, 576 * 1728 * 2)
    a("s_mul_i32 s20, s2, %d" % (8 * 3456))
    a("s_lshl_b32 s21, s3, 10")
    for n in range(3):
        a("s_add_u32 m0, s21, %d" % (n * 9216))
        a("s_add_u32 s22, s20, %d" % (n * 9216))
        a("buffer_load_dwordx4 v5, s[36:39], s22 offen lds")
    srd(32, 8, 0, 576 * 576 * 2)
    a("s_mov_b32 s20, s2")
    a("s_lshr_b32 s21, s20, 2")
    a("s_and_b32 s22, s20, 3")
    a("v_mul_u32_u24 v6, 911, v0")
    a("v_lshrrev_b32 v6, 16, v6")
    a("v_mul_u32_u24 v7, 72, v6")
    a("v_sub_u32 v7, v0, v7")
    a("s_cmp_ge_u32 s21, 16")
    a("s_cbranch_scc1 P_wo_tail")
    a("s_mul_i32 s23, s21, 36")
    a("s_lshl_b32 s26, s22, 2")
    a("s_add_u32 s23, s23, s26")
    a("v_lshrrev_b32 v8, 2, v6")
    a("v_and_b32 v9, 3, v6")
    a("s_branch P_wo_go")
    a("P_wo_tail:")
    a("s_sub_u32 s23, s20, 64")
    a("s_mul_i32 s23, s23, 72")
    a("s_add_u32 s23, s23, 16")
    a("v_lshrrev_b32 v8, 1, v6")
    a("v_and_b32 v9, 1, v6")
    a("P_wo_go:")
    a("v_mul_u32_u24 v8, 18, v8")
    a("v_add_u32 v8, v8, v9")
    a("v_mul_u32_u24 v8, 1152, v8")
    a("v_lshl_add_u32 v8, v7, 4, v8")
    a("s_mul_i32 s23, s23, 1152")
    a("s_lshl_b32 s26, s3, 10")
    a("s_add_u32 m0, s26, 27648")
    a("buffer_load_dwordx4 v8, s[32:35], s23 offen lds")
    a("s_mul_i32 s27, s21, 4608")
    a("s_add_u32 s27, s27, %s" % hex(WOP))
    a("v_lshrrev_b32 v8, 4, v7")
    a("v_lshlrev_b32 v8, 10, v8")
    a("v_and_b32 v9, 15, v7")
    a("v_lshl_add_u32 v8, v9, 4, v8")
    a("s_lshl_b32 s26, s22, 7")
    a("v_mov_b32 v10, s26")
    a("v_lshlrev_b32 v11, 1, v10")
    a("v_cmp_gt_u32 vcc, 64, v7")
    a("v_cndmask_b32 v10, v10, v11, vcc")
    a("v_add_u32 v8, v8, v10")
    a("s_mov_b32 s26, %d" % WOS)
    a("v_mad_u32_u24 v3, v6, s26, v8")
    a("v_lshlrev_b32 v4, 1, v0")
    a("s_lshr_b32 s22, s2, 2")
    a("s_lshl_b32 s22, s22, 12")
    a("s_and_b32 s23, s2, 3")
    a("s_lshl_b32 s23, s23, 8")
    a("s_add_u32 s22, s22, s23")
    a("v_mov_b32 v15, %s" % hex(OOB))
    for n in range(4):
        u, src, dst = 6, 48 + n, 52 + n
        a("v_add_u32 v6, %d, v0" % (n * 576))
        a("v_lshrrev_b32 v7, 6, v6")
        a("v_bfe_u32 v8, v6, 4, 2")
        a("v_and_b32 v9, 15, v6")
        a("v_mul_u32_u24 v10, 36, v7")
        a("v_mul_u32_u24 v11, 1152, v8")
        a("v_lshl_add_u32 v11, v9, 1, v11")
        a("v_lshrrev_b32 v12, 1, v9")
        a("v_mul_u32_u24 v12, 1152, v12")
        a("v_and_b32 v13, 1, v9")
        a("v_lshl_add_u32 v12, v13, 1, v12")
        a("v_add_u32 v12, 32, v12")
        a("v_cmp_eq_u32 vcc, 3, v8")
        a("v_cndmask_b32 v11, v11, v12, vcc")
        a("v_cmp_lt_u32 s[44:45], 5, v9")
        a("s_and_b64 s[%d:%d], vcc, s[44:45]" % (46 + 2 * n, 47 + 2 * n))
        a("v_cndmask_b32 v11, v11, 0, s[%d:%d]" % (46 + 2 * n, 47 + 2 * n))
        a("v_add_u32 v%d, v10, v11" % src)
        a("v_mul_u32_u24 v7, 73728, v7")
        a("v_lshl_add_u32 v7, v8, 10, v7")
        a("v_lshl_add_u32 v%d, v9, 4, v7" % dst)
        if n == 3:
            a("v_cmp_gt_u32 vcc, 2048, v6")
            a("v_cndmask_b32 v%d, v15, v%d, vcc" % (dst, dst))
            a("v_cndmask_b32 v%d, 0, v%d, vcc" % (src, src))
    a("s_waitcnt vmcnt(0)")
    a("s_barrier")
    for n in range(4):
        for j in range(8):
            a("ds_read_u16 v%d, v%d offset:%d" % (16 + n * 8 + j, 48 + n, j * 3456))
        if n % 2 == 1:
            a("s_waitcnt lgkmcnt(0)")
            for m in (n - 1, n):
                for k in range(4):
                    a("v_lshl_or_b32 v%d, v%d, 16, v%d" % (56 + m * 4 + k, 16 + m * 8 + 2 * k + 1, 16 + m * 8 + 2 * k))
                    a("v_cndmask_b32 v%d, v%d, 0, s[%d:%d]" % (56 + m * 4 + k, 56 + m * 4 + k, 46 + 2 * m, 47 + 2 * m))
                a("buffer_store_dwordx4 %s, v%d, s[40:43], s22 offen%s" % (q4(56 + m * 4), 52 + m, ST))
    for j in range(8):
        a("ds_read_u16 v%d, v4 offset:%d" % (16 + j, 27648 + j * 1152))
    a("s_waitcnt lgkmcnt(0)")
    for k in range(4):
        a("v_lshl_or_b32 v%d, v%d, 16, v%d" % (24 + k, 16 + 2 * k + 1, 16 + 2 * k))
    a("buffer_store_dwordx4 v[24:27], v3, s[40:43], s27 offen%s" % ST)
    a("s_branch P_end" if PROF else "s_endpgm")

    a("P_ln:")
    srd(36, 4, 0, ACT)
    a("s_sub_u32 s20, s2, %d" % P_LN)
    a("v_lshrrev_b32 v1, 3, v0")
    a("v_and_b32 v7, 7, v0")
    a("v_lshlrev_b32 v8, 4, v1")
    a("v_mul_u32_u24 v9, 1152, v7")
    a("v_add_u32 v9, v9, v8")
    a("s_mul_i32 s21, s20, %d" % (8 * 1152))
    a("buffer_load_dwordx4 v[16:19], v9, s[36:39], s21 offen")
    a("v_lshlrev_b32 v3, 8, v1")
    a("v_lshl_add_u32 v3, v7, 4, v3")
    a("s_lshr_b32 s22, s20, 1")
    a("s_mul_i32 s22, s22, 18432")
    a("s_and_b32 s23, s20, 1")
    a("s_lshl_b32 s23, s23, 7")
    a("s_add_u32 s22, s22, s23")
    a("s_add_u32 s23, s22, %s" % hex(LB + oXA))
    a("s_add_u32 s22, s22, %s" % hex(LB + oY))
    a("v_mul_u32_u24 v11, 48, v7")
    a("v_lshrrev_b32 v12, 6, v0")
    a("v_lshl_add_u32 v12, v12, 2, v11")
    AC, T, P = 24, 32, 48
    a("s_waitcnt vmcnt(0)")
    a("buffer_store_dwordx4 v[16:19], v3, s[40:43], s23 offen%s" % ST)
    for k in range(4):
        unpack(AC + 2 * k, 16 + k)

    def reduce9(s, ldsoff, out):
        xsum(s, s + 1, ror8=True)
        a("ds_write_b32 v12, v%d offset:%d" % (s, ldsoff))
        a("s_waitcnt lgkmcnt(0)")
        a("s_barrier")
        a("ds_read_b128 %s, v11 offset:%d" % (q4(P), ldsoff))
        a("ds_read_b128 %s, v11 offset:%d" % (q4(P + 4), ldsoff + 16))
        a("ds_read_b32 v%d, v11 offset:%d" % (P + 8, ldsoff + 32))
        a("s_waitcnt lgkmcnt(0)")
        a("v_pk_add_f32 %s, %s, %s" % (q2(P), q2(P), q2(P + 2)))
        a("v_pk_add_f32 %s, %s, %s" % (q2(P + 4), q2(P + 4), q2(P + 6)))
        a("v_pk_add_f32 %s, %s, %s" % (q2(P), q2(P), q2(P + 4)))
        a("v_add_f32 v%d, v%d, v%d" % (P, P, P + 1))
        a("v_add_f32 v%d, v%d, v%d" % (P, P, P + 8))
        a("v_mul_f32 v%d, %s, v%d" % (out, f32bits(1.0 / 576.0), P))

    S, MEAN, VAR, M, SD = 40, 42, 43, 44, 45
    a("v_pk_add_f32 %s, %s, %s" % (q2(T), q2(AC), q2(AC + 2)))
    a("v_pk_add_f32 %s, %s, %s" % (q2(T + 2), q2(AC + 4), q2(AC + 6)))
    a("v_pk_add_f32 %s, %s, %s" % (q2(T), q2(T), q2(T + 2)))
    a("v_add_f32 v%d, v%d, v%d" % (S, T, T + 1))
    reduce9(S, 0, MEAN)
    for k in range(8):
        a("v_sub_f32 v%d, v%d, v%d" % (T + k, AC + k, MEAN))
    a("v_mul_f32 v%d, v%d, v%d" % (S, T, T))
    for k in range(1, 8):
        a("v_fmac_f32 v%d, v%d, v%d" % (S, T + k, T + k))
    reduce9(S, 512, VAR)
    ln_scalars(MEAN, VAR, M, SD)
    a("v_rcp_f32 v%d, v%d" % (SD, SD))
    for k in range(8):
        a("v_sub_f32 v%d, v%d, v%d" % (AC + k, AC + k, M))
    for k in range(4):
        cvt(T + k, AC + 2 * k, AC + 2 * k + 1)
    for k in range(4):
        unpack(AC + 2 * k, T + k)
    for k in range(8):
        a("v_mul_f32 v%d, v%d, v%d" % (AC + k, AC + k, SD))
    for k in range(4):
        cvt(T + k, AC + 2 * k, AC + 2 * k + 1)
    a("buffer_store_dwordx4 %s, v3, s[40:43], s22 offen%s" % (q4(T), ST))
    a("s_branch P_end" if PROF else "s_endpgm")

    a("P_w12:")
    a("s_cmp_ge_u32 s2, %d" % P_MISC)
    a("s_cbranch_scc1 P_misc")
    a("v_lshrrev_b32 v5, 3, v1")
    a("v_and_b32 v6, 7, v1")
    a("v_lshlrev_b32 v6, 4, v6")
    a("v_bfe_u32 v7, v1, 2, 2")
    a("v_and_b32 v8, 3, v1")
    a("s_lshl_b32 s21, s3, 13")
    a("s_cmp_ge_u32 s2, %d" % P_W2)
    a("s_cbranch_scc1 P_w2")

    def w12(stride, second):
        for n in range(8):
            a("s_add_u32 m0, s21, %d" % (n * 1024))
            a("buffer_load_dwordx4 v9, s[36:39], s22 offen lds")
            if n < 7:
                a("s_add_u32 s22, s22, %d" % (8 * stride))
        for ks in range(2):
            a("s_waitcnt vmcnt(4)")
            for tl in range(4):
                b = 16 + (ks * 4 + tl) * 4
                o = ks * 4096 + tl * 32
                a("ds_read_b64_tr_b16 %s, v10 offset:%d" % (q2(b), o))
                a("ds_read_b64_tr_b16 %s, v10 offset:%d" % (q2(b + 2), o + second))
            for tl in range(4):
                b = 16 + (ks * 4 + tl) * 4
                a("s_waitcnt lgkmcnt(%d)" % (6 - 2 * tl))
                a("s_add_u32 s26, s23, %d" % (tl * 18432 + ks * 1024))
                a("buffer_store_dwordx4 %s, v2, s[40:43], s26 offen%s" % (q4(b), ST))

    srd(36, 12, 0, 576 * 4608 * 2)
    a("s_sub_u32 s20, s2, %d" % P_W1)
    a("s_mul_i32 s22, s3, %d" % (64 * 9216))
    a("s_lshl_b32 s23, s20, 7")
    a("s_add_u32 s22, s22, s23")
    a("v_mul_u32_u24 v9, 9216, v5")
    a("v_add_u32 v9, v9, v6")
    a("v_lshl_add_u32 v10, v3, 3, v7")
    a("v_lshlrev_b32 v10, 7, v10")
    a("v_lshl_add_u32 v10, v8, 3, v10")
    a("v_add_u32 v10, s21, v10")
    a("s_mul_i32 s23, s20, %d" % (4 * 18432))
    a("s_lshl_b32 s26, s3, 11")
    a("s_add_u32 s23, s23, s26")
    a("s_add_u32 s23, s23, %s" % hex(W1P))
    for k in range(4):
        a("v_mov_b32 v%d, 0x3f803f80" % (12 + k))
    w12(9216, 512)
    for tl in range(4):
        a("%s %s, %s, v[12:15], 0" % (MF, q4(48 + tl * 4), q4(16 + tl * 4)))
    for tl in range(4):
        a("%s %s, %s, v[12:15], %s" % (MF, q4(48 + tl * 4), q4(32 + tl * 4), q4(48 + tl * 4)))
    a("s_lshl_b32 s26, s3, 8")
    a("s_add_u32 s26, s26, 73728")
    a("v_lshlrev_b32 v11, 4, v3")
    a("v_add_u32 v11, s26, v11")
    srd(36, 14, 0, 4608 * 2)
    a("s_lshl_b32 s27, s20, 7")
    a("v_lshlrev_b32 v5, 1, v1")
    a("buffer_load_ushort v64, v5, s[36:39], s27 offen")
    for tl in range(4):
        a("ds_write_b128 v11, %s offset:%d" % (q4(48 + tl * 4), tl * 64))
    a("s_waitcnt lgkmcnt(0)")
    a("s_barrier")
    a("s_cmp_lg_u32 s3, 0")
    a("s_cbranch_scc1 P_end")
    a("v_lshlrev_b32 v11, 2, v1")
    a("v_add_u32 v11, 73728, v11")
    for w in range(9):
        a("ds_read_b32 v%d, v11 offset:%d" % (48 + w, w * 256))
    a("s_waitcnt lgkmcnt(0)")
    for w in range(1, 9):
        a("v_add_f32 v48, v48, v%d" % (48 + w))
    a("v_sub_f32 v48, 0, v48")
    cvt(60, 48, 48)
    a("v_and_b32 v49, 0xffff0000, v60")
    a("v_sub_f32 v49, v48, v49")
    cvt(49, 49, 49)
    a("v_and_b32 v49, 0xffff, v49")
    a("s_waitcnt vmcnt(0)")
    a("v_lshl_or_b32 v61, v64, 16, v49")
    a("v_mov_b32 v62, v64")
    a("v_mov_b32 v63, 0")
    a("s_lshl_b32 s27, s20, 10")
    a("s_add_u32 s27, s27, %s" % hex(AUG))
    a("buffer_store_dwordx4 v[60:63], v2, s[40:43], s27 offen%s" % ST)
    a("s_branch P_end" if PROF else "s_endpgm")

    a("P_w2:")
    srd(36, 16, 0, 576 * 4608 * 2)
    a("s_sub_u32 s20, s2, %d" % P_W2)
    a("s_mul_i32 s22, s20, %d" % (64 * 1152))
    a("s_lshl_b32 s23, s3, 7")
    a("s_add_u32 s22, s22, s23")
    a("v_mul_u32_u24 v9, 1152, v5")
    a("v_add_u32 v9, v9, v6")
    a("v_lshl_add_u32 v10, v3, 2, v7")
    a("v_lshlrev_b32 v10, 7, v10")
    a("v_lshl_add_u32 v10, v8, 3, v10")
    a("v_add_u32 v10, s21, v10")
    a("s_mul_i32 s26, s20, 57")
    a("s_lshr_b32 s26, s26, 9")
    a("s_mul_i32 s27, s26, 9")
    a("s_sub_u32 s27, s20, s27")
    a("s_mul_i32 s23, s26, %d" % (36 * 18432))
    a("s_mul_i32 s26, s3, %d" % (4 * 18432))
    a("s_add_u32 s23, s23, s26")
    a("s_lshl_b32 s27, s27, 11")
    a("s_add_u32 s23, s23, s27")
    a("s_add_u32 s23, s23, %s" % hex(W2P))
    w12(1152, 2048)
    a("s_branch P_end" if PROF else "s_endpgm")

    a("P_misc:")
    for k in range(4):
        a("v_mov_b32 v%d, 0" % (16 + k))
    a("v_lshlrev_b32 v5, 4, v0")
    srd(36, 24, CNT, 4096)
    a("buffer_store_dwordx4 v[16:19], v5, s[36:39], 0 offen%s" % ST)
    a("s_getpc_b64 s[20:21]")
    a("P_pc:")
    a("s_add_u32 s36, s20, main_kernel-P_pc")
    a("s_addc_u32 s37, s21, 0")
    a("s_mov_b32 s38, L_code_end-main_kernel")
    a("s_mov_b32 s39, 0x20000")
    a("s_mov_b32 s22, 0")
    for k in range(7):
        a("buffer_load_dwordx4 %s, v5, s[36:39], s22 offen" % q4(20 + 4 * k))
        a("s_add_u32 s22, s22, 9216")
    a("s_waitcnt vmcnt(0)")
    a("P_end:")
    if PROF:
        a("s_waitcnt vmcnt(0)")
        a("s_memrealtime s[58:59]")
        srd(36, 24, STAMP + (1 << 19), 1 << 19)
        a("s_lshl_b32 s60, s2, 4")
        a("s_add_u32 s60, s60, s3")
        a("s_lshl_b32 s60, s60, 3")
        a("s_waitcnt lgkmcnt(0)")
        a("v_mov_b32 v0, s56")
        a("v_mov_b32 v1, s58")
        a("buffer_store_dwordx2 v[0:1], off, s[36:39], s60")
    a("L_exit:")
    a("s_endpgm")


L_SCR, L_OX, L_Y, L_WA, L_WB = 0, 8192, 20480, 112640, 20480
MAIN_LDS = 163840
uid = [0]


def main_kernel():
    entry("main_kernel")
    a("s_cmp_ge_u32 s2, 256")
    a("s_cbranch_scc1 L_exit2")
    a("s_load_dwordx2 s[24:25], s[0:1], %d" % KA_WS)
    a("s_load_dwordx4 s[28:31], s[0:1], %d" % KA_B2)
    vm = VM()
    lg = VM("lgkmcnt", 15)
    a("v_lshrrev_b32 v1, 6, v0")
    a("v_readfirstlane_b32 s3, v1")
    a("v_and_b32 v1, 63, v0")
    a("v_lshlrev_b32 v2, 4, v1")
    a("v_lshrrev_b32 v3, 4, v1")
    a("v_and_b32 v4, 15, v1")
    b = MAPB
    spx = 8 // b
    tpx = 32 // spx
    lb = {1: 0, 2: 1, 4: 2, 8: 3}
    a("s_and_b32 s6, s2, 7")
    a("s_lshr_b32 s7, s2, 3")
    a("s_and_b32 s4, s6, %d" % (b - 1))
    a("s_lshl_b32 s4, s4, %d" % lb[spx])
    a("s_and_b32 s8, s7, %d" % (spx - 1))
    a("s_add_u32 s4, s4, s8")
    a("s_lshr_b32 s5, s6, %d" % lb[b])
    a("s_mul_i32 s5, s5, %d" % tpx)
    a("s_lshr_b32 s8, s7, %d" % lb[spx])
    a("s_add_u32 s5, s5, s8")
    a("s_mov_b32 s44, %s" % hex(LB))
    a("s_mov_b32 s45, 0")
    a("s_mov_b32 s46, 8")
    a("s_mul_i32 s47, s5, %d" % TB)

    KY, KW = 48, 54

    def k1_setup(rot):
        if rot:
            mod_small("s6", "s5", AROT)
            a("s_mul_i32 s6, s6, %d" % (6 // AROT))
        else:
            a("s_mov_b32 s6, 0")
        for G in range(6):
            a("s_mul_i32 s%d, s6, 3072" % (KY + G))
            a("s_add_u32 s%d, s%d, s44" % (KY + G, KY + G))
            a("s_mul_i32 s%d, s6, 12288" % (KW + G))
            if G < 5:
                a("s_add_u32 s6, s6, 1")
                a("s_cmp_eq_u32 s6, 6")
                a("s_cselect_b32 s6, 0, s6")
        a("s_mul_i32 s8, s3, 18432")
        a("s_add_u32 s8, s8, s47")
        a("v_add_u32 v7, s8, v2")
        a("s_min_u32 s9, s3, 2")
        a("s_lshl_b32 s11, s9, 10")
        a("s_add_u32 s8, s47, s11")
        a("s_sub_u32 s8, s8, 18432")
        a("s_cmp_eq_u32 s5, 0")
        a("s_cselect_b32 s8, %s, s8" % hex(OOB))
        a("v_add_u32 v8, s8, v2")
        a("s_add_u32 s11, s11, %d" % L_Y)
        a("s_mul_i32 s10, s3, 18432")
        a("s_add_u32 s10, s10, %d" % (L_Y + 18432))
        a("v_add_u32 v5, %d, v2" % L_Y)
        a("v_add_u32 v6, %d, v2" % (L_Y + 46080))

    def kw_voffs():
        a("s_lshl_b32 s12, s4, 2")
        a("s_add_u32 s12, s12, s3")
        a("s_mul_i32 s12, s12, 73728")
        a("v_add_u32 v9, s12, v2")
        a("v_add_u32 v10, 4096, v9")
        a("v_add_u32 v11, 8192, v9")

    k1_setup(True)
    kw_voffs()
    a("s_waitcnt lgkmcnt(0)")
    srd(40, 24, 0, WS_USED)
    a("s_lshl_b32 s6, s5, 7")
    a("s_add_u32 s6, s6, %s" % hex(CNT))
    a("s_add_u32 s20, s24, s6")
    a("s_addc_u32 s21, s25, 0")
    a("s_max_u32 s7, s5, 1")
    a("s_lshl_b32 s7, s7, 7")
    a("s_add_u32 s7, s7, %s" % hex(CNT - 128))
    a("s_add_u32 s22, s24, s7")
    a("s_addc_u32 s23, s25, 0")
    if PROF:
        srd(92, 24, STAMP, 1 << 20)
        a("s_lshl_b32 s96, s2, 2")
        a("s_add_u32 s96, s96, s3")
        a("s_lshl_b32 s96, s96, 8")
    rstamp(12)
    stamp(0)

    def hop(tag, pre_a=(), pre_b=(), neighbor=False):
        uid[0] += 1
        u = uid[0]
        for f in pre_a:
            f()
        vm.wait(tag)
        lg.all()
        a("s_barrier")
        a("s_cmp_lg_u32 s3, 0")
        a("s_cbranch_scc1 H%d_a" % u)
        a("s_mov_b32 s16, 1")
        a("s_atomic_add s16, s[20:21], 0x0 glc")
        if neighbor:
            a("s_mov_b32 s17, 0")
            a("s_atomic_add s17, s[22:23], 0x0 glc")
        a("H%d_a:" % u)
        for f in pre_b:
            f()
        a("s_cmp_lg_u32 s3, 0")
        a("s_cbranch_scc1 H%d_b" % u)
        a("s_mov_b32 s18, %d" % SPIN)
        a("s_waitcnt lgkmcnt(0)")
        a("s_add_u32 s16, s16, 1")
        a("H%d_l:" % u)
        if neighbor:
            a("s_min_u32 s16, s16, s17")
        a("s_cmp_ge_u32 s16, s46")
        a("s_cbranch_scc1 H%d_b" % u)
        a("s_sub_u32 s18, s18, 1")
        a("s_cbranch_scc1 H%d_b" % u)
        a("s_mov_b32 s16, 0")
        a("s_atomic_add s16, s[20:21], 0x0 glc")
        if neighbor:
            a("s_mov_b32 s17, 0")
            a("s_atomic_add s17, s[22:23], 0x0 glc")
        a("s_waitcnt lgkmcnt(0)")
        a("s_branch H%d_l" % u)
        a("H%d_b:" % u)
        lg.all()
        a("s_add_u32 s46, s46, 8")
        a("s_barrier")

    QA, KA, VA, CA, YF = 16, 32, 52, 72, 92
    MSK, SM = 132, 136

    def wslot(i, t):
        return ((i % 16) * 4 + t) * 4

    def wload1(i, t, sreg=None):
        def f():
            s = sreg or "s%d" % (KW + i // 3)
            vm.op("buffer_load_dwordx4 %s, v%d, s[40:43], %s offen offset:%d" % (q4(wslot(i, t), "a"), 9 + i % 3, s, t * 1024), ("w", i))
        return f

    def ydma1(G, k):
        def f():
            if k < 3:
                a("s_add_u32 m0, s10, %d" % (G * 3072))
                vm.op("buffer_load_dwordx4 v7, s[40:43], s%d offen offset:%d%s lds" % (KY + G, k * 1024, LD), ("y", G))
            else:
                a("s_add_u32 m0, s11, %d" % (G * 3072))
                vm.op("buffer_load_dwordx4 v8, s[40:43], s%d offen%s lds" % (KY + G, LD), ("y", G))
        return f

    def yread1(i, T):
        def f():
            off = (T * 18 + i) * 1024
            base = 5
            if off >= 46080:
                off -= 46080
                base = 6
            a("ds_read_b128 %s, v%d offset:%d" % (q4(YF + (i % 2) * 20 + T * 4), base, off))
        return f

    def wodma(region, n):
        def f():
            a("s_add_u32 m0, s%d, %d" % ((13, 14)[region], (n // 4) * 4096))
            a("s_add_u32 s15, s%d, %d" % ((60, 61)[region], (n // 4) * 4096))
            vm.op("buffer_load_dwordx4 v2, s[40:43], s15 offen offset:%d lds" % ((n % 4) * 1024), "wo")
        return f

    def attn_consts():
        a("v_and_b32 v13, 1, v4")
        a("v_cmp_eq_u32 s[70:71], 1, v13")
        a("v_lshl_add_u32 v14, v3, 2, v13")
        a("v_cmp_ge_u32 s[72:73], v4, v14")
        a("v_add_u32 v14, 2, v14")
        a("v_cmp_ge_u32 s[74:75], v4, v14")
        a("v_mov_b32 v13, 0xffff")
        a("v_mov_b32 v14, 0xffff0000")
        a("v_cndmask_b32 v13, v13, v14, s[70:71]")
        a("v_cndmask_b32 v%d, v13, 0, s[72:73]" % (MSK + 0))
        a("v_cndmask_b32 v%d, v13, 0, s[74:75]" % (MSK + 1))
        a("v_cndmask_b32 v%d, 0, v13, s[72:73]" % (MSK + 2))
        a("v_cndmask_b32 v%d, 0, v13, s[74:75]" % (MSK + 3))
        a("s_cmp_eq_u32 s5, 0")
        a("s_cselect_b32 s14, %s, 0" % f32bits(-1e9 * math.sqrt(18.0)))
        for k in range(4):
            a("v_mov_b32 v%d, s14" % (SM + k))
        a("s_lshl_b32 s14, s3, 11")
        a("v_lshlrev_b32 v141, 9, v3")
        a("v_lshl_add_u32 v141, v4, 1, v141")
        a("v_add_u32 v141, s14, v141")
        a("v_and_b32 v142, 1, v4")
        a("v_mul_u32_u24 v142, 160, v142")
        a("v_lshl_add_u32 v142, v3, 3, v142")
        a("s_add_u32 s14, s14, 512")
        a("v_add_u32 v142, s14, v142")
        a("s_lshr_b32 s14, s3, 1")
        a("s_lshl_b32 s14, s14, 10")
        a("s_and_b32 s15, s3, 1")
        a("s_lshl_b32 s15, s15, 3")
        a("s_add_u32 s14, s14, s15")
        a("s_add_u32 s14, s14, %d" % L_OX)
        a("v_add_u32 v143, s14, v2")
        a("s_lshl_b32 s14, s3, 2")
        a("s_add_u32 s14, s14, %d" % (L_OX + 2048))
        a("v_add_u32 v144, s14, v2")
        a("s_mul_i32 s14, s3, 3072")
        a("s_add_u32 s14, s14, %d" % L_OX)
        a("v_add_u32 v145, s14, v2")
        a("s_mul_i32 s60, s4, %d" % WOS)
        a("s_add_u32 s60, s60, %s" % hex(WOP))
        a("s_mul_i32 s14, s3, 9216")
        a("s_add_u32 s61, s60, s14")
        a("s_add_u32 s61, s61, 46080")
        a("s_add_u32 s14, s14, %d" % L_WB)
        a("s_mul_i32 s13, s3, 12288")
        a("s_add_u32 s60, s60, s13")
        a("s_add_u32 s13, s13, %d" % L_WA)

    def qkv(pre):
        if not pre:
            for k in range(4):
                ydma1(0, k)()
            for t in range(4):
                wload1(0, t)()
            for k in range(4):
                ydma1(1, k)()
            for i in range(1, APRE):
                for t in range(4):
                    wload1(i, t)()
            if TOUCH:
                a("v_lshlrev_b32 v249, %d, v1" % TOUCH)
                a("buffer_load_dword v250, v249, s[40:43], 0 offen sc1")
                srd(36, 30, 0, ACT)
                a("buffer_load_dword v251, v249, s[36:39], 0 offen sc1")
                vm.ops += ["t", "t"]
            attn_consts()
            ahead_y = 2
        else:
            for i in range(pre):
                vm.ops.append(("w", i))
            for G in range(3):
                for k in range(4):
                    ydma1(G, k)()
            ahead_y = 3
        vm.wait(("y", 0))
        a("s_barrier")
        for T in range(5):
            yread1(0, T)()
        wo_list = [wodma(0, n) for n in range(12)]
        for i in range(18):
            if i + 1 < 18 and (i + 1) % 3 == 0:
                vm.wait(("y", (i + 1) // 3))
                a("s_barrier")
            a("s_waitcnt lgkmcnt(0)")
            vm.wait(("w", i))
            mem = []
            if i // 3 + ahead_y < 6:
                mem += [ydma1(i // 3 + ahead_y, k) for k in ((0, 3), (1,), (2,))[i % 3]]
            nxt = i + APRE
            if pre:
                nxt = pre + i - 1 if i >= 1 else None
                if nxt is not None and nxt - 16 >= i:
                    nxt = None
            if nxt is not None and nxt < 18:
                mem += [wload1(nxt, t) for t in range(4)]
            elif i >= (6 if pre else 0):
                take = 2 if pre else 4
                mem += wo_list[:take]
                wo_list = wo_list[take:]
            rds = [yread1(i + 1, T) for T in range(5)] if i + 1 < 18 else []
            slots = {}
            for k, f in enumerate(mem):
                slots.setdefault(1 + (k * 18) // len(mem), []).append(f)
            for k, f in enumerate(rds):
                slots.setdefault(2 * k, []).append(f)
            m = 0
            for T in range(5):
                y = q4(YF + (i % 2) * 20 + T * 4)
                for t, base in ((1, KA), (2, VA), (3, CA), (0, QA)):
                    if t == 0 and T == 0:
                        continue
                    d = base + (T - 1 if t == 0 else T) * 4
                    w = q4(wslot(i, t), "a")
                    c = "0" if i == 0 else q4(d)
                    A_, B_ = (y, w) if t == 2 else (w, y)
                    a("%s %s, %s, %s, %s" % (MF, q4(d), A_, B_, c))
                    for f in slots.get(m, []):
                        f()
                    m += 1
        assert not wo_list, len(wo_list)

    qkv(0)
    a("s_branch K1_attn")
    a("K1_second:")
    vm.done = -1
    vm.ops = []
    qkv(PF)
    a("K1_attn:")
    vm.ops = []
    vm.done = -1
    stamp(1)
    a("s_barrier")
    side = [wodma(1, n) for n in range(9)]
    XR = 208

    def k2_addr():
        a("s_mul_i32 s62, s3, 18432")
        a("s_add_u32 s62, s62, s47")
        a("s_add_u32 s62, s62, s44")
        a("s_mul_i32 s63, s4, 2304")
        a("s_add_u32 s63, s63, s62")
        a("v_and_b32 v220, 1, v3")
        a("v_lshlrev_b32 v220, 9, v220")
        a("v_lshl_add_u32 v220, v4, 4, v220")
        a("v_lshrrev_b32 v221, 5, v1")
        a("v_lshl_add_u32 v220, v221, 8, v220")
        a("v_mov_b32 v221, %s" % hex(OOB))
        a("v_cmp_eq_u32 vcc, 0, v3")
        a("v_cndmask_b32 v221, v221, v220, vcc")
        a("v_cndmask_b32 v222, 0, -1, vcc")
        a("s_add_u32 s64, s63, %s" % hex(oXA))
        a("s_add_u32 s65, s63, %s" % hex(oX1))

    def xload(kk):
        def f():
            vm.op("buffer_load_dwordx4 %s, v%d, s[40:43], s64 offen offset:%d%s" % (q4(XR + 4 * kk), 220 if kk < 2 else 221, kk * 1024, LD), "x")
        return f

    k2_addr()
    side += [xload(k) for k in range(3)]
    cnt = [0]

    def v(text):
        a(text)
        cnt[0] += 1
        if cnt[0] % 12 == 0 and side:
            side.pop(0)()

    QO, KO, VP, X0, V2 = 148, 164, 184, 194, 196
    for T in range(5):
        xd = X0 if T == 0 else QO + (T - 1) * 4 + 2
        v("v_cvt_pk_bf16_f32 v%d, v%d, v%d" % (xd, CA + T * 4, CA + T * 4 + 1))
        a("ds_write_b16 v141, v%d offset:%d" % (xd, T * 32))
        a("ds_write_b16_d16_hi v141, v%d offset:%d" % (xd, T * 32 + 160))
    for T in range(5):
        v("v_cvt_pk_bf16_f32 v%d, v%d, v%d" % (KO + T * 4 + 2, CA + T * 4 + 2, CA + T * 4 + 3))
        v("v_cvt_pk_bf16_f32 v%d, v%d, v%d" % (KO + T * 4, KA + T * 4, KA + T * 4 + 1))
        v("v_cvt_pk_bf16_f32 v%d, v%d, v%d" % (KO + T * 4 + 1, KA + T * 4 + 2, KA + T * 4 + 3))
        v("v_mov_b32 v%d, 0" % (KO + T * 4 + 3))
        if T:
            q = QO + (T - 1) * 4
            v("v_cvt_pk_bf16_f32 v%d, v%d, v%d" % (q, QA + (T - 1) * 4, QA + (T - 1) * 4 + 1))
            v("v_cvt_pk_bf16_f32 v%d, v%d, v%d" % (q + 1, QA + (T - 1) * 4 + 2, QA + (T - 1) * 4 + 3))
            v("v_mov_b32 v%d, 0" % (q + 3))
    for T in range(5):
        a("ds_read_b64 %s, v142 offset:%d" % (q2(V2 + 2 * T), T * 32))
    SP = YF
    Ts = range(1, 5)
    for T in Ts:
        q = q4(QO + (T - 1) * 4)
        sp = SP + (T - 1) * 8
        a("%s %s, %s, %s, %s" % (MF, q4(sp), q4(KO + (T - 1) * 4), q, q4(SM) if T == 1 else "0"))
        a("%s %s, %s, %s, 0" % (MF, q4(sp + 4), q4(KO + T * 4), q))
    for T in range(5):
        v("v_cvt_pk_bf16_f32 v%d, v%d, v%d" % (VP + 2 * T, VA + T * 4, VA + T * 4 + 1))
        v("v_cvt_pk_bf16_f32 v%d, v%d, v%d" % (VP + 2 * T + 1, VA + T * 4 + 2, VA + T * 4 + 3))
    a("s_mov_b32 s19, %s" % f32bits((18.0 ** -0.5) * math.log2(math.e)))
    W = lambda T, k: 16 + (T - 1) * 8 + k
    for T in Ts:
        sp = SP + (T - 1) * 8
        v("v_cndmask_b32 v%d, v%d, v%d, s[70:71]" % (W(T, 2), sp + 4, sp + 5))
        v("v_cndmask_b32 v%d, v%d, v%d, s[70:71]" % (W(T, 3), sp + 0, sp + 1))
        v("v_cndmask_b32 v%d, v%d, v%d, s[70:71]" % (W(T, 4), sp + 6, sp + 7))
        v("v_cndmask_b32 v%d, v%d, v%d, s[70:71]" % (W(T, 5), sp + 2, sp + 3))
        v("v_cndmask_b32 v%d, v%d, v%d, s[72:73]" % (W(T, 0), W(T, 3), W(T, 2)))
        v("v_cndmask_b32 v%d, v%d, v%d, s[74:75]" % (W(T, 1), W(T, 5), W(T, 4)))
        v("v_max_f32 v%d, v%d, v%d" % (W(T, 2), W(T, 0), W(T, 1)))
        v("v_mov_b32 v%d, v%d" % (W(T, 3), W(T, 2)))

    def xlane(op):
        for T in Ts:
            v("v_permlane16_swap_b32 v%d, v%d" % (W(T, 2), W(T, 3)))
        for T in Ts:
            v("%s v%d, v%d, v%d" % (op, W(T, 2), W(T, 2), W(T, 3)))
            v("v_mov_b32 v%d, v%d" % (W(T, 3), W(T, 2)))
        for T in Ts:
            v("v_permlane32_swap_b32 v%d, v%d" % (W(T, 2), W(T, 3)))
        for T in Ts:
            v("%s v%d, v%d, v%d" % (op, W(T, 2), W(T, 2), W(T, 3)))

    xlane("v_max_f32")
    for T in Ts:
        v("v_sub_f32 v%d, v%d, v%d" % (W(T, 0), W(T, 0), W(T, 2)))
        v("v_sub_f32 v%d, v%d, v%d" % (W(T, 1), W(T, 1), W(T, 2)))
        v("v_mul_f32 v%d, s19, v%d" % (W(T, 0), W(T, 0)))
        v("v_mul_f32 v%d, s19, v%d" % (W(T, 1), W(T, 1)))
    for T in Ts:
        v("v_exp_f32 v%d, v%d" % (W(T, 0), W(T, 0)))
        v("v_exp_f32 v%d, v%d" % (W(T, 1), W(T, 1)))
    for T in Ts:
        v("v_add_f32 v%d, v%d, v%d" % (W(T, 2), W(T, 0), W(T, 1)))
        v("v_mov_b32 v%d, v%d" % (W(T, 3), W(T, 2)))
    xlane("v_add_f32")
    for T in Ts:
        v("v_rcp_f32 v%d, v%d" % (W(T, 2), W(T, 2)))
    for T in Ts:
        v("v_mul_f32 v%d, v%d, v%d" % (W(T, 0), W(T, 0), W(T, 2)))
        v("v_mul_f32 v%d, v%d, v%d" % (W(T, 1), W(T, 1), W(T, 2)))
        v("v_cvt_pk_bf16_f32 v%d, v%d, v%d" % (W(T, 0), W(T, 0), W(T, 0)))
        v("v_cvt_pk_bf16_f32 v%d, v%d, v%d" % (W(T, 1), W(T, 1), W(T, 1)))
        v("v_and_b32 v%d, v%d, v%d" % (W(T, 4), W(T, 0), MSK + 0))
        v("v_and_b32 v%d, v%d, v%d" % (W(T, 5), W(T, 1), MSK + 1))
        v("v_and_b32 v%d, v%d, v%d" % (W(T, 6), W(T, 0), MSK + 2))
        v("v_and_b32 v%d, v%d, v%d" % (W(T, 7), W(T, 1), MSK + 3))
    while side:
        side.pop(0)()
    a("s_waitcnt lgkmcnt(0)")
    for T in Ts:
        sp = SP + (T - 1) * 8
        p = q4(W(T, 4))
        a("%s %s, %s, %s, 0" % (MF, q4(sp), q4(VP + 2 * (T - 1)), p))
        a("%s %s, %s, %s, 0" % (MF, q4(sp + 4), q4(V2 + 2 * (T - 1)), p))
    a("s_add_u32 s66, s62, %s" % hex(oO))
    a("s_lshl_b32 s67, s4, 11")
    a("s_add_u32 s67, s67, s66")
    a("s_lshl_b32 s68, s4, 8")
    a("s_add_u32 s68, s68, s66")
    a("s_add_u32 s68, s68, 16384")
    for T in Ts:
        sp = SP + (T - 1) * 8
        o = 48 + (T - 1) * 4
        cvt(o, sp, sp + 1)
        cvt(o + 1, sp + 2, sp + 3)
        cvt(o + 2, sp + 4, sp + 5)
        a("ds_write_b64 v143, %s offset:%d" % (q2(o), (T - 1) * 3072))
        a("ds_write_b32 v144, v%d offset:%d" % (o + 2, (T - 1) * 3072))
    a("s_waitcnt lgkmcnt(0)")
    a("s_barrier")
    for st in range(3):
        a("ds_read_b128 %s, v145 offset:%d" % (q4(224 + st * 4), st * 1024))
    for st in range(3):
        a("s_waitcnt lgkmcnt(%d)" % (2 - st))
        if st < 2:
            vm.op("buffer_store_dwordx4 %s, v2, s[40:43], s67 offen offset:%d%s" % (q4(224 + st * 4), st * 1024, ST), "st")
        else:
            vm.op("buffer_store_dwordx4 %s, v221, s[40:43], s68 offen%s" % (q4(232), ST), "st")
    stamp(2)

    WS = 48
    ACC, FIN, AUGW, TMP, KC, AB = 144, 160, 176, 180, 192, 204
    PK = 204

    def ring(q):
        return 16 + (q % NR) * 4

    def m_voffs():
        a("s_mul_i32 s9, s4, 36")
        a("s_add_u32 s9, s9, s3")
        a("s_mul_i32 s11, s9, 18432")
        a("s_add_u32 s11, s11, %s" % hex(W1P))
        a("v_add_u32 v7, s11, v2")
        for k in range(1, 5):
            a("v_add_u32 v%d, %d, v7" % (7 + k, 4096 * k))
        a("s_lshl_b32 s11, s9, 8")
        a("s_add_u32 s11, s11, %s" % hex(AUG))
        a("v_lshl_add_u32 v12, v4, 4, s11")
        for n in range(9):
            a("s_mov_b32 s%d, %d" % (WS + n, n * 4 * 18432))

    W2T, STT = 76, 57
    sst = lambda n: (57 + n) if n < 3 else (85 + n - 3)

    def mload(q):
        def f():
            n, s = divmod(q, 18)
            sr = WS + n if n < 9 else W2T + n - 9
            vm.op("buffer_load_dwordx4 %s, v%d, s[40:43], s%d offen offset:%d" % (q4(ring(q)), 7 + s // 4, sr, (s % 4) * 1024), ("m", q))
        return f

    def aload(n):
        vm.op("buffer_load_dwordx4 %s, v12, s[40:43], s%d offen" % (q4(AUGW), 91), ("aug", n))

    def kslot(ks, tl):
        return ((ks % 12) * 5 + tl) * 4

    def kread(ks, tl):
        def f():
            base, off = (13, ks * 4608) if ks < 10 else (14, (ks - 10) * 4608)
            if tl == 4:
                base += 2
            lg.op("ds_read_b128 %s, v%d offset:%d" % (q4(kslot(ks, tl), "a"), base if base != 16 else 6, off + tl * 1024), ("k", ks))
        return f

    def k2_pre():
        a("v_add_u32 v13, %d, v2" % L_WA)
        a("v_add_u32 v14, %d, v2" % L_WB)
        a("v_and_b32 v15, 7, v4")
        a("v_lshlrev_b32 v15, 4, v15")
        a("v_lshl_add_u32 v15, v3, 7, v15")
        a("v_add_u32 v6, %d, v15" % L_WB)
        a("v_add_u32 v15, %d, v15" % L_WA)
        for ks in range(K2PRE):
            for tl in range(5):
                kread(ks, tl)()

    XU = 224
    def x_unpack():
        for k in range(12):
            unpack(XU + 2 * k, XR + k)

    m_voffs()
    hop("st", pre_a=[mload(q) for q in range(8)],
        pre_b=[k2_pre] + [mload(q) for q in range(8, 18)] + [x_unpack])
    stamp(3)

    OFR, KAC = 88, 160
    a("v_add_u32 v5, 4096, v2")
    rest = [kread(ks, tl) for ks in range(K2PRE, 12) for tl in range(5)]
    for ks in range(18):
        if ks % 8 == 0:
            a("s_add_u32 s15, s66, %d" % (ks * 1024))
        vm.op("buffer_load_dwordx4 %s, v%d, s[40:43], s15 offen offset:%d%s" % (q4(OFR + ks * 4), (2, 5)[(ks % 8) // 4], (ks % 4) * 1024, LD), ("o", ks))
        for f in rest[:3]:
            f()
        rest = rest[3:]
    assert not rest
    for ks in range(18):
        vm.wait(("o", ks))
        lg.wait(("k", ks))
        for tl in range(5):
            a("%s %s, %s, %s, %s" % (MF, q4(KAC + tl * 4), q4(kslot(ks, tl), "a"), q4(OFR + ks * 4), "0" if ks == 0 else q4(KAC + tl * 4)))
            if ks < 6:
                kread(ks + 12, tl)()
    TP, TU = 180, 88
    for tl in range(5):
        cvt(TP + 2 * tl, KAC + 4 * tl, KAC + 4 * tl + 1)
        cvt(TP + 2 * tl + 1, KAC + 4 * tl + 2, KAC + 4 * tl + 3)
    for kk in range(3):
        a("v_permlane16_swap_b32 v%d, v%d" % (TP + 4 * kk, TP + 4 * kk + 2))
        a("v_permlane16_swap_b32 v%d, v%d" % (TP + 4 * kk + 1, TP + 4 * kk + 3))
    for k in range(8, 12):
        a("v_and_b32 v%d, v%d, v222" % (TP + k, TP + k))
    for kk in range(3):
        for k in range(4 * kk, 4 * kk + 4):
            unpack(TU + 2 * k, TP + k)
        for k in range(4 * kk, 4 * kk + 4):
            a("v_pk_add_f32 %s, %s, %s" % (q2(TU + 2 * k), q2(TU + 2 * k), q2(XU + 2 * k)))
        for k in range(4 * kk, 4 * kk + 4):
            cvt(XR + k, TU + 2 * k, TU + 2 * k + 1)
        vm.op("buffer_store_dwordx4 %s, v%d, s[40:43], s65 offen offset:%d%s" % (q4(XR + 4 * kk), 220 if kk < 2 else 221, kk * 1024, ST), "st")
    for k in range(12):
        unpack(TU + 2 * k, XR + k)
    S0 = 112
    a("v_pk_add_f32 %s, %s, %s" % (q2(S0), q2(TU), q2(TU + 2)))
    a("v_pk_add_f32 %s, %s, %s" % (q2(S0 + 2), q2(TU + 4), q2(TU + 6)))
    for k in range(4, 12, 2):
        a("v_pk_add_f32 %s, %s, %s" % (q2(S0), q2(S0), q2(TU + 2 * k)))
        a("v_pk_add_f32 %s, %s, %s" % (q2(S0 + 2), q2(S0 + 2), q2(TU + 2 * k + 2)))
    a("v_pk_add_f32 %s, %s, %s" % (q2(S0), q2(S0), q2(S0 + 2)))
    a("v_add_f32 v%d, v%d, v%d" % (S0, S0, S0 + 1))
    xsum(S0, S0 + 1)
    a("v_mul_f32 v%d, %s, v%d" % (S0 + 4, f32bits(1.0 / 72.0), S0))
    a("v_sub_f32 v%d, 0, v%d" % (S0 + 6, S0 + 4))
    a("v_mov_b32 v%d, v%d" % (S0 + 7, S0 + 6))
    a("v_and_b32 v%d, v%d, v222" % (S0 + 8, S0 + 6))
    a("v_mov_b32 v%d, v%d" % (S0 + 9, S0 + 8))
    for k in range(12):
        a("v_pk_add_f32 %s, %s, %s" % (q2(TU + 2 * k), q2(TU + 2 * k), q2(S0 + 6 if k < 8 else S0 + 8)))
    a("v_pk_mul_f32 %s, %s, %s" % (q2(S0), q2(TU), q2(TU)))
    a("v_pk_mul_f32 %s, %s, %s" % (q2(S0 + 2), q2(TU + 2), q2(TU + 2)))
    for k in range(2, 12):
        r = S0 + 2 * (k % 2)
        a("v_pk_fma_f32 %s, %s, %s, %s" % (q2(r), q2(TU + 2 * k), q2(TU + 2 * k), q2(r)))
    a("v_pk_add_f32 %s, %s, %s" % (q2(S0), q2(S0), q2(S0 + 2)))
    a("v_add_f32 v%d, v%d, v%d" % (S0 + 5, S0, S0 + 1))
    xsum(S0 + 5, S0 + 1)
    a("s_lshl_b32 s15, s5, 12")
    a("s_add_u32 s69, s15, s44")
    a("s_add_u32 s69, s69, %s" % hex(oST))
    a("s_lshl_b32 s15, s4, 9")
    a("s_lshl_b32 s19, s3, 7")
    a("s_add_u32 s15, s15, s19")
    a("s_add_u32 s15, s15, s69")
    a("v_lshrrev_b32 v%d, 1, v221" % (S0 + 1))
    vm.op("buffer_store_dwordx2 %s, v%d, s[40:43], s15 offen%s" % (q2(S0 + 4), S0 + 1, ST), "st")
    stamp(4)

    def m_setup():
        mod_small("s6", "s5", MROT)
        a("s_mul_i32 s6, s6, %d" % (9 // MROT))
        a("s_mul_i32 s10, s3, %d" % (8 * 18432))
        a("s_add_u32 s10, s10, %s" % hex(W2P - W1P))
        a("s_lshl_b32 s11, s5, 3")
        a("s_add_u32 s11, s11, s4")
        a("s_mul_i32 s11, s11, %d" % TB)
        a("s_add_u32 s11, s11, s44")
        a("s_add_u32 s11, s11, %s" % hex(oPART))
        a("s_mul_i32 s14, s3, 4608")
        a("s_add_u32 s11, s11, s14")
        for n in range(9):
            a("s_mul_i32 s%d, s6, 18432" % (W2T + n))
            a("s_add_u32 s%d, s%d, s10" % (W2T + n, W2T + n))
            a("s_lshl_b32 s%d, s6, 9" % sst(n))
            a("s_add_u32 s%d, s%d, s11" % (sst(n), sst(n)))
            if n < 8:
                a("s_add_u32 s6, s6, 1")
                a("s_cmp_eq_u32 s6, 9")
                a("s_cselect_b32 s6, 0, s6")
        a("v_add_u32 v13, 36864, v2")
        a("v_add_u32 v14, %d, v2" % TB)
        a("v_add_u32 v15, %d, v2" % (TB + 36864))
        a("v_and_b32 v5, 1, v3")
        a("v_mul_u32_u24 v5, 18432, v5")
        a("v_lshl_add_u32 v5, v4, 4, v5")
        a("v_lshrrev_b32 v6, 5, v1")
        a("v_lshl_add_u32 v5, v6, 8, v5")
        a("v_add_u32 v6, 36864, v5")
        a("s_lshr_b32 s14, s3, 1")
        a("s_lshl_b32 s14, s14, 10")
        a("s_and_b32 s15, s3, 1")
        a("s_lshl_b32 s15, s15, 3")
        a("s_add_u32 s14, s14, s15")
        a("v_add_u32 v222, s14, v14")
        a("v_add_u32 v223, s14, v15")
        a("v_lshlrev_b32 v220, 3, v1")
        a("s_mul_i32 s8, s3, 18432")
        a("s_add_u32 s62, s62, %s" % hex(oX1))
        a("s_mov_b32 s91, 0")

    hop("st", pre_a=[mload(q) for q in range(26, 32)],
        pre_b=[m_setup, lambda: aload(0)] + [mload(q) for q in range(18, 26)])
    stamp(5)

    def fr(T, s):
        k = s * 4 + T
        return q4(k * 4, "a") if k < 64 else q4(224 + (k - 64) * 4)

    for s in range(18):
        if s % 3 == 0:
            a("s_add_u32 m0, s8, %d" % (s * 1024))
            a("s_add_u32 s11, s62, %d" % (s * 1024))
        vm.op("buffer_load_dwordx4 v2, s[40:43], s11 offen offset:%d%s lds" % ((s % 3) * 1024, LD), ("y", s // 6))
        if s == 5:
            for j in range(8):
                vm.op("buffer_load_dwordx2 %s, v220, s[40:43], s69 offen offset:%d%s" % (q2(FIN + 2 * j), j * 512, LD), "stat")

    c0 = -2.0 * math.sqrt(2.0 / math.pi) * math.log2(math.e)

    def stat_ops():
        ops = []
        e = lambda t, c=4: ops.append((t, c))
        m = lambda j: FIN + 2 * j
        t0 = TMP
        MEAN, VAR, M1, S1, M2, S2, RS = t0, t0 + 1, t0 + 2, t0 + 3, t0 + 4, t0 + 5, t0 + 6
        ops.append(("WAIT", 0))
        e("v_add_f32 v%d, v%d, v%d" % (MEAN, m(0), m(1)))
        e("v_add_f32 v%d, v%d, v%d" % (VAR, m(0) + 1, m(1) + 1))
        for j in range(2, 8):
            e("v_add_f32 v%d, v%d, v%d" % (MEAN, MEAN, m(j)))
            e("v_add_f32 v%d, v%d, v%d" % (VAR, VAR, m(j) + 1))
        e("v_mul_f32 v%d, %s, v%d" % (MEAN, f32bits(0.125), MEAN))
        e("v_mul_f32 v%d, %s, v%d" % (VAR, f32bits(1.0 / 72.0), VAR))
        for j in range(8):
            e("v_sub_f32 v%d, v%d, v%d" % (m(j), m(j), MEAN))
        for j in range(8):
            e("v_fmac_f32 v%d, v%d, v%d" % (VAR, m(j), m(j)))
        e("v_mul_f32 v%d, %s, v%d" % (VAR, f32bits(0.125), VAR))
        ln_scalars(MEAN, VAR, M1, S1, e)
        e("v_rcp_f32 v%d, v%d" % (RS, S1), 8)
        e("v_sub_f32 v%d, v%d, v%d" % (MEAN, MEAN, M1))
        e("v_mul_f32 v%d, v%d, v%d" % (MEAN, MEAN, RS))
        e("v_mul_f32 v%d, v%d, v%d" % (VAR, VAR, RS))
        e("v_mul_f32 v%d, v%d, v%d" % (VAR, VAR, RS))
        ln_scalars(MEAN, VAR, M2, S2, e)
        MU, R = M1, S1
        e("v_fmac_f32 v%d, v%d, v%d" % (MU, M2, S1))
        e("v_mul_f32 v%d, v%d, v%d" % (R, S1, S2))
        D0, D1, D2, H = t0 + 7, t0 + 8, t0 + 9, t0 + 10
        e("v_cvt_pk_bf16_f32 v%d, v%d, v%d" % (D1, MU, R))
        e("v_lshlrev_b32 v%d, 16, v%d" % (H, D1))
        e("v_sub_f32 v%d, v%d, v%d" % (H, MU, H))
        e("v_cvt_pk_bf16_f32 v%d, v%d, v%d" % (D0, MU, H))
        e("v_and_b32 v%d, 0xffff0000, v%d" % (H, D1))
        e("v_sub_f32 v%d, v%d, v%d" % (H, R, H))
        e("v_cvt_pk_bf16_f32 v%d, v%d, 0" % (D2, H))
        for T in range(4):
            e("v_cmp_eq_u32 vcc, %d, v3" % T)
            for k, d in enumerate((D0, D1, D2)):
                e("v_cndmask_b32 v%d, 0, v%d, vcc" % (AB + 4 * T + k, d))
            e("v_mov_b32 v%d, 0" % (AB + 4 * T + 3))
        r0, r1, r2, r3 = KC + 8, KC + 9, KC + 10, KC + 11
        e("v_mov_b32 v%d, v%d" % (r0, R))
        e("v_mov_b32 v%d, v%d" % (r2, R))
        e("v_permlane32_swap_b32 v%d, v%d" % (r0, r2))
        e("v_mov_b32 v%d, v%d" % (r1, r0))
        e("v_mov_b32 v%d, v%d" % (r3, r2))
        e("v_permlane16_swap_b32 v%d, v%d" % (r0, r1))
        e("v_permlane16_swap_b32 v%d, v%d" % (r2, r3))
        for T in range(4):
            e("v_rcp_f32 v%d, v%d" % (KC + T, KC + 8 + T), 8)
        for T in range(4):
            e("v_mul_f32 v%d, v%d, v%d" % (KC + 4 + T, KC + T, KC + T))
            e("v_mul_f32 v%d, %s, v%d" % (KC + T, f32bits(c0), KC + T))
            e("v_mul_f32 v%d, v%d, v%d" % (KC + 4 + T, KC + 4 + T, KC + T))
            e("v_mul_f32 v%d, %s, v%d" % (KC + 4 + T, f32bits(0.044715), KC + 4 + T))
        return ops

    def gelu_ops(tl):
        ops = []
        for T in range(4):
            x = [FIN + 4 * T + r for r in range(4)]
            t = [TMP + (T % 2) * 6 + r for r in range(4)]
            pk = TMP + (T % 2) * 6 + 4
            for r in range(4):
                ops.append(("v_mul_f32 v%d, v%d, v%d" % (t[r], x[r], x[r]), 4))
            for r in range(4):
                ops.append(("v_fma_f32 v%d, v%d, v%d, v%d" % (t[r], t[r], KC + 4 + T, KC + T), 4))
            for r in range(4):
                ops.append(("v_mul_f32 v%d, v%d, v%d" % (t[r], t[r], x[r]), 4))
            for r in range(4):
                ops.append(("v_exp_f32 v%d, v%d" % (t[r], t[r]), 8))
            for r in range(4):
                ops.append(("v_fma_f32 v%d, v%d, v%d, v%d" % (t[r], t[r], KC + 8 + T, KC + 8 + T), 4))
            for r in range(4):
                ops.append(("v_rcp_f32 v%d, v%d" % (t[r], t[r]), 8))
            for r in range(4):
                ops.append(("v_mul_f32 v%d, v%d, v%d" % (t[r], t[r], x[r]), 4))
            ops.append(("v_cvt_pk_bf16_f32 v%d, v%d, v%d" % (pk, t[0], t[1]), 4))
            ops.append(("v_cvt_pk_bf16_f32 v%d, v%d, v%d" % (pk + 1, t[2], t[3]), 4))
            ops.append(("ds_write_b64 v%d, %s offset:%d" % ((222, 223)[T // 2], q2(pk), (T % 2) * 18432 + tl * 2048), 4))
        return ops

    def out_ops(n2):
        ops = []
        for T in range(4):
            ops.append(("v_cvt_pk_bf16_f32 v%d, v%d, v%d" % (PK + 2 * T, FIN + 4 * T, FIN + 4 * T + 1), 4))
            ops.append(("v_cvt_pk_bf16_f32 v%d, v%d, v%d" % (PK + 2 * T + 1, FIN + 4 * T + 2, FIN + 4 * T + 3), 4))
            if T % 2 == 1:
                ops.append(("v_permlane16_swap_b32 v%d, v%d" % (PK + 2 * T - 2, PK + 2 * T), 4))
                ops.append(("v_permlane16_swap_b32 v%d, v%d" % (PK + 2 * T - 1, PK + 2 * T + 1), 4))
                ops.append(("buffer_store_dwordx4 %s, v%d, s[40:43], s%d offen%s" % (q4(PK + 2 * T - 2), (5, 6)[T // 2], sst(n2), ST), 4))
        return ops

    def emit_fill(op):
        if op == "WAIT":
            vm.wait("stat")
        elif op.startswith("ds_"):
            lg.op(op, "hw")
        elif op.startswith("buffer_store"):
            vm.op(op, "st")
        else:
            a(op)

    def act1(T, s, second):
        off = ((T % 2) * 18 + s) * 1024
        base = ((2, 13), (14, 15))[second][T // 2]
        lg.op("ds_read_b128 %s, v%d offset:%d" % (fr(T, s), base, off), ("act", second, s))

    NQ = 18 * 18
    AHEAD = 3
    for n in range(18):
        gemm = 1 if n < 9 else 2
        npos = 19 if gemm == 1 else 18
        if n == 0:
            fill, g0, g1 = stat_ops(), 8, 68
        elif n <= 9:
            fill, g0, g1 = gelu_ops(n - 1), 3, (70 if n < 9 else 50)
        else:
            fill, g0, g1 = out_ops(n - 10), 8, 24
        rd = n in (0, 9)
        if n == 0:
            vm.wait(("y", 0))
            a("s_barrier")
        if n == 1:
            stamp(6)
        if n == 9:
            stamp(7)
            lg.wait("hw")
            a("s_barrier")
        if n == 10:
            stamp(8)
        if rd:
            for s in range(AHEAD):
                for T in range(4):
                    act1(T, s, n == 9)
        total = sum(c for _, c in fill)
        fi = spent = m = 0
        for s in range(npos):
            q = n * 18 + s
            if rd and s < 18:
                sa = s + AHEAD
                if sa < 18:
                    if n == 0 and sa % 6 == 0:
                        vm.wait(("y", sa // 6))
                        a("s_barrier")
                    if n == 9 and sa == 16:
                        assert fi == len(fill)
                        lg.wait("hw")
                        a("s_barrier")
                lg.wait(("act", n == 9, s))
            if s == 18:
                assert fi == len(fill)
                vm.wait(("aug", n))
            elif s % 2 == 0:
                vm.wait(("m", q)); vm.wait(("m", q + 1))
            for T in range(4):
                last = s == npos - 1
                d = (FIN if last else ACC) + 4 * T
                c = "0" if s == 0 else q4(ACC + 4 * T)
                if s == 18:
                    a("%s %s, %s, %s, %s" % (MF, q4(d), q4(AUGW), q4(AB + 4 * T), c))
                else:
                    a("%s %s, %s, %s, %s" % (MF, q4(d), q4(ring(q)), fr(T, s), c))
                if rd and s + AHEAD < 18:
                    act1(T, s + AHEAD, n == 9)
                if T == 3:
                    if s < 18 and q + NR < NQ:
                        mload(q + NR)()
                    if s == 18 and n < 8:
                        a("s_add_u32 s91, s91, 1024")
                        aload(n + 1)
                if fill and g0 <= m <= g1:
                    budget = total * (m - g0 + 1) / (g1 - g0 + 1)
                    while fi < len(fill) and spent + fill[fi][1] / 2 <= budget:
                        emit_fill(fill[fi][0])
                        spent += fill[fi][1]
                        fi += 1
                m += 1
        assert fi == len(fill), (n, fi, len(fill))
    for op, _ in out_ops(8):
        emit_fill(op)
    stamp(9)

    PR, DT, XQ, BQ, SEL, XP = 16, 88, 108, 128, 148, 156

    def r_setup():
        kw_voffs()
        a("s_cmp_eq_u32 s45, 0")
        a("s_cselect_b32 s60, 0, %s" % hex(OOB))
        for G in range(1, 6):
            a("s_add_u32 s%d, s60, %d" % (60 + G, G * 12288))
        a("s_lshr_b32 s6, s4, 1")
        a("s_mul_i32 s6, s6, 18432")
        a("s_and_b32 s7, s4, 1")
        a("s_lshl_b32 s7, s7, 7")
        a("s_add_u32 s6, s6, s7")
        a("s_mul_i32 s7, s3, 4608")
        a("s_add_u32 s6, s6, s7")
        a("s_add_u32 s6, s6, s44")
        a("s_lshl_b32 s7, s47, 3")
        a("s_add_u32 s48, s6, s7")
        a("s_add_u32 s48, s48, %s" % hex(oPART))
        a("s_add_u32 s49, s48, %d" % (4 * TB))
        a("s_add_u32 s50, s48, 4096")
        a("s_add_u32 s51, s49, 4096")
        a("s_add_u32 s6, s6, s47")
        a("s_add_u32 s52, s6, %s" % hex(oX1))
        a("s_add_u32 s53, s52, 4096")
        a("s_add_u32 s54, s6, %s" % hex(LS + oXA))
        a("s_add_u32 s55, s6, %s" % hex(LS + oY))
        a("v_and_b32 v176, 7, v1")
        a("v_bfe_u32 v177, v1, 3, 1")
        a("v_lshlrev_b32 v178, 4, v176")
        a("v_lshl_add_u32 v178, v177, 8, v178")
        a("v_mul_u32_u24 v179, %d, v3" % TB)
        a("v_add_u32 v179, v179, v178")
        a("v_and_b32 v180, 1, v3")
        a("v_lshrrev_b32 v181, 1, v3")
        a("v_lshl_add_u32 v182, v181, 9, v178")
        a("v_lshl_add_u32 v183, v180, 10, v182")
        a("v_lshl_add_u32 v182, v180, 3, v182")
        a("v_lshlrev_b32 v184, 4, v177")
        a("v_lshl_add_u32 v184, v181, 5, v184")
        a("v_mul_u32_u24 v185, 1152, v176")
        a("v_add_u32 v185, v185, v184")
        a("v_lshl_add_u32 v185, v180, 6, v185")
        a("v_lshl_add_u32 v184, v180, 3, v184")
        a("v_mov_b32 v188, %s" % hex(OOB))
        a("v_cmp_eq_u32 vcc, 0, v3")
        a("v_add_u32 v186, 4096, v183")
        a("v_cndmask_b32 v186, v188, v186, vcc")
        a("v_cndmask_b32 v187, v188, v185, vcc")
        a("v_cmp_gt_u32 vcc, 2, v3")
        a("v_cndmask_b32 v188, 0, -1, vcc")
        srd(36, 28, 0, 1152)
        a("s_mul_i32 s56, s3, 288")
        for k in range(5):
            vm.op("buffer_load_dwordx2 %s, v182, s[40:43], s%d offen offset:%d%s" % (q2(XP + 2 * k), 52 if k < 4 else 53, (k % 4) * 1024, LD), "rx")
            vm.op("buffer_load_dwordx2 %s, v184, s[36:39], s56 offen offset:%d" % (q2(XP + 10 + 2 * k), k * 64), "rx")
        a("v_and_b32 v189, 1, v4")
        a("v_lshlrev_b32 v189, 4, v189")
        a("v_mov_b32 v190, 0x3f80")
        a("v_lshlrev_b32 v189, v189, v190")
        a("v_lshrrev_b32 v190, 1, v4")
        for k in range(8):
            a("v_cmp_eq_u32 vcc, %d, v190" % k)
            a("v_cndmask_b32 v%d, 0, v189, vcc" % (SEL + k))
        a("v_mul_u32_u24 v190, 16, v176")
        a("s_lshl_b32 s7, s3, 2")
        a("v_add_u32 v191, s7, v190")

    def r_unpack():
        vm.wait("rx")
        for k in range(8, 10):
            a("v_and_b32 v%d, v%d, v188" % (XP + k, XP + k))
            a("v_and_b32 v%d, v%d, v188" % (XP + 10 + k, XP + 10 + k))
        for k in range(10):
            unpack(XQ + 2 * k, XP + k)
            unpack(BQ + 2 * k, XP + 10 + k)

    kpf = [wload1(i, t, "s%d" % (60 + i // 3)) for i in range(PF) for t in range(4)]
    n1, n2, n3 = E("PFA", 0), E("PFB", 16), E("PFC", 0)
    hop("st", pre_a=[r_setup] + kpf[:n1], pre_b=[r_unpack] + kpf[n1:n1 + n2])
    kpf = kpf[n1 + n2:]
    stamp(10)
    order = [(k, st, hf) for k in range(5) for st in range(2) for hf in range(2) if not (k == 4 and st == 1)]
    for n, (k, st, hf) in enumerate(order):
        vm.op("buffer_load_dwordx4 %s, v179, s[40:43], s%d offen offset:%d%s" % (q4(PR + 4 * n), 48 + hf + (2 if k == 4 else 0), ((4 * k + 2 * st) * 256) % 4096, LD), ("p", n))
    for f in kpf[:n3]:
        f()
    kpf = kpf[n3:]
    for n, (k, st, hf) in enumerate(order):
        vm.wait(("p", n))
        a("%s %s, %s, %s, %s" % (MF, q4(DT + 4 * k), q4(SEL + 4 * st), q4(PR + 4 * n), q4(BQ + 4 * k) if (st == 0 and hf == 0) else q4(DT + 4 * k)))
    n4 = E("PFD", 12)
    for f in kpf[:n4]:
        f()
    kpf = kpf[n4:]
    TK = 192
    for k in range(10):
        cvt(TK + k, DT + 2 * k, DT + 2 * k + 1)
    for k in range(10):
        unpack(DT + 2 * k, TK + k)
    for k in range(10):
        a("v_pk_add_f32 %s, %s, %s" % (q2(DT + 2 * k), q2(DT + 2 * k), q2(XQ + 2 * k)))
    for k in range(10):
        cvt(TK + k, DT + 2 * k, DT + 2 * k + 1)
    for k in range(10):
        unpack(DT + 2 * k, TK + k)
    for kk in range(3):
        a("v_permlane16_swap_b32 v%d, v%d" % (TK + 4 * kk, TK + 4 * kk + 2))
        a("v_permlane16_swap_b32 v%d, v%d" % (TK + 4 * kk + 1, TK + 4 * kk + 3))
    a("s_cmp_eq_u32 s45, 0")
    a("s_cbranch_scc1 R_mid")
    srd(36, 30, 0, ACT)
    a("s_lshl_b32 s6, s5, 3")
    a("s_add_u32 s6, s6, s4")
    a("s_mul_i32 s6, s6, %d" % (8 * 1152))
    a("s_add_u32 s6, s6, s56")
    for kk in range(3):
        a("buffer_store_dwordx4 %s, v%d, s[36:39], s6 offen offset:%d" % (q4(TK + 4 * kk), 185 if kk < 2 else 187, kk * 128))
    stamp(11)
    rstamp(12)
    a("L_exit2:")
    a("s_endpgm")
    a("R_mid:")
    for kk in range(3):
        vm.op("buffer_store_dwordx4 %s, v%d, s[40:43], s54 offen offset:%d%s" % (q4(TK + 4 * kk), 183 if kk < 2 else 186, (kk % 2) * 2048, ST), "st")
    S0 = XQ

    def reduce4(s, ldsoff, out):
        xsum(s, s + 1, ror8=True)
        a("ds_write_b32 v191, v%d offset:%d" % (s, ldsoff))
        a("s_waitcnt lgkmcnt(0)")
        a("s_barrier")
        a("ds_read_b128 %s, v190 offset:%d" % (q4(S0 + 4), ldsoff))
        a("s_waitcnt lgkmcnt(0)")
        a("v_pk_add_f32 %s, %s, %s" % (q2(S0 + 4), q2(S0 + 4), q2(S0 + 6)))
        a("v_add_f32 v%d, v%d, v%d" % (S0 + 4, S0 + 4, S0 + 5))
        a("v_mul_f32 v%d, %s, v%d" % (out, f32bits(1.0 / 576.0), S0 + 4))

    a("v_pk_add_f32 %s, %s, %s" % (q2(S0), q2(DT), q2(DT + 2)))
    a("v_pk_add_f32 %s, %s, %s" % (q2(S0 + 2), q2(DT + 4), q2(DT + 6)))
    for k in range(4, 10, 2):
        a("v_pk_add_f32 %s, %s, %s" % (q2(S0), q2(S0), q2(DT + 2 * k)))
        a("v_pk_add_f32 %s, %s, %s" % (q2(S0 + 2), q2(S0 + 2), q2(DT + 2 * k + 2)))
    a("v_pk_add_f32 %s, %s, %s" % (q2(S0), q2(S0), q2(S0 + 2)))
    a("v_add_f32 v%d, v%d, v%d" % (S0, S0, S0 + 1))
    MEAN, VAR, M, SD = S0 + 8, S0 + 9, S0 + 10, S0 + 12
    reduce4(S0, 0, MEAN)
    a("v_sub_f32 v%d, 0, v%d" % (S0 + 14, MEAN))
    a("v_mov_b32 v%d, v%d" % (S0 + 15, S0 + 14))
    a("v_and_b32 v%d, v%d, v188" % (S0 + 16, S0 + 14))
    a("v_mov_b32 v%d, v%d" % (S0 + 17, S0 + 16))
    for k in range(10):
        a("v_pk_add_f32 %s, %s, %s" % (q2(BQ + 2 * k), q2(DT + 2 * k), q2(S0 + 14 if k < 8 else S0 + 16)))
    a("v_pk_mul_f32 %s, %s, %s" % (q2(S0), q2(BQ), q2(BQ)))
    a("v_pk_mul_f32 %s, %s, %s" % (q2(S0 + 2), q2(BQ + 2), q2(BQ + 2)))
    for k in range(2, 10):
        r = S0 + 2 * (k % 2)
        a("v_pk_fma_f32 %s, %s, %s, %s" % (q2(r), q2(BQ + 2 * k), q2(BQ + 2 * k), q2(r)))
    a("v_pk_add_f32 %s, %s, %s" % (q2(S0), q2(S0), q2(S0 + 2)))
    a("v_add_f32 v%d, v%d, v%d" % (S0, S0, S0 + 1))
    reduce4(S0, 256, VAR)
    ln_scalars(MEAN, VAR, M, SD)
    a("v_rcp_f32 v%d, v%d" % (SD, SD))
    a("v_sub_f32 v%d, 0, v%d" % (M, M))
    a("v_mov_b32 v%d, v%d" % (M + 1, M))
    a("v_mov_b32 v%d, v%d" % (SD + 1, SD))
    for k in range(10):
        a("v_pk_add_f32 %s, %s, %s" % (q2(DT + 2 * k), q2(DT + 2 * k), q2(M)))
    TY = 204
    for k in range(10):
        cvt(TY + k, DT + 2 * k, DT + 2 * k + 1)
    for k in range(10):
        unpack(DT + 2 * k, TY + k)
    for k in range(10):
        a("v_pk_mul_f32 %s, %s, %s" % (q2(DT + 2 * k), q2(DT + 2 * k), q2(SD)))
    for k in range(10):
        cvt(TY + k, DT + 2 * k, DT + 2 * k + 1)
    for kk in range(3):
        a("v_permlane16_swap_b32 v%d, v%d" % (TY + 4 * kk, TY + 4 * kk + 2))
        a("v_permlane16_swap_b32 v%d, v%d" % (TY + 4 * kk + 1, TY + 4 * kk + 3))
    for kk in range(3):
        vm.op("buffer_store_dwordx4 %s, v%d, s[40:43], s55 offen offset:%d%s" % (q4(TY + 4 * kk), 183 if kk < 2 else 186, (kk % 2) * 2048, ST), "st")
    stamp(11)

    def next_layer():
        a("s_add_u32 s44, s44, %s" % hex(LS))
        a("s_mov_b32 s45, 1")
        k1_setup(False)
        attn_consts()

    hop("st", pre_a=kpf[:10], pre_b=kpf[10:] + [next_layer], neighbor=True)
    if PROF:
        a("s_add_u32 s96, s96, 128")
    stamp(0)
    a("s_branch K1_second")
    a("L_code_end:")
    a("s_endpgm")


def descriptor(label, vgpr, accum, sgpr):
    return """.amdhsa_kernel %s
  .amdhsa_next_free_vgpr %d
  .amdhsa_next_free_sgpr %d
  .amdhsa_accum_offset %d
  .amdhsa_group_segment_fixed_size 0
  .amdhsa_kernarg_size 88
  .amdhsa_user_sgpr_count 2
  .amdhsa_user_sgpr_kernarg_segment_ptr 1
  .amdhsa_system_sgpr_workgroup_id_x 1
.end_amdhsa_kernel
""" % (label, vgpr, sgpr, accum)


def build():
    launches = [
        ("p_kernel", P_END, 576, 73728 + 2304, 72, 72, 64),
        ("main_kernel", 256, 256, MAIN_LDS, 512, 256, 102),
    ]
    p_kernel()
    main_kernel()
    for e in a.check_branch_seams():
        print("WARN", e, file=sys.stderr)
    head = "; generated by work/gen2.py (hand-written generator)\n"
    for l, g, b, lds, _, _, _ in launches:
        head += "; @launch kernel=%s grid=(%d,1,1) block=(%d,1,1) lds=%d\n" % (l, g, b, lds)
    head += '.amdgcn_target "amdgcn-amd-amdhsa--gfx950"\n.text\n'
    tail = '.section .rodata,"a"\n'
    for l, g, b, lds, v, ac, sg in launches:
        tail += ".p2align 6\n" + descriptor(l, v, ac, sg)
    return head + a.text() + tail


if __name__ == "__main__":
    out = sys.argv[1] if len(sys.argv) > 1 else "cdna_kernels/%s.s" % NAME
    open(out, "w").write(build())
    print("wrote", out)
```

```python
import sys, math, os
from asmlib import Asm, f32bits

NAME = "interleave_layers__sliding_local_dilated__mixer_channel_mlp__prompt"
ACT = 2048 * 576 * 2
TB = 73728
WOS = 82944
WQKVP = 0
WOP = WQKVP + 2304 * 1024
W1P = WOP + 672 * 1024
W2P = W1P + 5184 * 1024
AUG = W2P + 5184 * 1024
CNT = AUG + 72 * 1024
CNTB = 36864
LB = CNT + CNTB
oY, oO, oXA, oX1 = 0, ACT, 2 * ACT, 3 * ACT
oST = 4 * ACT
oPART = 4 * ACT + 128 * 1024
LS = oPART + 8 * ACT
WS_USED = LB + 2 * LS
WS_BYTES = 268435456
OOB = 0x80000000
ST = " sc1"
LD = " sc1"
STAMP = 200 * 1024 * 1024

E = lambda n, d: int(os.environ.get(n, str(d)))
PROF = os.environ.get("PROF", "")
MAPB = E("MAPB", 2)
MROT = E("MROT", 3)
AROT = E("AROT", 2)
APRE = E("APRE", 3)
PF = E("PF", 7)
K2PRE = E("K2PRE", 6)
TOUCH = E("TOUCH", 0)
NE1 = E("NE1", 0)
NROT = NE1 if NE1 else 7
PNT = os.environ.get("PNT", " nt").replace("_", " ")
PV = E("PV", 72)
NR = 32
SPIN = 1 << 16

KA_X, KA_WQKV, KA_WO, KA_BX, KA_W1, KA_B1, KA_W2, KA_B2, KA_OUT, KA_DBG, KA_WS = [8 * i for i in range(11)]
a = Asm()
MF = "v_mfma_f32_16x16x32_bf16"
q4 = lambda b, k="v": "%s[%d:%d]" % (k, b, b + 3)
q2 = lambda b: "v[%d:%d]" % (b, b + 1)


def srd(d, base, off, nbytes):
    if off == 0:
        a("s_mov_b32 s%d, s%d" % (d, base))
        a("s_mov_b32 s%d, s%d" % (d + 1, base + 1))
    else:
        a("s_add_u32 s%d, s%d, %s" % (d, base, off if isinstance(off, str) else hex(off)))
        a("s_addc_u32 s%d, s%d, 0" % (d + 1, base + 1))
    a("s_mov_b32 s%d, %s" % (d + 2, hex(nbytes)))
    a("s_mov_b32 s%d, 0x20000" % (d + 3))


def entry(label):
    a(".p2align 8")
    a(".globl %s" % label)
    a(".type %s,@function" % label)
    a("%s:" % label)


class VM:
    def __init__(self, cnt="vmcnt", maxn=63):
        self.ops, self.cnt, self.maxn, self.done = [], cnt, maxn, -1

    def op(self, text, tag):
        a(text)
        self.ops.append(tag)

    def wait(self, tag):
        last = max(i for i, t in enumerate(self.ops) if t == tag)
        if last <= self.done:
            return
        n = min(len(self.ops) - 1 - last, self.maxn)
        self.done = len(self.ops) - 1 - n
        a("s_waitcnt %s(%d)" % (self.cnt, n))

    def all(self):
        self.done = len(self.ops) - 1
        a("s_waitcnt %s(0)" % self.cnt)


def stamp(k):
    if PROF:
        a("s_memtime s[98:99]")
        a("s_memrealtime s[100:101]")
        a("s_waitcnt lgkmcnt(0)")
        a("v_mov_b32 v0, s98")
        a("buffer_store_dword v0, off, s[92:95], s96 offset:%d" % (4 * k))
        a("v_mov_b32 v0, s100")
        a("buffer_store_dword v0, off, s[92:95], s96 offset:%d" % (4 * k + 64))


def rstamp(k):
    if PROF:
        a("s_memrealtime s[98:99]")
        a("s_waitcnt lgkmcnt(0)")
        a("v_mov_b32 v0, s98")
        a("buffer_store_dword v0, off, s[92:95], s96 offset:%d" % (4 * k))


def unpack(dst, src):
    a("v_lshlrev_b32 v%d, 16, v%d" % (dst, src))
    a("v_and_b32 v%d, 0xffff0000, v%d" % (dst + 1, src))


def cvt(d, x, y):
    a("v_cvt_pk_bf16_f32 v%d, v%d, v%d" % (d, x, y))


def round1(r):
    cvt(r, r, r)
    a("v_and_b32 v%d, 0xffff0000, v%d" % (r, r))


def ln_scalars(mean, var, M, SD, emit=None):
    e = emit or a
    e("v_cvt_pk_bf16_f32 v%d, v%d, v%d" % (M, var, mean))
    e("v_lshlrev_b32 v%d, 16, v%d" % (SD, M))
    e("v_and_b32 v%d, 0xffff0000, v%d" % (M, M))
    e("v_add_f32 v%d, %s, v%d" % (SD, f32bits(1e-5), SD))
    e("v_cvt_pk_bf16_f32 v%d, v%d, v%d" % (SD, SD, SD))
    e("v_and_b32 v%d, 0xffff0000, v%d" % (SD, SD))
    e("v_sqrt_f32 v%d, v%d" % (SD, SD))
    e("v_cvt_pk_bf16_f32 v%d, v%d, v%d" % (SD, SD, SD))
    e("v_and_b32 v%d, 0xffff0000, v%d" % (SD, SD))


def xsum(r, t, rows16=True, rows32=True, ror8=False):
    if ror8:
        a("v_add_f32_dpp v%d, v%d, v%d row_ror:8 row_mask:0xf bank_mask:0xf" % (r, r, r))
    a("v_mov_b32 v%d, v%d" % (t, r))
    a("v_permlane16_swap_b32 v%d, v%d" % (r, t))
    a("v_add_f32 v%d, v%d, v%d" % (r, r, t))
    a("v_mov_b32 v%d, v%d" % (t, r))
    a("v_permlane32_swap_b32 v%d, v%d" % (r, t))
    a("v_add_f32 v%d, v%d, v%d" % (r, r, t))


def mod_small(dst, src, n):
    if n == 1:
        a("s_mov_b32 %s, 0" % dst)
        return
    m = -(-4096 // n)
    assert all((t * m) >> 12 == t // n for t in range(32))
    a("s_mul_i32 %s, %s, %d" % (dst, src, m))
    a("s_lshr_b32 %s, %s, 12" % (dst, dst))
    a("s_mul_i32 %s, %s, %d" % (dst, dst, n))
    a("s_sub_u32 %s, %s, %s" % (dst, src, dst))


P_LN, P_QKV, P_W1, P_W2, P_MISC, P_END = 0, 256, 328, 472, 616, 617


def p_kernel():
    entry("p_kernel")
    a("s_cmp_ge_u32 s2, %d" % P_END)
    a("s_cbranch_scc1 L_exit")
    if PROF:
        a("s_memrealtime s[56:57]")
    a("s_load_dwordx16 s[4:19], s[0:1], 0")
    a("s_load_dwordx2 s[24:25], s[0:1], %d" % KA_WS)
    a("v_lshrrev_b32 v1, 6, v0")
    a("v_readfirstlane_b32 s3, v1")
    a("v_and_b32 v1, 63, v0")
    a("v_lshlrev_b32 v2, 4, v1")
    a("v_lshrrev_b32 v3, 4, v1")
    a("v_and_b32 v4, 15, v1")
    a("v_lshlrev_b32 v5, 4, v0")
    a("s_waitcnt lgkmcnt(0)")
    srd(40, 24, 0, WS_USED)
    a("s_cmp_lt_u32 s2, %d" % P_QKV)
    a("s_cbranch_scc1 P_ln")
    a("s_cmp_ge_u32 s2, %d" % P_MISC)
    a("s_cbranch_scc1 P_misc")
    a("s_cmp_ge_u32 s2, %d" % P_W1)
    a("s_cbranch_scc1 P_w12")
    a("s_sub_u32 s29, s2, %d" % P_QKV)
    srd(36, 6, 0, 576 * 1728 * 2)
    a("s_mul_i32 s20, s29, %d" % (8 * 3456))
    a("s_lshl_b32 s21, s3, 10")
    for n in range(3):
        a("s_add_u32 m0, s21, %d" % (n * 9216))
        a("s_add_u32 s22, s20, %d" % (n * 9216))
        a("buffer_load_dwordx4 v5, s[36:39], s22 offen" + PNT + " lds")
    srd(32, 8, 0, 576 * 576 * 2)
    a("s_mov_b32 s20, s29")
    a("s_lshr_b32 s21, s20, 2")
    a("s_and_b32 s22, s20, 3")
    a("v_mul_u32_u24 v6, 911, v0")
    a("v_lshrrev_b32 v6, 16, v6")
    a("v_mul_u32_u24 v7, 72, v6")
    a("v_sub_u32 v7, v0, v7")
    a("s_cmp_ge_u32 s21, 16")
    a("s_cbranch_scc1 P_wo_tail")
    a("s_mul_i32 s23, s21, 36")
    a("s_lshl_b32 s26, s22, 2")
    a("s_add_u32 s23, s23, s26")
    a("v_lshrrev_b32 v8, 2, v6")
    a("v_and_b32 v9, 3, v6")
    a("s_branch P_wo_go")
    a("P_wo_tail:")
    a("s_sub_u32 s23, s20, 64")
    a("s_mul_i32 s23, s23, 72")
    a("s_add_u32 s23, s23, 16")
    a("v_lshrrev_b32 v8, 1, v6")
    a("v_and_b32 v9, 1, v6")
    a("P_wo_go:")
    a("v_mul_u32_u24 v8, 18, v8")
    a("v_add_u32 v8, v8, v9")
    a("v_mul_u32_u24 v8, 1152, v8")
    a("v_lshl_add_u32 v8, v7, 4, v8")
    a("s_mul_i32 s23, s23, 1152")
    a("s_lshl_b32 s26, s3, 10")
    a("s_add_u32 m0, s26, 27648")
    a("buffer_load_dwordx4 v8, s[32:35], s23 offen" + PNT + " lds")
    a("s_mul_i32 s27, s21, 4608")
    a("s_add_u32 s27, s27, %s" % hex(WOP))
    a("v_lshrrev_b32 v8, 4, v7")
    a("v_lshlrev_b32 v8, 10, v8")
    a("v_and_b32 v9, 15, v7")
    a("v_lshl_add_u32 v8, v9, 4, v8")
    a("s_lshl_b32 s26, s22, 7")
    a("v_mov_b32 v10, s26")
    a("v_lshlrev_b32 v11, 1, v10")
    a("v_cmp_gt_u32 vcc, 64, v7")
    a("v_cndmask_b32 v10, v10, v11, vcc")
    a("v_add_u32 v8, v8, v10")
    a("s_mov_b32 s26, %d" % WOS)
    a("v_mad_u32_u24 v3, v6, s26, v8")
    a("v_lshlrev_b32 v4, 1, v0")
    a("s_lshr_b32 s22, s29, 2")
    a("s_lshl_b32 s22, s22, 12")
    a("s_and_b32 s23, s29, 3")
    a("s_lshl_b32 s23, s23, 8")
    a("s_add_u32 s22, s22, s23")
    a("v_mov_b32 v15, %s" % hex(OOB))
    for n in range(4):
        u, src, dst = 6, 48 + n, 52 + n
        a("v_add_u32 v6, %d, v0" % (n * 576))
        a("v_lshrrev_b32 v7, 6, v6")
        a("v_bfe_u32 v8, v6, 4, 2")
        a("v_and_b32 v9, 15, v6")
        a("v_mul_u32_u24 v10, 36, v7")
        a("v_mul_u32_u24 v11, 1152, v8")
        a("v_lshl_add_u32 v11, v9, 1, v11")
        a("v_lshrrev_b32 v12, 1, v9")
        a("v_mul_u32_u24 v12, 1152, v12")
        a("v_and_b32 v13, 1, v9")
        a("v_lshl_add_u32 v12, v13, 1, v12")
        a("v_add_u32 v12, 32, v12")
        a("v_cmp_eq_u32 vcc, 3, v8")
        a("v_cndmask_b32 v11, v11, v12, vcc")
        a("v_cmp_lt_u32 s[44:45], 5, v9")
        a("s_and_b64 s[%d:%d], vcc, s[44:45]" % (46 + 2 * n, 47 + 2 * n))
        a("v_cndmask_b32 v11, v11, 0, s[%d:%d]" % (46 + 2 * n, 47 + 2 * n))
        a("v_add_u32 v%d, v10, v11" % src)
        a("v_mul_u32_u24 v7, 73728, v7")
        a("v_lshl_add_u32 v7, v8, 10, v7")
        a("v_lshl_add_u32 v%d, v9, 4, v7" % dst)
        if n == 3:
            a("v_cmp_gt_u32 vcc, 2048, v6")
            a("v_cndmask_b32 v%d, v15, v%d, vcc" % (dst, dst))
            a("v_cndmask_b32 v%d, 0, v%d, vcc" % (src, src))
    a("s_waitcnt vmcnt(0)")
    a("s_barrier")
    for n in range(4):
        for j in range(8):
            a("ds_read_u16 v%d, v%d offset:%d" % (16 + n * 8 + j, 48 + n, j * 3456))
        if n % 2 == 1:
            a("s_waitcnt lgkmcnt(0)")
            for m in (n - 1, n):
                for k in range(4):
                    a("v_lshl_or_b32 v%d, v%d, 16, v%d" % (16 + m * 8 + k, 16 + m * 8 + 2 * k + 1, 16 + m * 8 + 2 * k))
                    a("v_cndmask_b32 v%d, v%d, 0, s[%d:%d]" % (16 + m * 8 + k, 16 + m * 8 + k, 46 + 2 * m, 47 + 2 * m))
                a("buffer_store_dwordx4 %s, v%d, s[40:43], s22 offen%s" % (q4(16 + m * 8), 52 + m, ST))
    for j in range(8):
        a("ds_read_u16 v%d, v4 offset:%d" % (56 + j, 27648 + j * 1152))
    a("s_waitcnt lgkmcnt(0)")
    for k in range(4):
        a("v_lshl_or_b32 v%d, v%d, 16, v%d" % (56 + k, 56 + 2 * k + 1, 56 + 2 * k))
    a("buffer_store_dwordx4 v[56:59], v3, s[40:43], s27 offen%s" % ST)
    a("s_branch P_end" if PROF else "s_endpgm")

    a("P_ln:")
    srd(36, 4, 0, ACT)
    a("s_sub_u32 s20, s2, %d" % P_LN)
    a("v_lshrrev_b32 v1, 3, v0")
    a("v_and_b32 v7, 7, v0")
    a("v_lshlrev_b32 v8, 4, v1")
    a("v_mul_u32_u24 v9, 1152, v7")
    a("v_add_u32 v9, v9, v8")
    a("s_mul_i32 s21, s20, %d" % (8 * 1152))
    a("buffer_load_dwordx4 v[16:19], v9, s[36:39], s21 offen" + PNT)
    a("v_lshlrev_b32 v3, 8, v1")
    a("v_lshl_add_u32 v3, v7, 4, v3")
    a("s_lshr_b32 s22, s20, 1")
    a("s_mul_i32 s22, s22, 18432")
    a("s_and_b32 s23, s20, 1")
    a("s_lshl_b32 s23, s23, 7")
    a("s_add_u32 s22, s22, s23")
    a("s_add_u32 s22, s22, %s" % hex(LB + oY))
    a("v_mul_u32_u24 v11, 48, v7")
    a("v_lshrrev_b32 v12, 6, v0")
    a("v_lshl_add_u32 v12, v12, 2, v11")
    AC, T, P = 24, 32, 48
    a("s_waitcnt vmcnt(0)")
    for k in range(4):
        unpack(AC + 2 * k, 16 + k)

    def reduce9(s, ldsoff, out):
        xsum(s, s + 1, ror8=True)
        a("ds_write_b32 v12, v%d offset:%d" % (s, ldsoff))
        a("s_waitcnt lgkmcnt(0)")
        a("s_barrier")
        a("ds_read_b128 %s, v11 offset:%d" % (q4(P), ldsoff))
        a("ds_read_b128 %s, v11 offset:%d" % (q4(P + 4), ldsoff + 16))
        a("ds_read_b32 v%d, v11 offset:%d" % (P + 8, ldsoff + 32))
        a("s_waitcnt lgkmcnt(0)")
        a("v_pk_add_f32 %s, %s, %s" % (q2(P), q2(P), q2(P + 2)))
        a("v_pk_add_f32 %s, %s, %s" % (q2(P + 4), q2(P + 4), q2(P + 6)))
        a("v_pk_add_f32 %s, %s, %s" % (q2(P), q2(P), q2(P + 4)))
        a("v_add_f32 v%d, v%d, v%d" % (P, P, P + 1))
        a("v_add_f32 v%d, v%d, v%d" % (P, P, P + 8))
        a("v_mul_f32 v%d, %s, v%d" % (out, f32bits(1.0 / 576.0), P))

    S, MEAN, VAR, M, SD = 40, 42, 43, 44, 45
    a("v_pk_add_f32 %s, %s, %s" % (q2(T), q2(AC), q2(AC + 2)))
    a("v_pk_add_f32 %s, %s, %s" % (q2(T + 2), q2(AC + 4), q2(AC + 6)))
    a("v_pk_add_f32 %s, %s, %s" % (q2(T), q2(T), q2(T + 2)))
    a("v_add_f32 v%d, v%d, v%d" % (S, T, T + 1))
    reduce9(S, 0, MEAN)
    for k in range(8):
        a("v_sub_f32 v%d, v%d, v%d" % (T + k, AC + k, MEAN))
    a("v_mul_f32 v%d, v%d, v%d" % (S, T, T))
    for k in range(1, 8):
        a("v_fmac_f32 v%d, v%d, v%d" % (S, T + k, T + k))
    reduce9(S, 512, VAR)
    ln_scalars(MEAN, VAR, M, SD)
    a("v_rcp_f32 v%d, v%d" % (SD, SD))
    for k in range(8):
        a("v_sub_f32 v%d, v%d, v%d" % (AC + k, AC + k, M))
    for k in range(4):
        cvt(T + k, AC + 2 * k, AC + 2 * k + 1)
    for k in range(4):
        unpack(AC + 2 * k, T + k)
    for k in range(8):
        a("v_mul_f32 v%d, v%d, v%d" % (AC + k, AC + k, SD))
    for k in range(4):
        cvt(T + k, AC + 2 * k, AC + 2 * k + 1)
    a("buffer_store_dwordx4 %s, v3, s[40:43], s22 offen%s" % (q4(T), ST))
    a("s_branch P_end" if PROF else "s_endpgm")

    a("P_w12:")
    a("v_lshrrev_b32 v5, 3, v1")
    a("v_and_b32 v6, 7, v1")
    a("v_lshlrev_b32 v6, 4, v6")
    a("v_bfe_u32 v7, v1, 2, 2")
    a("v_and_b32 v8, 3, v1")
    a("s_lshl_b32 s21, s3, 12")
    a("s_cmp_ge_u32 s2, %d" % P_W2)
    a("s_cbranch_scc1 P_w2")

    def w12(stride, second):
        for n in range(4):
            a("s_add_u32 m0, s21, %d" % (n * 1024))
            a("buffer_load_dwordx4 v9, s[36:39], s22 offen" + PNT + " lds")
            if n < 3:
                a("s_add_u32 s22, s22, %d" % (8 * stride))

    def w12b(second):
        for tl in range(4):
            a("ds_read_b64_tr_b16 %s, v10 offset:%d" % (q2(16 + tl * 4), tl * 32))
            a("ds_read_b64_tr_b16 %s, v10 offset:%d" % (q2(18 + tl * 4), tl * 32 + second))
        for tl in range(4):
            a("s_waitcnt lgkmcnt(%d)" % (6 - 2 * tl))
            a("s_add_u32 s26, s23, %d" % (tl * 18432))
            a("buffer_store_dwordx4 %s, v2, s[40:43], s26 offen%s" % (q4(16 + tl * 4), ST))

    srd(36, 12, 0, 576 * 4608 * 2)
    a("s_sub_u32 s28, s2, %d" % P_W1)
    a("s_lshr_b32 s20, s28, 1")
    a("s_and_b32 s28, s28, 1")
    a("s_mul_i32 s29, s28, 9")
    a("s_add_u32 s29, s29, s3")
    a("s_mul_i32 s22, s29, %d" % (32 * 9216))
    a("s_lshl_b32 s27, s20, 7")
    a("s_add_u32 s22, s22, s27")
    a("v_mul_u32_u24 v9, 9216, v5")
    a("v_add_u32 v9, v9, v6")
    w12(9216, 512)
    srd(32, 14, 0, 4608 * 2)
    a("v_lshlrev_b32 v5, 1, v1")
    a("buffer_load_ushort v40, v5, s[32:35], s27 offen")
    a("v_lshl_add_u32 v10, v3, 3, v7")
    a("v_lshlrev_b32 v10, 7, v10")
    a("v_lshl_add_u32 v10, v8, 3, v10")
    a("v_add_u32 v10, s21, v10")
    a("s_mul_i32 s23, s20, %d" % (4 * 18432))
    a("s_lshl_b32 s26, s29, 10")
    a("s_add_u32 s23, s23, s26")
    a("s_add_u32 s23, s23, %s" % hex(W1P))
    for k in range(4):
        a("v_mov_b32 v%d, 0x3f803f80" % (12 + k))
    a("s_lshl_b32 s26, s3, 8")
    a("s_add_u32 s26, s26, 36864")
    a("v_lshlrev_b32 v11, 4, v3")
    a("v_add_u32 v11, s26, v11")
    a("s_waitcnt vmcnt(0)")
    w12b(512)
    for tl in range(4):
        a("%s %s, %s, v[12:15], 0" % (MF, q4(48 + tl * 4), q4(16 + tl * 4)))
    for tl in range(4):
        a("ds_write_b128 v11, %s offset:%d" % (q4(48 + tl * 4), tl * 64))
    a("s_waitcnt lgkmcnt(0)")
    a("s_barrier")
    a("s_cmp_lg_u32 s3, 0")
    a("s_cbranch_scc1 P_end")
    a("v_lshlrev_b32 v11, 2, v1")
    for w in range(9):
        a("ds_read_b32 v%d, v11 offset:%d" % (48 + w, 36864 + w * 256))
    a("s_waitcnt lgkmcnt(0)")
    for w in range(1, 9):
        a("v_add_f32 v48, v48, v%d" % (48 + w))
    a("v_sub_f32 v48, 0, v48")
    cvt(60, 48, 48)
    a("v_and_b32 v49, 0xffff0000, v60")
    a("v_sub_f32 v49, v48, v49")
    cvt(49, 49, 49)
    a("v_and_b32 v49, 0xffff, v49")
    a("v_lshl_or_b32 v61, v40, 16, v49")
    a("s_lshl_b32 s27, s20, 10")
    a("s_lshl_b32 s28, s28, 3")
    a("s_add_u32 s27, s27, s28")
    a("s_add_u32 s27, s27, %s" % hex(AUG))
    a("buffer_store_dwordx2 v[60:61], v2, s[40:43], s27 offen%s" % ST)
    a("s_branch P_end" if PROF else "s_endpgm")

    a("P_w2:")
    srd(36, 16, 0, 576 * 4608 * 2)
    a("s_sub_u32 s20, s2, %d" % P_W2)
    a("s_mul_i32 s22, s20, %d" % (32 * 1152))
    a("s_lshl_b32 s23, s3, 7")
    a("s_add_u32 s22, s22, s23")
    a("v_mul_u32_u24 v9, 1152, v5")
    a("v_add_u32 v9, v9, v6")
    w12(1152, 2048)
    a("v_lshl_add_u32 v10, v3, 2, v7")
    a("v_lshlrev_b32 v10, 7, v10")
    a("v_lshl_add_u32 v10, v8, 3, v10")
    a("v_add_u32 v10, s21, v10")
    a("s_mul_i32 s26, s20, 3641")
    a("s_lshr_b32 s26, s26, 16")
    a("s_mul_i32 s27, s26, 18")
    a("s_sub_u32 s27, s20, s27")
    a("s_mul_i32 s23, s26, %d" % (36 * 18432))
    a("s_mul_i32 s26, s3, %d" % (4 * 18432))
    a("s_add_u32 s23, s23, s26")
    a("s_lshl_b32 s27, s27, 10")
    a("s_add_u32 s23, s23, s27")
    a("s_add_u32 s23, s23, %s" % hex(W2P))
    a("s_waitcnt vmcnt(0)")
    w12b(2048)
    a("s_branch P_end" if PROF else "s_endpgm")

    a("P_misc:")
    for k in range(4):
        a("v_mov_b32 v%d, 0" % (16 + k))
    a("v_lshlrev_b32 v5, 4, v0")
    srd(36, 24, CNT, CNTB)
    for k in range(4):
        a("s_mov_b32 s22, %d" % (k * 9216))
        a("buffer_store_dwordx4 v[16:19], v5, s[36:39], s22 offen%s" % ST)
    a("s_getpc_b64 s[20:21]")
    a("P_pc:")
    a("s_add_u32 s36, s20, main_kernel-P_pc")
    a("s_addc_u32 s37, s21, 0")
    a("s_mov_b32 s38, L_code_end-main_kernel")
    a("s_mov_b32 s39, 0x20000")
    a("s_mov_b32 s22, 0")
    for k in range(7):
        a("buffer_load_dwordx4 %s, v5, s[36:39], s22 offen" % q4(20 + 4 * k))
        a("s_add_u32 s22, s22, 9216")
    a("s_waitcnt vmcnt(0)")
    a("P_end:")
    if PROF:
        a("s_waitcnt vmcnt(0)")
        a("s_memrealtime s[58:59]")
        srd(36, 24, STAMP + (1 << 19), 1 << 19)
        a("s_lshl_b32 s60, s2, 4")
        a("s_add_u32 s60, s60, s3")
        a("s_lshl_b32 s60, s60, 3")
        a("s_waitcnt lgkmcnt(0)")
        a("v_mov_b32 v0, s56")
        a("v_mov_b32 v1, s58")
        a("buffer_store_dwordx2 v[0:1], off, s[36:39], s60")
    a("L_exit:")
    a("s_endpgm")


L_SCR, L_OX, L_Y, L_WA, L_WB = 0, 8192, 20480, 112640, 20480
MAIN_LDS = 163840
uid = [0]


def main_kernel():
    entry("main_kernel")
    a("s_cmp_ge_u32 s2, 256")
    a("s_cbranch_scc1 L_exit2")
    a("s_load_dwordx2 s[24:25], s[0:1], %d" % KA_WS)
    a("s_load_dwordx4 s[28:31], s[0:1], %d" % KA_B2)
    a("s_load_dwordx2 s[32:33], s[0:1], %d" % KA_X)
    a("s_mov_b32 s34, %d" % ACT)
    a("s_mov_b32 s35, 0x20000")
    vm = VM()
    lg = VM("lgkmcnt", 15)
    a("v_lshrrev_b32 v1, 6, v0")
    a("v_readfirstlane_b32 s3, v1")
    a("v_and_b32 v1, 63, v0")
    a("v_lshlrev_b32 v2, 4, v1")
    a("v_lshrrev_b32 v3, 4, v1")
    a("v_and_b32 v4, 15, v1")
    b = MAPB
    spx = 8 // b
    tpx = 32 // spx
    lb = {1: 0, 2: 1, 4: 2, 8: 3}
    a("s_and_b32 s6, s2, 7")
    a("s_lshr_b32 s7, s2, 3")
    a("s_and_b32 s4, s6, %d" % (b - 1))
    a("s_lshl_b32 s4, s4, %d" % lb[spx])
    a("s_and_b32 s8, s7, %d" % (spx - 1))
    a("s_add_u32 s4, s4, s8")
    a("s_lshr_b32 s5, s6, %d" % lb[b])
    a("s_mul_i32 s5, s5, %d" % tpx)
    a("s_lshr_b32 s8, s7, %d" % lb[spx])
    a("s_add_u32 s5, s5, s8")
    a("s_mov_b32 s44, %s" % hex(LB))
    a("s_mov_b32 s45, 0")
    a("s_mov_b32 s46, 8")
    a("s_mov_b32 s27, 1")
    a("s_mov_b32 s97, 1152")
    a("s_mul_i32 s47, s5, %d" % TB)

    KY, KW = 48, 54

    def k1_setup(rot):
        if rot:
            mod_small("s6", "s5", AROT)
            a("s_mul_i32 s6, s6, %d" % (6 // AROT))
        else:
            a("s_mov_b32 s6, 0")
        for G in range(6):
            a("s_mul_i32 s%d, s6, 3072" % (KY + G))
            a("s_add_u32 s%d, s%d, s44" % (KY + G, KY + G))
            a("s_mul_i32 s%d, s6, 12288" % (KW + G))
            if G < 5:
                a("s_add_u32 s6, s6, 1")
                a("s_cmp_eq_u32 s6, 6")
                a("s_cselect_b32 s6, 0, s6")
        a("s_mul_i32 s8, s3, 18432")
        a("s_add_u32 s8, s8, s47")
        a("v_add_u32 v7, s8, v2")
        a("s_min_u32 s9, s3, 2")
        a("s_lshl_b32 s11, s9, 10")
        a("s_add_u32 s8, s47, s11")
        a("s_sub_u32 s8, s8, 18432")
        a("s_cmp_eq_u32 s5, 0")
        a("s_cselect_b32 s8, %s, s8" % hex(OOB))
        a("v_add_u32 v8, s8, v2")
        a("s_add_u32 s11, s11, %d" % L_Y)
        a("s_mul_i32 s10, s3, 18432")
        a("s_add_u32 s10, s10, %d" % (L_Y + 18432))
        a("v_add_u32 v5, %d, v2" % L_Y)
        a("v_add_u32 v6, %d, v2" % (L_Y + 46080))

    def kw_voffs():
        a("s_lshl_b32 s12, s4, 2")
        a("s_add_u32 s12, s12, s3")
        a("s_mul_i32 s12, s12, 73728")
        a("v_add_u32 v9, s12, v2")
        a("v_add_u32 v10, 4096, v9")
        a("v_add_u32 v11, 8192, v9")

    k1_setup(True)
    kw_voffs()
    a("s_waitcnt lgkmcnt(0)")
    srd(40, 24, 0, WS_USED)
    a("s_add_u32 s20, s24, %s" % hex(CNT))
    a("s_addc_u32 s21, s25, 0")
    a("s_lshl_b32 s22, s5, 2")
    a("s_add_u32 s22, s22, s3")
    a("s_lshl_b32 s22, s22, 7")
    if PROF:
        srd(92, 24, STAMP, 1 << 20)
        a("s_lshl_b32 s96, s2, 2")
        a("s_add_u32 s96, s96, s3")
        a("s_lshl_b32 s96, s96, 8")
    rstamp(12)
    stamp(0)

    def arrive(off="s22", ret=True):
        if ret:
            a("s_mov_b32 s16, 1")
            a("s_atomic_add s16, s[20:21], %s glc" % off)
        else:
            a("s_atomic_add s27, s[20:21], %s" % off)

    def poll(target, offs=("s22",), issued=None):
        uid[0] += 1
        u = uid[0]

        def rd():
            for k, o in enumerate(offs):
                a("s_mov_b32 s%d, 0" % (16 + k))
                a("s_atomic_add s%d, s[20:21], %s glc" % (16 + k, o))
        a("s_mov_b32 s18, %d" % SPIN)
        if issued is None:
            rd()
        lg.all()
        if issued == "arrive":
            a("s_add_u32 s16, s16, 1")
        a("H%d_l:" % u)
        if len(offs) > 1:
            a("s_min_u32 s16, s16, s17")
        a("s_cmp_ge_u32 s16, %s" % target)
        a("s_cbranch_scc1 H%d_b" % u)
        a("s_sub_u32 s18, s18, 1")
        a("s_cbranch_scc1 H%d_b" % u)
        rd()
        a("s_waitcnt lgkmcnt(0)")
        a("s_branch H%d_l" % u)
        a("H%d_b:" % u)

    def hop(tag, pre_a=(), pre_b=()):
        for f in pre_a:
            f()
        vm.wait(tag)
        arrive()
        for f in pre_b:
            f()
        poll("s46", issued="arrive")
        a("s_add_u32 s46, s46, 8")

    QA, KA, VA, CA, YF = 16, 32, 52, 72, 92
    MSK, SM = 132, 136

    def wslot(i, t):
        return ((i % 16) * 4 + t) * 4

    def wload1(i, t, sreg=None):
        def f():
            s = sreg or "s%d" % (KW + i // 3)
            vm.op("buffer_load_dwordx4 %s, v%d, s[40:43], %s offen offset:%d" % (q4(wslot(i, t), "a"), 9 + i % 3, s, t * 1024), ("w", i))
        return f

    def ydma1(G, k):
        def f():
            if k < 3:
                a("s_add_u32 m0, s10, %d" % (G * 3072))
                vm.op("buffer_load_dwordx4 v7, s[40:43], s%d offen offset:%d%s lds" % (KY + G, k * 1024, LD), ("y", G))
            else:
                a("s_add_u32 m0, s11, %d" % (G * 3072))
                vm.op("buffer_load_dwordx4 v8, s[40:43], s%d offen%s lds" % (KY + G, LD), ("y", G))
        return f

    def yread1(i, T):
        def f():
            off = (T * 18 + i) * 1024
            base = 5
            if off >= 46080:
                off -= 46080
                base = 6
            a("ds_read_b128 %s, v%d offset:%d" % (q4(YF + (i % 2) * 20 + T * 4), base, off))
        return f

    def wodma(region, n):
        def f():
            a("s_add_u32 m0, s%d, %d" % ((13, 14)[region], (n // 4) * 4096))
            a("s_add_u32 s15, s%d, %d" % ((60, 61)[region], (n // 4) * 4096))
            vm.op("buffer_load_dwordx4 v2, s[40:43], s15 offen offset:%d lds" % ((n % 4) * 1024), "wo")
        return f

    def attn_consts():
        a("v_and_b32 v13, 1, v4")
        a("v_cmp_eq_u32 s[70:71], 1, v13")
        a("v_lshl_add_u32 v14, v3, 2, v13")
        a("v_cmp_ge_u32 s[72:73], v4, v14")
        a("v_add_u32 v14, 2, v14")
        a("v_cmp_ge_u32 s[74:75], v4, v14")
        a("v_mov_b32 v13, 0xffff")
        a("v_mov_b32 v14, 0xffff0000")
        a("v_cndmask_b32 v13, v13, v14, s[70:71]")
        a("v_cndmask_b32 v%d, v13, 0, s[72:73]" % (MSK + 0))
        a("v_cndmask_b32 v%d, v13, 0, s[74:75]" % (MSK + 1))
        a("v_cndmask_b32 v%d, 0, v13, s[72:73]" % (MSK + 2))
        a("v_cndmask_b32 v%d, 0, v13, s[74:75]" % (MSK + 3))
        a("s_cmp_eq_u32 s5, 0")
        a("s_cselect_b32 s14, %s, 0" % f32bits(-1e9 * math.sqrt(18.0)))
        for k in range(4):
            a("v_mov_b32 v%d, s14" % (SM + k))
        a("s_lshl_b32 s14, s3, 11")
        a("v_lshlrev_b32 v141, 9, v3")
        a("v_lshl_add_u32 v141, v4, 1, v141")
        a("v_add_u32 v141, s14, v141")
        a("v_and_b32 v142, 1, v4")
        a("v_mul_u32_u24 v142, 160, v142")
        a("v_lshl_add_u32 v142, v3, 3, v142")
        a("s_add_u32 s14, s14, 512")
        a("v_add_u32 v142, s14, v142")
        a("s_lshr_b32 s14, s3, 1")
        a("s_lshl_b32 s14, s14, 10")
        a("s_and_b32 s15, s3, 1")
        a("s_lshl_b32 s15, s15, 3")
        a("s_add_u32 s14, s14, s15")
        a("s_add_u32 s14, s14, %d" % L_OX)
        a("v_add_u32 v143, s14, v2")
        a("s_lshl_b32 s14, s3, 2")
        a("s_add_u32 s14, s14, %d" % (L_OX + 2048))
        a("v_add_u32 v144, s14, v2")
        a("s_mul_i32 s14, s3, 3072")
        a("s_add_u32 s14, s14, %d" % L_OX)
        a("v_add_u32 v145, s14, v2")
        a("s_mul_i32 s60, s4, %d" % WOS)
        a("s_add_u32 s60, s60, %s" % hex(WOP))
        a("s_mul_i32 s14, s3, 9216")
        a("s_add_u32 s61, s60, s14")
        a("s_add_u32 s61, s61, 46080")
        a("s_mul_i32 s14, s3, 18432")
        a("s_add_u32 s14, s14, %d" % L_Y)
        a("s_mul_i32 s13, s3, 12288")
        a("s_add_u32 s60, s60, s13")
        a("s_add_u32 s13, s13, %d" % L_WA)

    def qkv(pre):
        if not pre:
            for k in range(4):
                ydma1(0, k)()
            for t in range(4):
                wload1(0, t)()
            for k in range(4):
                ydma1(1, k)()
            for i in range(1, APRE):
                for t in range(4):
                    wload1(i, t)()
            if TOUCH:
                a("s_getpc_b64 s[36:37]")
                a("M_pc:")
                a("s_mov_b32 s38, L_code_end-M_pc")
                a("s_mov_b32 s39, 0x20000")
                a("s_lshr_b32 s6, s2, 3")
                a("s_lshl_b32 s6, s6, 2")
                a("s_add_u32 s6, s6, s3")
                a("s_lshl_b32 s6, s6, 9")
                a("v_lshlrev_b32 v249, 3, v1")
                vm.op("buffer_load_dword v250, v249, s[36:39], s6 offen", "t")
            attn_consts()
            ahead_y = 2
        else:
            for i in range(pre):
                vm.ops.append(("w", i))
            for G in range(3):
                for k in range(4):
                    ydma1(G, k)()
            ahead_y = 3
        vm.wait(("y", 0))
        a("s_barrier")
        for T in range(5):
            yread1(0, T)()
        wo_list = [wodma(0, n) for n in range(12)] + [wodma(1, n) for n in range(9)]
        for i in range(18):
            if i + 1 < 18 and (i + 1) % 3 == 0:
                vm.wait(("y", (i + 1) // 3))
                a("s_barrier")
            a("s_waitcnt lgkmcnt(0)")
            vm.wait(("w", i))
            mem = []
            if i // 3 + ahead_y < 6:
                mem += [ydma1(i // 3 + ahead_y, k) for k in ((0, 3), (1,), (2,))[i % 3]]
            nxt = i + APRE
            if pre:
                nxt = pre + i - 1 if i >= 1 else None
                if nxt is not None and nxt - 16 >= i:
                    nxt = None
            if nxt is not None and nxt < 18:
                mem += [wload1(nxt, t) for t in range(4)]
            if (i >= 7) if pre else (nxt >= 18):
                take = -(-len(wo_list) // (18 - i))
                assert i >= 11 or len(wo_list) - take >= 9
                mem += wo_list[:take]
                wo_list = wo_list[take:]
            rds = [yread1(i + 1, T) for T in range(5)] if i + 1 < 18 else []
            slots = {}
            for k, f in enumerate(mem):
                slots.setdefault(1 + (k * 18) // len(mem), []).append(f)
            for k, f in enumerate(rds):
                slots.setdefault(2 * k, []).append(f)
            m = 0
            for T in range(5):
                y = q4(YF + (i % 2) * 20 + T * 4)
                for t, base in ((1, KA), (2, VA), (3, CA), (0, QA)):
                    if t == 0 and T == 0:
                        continue
                    d = base + (T - 1 if t == 0 else T) * 4
                    w = q4(wslot(i, t), "a")
                    c = "0" if i == 0 else q4(d)
                    A_, B_ = (y, w) if t == 2 else (w, y)
                    a("%s %s, %s, %s, %s" % (MF, q4(d), A_, B_, c))
                    for f in slots.get(m, []):
                        f()
                    m += 1
        assert not wo_list, len(wo_list)

    qkv(0)
    a("s_branch K1_attn")
    a("K1_second:")
    vm.done = -1
    vm.ops = []
    qkv(PF)
    a("K1_attn:")
    vm.ops = []
    vm.done = -1
    stamp(1)
    vm.ops.append("wo")
    side = []
    XR = 208

    def k2_addr():
        a("s_mul_i32 s62, s3, 18432")
        a("s_add_u32 s62, s62, s47")
        a("s_add_u32 s62, s62, s44")
        a("s_mul_i32 s63, s4, 2304")
        a("s_add_u32 s63, s63, s62")
        a("v_and_b32 v220, 1, v3")
        a("v_lshlrev_b32 v220, 9, v220")
        a("v_lshl_add_u32 v220, v4, 4, v220")
        a("v_lshrrev_b32 v221, 5, v1")
        a("v_lshl_add_u32 v220, v221, 8, v220")
        a("v_mov_b32 v221, %s" % hex(OOB))
        a("v_cmp_eq_u32 vcc, 0, v3")
        a("v_cndmask_b32 v221, v221, v220, vcc")
        a("v_cndmask_b32 v222, 0, -1, vcc")
        a("s_add_u32 s65, s63, %s" % hex(oX1))
        a("s_sub_u32 s64, s63, s44")
        a("s_mul_i32 s6, s4, 144")
        a("s_sub_u32 s7, s62, s44")
        a("s_add_u32 s6, s6, s7")
        a("v_lshrrev_b32 v206, 4, v220")
        a("v_and_b32 v206, 0x30, v206")
        a("v_mad_u32_u24 v206, v4, s97, v206")
        a("s_cmp_eq_u32 s45, 0")
        a("s_cselect_b32 s64, s6, s64")
        a("s_cselect_b32 s6, 64, 1024")
        a("s_cselect_b64 s[8:9], -1, 0")
        a("v_cndmask_b32 v206, v220, v206, s[8:9]")
        a("v_add_u32 v207, s6, v206")
        a("v_add_u32 v223, s6, v207")
        a("v_cndmask_b32 v223, v221, v223, vcc")

    def xload(kk):
        def f():
            vm.op("buffer_load_dwordx4 %s, v%d, s[32:35], s64 offen%s" % (q4(XR + 4 * kk), (206, 207, 223)[kk], LD), "x")
        return f

    k2_addr()
    side += [xload(k) for k in range(3)]
    cnt = [0]

    def v(text):
        a(text)
        cnt[0] += 1
        if cnt[0] % 12 == 0 and side:
            side.pop(0)()

    QO, KO, VP, X0, V2 = 148, 164, 184, 194, 196
    for T in range(5):
        xd = X0 if T == 0 else QO + (T - 1) * 4 + 2
        v("v_cvt_pk_bf16_f32 v%d, v%d, v%d" % (xd, CA + T * 4, CA + T * 4 + 1))
        a("ds_write_b16 v141, v%d offset:%d" % (xd, T * 32))
        a("ds_write_b16_d16_hi v141, v%d offset:%d" % (xd, T * 32 + 160))
    for T in range(5):
        v("v_cvt_pk_bf16_f32 v%d, v%d, v%d" % (KO + T * 4 + 2, CA + T * 4 + 2, CA + T * 4 + 3))
        v("v_cvt_pk_bf16_f32 v%d, v%d, v%d" % (KO + T * 4, KA + T * 4, KA + T * 4 + 1))
        v("v_cvt_pk_bf16_f32 v%d, v%d, v%d" % (KO + T * 4 + 1, KA + T * 4 + 2, KA + T * 4 + 3))
        v("v_mov_b32 v%d, 0" % (KO + T * 4 + 3))
        if T:
            q = QO + (T - 1) * 4
            v("v_cvt_pk_bf16_f32 v%d, v%d, v%d" % (q, QA + (T - 1) * 4, QA + (T - 1) * 4 + 1))
            v("v_cvt_pk_bf16_f32 v%d, v%d, v%d" % (q + 1, QA + (T - 1) * 4 + 2, QA + (T - 1) * 4 + 3))
            v("v_mov_b32 v%d, 0" % (q + 3))
    for T in range(5):
        a("ds_read_b64 %s, v142 offset:%d" % (q2(V2 + 2 * T), T * 32))
    SP = YF
    Ts = range(1, 5)
    for T in Ts:
        q = q4(QO + (T - 1) * 4)
        sp = SP + (T - 1) * 8
        a("%s %s, %s, %s, %s" % (MF, q4(sp), q4(KO + (T - 1) * 4), q, q4(SM) if T == 1 else "0"))
        a("%s %s, %s, %s, 0" % (MF, q4(sp + 4), q4(KO + T * 4), q))
    for T in range(5):
        v("v_cvt_pk_bf16_f32 v%d, v%d, v%d" % (VP + 2 * T, VA + T * 4, VA + T * 4 + 1))
        v("v_cvt_pk_bf16_f32 v%d, v%d, v%d" % (VP + 2 * T + 1, VA + T * 4 + 2, VA + T * 4 + 3))
    a("s_mov_b32 s19, %s" % f32bits((18.0 ** -0.5) * math.log2(math.e)))
    W = lambda T, k: 16 + (T - 1) * 8 + k
    for T in Ts:
        sp = SP + (T - 1) * 8
        v("v_cndmask_b32 v%d, v%d, v%d, s[70:71]" % (W(T, 2), sp + 4, sp + 5))
        v("v_cndmask_b32 v%d, v%d, v%d, s[70:71]" % (W(T, 3), sp + 0, sp + 1))
        v("v_cndmask_b32 v%d, v%d, v%d, s[70:71]" % (W(T, 4), sp + 6, sp + 7))
        v("v_cndmask_b32 v%d, v%d, v%d, s[70:71]" % (W(T, 5), sp + 2, sp + 3))
        v("v_cndmask_b32 v%d, v%d, v%d, s[72:73]" % (W(T, 0), W(T, 3), W(T, 2)))
        v("v_cndmask_b32 v%d, v%d, v%d, s[74:75]" % (W(T, 1), W(T, 5), W(T, 4)))
        v("v_max_f32 v%d, v%d, v%d" % (W(T, 2), W(T, 0), W(T, 1)))
        v("v_mov_b32 v%d, v%d" % (W(T, 3), W(T, 2)))

    def xlane(op):
        for T in Ts:
            v("v_permlane16_swap_b32 v%d, v%d" % (W(T, 2), W(T, 3)))
        for T in Ts:
            v("%s v%d, v%d, v%d" % (op, W(T, 2), W(T, 2), W(T, 3)))
            v("v_mov_b32 v%d, v%d" % (W(T, 3), W(T, 2)))
        for T in Ts:
            v("v_permlane32_swap_b32 v%d, v%d" % (W(T, 2), W(T, 3)))
        for T in Ts:
            v("%s v%d, v%d, v%d" % (op, W(T, 2), W(T, 2), W(T, 3)))

    xlane("v_max_f32")
    for T in Ts:
        v("v_sub_f32 v%d, v%d, v%d" % (W(T, 0), W(T, 0), W(T, 2)))
        v("v_sub_f32 v%d, v%d, v%d" % (W(T, 1), W(T, 1), W(T, 2)))
        v("v_mul_f32 v%d, s19, v%d" % (W(T, 0), W(T, 0)))
        v("v_mul_f32 v%d, s19, v%d" % (W(T, 1), W(T, 1)))
    for T in Ts:
        v("v_exp_f32 v%d, v%d" % (W(T, 0), W(T, 0)))
        v("v_exp_f32 v%d, v%d" % (W(T, 1), W(T, 1)))
    for T in Ts:
        v("v_add_f32 v%d, v%d, v%d" % (W(T, 2), W(T, 0), W(T, 1)))
        v("v_mov_b32 v%d, v%d" % (W(T, 3), W(T, 2)))
    xlane("v_add_f32")
    for T in Ts:
        v("v_rcp_f32 v%d, v%d" % (W(T, 2), W(T, 2)))
    for T in Ts:
        v("v_mul_f32 v%d, v%d, v%d" % (W(T, 0), W(T, 0), W(T, 2)))
        v("v_mul_f32 v%d, v%d, v%d" % (W(T, 1), W(T, 1), W(T, 2)))
        v("v_cvt_pk_bf16_f32 v%d, v%d, v%d" % (W(T, 0), W(T, 0), W(T, 0)))
        v("v_cvt_pk_bf16_f32 v%d, v%d, v%d" % (W(T, 1), W(T, 1), W(T, 1)))
        v("v_and_b32 v%d, v%d, v%d" % (W(T, 4), W(T, 0), MSK + 0))
        v("v_and_b32 v%d, v%d, v%d" % (W(T, 5), W(T, 1), MSK + 1))
        v("v_and_b32 v%d, v%d, v%d" % (W(T, 6), W(T, 0), MSK + 2))
        v("v_and_b32 v%d, v%d, v%d" % (W(T, 7), W(T, 1), MSK + 3))
    while side:
        side.pop(0)()
    a("s_waitcnt lgkmcnt(0)")
    for T in Ts:
        sp = SP + (T - 1) * 8
        p = q4(W(T, 4))
        a("%s %s, %s, %s, 0" % (MF, q4(sp), q4(VP + 2 * (T - 1)), p))
        a("%s %s, %s, %s, 0" % (MF, q4(sp + 4), q4(V2 + 2 * (T - 1)), p))
    a("s_add_u32 s66, s62, %s" % hex(oO))
    a("s_lshl_b32 s67, s4, 11")
    a("s_add_u32 s67, s67, s66")
    a("s_lshl_b32 s68, s4, 8")
    a("s_add_u32 s68, s68, s66")
    a("s_add_u32 s68, s68, 16384")
    for T in Ts:
        sp = SP + (T - 1) * 8
        o = 48 + (T - 1) * 4
        cvt(o, sp, sp + 1)
        cvt(o + 1, sp + 2, sp + 3)
        cvt(o + 2, sp + 4, sp + 5)
        a("ds_write_b64 v143, %s offset:%d" % (q2(o), (T - 1) * 3072))
        a("ds_write_b32 v144, v%d offset:%d" % (o + 2, (T - 1) * 3072))
    a("s_waitcnt lgkmcnt(0)")
    vm.wait("wo")
    a("s_barrier")
    for st in range(3):
        a("ds_read_b128 %s, v145 offset:%d" % (q4(224 + st * 4), st * 1024))
    for st in range(3):
        a("s_waitcnt lgkmcnt(%d)" % (2 - st))
        if st < 2:
            vm.op("buffer_store_dwordx4 %s, v2, s[40:43], s67 offen offset:%d%s" % (q4(224 + st * 4), st * 1024, ST), "st")
        else:
            vm.op("buffer_store_dwordx4 %s, v221, s[40:43], s68 offen%s" % (q4(232), ST), "st")
    stamp(2)

    WS = 48
    ACC, FIN, AUGW, TMP, KC, AB = 144, 160, 176, 180, 192, 204
    PK = 204

    def ring(q):
        return 16 + (q % NR) * 4

    def m_voffs():
        a("s_mul_i32 s9, s4, 36")
        a("s_add_u32 s9, s9, s3")
        a("s_mul_i32 s11, s9, 18432")
        a("s_add_u32 s11, s11, %s" % hex(W1P))
        a("v_add_u32 v7, s11, v2")
        for k in range(1, 5):
            a("v_add_u32 v%d, %d, v7" % (7 + k, 4096 * k))
        a("s_lshl_b32 s11, s9, 8")
        a("s_add_u32 s11, s11, %s" % hex(AUG))
        a("v_lshl_add_u32 v12, v4, 4, s11")
        for n in range(9):
            a("s_mov_b32 s%d, %d" % (WS + n, n * 4 * 18432))

    W2T, STT = 76, 57
    sst = lambda n: (57 + n) if n < 3 else (85 + n - 3)

    def mload(q):
        def f():
            n, s = divmod(q, 18)
            sr = WS + n if n < 9 else W2T + n - 9
            vm.op("buffer_load_dwordx4 %s, v%d, s[40:43], s%d offen offset:%d" % (q4(ring(q)), 7 + s // 4, sr, (s % 4) * 1024), ("m", q))
        return f

    def aload(n):
        vm.op("buffer_load_dwordx4 %s, v12, s[40:43], s%d offen" % (q4(AUGW), 91), ("aug", n))

    def kslot(ks, tl):
        return ((ks % 12) * 5 + tl) * 4

    def kread(ks, tl):
        def f():
            base, off = (13, ks * 4608) if ks < 10 else (14, ((ks - 10) >> 1) * 18432 + ((ks - 10) & 1) * 4608)
            if tl == 4:
                base += 2
            lg.op("ds_read_b128 %s, v%d offset:%d" % (q4(kslot(ks, tl), "a"), base if base != 16 else 6, off + tl * 1024), ("k", ks))
        return f

    def k2_pre():
        a("v_add_u32 v13, %d, v2" % L_WA)
        a("v_add_u32 v14, %d, v2" % L_WB)
        a("v_and_b32 v15, 7, v4")
        a("v_lshlrev_b32 v15, 4, v15")
        a("v_lshl_add_u32 v15, v3, 7, v15")
        a("v_add_u32 v6, %d, v15" % L_WB)
        a("v_add_u32 v15, %d, v15" % L_WA)
        for ks in range(K2PRE):
            for tl in range(5):
                kread(ks, tl)()

    XU = 224
    def x_unpack():
        for k in range(12):
            unpack(XU + 2 * k, XR + k)

    m_voffs()
    hop("st", pre_a=[mload(q) for q in range(8)],
        pre_b=[k2_pre] + [mload(q) for q in range(8, 18)] + [x_unpack])
    stamp(3)

    OFR, KAC = 88, 160
    a("v_add_u32 v5, 4096, v2")
    rest = [kread(ks, tl) for ks in range(K2PRE, 12) for tl in range(5)]
    for ks in range(18):
        if ks % 8 == 0:
            a("s_add_u32 s15, s66, %d" % (ks * 1024))
        vm.op("buffer_load_dwordx4 %s, v%d, s[40:43], s15 offen offset:%d%s" % (q4(OFR + ks * 4), (2, 5)[(ks % 8) // 4], (ks % 4) * 1024, LD), ("o", ks))
        for f in rest[:3]:
            f()
        rest = rest[3:]
    assert not rest
    for ks in range(18):
        vm.wait(("o", ks))
        lg.wait(("k", ks))
        for tl in range(5):
            a("%s %s, %s, %s, %s" % (MF, q4(KAC + tl * 4), q4(kslot(ks, tl), "a"), q4(OFR + ks * 4), "0" if ks == 0 else q4(KAC + tl * 4)))
            if ks < 6:
                kread(ks + 12, tl)()
    a("s_barrier")
    TP, TU = 180, 88
    for tl in range(5):
        cvt(TP + 2 * tl, KAC + 4 * tl, KAC + 4 * tl + 1)
        cvt(TP + 2 * tl + 1, KAC + 4 * tl + 2, KAC + 4 * tl + 3)
    for kk in range(3):
        a("v_permlane16_swap_b32 v%d, v%d" % (TP + 4 * kk, TP + 4 * kk + 2))
        a("v_permlane16_swap_b32 v%d, v%d" % (TP + 4 * kk + 1, TP + 4 * kk + 3))
    for k in range(8, 12):
        a("v_and_b32 v%d, v%d, v222" % (TP + k, TP + k))
    for kk in range(3):
        for k in range(4 * kk, 4 * kk + 4):
            unpack(TU + 2 * k, TP + k)
        for k in range(4 * kk, 4 * kk + 4):
            a("v_pk_add_f32 %s, %s, %s" % (q2(TU + 2 * k), q2(TU + 2 * k), q2(XU + 2 * k)))
        for k in range(4 * kk, 4 * kk + 4):
            cvt(XR + k, TU + 2 * k, TU + 2 * k + 1)
        vm.op("buffer_store_dwordx4 %s, v%d, s[40:43], s65 offen offset:%d%s" % (q4(XR + 4 * kk), 220 if kk < 2 else 221, kk * 1024, ST), "st")
    for k in range(12):
        unpack(TU + 2 * k, XR + k)
    S0 = 112
    a("v_pk_add_f32 %s, %s, %s" % (q2(S0), q2(TU), q2(TU + 2)))
    a("v_pk_add_f32 %s, %s, %s" % (q2(S0 + 2), q2(TU + 4), q2(TU + 6)))
    for k in range(4, 12, 2):
        a("v_pk_add_f32 %s, %s, %s" % (q2(S0), q2(S0), q2(TU + 2 * k)))
        a("v_pk_add_f32 %s, %s, %s" % (q2(S0 + 2), q2(S0 + 2), q2(TU + 2 * k + 2)))
    a("v_pk_add_f32 %s, %s, %s" % (q2(S0), q2(S0), q2(S0 + 2)))
    a("v_add_f32 v%d, v%d, v%d" % (S0, S0, S0 + 1))
    xsum(S0, S0 + 1)
    a("v_mul_f32 v%d, %s, v%d" % (S0 + 4, f32bits(1.0 / 72.0), S0))
    a("v_sub_f32 v%d, 0, v%d" % (S0 + 6, S0 + 4))
    a("v_mov_b32 v%d, v%d" % (S0 + 7, S0 + 6))
    a("v_and_b32 v%d, v%d, v222" % (S0 + 8, S0 + 6))
    a("v_mov_b32 v%d, v%d" % (S0 + 9, S0 + 8))
    for k in range(12):
        a("v_pk_add_f32 %s, %s, %s" % (q2(TU + 2 * k), q2(TU + 2 * k), q2(S0 + 6 if k < 8 else S0 + 8)))
    a("v_pk_mul_f32 %s, %s, %s" % (q2(S0), q2(TU), q2(TU)))
    a("v_pk_mul_f32 %s, %s, %s" % (q2(S0 + 2), q2(TU + 2), q2(TU + 2)))
    for k in range(2, 12):
        r = S0 + 2 * (k % 2)
        a("v_pk_fma_f32 %s, %s, %s, %s" % (q2(r), q2(TU + 2 * k), q2(TU + 2 * k), q2(r)))
    a("v_pk_add_f32 %s, %s, %s" % (q2(S0), q2(S0), q2(S0 + 2)))
    a("v_add_f32 v%d, v%d, v%d" % (S0 + 5, S0, S0 + 1))
    xsum(S0 + 5, S0 + 1)
    a("s_lshl_b32 s15, s5, 12")
    a("s_add_u32 s69, s15, s44")
    a("s_add_u32 s69, s69, %s" % hex(oST))
    a("s_lshl_b32 s15, s4, 9")
    a("s_lshl_b32 s19, s3, 7")
    a("s_add_u32 s15, s15, s19")
    a("s_add_u32 s15, s15, s69")
    a("v_lshrrev_b32 v%d, 1, v221" % (S0 + 1))
    vm.op("buffer_store_dwordx2 %s, v%d, s[40:43], s15 offen%s" % (q2(S0 + 4), S0 + 1, ST), "st")
    stamp(4)

    def m_setup():
        mod_small("s6", "s5", MROT)
        a("s_mul_i32 s6, s6, %d" % (NROT // MROT))
        a("s_mul_i32 s10, s3, %d" % (8 * 18432))
        a("s_add_u32 s10, s10, %s" % hex(W2P - W1P))
        a("s_lshl_b32 s11, s5, 3")
        a("s_add_u32 s11, s11, s4")
        a("s_mul_i32 s11, s11, %d" % TB)
        a("s_add_u32 s11, s11, s44")
        a("s_add_u32 s11, s11, %s" % hex(oPART))
        a("s_mul_i32 s14, s3, 4608")
        a("s_add_u32 s11, s11, s14")
        for n in range(9):
            a("s_mul_i32 s%d, s6, 18432" % (W2T + n))
            a("s_add_u32 s%d, s%d, s10" % (W2T + n, W2T + n))
            a("s_lshl_b32 s%d, s6, 9" % sst(n))
            a("s_add_u32 s%d, s%d, s11" % (sst(n), sst(n)))
            if n < NROT - 1:
                a("s_add_u32 s6, s6, 1")
                a("s_cmp_eq_u32 s6, %d" % NROT)
                a("s_cselect_b32 s6, 0, s6")
            else:
                a("s_mov_b32 s6, %d" % (n + 1))
        a("v_add_u32 v13, 36864, v2")
        a("v_add_u32 v14, %d, v2" % TB)
        a("v_add_u32 v15, %d, v2" % (TB + 36864))
        a("v_and_b32 v5, 1, v3")
        a("v_mul_u32_u24 v5, 18432, v5")
        a("v_lshl_add_u32 v5, v4, 4, v5")
        a("v_lshrrev_b32 v6, 5, v1")
        a("v_lshl_add_u32 v5, v6, 8, v5")
        a("v_add_u32 v6, 36864, v5")
        a("s_lshr_b32 s14, s3, 1")
        a("s_lshl_b32 s14, s14, 10")
        a("s_and_b32 s15, s3, 1")
        a("s_lshl_b32 s15, s15, 3")
        a("s_add_u32 s14, s14, s15")
        a("v_add_u32 v222, s14, v14")
        a("v_add_u32 v223, s14, v15")
        a("v_lshlrev_b32 v220, 3, v1")
        a("s_mul_i32 s8, s3, 18432")
        a("s_add_u32 s62, s62, %s" % hex(oX1))
        a("s_mov_b32 s91, 0")

    hop("st", pre_a=[mload(q) for q in range(26, 32)],
        pre_b=[m_setup, lambda: aload(0)] + [mload(q) for q in range(18, 26)])
    stamp(5)

    def fr(T, s):
        k = s * 4 + T
        return q4(k * 4, "a") if k < 64 else q4(224 + (k - 64) * 4)

    for s in range(18):
        if s % 3 == 0:
            a("s_add_u32 m0, s8, %d" % (s * 1024))
            a("s_add_u32 s11, s62, %d" % (s * 1024))
        vm.op("buffer_load_dwordx4 v2, s[40:43], s11 offen offset:%d%s lds" % ((s % 3) * 1024, LD), ("y", s // 6))

    c0 = -2.0 * math.sqrt(2.0 / math.pi) * math.log2(math.e)

    def stat_ops():
        ops = []
        e = lambda t, c=4: ops.append((t, c))
        m = lambda j: FIN + 2 * j
        t0 = TMP
        MEAN, VAR, M1, S1, M2, S2, RS = t0, t0 + 1, t0 + 2, t0 + 3, t0 + 4, t0 + 5, t0 + 6
        ops.append(("WAIT", 0))
        e("v_add_f32 v%d, v%d, v%d" % (MEAN, m(0), m(1)))
        e("v_add_f32 v%d, v%d, v%d" % (VAR, m(0) + 1, m(1) + 1))
        for j in range(2, 8):
            e("v_add_f32 v%d, v%d, v%d" % (MEAN, MEAN, m(j)))
            e("v_add_f32 v%d, v%d, v%d" % (VAR, VAR, m(j) + 1))
        e("v_mul_f32 v%d, %s, v%d" % (MEAN, f32bits(0.125), MEAN))
        e("v_mul_f32 v%d, %s, v%d" % (VAR, f32bits(1.0 / 72.0), VAR))
        for j in range(8):
            e("v_sub_f32 v%d, v%d, v%d" % (m(j), m(j), MEAN))
        for j in range(8):
            e("v_fmac_f32 v%d, v%d, v%d" % (VAR, m(j), m(j)))
        e("v_mul_f32 v%d, %s, v%d" % (VAR, f32bits(0.125), VAR))
        ln_scalars(MEAN, VAR, M1, S1, e)
        e("v_rcp_f32 v%d, v%d" % (RS, S1), 8)
        e("v_sub_f32 v%d, v%d, v%d" % (MEAN, MEAN, M1))
        e("v_mul_f32 v%d, v%d, v%d" % (MEAN, MEAN, RS))
        e("v_mul_f32 v%d, v%d, v%d" % (VAR, VAR, RS))
        e("v_mul_f32 v%d, v%d, v%d" % (VAR, VAR, RS))
        ln_scalars(MEAN, VAR, M2, S2, e)
        MU, R = M1, S1
        e("v_fmac_f32 v%d, v%d, v%d" % (MU, M2, S1))
        e("v_mul_f32 v%d, v%d, v%d" % (R, S1, S2))
        D0, D1, D2, H = t0 + 7, t0 + 8, t0 + 9, t0 + 10
        e("v_cvt_pk_bf16_f32 v%d, v%d, v%d" % (D1, MU, R))
        e("v_lshlrev_b32 v%d, 16, v%d" % (H, D1))
        e("v_sub_f32 v%d, v%d, v%d" % (H, MU, H))
        e("v_cvt_pk_bf16_f32 v%d, v%d, v%d" % (D0, MU, H))
        e("v_and_b32 v%d, 0xffff0000, v%d" % (H, D1))
        e("v_sub_f32 v%d, v%d, v%d" % (H, R, H))
        e("v_cvt_pk_bf16_f32 v%d, v%d, v%d" % (D2, MU, H))
        for T in range(4):
            e("v_cmp_eq_u32 vcc, %d, v3" % T)
            for k, d in enumerate((D0, D1, D0, D2)):
                e("v_cndmask_b32 v%d, 0, v%d, vcc" % (AB + 4 * T + k, d))
        r0, r1, r2, r3 = KC + 8, KC + 9, KC + 10, KC + 11
        e("v_mov_b32 v%d, v%d" % (r0, R))
        e("v_mov_b32 v%d, v%d" % (r2, R))
        e("v_permlane32_swap_b32 v%d, v%d" % (r0, r2))
        e("v_mov_b32 v%d, v%d" % (r1, r0))
        e("v_mov_b32 v%d, v%d" % (r3, r2))
        e("v_permlane16_swap_b32 v%d, v%d" % (r0, r1))
        e("v_permlane16_swap_b32 v%d, v%d" % (r2, r3))
        for T in range(4):
            e("v_rcp_f32 v%d, v%d" % (KC + T, KC + 8 + T), 8)
        for T in range(4):
            e("v_mul_f32 v%d, v%d, v%d" % (KC + 4 + T, KC + T, KC + T))
            e("v_mul_f32 v%d, %s, v%d" % (KC + T, f32bits(c0), KC + T))
            e("v_mul_f32 v%d, v%d, v%d" % (KC + 4 + T, KC + 4 + T, KC + T))
            e("v_mul_f32 v%d, %s, v%d" % (KC + 4 + T, f32bits(0.044715), KC + 4 + T))
        return ops

    def gelu_ops(tl):
        ops = []
        for T in range(4):
            x = [FIN + 4 * T + r for r in range(4)]
            t = [TMP + (T % 2) * 6 + r for r in range(4)]
            pk = TMP + (T % 2) * 6 + 4
            for r in range(4):
                ops.append(("v_mul_f32 v%d, v%d, v%d" % (t[r], x[r], x[r]), 4))
            for r in range(4):
                ops.append(("v_fma_f32 v%d, v%d, v%d, v%d" % (t[r], t[r], KC + 4 + T, KC + T), 4))
            for r in range(4):
                ops.append(("v_mul_f32 v%d, v%d, v%d" % (t[r], t[r], x[r]), 4))
            for r in range(4):
                ops.append(("v_exp_f32 v%d, v%d" % (t[r], t[r]), 8))
            for r in range(4):
                ops.append(("v_fma_f32 v%d, v%d, v%d, v%d" % (t[r], t[r], KC + 8 + T, KC + 8 + T), 4))
            for r in range(4):
                ops.append(("v_rcp_f32 v%d, v%d" % (t[r], t[r]), 8))
            for r in range(4):
                ops.append(("v_mul_f32 v%d, v%d, v%d" % (t[r], t[r], x[r]), 4))
            ops.append(("v_cvt_pk_bf16_f32 v%d, v%d, v%d" % (pk, t[0], t[1]), 4))
            ops.append(("v_cvt_pk_bf16_f32 v%d, v%d, v%d" % (pk + 1, t[2], t[3]), 4))
            ops.append(("ds_write_b64 v%d, %s offset:%d" % ((222, 223)[T // 2], q2(pk), (T % 2) * 18432 + tl * 2048), 4))
        return ops

    def out_ops(n2):
        ops = []
        for T in range(4):
            ops.append(("v_cvt_pk_bf16_f32 v%d, v%d, v%d" % (PK + 2 * T, FIN + 4 * T, FIN + 4 * T + 1), 4))
            ops.append(("v_cvt_pk_bf16_f32 v%d, v%d, v%d" % (PK + 2 * T + 1, FIN + 4 * T + 2, FIN + 4 * T + 3), 4))
            if T % 2 == 1:
                ops.append(("v_permlane16_swap_b32 v%d, v%d" % (PK + 2 * T - 2, PK + 2 * T), 4))
                ops.append(("v_permlane16_swap_b32 v%d, v%d" % (PK + 2 * T - 1, PK + 2 * T + 1), 4))
                ops.append(("buffer_store_dwordx4 %s, v%d, s[40:43], s%d offen%s" % (q4(PK + 2 * T - 2), (5, 6)[T // 2], sst(n2), ST), 4))
        return ops

    cur = [0]

    def emit_fill(op):
        if op == "WAIT":
            vm.wait("stat")
        elif op.startswith("ds_"):
            lg.op(op, "hw")
        elif op.startswith("buffer_store"):
            vm.op(op, "st")
            cur[0] += 1
            if cur[0] == 2 * NE1:
                vm.ops[-1] = "st5"
        elif op.startswith("PL"):
            pload(int(op[2:]))
        else:
            a(op)

    def act1(T, s, second):
        off = ((T % 2) * 18 + s) * 1024
        base = ((2, 13), (14, 15))[second][T // 2]
        lg.op("ds_read_b128 %s, v%d offset:%d" % (fr(T, s), base, off), ("act", second, s))

    DT, XQ, BQ, SEL, XP = 88, 108, 128, 148, 156
    PR = lambda n: 32 + 4 * n if n < 14 else 16 + 4 * (n - 14)
    order = [(k, st, hf) for k in range(5) for st in range(2) for hf in range(2) if not (k == 4 and st == 1)]

    def r_addr_ops():
        ops = []
        e = lambda t: ops.append((t, 4))
        e("s_lshr_b32 s6, s4, 1")
        e("s_mul_i32 s6, s6, 18432")
        e("s_and_b32 s7, s4, 1")
        e("s_lshl_b32 s7, s7, 7")
        e("s_add_u32 s6, s6, s7")
        e("s_mul_i32 s7, s3, 4608")
        e("s_add_u32 s6, s6, s7")
        e("s_add_u32 s6, s6, s44")
        e("s_lshl_b32 s7, s47, 3")
        e("s_add_u32 s48, s6, s7")
        e("s_add_u32 s48, s48, %s" % hex(oPART))
        e("s_add_u32 s49, s48, %d" % (4 * TB))
        e("s_add_u32 s50, s48, 4096")
        e("s_add_u32 s51, s49, 4096")
        e("s_add_u32 s6, s6, s47")
        e("s_add_u32 s52, s6, %s" % hex(oX1))
        e("s_add_u32 s53, s52, 4096")
        e("s_add_u32 s54, s6, %s" % hex(LS + oXA))
        e("s_add_u32 s55, s6, %s" % hex(LS + oY))
        e("v_and_b32 v176, 7, v1")
        e("v_bfe_u32 v177, v1, 3, 1")
        e("v_lshlrev_b32 v178, 4, v176")
        e("v_lshl_add_u32 v178, v177, 8, v178")
        e("v_mul_u32_u24 v179, %d, v3" % TB)
        e("v_add_u32 v179, v179, v178")
        e("v_and_b32 v180, 1, v3")
        e("v_lshrrev_b32 v181, 1, v3")
        e("v_lshl_add_u32 v182, v181, 9, v178")
        e("v_lshl_add_u32 v183, v180, 10, v182")
        e("v_lshl_add_u32 v182, v180, 3, v182")
        e("v_lshlrev_b32 v184, 4, v177")
        e("v_lshl_add_u32 v184, v181, 5, v184")
        e("v_mul_u32_u24 v185, 1152, v176")
        e("v_add_u32 v185, v185, v184")
        e("v_lshl_add_u32 v185, v180, 6, v185")
        e("v_lshl_add_u32 v184, v180, 3, v184")
        e("v_mov_b32 v188, %s" % hex(OOB))
        e("v_cmp_eq_u32 vcc, 0, v3")
        e("v_add_u32 v186, 4096, v183")
        e("v_cndmask_b32 v186, v188, v186, vcc")
        e("v_cndmask_b32 v187, v188, v185, vcc")
        e("v_cmp_gt_u32 vcc, 2, v3")
        e("v_cndmask_b32 v188, 0, -1, vcc")
        return ops

    def r_setup():
        kw_voffs()
        a("s_cmp_eq_u32 s45, 0")
        a("s_cselect_b32 s60, 0, %s" % hex(OOB))
        for G in range(1, 6):
            a("s_add_u32 s%d, s60, %d" % (60 + G, G * 12288))
        srd(36, 28, 0, 1152)
        a("s_mul_i32 s56, s3, 288")
        for k in range(5):
            vm.op("buffer_load_dwordx2 %s, v182, s[40:43], s%d offen offset:%d%s" % (q2(XP + 2 * k), 52 if k < 4 else 53, (k % 4) * 1024, LD), "rx")
            vm.op("buffer_load_dwordx2 %s, v184, s[36:39], s56 offen offset:%d" % (q2(XP + 10 + 2 * k), k * 64), "rx")
        a("v_and_b32 v189, 1, v4")
        a("v_lshlrev_b32 v189, 4, v189")
        a("v_mov_b32 v190, 0x3f80")
        a("v_lshlrev_b32 v189, v189, v190")
        a("v_lshrrev_b32 v190, 1, v4")
        for k in range(8):
            a("v_cmp_eq_u32 vcc, %d, v190" % k)
            a("v_cndmask_b32 v%d, 0, v189, vcc" % (SEL + k))
        a("v_mul_u32_u24 v190, 16, v176")
        a("s_lshl_b32 s7, s3, 2")
        a("v_add_u32 v191, s7, v190")


    def pload(n):
        k, st, hf = order[n]
        vm.op("buffer_load_dwordx4 %s, v179, s[40:43], s%d offen offset:%d%s" % (q4(PR(n)), 48 + hf + (2 if k == 4 else 0), ((4 * k + 2 * st) * 256) % 4096, LD), ("p", n))

    NQ = 18 * 18
    AHEAD = 3
    for n in range(18):
        gemm = 1 if n < 9 else 2
        npos = 19 if gemm == 1 else 18
        if n == 0:
            fill, g0, g1 = stat_ops(), 30, 70
        elif n <= 9:
            fill, g0, g1 = gelu_ops(n - 1), 3, (70 if n < 9 else 50)
        elif n == 15:
            fill, g0, g1 = out_ops(n - 10) + r_addr_ops(), 8, 68
        else:
            fill, g0, g1 = out_ops(n - 10), 8, 24
        rd = n in (0, 9)
        if n == 0:
            vm.wait(("y", 0))
            a("s_barrier")
            for j in range(8):
                vm.op("buffer_load_dwordx2 %s, v220, s[40:43], s69 offen offset:%d%s" % (q2(FIN + 2 * j), j * 512, LD), "stat")
        if n == 16 and NE1:
            poll("s46", issued="poll")
            a("s_add_u32 s46, s46, 8")
        if n == 17:
            vm.wait("st")
            arrive(ret=False)
        if n == 1:
            stamp(6)
        if n == 9:
            stamp(7)
            lg.wait("hw")
            a("s_barrier")
        if n == 10:
            stamp(8)
        if rd:
            for s in range(AHEAD):
                for T in range(4):
                    act1(T, s, n == 9)
        total = sum(c for _, c in fill)
        fi = spent = m = 0
        for s in range(npos):
            q = n * 18 + s
            if rd and s < 18:
                sa = s + AHEAD
                if sa < 18:
                    if n == 0 and sa % 6 == 0:
                        vm.wait(("y", sa // 6))
                        a("s_barrier")
                    if n == 9 and sa == 16:
                        assert fi == len(fill)
                        lg.wait("hw")
                        a("s_barrier")
                lg.wait(("act", n == 9, s))
            if NE1 and n == 10 + NE1 and s == 4:
                vm.wait("st5")
                arrive(ret=False)
            if NE1 and n == 15 and s == 10:
                a("s_mov_b32 s16, 0")
                a("s_atomic_add s16, s[20:21], s22 glc")
            if n == 16 and 7 <= s < 7 + 2 * NE1:
                pload(s - 7)
            if s == 18:
                assert fi == len(fill)
                vm.wait(("aug", n))
            elif s % 2 == 0:
                vm.wait(("m", q)); vm.wait(("m", q + 1))
            for T in range(4):
                last = s == npos - 1
                d = (FIN if last else ACC) + 4 * T
                c = "0" if s == 0 else q4(ACC + 4 * T)
                if s == 18:
                    a("%s %s, %s, %s, %s" % (MF, q4(d), q4(AUGW), q4(AB + 4 * T), c))
                else:
                    a("%s %s, %s, %s, %s" % (MF, q4(d), q4(ring(q)), fr(T, s), c))
                if rd and s + AHEAD < 18:
                    act1(T, s + AHEAD, n == 9)
                if T == 3:
                    if s < 18 and q + NR < NQ:
                        mload(q + NR)()
                    if s == 18 and n < 8:
                        a("s_add_u32 s91, s91, 1024")
                        aload(n + 1)
                if fill and g0 <= m <= g1:
                    budget = total * (m - g0 + 1) / (g1 - g0 + 1)
                    while fi < len(fill) and spent + fill[fi][1] / 2 <= budget:
                        emit_fill(fill[fi][0])
                        spent += fill[fi][1]
                        fi += 1
                m += 1
        assert fi == len(fill), (n, fi, len(fill))
    for op, _ in out_ops(8):
        emit_fill(op)
    stamp(9)

    def r_unpack():
        vm.wait("rx")
        for k in range(8, 10):
            a("v_and_b32 v%d, v%d, v188" % (XP + k, XP + k))
            a("v_and_b32 v%d, v%d, v188" % (XP + 10 + k, XP + 10 + k))
        for k in range(10):
            unpack(XQ + 2 * k, XP + k)
            unpack(BQ + 2 * k, XP + 10 + k)

    kpf = [wload1(i, t, "s%d" % (60 + i // 3)) for i in range(PF) for t in range(4)]

    def pmfma(n):
        k, st, hf = order[n]
        vm.wait(("p", n))
        a("%s %s, %s, %s, %s" % (MF, q4(DT + 4 * k), q4(SEL + 4 * st), q4(PR(n)), q4(BQ + 4 * k) if (st == 0 and hf == 0) else q4(DT + 4 * k)))

    def early():
        a("s_mov_b32 s16, 0")
        a("s_atomic_add s16, s[20:21], s22 glc")
        r_setup()
        poll("s46", issued="poll")
        a("s_add_u32 s46, s46, 8")
        for n in range(2 * NE1, 2 * NE1 + 6):
            pload(n)

    def early2():
        for n in range(2 * NE1 + 6, 14):
            pload(n)
        r_unpack()
        for n in range(2 * NE1):
            pmfma(n)

    n2 = E("PFB", 0)
    hop("st", pre_a=[early], pre_b=[early2] + kpf[:n2])
    kpf = kpf[n2:]
    stamp(10)
    for n in range(14, 18):
        pload(n)
    for n in range(2 * NE1, 18):
        pmfma(n)
    n4 = E("PFD", 0)
    for f in kpf[:n4]:
        f()
    kpf = kpf[n4:]
    TK = 192
    for k in range(10):
        cvt(TK + k, DT + 2 * k, DT + 2 * k + 1)
    for k in range(10):
        unpack(DT + 2 * k, TK + k)
    for k in range(10):
        a("v_pk_add_f32 %s, %s, %s" % (q2(DT + 2 * k), q2(DT + 2 * k), q2(XQ + 2 * k)))
    for k in range(10):
        cvt(TK + k, DT + 2 * k, DT + 2 * k + 1)
    for k in range(10):
        unpack(DT + 2 * k, TK + k)
    for kk in range(3):
        a("v_permlane16_swap_b32 v%d, v%d" % (TK + 4 * kk, TK + 4 * kk + 2))
        a("v_permlane16_swap_b32 v%d, v%d" % (TK + 4 * kk + 1, TK + 4 * kk + 3))
    a("s_cmp_eq_u32 s45, 0")
    a("s_cbranch_scc1 R_mid")
    srd(36, 30, 0, ACT)
    a("s_lshl_b32 s6, s5, 3")
    a("s_add_u32 s6, s6, s4")
    a("s_mul_i32 s6, s6, %d" % (8 * 1152))
    a("s_add_u32 s6, s6, s56")
    for kk in range(3):
        a("buffer_store_dwordx4 %s, v%d, s[36:39], s6 offen offset:%d" % (q4(TK + 4 * kk), 185 if kk < 2 else 187, kk * 128))
    stamp(11)
    rstamp(12)
    a("L_exit2:")
    a("s_endpgm")
    a("R_mid:")
    for kk in range(3):
        vm.op("buffer_store_dwordx4 %s, v%d, s[40:43], s54 offen offset:%d%s" % (q4(TK + 4 * kk), 183 if kk < 2 else 186, (kk % 2) * 2048, ST), "st")
    S0 = XQ

    def reduce4(s, ldsoff, out):
        xsum(s, s + 1, ror8=True)
        a("ds_write_b32 v191, v%d offset:%d" % (s, ldsoff))
        a("s_waitcnt lgkmcnt(0)")
        a("s_barrier")
        a("ds_read_b128 %s, v190 offset:%d" % (q4(S0 + 4), ldsoff))
        a("s_waitcnt lgkmcnt(0)")
        a("v_pk_add_f32 %s, %s, %s" % (q2(S0 + 4), q2(S0 + 4), q2(S0 + 6)))
        a("v_add_f32 v%d, v%d, v%d" % (S0 + 4, S0 + 4, S0 + 5))
        a("v_mul_f32 v%d, %s, v%d" % (out, f32bits(1.0 / 576.0), S0 + 4))

    a("v_pk_add_f32 %s, %s, %s" % (q2(S0), q2(DT), q2(DT + 2)))
    a("v_pk_add_f32 %s, %s, %s" % (q2(S0 + 2), q2(DT + 4), q2(DT + 6)))
    for k in range(4, 10, 2):
        a("v_pk_add_f32 %s, %s, %s" % (q2(S0), q2(S0), q2(DT + 2 * k)))
        a("v_pk_add_f32 %s, %s, %s" % (q2(S0 + 2), q2(S0 + 2), q2(DT + 2 * k + 2)))
    a("v_pk_add_f32 %s, %s, %s" % (q2(S0), q2(S0), q2(S0 + 2)))
    a("v_add_f32 v%d, v%d, v%d" % (S0, S0, S0 + 1))
    MEAN, VAR, M, SD = S0 + 8, S0 + 9, S0 + 10, S0 + 12
    reduce4(S0, 0, MEAN)
    a("v_sub_f32 v%d, 0, v%d" % (S0 + 14, MEAN))
    a("v_mov_b32 v%d, v%d" % (S0 + 15, S0 + 14))
    a("v_and_b32 v%d, v%d, v188" % (S0 + 16, S0 + 14))
    a("v_mov_b32 v%d, v%d" % (S0 + 17, S0 + 16))
    for k in range(10):
        a("v_pk_add_f32 %s, %s, %s" % (q2(BQ + 2 * k), q2(DT + 2 * k), q2(S0 + 14 if k < 8 else S0 + 16)))
    a("v_pk_mul_f32 %s, %s, %s" % (q2(S0), q2(BQ), q2(BQ)))
    a("v_pk_mul_f32 %s, %s, %s" % (q2(S0 + 2), q2(BQ + 2), q2(BQ + 2)))
    for k in range(2, 10):
        r = S0 + 2 * (k % 2)
        a("v_pk_fma_f32 %s, %s, %s, %s" % (q2(r), q2(BQ + 2 * k), q2(BQ + 2 * k), q2(r)))
    a("v_pk_add_f32 %s, %s, %s" % (q2(S0), q2(S0), q2(S0 + 2)))
    a("v_add_f32 v%d, v%d, v%d" % (S0, S0, S0 + 1))
    reduce4(S0, 256, VAR)
    ln_scalars(MEAN, VAR, M, SD)
    a("v_rcp_f32 v%d, v%d" % (SD, SD))
    a("v_sub_f32 v%d, 0, v%d" % (M, M))
    a("v_mov_b32 v%d, v%d" % (M + 1, M))
    a("v_mov_b32 v%d, v%d" % (SD + 1, SD))
    for k in range(10):
        a("v_pk_add_f32 %s, %s, %s" % (q2(DT + 2 * k), q2(DT + 2 * k), q2(M)))
    TY = 204
    for k in range(10):
        cvt(TY + k, DT + 2 * k, DT + 2 * k + 1)
    for k in range(10):
        unpack(DT + 2 * k, TY + k)
    for k in range(10):
        a("v_pk_mul_f32 %s, %s, %s" % (q2(DT + 2 * k), q2(DT + 2 * k), q2(SD)))
    for k in range(10):
        cvt(TY + k, DT + 2 * k, DT + 2 * k + 1)
    for kk in range(3):
        a("v_permlane16_swap_b32 v%d, v%d" % (TY + 4 * kk, TY + 4 * kk + 2))
        a("v_permlane16_swap_b32 v%d, v%d" % (TY + 4 * kk + 1, TY + 4 * kk + 3))
    for kk in range(3):
        vm.op("buffer_store_dwordx4 %s, v%d, s[40:43], s55 offen offset:%d%s" % (q4(TY + 4 * kk), 183 if kk < 2 else 186, (kk % 2) * 2048, ST), "st")
    stamp(11)

    def next_layer():
        a("s_add_u32 s44, s44, %s" % hex(LS))
        a("s_mov_b32 s45, 1")
        a("s_add_u32 s32, s24, %s" % hex(LB + LS + oXA))
        a("s_addc_u32 s33, s25, 0")
        k1_setup(False)
        attn_consts()

    a("s_lshr_b32 s6, s4, 1")
    a("s_lshl_b32 s7, s5, 2")
    a("s_add_u32 s6, s6, s7")
    a("s_lshl_b32 s6, s6, 7")
    a("s_add_u32 s19, s6, 16384")
    a("s_add_u32 s23, s22, 16384")
    a("s_max_u32 s7, s7, 1")
    a("s_lshl_b32 s7, s7, 7")
    a("s_add_u32 s26, s7, %d" % (16384 - 128))
    for f in kpf[:10]:
        f()
    vm.wait("st")
    arrive("s19", ret=False)
    for f in kpf[10:]:
        f()
    next_layer()
    poll("8", offs=("s23", "s26"))
    if PROF:
        a("s_add_u32 s96, s96, 128")
    stamp(0)
    a("s_branch K1_second")
    a("L_code_end:")
    a("s_endpgm")


def descriptor(label, vgpr, accum, sgpr):
    return """.amdhsa_kernel %s
  .amdhsa_next_free_vgpr %d
  .amdhsa_next_free_sgpr %d
  .amdhsa_accum_offset %d
  .amdhsa_group_segment_fixed_size 0
  .amdhsa_kernarg_size 88
  .amdhsa_user_sgpr_count 2
  .amdhsa_user_sgpr_kernarg_segment_ptr 1
  .amdhsa_system_sgpr_workgroup_id_x 1
.end_amdhsa_kernel
""" % (label, vgpr, sgpr, accum)


def build():
    launches = [
        ("p_kernel", P_END, 576, 36864 + 2304, 64, 64, 64),
        ("main_kernel", 256, 256, MAIN_LDS, 512, 256, 102),
    ]
    p_kernel()
    main_kernel()
    for e in a.check_branch_seams():
        print("WARN", e, file=sys.stderr)
    head = "; generated by work/gen2.py (hand-written generator)\n"
    for l, g, b, lds, _, _, _ in launches:
        head += "; @launch kernel=%s grid=(%d,1,1) block=(%d,1,1) lds=%d\n" % (l, g, b, lds)
    head += '.amdgcn_target "amdgcn-amd-amdhsa--gfx950"\n.text\n'
    tail = '.section .rodata,"a"\n'
    for l, g, b, lds, v, ac, sg in launches:
        tail += ".p2align 6\n" + descriptor(l, v, ac, sg)
    return head + a.text() + tail


if __name__ == "__main__":
    out = sys.argv[1] if len(sys.argv) > 1 else "cdna_kernels/%s.s" % NAME
    open(out, "w").write(build())
    print("wrote", out)
```

```python
import sys, math, os
from asmlib import Asm, f32bits

NAME = "interleave_layers__sliding_local_dilated__mixer_channel_mlp__prompt"
ACT = 2048 * 576 * 2
TB = 73728
WOS = 82944
WQKVP = 0
WOP = WQKVP + 2304 * 1024
W1P = WOP + 672 * 1024
W2P = W1P + 5184 * 1024
AUG = W2P + 5184 * 1024
CNT = AUG + 72 * 1024
CNTB = 36864
LB = CNT + CNTB
oY, oO, oXA, oX1 = 0, ACT, 2 * ACT, 3 * ACT
oST = 4 * ACT
oPART = 4 * ACT + 128 * 1024
LS = oPART + 8 * ACT
WS_USED = LB + 2 * LS
WS_BYTES = 268435456
OOB = 0x80000000
ST = " sc1"
LD = " sc1"
STAMP = 200 * 1024 * 1024

E = lambda n, d: int(os.environ.get(n, str(d)))
PROF = os.environ.get("PROF", "")
MAPB = E("MAPB", 2)
MROT = E("MROT", 3)
AROT = E("AROT", 2)
APRE = E("APRE", 3)
PF = E("PF", 9)
K2PRE = E("K2PRE", 6)
TOUCH = E("TOUCH", 0)
NE1 = E("NE1", 0)
NROT = NE1 if NE1 else 7
PNT = os.environ.get("PNT", " nt").replace("_", " ")
PV = E("PV", 72)
ABL = os.environ.get("ABL", "")
XST = {0: [s // 6 for s in range(18)], 1: [0] * 3 + [1] * 5 + [2] * 5 + [3] * 5}[E("XS", 1)]
STF = "" if E("FAST", 0) else ST
WSTEP = E("WSTEP", 2)
NR = 32
SPIN = 1 << 16

KA_X, KA_WQKV, KA_WO, KA_BX, KA_W1, KA_B1, KA_W2, KA_B2, KA_OUT, KA_DBG, KA_WS = [8 * i for i in range(11)]
a = Asm()
MF = "v_mfma_f32_16x16x32_bf16"
q4 = lambda b, k="v": "%s[%d:%d]" % (k, b, b + 3)
q2 = lambda b: "v[%d:%d]" % (b, b + 1)


def srd(d, base, off, nbytes):
    if off == 0:
        a("s_mov_b32 s%d, s%d" % (d, base))
        a("s_mov_b32 s%d, s%d" % (d + 1, base + 1))
    else:
        a("s_add_u32 s%d, s%d, %s" % (d, base, off if isinstance(off, str) else hex(off)))
        a("s_addc_u32 s%d, s%d, 0" % (d + 1, base + 1))
    a("s_mov_b32 s%d, %s" % (d + 2, hex(nbytes)))
    a("s_mov_b32 s%d, 0x20000" % (d + 3))


def entry(label):
    a(".p2align 8")
    a(".globl %s" % label)
    a(".type %s,@function" % label)
    a("%s:" % label)


class VM:
    def __init__(self, cnt="vmcnt", maxn=63):
        self.ops, self.cnt, self.maxn, self.done = [], cnt, maxn, -1

    def op(self, text, tag):
        a(text)
        self.ops.append(tag)

    def wait(self, tag):
        last = max(i for i, t in enumerate(self.ops) if t == tag)
        if last <= self.done:
            return
        n = min(len(self.ops) - 1 - last, self.maxn)
        self.done = len(self.ops) - 1 - n
        a("s_waitcnt %s(%d)" % (self.cnt, n))

    def all(self):
        self.done = len(self.ops) - 1
        a("s_waitcnt %s(0)" % self.cnt)


def stamp(k):
    if PROF:
        a("s_memtime s[98:99]")
        a("s_memrealtime s[100:101]")
        a("s_waitcnt lgkmcnt(0)")
        a("v_mov_b32 v0, s98")
        a("buffer_store_dword v0, off, s[92:95], s96 offset:%d" % (4 * k))
        a("v_mov_b32 v0, s100")
        a("buffer_store_dword v0, off, s[92:95], s96 offset:%d" % (4 * k + 64))


def rstamp(k):
    if PROF:
        a("s_memrealtime s[98:99]")
        a("s_waitcnt lgkmcnt(0)")
        a("v_mov_b32 v0, s98")
        a("buffer_store_dword v0, off, s[92:95], s96 offset:%d" % (4 * k))


def unpack(dst, src):
    a("v_lshlrev_b32 v%d, 16, v%d" % (dst, src))
    a("v_and_b32 v%d, 0xffff0000, v%d" % (dst + 1, src))


def cvt(d, x, y):
    a("v_cvt_pk_bf16_f32 v%d, v%d, v%d" % (d, x, y))


def round1(r):
    cvt(r, r, r)
    a("v_and_b32 v%d, 0xffff0000, v%d" % (r, r))


def ln_scalars(mean, var, M, SD, emit=None):
    e = emit or a
    e("v_cvt_pk_bf16_f32 v%d, v%d, v%d" % (M, var, mean))
    e("v_lshlrev_b32 v%d, 16, v%d" % (SD, M))
    e("v_and_b32 v%d, 0xffff0000, v%d" % (M, M))
    e("v_add_f32 v%d, %s, v%d" % (SD, f32bits(1e-5), SD))
    e("v_cvt_pk_bf16_f32 v%d, v%d, v%d" % (SD, SD, SD))
    e("v_and_b32 v%d, 0xffff0000, v%d" % (SD, SD))
    e("v_sqrt_f32 v%d, v%d" % (SD, SD))
    e("v_cvt_pk_bf16_f32 v%d, v%d, v%d" % (SD, SD, SD))
    e("v_and_b32 v%d, 0xffff0000, v%d" % (SD, SD))


def xsum(r, t, rows16=True, rows32=True, ror8=False):
    if ror8:
        a("v_add_f32_dpp v%d, v%d, v%d row_ror:8 row_mask:0xf bank_mask:0xf" % (r, r, r))
    a("v_mov_b32 v%d, v%d" % (t, r))
    a("v_permlane16_swap_b32 v%d, v%d" % (r, t))
    a("v_add_f32 v%d, v%d, v%d" % (r, r, t))
    a("v_mov_b32 v%d, v%d" % (t, r))
    a("v_permlane32_swap_b32 v%d, v%d" % (r, t))
    a("v_add_f32 v%d, v%d, v%d" % (r, r, t))


def mod_small(dst, src, n):
    if n == 1:
        a("s_mov_b32 %s, 0" % dst)
        return
    m = -(-4096 // n)
    assert all((t * m) >> 12 == t // n for t in range(32))
    a("s_mul_i32 %s, %s, %d" % (dst, src, m))
    a("s_lshr_b32 %s, %s, 12" % (dst, dst))
    a("s_mul_i32 %s, %s, %d" % (dst, dst, n))
    a("s_sub_u32 %s, %s, %s" % (dst, src, dst))


P_LN, P_QKV, P_W1, P_W2, P_MISC, P_END = 0, 256, 328, 472, 616, 617


def p_kernel():
    entry("p_kernel")
    a("s_cmp_ge_u32 s2, %d" % P_END)
    a("s_cbranch_scc1 L_exit")
    if PROF:
        a("s_memrealtime s[56:57]")
    a("s_load_dwordx16 s[4:19], s[0:1], 0")
    a("s_load_dwordx2 s[24:25], s[0:1], %d" % KA_WS)
    a("v_lshrrev_b32 v1, 6, v0")
    a("v_readfirstlane_b32 s3, v1")
    a("v_and_b32 v1, 63, v0")
    a("v_lshlrev_b32 v2, 4, v1")
    a("v_lshrrev_b32 v3, 4, v1")
    a("v_and_b32 v4, 15, v1")
    a("v_lshlrev_b32 v5, 4, v0")
    a("s_waitcnt lgkmcnt(0)")
    srd(40, 24, 0, WS_USED)
    a("s_cmp_lt_u32 s2, %d" % P_QKV)
    a("s_cbranch_scc1 P_ln")
    a("s_cmp_ge_u32 s2, %d" % P_MISC)
    a("s_cbranch_scc1 P_misc")
    a("s_cmp_ge_u32 s2, %d" % P_W1)
    a("s_cbranch_scc1 P_w12")
    a("s_sub_u32 s29, s2, %d" % P_QKV)
    srd(36, 6, 0, 576 * 1728 * 2)
    a("s_mul_i32 s20, s29, %d" % (8 * 3456))
    a("s_lshl_b32 s21, s3, 10")
    for n in range(3):
        a("s_add_u32 m0, s21, %d" % (n * 9216))
        a("s_add_u32 s22, s20, %d" % (n * 9216))
        a("buffer_load_dwordx4 v5, s[36:39], s22 offen" + PNT + " lds")
    srd(32, 8, 0, 576 * 576 * 2)
    a("s_mov_b32 s20, s29")
    a("s_lshr_b32 s21, s20, 2")
    a("s_and_b32 s22, s20, 3")
    a("v_mul_u32_u24 v6, 911, v0")
    a("v_lshrrev_b32 v6, 16, v6")
    a("v_mul_u32_u24 v7, 72, v6")
    a("v_sub_u32 v7, v0, v7")
    a("s_cmp_ge_u32 s21, 16")
    a("s_cbranch_scc1 P_wo_tail")
    a("s_mul_i32 s23, s21, 36")
    a("s_lshl_b32 s26, s22, 2")
    a("s_add_u32 s23, s23, s26")
    a("v_lshrrev_b32 v8, 2, v6")
    a("v_and_b32 v9, 3, v6")
    a("s_branch P_wo_go")
    a("P_wo_tail:")
    a("s_sub_u32 s23, s20, 64")
    a("s_mul_i32 s23, s23, 72")
    a("s_add_u32 s23, s23, 16")
    a("v_lshrrev_b32 v8, 1, v6")
    a("v_and_b32 v9, 1, v6")
    a("P_wo_go:")
    a("v_mul_u32_u24 v8, 18, v8")
    a("v_add_u32 v8, v8, v9")
    a("v_mul_u32_u24 v8, 1152, v8")
    a("v_lshl_add_u32 v8, v7, 4, v8")
    a("s_mul_i32 s23, s23, 1152")
    a("s_lshl_b32 s26, s3, 10")
    a("s_add_u32 m0, s26, 27648")
    a("buffer_load_dwordx4 v8, s[32:35], s23 offen" + PNT + " lds")
    a("s_mul_i32 s27, s21, 4608")
    a("s_add_u32 s27, s27, %s" % hex(WOP))
    a("v_lshrrev_b32 v8, 4, v7")
    a("v_lshlrev_b32 v8, 10, v8")
    a("v_and_b32 v9, 15, v7")
    a("v_lshl_add_u32 v8, v9, 4, v8")
    a("s_lshl_b32 s26, s22, 7")
    a("v_mov_b32 v10, s26")
    a("v_lshlrev_b32 v11, 1, v10")
    a("v_cmp_gt_u32 vcc, 64, v7")
    a("v_cndmask_b32 v10, v10, v11, vcc")
    a("v_add_u32 v8, v8, v10")
    a("s_mov_b32 s26, %d" % WOS)
    a("v_mad_u32_u24 v3, v6, s26, v8")
    a("v_lshlrev_b32 v4, 1, v0")
    a("s_lshr_b32 s22, s29, 2")
    a("s_lshl_b32 s22, s22, 12")
    a("s_and_b32 s23, s29, 3")
    a("s_lshl_b32 s23, s23, 8")
    a("s_add_u32 s22, s22, s23")
    a("v_mov_b32 v15, %s" % hex(OOB))
    for n in range(4):
        u, src, dst = 6, 48 + n, 52 + n
        a("v_add_u32 v6, %d, v0" % (n * 576))
        a("v_lshrrev_b32 v7, 6, v6")
        a("v_bfe_u32 v8, v6, 4, 2")
        a("v_and_b32 v9, 15, v6")
        a("v_mul_u32_u24 v10, 36, v7")
        a("v_mul_u32_u24 v11, 1152, v8")
        a("v_lshl_add_u32 v11, v9, 1, v11")
        a("v_lshrrev_b32 v12, 1, v9")
        a("v_mul_u32_u24 v12, 1152, v12")
        a("v_and_b32 v13, 1, v9")
        a("v_lshl_add_u32 v12, v13, 1, v12")
        a("v_add_u32 v12, 32, v12")
        a("v_cmp_eq_u32 vcc, 3, v8")
        a("v_cndmask_b32 v11, v11, v12, vcc")
        a("v_cmp_lt_u32 s[44:45], 5, v9")
        a("s_and_b64 s[%d:%d], vcc, s[44:45]" % (46 + 2 * n, 47 + 2 * n))
        a("v_cndmask_b32 v11, v11, 0, s[%d:%d]" % (46 + 2 * n, 47 + 2 * n))
        a("v_add_u32 v%d, v10, v11" % src)
        a("v_mul_u32_u24 v7, 73728, v7")
        a("v_lshl_add_u32 v7, v8, 10, v7")
        a("v_lshl_add_u32 v%d, v9, 4, v7" % dst)
        if n == 3:
            a("v_cmp_gt_u32 vcc, 2048, v6")
            a("v_cndmask_b32 v%d, v15, v%d, vcc" % (dst, dst))
            a("v_cndmask_b32 v%d, 0, v%d, vcc" % (src, src))
    a("s_waitcnt vmcnt(0)")
    a("s_barrier")
    for n in range(4):
        for j in range(8):
            a("ds_read_u16 v%d, v%d offset:%d" % (16 + n * 8 + j, 48 + n, j * 3456))
        if n % 2 == 1:
            a("s_waitcnt lgkmcnt(0)")
            for m in (n - 1, n):
                for k in range(4):
                    a("v_lshl_or_b32 v%d, v%d, 16, v%d" % (16 + m * 8 + k, 16 + m * 8 + 2 * k + 1, 16 + m * 8 + 2 * k))
                    a("v_cndmask_b32 v%d, v%d, 0, s[%d:%d]" % (16 + m * 8 + k, 16 + m * 8 + k, 46 + 2 * m, 47 + 2 * m))
                a("buffer_store_dwordx4 %s, v%d, s[40:43], s22 offen%s" % (q4(16 + m * 8), 52 + m, ST))
    for j in range(8):
        a("ds_read_u16 v%d, v4 offset:%d" % (56 + j, 27648 + j * 1152))
    a("s_waitcnt lgkmcnt(0)")
    for k in range(4):
        a("v_lshl_or_b32 v%d, v%d, 16, v%d" % (56 + k, 56 + 2 * k + 1, 56 + 2 * k))
    a("buffer_store_dwordx4 v[56:59], v3, s[40:43], s27 offen%s" % ST)
    a("s_branch P_end" if PROF else "s_endpgm")

    a("P_ln:")
    srd(36, 4, 0, ACT)
    a("s_sub_u32 s20, s2, %d" % P_LN)
    a("v_lshrrev_b32 v1, 3, v0")
    a("v_and_b32 v7, 7, v0")
    a("v_lshlrev_b32 v8, 4, v1")
    a("v_mul_u32_u24 v9, 1152, v7")
    a("v_add_u32 v9, v9, v8")
    a("s_mul_i32 s21, s20, %d" % (8 * 1152))
    a("buffer_load_dwordx4 v[16:19], v9, s[36:39], s21 offen" + PNT)
    a("v_lshlrev_b32 v3, 8, v1")
    a("v_lshl_add_u32 v3, v7, 4, v3")
    a("s_lshr_b32 s22, s20, 1")
    a("s_mul_i32 s22, s22, 18432")
    a("s_and_b32 s23, s20, 1")
    a("s_lshl_b32 s23, s23, 7")
    a("s_add_u32 s22, s22, s23")
    a("s_add_u32 s22, s22, %s" % hex(LB + oY))
    a("v_mul_u32_u24 v11, 48, v7")
    a("v_lshrrev_b32 v12, 6, v0")
    a("v_lshl_add_u32 v12, v12, 2, v11")
    AC, T, P = 24, 32, 48
    a("s_waitcnt vmcnt(0)")
    for k in range(4):
        unpack(AC + 2 * k, 16 + k)

    def reduce9(s, ldsoff, out):
        xsum(s, s + 1, ror8=True)
        a("ds_write_b32 v12, v%d offset:%d" % (s, ldsoff))
        a("s_waitcnt lgkmcnt(0)")
        a("s_barrier")
        a("ds_read_b128 %s, v11 offset:%d" % (q4(P), ldsoff))
        a("ds_read_b128 %s, v11 offset:%d" % (q4(P + 4), ldsoff + 16))
        a("ds_read_b32 v%d, v11 offset:%d" % (P + 8, ldsoff + 32))
        a("s_waitcnt lgkmcnt(0)")
        a("v_pk_add_f32 %s, %s, %s" % (q2(P), q2(P), q2(P + 2)))
        a("v_pk_add_f32 %s, %s, %s" % (q2(P + 4), q2(P + 4), q2(P + 6)))
        a("v_pk_add_f32 %s, %s, %s" % (q2(P), q2(P), q2(P + 4)))
        a("v_add_f32 v%d, v%d, v%d" % (P, P, P + 1))
        a("v_add_f32 v%d, v%d, v%d" % (P, P, P + 8))
        a("v_mul_f32 v%d, %s, v%d" % (out, f32bits(1.0 / 576.0), P))

    S, MEAN, VAR, M, SD = 40, 42, 43, 44, 45
    a("v_pk_add_f32 %s, %s, %s" % (q2(T), q2(AC), q2(AC + 2)))
    a("v_pk_add_f32 %s, %s, %s" % (q2(T + 2), q2(AC + 4), q2(AC + 6)))
    a("v_pk_add_f32 %s, %s, %s" % (q2(T), q2(T), q2(T + 2)))
    a("v_add_f32 v%d, v%d, v%d" % (S, T, T + 1))
    reduce9(S, 0, MEAN)
    for k in range(8):
        a("v_sub_f32 v%d, v%d, v%d" % (T + k, AC + k, MEAN))
    a("v_mul_f32 v%d, v%d, v%d" % (S, T, T))
    for k in range(1, 8):
        a("v_fmac_f32 v%d, v%d, v%d" % (S, T + k, T + k))
    reduce9(S, 512, VAR)
    ln_scalars(MEAN, VAR, M, SD)
    a("v_rcp_f32 v%d, v%d" % (SD, SD))
    for k in range(8):
        a("v_sub_f32 v%d, v%d, v%d" % (AC + k, AC + k, M))
    for k in range(4):
        cvt(T + k, AC + 2 * k, AC + 2 * k + 1)
    for k in range(4):
        unpack(AC + 2 * k, T + k)
    for k in range(8):
        a("v_mul_f32 v%d, v%d, v%d" % (AC + k, AC + k, SD))
    for k in range(4):
        cvt(T + k, AC + 2 * k, AC + 2 * k + 1)
    a("buffer_store_dwordx4 %s, v3, s[40:43], s22 offen%s" % (q4(T), ST))
    a("s_branch P_end" if PROF else "s_endpgm")

    a("P_w12:")
    a("v_lshrrev_b32 v5, 3, v1")
    a("v_and_b32 v6, 7, v1")
    a("v_lshlrev_b32 v6, 4, v6")
    a("v_bfe_u32 v7, v1, 2, 2")
    a("v_and_b32 v8, 3, v1")
    a("s_lshl_b32 s21, s3, 12")
    a("s_cmp_ge_u32 s2, %d" % P_W2)
    a("s_cbranch_scc1 P_w2")
    if "now1" in ABL:
        a("s_branch P_end")

    def w12(stride, second):
        for n in range(4):
            a("s_add_u32 m0, s21, %d" % (n * 1024))
            a("buffer_load_dwordx4 v9, s[36:39], s22 offen" + PNT + " lds")
            if n < 3:
                a("s_add_u32 s22, s22, %d" % (8 * stride))

    def w12b(second):
        for tl in range(4):
            a("ds_read_b64_tr_b16 %s, v10 offset:%d" % (q2(16 + tl * 4), tl * 32))
            a("ds_read_b64_tr_b16 %s, v10 offset:%d" % (q2(18 + tl * 4), tl * 32 + second))
        for tl in range(4):
            a("s_waitcnt lgkmcnt(%d)" % (6 - 2 * tl))
            a("s_add_u32 s26, s23, %d" % (tl * 18432))
            a("buffer_store_dwordx4 %s, v2, s[40:43], s26 offen%s" % (q4(16 + tl * 4), ST))

    srd(36, 12, 0, 576 * 4608 * 2)
    a("s_sub_u32 s28, s2, %d" % P_W1)
    a("s_lshr_b32 s20, s28, 1")
    a("s_and_b32 s28, s28, 1")
    a("s_mul_i32 s29, s28, 9")
    a("s_add_u32 s29, s29, s3")
    a("s_mul_i32 s22, s29, %d" % (32 * 9216))
    a("s_lshl_b32 s27, s20, 7")
    a("s_add_u32 s22, s22, s27")
    a("v_mul_u32_u24 v9, 9216, v5")
    a("v_add_u32 v9, v9, v6")
    w12(9216, 512)
    srd(32, 14, 0, 4608 * 2)
    a("v_lshlrev_b32 v5, 1, v1")
    a("buffer_load_ushort v40, v5, s[32:35], s27 offen")
    a("v_lshl_add_u32 v10, v3, 3, v7")
    a("v_lshlrev_b32 v10, 7, v10")
    a("v_lshl_add_u32 v10, v8, 3, v10")
    a("v_add_u32 v10, s21, v10")
    a("s_mul_i32 s23, s20, %d" % (4 * 18432))
    a("s_lshl_b32 s26, s29, 10")
    a("s_add_u32 s23, s23, s26")
    a("s_add_u32 s23, s23, %s" % hex(W1P))
    for k in range(4):
        a("v_mov_b32 v%d, 0x3f803f80" % (12 + k))
    a("s_lshl_b32 s26, s3, 8")
    a("s_add_u32 s26, s26, 36864")
    a("v_lshlrev_b32 v11, 4, v3")
    a("v_add_u32 v11, s26, v11")
    a("s_waitcnt vmcnt(0)")
    w12b(512)
    for tl in range(4):
        a("%s %s, %s, v[12:15], 0" % (MF, q4(48 + tl * 4), q4(16 + tl * 4)))
    for tl in range(4):
        a("ds_write_b128 v11, %s offset:%d" % (q4(48 + tl * 4), tl * 64))
    a("s_waitcnt lgkmcnt(0)")
    a("s_barrier")
    a("s_cmp_lg_u32 s3, 0")
    a("s_cbranch_scc1 P_end")
    a("v_lshlrev_b32 v11, 2, v1")
    for w in range(9):
        a("ds_read_b32 v%d, v11 offset:%d" % (48 + w, 36864 + w * 256))
    a("s_waitcnt lgkmcnt(0)")
    for w in range(1, 9):
        a("v_add_f32 v48, v48, v%d" % (48 + w))
    a("v_sub_f32 v48, 0, v48")
    cvt(60, 48, 48)
    a("v_and_b32 v49, 0xffff0000, v60")
    a("v_sub_f32 v49, v48, v49")
    cvt(49, 49, 49)
    a("v_and_b32 v49, 0xffff, v49")
    a("v_lshl_or_b32 v61, v40, 16, v49")
    a("s_lshl_b32 s27, s20, 10")
    a("s_lshl_b32 s28, s28, 3")
    a("s_add_u32 s27, s27, s28")
    a("s_add_u32 s27, s27, %s" % hex(AUG))
    a("buffer_store_dwordx2 v[60:61], v2, s[40:43], s27 offen%s" % ST)
    a("s_branch P_end" if PROF else "s_endpgm")

    a("P_w2:")
    if "now2" in ABL:
        a("s_cmp_ge_u32 s2, %d" % (P_W2 + 32))
        a("s_cbranch_scc1 P_end")
    srd(36, 16, 0, 576 * 4608 * 2)
    a("s_sub_u32 s20, s2, %d" % P_W2)
    a("s_mul_i32 s22, s20, %d" % (32 * 1152))
    a("s_lshl_b32 s23, s3, 7")
    a("s_add_u32 s22, s22, s23")
    a("v_mul_u32_u24 v9, 1152, v5")
    a("v_add_u32 v9, v9, v6")
    w12(1152, 2048)
    a("v_lshl_add_u32 v10, v3, 2, v7")
    a("v_lshlrev_b32 v10, 7, v10")
    a("v_lshl_add_u32 v10, v8, 3, v10")
    a("v_add_u32 v10, s21, v10")
    a("s_mul_i32 s26, s20, 3641")
    a("s_lshr_b32 s26, s26, 16")
    a("s_mul_i32 s27, s26, 18")
    a("s_sub_u32 s27, s20, s27")
    a("s_mul_i32 s23, s26, %d" % (36 * 18432))
    a("s_mul_i32 s26, s3, %d" % (4 * 18432))
    a("s_add_u32 s23, s23, s26")
    a("s_lshl_b32 s27, s27, 10")
    a("s_add_u32 s23, s23, s27")
    a("s_add_u32 s23, s23, %s" % hex(W2P))
    a("s_waitcnt vmcnt(0)")
    w12b(2048)
    a("s_branch P_end" if PROF else "s_endpgm")

    a("P_misc:")
    for k in range(4):
        a("v_mov_b32 v%d, 0" % (16 + k))
    a("v_lshlrev_b32 v5, 4, v0")
    srd(36, 24, CNT, CNTB)
    for k in range(4):
        a("s_mov_b32 s22, %d" % (k * 9216))
        a("buffer_store_dwordx4 v[16:19], v5, s[36:39], s22 offen%s" % ST)
    a("s_getpc_b64 s[20:21]")
    a("P_pc:")
    a("s_add_u32 s36, s20, main_kernel-P_pc")
    a("s_addc_u32 s37, s21, 0")
    a("s_mov_b32 s38, L_code_end-main_kernel")
    a("s_mov_b32 s39, 0x20000")
    a("s_mov_b32 s22, 0")
    for k in range(7):
        a("buffer_load_dwordx4 %s, v5, s[36:39], s22 offen" % q4(20 + 4 * k))
        a("s_add_u32 s22, s22, 9216")
    a("s_waitcnt vmcnt(0)")
    a("P_end:")
    if PROF:
        a("s_waitcnt vmcnt(0)")
        a("s_memrealtime s[58:59]")
        srd(36, 24, STAMP + (1 << 19), 1 << 19)
        a("s_lshl_b32 s60, s2, 4")
        a("s_add_u32 s60, s60, s3")
        a("s_lshl_b32 s60, s60, 3")
        a("s_waitcnt lgkmcnt(0)")
        a("v_mov_b32 v0, s56")
        a("v_mov_b32 v1, s58")
        a("buffer_store_dwordx2 v[0:1], off, s[36:39], s60")
    a("L_exit:")
    a("s_endpgm")


L_SCR, L_OX, L_Y, L_WA, L_WB = 0, 8192, 20480, 112640, 20480
MAIN_LDS = 163840
uid = [0]


def main_kernel():
    entry("main_kernel")
    a("s_cmp_ge_u32 s2, 256")
    a("s_cbranch_scc1 L_exit2")
    a("s_load_dwordx2 s[24:25], s[0:1], %d" % KA_WS)
    a("s_load_dwordx4 s[28:31], s[0:1], %d" % KA_B2)
    a("s_load_dwordx2 s[32:33], s[0:1], %d" % KA_X)
    a("s_mov_b32 s34, %d" % ACT)
    a("s_mov_b32 s35, 0x20000")
    vm = VM()
    lg = VM("lgkmcnt", 15)
    a("v_lshrrev_b32 v1, 6, v0")
    a("v_readfirstlane_b32 s3, v1")
    a("v_and_b32 v1, 63, v0")
    a("v_lshlrev_b32 v2, 4, v1")
    a("v_lshrrev_b32 v3, 4, v1")
    a("v_and_b32 v4, 15, v1")
    b = MAPB
    spx = 8 // b
    tpx = 32 // spx
    lb = {1: 0, 2: 1, 4: 2, 8: 3}
    a("s_and_b32 s6, s2, 7")
    a("s_lshr_b32 s7, s2, 3")
    a("s_and_b32 s4, s6, %d" % (b - 1))
    a("s_lshl_b32 s4, s4, %d" % lb[spx])
    a("s_and_b32 s8, s7, %d" % (spx - 1))
    a("s_add_u32 s4, s4, s8")
    a("s_lshr_b32 s5, s6, %d" % lb[b])
    a("s_mul_i32 s5, s5, %d" % tpx)
    a("s_lshr_b32 s8, s7, %d" % lb[spx])
    a("s_add_u32 s5, s5, s8")
    a("s_mov_b32 s44, %s" % hex(LB))
    a("s_mov_b32 s45, 0")
    a("s_mov_b32 s46, 8")
    a("s_mov_b32 s27, 1")
    a("s_mov_b32 s97, 1152")
    a("s_mul_i32 s47, s5, %d" % TB)

    KY, KW = 48, 54

    def k1_setup(rot):
        if rot:
            mod_small("s6", "s5", AROT)
            a("s_mul_i32 s6, s6, %d" % (6 // AROT))
        else:
            a("s_mov_b32 s6, 0")
        for G in range(6):
            a("s_mul_i32 s%d, s6, 3072" % (KY + G))
            a("s_add_u32 s%d, s%d, s44" % (KY + G, KY + G))
            a("s_mul_i32 s%d, s6, 12288" % (KW + G))
            if G < 5:
                a("s_add_u32 s6, s6, 1")
                a("s_cmp_eq_u32 s6, 6")
                a("s_cselect_b32 s6, 0, s6")
        a("s_mul_i32 s8, s3, 18432")
        a("s_add_u32 s8, s8, s47")
        a("v_add_u32 v7, s8, v2")
        a("s_min_u32 s9, s3, 2")
        a("s_lshl_b32 s11, s9, 10")
        a("s_add_u32 s8, s47, s11")
        a("s_sub_u32 s8, s8, 18432")
        a("s_cmp_eq_u32 s5, 0")
        a("s_cselect_b32 s8, %s, s8" % hex(OOB))
        a("v_add_u32 v8, s8, v2")
        a("s_add_u32 s11, s11, %d" % L_Y)
        a("s_mul_i32 s10, s3, 18432")
        a("s_add_u32 s10, s10, %d" % (L_Y + 18432))
        a("v_add_u32 v5, %d, v2" % L_Y)
        a("v_add_u32 v6, %d, v2" % (L_Y + 46080))

    def kw_voffs():
        a("s_lshl_b32 s12, s4, 2")
        a("s_add_u32 s12, s12, s3")
        a("s_mul_i32 s12, s12, 73728")
        a("v_add_u32 v9, s12, v2")
        a("v_add_u32 v10, 4096, v9")
        a("v_add_u32 v11, 8192, v9")

    k1_setup(True)
    kw_voffs()
    a("s_waitcnt lgkmcnt(0)")
    srd(40, 24, 0, WS_USED)
    a("s_add_u32 s20, s24, %s" % hex(CNT))
    a("s_addc_u32 s21, s25, 0")
    a("s_lshl_b32 s22, s5, 2")
    a("s_add_u32 s22, s22, s3")
    a("s_lshl_b32 s22, s22, 7")
    if PROF:
        srd(92, 24, STAMP, 1 << 20)
        a("s_lshl_b32 s96, s2, 2")
        a("s_add_u32 s96, s96, s3")
        a("s_lshl_b32 s96, s96, 8")
    rstamp(12)
    stamp(0)

    def arrive(off="s22", ret=True):
        if ret:
            a("s_mov_b32 s16, 1")
            a("s_atomic_add s16, s[20:21], %s glc" % off)
        else:
            a("s_atomic_add s27, s[20:21], %s" % off)

    def poll(target, offs=("s22",), issued=None):
        uid[0] += 1
        u = uid[0]

        def rd():
            for k, o in enumerate(offs):
                a("s_mov_b32 s%d, 0" % (16 + k))
                a("s_atomic_add s%d, s[20:21], %s glc" % (16 + k, o))
        a("s_mov_b32 s18, %d" % SPIN)
        if issued is None:
            rd()
        lg.all()
        if issued == "arrive":
            a("s_add_u32 s16, s16, 1")
        a("H%d_l:" % u)
        if len(offs) > 1:
            a("s_min_u32 s16, s16, s17")
        a("s_cmp_ge_u32 s16, %s" % target)
        a("s_cbranch_scc1 H%d_b" % u)
        a("s_sub_u32 s18, s18, 1")
        a("s_cbranch_scc1 H%d_b" % u)
        rd()
        a("s_waitcnt lgkmcnt(0)")
        a("s_branch H%d_l" % u)
        a("H%d_b:" % u)

    def hop(tag, pre_a=(), pre_b=()):
        for f in pre_a:
            f()
        vm.wait(tag)
        arrive()
        for f in pre_b:
            f()
        poll("s46", issued="arrive")
        a("s_add_u32 s46, s46, 8")

    QA, KA, VA, CA, YF = 16, 32, 52, 72, 92
    MSK, SM = 132, 136

    def wslot(i, t):
        return ((i % 16) * 4 + t) * 4

    def wload1(i, t, sreg=None):
        def f():
            s = sreg or "s%d" % (KW + i // 3)
            vm.op("buffer_load_dwordx4 %s, v%d, s[40:43], %s offen offset:%d" % (q4(wslot(i, t), "a"), 9 + i % 3, s, t * 1024), ("w", i))
        return f

    def ydma1(G, k):
        def f():
            if k < 3:
                a("s_add_u32 m0, s10, %d" % (G * 3072))
                vm.op("buffer_load_dwordx4 v7, s[40:43], s%d offen offset:%d%s lds" % (KY + G, k * 1024, LD), ("y", G))
            else:
                a("s_add_u32 m0, s11, %d" % (G * 3072))
                vm.op("buffer_load_dwordx4 v8, s[40:43], s%d offen%s lds" % (KY + G, LD), ("y", G))
        return f

    def yread1(i, T):
        def f():
            off = (T * 18 + i) * 1024
            base = 5
            if off >= 46080:
                off -= 46080
                base = 6
            a("ds_read_b128 %s, v%d offset:%d" % (q4(YF + (i % 2) * 20 + T * 4), base, off))
        return f

    def wodma(region, n):
        def f():
            a("s_add_u32 m0, s%d, %d" % ((13, 14)[region], (n // 4) * 4096))
            a("s_add_u32 s15, s%d, %d" % ((60, 61)[region], (n // 4) * 4096))
            vm.op("buffer_load_dwordx4 v2, s[40:43], s15 offen offset:%d lds" % ((n % 4) * 1024), "wo")
        return f

    def attn_consts():
        a("v_and_b32 v13, 1, v4")
        a("v_cmp_eq_u32 s[70:71], 1, v13")
        a("v_lshl_add_u32 v14, v3, 2, v13")
        a("v_cmp_ge_u32 s[72:73], v4, v14")
        a("v_add_u32 v14, 2, v14")
        a("v_cmp_ge_u32 s[74:75], v4, v14")
        a("v_mov_b32 v13, 0xffff")
        a("v_mov_b32 v14, 0xffff0000")
        a("v_cndmask_b32 v13, v13, v14, s[70:71]")
        a("v_cndmask_b32 v%d, v13, 0, s[72:73]" % (MSK + 0))
        a("v_cndmask_b32 v%d, v13, 0, s[74:75]" % (MSK + 1))
        a("v_cndmask_b32 v%d, 0, v13, s[72:73]" % (MSK + 2))
        a("v_cndmask_b32 v%d, 0, v13, s[74:75]" % (MSK + 3))
        a("s_cmp_eq_u32 s5, 0")
        a("s_cselect_b32 s14, %s, 0" % f32bits(-1e9 * math.sqrt(18.0)))
        for k in range(4):
            a("v_mov_b32 v%d, s14" % (SM + k))
        a("s_lshl_b32 s14, s3, 11")
        a("v_lshlrev_b32 v141, 9, v3")
        a("v_lshl_add_u32 v141, v4, 1, v141")
        a("v_add_u32 v141, s14, v141")
        a("v_and_b32 v142, 1, v4")
        a("v_mul_u32_u24 v142, 160, v142")
        a("v_lshl_add_u32 v142, v3, 3, v142")
        a("s_add_u32 s14, s14, 512")
        a("v_add_u32 v142, s14, v142")
        a("s_lshr_b32 s14, s3, 1")
        a("s_lshl_b32 s14, s14, 10")
        a("s_and_b32 s15, s3, 1")
        a("s_lshl_b32 s15, s15, 3")
        a("s_add_u32 s14, s14, s15")
        a("s_add_u32 s14, s14, %d" % L_OX)
        a("v_add_u32 v143, s14, v2")
        a("s_lshl_b32 s14, s3, 2")
        a("s_add_u32 s14, s14, %d" % (L_OX + 2048))
        a("v_add_u32 v144, s14, v2")
        a("s_mul_i32 s14, s3, 3072")
        a("s_add_u32 s14, s14, %d" % L_OX)
        a("v_add_u32 v145, s14, v2")
        a("s_mul_i32 s60, s4, %d" % WOS)
        a("s_add_u32 s60, s60, %s" % hex(WOP))
        a("s_mul_i32 s14, s3, 9216")
        a("s_add_u32 s61, s60, s14")
        a("s_add_u32 s61, s61, 46080")
        a("s_mul_i32 s14, s3, 18432")
        a("s_add_u32 s14, s14, %d" % L_Y)
        a("s_mul_i32 s13, s3, 12288")
        a("s_add_u32 s60, s60, s13")
        a("s_add_u32 s13, s13, %d" % L_WA)

    def qkv(pre):
        if not pre:
            for k in range(4):
                ydma1(0, k)()
            for t in range(4):
                wload1(0, t)()
            for k in range(4):
                ydma1(1, k)()
            for i in range(1, APRE):
                for t in range(4):
                    wload1(i, t)()
            if TOUCH:
                a("s_getpc_b64 s[36:37]")
                a("M_pc:")
                a("s_mov_b32 s38, L_code_end-M_pc")
                a("s_mov_b32 s39, 0x20000")
                a("s_lshr_b32 s6, s2, 3")
                a("s_lshl_b32 s6, s6, 2")
                a("s_add_u32 s6, s6, s3")
                a("s_lshl_b32 s6, s6, 9")
                a("v_lshlrev_b32 v249, 3, v1")
                vm.op("buffer_load_dword v250, v249, s[36:39], s6 offen", "t")
            attn_consts()
            ahead_y = 2
        else:
            for i in range(pre):
                vm.ops.append(("w", i))
            for G in range(3):
                for k in range(4):
                    ydma1(G, k)()
            ahead_y = 3
        vm.wait(("y", 0))
        a("s_barrier")
        for T in range(5):
            yread1(0, T)()
        wo_list = ([] if pre else [wodma(0, n) for n in range(12)]) + [wodma(1, n) for n in range(9)]
        for i in range(18):
            if i + 1 < 18 and (i + 1) % 3 == 0:
                vm.wait(("y", (i + 1) // 3))
                a("s_barrier")
            a("s_waitcnt lgkmcnt(0)")
            vm.wait(("w", i))
            mem = []
            if i // 3 + ahead_y < 6:
                mem += [ydma1(i // 3 + ahead_y, k) for k in ((0, 3), (1,), (2,))[i % 3]]
            nxt = i + APRE
            if pre:
                nxt = pre + i - 1 if i >= 1 else None
                if nxt is not None and nxt - 16 >= i:
                    nxt = None
            if nxt is not None and nxt < 18:
                mem += [wload1(nxt, t) for t in range(4)]
            if (i >= 11) if pre else (nxt >= 18):
                take = -(-len(wo_list) // (18 - i))
                assert i >= 11 or len(wo_list) - take >= 9
                mem += wo_list[:take]
                wo_list = wo_list[take:]
            rds = [yread1(i + 1, T) for T in range(5)] if i + 1 < 18 else []
            slots = {}
            for k, f in enumerate(mem):
                slots.setdefault(1 + (k * 18) // len(mem), []).append(f)
            for k, f in enumerate(rds):
                slots.setdefault(2 * k, []).append(f)
            m = 0
            for T in range(5):
                y = q4(YF + (i % 2) * 20 + T * 4)
                for t, base in ((1, KA), (2, VA), (3, CA), (0, QA)):
                    if t == 0 and T == 0:
                        continue
                    d = base + (T - 1 if t == 0 else T) * 4
                    w = q4(wslot(i, t), "a")
                    c = "0" if i == 0 else q4(d)
                    A_, B_ = (y, w) if t == 2 else (w, y)
                    a("%s %s, %s, %s, %s" % (MF, q4(d), A_, B_, c))
                    for f in slots.get(m, []):
                        f()
                    m += 1
        assert not wo_list, len(wo_list)

    qkv(0)
    a("s_branch K1_attn")
    a("K1_second:")
    vm.done = -1
    vm.ops = []
    qkv(PF)
    a("K1_attn:")
    vm.ops = []
    vm.done = -1
    stamp(1)
    vm.ops.append("wo")
    side = []
    XR = 208

    def k2_addr():
        a("s_mul_i32 s62, s3, 18432")
        a("s_add_u32 s62, s62, s47")
        a("s_add_u32 s62, s62, s44")
        a("s_mul_i32 s63, s4, 2304")
        a("s_add_u32 s63, s63, s62")
        a("v_and_b32 v220, 1, v3")
        a("v_lshlrev_b32 v220, 9, v220")
        a("v_lshl_add_u32 v220, v4, 4, v220")
        a("v_lshrrev_b32 v221, 5, v1")
        a("v_lshl_add_u32 v220, v221, 8, v220")
        a("v_mov_b32 v221, %s" % hex(OOB))
        a("v_cmp_eq_u32 vcc, 0, v3")
        a("v_cndmask_b32 v221, v221, v220, vcc")
        a("v_cndmask_b32 v222, 0, -1, vcc")
        a("s_add_u32 s65, s63, %s" % hex(oX1))
        a("s_sub_u32 s64, s63, s44")
        a("s_mul_i32 s6, s4, 144")
        a("s_sub_u32 s7, s62, s44")
        a("s_add_u32 s6, s6, s7")
        a("v_lshrrev_b32 v206, 4, v220")
        a("v_and_b32 v206, 0x30, v206")
        a("v_mad_u32_u24 v206, v4, s97, v206")
        a("s_cmp_eq_u32 s45, 0")
        a("s_cselect_b32 s64, s6, s64")
        a("s_cselect_b32 s6, 64, 1024")
        a("s_cselect_b64 s[8:9], -1, 0")
        a("v_cndmask_b32 v206, v220, v206, s[8:9]")
        a("v_add_u32 v207, s6, v206")
        a("v_add_u32 v223, s6, v207")
        a("v_cndmask_b32 v223, v221, v223, vcc")

    def xload(kk):
        def f():
            vm.op("buffer_load_dwordx4 %s, v%d, s[32:35], s64 offen%s" % (q4(XR + 4 * kk), (206, 207, 223)[kk], LD), "x")
        return f

    k2_addr()
    side += [xload(k) for k in range(3)]
    cnt = [0]

    def v(text):
        a(text)
        cnt[0] += 1
        if cnt[0] % 12 == 0 and side:
            side.pop(0)()

    QO, KO, VP, X0, V2 = 148, 164, 184, 194, 196
    for T in range(5):
        xd = X0 if T == 0 else QO + (T - 1) * 4 + 2
        v("v_cvt_pk_bf16_f32 v%d, v%d, v%d" % (xd, CA + T * 4, CA + T * 4 + 1))
        a("ds_write_b16 v141, v%d offset:%d" % (xd, T * 32))
        a("ds_write_b16_d16_hi v141, v%d offset:%d" % (xd, T * 32 + 160))
    for T in range(5):
        v("v_cvt_pk_bf16_f32 v%d, v%d, v%d" % (KO + T * 4 + 2, CA + T * 4 + 2, CA + T * 4 + 3))
        v("v_cvt_pk_bf16_f32 v%d, v%d, v%d" % (KO + T * 4, KA + T * 4, KA + T * 4 + 1))
        v("v_cvt_pk_bf16_f32 v%d, v%d, v%d" % (KO + T * 4 + 1, KA + T * 4 + 2, KA + T * 4 + 3))
        v("v_mov_b32 v%d, 0" % (KO + T * 4 + 3))
        if T:
            q = QO + (T - 1) * 4
            v("v_cvt_pk_bf16_f32 v%d, v%d, v%d" % (q, QA + (T - 1) * 4, QA + (T - 1) * 4 + 1))
            v("v_cvt_pk_bf16_f32 v%d, v%d, v%d" % (q + 1, QA + (T - 1) * 4 + 2, QA + (T - 1) * 4 + 3))
            v("v_mov_b32 v%d, 0" % (q + 3))
    for T in range(5):
        a("ds_read_b64 %s, v142 offset:%d" % (q2(V2 + 2 * T), T * 32))
    SP = YF
    Ts = range(1, 5)
    for T in Ts:
        q = q4(QO + (T - 1) * 4)
        sp = SP + (T - 1) * 8
        a("%s %s, %s, %s, %s" % (MF, q4(sp), q4(KO + (T - 1) * 4), q, q4(SM) if T == 1 else "0"))
        a("%s %s, %s, %s, 0" % (MF, q4(sp + 4), q4(KO + T * 4), q))
    for T in range(5):
        v("v_cvt_pk_bf16_f32 v%d, v%d, v%d" % (VP + 2 * T, VA + T * 4, VA + T * 4 + 1))
        v("v_cvt_pk_bf16_f32 v%d, v%d, v%d" % (VP + 2 * T + 1, VA + T * 4 + 2, VA + T * 4 + 3))
    a("s_mov_b32 s19, %s" % f32bits((18.0 ** -0.5) * math.log2(math.e)))
    W = lambda T, k: 16 + (T - 1) * 8 + k
    for T in Ts:
        sp = SP + (T - 1) * 8
        v("v_cndmask_b32 v%d, v%d, v%d, s[70:71]" % (W(T, 2), sp + 4, sp + 5))
        v("v_cndmask_b32 v%d, v%d, v%d, s[70:71]" % (W(T, 3), sp + 0, sp + 1))
        v("v_cndmask_b32 v%d, v%d, v%d, s[70:71]" % (W(T, 4), sp + 6, sp + 7))
        v("v_cndmask_b32 v%d, v%d, v%d, s[70:71]" % (W(T, 5), sp + 2, sp + 3))
        v("v_cndmask_b32 v%d, v%d, v%d, s[72:73]" % (W(T, 0), W(T, 3), W(T, 2)))
        v("v_cndmask_b32 v%d, v%d, v%d, s[74:75]" % (W(T, 1), W(T, 5), W(T, 4)))
        v("v_max_f32 v%d, v%d, v%d" % (W(T, 2), W(T, 0), W(T, 1)))
        v("v_mov_b32 v%d, v%d" % (W(T, 3), W(T, 2)))

    def xlane(op):
        for T in Ts:
            v("v_permlane16_swap_b32 v%d, v%d" % (W(T, 2), W(T, 3)))
        for T in Ts:
            v("%s v%d, v%d, v%d" % (op, W(T, 2), W(T, 2), W(T, 3)))
            v("v_mov_b32 v%d, v%d" % (W(T, 3), W(T, 2)))
        for T in Ts:
            v("v_permlane32_swap_b32 v%d, v%d" % (W(T, 2), W(T, 3)))
        for T in Ts:
            v("%s v%d, v%d, v%d" % (op, W(T, 2), W(T, 2), W(T, 3)))

    xlane("v_max_f32")
    for T in Ts:
        v("v_sub_f32 v%d, v%d, v%d" % (W(T, 0), W(T, 0), W(T, 2)))
        v("v_sub_f32 v%d, v%d, v%d" % (W(T, 1), W(T, 1), W(T, 2)))
        v("v_mul_f32 v%d, s19, v%d" % (W(T, 0), W(T, 0)))
        v("v_mul_f32 v%d, s19, v%d" % (W(T, 1), W(T, 1)))
    for T in Ts:
        v("v_exp_f32 v%d, v%d" % (W(T, 0), W(T, 0)))
        v("v_exp_f32 v%d, v%d" % (W(T, 1), W(T, 1)))
    for T in Ts:
        v("v_add_f32 v%d, v%d, v%d" % (W(T, 2), W(T, 0), W(T, 1)))
        v("v_mov_b32 v%d, v%d" % (W(T, 3), W(T, 2)))
    xlane("v_add_f32")
    for T in Ts:
        v("v_rcp_f32 v%d, v%d" % (W(T, 2), W(T, 2)))
    for T in Ts:
        v("v_mul_f32 v%d, v%d, v%d" % (W(T, 0), W(T, 0), W(T, 2)))
        v("v_mul_f32 v%d, v%d, v%d" % (W(T, 1), W(T, 1), W(T, 2)))
        v("v_cvt_pk_bf16_f32 v%d, v%d, v%d" % (W(T, 0), W(T, 0), W(T, 0)))
        v("v_cvt_pk_bf16_f32 v%d, v%d, v%d" % (W(T, 1), W(T, 1), W(T, 1)))
        v("v_and_b32 v%d, v%d, v%d" % (W(T, 4), W(T, 0), MSK + 0))
        v("v_and_b32 v%d, v%d, v%d" % (W(T, 5), W(T, 1), MSK + 1))
        v("v_and_b32 v%d, v%d, v%d" % (W(T, 6), W(T, 0), MSK + 2))
        v("v_and_b32 v%d, v%d, v%d" % (W(T, 7), W(T, 1), MSK + 3))
    while side:
        side.pop(0)()
    a("s_waitcnt lgkmcnt(0)")
    for T in Ts:
        sp = SP + (T - 1) * 8
        p = q4(W(T, 4))
        a("%s %s, %s, %s, 0" % (MF, q4(sp), q4(VP + 2 * (T - 1)), p))
        a("%s %s, %s, %s, 0" % (MF, q4(sp + 4), q4(V2 + 2 * (T - 1)), p))
    a("s_add_u32 s66, s62, %s" % hex(oO))
    a("s_lshl_b32 s67, s4, 11")
    a("s_add_u32 s67, s67, s66")
    a("s_lshl_b32 s68, s4, 8")
    a("s_add_u32 s68, s68, s66")
    a("s_add_u32 s68, s68, 16384")
    for T in Ts:
        sp = SP + (T - 1) * 8
        o = 48 + (T - 1) * 4
        cvt(o, sp, sp + 1)
        cvt(o + 1, sp + 2, sp + 3)
        cvt(o + 2, sp + 4, sp + 5)
        a("ds_write_b64 v143, %s offset:%d" % (q2(o), (T - 1) * 3072))
        a("ds_write_b32 v144, v%d offset:%d" % (o + 2, (T - 1) * 3072))
    a("s_waitcnt lgkmcnt(0)")
    vm.wait("wo")
    a("s_barrier")
    for st in range(3):
        a("ds_read_b128 %s, v145 offset:%d" % (q4(224 + st * 4), st * 1024))
    for st in range(3):
        a("s_waitcnt lgkmcnt(%d)" % (2 - st))
        if st < 2:
            vm.op("buffer_store_dwordx4 %s, v2, s[40:43], s67 offen offset:%d%s" % (q4(224 + st * 4), st * 1024, STF), "st")
        else:
            vm.op("buffer_store_dwordx4 %s, v221, s[40:43], s68 offen%s" % (q4(232), STF), "st")
    stamp(2)

    WS = 48
    ACC, FIN, AUGW, TMP, KC, AB = 144, 160, 176, 180, 192, 204
    PK = 204

    def ring(q):
        return 16 + (q % NR) * 4

    def m_voffs():
        a("s_mul_i32 s9, s4, 36")
        a("s_add_u32 s9, s9, s3")
        a("s_mul_i32 s11, s9, 18432")
        a("s_add_u32 s11, s11, %s" % hex(W1P))
        a("v_add_u32 v7, s11, v2")
        for k in range(1, 5):
            a("v_add_u32 v%d, %d, v7" % (7 + k, 4096 * k))
        a("s_lshl_b32 s11, s9, 8")
        a("s_add_u32 s11, s11, %s" % hex(AUG))
        a("v_lshl_add_u32 v12, v4, 4, s11")
        for n in range(9):
            a("s_mov_b32 s%d, %d" % (WS + n, n * 4 * 18432))

    W2T, STT = 76, 57
    sst = lambda n: (57 + n) if n < 3 else (85 + n - 3)

    def mload(q):
        def f():
            n, s = divmod(q, 18)
            sr = WS + n if n < 9 else W2T + n - 9
            vm.op("buffer_load_dwordx4 %s, v%d, s[40:43], s%d offen offset:%d" % (q4(ring(q)), 7 + s // 4, sr, (s % 4) * 1024), ("m", q))
        return f

    def aload(n):
        vm.op("buffer_load_dwordx4 %s, v12, s[40:43], s%d offen" % (q4(AUGW), 91), ("aug", n))

    def kslot(ks, tl):
        return ((ks % 12) * 5 + tl) * 4

    def kread(ks, tl):
        def f():
            base, off = (13, ks * 4608) if ks < 10 else (14, ((ks - 10) >> 1) * 18432 + ((ks - 10) & 1) * 4608)
            if tl == 4:
                base += 2
            lg.op("ds_read_b128 %s, v%d offset:%d" % (q4(kslot(ks, tl), "a"), base if base != 16 else 6, off + tl * 1024), ("k", ks))
        return f

    def k2_pre():
        a("v_add_u32 v13, %d, v2" % L_WA)
        a("v_add_u32 v14, %d, v2" % L_WB)
        a("v_and_b32 v15, 7, v4")
        a("v_lshlrev_b32 v15, 4, v15")
        a("v_lshl_add_u32 v15, v3, 7, v15")
        a("v_add_u32 v6, %d, v15" % L_WB)
        a("v_add_u32 v15, %d, v15" % L_WA)
        for ks in range(K2PRE):
            for tl in range(5):
                kread(ks, tl)()

    XU = 224
    def x_unpack():
        for k in range(12):
            unpack(XU + 2 * k, XR + k)

    m_voffs()
    hop("st", pre_a=[mload(q) for q in range(8)],
        pre_b=[k2_pre] + [mload(q) for q in range(8, 18)] + [x_unpack])
    stamp(3)

    OFR, KAC = 88, 160
    a("v_add_u32 v5, 4096, v2")
    rest = [kread(ks, tl) for ks in range(K2PRE, 12) for tl in range(5)]
    for ks in range(18):
        if ks % 8 == 0:
            a("s_add_u32 s15, s66, %d" % (ks * 1024))
        vm.op("buffer_load_dwordx4 %s, v%d, s[40:43], s15 offen offset:%d%s" % (q4(OFR + ks * 4), (2, 5)[(ks % 8) // 4], (ks % 4) * 1024, LD), ("o", ks))
        for f in rest[:3]:
            f()
        rest = rest[3:]
    assert not rest
    for ks in range(18):
        vm.wait(("o", ks))
        lg.wait(("k", ks))
        for tl in range(5):
            a("%s %s, %s, %s, %s" % (MF, q4(KAC + tl * 4), q4(kslot(ks, tl), "a"), q4(OFR + ks * 4), "0" if ks == 0 else q4(KAC + tl * 4)))
            if ks < 6:
                kread(ks + 12, tl)()
    a("s_barrier")
    TP, TU = 180, 88
    for tl in range(5):
        cvt(TP + 2 * tl, KAC + 4 * tl, KAC + 4 * tl + 1)
        cvt(TP + 2 * tl + 1, KAC + 4 * tl + 2, KAC + 4 * tl + 3)
    for kk in range(3):
        a("v_permlane16_swap_b32 v%d, v%d" % (TP + 4 * kk, TP + 4 * kk + 2))
        a("v_permlane16_swap_b32 v%d, v%d" % (TP + 4 * kk + 1, TP + 4 * kk + 3))
    for k in range(8, 12):
        a("v_and_b32 v%d, v%d, v222" % (TP + k, TP + k))
    for kk in range(3):
        for k in range(4 * kk, 4 * kk + 4):
            unpack(TU + 2 * k, TP + k)
        for k in range(4 * kk, 4 * kk + 4):
            a("v_pk_add_f32 %s, %s, %s" % (q2(TU + 2 * k), q2(TU + 2 * k), q2(XU + 2 * k)))
        for k in range(4 * kk, 4 * kk + 4):
            cvt(XR + k, TU + 2 * k, TU + 2 * k + 1)
        vm.op("buffer_store_dwordx4 %s, v%d, s[40:43], s65 offen offset:%d%s" % (q4(XR + 4 * kk), 220 if kk < 2 else 221, kk * 1024, STF), "st")
    for k in range(12):
        unpack(TU + 2 * k, XR + k)
    S0 = 112
    a("v_pk_add_f32 %s, %s, %s" % (q2(S0), q2(TU), q2(TU + 2)))
    a("v_pk_add_f32 %s, %s, %s" % (q2(S0 + 2), q2(TU + 4), q2(TU + 6)))
    for k in range(4, 12, 2):
        a("v_pk_add_f32 %s, %s, %s" % (q2(S0), q2(S0), q2(TU + 2 * k)))
        a("v_pk_add_f32 %s, %s, %s" % (q2(S0 + 2), q2(S0 + 2), q2(TU + 2 * k + 2)))
    a("v_pk_add_f32 %s, %s, %s" % (q2(S0), q2(S0), q2(S0 + 2)))
    a("v_add_f32 v%d, v%d, v%d" % (S0, S0, S0 + 1))
    xsum(S0, S0 + 1)
    a("v_mul_f32 v%d, %s, v%d" % (S0 + 4, f32bits(1.0 / 72.0), S0))
    a("v_sub_f32 v%d, 0, v%d" % (S0 + 6, S0 + 4))
    a("v_mov_b32 v%d, v%d" % (S0 + 7, S0 + 6))
    a("v_and_b32 v%d, v%d, v222" % (S0 + 8, S0 + 6))
    a("v_mov_b32 v%d, v%d" % (S0 + 9, S0 + 8))
    for k in range(12):
        a("v_pk_add_f32 %s, %s, %s" % (q2(TU + 2 * k), q2(TU + 2 * k), q2(S0 + 6 if k < 8 else S0 + 8)))
    a("v_pk_mul_f32 %s, %s, %s" % (q2(S0), q2(TU), q2(TU)))
    a("v_pk_mul_f32 %s, %s, %s" % (q2(S0 + 2), q2(TU + 2), q2(TU + 2)))
    for k in range(2, 12):
        r = S0 + 2 * (k % 2)
        a("v_pk_fma_f32 %s, %s, %s, %s" % (q2(r), q2(TU + 2 * k), q2(TU + 2 * k), q2(r)))
    a("v_pk_add_f32 %s, %s, %s" % (q2(S0), q2(S0), q2(S0 + 2)))
    a("v_add_f32 v%d, v%d, v%d" % (S0 + 5, S0, S0 + 1))
    xsum(S0 + 5, S0 + 1)
    a("s_lshl_b32 s15, s5, 12")
    a("s_add_u32 s69, s15, s44")
    a("s_add_u32 s69, s69, %s" % hex(oST))
    a("s_lshl_b32 s15, s4, 9")
    a("s_lshl_b32 s19, s3, 7")
    a("s_add_u32 s15, s15, s19")
    a("s_add_u32 s15, s15, s69")
    a("v_lshrrev_b32 v%d, 1, v221" % (S0 + 1))
    vm.op("buffer_store_dwordx2 %s, v%d, s[40:43], s15 offen%s" % (q2(S0 + 4), S0 + 1, STF), "st")
    stamp(4)

    def m_setup():
        mod_small("s6", "s5", MROT)
        a("s_mul_i32 s6, s6, %d" % (NROT // MROT))
        a("s_mul_i32 s10, s3, %d" % (8 * 18432))
        a("s_add_u32 s10, s10, %s" % hex(W2P - W1P))
        a("s_lshl_b32 s11, s5, 3")
        a("s_add_u32 s11, s11, s4")
        a("s_mul_i32 s11, s11, %d" % TB)
        a("s_add_u32 s11, s11, s44")
        a("s_add_u32 s11, s11, %s" % hex(oPART))
        a("s_mul_i32 s14, s3, 4608")
        a("s_add_u32 s11, s11, s14")
        for n in range(9):
            a("s_mul_i32 s%d, s6, 18432" % (W2T + n))
            a("s_add_u32 s%d, s%d, s10" % (W2T + n, W2T + n))
            a("s_lshl_b32 s%d, s6, 9" % sst(n))
            a("s_add_u32 s%d, s%d, s11" % (sst(n), sst(n)))
            if n < NROT - 1:
                a("s_add_u32 s6, s6, 1")
                a("s_cmp_eq_u32 s6, %d" % NROT)
                a("s_cselect_b32 s6, 0, s6")
            else:
                a("s_mov_b32 s6, %d" % (n + 1))
        a("v_add_u32 v13, 36864, v2")
        a("v_add_u32 v14, %d, v2" % TB)
        a("v_add_u32 v15, %d, v2" % (TB + 36864))
        a("v_and_b32 v5, 1, v3")
        a("v_mul_u32_u24 v5, 18432, v5")
        a("v_lshl_add_u32 v5, v4, 4, v5")
        a("v_lshrrev_b32 v6, 5, v1")
        a("v_lshl_add_u32 v5, v6, 8, v5")
        a("v_add_u32 v6, 36864, v5")
        a("s_lshr_b32 s14, s3, 1")
        a("s_lshl_b32 s14, s14, 10")
        a("s_and_b32 s15, s3, 1")
        a("s_lshl_b32 s15, s15, 3")
        a("s_add_u32 s14, s14, s15")
        a("v_add_u32 v222, s14, v14")
        a("v_add_u32 v223, s14, v15")
        a("v_lshlrev_b32 v220, 3, v1")
        a("s_mul_i32 s8, s3, 18432")
        a("s_add_u32 s62, s62, %s" % hex(oX1))
        a("s_mov_b32 s91, 0")

    hop("st", pre_a=[mload(q) for q in range(26, 32)],
        pre_b=[m_setup, lambda: aload(0)] + [mload(q) for q in range(18, 26)])
    stamp(5)

    def fr(T, s):
        k = s * 4 + T
        return q4(k * 4, "a") if k < 64 else q4(224 + (k - 64) * 4)

    for s in range(18):
        if s % 3 == 0:
            a("s_add_u32 m0, s8, %d" % (s * 1024))
            a("s_add_u32 s11, s62, %d" % (s * 1024))
        vm.op("buffer_load_dwordx4 v2, s[40:43], s11 offen offset:%d%s lds" % ((s % 3) * 1024, LD), ("y", XST[s]))

    c0 = -2.0 * math.sqrt(2.0 / math.pi) * math.log2(math.e)

    def stat_ops():
        ops = []
        e = lambda t, c=4: ops.append((t, c))
        m = lambda j: FIN + 2 * j
        t0 = TMP
        MEAN, VAR, M1, S1, M2, S2, RS = t0, t0 + 1, t0 + 2, t0 + 3, t0 + 4, t0 + 5, t0 + 6
        ops.append(("WAIT", 0))
        e("v_add_f32 v%d, v%d, v%d" % (MEAN, m(0), m(1)))
        e("v_add_f32 v%d, v%d, v%d" % (VAR, m(0) + 1, m(1) + 1))
        for j in range(2, 8):
            e("v_add_f32 v%d, v%d, v%d" % (MEAN, MEAN, m(j)))
            e("v_add_f32 v%d, v%d, v%d" % (VAR, VAR, m(j) + 1))
        e("v_mul_f32 v%d, %s, v%d" % (MEAN, f32bits(0.125), MEAN))
        e("v_mul_f32 v%d, %s, v%d" % (VAR, f32bits(1.0 / 72.0), VAR))
        for j in range(8):
            e("v_sub_f32 v%d, v%d, v%d" % (m(j), m(j), MEAN))
        for j in range(8):
            e("v_fmac_f32 v%d, v%d, v%d" % (VAR, m(j), m(j)))
        e("v_mul_f32 v%d, %s, v%d" % (VAR, f32bits(0.125), VAR))
        ln_scalars(MEAN, VAR, M1, S1, e)
        e("v_rcp_f32 v%d, v%d" % (RS, S1), 8)
        e("v_sub_f32 v%d, v%d, v%d" % (MEAN, MEAN, M1))
        e("v_mul_f32 v%d, v%d, v%d" % (MEAN, MEAN, RS))
        e("v_mul_f32 v%d, v%d, v%d" % (VAR, VAR, RS))
        e("v_mul_f32 v%d, v%d, v%d" % (VAR, VAR, RS))
        ln_scalars(MEAN, VAR, M2, S2, e)
        MU, R = M1, S1
        e("v_fmac_f32 v%d, v%d, v%d" % (MU, M2, S1))
        e("v_mul_f32 v%d, v%d, v%d" % (R, S1, S2))
        D0, D1, D2, H = t0 + 7, t0 + 8, t0 + 9, t0 + 10
        e("v_cvt_pk_bf16_f32 v%d, v%d, v%d" % (D1, MU, R))
        e("v_lshlrev_b32 v%d, 16, v%d" % (H, D1))
        e("v_sub_f32 v%d, v%d, v%d" % (H, MU, H))
        e("v_cvt_pk_bf16_f32 v%d, v%d, v%d" % (D0, MU, H))
        e("v_and_b32 v%d, 0xffff0000, v%d" % (H, D1))
        e("v_sub_f32 v%d, v%d, v%d" % (H, R, H))
        e("v_cvt_pk_bf16_f32 v%d, v%d, v%d" % (D2, MU, H))
        for T in range(4):
            e("v_cmp_eq_u32 vcc, %d, v3" % T)
            for k, d in enumerate((D0, D1, D0, D2)):
                e("v_cndmask_b32 v%d, 0, v%d, vcc" % (AB + 4 * T + k, d))
        r0, r1, r2, r3 = KC + 8, KC + 9, KC + 10, KC + 11
        e("v_mov_b32 v%d, v%d" % (r0, R))
        e("v_mov_b32 v%d, v%d" % (r2, R))
        e("v_permlane32_swap_b32 v%d, v%d" % (r0, r2))
        e("v_mov_b32 v%d, v%d" % (r1, r0))
        e("v_mov_b32 v%d, v%d" % (r3, r2))
        e("v_permlane16_swap_b32 v%d, v%d" % (r0, r1))
        e("v_permlane16_swap_b32 v%d, v%d" % (r2, r3))
        for T in range(4):
            e("v_rcp_f32 v%d, v%d" % (KC + T, KC + 8 + T), 8)
        for T in range(4):
            e("v_mul_f32 v%d, v%d, v%d" % (KC + 4 + T, KC + T, KC + T))
            e("v_mul_f32 v%d, %s, v%d" % (KC + T, f32bits(c0), KC + T))
            e("v_mul_f32 v%d, v%d, v%d" % (KC + 4 + T, KC + 4 + T, KC + T))
            e("v_mul_f32 v%d, %s, v%d" % (KC + 4 + T, f32bits(0.044715), KC + 4 + T))
        return ops

    def gelu_ops(tl):
        ops = []
        for T in range(4):
            x = [FIN + 4 * T + r for r in range(4)]
            t = [TMP + (T % 2) * 6 + r for r in range(4)]
            pk = TMP + (T % 2) * 6 + 4
            if "nogelu" in ABL:
                ops.append(("v_cvt_pk_bf16_f32 v%d, v%d, v%d" % (pk, x[0], x[1]), 4))
                ops.append(("v_cvt_pk_bf16_f32 v%d, v%d, v%d" % (pk + 1, x[2], x[3]), 4))
                ops.append(("ds_write_b64 v%d, %s offset:%d" % ((222, 223)[T // 2], q2(pk), (T % 2) * 18432 + tl * 2048), 4))
                continue
            for r in range(4):
                ops.append(("v_mul_f32 v%d, v%d, v%d" % (t[r], x[r], x[r]), 4))
            for r in range(4):
                ops.append(("v_fma_f32 v%d, v%d, v%d, v%d" % (t[r], t[r], KC + 4 + T, KC + T), 4))
            for r in range(4):
                ops.append(("v_mul_f32 v%d, v%d, v%d" % (t[r], t[r], x[r]), 4))
            for r in range(4):
                ops.append(("v_exp_f32 v%d, v%d" % (t[r], t[r]), 8))
            for r in range(4):
                ops.append(("v_fma_f32 v%d, v%d, v%d, v%d" % (t[r], t[r], KC + 8 + T, KC + 8 + T), 4))
            for r in range(4):
                ops.append(("v_rcp_f32 v%d, v%d" % (t[r], t[r]), 8))
            for r in range(4):
                ops.append(("v_mul_f32 v%d, v%d, v%d" % (t[r], t[r], x[r]), 4))
            ops.append(("v_cvt_pk_bf16_f32 v%d, v%d, v%d" % (pk, t[0], t[1]), 4))
            ops.append(("v_cvt_pk_bf16_f32 v%d, v%d, v%d" % (pk + 1, t[2], t[3]), 4))
            ops.append(("ds_write_b64 v%d, %s offset:%d" % ((222, 223)[T // 2], q2(pk), (T % 2) * 18432 + tl * 2048), 4))
        return ops

    def out_ops(n2):
        ops = []
        for T in range(4):
            ops.append(("v_cvt_pk_bf16_f32 v%d, v%d, v%d" % (PK + 2 * T, FIN + 4 * T, FIN + 4 * T + 1), 4))
            ops.append(("v_cvt_pk_bf16_f32 v%d, v%d, v%d" % (PK + 2 * T + 1, FIN + 4 * T + 2, FIN + 4 * T + 3), 4))
            if T % 2 == 1:
                ops.append(("v_permlane16_swap_b32 v%d, v%d" % (PK + 2 * T - 2, PK + 2 * T), 4))
                ops.append(("v_permlane16_swap_b32 v%d, v%d" % (PK + 2 * T - 1, PK + 2 * T + 1), 4))
                ops.append(("buffer_store_dwordx4 %s, v%d, s[40:43], s%d offen%s" % (q4(PK + 2 * T - 2), (5, 6)[T // 2], sst(n2), STF), 4))
        return ops

    cur = [0]

    def emit_fill(op):
        if op == "WAIT":
            vm.wait("stat")
        elif op.startswith("ds_"):
            lg.op(op, "hw")
        elif op.startswith("buffer_store"):
            vm.op(op, "st")
            cur[0] += 1
            if cur[0] == 2 * NE1:
                vm.ops[-1] = "st5"
        elif op.startswith("PL"):
            pload(int(op[2:]))
        else:
            if E("E64", 0) and op.split()[0] in ("v_mul_f32", "v_exp_f32", "v_rcp_f32") and "0x" not in op:
                op = op.replace("_f32 ", "_f32_e64 ", 1)
            a(op)

    def act1(T, s, second):
        off = ((T % 2) * 18 + s) * 1024
        base = ((2, 13), (14, 15))[second][T // 2]
        lg.op("ds_read_b128 %s, v%d offset:%d" % (fr(T, s), base, off), ("act", second, s))

    DT, XQ, BQ, SEL, XP = 88, 108, 128, 148, 156
    PR = lambda n: 32 + 4 * n if n < 14 else 16 + 4 * (n - 14)
    order = [(k, st, hf) for k in range(5) for st in range(2) for hf in range(2) if not (k == 4 and st == 1)]

    def r_addr_ops():
        ops = []
        e = lambda t: ops.append((t, 4))
        e("s_lshr_b32 s6, s4, 1")
        e("s_mul_i32 s6, s6, 18432")
        e("s_and_b32 s7, s4, 1")
        e("s_lshl_b32 s7, s7, 7")
        e("s_add_u32 s6, s6, s7")
        e("s_mul_i32 s7, s3, 4608")
        e("s_add_u32 s6, s6, s7")
        e("s_add_u32 s6, s6, s44")
        e("s_lshl_b32 s7, s47, 3")
        e("s_add_u32 s48, s6, s7")
        e("s_add_u32 s48, s48, %s" % hex(oPART))
        e("s_add_u32 s49, s48, %d" % (4 * TB))
        e("s_add_u32 s50, s48, 4096")
        e("s_add_u32 s51, s49, 4096")
        e("s_add_u32 s6, s6, s47")
        e("s_add_u32 s52, s6, %s" % hex(oX1))
        e("s_add_u32 s53, s52, 4096")
        e("s_add_u32 s54, s6, %s" % hex(LS + oXA))
        e("s_add_u32 s55, s6, %s" % hex(LS + oY))
        e("v_and_b32 v176, 7, v1")
        e("v_bfe_u32 v177, v1, 3, 1")
        e("v_lshlrev_b32 v178, 4, v176")
        e("v_lshl_add_u32 v178, v177, 8, v178")
        e("v_mul_u32_u24 v179, %d, v3" % TB)
        e("v_add_u32 v179, v179, v178")
        e("v_and_b32 v180, 1, v3")
        e("v_lshrrev_b32 v181, 1, v3")
        e("v_lshl_add_u32 v182, v181, 9, v178")
        e("v_lshl_add_u32 v183, v180, 10, v182")
        e("v_lshl_add_u32 v182, v180, 3, v182")
        e("v_lshlrev_b32 v184, 4, v177")
        e("v_lshl_add_u32 v184, v181, 5, v184")
        e("v_mul_u32_u24 v185, 1152, v176")
        e("v_add_u32 v185, v185, v184")
        e("v_lshl_add_u32 v185, v180, 6, v185")
        e("v_lshl_add_u32 v184, v180, 3, v184")
        e("v_mov_b32 v188, %s" % hex(OOB))
        e("v_cmp_eq_u32 vcc, 0, v3")
        e("v_add_u32 v186, 4096, v183")
        e("v_cndmask_b32 v186, v188, v186, vcc")
        e("v_cndmask_b32 v187, v188, v185, vcc")
        e("v_cmp_gt_u32 vcc, 2, v3")
        e("v_cndmask_b32 v188, 0, -1, vcc")
        e("s_lshl_b32 s66, s45, 31")
        e("s_add_u32 s60, s60, s66")
        for G in range(1, 6):
            e("s_add_u32 s%d, s66, %d" % (66 + G, G * 12288))
        return ops

    def r_setup():
        srd(36, 28, 0, 1152)
        a("s_mul_i32 s56, s3, 288")
        for k in range(5):
            vm.op("buffer_load_dwordx2 %s, v182, s[40:43], s%d offen offset:%d%s" % (q2(XP + 2 * k), 52 if k < 4 else 53, (k % 4) * 1024, LD), "rx")
            vm.op("buffer_load_dwordx2 %s, v184, s[36:39], s56 offen offset:%d" % (q2(XP + 10 + 2 * k), k * 64), "rx")
        a("v_and_b32 v189, 1, v4")
        a("v_lshlrev_b32 v189, 4, v189")
        a("v_mov_b32 v190, 0x3f80")
        a("v_lshlrev_b32 v189, v189, v190")
        a("v_lshrrev_b32 v190, 1, v4")
        for k in range(8):
            a("v_cmp_eq_u32 vcc, %d, v190" % k)
            a("v_cndmask_b32 v%d, 0, v189, vcc" % (SEL + k))
        a("v_mul_u32_u24 v190, 16, v176")
        a("s_lshl_b32 s7, s3, 2")
        a("v_add_u32 v191, s7, v190")


    def pload(n):
        k, st, hf = order[n]
        vm.op("buffer_load_dwordx4 %s, v179, s[40:43], s%d offen offset:%d%s" % (q4(PR(n)), 48 + hf + (2 if k == 4 else 0), ((4 * k + 2 * st) * 256) % 4096, LD), ("p", n))

    kpf = [wload1(i, t, "s%d" % (66 + i // 3)) for i in range(PF) for t in range(4)]
    PFT = E("PFT", 9)
    NQ = 18 * 18
    AHEAD = 3
    for n in range(18):
        gemm = 1 if n < 9 else 2
        npos = 19 if gemm == 1 else 18
        if n == 0:
            fill, g0, g1 = stat_ops(), 30, 70
        elif n <= 9:
            fill, g0, g1 = gelu_ops(n - 1), E("GG0", 0), (E("GG1", 74) if n < 9 else 50)
        elif n == 15:
            fill, g0, g1 = out_ops(n - 10) + r_addr_ops(), 8, 68
        else:
            fill, g0, g1 = out_ops(n - 10), 8, 24
        rd = n in (0, 9)
        if n == 0:
            vm.wait(("y", 0))
            a("s_barrier")
            for j in range(8):
                vm.op("buffer_load_dwordx2 %s, v220, s[40:43], s69 offen offset:%d%s" % (q2(FIN + 2 * j), j * 512, LD), "stat")
        if n == 16 and NE1:
            poll("s46", issued="poll")
            a("s_add_u32 s46, s46, 8")
        if n == 17:
            vm.wait("st")
            arrive(ret=False)
        if n == 1:
            stamp(6)
            if E("ALN", 0):
                a(".p2align 3")
                if E("ALN", 0) == 2:
                    a("s_nop 0")
        if n == 9:
            stamp(7)
            lg.wait("hw")
            a("s_barrier")
        if n == 10:
            stamp(8)
        if rd:
            for s in range(AHEAD):
                for T in range(4):
                    act1(T, s, n == 9)
        total = sum(c for _, c in fill)
        fi = spent = m = 0
        for s in range(npos):
            q = n * 18 + s
            if rd and s < 18:
                sa = s + AHEAD
                if sa < 18:
                    if n == 0 and XST[sa] != XST[sa - 1]:
                        vm.wait(("y", XST[sa]))
                        a("s_barrier")
                    if n == 9 and sa == 16:
                        assert fi == len(fill)
                        lg.wait("hw")
                        a("s_barrier")
                lg.wait(("act", n == 9, s))
            if NE1 and n == 10 + NE1 and s == 4:
                vm.wait("st5")
                arrive(ret=False)
            if NE1 and n == 15 and s == 10:
                a("s_mov_b32 s16, 0")
                a("s_atomic_add s16, s[20:21], s22 glc")
            if n == 16 and 7 <= s < 7 + 2 * NE1:
                pload(s - 7)
            if s == 18:
                assert fi == len(fill) or (n > 0 and fi > 3 * len(fill) // 4)
                vm.wait(("aug", n))
            elif s % WSTEP == 0:
                n0 = len(a.ins)
                for k in range(WSTEP):
                    vm.wait(("m", q + WSTEP - 1 - k))
                if E("E64", 0) and (len(a.ins) - n0) % 2:
                    a("s_nop 0")
            for T in range(4):
                last = s == npos - 1
                d = (FIN if last else ACC) + 4 * T
                c = "0" if s == 0 else q4(ACC + 4 * T)
                if s == 18:
                    a("%s %s, %s, %s, %s" % (MF, q4(d), q4(AUGW), q4(AB + 4 * T), c))
                else:
                    a("%s %s, %s, %s, %s" % (MF, q4(d), q4(ring(q)), fr(T, s), c))
                if rd and s + AHEAD < 18:
                    act1(T, s + AHEAD, n == 9)
                if T == 3:
                    if s < 18 and q + NR < NQ:
                        if "noload" in ABL:
                            vm.ops.append(("m", q + NR))
                        else:
                            mload(q + NR)()
                    if n == 16 and 4 <= s < 16:
                        wodma(0, s - 4)()
                    if n == 16 and s == 16:
                        kw_voffs()
                    if n == 17:
                        for k in range(s * PFT // 18, (s + 1) * PFT // 18):
                            assert k // 4 <= s
                            kpf[k]()
                    if s == 18 and n < 8:
                        a("s_add_u32 s91, s91, 1024")
                        aload(n + 1)
                if fill and g0 <= m <= g1:
                    budget = total * (m - g0 + 1) / (g1 - g0 + 1)
                    while fi < len(fill) and spent + fill[fi][1] / 2 <= budget:
                        emit_fill(fill[fi][0])
                        spent += fill[fi][1]
                        fi += 1
                m += 1
        assert fi == len(fill), (n, fi, len(fill))
    for op, _ in out_ops(8):
        emit_fill(op)
    stamp(9)

    def r_unpack():
        vm.wait("rx")
        for k in range(8, 10):
            a("v_and_b32 v%d, v%d, v188" % (XP + k, XP + k))
            a("v_and_b32 v%d, v%d, v188" % (XP + 10 + k, XP + 10 + k))
        for k in range(10):
            unpack(XQ + 2 * k, XP + k)
            unpack(BQ + 2 * k, XP + 10 + k)


    def pmfma(n):
        k, st, hf = order[n]
        vm.wait(("p", n))
        a("%s %s, %s, %s, %s" % (MF, q4(DT + 4 * k), q4(SEL + 4 * st), q4(PR(n)), q4(BQ + 4 * k) if (st == 0 and hf == 0) else q4(DT + 4 * k)))

    def early():
        a("s_mov_b32 s16, 0")
        a("s_atomic_add s16, s[20:21], s22 glc")
        r_setup()
        poll("s46", issued="poll")
        a("s_add_u32 s46, s46, 8")
        for n in range(2 * NE1, 2 * NE1 + 6):
            pload(n)

    def early2():
        for n in range(2 * NE1 + 6, 14):
            pload(n)
        r_unpack()
        for n in range(2 * NE1):
            pmfma(n)

    kpf = kpf[PFT:]
    n2 = E("PFB", 0)
    hop("st", pre_a=[early], pre_b=[early2] + kpf[:n2])
    kpf = kpf[n2:]
    stamp(10)
    for n in range(14, 18):
        pload(n)
    for n in range(2 * NE1, 18):
        pmfma(n)
    n4 = E("PFD", 0)
    for f in kpf[:n4]:
        f()
    kpf = kpf[n4:]
    TK = 192
    for k in range(10):
        cvt(TK + k, DT + 2 * k, DT + 2 * k + 1)
    for k in range(10):
        unpack(DT + 2 * k, TK + k)
    for k in range(10):
        a("v_pk_add_f32 %s, %s, %s" % (q2(DT + 2 * k), q2(DT + 2 * k), q2(XQ + 2 * k)))
    for k in range(10):
        cvt(TK + k, DT + 2 * k, DT + 2 * k + 1)
    for k in range(10):
        unpack(DT + 2 * k, TK + k)
    for kk in range(3):
        a("v_permlane16_swap_b32 v%d, v%d" % (TK + 4 * kk, TK + 4 * kk + 2))
        a("v_permlane16_swap_b32 v%d, v%d" % (TK + 4 * kk + 1, TK + 4 * kk + 3))
    a("s_cmp_eq_u32 s45, 0")
    a("s_cbranch_scc1 R_mid")
    srd(36, 30, 0, ACT)
    a("s_lshl_b32 s6, s5, 3")
    a("s_add_u32 s6, s6, s4")
    a("s_mul_i32 s6, s6, %d" % (8 * 1152))
    a("s_add_u32 s6, s6, s56")
    for kk in range(3):
        a("buffer_store_dwordx4 %s, v%d, s[36:39], s6 offen offset:%d" % (q4(TK + 4 * kk), 185 if kk < 2 else 187, kk * 128))
    stamp(11)
    rstamp(12)
    if os.environ.get("PDBG"):
        a("s_or_b32 s6, s2, s3")
        a("s_cmp_lg_u32 s6, 0")
        a("s_cbranch_scc1 L_exit2")
        a("s_load_dwordx2 s[6:7], s[0:1], %d" % KA_DBG)
        a("s_waitcnt vmcnt(0) lgkmcnt(0)")
        srd(36, 6, 0, 256)
        a("v_lshlrev_b32 v5, 2, v1")
        a("v_mov_b32 v6, %d" % (1 << 19))
        a("buffer_load_dwordx2 v[8:9], v6, s[92:95], 0 offen sc1")
        a("v_mov_b32 v6, %d" % ((1 << 19) + (P_MISC - 1) * 128))
        a("buffer_load_dwordx2 v[10:11], v6, s[92:95], 0 offen sc1")
        a("buffer_load_dword v12, v5, s[92:95], 0 offen offset:64 sc1")
        a("buffer_load_dword v13, off, s[92:95], 0 offset:%d sc1" % (128 + 64 + 44))
        a("s_waitcnt vmcnt(0)")
        a("v_sub_u32 v12, v12, v8")
        a("v_sub_u32 v13, v13, v8")
        a("v_sub_u32 v9, v9, v8")
        a("v_sub_u32 v11, v11, v8")
        a("v_cmp_gt_u32 vcc, 12, v1")
        a("v_mov_b32 v6, %s" % hex(OOB))
        a("v_cndmask_b32 v5, v6, v5, vcc")
        a("buffer_store_dword v12, v5, s[36:39], 0 offen")
        a("buffer_store_dword v13, off, s[36:39], 0 offset:48")
        a("buffer_store_dword v9, off, s[36:39], 0 offset:52")
        a("buffer_store_dword v11, off, s[36:39], 0 offset:56")
    a("L_exit2:")
    a("s_endpgm")
    a("R_mid:")
    for kk in range(3):
        vm.op("buffer_store_dwordx4 %s, v%d, s[40:43], s54 offen offset:%d%s" % (q4(TK + 4 * kk), 183 if kk < 2 else 186, (kk % 2) * 2048, ST), "st")
    S0 = XQ

    def reduce4(s, ldsoff, out):
        xsum(s, s + 1, ror8=True)
        a("ds_write_b32 v191, v%d offset:%d" % (s, ldsoff))
        a("s_waitcnt lgkmcnt(0)")
        a("s_barrier")
        a("ds_read_b128 %s, v190 offset:%d" % (q4(S0 + 4), ldsoff))
        a("s_waitcnt lgkmcnt(0)")
        a("v_pk_add_f32 %s, %s, %s" % (q2(S0 + 4), q2(S0 + 4), q2(S0 + 6)))
        a("v_add_f32 v%d, v%d, v%d" % (S0 + 4, S0 + 4, S0 + 5))
        a("v_mul_f32 v%d, %s, v%d" % (out, f32bits(1.0 / 576.0), S0 + 4))

    a("v_pk_add_f32 %s, %s, %s" % (q2(S0), q2(DT), q2(DT + 2)))
    a("v_pk_add_f32 %s, %s, %s" % (q2(S0 + 2), q2(DT + 4), q2(DT + 6)))
    for k in range(4, 10, 2):
        a("v_pk_add_f32 %s, %s, %s" % (q2(S0), q2(S0), q2(DT + 2 * k)))
        a("v_pk_add_f32 %s, %s, %s" % (q2(S0 + 2), q2(S0 + 2), q2(DT + 2 * k + 2)))
    a("v_pk_add_f32 %s, %s, %s" % (q2(S0), q2(S0), q2(S0 + 2)))
    a("v_add_f32 v%d, v%d, v%d" % (S0, S0, S0 + 1))
    MEAN, VAR, M, SD = S0 + 8, S0 + 9, S0 + 10, S0 + 12
    reduce4(S0, 0, MEAN)
    a("v_sub_f32 v%d, 0, v%d" % (S0 + 14, MEAN))
    a("v_mov_b32 v%d, v%d" % (S0 + 15, S0 + 14))
    a("v_and_b32 v%d, v%d, v188" % (S0 + 16, S0 + 14))
    a("v_mov_b32 v%d, v%d" % (S0 + 17, S0 + 16))
    for k in range(10):
        a("v_pk_add_f32 %s, %s, %s" % (q2(BQ + 2 * k), q2(DT + 2 * k), q2(S0 + 14 if k < 8 else S0 + 16)))
    a("v_pk_mul_f32 %s, %s, %s" % (q2(S0), q2(BQ), q2(BQ)))
    a("v_pk_mul_f32 %s, %s, %s" % (q2(S0 + 2), q2(BQ + 2), q2(BQ + 2)))
    for k in range(2, 10):
        r = S0 + 2 * (k % 2)
        a("v_pk_fma_f32 %s, %s, %s, %s" % (q2(r), q2(BQ + 2 * k), q2(BQ + 2 * k), q2(r)))
    a("v_pk_add_f32 %s, %s, %s" % (q2(S0), q2(S0), q2(S0 + 2)))
    a("v_add_f32 v%d, v%d, v%d" % (S0, S0, S0 + 1))
    reduce4(S0, 256, VAR)
    ln_scalars(MEAN, VAR, M, SD)
    a("v_rcp_f32 v%d, v%d" % (SD, SD))
    a("v_sub_f32 v%d, 0, v%d" % (M, M))
    a("v_mov_b32 v%d, v%d" % (M + 1, M))
    a("v_mov_b32 v%d, v%d" % (SD + 1, SD))
    for k in range(10):
        a("v_pk_add_f32 %s, %s, %s" % (q2(DT + 2 * k), q2(DT + 2 * k), q2(M)))
    TY = 204
    for k in range(10):
        cvt(TY + k, DT + 2 * k, DT + 2 * k + 1)
    for k in range(10):
        unpack(DT + 2 * k, TY + k)
    for k in range(10):
        a("v_pk_mul_f32 %s, %s, %s" % (q2(DT + 2 * k), q2(DT + 2 * k), q2(SD)))
    for k in range(10):
        cvt(TY + k, DT + 2 * k, DT + 2 * k + 1)
    for kk in range(3):
        a("v_permlane16_swap_b32 v%d, v%d" % (TY + 4 * kk, TY + 4 * kk + 2))
        a("v_permlane16_swap_b32 v%d, v%d" % (TY + 4 * kk + 1, TY + 4 * kk + 3))
    for kk in range(3):
        vm.op("buffer_store_dwordx4 %s, v%d, s[40:43], s55 offen offset:%d%s" % (q4(TY + 4 * kk), 183 if kk < 2 else 186, (kk % 2) * 2048, ST), "st")
    stamp(11)

    def next_layer():
        a("s_add_u32 s44, s44, %s" % hex(LS))
        a("s_mov_b32 s45, 1")
        a("s_add_u32 s32, s24, %s" % hex(LB + LS + oXA))
        a("s_addc_u32 s33, s25, 0")
        k1_setup(False)
        attn_consts()

    a("s_lshr_b32 s6, s4, 1")
    a("s_lshl_b32 s7, s5, 2")
    a("s_add_u32 s6, s6, s7")
    a("s_lshl_b32 s6, s6, 7")
    a("s_add_u32 s19, s6, 16384")
    a("s_add_u32 s23, s22, 16384")
    a("s_max_u32 s7, s7, 1")
    a("s_lshl_b32 s7, s7, 7")
    a("s_add_u32 s26, s7, %d" % (16384 - 128))
    for f in kpf[:10]:
        f()
    vm.wait("st")
    arrive("s19", ret=False)
    for f in kpf[10:]:
        f()
    next_layer()
    poll("8", offs=("s23", "s26"))
    if PROF:
        a("s_add_u32 s96, s96, 128")
    stamp(0)
    a("s_branch K1_second")
    a("L_code_end:")
    a("s_endpgm")


def descriptor(label, vgpr, accum, sgpr):
    return """.amdhsa_kernel %s
  .amdhsa_next_free_vgpr %d
  .amdhsa_next_free_sgpr %d
  .amdhsa_accum_offset %d
  .amdhsa_group_segment_fixed_size 0
  .amdhsa_kernarg_size 88
  .amdhsa_user_sgpr_count 2
  .amdhsa_user_sgpr_kernarg_segment_ptr 1
  .amdhsa_system_sgpr_workgroup_id_x 1
.end_amdhsa_kernel
""" % (label, vgpr, sgpr, accum)


def build():
    launches = [
        ("p_kernel", P_END, 576, 36864 + 2304, 64, 64, 64),
        ("main_kernel", 256, 256, MAIN_LDS, 512, 256, 102),
    ]
    p_kernel()
    main_kernel()
    for e in a.check_branch_seams():
        print("WARN", e, file=sys.stderr)
    head = "; generated by work/gen2.py (hand-written generator)\n"
    for l, g, b, lds, _, _, _ in launches:
        head += "; @launch kernel=%s grid=(%d,1,1) block=(%d,1,1) lds=%d\n" % (l, g, b, lds)
    head += '.amdgcn_target "amdgcn-amd-amdhsa--gfx950"\n.text\n'
    tail = '.section .rodata,"a"\n'
    for l, g, b, lds, v, ac, sg in launches:
        tail += ".p2align 6\n" + descriptor(l, v, ac, sg)
    return head + a.text() + tail


if __name__ == "__main__":
    out = sys.argv[1] if len(sys.argv) > 1 else "cdna_kernels/%s.s" % NAME
    open(out, "w").write(build())
    print("wrote", out)
```

```python
import sys, math, os
from asmlib import Asm, f32bits

NAME = "interleave_layers__sliding_local_dilated__mixer_channel_mlp__prompt"
ACT = 2048 * 576 * 2
TB = 73728
WOS = 82944
WQKVP = 0
WOP = WQKVP + 2304 * 1024
W1P = WOP + 672 * 1024
W2P = W1P + 5184 * 1024
AUG = W2P + 5184 * 1024
CNT = AUG + 72 * 1024
CNTB = 36864
LB = CNT + CNTB
oY, oO, oXA, oX1 = 0, ACT, 2 * ACT, 3 * ACT
oST = 4 * ACT
oPART = 4 * ACT + 128 * 1024
LS = oPART + 8 * ACT
WS_USED = LB + 2 * LS
WS_BYTES = 268435456
OOB = 0x80000000
ST = " sc1"
LD = " sc1"
STAMP = 200 * 1024 * 1024

E = lambda n, d: int(os.environ.get(n, str(d)))
PROF = os.environ.get("PROF", "")
MAPB = E("MAPB", 2)
MROT = E("MROT", 3)
AROT = E("AROT", 2)
APRE = E("APRE", 3)
PF = E("PF", 9)
K2PRE = E("K2PRE", 6)
TOUCH = E("TOUCH", 0)
NE1 = E("NE1", 0)
NROT = NE1 if NE1 else 7
PNT = os.environ.get("PNT", " nt").replace("_", " ")
PV = E("PV", 72)
ABL = os.environ.get("ABL", "")
XST = {0: [s // 6 for s in range(18)], 1: [0] * 3 + [1] * 5 + [2] * 5 + [3] * 5}[E("XS", 1)]
STF = "" if E("FAST", 0) else ST
WSTEP = E("WSTEP", 2)
NR = 32
SPIN = 1 << 16

KA_X, KA_WQKV, KA_WO, KA_BX, KA_W1, KA_B1, KA_W2, KA_B2, KA_OUT, KA_DBG, KA_WS = [8 * i for i in range(11)]
a = Asm()
MF = "v_mfma_f32_16x16x32_bf16"
q4 = lambda b, k="v": "%s[%d:%d]" % (k, b, b + 3)
q2 = lambda b: "v[%d:%d]" % (b, b + 1)


def srd(d, base, off, nbytes):
    if off == 0:
        a("s_mov_b32 s%d, s%d" % (d, base))
        a("s_mov_b32 s%d, s%d" % (d + 1, base + 1))
    else:
        a("s_add_u32 s%d, s%d, %s" % (d, base, off if isinstance(off, str) else hex(off)))
        a("s_addc_u32 s%d, s%d, 0" % (d + 1, base + 1))
    a("s_mov_b32 s%d, %s" % (d + 2, hex(nbytes)))
    a("s_mov_b32 s%d, 0x20000" % (d + 3))


def entry(label):
    a(".p2align 8")
    a(".globl %s" % label)
    a(".type %s,@function" % label)
    a("%s:" % label)


class VM:
    def __init__(self, cnt="vmcnt", maxn=63):
        self.ops, self.cnt, self.maxn, self.done = [], cnt, maxn, -1

    def op(self, text, tag):
        a(text)
        self.ops.append(tag)

    def wait(self, tag):
        last = max(i for i, t in enumerate(self.ops) if t == tag)
        if last <= self.done:
            return
        n = min(len(self.ops) - 1 - last, self.maxn)
        self.done = len(self.ops) - 1 - n
        a("s_waitcnt %s(%d)" % (self.cnt, n))

    def all(self):
        self.done = len(self.ops) - 1
        a("s_waitcnt %s(0)" % self.cnt)


def stamp(k):
    if PROF:
        a("s_memtime s[98:99]")
        a("s_memrealtime s[100:101]")
        a("s_waitcnt lgkmcnt(0)")
        a("v_mov_b32 v0, s98")
        a("buffer_store_dword v0, off, s[92:95], s96 offset:%d" % (4 * k))
        a("v_mov_b32 v0, s100")
        a("buffer_store_dword v0, off, s[92:95], s96 offset:%d" % (4 * k + 64))


def rstamp(k):
    if PROF:
        a("s_memrealtime s[98:99]")
        a("s_waitcnt lgkmcnt(0)")
        a("v_mov_b32 v0, s98")
        a("buffer_store_dword v0, off, s[92:95], s96 offset:%d" % (4 * k))


def unpack(dst, src):
    a("v_lshlrev_b32 v%d, 16, v%d" % (dst, src))
    a("v_and_b32 v%d, 0xffff0000, v%d" % (dst + 1, src))


def cvt(d, x, y):
    a("v_cvt_pk_bf16_f32 v%d, v%d, v%d" % (d, x, y))


def round1(r):
    cvt(r, r, r)
    a("v_and_b32 v%d, 0xffff0000, v%d" % (r, r))


def ln_scalars(mean, var, M, SD, emit=None):
    e = emit or a
    e("v_cvt_pk_bf16_f32 v%d, v%d, v%d" % (M, var, mean))
    e("v_lshlrev_b32 v%d, 16, v%d" % (SD, M))
    e("v_and_b32 v%d, 0xffff0000, v%d" % (M, M))
    e("v_add_f32 v%d, %s, v%d" % (SD, f32bits(1e-5), SD))
    e("v_cvt_pk_bf16_f32 v%d, v%d, v%d" % (SD, SD, SD))
    e("v_and_b32 v%d, 0xffff0000, v%d" % (SD, SD))
    e("v_sqrt_f32 v%d, v%d" % (SD, SD))
    e("v_cvt_pk_bf16_f32 v%d, v%d, v%d" % (SD, SD, SD))
    e("v_and_b32 v%d, 0xffff0000, v%d" % (SD, SD))


def xsum(r, t, rows16=True, rows32=True, ror8=False):
    if ror8:
        a("v_add_f32_dpp v%d, v%d, v%d row_ror:8 row_mask:0xf bank_mask:0xf" % (r, r, r))
    a("v_mov_b32 v%d, v%d" % (t, r))
    a("v_permlane16_swap_b32 v%d, v%d" % (r, t))
    a("v_add_f32 v%d, v%d, v%d" % (r, r, t))
    a("v_mov_b32 v%d, v%d" % (t, r))
    a("v_permlane32_swap_b32 v%d, v%d" % (r, t))
    a("v_add_f32 v%d, v%d, v%d" % (r, r, t))


def mod_small(dst, src, n):
    if n == 1:
        a("s_mov_b32 %s, 0" % dst)
        return
    m = -(-4096 // n)
    assert all((t * m) >> 12 == t // n for t in range(32))
    a("s_mul_i32 %s, %s, %d" % (dst, src, m))
    a("s_lshr_b32 %s, %s, 12" % (dst, dst))
    a("s_mul_i32 %s, %s, %d" % (dst, dst, n))
    a("s_sub_u32 %s, %s, %s" % (dst, src, dst))


P_LN, P_QKV, P_W1, P_W2, P_MISC, P_END = 0, 256, 328, 472, 616, 617


def p_kernel():
    entry("p_kernel")
    a("s_cmp_ge_u32 s2, %d" % P_END)
    a("s_cbranch_scc1 L_exit")
    if PROF:
        a("s_memrealtime s[56:57]")
    a("s_load_dwordx16 s[4:19], s[0:1], 0")
    a("s_load_dwordx2 s[24:25], s[0:1], %d" % KA_WS)
    a("v_lshrrev_b32 v1, 6, v0")
    a("v_readfirstlane_b32 s3, v1")
    a("v_and_b32 v1, 63, v0")
    a("v_lshlrev_b32 v2, 4, v1")
    a("v_lshrrev_b32 v3, 4, v1")
    a("v_and_b32 v4, 15, v1")
    a("v_lshlrev_b32 v5, 4, v0")
    a("s_waitcnt lgkmcnt(0)")
    srd(40, 24, 0, WS_USED)
    if E("PTOUCH", 0):
        a("s_lshr_b32 s20, s2, 5")
        a("s_or_b32 s20, s20, s3")
        a("s_cmp_lg_u32 s20, 0")
        a("s_cbranch_scc1 P_nt")
        a("v_lshlrev_b32 v62, %d, v1" % E("PTOUCH", 0))
        a("buffer_load_dword v63, v62, s[40:43], 0 offen")
        a("P_nt:")
    a("s_cmp_lt_u32 s2, %d" % P_QKV)
    a("s_cbranch_scc1 P_ln")
    a("s_cmp_ge_u32 s2, %d" % P_MISC)
    a("s_cbranch_scc1 P_misc")
    a("s_cmp_ge_u32 s2, %d" % P_W1)
    a("s_cbranch_scc1 P_w12")
    a("s_sub_u32 s29, s2, %d" % P_QKV)
    srd(36, 6, 0, 576 * 1728 * 2)
    a("s_mul_i32 s20, s29, %d" % (8 * 3456))
    a("s_lshl_b32 s21, s3, 10")
    for n in range(3):
        a("s_add_u32 m0, s21, %d" % (n * 9216))
        a("s_add_u32 s22, s20, %d" % (n * 9216))
        a("buffer_load_dwordx4 v5, s[36:39], s22 offen" + PNT + " lds")
    srd(32, 8, 0, 576 * 576 * 2)
    a("s_mov_b32 s20, s29")
    a("s_lshr_b32 s21, s20, 2")
    a("s_and_b32 s22, s20, 3")
    a("v_mul_u32_u24 v6, 911, v0")
    a("v_lshrrev_b32 v6, 16, v6")
    a("v_mul_u32_u24 v7, 72, v6")
    a("v_sub_u32 v7, v0, v7")
    a("s_cmp_ge_u32 s21, 16")
    a("s_cbranch_scc1 P_wo_tail")
    a("s_mul_i32 s23, s21, 36")
    a("s_lshl_b32 s26, s22, 2")
    a("s_add_u32 s23, s23, s26")
    a("v_lshrrev_b32 v8, 2, v6")
    a("v_and_b32 v9, 3, v6")
    a("s_branch P_wo_go")
    a("P_wo_tail:")
    a("s_sub_u32 s23, s20, 64")
    a("s_mul_i32 s23, s23, 72")
    a("s_add_u32 s23, s23, 16")
    a("v_lshrrev_b32 v8, 1, v6")
    a("v_and_b32 v9, 1, v6")
    a("P_wo_go:")
    a("v_mul_u32_u24 v8, 18, v8")
    a("v_add_u32 v8, v8, v9")
    a("v_mul_u32_u24 v8, 1152, v8")
    a("v_lshl_add_u32 v8, v7, 4, v8")
    a("s_mul_i32 s23, s23, 1152")
    a("s_lshl_b32 s26, s3, 10")
    a("s_add_u32 m0, s26, 27648")
    a("buffer_load_dwordx4 v8, s[32:35], s23 offen" + PNT + " lds")
    a("s_mul_i32 s27, s21, 4608")
    a("s_add_u32 s27, s27, %s" % hex(WOP))
    a("v_lshrrev_b32 v8, 4, v7")
    a("v_lshlrev_b32 v8, 10, v8")
    a("v_and_b32 v9, 15, v7")
    a("v_lshl_add_u32 v8, v9, 4, v8")
    a("s_lshl_b32 s26, s22, 7")
    a("v_mov_b32 v10, s26")
    a("v_lshlrev_b32 v11, 1, v10")
    a("v_cmp_gt_u32 vcc, 64, v7")
    a("v_cndmask_b32 v10, v10, v11, vcc")
    a("v_add_u32 v8, v8, v10")
    a("s_mov_b32 s26, %d" % WOS)
    a("v_mad_u32_u24 v3, v6, s26, v8")
    a("v_lshlrev_b32 v4, 1, v0")
    a("s_lshr_b32 s22, s29, 2")
    a("s_lshl_b32 s22, s22, 12")
    a("s_and_b32 s23, s29, 3")
    a("s_lshl_b32 s23, s23, 8")
    a("s_add_u32 s22, s22, s23")
    a("v_mov_b32 v15, %s" % hex(OOB))
    for n in range(4):
        u, src, dst = 6, 48 + n, 52 + n
        a("v_add_u32 v6, %d, v0" % (n * 576))
        a("v_lshrrev_b32 v7, 6, v6")
        a("v_bfe_u32 v8, v6, 4, 2")
        a("v_and_b32 v9, 15, v6")
        a("v_mul_u32_u24 v10, 36, v7")
        a("v_mul_u32_u24 v11, 1152, v8")
        a("v_lshl_add_u32 v11, v9, 1, v11")
        a("v_lshrrev_b32 v12, 1, v9")
        a("v_mul_u32_u24 v12, 1152, v12")
        a("v_and_b32 v13, 1, v9")
        a("v_lshl_add_u32 v12, v13, 1, v12")
        a("v_add_u32 v12, 32, v12")
        a("v_cmp_eq_u32 vcc, 3, v8")
        a("v_cndmask_b32 v11, v11, v12, vcc")
        a("v_cmp_lt_u32 s[44:45], 5, v9")
        a("s_and_b64 s[%d:%d], vcc, s[44:45]" % (46 + 2 * n, 47 + 2 * n))
        a("v_cndmask_b32 v11, v11, 0, s[%d:%d]" % (46 + 2 * n, 47 + 2 * n))
        a("v_add_u32 v%d, v10, v11" % src)
        a("v_mul_u32_u24 v7, 73728, v7")
        a("v_lshl_add_u32 v7, v8, 10, v7")
        a("v_lshl_add_u32 v%d, v9, 4, v7" % dst)
        if n == 3:
            a("v_cmp_gt_u32 vcc, 2048, v6")
            a("v_cndmask_b32 v%d, v15, v%d, vcc" % (dst, dst))
            a("v_cndmask_b32 v%d, 0, v%d, vcc" % (src, src))
    a("s_waitcnt vmcnt(0)")
    a("s_barrier")
    for n in range(4):
        for j in range(8):
            a("ds_read_u16 v%d, v%d offset:%d" % (16 + n * 8 + j, 48 + n, j * 3456))
        if n % 2 == 1:
            a("s_waitcnt lgkmcnt(0)")
            for m in (n - 1, n):
                for k in range(4):
                    a("v_lshl_or_b32 v%d, v%d, 16, v%d" % (16 + m * 8 + k, 16 + m * 8 + 2 * k + 1, 16 + m * 8 + 2 * k))
                    a("v_cndmask_b32 v%d, v%d, 0, s[%d:%d]" % (16 + m * 8 + k, 16 + m * 8 + k, 46 + 2 * m, 47 + 2 * m))
                a("buffer_store_dwordx4 %s, v%d, s[40:43], s22 offen%s" % (q4(16 + m * 8), 52 + m, ST))
    for j in range(8):
        a("ds_read_u16 v%d, v4 offset:%d" % (56 + j, 27648 + j * 1152))
    a("s_waitcnt lgkmcnt(0)")
    for k in range(4):
        a("v_lshl_or_b32 v%d, v%d, 16, v%d" % (56 + k, 56 + 2 * k + 1, 56 + 2 * k))
    a("buffer_store_dwordx4 v[56:59], v3, s[40:43], s27 offen%s" % ST)
    a("s_branch P_end" if PROF else "s_endpgm")

    a("P_ln:")
    srd(36, 4, 0, ACT)
    a("s_sub_u32 s20, s2, %d" % P_LN)
    a("v_lshrrev_b32 v1, 3, v0")
    a("v_and_b32 v7, 7, v0")
    a("v_lshlrev_b32 v8, 4, v1")
    a("v_mul_u32_u24 v9, 1152, v7")
    a("v_add_u32 v9, v9, v8")
    a("s_mul_i32 s21, s20, %d" % (8 * 1152))
    a("buffer_load_dwordx4 v[16:19], v9, s[36:39], s21 offen" + PNT)
    a("v_lshlrev_b32 v3, 8, v1")
    a("v_lshl_add_u32 v3, v7, 4, v3")
    a("s_lshr_b32 s22, s20, 1")
    a("s_mul_i32 s22, s22, 18432")
    a("s_and_b32 s23, s20, 1")
    a("s_lshl_b32 s23, s23, 7")
    a("s_add_u32 s22, s22, s23")
    a("s_add_u32 s22, s22, %s" % hex(LB + oY))
    a("v_mul_u32_u24 v11, 48, v7")
    a("v_lshrrev_b32 v12, 6, v0")
    a("v_lshl_add_u32 v12, v12, 2, v11")
    AC, T, P = 24, 32, 48
    a("s_waitcnt vmcnt(0)")
    for k in range(4):
        unpack(AC + 2 * k, 16 + k)

    def reduce9(s, ldsoff, out):
        xsum(s, s + 1, ror8=True)
        a("ds_write_b32 v12, v%d offset:%d" % (s, ldsoff))
        a("s_waitcnt lgkmcnt(0)")
        a("s_barrier")
        a("ds_read_b128 %s, v11 offset:%d" % (q4(P), ldsoff))
        a("ds_read_b128 %s, v11 offset:%d" % (q4(P + 4), ldsoff + 16))
        a("ds_read_b32 v%d, v11 offset:%d" % (P + 8, ldsoff + 32))
        a("s_waitcnt lgkmcnt(0)")
        a("v_pk_add_f32 %s, %s, %s" % (q2(P), q2(P), q2(P + 2)))
        a("v_pk_add_f32 %s, %s, %s" % (q2(P + 4), q2(P + 4), q2(P + 6)))
        a("v_pk_add_f32 %s, %s, %s" % (q2(P), q2(P), q2(P + 4)))
        a("v_add_f32 v%d, v%d, v%d" % (P, P, P + 1))
        a("v_add_f32 v%d, v%d, v%d" % (P, P, P + 8))
        a("v_mul_f32 v%d, %s, v%d" % (out, f32bits(1.0 / 576.0), P))

    S, MEAN, VAR, M, SD = 40, 42, 43, 44, 45
    a("v_pk_add_f32 %s, %s, %s" % (q2(T), q2(AC), q2(AC + 2)))
    a("v_pk_add_f32 %s, %s, %s" % (q2(T + 2), q2(AC + 4), q2(AC + 6)))
    a("v_pk_add_f32 %s, %s, %s" % (q2(T), q2(T), q2(T + 2)))
    a("v_add_f32 v%d, v%d, v%d" % (S, T, T + 1))
    reduce9(S, 0, MEAN)
    for k in range(8):
        a("v_sub_f32 v%d, v%d, v%d" % (T + k, AC + k, MEAN))
    a("v_mul_f32 v%d, v%d, v%d" % (S, T, T))
    for k in range(1, 8):
        a("v_fmac_f32 v%d, v%d, v%d" % (S, T + k, T + k))
    reduce9(S, 512, VAR)
    ln_scalars(MEAN, VAR, M, SD)
    a("v_rcp_f32 v%d, v%d" % (SD, SD))
    for k in range(8):
        a("v_sub_f32 v%d, v%d, v%d" % (AC + k, AC + k, M))
    for k in range(4):
        cvt(T + k, AC + 2 * k, AC + 2 * k + 1)
    for k in range(4):
        unpack(AC + 2 * k, T + k)
    for k in range(8):
        a("v_mul_f32 v%d, v%d, v%d" % (AC + k, AC + k, SD))
    for k in range(4):
        cvt(T + k, AC + 2 * k, AC + 2 * k + 1)
    a("buffer_store_dwordx4 %s, v3, s[40:43], s22 offen%s" % (q4(T), ST))
    a("s_branch P_end" if PROF else "s_endpgm")

    a("P_w12:")
    a("v_lshrrev_b32 v5, 3, v1")
    a("v_and_b32 v6, 7, v1")
    a("v_lshlrev_b32 v6, 4, v6")
    a("v_bfe_u32 v7, v1, 2, 2")
    a("v_and_b32 v8, 3, v1")
    a("s_lshl_b32 s21, s3, 12")
    a("s_cmp_ge_u32 s2, %d" % P_W2)
    a("s_cbranch_scc1 P_w2")
    if "now1" in ABL:
        a("s_branch P_end")

    def w12(stride, second):
        for n in range(4):
            a("s_add_u32 m0, s21, %d" % (n * 1024))
            a("buffer_load_dwordx4 v9, s[36:39], s22 offen" + PNT + " lds")
            if n < 3:
                a("s_add_u32 s22, s22, %d" % (8 * stride))

    def w12b(second):
        for tl in range(4):
            a("ds_read_b64_tr_b16 %s, v10 offset:%d" % (q2(16 + tl * 4), tl * 32))
            a("ds_read_b64_tr_b16 %s, v10 offset:%d" % (q2(18 + tl * 4), tl * 32 + second))
        for tl in range(4):
            a("s_waitcnt lgkmcnt(%d)" % (6 - 2 * tl))
            a("s_add_u32 s26, s23, %d" % (tl * 18432))
            a("buffer_store_dwordx4 %s, v2, s[40:43], s26 offen%s" % (q4(16 + tl * 4), ST))

    srd(36, 12, 0, 576 * 4608 * 2)
    a("s_sub_u32 s28, s2, %d" % P_W1)
    a("s_lshr_b32 s20, s28, 1")
    a("s_and_b32 s28, s28, 1")
    a("s_mul_i32 s29, s28, 9")
    a("s_add_u32 s29, s29, s3")
    a("s_mul_i32 s22, s29, %d" % (32 * 9216))
    a("s_lshl_b32 s27, s20, 7")
    a("s_add_u32 s22, s22, s27")
    a("v_mul_u32_u24 v9, 9216, v5")
    a("v_add_u32 v9, v9, v6")
    w12(9216, 512)
    srd(32, 14, 0, 4608 * 2)
    a("v_lshlrev_b32 v5, 1, v1")
    a("buffer_load_ushort v40, v5, s[32:35], s27 offen")
    a("v_lshl_add_u32 v10, v3, 3, v7")
    a("v_lshlrev_b32 v10, 7, v10")
    a("v_lshl_add_u32 v10, v8, 3, v10")
    a("v_add_u32 v10, s21, v10")
    a("s_mul_i32 s23, s20, %d" % (4 * 18432))
    a("s_lshl_b32 s26, s29, 10")
    a("s_add_u32 s23, s23, s26")
    a("s_add_u32 s23, s23, %s" % hex(W1P))
    for k in range(4):
        a("v_mov_b32 v%d, 0x3f803f80" % (12 + k))
    a("s_lshl_b32 s26, s3, 8")
    a("s_add_u32 s26, s26, 36864")
    a("v_lshlrev_b32 v11, 4, v3")
    a("v_add_u32 v11, s26, v11")
    a("s_waitcnt vmcnt(0)")
    w12b(512)
    for tl in range(4):
        a("%s %s, %s, v[12:15], 0" % (MF, q4(48 + tl * 4), q4(16 + tl * 4)))
    for tl in range(4):
        a("ds_write_b128 v11, %s offset:%d" % (q4(48 + tl * 4), tl * 64))
    a("s_waitcnt lgkmcnt(0)")
    a("s_barrier")
    a("s_cmp_lg_u32 s3, 0")
    a("s_cbranch_scc1 P_end")
    a("v_lshlrev_b32 v11, 2, v1")
    for w in range(9):
        a("ds_read_b32 v%d, v11 offset:%d" % (48 + w, 36864 + w * 256))
    a("s_waitcnt lgkmcnt(0)")
    for w in range(1, 9):
        a("v_add_f32 v48, v48, v%d" % (48 + w))
    a("v_sub_f32 v48, 0, v48")
    cvt(60, 48, 48)
    a("v_and_b32 v49, 0xffff0000, v60")
    a("v_sub_f32 v49, v48, v49")
    cvt(49, 49, 49)
    a("v_and_b32 v49, 0xffff, v49")
    a("v_lshl_or_b32 v61, v40, 16, v49")
    a("s_lshl_b32 s27, s20, 10")
    a("s_lshl_b32 s28, s28, 3")
    a("s_add_u32 s27, s27, s28")
    a("s_add_u32 s27, s27, %s" % hex(AUG))
    a("buffer_store_dwordx2 v[60:61], v2, s[40:43], s27 offen%s" % ST)
    a("s_branch P_end" if PROF else "s_endpgm")

    a("P_w2:")
    if "now2" in ABL:
        a("s_cmp_ge_u32 s2, %d" % (P_W2 + 32))
        a("s_cbranch_scc1 P_end")
    srd(36, 16, 0, 576 * 4608 * 2)
    a("s_sub_u32 s20, s2, %d" % P_W2)
    a("s_mul_i32 s22, s20, %d" % (32 * 1152))
    a("s_lshl_b32 s23, s3, 7")
    a("s_add_u32 s22, s22, s23")
    a("v_mul_u32_u24 v9, 1152, v5")
    a("v_add_u32 v9, v9, v6")
    w12(1152, 2048)
    a("v_lshl_add_u32 v10, v3, 2, v7")
    a("v_lshlrev_b32 v10, 7, v10")
    a("v_lshl_add_u32 v10, v8, 3, v10")
    a("v_add_u32 v10, s21, v10")
    a("s_mul_i32 s26, s20, 3641")
    a("s_lshr_b32 s26, s26, 16")
    a("s_mul_i32 s27, s26, 18")
    a("s_sub_u32 s27, s20, s27")
    a("s_mul_i32 s23, s26, %d" % (36 * 18432))
    a("s_mul_i32 s26, s3, %d" % (4 * 18432))
    a("s_add_u32 s23, s23, s26")
    a("s_lshl_b32 s27, s27, 10")
    a("s_add_u32 s23, s23, s27")
    a("s_add_u32 s23, s23, %s" % hex(W2P))
    a("s_waitcnt vmcnt(0)")
    w12b(2048)
    a("s_branch P_end" if PROF else "s_endpgm")

    a("P_misc:")
    for k in range(4):
        a("v_mov_b32 v%d, 0" % (16 + k))
    a("v_lshlrev_b32 v5, 4, v0")
    srd(36, 24, CNT, CNTB)
    for k in range(4):
        a("s_mov_b32 s22, %d" % (k * 9216))
        a("buffer_store_dwordx4 v[16:19], v5, s[36:39], s22 offen%s" % ST)
    a("s_getpc_b64 s[20:21]")
    a("P_pc:")
    a("s_add_u32 s36, s20, main_kernel-P_pc")
    a("s_addc_u32 s37, s21, 0")
    a("s_mov_b32 s38, L_code_end-main_kernel")
    a("s_mov_b32 s39, 0x20000")
    a("s_mov_b32 s22, 0")
    for k in range(7):
        a("buffer_load_dwordx4 %s, v5, s[36:39], s22 offen" % q4(20 + 4 * k))
        a("s_add_u32 s22, s22, 9216")
    a("s_waitcnt vmcnt(0)")
    a("P_end:")
    if PROF:
        a("s_waitcnt vmcnt(0)")
        a("s_memrealtime s[58:59]")
        srd(36, 24, STAMP + (1 << 19), 1 << 19)
        a("s_lshl_b32 s60, s2, 4")
        a("s_add_u32 s60, s60, s3")
        a("s_lshl_b32 s60, s60, 3")
        a("s_waitcnt lgkmcnt(0)")
        a("v_mov_b32 v0, s56")
        a("v_mov_b32 v1, s58")
        a("buffer_store_dwordx2 v[0:1], off, s[36:39], s60")
    a("L_exit:")
    a("s_endpgm")


L_SCR, L_OX, L_Y, L_WA, L_WB = 0, 8192, 20480, 112640, 20480
MAIN_LDS = 163840
uid = [0]


def main_kernel():
    entry("main_kernel")
    a("s_cmp_ge_u32 s2, 256")
    a("s_cbranch_scc1 L_exit2")
    a("s_load_dwordx2 s[24:25], s[0:1], %d" % KA_WS)
    a("s_load_dwordx4 s[28:31], s[0:1], %d" % KA_B2)
    a("s_load_dwordx2 s[32:33], s[0:1], %d" % KA_X)
    a("s_mov_b32 s34, %d" % ACT)
    a("s_mov_b32 s35, 0x20000")
    vm = VM()
    lg = VM("lgkmcnt", 15)
    a("v_lshrrev_b32 v1, 6, v0")
    a("v_readfirstlane_b32 s3, v1")
    a("v_and_b32 v1, 63, v0")
    a("v_lshlrev_b32 v2, 4, v1")
    a("v_lshrrev_b32 v3, 4, v1")
    a("v_and_b32 v4, 15, v1")
    b = MAPB
    spx = 8 // b
    tpx = 32 // spx
    lb = {1: 0, 2: 1, 4: 2, 8: 3}
    a("s_and_b32 s6, s2, 7")
    a("s_lshr_b32 s7, s2, 3")
    a("s_and_b32 s4, s6, %d" % (b - 1))
    a("s_lshl_b32 s4, s4, %d" % lb[spx])
    a("s_and_b32 s8, s7, %d" % (spx - 1))
    a("s_add_u32 s4, s4, s8")
    a("s_lshr_b32 s5, s6, %d" % lb[b])
    a("s_mul_i32 s5, s5, %d" % tpx)
    a("s_lshr_b32 s8, s7, %d" % lb[spx])
    a("s_add_u32 s5, s5, s8")
    a("s_mov_b32 s44, %s" % hex(LB))
    a("s_mov_b32 s45, 0")
    a("s_mov_b32 s46, 8")
    a("s_mov_b32 s27, 1")
    a("s_mov_b32 s97, 1152")
    a("s_mul_i32 s47, s5, %d" % TB)

    KY, KW = 48, 54

    def k1_setup(rot):
        if rot:
            mod_small("s6", "s5", AROT)
            a("s_mul_i32 s6, s6, %d" % (6 // AROT))
        else:
            a("s_mov_b32 s6, 0")
        for G in range(6):
            a("s_mul_i32 s%d, s6, 3072" % (KY + G))
            a("s_add_u32 s%d, s%d, s44" % (KY + G, KY + G))
            a("s_mul_i32 s%d, s6, 12288" % (KW + G))
            if G < 5:
                a("s_add_u32 s6, s6, 1")
                a("s_cmp_eq_u32 s6, 6")
                a("s_cselect_b32 s6, 0, s6")
        a("s_mul_i32 s8, s3, 18432")
        a("s_add_u32 s8, s8, s47")
        a("v_add_u32 v7, s8, v2")
        a("s_min_u32 s9, s3, 2")
        a("s_lshl_b32 s11, s9, 10")
        a("s_add_u32 s8, s47, s11")
        a("s_sub_u32 s8, s8, 18432")
        a("s_cmp_eq_u32 s5, 0")
        a("s_cselect_b32 s8, %s, s8" % hex(OOB))
        a("v_add_u32 v8, s8, v2")
        a("s_add_u32 s11, s11, %d" % L_Y)
        a("s_mul_i32 s10, s3, 18432")
        a("s_add_u32 s10, s10, %d" % (L_Y + 18432))
        a("v_add_u32 v5, %d, v2" % L_Y)
        a("v_add_u32 v6, %d, v2" % (L_Y + 46080))

    def kw_voffs():
        a("s_lshl_b32 s12, s4, 2")
        a("s_add_u32 s12, s12, s3")
        a("s_mul_i32 s12, s12, 73728")
        a("v_add_u32 v9, s12, v2")
        a("v_add_u32 v10, 4096, v9")
        a("v_add_u32 v11, 8192, v9")

    k1_setup(True)
    kw_voffs()
    a("s_waitcnt lgkmcnt(0)")
    srd(40, 24, 0, WS_USED)
    a("s_add_u32 s20, s24, %s" % hex(CNT))
    a("s_addc_u32 s21, s25, 0")
    a("s_lshl_b32 s22, s5, 2")
    a("s_add_u32 s22, s22, s3")
    a("s_lshl_b32 s22, s22, 7")
    if PROF:
        srd(92, 24, STAMP, 1 << 20)
        a("s_lshl_b32 s96, s2, 2")
        a("s_add_u32 s96, s96, s3")
        a("s_lshl_b32 s96, s96, 8")
    rstamp(12)
    stamp(0)

    def arrive(off="s22", ret=True):
        if ret:
            a("s_mov_b32 s16, 1")
            a("s_atomic_add s16, s[20:21], %s glc" % off)
        else:
            a("s_atomic_add s27, s[20:21], %s" % off)

    def poll(target, offs=("s22",), issued=None):
        uid[0] += 1
        u = uid[0]

        def rd():
            for k, o in enumerate(offs):
                a("s_mov_b32 s%d, 0" % (16 + k))
                a("s_atomic_add s%d, s[20:21], %s glc" % (16 + k, o))
        a("s_mov_b32 s18, %d" % SPIN)
        if issued is None:
            rd()
        lg.all()
        if issued == "arrive":
            a("s_add_u32 s16, s16, 1")
        a("H%d_l:" % u)
        if len(offs) > 1:
            a("s_min_u32 s16, s16, s17")
        a("s_cmp_ge_u32 s16, %s" % target)
        a("s_cbranch_scc1 H%d_b" % u)
        a("s_sub_u32 s18, s18, 1")
        a("s_cbranch_scc1 H%d_b" % u)
        rd()
        a("s_waitcnt lgkmcnt(0)")
        a("s_branch H%d_l" % u)
        a("H%d_b:" % u)

    def hop(tag, pre_a=(), pre_b=()):
        for f in pre_a:
            f()
        vm.wait(tag)
        arrive()
        for f in pre_b:
            f()
        poll("s46", issued="arrive")
        a("s_add_u32 s46, s46, 8")

    QA, KA, VA, CA, YF = 16, 32, 52, 72, 92
    MSK, SM = 132, 136

    def wslot(i, t):
        return ((i % 16) * 4 + t) * 4

    def wload1(i, t, sreg=None):
        def f():
            s = sreg or "s%d" % (KW + i // 3)
            vm.op("buffer_load_dwordx4 %s, v%d, s[40:43], %s offen offset:%d" % (q4(wslot(i, t), "a"), 9 + i % 3, s, t * 1024), ("w", i))
        return f

    def ydma1(G, k):
        def f():
            if k < 3:
                a("s_add_u32 m0, s10, %d" % (G * 3072))
                vm.op("buffer_load_dwordx4 v7, s[40:43], s%d offen offset:%d%s lds" % (KY + G, k * 1024, LD), ("y", G))
            else:
                a("s_add_u32 m0, s11, %d" % (G * 3072))
                vm.op("buffer_load_dwordx4 v8, s[40:43], s%d offen%s lds" % (KY + G, LD), ("y", G))
        return f

    def yread1(i, T):
        def f():
            off = (T * 18 + i) * 1024
            base = 5
            if off >= 46080:
                off -= 46080
                base = 6
            a("ds_read_b128 %s, v%d offset:%d" % (q4(YF + (i % 2) * 20 + T * 4), base, off))
        return f

    def wodma(region, n):
        def f():
            a("s_add_u32 m0, s%d, %d" % ((13, 14)[region], (n // 4) * 4096))
            a("s_add_u32 s15, s%d, %d" % ((60, 61)[region], (n // 4) * 4096))
            vm.op("buffer_load_dwordx4 v2, s[40:43], s15 offen offset:%d lds" % ((n % 4) * 1024), "wo")
        return f

    def attn_consts():
        a("v_and_b32 v13, 1, v4")
        a("v_cmp_eq_u32 s[70:71], 1, v13")
        a("v_lshl_add_u32 v14, v3, 2, v13")
        a("v_cmp_ge_u32 s[72:73], v4, v14")
        a("v_add_u32 v14, 2, v14")
        a("v_cmp_ge_u32 s[74:75], v4, v14")
        a("v_mov_b32 v13, 0xffff")
        a("v_mov_b32 v14, 0xffff0000")
        a("v_cndmask_b32 v13, v13, v14, s[70:71]")
        a("v_cndmask_b32 v%d, v13, 0, s[72:73]" % (MSK + 0))
        a("v_cndmask_b32 v%d, v13, 0, s[74:75]" % (MSK + 1))
        a("v_cndmask_b32 v%d, 0, v13, s[72:73]" % (MSK + 2))
        a("v_cndmask_b32 v%d, 0, v13, s[74:75]" % (MSK + 3))
        a("s_cmp_eq_u32 s5, 0")
        a("s_cselect_b32 s14, %s, 0" % f32bits(-1e9 * math.sqrt(18.0)))
        for k in range(4):
            a("v_mov_b32 v%d, s14" % (SM + k))
        a("s_lshl_b32 s14, s3, 11")
        a("v_lshlrev_b32 v141, 9, v3")
        a("v_lshl_add_u32 v141, v4, 1, v141")
        a("v_add_u32 v141, s14, v141")
        a("v_and_b32 v142, 1, v4")
        a("v_mul_u32_u24 v142, 160, v142")
        a("v_lshl_add_u32 v142, v3, 3, v142")
        a("s_add_u32 s14, s14, 512")
        a("v_add_u32 v142, s14, v142")
        a("s_lshr_b32 s14, s3, 1")
        a("s_lshl_b32 s14, s14, 10")
        a("s_and_b32 s15, s3, 1")
        a("s_lshl_b32 s15, s15, 3")
        a("s_add_u32 s14, s14, s15")
        a("s_add_u32 s14, s14, %d" % L_OX)
        a("v_add_u32 v143, s14, v2")
        a("s_lshl_b32 s14, s3, 2")
        a("s_add_u32 s14, s14, %d" % (L_OX + 2048))
        a("v_add_u32 v144, s14, v2")
        a("s_mul_i32 s14, s3, 3072")
        a("s_add_u32 s14, s14, %d" % L_OX)
        a("v_add_u32 v145, s14, v2")
        a("s_mul_i32 s60, s4, %d" % WOS)
        a("s_add_u32 s60, s60, %s" % hex(WOP))
        a("s_mul_i32 s14, s3, 9216")
        a("s_add_u32 s61, s60, s14")
        a("s_add_u32 s61, s61, 46080")
        a("s_mul_i32 s14, s3, 18432")
        a("s_add_u32 s14, s14, %d" % L_Y)
        a("s_mul_i32 s13, s3, 12288")
        a("s_add_u32 s60, s60, s13")
        a("s_add_u32 s13, s13, %d" % L_WA)

    def qkv(pre):
        if not pre:
            for k in range(4):
                ydma1(0, k)()
            for t in range(4):
                wload1(0, t)()
            for k in range(4):
                ydma1(1, k)()
            for i in range(1, APRE):
                for t in range(4):
                    wload1(i, t)()
            if TOUCH:
                a("s_getpc_b64 s[36:37]")
                a("M_pc:")
                a("s_mov_b32 s38, L_code_end-M_pc")
                a("s_mov_b32 s39, 0x20000")
                a("s_lshr_b32 s6, s2, 3")
                a("s_lshl_b32 s6, s6, 2")
                a("s_add_u32 s6, s6, s3")
                a("s_lshl_b32 s6, s6, 9")
                a("v_lshlrev_b32 v249, 3, v1")
                vm.op("buffer_load_dword v250, v249, s[36:39], s6 offen", "t")
            attn_consts()
            ahead_y = 2
        else:
            for i in range(pre):
                vm.ops.append(("w", i))
            for G in range(3):
                for k in range(4):
                    ydma1(G, k)()
            ahead_y = 3
        vm.wait(("y", 0))
        a("s_barrier")
        for T in range(5):
            yread1(0, T)()
        wo_list = ([] if pre else [wodma(0, n) for n in range(12)]) + [wodma(1, n) for n in range(9)]
        for i in range(18):
            if i + 1 < 18 and (i + 1) % 3 == 0:
                vm.wait(("y", (i + 1) // 3))
                a("s_barrier")
            a("s_waitcnt lgkmcnt(0)")
            vm.wait(("w", i))
            mem = []
            if i // 3 + ahead_y < 6:
                mem += [ydma1(i // 3 + ahead_y, k) for k in ((0, 3), (1,), (2,))[i % 3]]
            nxt = i + APRE
            if pre:
                nxt = pre + i - 1 if i >= 1 else None
                if nxt is not None and nxt - 16 >= i:
                    nxt = None
            if nxt is not None and nxt < 18:
                mem += [wload1(nxt, t) for t in range(4)]
            if (i >= 11) if pre else (nxt >= 18):
                take = -(-len(wo_list) // (18 - i))
                assert i >= 11 or len(wo_list) - take >= 9
                mem += wo_list[:take]
                wo_list = wo_list[take:]
            rds = [yread1(i + 1, T) for T in range(5)] if i + 1 < 18 else []
            slots = {}
            for k, f in enumerate(mem):
                slots.setdefault(1 + (k * 18) // len(mem), []).append(f)
            for k, f in enumerate(rds):
                slots.setdefault(2 * k, []).append(f)
            m = 0
            for T in range(5):
                y = q4(YF + (i % 2) * 20 + T * 4)
                for t, base in ((1, KA), (2, VA), (3, CA), (0, QA)):
                    if t == 0 and T == 0:
                        continue
                    d = base + (T - 1 if t == 0 else T) * 4
                    w = q4(wslot(i, t), "a")
                    c = "0" if i == 0 else q4(d)
                    A_, B_ = (y, w) if t == 2 else (w, y)
                    a("%s %s, %s, %s, %s" % (MF, q4(d), A_, B_, c))
                    for f in slots.get(m, []):
                        f()
                    m += 1
        assert not wo_list, len(wo_list)

    qkv(0)
    a("s_branch K1_attn")
    a("K1_second:")
    vm.done = -1
    vm.ops = []
    qkv(PF)
    a("K1_attn:")
    vm.ops = []
    vm.done = -1
    stamp(1)
    vm.ops.append("wo")
    side = []
    XR = 208

    def k2_addr():
        a("s_mul_i32 s62, s3, 18432")
        a("s_add_u32 s62, s62, s47")
        a("s_add_u32 s62, s62, s44")
        a("s_mul_i32 s63, s4, 2304")
        a("s_add_u32 s63, s63, s62")
        a("v_and_b32 v220, 1, v3")
        a("v_lshlrev_b32 v220, 9, v220")
        a("v_lshl_add_u32 v220, v4, 4, v220")
        a("v_lshrrev_b32 v221, 5, v1")
        a("v_lshl_add_u32 v220, v221, 8, v220")
        a("v_mov_b32 v221, %s" % hex(OOB))
        a("v_cmp_eq_u32 vcc, 0, v3")
        a("v_cndmask_b32 v221, v221, v220, vcc")
        a("v_cndmask_b32 v222, 0, -1, vcc")
        a("s_add_u32 s65, s63, %s" % hex(oX1))
        a("s_sub_u32 s64, s63, s44")
        a("s_mul_i32 s6, s4, 144")
        a("s_sub_u32 s7, s62, s44")
        a("s_add_u32 s6, s6, s7")
        a("v_lshrrev_b32 v206, 4, v220")
        a("v_and_b32 v206, 0x30, v206")
        a("v_mad_u32_u24 v206, v4, s97, v206")
        a("s_cmp_eq_u32 s45, 0")
        a("s_cselect_b32 s64, s6, s64")
        a("s_cselect_b32 s6, 64, 1024")
        a("s_cselect_b64 s[8:9], -1, 0")
        a("v_cndmask_b32 v206, v220, v206, s[8:9]")
        a("v_add_u32 v207, s6, v206")
        a("v_add_u32 v223, s6, v207")
        a("v_cndmask_b32 v223, v221, v223, vcc")

    def xload(kk):
        def f():
            vm.op("buffer_load_dwordx4 %s, v%d, s[32:35], s64 offen%s" % (q4(XR + 4 * kk), (206, 207, 223)[kk], LD), "x")
        return f

    k2_addr()
    side += [xload(k) for k in range(3)]
    cnt = [0]

    def v(text):
        a(text)
        cnt[0] += 1
        if cnt[0] % 12 == 0 and side:
            side.pop(0)()

    QO, KO, VP, X0, V2 = 148, 164, 184, 194, 196
    for T in range(5):
        xd = X0 if T == 0 else QO + (T - 1) * 4 + 2
        v("v_cvt_pk_bf16_f32 v%d, v%d, v%d" % (xd, CA + T * 4, CA + T * 4 + 1))
        a("ds_write_b16 v141, v%d offset:%d" % (xd, T * 32))
        a("ds_write_b16_d16_hi v141, v%d offset:%d" % (xd, T * 32 + 160))
    for T in range(5):
        v("v_cvt_pk_bf16_f32 v%d, v%d, v%d" % (KO + T * 4 + 2, CA + T * 4 + 2, CA + T * 4 + 3))
        v("v_cvt_pk_bf16_f32 v%d, v%d, v%d" % (KO + T * 4, KA + T * 4, KA + T * 4 + 1))
        v("v_cvt_pk_bf16_f32 v%d, v%d, v%d" % (KO + T * 4 + 1, KA + T * 4 + 2, KA + T * 4 + 3))
        v("v_mov_b32 v%d, 0" % (KO + T * 4 + 3))
        if T:
            q = QO + (T - 1) * 4
            v("v_cvt_pk_bf16_f32 v%d, v%d, v%d" % (q, QA + (T - 1) * 4, QA + (T - 1) * 4 + 1))
            v("v_cvt_pk_bf16_f32 v%d, v%d, v%d" % (q + 1, QA + (T - 1) * 4 + 2, QA + (T - 1) * 4 + 3))
            v("v_mov_b32 v%d, 0" % (q + 3))
    for T in range(5):
        a("ds_read_b64 %s, v142 offset:%d" % (q2(V2 + 2 * T), T * 32))
    SP = YF
    Ts = range(1, 5)
    for T in Ts:
        q = q4(QO + (T - 1) * 4)
        sp = SP + (T - 1) * 8
        a("%s %s, %s, %s, %s" % (MF, q4(sp), q4(KO + (T - 1) * 4), q, q4(SM) if T == 1 else "0"))
        a("%s %s, %s, %s, 0" % (MF, q4(sp + 4), q4(KO + T * 4), q))
    for T in range(5):
        v("v_cvt_pk_bf16_f32 v%d, v%d, v%d" % (VP + 2 * T, VA + T * 4, VA + T * 4 + 1))
        v("v_cvt_pk_bf16_f32 v%d, v%d, v%d" % (VP + 2 * T + 1, VA + T * 4 + 2, VA + T * 4 + 3))
    a("s_mov_b32 s19, %s" % f32bits((18.0 ** -0.5) * math.log2(math.e)))
    W = lambda T, k: 16 + (T - 1) * 8 + k
    for T in Ts:
        sp = SP + (T - 1) * 8
        v("v_cndmask_b32 v%d, v%d, v%d, s[70:71]" % (W(T, 2), sp + 4, sp + 5))
        v("v_cndmask_b32 v%d, v%d, v%d, s[70:71]" % (W(T, 3), sp + 0, sp + 1))
        v("v_cndmask_b32 v%d, v%d, v%d, s[70:71]" % (W(T, 4), sp + 6, sp + 7))
        v("v_cndmask_b32 v%d, v%d, v%d, s[70:71]" % (W(T, 5), sp + 2, sp + 3))
        v("v_cndmask_b32 v%d, v%d, v%d, s[72:73]" % (W(T, 0), W(T, 3), W(T, 2)))
        v("v_cndmask_b32 v%d, v%d, v%d, s[74:75]" % (W(T, 1), W(T, 5), W(T, 4)))
        v("v_max_f32 v%d, v%d, v%d" % (W(T, 2), W(T, 0), W(T, 1)))
        v("v_mov_b32 v%d, v%d" % (W(T, 3), W(T, 2)))

    def xlane(op):
        for T in Ts:
            v("v_permlane16_swap_b32 v%d, v%d" % (W(T, 2), W(T, 3)))
        for T in Ts:
            v("%s v%d, v%d, v%d" % (op, W(T, 2), W(T, 2), W(T, 3)))
            v("v_mov_b32 v%d, v%d" % (W(T, 3), W(T, 2)))
        for T in Ts:
            v("v_permlane32_swap_b32 v%d, v%d" % (W(T, 2), W(T, 3)))
        for T in Ts:
            v("%s v%d, v%d, v%d" % (op, W(T, 2), W(T, 2), W(T, 3)))

    xlane("v_max_f32")
    for T in Ts:
        v("v_sub_f32 v%d, v%d, v%d" % (W(T, 0), W(T, 0), W(T, 2)))
        v("v_sub_f32 v%d, v%d, v%d" % (W(T, 1), W(T, 1), W(T, 2)))
        v("v_mul_f32 v%d, s19, v%d" % (W(T, 0), W(T, 0)))
        v("v_mul_f32 v%d, s19, v%d" % (W(T, 1), W(T, 1)))
    for T in Ts:
        v("v_exp_f32 v%d, v%d" % (W(T, 0), W(T, 0)))
        v("v_exp_f32 v%d, v%d" % (W(T, 1), W(T, 1)))
    for T in Ts:
        v("v_add_f32 v%d, v%d, v%d" % (W(T, 2), W(T, 0), W(T, 1)))
        v("v_mov_b32 v%d, v%d" % (W(T, 3), W(T, 2)))
    xlane("v_add_f32")
    for T in Ts:
        v("v_rcp_f32 v%d, v%d" % (W(T, 2), W(T, 2)))
    for T in Ts:
        v("v_mul_f32 v%d, v%d, v%d" % (W(T, 0), W(T, 0), W(T, 2)))
        v("v_mul_f32 v%d, v%d, v%d" % (W(T, 1), W(T, 1), W(T, 2)))
        v("v_cvt_pk_bf16_f32 v%d, v%d, v%d" % (W(T, 0), W(T, 0), W(T, 0)))
        v("v_cvt_pk_bf16_f32 v%d, v%d, v%d" % (W(T, 1), W(T, 1), W(T, 1)))
        v("v_and_b32 v%d, v%d, v%d" % (W(T, 4), W(T, 0), MSK + 0))
        v("v_and_b32 v%d, v%d, v%d" % (W(T, 5), W(T, 1), MSK + 1))
        v("v_and_b32 v%d, v%d, v%d" % (W(T, 6), W(T, 0), MSK + 2))
        v("v_and_b32 v%d, v%d, v%d" % (W(T, 7), W(T, 1), MSK + 3))
    while side:
        side.pop(0)()
    a("s_waitcnt lgkmcnt(0)")
    for T in Ts:
        sp = SP + (T - 1) * 8
        p = q4(W(T, 4))
        a("%s %s, %s, %s, 0" % (MF, q4(sp), q4(VP + 2 * (T - 1)), p))
        a("%s %s, %s, %s, 0" % (MF, q4(sp + 4), q4(V2 + 2 * (T - 1)), p))
    a("s_add_u32 s66, s62, %s" % hex(oO))
    a("s_lshl_b32 s67, s4, 11")
    a("s_add_u32 s67, s67, s66")
    a("s_lshl_b32 s68, s4, 8")
    a("s_add_u32 s68, s68, s66")
    a("s_add_u32 s68, s68, 16384")
    for T in Ts:
        sp = SP + (T - 1) * 8
        o = 48 + (T - 1) * 4
        cvt(o, sp, sp + 1)
        cvt(o + 1, sp + 2, sp + 3)
        cvt(o + 2, sp + 4, sp + 5)
        a("ds_write_b64 v143, %s offset:%d" % (q2(o), (T - 1) * 3072))
        a("ds_write_b32 v144, v%d offset:%d" % (o + 2, (T - 1) * 3072))
    a("s_waitcnt lgkmcnt(0)")
    vm.wait("wo")
    a("s_barrier")
    for st in range(3):
        a("ds_read_b128 %s, v145 offset:%d" % (q4(224 + st * 4), st * 1024))
    for st in range(3):
        a("s_waitcnt lgkmcnt(%d)" % (2 - st))
        if st < 2:
            vm.op("buffer_store_dwordx4 %s, v2, s[40:43], s67 offen offset:%d%s" % (q4(224 + st * 4), st * 1024, STF), "st")
        else:
            vm.op("buffer_store_dwordx4 %s, v221, s[40:43], s68 offen%s" % (q4(232), STF), "st")
    stamp(2)

    WS = 48
    ACC, FIN, AUGW, TMP, KC, AB = 144, 160, 176, 180, 192, 204
    PK = 204

    def ring(q):
        return 16 + (q % NR) * 4

    def m_voffs():
        a("s_mul_i32 s9, s4, 36")
        a("s_add_u32 s9, s9, s3")
        a("s_mul_i32 s11, s9, 18432")
        a("s_add_u32 s11, s11, %s" % hex(W1P))
        a("v_add_u32 v7, s11, v2")
        for k in range(1, 5):
            a("v_add_u32 v%d, %d, v7" % (7 + k, 4096 * k))
        a("s_lshl_b32 s11, s9, 8")
        a("s_add_u32 s11, s11, %s" % hex(AUG))
        a("v_lshl_add_u32 v12, v4, 4, s11")
        for n in range(9):
            a("s_mov_b32 s%d, %d" % (WS + n, n * 4 * 18432))

    W2T, STT = 76, 57
    sst = lambda n: (57 + n) if n < 3 else (85 + n - 3)

    def mload(q):
        def f():
            n, s = divmod(q, 18)
            sr = WS + n if n < 9 else W2T + n - 9
            vm.op("buffer_load_dwordx4 %s, v%d, s[40:43], s%d offen offset:%d" % (q4(ring(q)), 7 + s // 4, sr, (s % 4) * 1024), ("m", q))
        return f

    def aload(n):
        vm.op("buffer_load_dwordx4 %s, v12, s[40:43], s%d offen" % (q4(AUGW), 91), ("aug", n))

    def kslot(ks, tl):
        return ((ks % 12) * 5 + tl) * 4

    def kread(ks, tl):
        def f():
            base, off = (13, ks * 4608) if ks < 10 else (14, ((ks - 10) >> 1) * 18432 + ((ks - 10) & 1) * 4608)
            if tl == 4:
                base += 2
            lg.op("ds_read_b128 %s, v%d offset:%d" % (q4(kslot(ks, tl), "a"), base if base != 16 else 6, off + tl * 1024), ("k", ks))
        return f

    def k2_pre():
        a("v_add_u32 v13, %d, v2" % L_WA)
        a("v_add_u32 v14, %d, v2" % L_WB)
        a("v_and_b32 v15, 7, v4")
        a("v_lshlrev_b32 v15, 4, v15")
        a("v_lshl_add_u32 v15, v3, 7, v15")
        a("v_add_u32 v6, %d, v15" % L_WB)
        a("v_add_u32 v15, %d, v15" % L_WA)
        for ks in range(K2PRE):
            for tl in range(5):
                kread(ks, tl)()

    XU = 224
    def x_unpack():
        for k in range(12):
            unpack(XU + 2 * k, XR + k)

    m_voffs()
    hop("st", pre_a=[mload(q) for q in range(8)],
        pre_b=[k2_pre] + [mload(q) for q in range(8, 18)] + [x_unpack])
    stamp(3)

    OFR, KAC = 88, 160
    a("v_add_u32 v5, 4096, v2")
    rest = [kread(ks, tl) for ks in range(K2PRE, 12) for tl in range(5)]
    for ks in range(18):
        if ks % 8 == 0:
            a("s_add_u32 s15, s66, %d" % (ks * 1024))
        vm.op("buffer_load_dwordx4 %s, v%d, s[40:43], s15 offen offset:%d%s" % (q4(OFR + ks * 4), (2, 5)[(ks % 8) // 4], (ks % 4) * 1024, LD), ("o", ks))
        for f in rest[:3]:
            f()
        rest = rest[3:]
    assert not rest
    for ks in range(18):
        vm.wait(("o", ks))
        lg.wait(("k", ks))
        for tl in range(5):
            a("%s %s, %s, %s, %s" % (MF, q4(KAC + tl * 4), q4(kslot(ks, tl), "a"), q4(OFR + ks * 4), "0" if ks == 0 else q4(KAC + tl * 4)))
            if ks < 6:
                kread(ks + 12, tl)()
    a("s_barrier")
    TP, TU = 180, 88
    for tl in range(5):
        cvt(TP + 2 * tl, KAC + 4 * tl, KAC + 4 * tl + 1)
        cvt(TP + 2 * tl + 1, KAC + 4 * tl + 2, KAC + 4 * tl + 3)
    for kk in range(3):
        a("v_permlane16_swap_b32 v%d, v%d" % (TP + 4 * kk, TP + 4 * kk + 2))
        a("v_permlane16_swap_b32 v%d, v%d" % (TP + 4 * kk + 1, TP + 4 * kk + 3))
    for k in range(8, 12):
        a("v_and_b32 v%d, v%d, v222" % (TP + k, TP + k))
    for kk in range(3):
        for k in range(4 * kk, 4 * kk + 4):
            unpack(TU + 2 * k, TP + k)
        for k in range(4 * kk, 4 * kk + 4):
            a("v_pk_add_f32 %s, %s, %s" % (q2(TU + 2 * k), q2(TU + 2 * k), q2(XU + 2 * k)))
        for k in range(4 * kk, 4 * kk + 4):
            cvt(XR + k, TU + 2 * k, TU + 2 * k + 1)
        vm.op("buffer_store_dwordx4 %s, v%d, s[40:43], s65 offen offset:%d%s" % (q4(XR + 4 * kk), 220 if kk < 2 else 221, kk * 1024, STF), "st")
    for k in range(12):
        unpack(TU + 2 * k, XR + k)
    S0 = 112
    a("v_pk_add_f32 %s, %s, %s" % (q2(S0), q2(TU), q2(TU + 2)))
    a("v_pk_add_f32 %s, %s, %s" % (q2(S0 + 2), q2(TU + 4), q2(TU + 6)))
    for k in range(4, 12, 2):
        a("v_pk_add_f32 %s, %s, %s" % (q2(S0), q2(S0), q2(TU + 2 * k)))
        a("v_pk_add_f32 %s, %s, %s" % (q2(S0 + 2), q2(S0 + 2), q2(TU + 2 * k + 2)))
    a("v_pk_add_f32 %s, %s, %s" % (q2(S0), q2(S0), q2(S0 + 2)))
    a("v_add_f32 v%d, v%d, v%d" % (S0, S0, S0 + 1))
    xsum(S0, S0 + 1)
    a("v_mul_f32 v%d, %s, v%d" % (S0 + 4, f32bits(1.0 / 72.0), S0))
    a("v_sub_f32 v%d, 0, v%d" % (S0 + 6, S0 + 4))
    a("v_mov_b32 v%d, v%d" % (S0 + 7, S0 + 6))
    a("v_and_b32 v%d, v%d, v222" % (S0 + 8, S0 + 6))
    a("v_mov_b32 v%d, v%d" % (S0 + 9, S0 + 8))
    for k in range(12):
        a("v_pk_add_f32 %s, %s, %s" % (q2(TU + 2 * k), q2(TU + 2 * k), q2(S0 + 6 if k < 8 else S0 + 8)))
    a("v_pk_mul_f32 %s, %s, %s" % (q2(S0), q2(TU), q2(TU)))
    a("v_pk_mul_f32 %s, %s, %s" % (q2(S0 + 2), q2(TU + 2), q2(TU + 2)))
    for k in range(2, 12):
        r = S0 + 2 * (k % 2)
        a("v_pk_fma_f32 %s, %s, %s, %s" % (q2(r), q2(TU + 2 * k), q2(TU + 2 * k), q2(r)))
    a("v_pk_add_f32 %s, %s, %s" % (q2(S0), q2(S0), q2(S0 + 2)))
    a("v_add_f32 v%d, v%d, v%d" % (S0 + 5, S0, S0 + 1))
    xsum(S0 + 5, S0 + 1)
    a("s_lshl_b32 s15, s5, 12")
    a("s_add_u32 s69, s15, s44")
    a("s_add_u32 s69, s69, %s" % hex(oST))
    a("s_lshl_b32 s15, s4, 9")
    a("s_lshl_b32 s19, s3, 7")
    a("s_add_u32 s15, s15, s19")
    a("s_add_u32 s15, s15, s69")
    a("v_lshrrev_b32 v%d, 1, v221" % (S0 + 1))
    vm.op("buffer_store_dwordx2 %s, v%d, s[40:43], s15 offen%s" % (q2(S0 + 4), S0 + 1, STF), "st")
    stamp(4)

    def m_setup():
        mod_small("s6", "s5", MROT)
        a("s_mul_i32 s6, s6, %d" % (NROT // MROT))
        a("s_mul_i32 s10, s3, %d" % (8 * 18432))
        a("s_add_u32 s10, s10, %s" % hex(W2P - W1P))
        a("s_lshl_b32 s11, s5, 3")
        a("s_add_u32 s11, s11, s4")
        a("s_mul_i32 s11, s11, %d" % TB)
        a("s_add_u32 s11, s11, s44")
        a("s_add_u32 s11, s11, %s" % hex(oPART))
        a("s_mul_i32 s14, s3, 4608")
        a("s_add_u32 s11, s11, s14")
        for n in range(9):
            a("s_mul_i32 s%d, s6, 18432" % (W2T + n))
            a("s_add_u32 s%d, s%d, s10" % (W2T + n, W2T + n))
            a("s_lshl_b32 s%d, s6, 9" % sst(n))
            a("s_add_u32 s%d, s%d, s11" % (sst(n), sst(n)))
            if n < NROT - 1:
                a("s_add_u32 s6, s6, 1")
                a("s_cmp_eq_u32 s6, %d" % NROT)
                a("s_cselect_b32 s6, 0, s6")
            else:
                a("s_mov_b32 s6, %d" % (n + 1))
        a("v_add_u32 v13, 36864, v2")
        a("v_add_u32 v14, %d, v2" % TB)
        a("v_add_u32 v15, %d, v2" % (TB + 36864))
        a("v_and_b32 v5, 1, v3")
        a("v_mul_u32_u24 v5, 18432, v5")
        a("v_lshl_add_u32 v5, v4, 4, v5")
        a("v_lshrrev_b32 v6, 5, v1")
        a("v_lshl_add_u32 v5, v6, 8, v5")
        a("v_add_u32 v6, 36864, v5")
        a("s_lshr_b32 s14, s3, 1")
        a("s_lshl_b32 s14, s14, 10")
        a("s_and_b32 s15, s3, 1")
        a("s_lshl_b32 s15, s15, 3")
        a("s_add_u32 s14, s14, s15")
        a("v_add_u32 v222, s14, v14")
        a("v_add_u32 v223, s14, v15")
        a("v_lshlrev_b32 v220, 3, v1")
        a("s_mul_i32 s8, s3, 18432")
        a("s_add_u32 s62, s62, %s" % hex(oX1))
        a("s_mov_b32 s91, 0")

    hop("st", pre_a=[mload(q) for q in range(26, 32)],
        pre_b=[m_setup, lambda: aload(0)] + [mload(q) for q in range(18, 26)])
    stamp(5)

    def fr(T, s):
        k = s * 4 + T
        return q4(k * 4, "a") if k < 64 else q4(224 + (k - 64) * 4)

    for s in range(18):
        if s % 3 == 0:
            a("s_add_u32 m0, s8, %d" % (s * 1024))
            a("s_add_u32 s11, s62, %d" % (s * 1024))
        vm.op("buffer_load_dwordx4 v2, s[40:43], s11 offen offset:%d%s lds" % ((s % 3) * 1024, LD), ("y", XST[s]))

    c0 = -2.0 * math.sqrt(2.0 / math.pi) * math.log2(math.e)

    def stat_ops():
        ops = []
        e = lambda t, c=4: ops.append((t, c))
        m = lambda j: FIN + 2 * j
        t0 = TMP
        MEAN, VAR, M1, S1, M2, S2, RS = t0, t0 + 1, t0 + 2, t0 + 3, t0 + 4, t0 + 5, t0 + 6
        ops.append(("WAIT", 0))
        e("v_add_f32 v%d, v%d, v%d" % (MEAN, m(0), m(1)))
        e("v_add_f32 v%d, v%d, v%d" % (VAR, m(0) + 1, m(1) + 1))
        for j in range(2, 8):
            e("v_add_f32 v%d, v%d, v%d" % (MEAN, MEAN, m(j)))
            e("v_add_f32 v%d, v%d, v%d" % (VAR, VAR, m(j) + 1))
        e("v_mul_f32 v%d, %s, v%d" % (MEAN, f32bits(0.125), MEAN))
        e("v_mul_f32 v%d, %s, v%d" % (VAR, f32bits(1.0 / 72.0), VAR))
        for j in range(8):
            e("v_sub_f32 v%d, v%d, v%d" % (m(j), m(j), MEAN))
        for j in range(8):
            e("v_fmac_f32 v%d, v%d, v%d" % (VAR, m(j), m(j)))
        e("v_mul_f32 v%d, %s, v%d" % (VAR, f32bits(0.125), VAR))
        ln_scalars(MEAN, VAR, M1, S1, e)
        e("v_rcp_f32 v%d, v%d" % (RS, S1), 8)
        e("v_sub_f32 v%d, v%d, v%d" % (MEAN, MEAN, M1))
        e("v_mul_f32 v%d, v%d, v%d" % (MEAN, MEAN, RS))
        e("v_mul_f32 v%d, v%d, v%d" % (VAR, VAR, RS))
        e("v_mul_f32 v%d, v%d, v%d" % (VAR, VAR, RS))
        ln_scalars(MEAN, VAR, M2, S2, e)
        MU, R = M1, S1
        e("v_fmac_f32 v%d, v%d, v%d" % (MU, M2, S1))
        e("v_mul_f32 v%d, v%d, v%d" % (R, S1, S2))
        D0, D1, D2, H = t0 + 7, t0 + 8, t0 + 9, t0 + 10
        e("v_cvt_pk_bf16_f32 v%d, v%d, v%d" % (D1, MU, R))
        e("v_lshlrev_b32 v%d, 16, v%d" % (H, D1))
        e("v_sub_f32 v%d, v%d, v%d" % (H, MU, H))
        e("v_cvt_pk_bf16_f32 v%d, v%d, v%d" % (D0, MU, H))
        e("v_and_b32 v%d, 0xffff0000, v%d" % (H, D1))
        e("v_sub_f32 v%d, v%d, v%d" % (H, R, H))
        e("v_cvt_pk_bf16_f32 v%d, v%d, v%d" % (D2, MU, H))
        for T in range(4):
            e("v_cmp_eq_u32 vcc, %d, v3" % T)
            for k, d in enumerate((D0, D1, D0, D2)):
                e("v_cndmask_b32 v%d, 0, v%d, vcc" % (AB + 4 * T + k, d))
        r0, r1, r2, r3 = KC + 8, KC + 9, KC + 10, KC + 11
        e("v_mov_b32 v%d, v%d" % (r0, R))
        e("v_mov_b32 v%d, v%d" % (r2, R))
        e("v_permlane32_swap_b32 v%d, v%d" % (r0, r2))
        e("v_mov_b32 v%d, v%d" % (r1, r0))
        e("v_mov_b32 v%d, v%d" % (r3, r2))
        e("v_permlane16_swap_b32 v%d, v%d" % (r0, r1))
        e("v_permlane16_swap_b32 v%d, v%d" % (r2, r3))
        for T in range(4):
            e("v_rcp_f32 v%d, v%d" % (KC + T, KC + 8 + T), 8)
        for T in range(4):
            e("v_mul_f32 v%d, v%d, v%d" % (KC + 4 + T, KC + T, KC + T))
            e("v_mul_f32 v%d, %s, v%d" % (KC + T, f32bits(c0), KC + T))
            e("v_mul_f32 v%d, v%d, v%d" % (KC + 4 + T, KC + 4 + T, KC + T))
            e("v_mul_f32 v%d, %s, v%d" % (KC + 4 + T, f32bits(0.044715), KC + 4 + T))
        return ops

    def gelu_ops(tl):
        ops = []
        for T in range(4):
            x = [FIN + 4 * T + r for r in range(4)]
            t = [TMP + (T % 2) * 6 + r for r in range(4)]
            pk = TMP + (T % 2) * 6 + 4
            if "nogelu" in ABL:
                ops.append(("v_cvt_pk_bf16_f32 v%d, v%d, v%d" % (pk, x[0], x[1]), 4))
                ops.append(("v_cvt_pk_bf16_f32 v%d, v%d, v%d" % (pk + 1, x[2], x[3]), 4))
                ops.append(("ds_write_b64 v%d, %s offset:%d" % ((222, 223)[T // 2], q2(pk), (T % 2) * 18432 + tl * 2048), 4))
                continue
            for r in range(4):
                ops.append(("v_mul_f32 v%d, v%d, v%d" % (t[r], x[r], x[r]), 4))
            for r in range(4):
                ops.append(("v_fma_f32 v%d, v%d, v%d, v%d" % (t[r], t[r], KC + 4 + T, KC + T), 4))
            for r in range(4):
                ops.append(("v_mul_f32 v%d, v%d, v%d" % (t[r], t[r], x[r]), 4))
            for r in range(4):
                ops.append(("v_exp_f32 v%d, v%d" % (t[r], t[r]), 8))
            for r in range(4):
                ops.append(("v_fma_f32 v%d, v%d, v%d, v%d" % (t[r], t[r], KC + 8 + T, KC + 8 + T), 4))
            for r in range(4):
                ops.append(("v_rcp_f32 v%d, v%d" % (t[r], t[r]), 8))
            for r in range(4):
                ops.append(("v_mul_f32 v%d, v%d, v%d" % (t[r], t[r], x[r]), 4))
            ops.append(("v_cvt_pk_bf16_f32 v%d, v%d, v%d" % (pk, t[0], t[1]), 4))
            ops.append(("v_cvt_pk_bf16_f32 v%d, v%d, v%d" % (pk + 1, t[2], t[3]), 4))
            ops.append(("ds_write_b64 v%d, %s offset:%d" % ((222, 223)[T // 2], q2(pk), (T % 2) * 18432 + tl * 2048), 4))
        return ops

    def out_ops(n2):
        ops = []
        for T in range(4):
            ops.append(("v_cvt_pk_bf16_f32 v%d, v%d, v%d" % (PK + 2 * T, FIN + 4 * T, FIN + 4 * T + 1), 4))
            ops.append(("v_cvt_pk_bf16_f32 v%d, v%d, v%d" % (PK + 2 * T + 1, FIN + 4 * T + 2, FIN + 4 * T + 3), 4))
            if T % 2 == 1:
                ops.append(("v_permlane16_swap_b32 v%d, v%d" % (PK + 2 * T - 2, PK + 2 * T), 4))
                ops.append(("v_permlane16_swap_b32 v%d, v%d" % (PK + 2 * T - 1, PK + 2 * T + 1), 4))
                ops.append(("buffer_store_dwordx4 %s, v%d, s[40:43], s%d offen%s" % (q4(PK + 2 * T - 2), (5, 6)[T // 2], sst(n2), STF), 4))
        return ops

    cur = [0]

    def emit_fill(op):
        if op == "WAIT":
            vm.wait("stat")
        elif op.startswith("ds_"):
            lg.op(op, "hw")
        elif op.startswith("buffer_store"):
            vm.op(op, "st")
            cur[0] += 1
            if cur[0] == 2 * NE1:
                vm.ops[-1] = "st5"
        elif op.startswith("PL"):
            pload(int(op[2:]))
        else:
            if E("E64", 0) and op.split()[0] in ("v_mul_f32", "v_exp_f32", "v_rcp_f32") and "0x" not in op:
                op = op.replace("_f32 ", "_f32_e64 ", 1)
            a(op)

    def act1(T, s, second):
        off = ((T % 2) * 18 + s) * 1024
        base = ((2, 13), (14, 15))[second][T // 2]
        lg.op("ds_read_b128 %s, v%d offset:%d" % (fr(T, s), base, off), ("act", second, s))

    DT, XQ, BQ, SEL, XP = 88, 108, 128, 148, 156
    PR = lambda n: 32 + 4 * n if n < 14 else 16 + 4 * (n - 14)
    order = [(k, st, hf) for k in range(5) for st in range(2) for hf in range(2) if not (k == 4 and st == 1)]

    def r_addr_ops():
        ops = []
        e = lambda t: ops.append((t, 4))
        e("s_lshr_b32 s6, s4, 1")
        e("s_mul_i32 s6, s6, 18432")
        e("s_and_b32 s7, s4, 1")
        e("s_lshl_b32 s7, s7, 7")
        e("s_add_u32 s6, s6, s7")
        e("s_mul_i32 s7, s3, 4608")
        e("s_add_u32 s6, s6, s7")
        e("s_add_u32 s6, s6, s44")
        e("s_lshl_b32 s7, s47, 3")
        e("s_add_u32 s48, s6, s7")
        e("s_add_u32 s48, s48, %s" % hex(oPART))
        e("s_add_u32 s49, s48, %d" % (4 * TB))
        e("s_add_u32 s50, s48, 4096")
        e("s_add_u32 s51, s49, 4096")
        e("s_add_u32 s6, s6, s47")
        e("s_add_u32 s52, s6, %s" % hex(oX1))
        e("s_add_u32 s53, s52, 4096")
        e("s_add_u32 s54, s6, %s" % hex(LS + oXA))
        e("s_add_u32 s55, s6, %s" % hex(LS + oY))
        e("v_and_b32 v176, 7, v1")
        e("v_bfe_u32 v177, v1, 3, 1")
        e("v_lshlrev_b32 v178, 4, v176")
        e("v_lshl_add_u32 v178, v177, 8, v178")
        e("v_mul_u32_u24 v179, %d, v3" % TB)
        e("v_add_u32 v179, v179, v178")
        e("v_and_b32 v180, 1, v3")
        e("v_lshrrev_b32 v181, 1, v3")
        e("v_lshl_add_u32 v182, v181, 9, v178")
        e("v_lshl_add_u32 v183, v180, 10, v182")
        e("v_lshl_add_u32 v182, v180, 3, v182")
        e("v_lshlrev_b32 v184, 4, v177")
        e("v_lshl_add_u32 v184, v181, 5, v184")
        e("v_mul_u32_u24 v185, 1152, v176")
        e("v_add_u32 v185, v185, v184")
        e("v_lshl_add_u32 v185, v180, 6, v185")
        e("v_lshl_add_u32 v184, v180, 3, v184")
        e("v_mov_b32 v188, %s" % hex(OOB))
        e("v_cmp_eq_u32 vcc, 0, v3")
        e("v_add_u32 v186, 4096, v183")
        e("v_cndmask_b32 v186, v188, v186, vcc")
        e("v_cndmask_b32 v187, v188, v185, vcc")
        e("v_cmp_gt_u32 vcc, 2, v3")
        e("v_cndmask_b32 v188, 0, -1, vcc")
        e("s_lshl_b32 s66, s45, 31")
        e("s_add_u32 s60, s60, s66")
        for G in range(1, 6):
            e("s_add_u32 s%d, s66, %d" % (66 + G, G * 12288))
        return ops

    def r_setup():
        srd(36, 28, 0, 1152)
        a("s_mul_i32 s56, s3, 288")
        for k in range(5):
            vm.op("buffer_load_dwordx2 %s, v182, s[40:43], s%d offen offset:%d%s" % (q2(XP + 2 * k), 52 if k < 4 else 53, (k % 4) * 1024, LD), "rx")
            vm.op("buffer_load_dwordx2 %s, v184, s[36:39], s56 offen offset:%d" % (q2(XP + 10 + 2 * k), k * 64), "rx")
        a("v_and_b32 v189, 1, v4")
        a("v_lshlrev_b32 v189, 4, v189")
        a("v_mov_b32 v190, 0x3f80")
        a("v_lshlrev_b32 v189, v189, v190")
        a("v_lshrrev_b32 v190, 1, v4")
        for k in range(8):
            a("v_cmp_eq_u32 vcc, %d, v190" % k)
            a("v_cndmask_b32 v%d, 0, v189, vcc" % (SEL + k))
        a("v_mul_u32_u24 v190, 16, v176")
        a("s_lshl_b32 s7, s3, 2")
        a("v_add_u32 v191, s7, v190")


    def pload(n):
        k, st, hf = order[n]
        vm.op("buffer_load_dwordx4 %s, v179, s[40:43], s%d offen offset:%d%s" % (q4(PR(n)), 48 + hf + (2 if k == 4 else 0), ((4 * k + 2 * st) * 256) % 4096, LD), ("p", n))

    kpf = [wload1(i, t, "s%d" % (66 + i // 3)) for i in range(PF) for t in range(4)]
    PFT = E("PFT", 9)
    NQ = 18 * 18
    AHEAD = 3
    for n in range(18):
        gemm = 1 if n < 9 else 2
        npos = 19 if gemm == 1 else 18
        if n == 0:
            fill, g0, g1 = stat_ops(), 30, 70
        elif n <= 9:
            fill, g0, g1 = gelu_ops(n - 1), E("GG0", 0), (E("GG1", 74) if n < 9 else 50)
        elif n == 15:
            fill, g0, g1 = out_ops(n - 10) + r_addr_ops(), 8, 68
        else:
            fill, g0, g1 = out_ops(n - 10), 8, 24
        rd = n in (0, 9)
        if n == 0:
            vm.wait(("y", 0))
            a("s_barrier")
            for j in range(8):
                vm.op("buffer_load_dwordx2 %s, v220, s[40:43], s69 offen offset:%d%s" % (q2(FIN + 2 * j), j * 512, LD), "stat")
        if n == 16 and NE1:
            poll("s46", issued="poll")
            a("s_add_u32 s46, s46, 8")
        if n == 17:
            vm.wait("st")
            arrive(ret=False)
        if n == 1:
            stamp(6)
            if E("ALN", 0):
                a(".p2align 3")
                if E("ALN", 0) == 2:
                    a("s_nop 0")
        if n == 9:
            stamp(7)
            lg.wait("hw")
            a("s_barrier")
        if n == 10:
            stamp(8)
        if rd:
            for s in range(AHEAD):
                for T in range(4):
                    act1(T, s, n == 9)
        total = sum(c for _, c in fill)
        fi = spent = m = 0
        for s in range(npos):
            q = n * 18 + s
            if rd and s < 18:
                sa = s + AHEAD
                if sa < 18:
                    if n == 0 and XST[sa] != XST[sa - 1]:
                        vm.wait(("y", XST[sa]))
                        a("s_barrier")
                    if n == 9 and sa == 16:
                        assert fi == len(fill)
                        lg.wait("hw")
                        a("s_barrier")
                lg.wait(("act", n == 9, s))
            if NE1 and n == 10 + NE1 and s == 4:
                vm.wait("st5")
                arrive(ret=False)
            if NE1 and n == 15 and s == 10:
                a("s_mov_b32 s16, 0")
                a("s_atomic_add s16, s[20:21], s22 glc")
            if n == 16 and 7 <= s < 7 + 2 * NE1:
                pload(s - 7)
            if s == 18:
                assert fi == len(fill) or (n > 0 and fi > 3 * len(fill) // 4)
                vm.wait(("aug", n))
            elif s % WSTEP == 0:
                n0 = len(a.ins)
                for k in range(WSTEP):
                    vm.wait(("m", q + WSTEP - 1 - k))
                if E("E64", 0) and (len(a.ins) - n0) % 2:
                    a("s_nop 0")
            for T in range(4):
                last = s == npos - 1
                d = (FIN if last else ACC) + 4 * T
                c = "0" if s == 0 else q4(ACC + 4 * T)
                if s == 18:
                    a("%s %s, %s, %s, %s" % (MF, q4(d), q4(AUGW), q4(AB + 4 * T), c))
                else:
                    a("%s %s, %s, %s, %s" % (MF, q4(d), q4(ring(q)), fr(T, s), c))
                if rd and s + AHEAD < 18:
                    act1(T, s + AHEAD, n == 9)
                if T == 3:
                    if s < 18 and q + NR < NQ:
                        if "noload" in ABL:
                            vm.ops.append(("m", q + NR))
                        else:
                            mload(q + NR)()
                    if n == 16 and 4 <= s < 16:
                        wodma(0, s - 4)()
                    if n == 16 and s == 16:
                        kw_voffs()
                    if n == 17:
                        for k in range(s * PFT // 18, (s + 1) * PFT // 18):
                            assert k // 4 <= s
                            kpf[k]()
                    if s == 18 and n < 8:
                        a("s_add_u32 s91, s91, 1024")
                        aload(n + 1)
                if fill and g0 <= m <= g1:
                    budget = total * (m - g0 + 1) / (g1 - g0 + 1)
                    while fi < len(fill) and spent + fill[fi][1] / 2 <= budget:
                        emit_fill(fill[fi][0])
                        spent += fill[fi][1]
                        fi += 1
                m += 1
        assert fi == len(fill), (n, fi, len(fill))
    for op, _ in out_ops(8):
        emit_fill(op)
    stamp(9)

    def r_unpack():
        vm.wait("rx")
        for k in range(8, 10):
            a("v_and_b32 v%d, v%d, v188" % (XP + k, XP + k))
            a("v_and_b32 v%d, v%d, v188" % (XP + 10 + k, XP + 10 + k))
        for k in range(10):
            unpack(XQ + 2 * k, XP + k)
            unpack(BQ + 2 * k, XP + 10 + k)


    def pmfma(n):
        k, st, hf = order[n]
        vm.wait(("p", n))
        a("%s %s, %s, %s, %s" % (MF, q4(DT + 4 * k), q4(SEL + 4 * st), q4(PR(n)), q4(BQ + 4 * k) if (st == 0 and hf == 0) else q4(DT + 4 * k)))

    def early():
        a("s_mov_b32 s16, 0")
        a("s_atomic_add s16, s[20:21], s22 glc")
        r_setup()
        poll("s46", issued="poll")
        a("s_add_u32 s46, s46, 8")
        for n in range(2 * NE1, 2 * NE1 + 6):
            pload(n)

    def early2():
        for n in range(2 * NE1 + 6, 14):
            pload(n)
        r_unpack()
        for n in range(2 * NE1):
            pmfma(n)

    kpf = kpf[PFT:]
    n2 = E("PFB", 0)
    hop("st", pre_a=[early], pre_b=[early2] + kpf[:n2])
    kpf = kpf[n2:]
    stamp(10)
    for n in range(14, 18):
        pload(n)
    for n in range(2 * NE1, 18):
        pmfma(n)
    n4 = E("PFD", 0)
    for f in kpf[:n4]:
        f()
    kpf = kpf[n4:]
    TK = 192
    for k in range(10):
        cvt(TK + k, DT + 2 * k, DT + 2 * k + 1)
    for k in range(10):
        unpack(DT + 2 * k, TK + k)
    for k in range(10):
        a("v_pk_add_f32 %s, %s, %s" % (q2(DT + 2 * k), q2(DT + 2 * k), q2(XQ + 2 * k)))
    for k in range(10):
        cvt(TK + k, DT + 2 * k, DT + 2 * k + 1)
    for k in range(10):
        unpack(DT + 2 * k, TK + k)
    for kk in range(3):
        a("v_permlane16_swap_b32 v%d, v%d" % (TK + 4 * kk, TK + 4 * kk + 2))
        a("v_permlane16_swap_b32 v%d, v%d" % (TK + 4 * kk + 1, TK + 4 * kk + 3))
    a("s_cmp_eq_u32 s45, 0")
    a("s_cbranch_scc1 R_mid")
    srd(36, 30, 0, ACT)
    a("s_lshl_b32 s6, s5, 3")
    a("s_add_u32 s6, s6, s4")
    a("s_mul_i32 s6, s6, %d" % (8 * 1152))
    a("s_add_u32 s6, s6, s56")
    for kk in range(3):
        a("buffer_store_dwordx4 %s, v%d, s[36:39], s6 offen offset:%d" % (q4(TK + 4 * kk), 185 if kk < 2 else 187, kk * 128))
    stamp(11)
    rstamp(12)
    if os.environ.get("PDBG"):
        a("s_or_b32 s6, s2, s3")
        a("s_cmp_lg_u32 s6, 0")
        a("s_cbranch_scc1 L_exit2")
        a("s_load_dwordx2 s[6:7], s[0:1], %d" % KA_DBG)
        a("s_waitcnt vmcnt(0) lgkmcnt(0)")
        srd(36, 6, 0, 256)
        a("v_lshlrev_b32 v5, 2, v1")
        a("v_mov_b32 v6, %d" % (1 << 19))
        a("buffer_load_dwordx2 v[8:9], v6, s[92:95], 0 offen sc1")
        a("v_mov_b32 v6, %d" % ((1 << 19) + (P_MISC - 1) * 128))
        a("buffer_load_dwordx2 v[10:11], v6, s[92:95], 0 offen sc1")
        a("buffer_load_dword v12, v5, s[92:95], 0 offen offset:64 sc1")
        a("buffer_load_dword v13, off, s[92:95], 0 offset:%d sc1" % (128 + 64 + 44))
        a("s_waitcnt vmcnt(0)")
        a("v_sub_u32 v12, v12, v8")
        a("v_sub_u32 v13, v13, v8")
        a("v_sub_u32 v9, v9, v8")
        a("v_sub_u32 v11, v11, v8")
        a("v_cmp_gt_u32 vcc, 12, v1")
        a("v_mov_b32 v6, %s" % hex(OOB))
        a("v_cndmask_b32 v5, v6, v5, vcc")
        a("buffer_store_dword v12, v5, s[36:39], 0 offen")
        a("buffer_store_dword v13, off, s[36:39], 0 offset:48")
        a("buffer_store_dword v9, off, s[36:39], 0 offset:52")
        a("buffer_store_dword v11, off, s[36:39], 0 offset:56")
    a("L_exit2:")
    a("s_endpgm")
    a("R_mid:")
    for kk in range(3):
        vm.op("buffer_store_dwordx4 %s, v%d, s[40:43], s54 offen offset:%d%s" % (q4(TK + 4 * kk), 183 if kk < 2 else 186, (kk % 2) * 2048, ST), "st")
    S0 = XQ

    def reduce4(s, ldsoff, out):
        xsum(s, s + 1, ror8=True)
        a("ds_write_b32 v191, v%d offset:%d" % (s, ldsoff))
        a("s_waitcnt lgkmcnt(0)")
        a("s_barrier")
        a("ds_read_b128 %s, v190 offset:%d" % (q4(S0 + 4), ldsoff))
        a("s_waitcnt lgkmcnt(0)")
        a("v_pk_add_f32 %s, %s, %s" % (q2(S0 + 4), q2(S0 + 4), q2(S0 + 6)))
        a("v_add_f32 v%d, v%d, v%d" % (S0 + 4, S0 + 4, S0 + 5))
        a("v_mul_f32 v%d, %s, v%d" % (out, f32bits(1.0 / 576.0), S0 + 4))

    a("v_pk_add_f32 %s, %s, %s" % (q2(S0), q2(DT), q2(DT + 2)))
    a("v_pk_add_f32 %s, %s, %s" % (q2(S0 + 2), q2(DT + 4), q2(DT + 6)))
    for k in range(4, 10, 2):
        a("v_pk_add_f32 %s, %s, %s" % (q2(S0), q2(S0), q2(DT + 2 * k)))
        a("v_pk_add_f32 %s, %s, %s" % (q2(S0 + 2), q2(S0 + 2), q2(DT + 2 * k + 2)))
    a("v_pk_add_f32 %s, %s, %s" % (q2(S0), q2(S0), q2(S0 + 2)))
    a("v_add_f32 v%d, v%d, v%d" % (S0, S0, S0 + 1))
    MEAN, VAR, M, SD = S0 + 8, S0 + 9, S0 + 10, S0 + 12
    reduce4(S0, 0, MEAN)
    a("v_sub_f32 v%d, 0, v%d" % (S0 + 14, MEAN))
    a("v_mov_b32 v%d, v%d" % (S0 + 15, S0 + 14))
    a("v_and_b32 v%d, v%d, v188" % (S0 + 16, S0 + 14))
    a("v_mov_b32 v%d, v%d" % (S0 + 17, S0 + 16))
    for k in range(10):
        a("v_pk_add_f32 %s, %s, %s" % (q2(BQ + 2 * k), q2(DT + 2 * k), q2(S0 + 14 if k < 8 else S0 + 16)))
    a("v_pk_mul_f32 %s, %s, %s" % (q2(S0), q2(BQ), q2(BQ)))
    a("v_pk_mul_f32 %s, %s, %s" % (q2(S0 + 2), q2(BQ + 2), q2(BQ + 2)))
    for k in range(2, 10):
        r = S0 + 2 * (k % 2)
        a("v_pk_fma_f32 %s, %s, %s, %s" % (q2(r), q2(BQ + 2 * k), q2(BQ + 2 * k), q2(r)))
    a("v_pk_add_f32 %s, %s, %s" % (q2(S0), q2(S0), q2(S0 + 2)))
    a("v_add_f32 v%d, v%d, v%d" % (S0, S0, S0 + 1))
    reduce4(S0, 256, VAR)
    ln_scalars(MEAN, VAR, M, SD)
    a("v_rcp_f32 v%d, v%d" % (SD, SD))
    a("v_sub_f32 v%d, 0, v%d" % (M, M))
    a("v_mov_b32 v%d, v%d" % (M + 1, M))
    a("v_mov_b32 v%d, v%d" % (SD + 1, SD))
    for k in range(10):
        a("v_pk_add_f32 %s, %s, %s" % (q2(DT + 2 * k), q2(DT + 2 * k), q2(M)))
    TY = 204
    for k in range(10):
        cvt(TY + k, DT + 2 * k, DT + 2 * k + 1)
    for k in range(10):
        unpack(DT + 2 * k, TY + k)
    for k in range(10):
        a("v_pk_mul_f32 %s, %s, %s" % (q2(DT + 2 * k), q2(DT + 2 * k), q2(SD)))
    for k in range(10):
        cvt(TY + k, DT + 2 * k, DT + 2 * k + 1)
    for kk in range(3):
        a("v_permlane16_swap_b32 v%d, v%d" % (TY + 4 * kk, TY + 4 * kk + 2))
        a("v_permlane16_swap_b32 v%d, v%d" % (TY + 4 * kk + 1, TY + 4 * kk + 3))
    for kk in range(3):
        vm.op("buffer_store_dwordx4 %s, v%d, s[40:43], s55 offen offset:%d%s" % (q4(TY + 4 * kk), 183 if kk < 2 else 186, (kk % 2) * 2048, ST), "st")
    stamp(11)

    def next_layer():
        a("s_add_u32 s44, s44, %s" % hex(LS))
        a("s_mov_b32 s45, 1")
        a("s_add_u32 s32, s24, %s" % hex(LB + LS + oXA))
        a("s_addc_u32 s33, s25, 0")
        k1_setup(False)
        attn_consts()

    a("s_lshr_b32 s6, s4, 1")
    a("s_lshl_b32 s7, s5, 2")
    a("s_add_u32 s6, s6, s7")
    a("s_lshl_b32 s6, s6, 7")
    a("s_add_u32 s19, s6, 16384")
    a("s_add_u32 s23, s22, 16384")
    a("s_max_u32 s7, s7, 1")
    a("s_lshl_b32 s7, s7, 7")
    a("s_add_u32 s26, s7, %d" % (16384 - 128))
    for f in kpf[:10]:
        f()
    vm.wait("st")
    arrive("s19", ret=False)
    for f in kpf[10:]:
        f()
    next_layer()
    poll("8", offs=("s23", "s26"))
    if PROF:
        a("s_add_u32 s96, s96, 128")
    stamp(0)
    a("s_branch K1_second")
    a("L_code_end:")
    a("s_endpgm")


def descriptor(label, vgpr, accum, sgpr):
    return """.amdhsa_kernel %s
  .amdhsa_next_free_vgpr %d
  .amdhsa_next_free_sgpr %d
  .amdhsa_accum_offset %d
  .amdhsa_group_segment_fixed_size 0
  .amdhsa_kernarg_size 88
  .amdhsa_user_sgpr_count 2
  .amdhsa_user_sgpr_kernarg_segment_ptr 1
  .amdhsa_system_sgpr_workgroup_id_x 1
.end_amdhsa_kernel
""" % (label, vgpr, sgpr, accum)


def build():
    launches = [
        ("p_kernel", P_END, 576, 36864 + 2304, 64, 64, 64),
        ("main_kernel", 256, 256, MAIN_LDS, 512, 256, 102),
    ]
    p_kernel()
    main_kernel()
    for e in a.check_branch_seams():
        print("WARN", e, file=sys.stderr)
    head = "; generated by work/gen2.py (hand-written generator)\n"
    for l, g, b, lds, _, _, _ in launches:
        head += "; @launch kernel=%s grid=(%d,1,1) block=(%d,1,1) lds=%d\n" % (l, g, b, lds)
    head += '.amdgcn_target "amdgcn-amd-amdhsa--gfx950"\n.text\n'
    tail = '.section .rodata,"a"\n'
    for l, g, b, lds, v, ac, sg in launches:
        tail += ".p2align 6\n" + descriptor(l, v, ac, sg)
    return head + a.text() + tail


if __name__ == "__main__":
    out = sys.argv[1] if len(sys.argv) > 1 else "cdna_kernels/%s.s" % NAME
    open(out, "w").write(build())
    print("wrote", out)
```

```python
import sys, math, os
from asmlib import Asm, f32bits

NAME = "interleave_layers__sliding_local_dilated__mixer_channel_mlp__prompt"
ACT = 2048 * 576 * 2
TB = 73728
WOS = 82944
WQKVP = 0
WOP = WQKVP + 2304 * 1024
W1P = WOP + 672 * 1024
W2P = W1P + 5184 * 1024
AUG = W2P + 5184 * 1024
CNT = AUG + 72 * 1024
CNTB = 36864
LB = CNT + CNTB
oY, oO, oXA, oX1 = 0, ACT, 2 * ACT, 3 * ACT
oST = 4 * ACT
oPART = 4 * ACT + 128 * 1024
LS = oPART + 8 * ACT
WS_USED = LB + 2 * LS
WS_BYTES = 268435456
OOB = 0x80000000
ST = " sc1"
LD = " sc1"
STAMP = 200 * 1024 * 1024

E = lambda n, d: int(os.environ.get(n, str(d)))
PROF = os.environ.get("PROF", "")
MAPB = E("MAPB", 2)
MROT = E("MROT", 3)
AROT = E("AROT", 2)
APRE = E("APRE", 3)
PF = E("PF", 9)
K2PRE = E("K2PRE", 6)
TOUCH = E("TOUCH", 0)
NE1 = E("NE1", 0)
NROT = NE1 if NE1 else 7
PNT = os.environ.get("PNT", " nt").replace("_", " ")
PV = E("PV", 72)
ABL = os.environ.get("ABL", "")
XST = {0: [s // 6 for s in range(18)], 1: [0] * 3 + [1] * 5 + [2] * 5 + [3] * 5}[E("XS", 1)]
STF = "" if E("FAST", 0) else ST
WSTEP = E("WSTEP", 2)
NR = 32
SPIN = 1 << 16

KA_X, KA_WQKV, KA_WO, KA_BX, KA_W1, KA_B1, KA_W2, KA_B2, KA_OUT, KA_DBG, KA_WS = [8 * i for i in range(11)]
a = Asm()
MF = "v_mfma_f32_16x16x32_bf16"
q4 = lambda b, k="v": "%s[%d:%d]" % (k, b, b + 3)
q2 = lambda b: "v[%d:%d]" % (b, b + 1)


def srd(d, base, off, nbytes):
    if off == 0:
        a("s_mov_b32 s%d, s%d" % (d, base))
        a("s_mov_b32 s%d, s%d" % (d + 1, base + 1))
    else:
        a("s_add_u32 s%d, s%d, %s" % (d, base, off if isinstance(off, str) else hex(off)))
        a("s_addc_u32 s%d, s%d, 0" % (d + 1, base + 1))
    a("s_mov_b32 s%d, %s" % (d + 2, hex(nbytes)))
    a("s_mov_b32 s%d, 0x20000" % (d + 3))


def entry(label):
    a(".p2align 8")
    a(".globl %s" % label)
    a(".type %s,@function" % label)
    a("%s:" % label)


class VM:
    def __init__(self, cnt="vmcnt", maxn=63):
        self.ops, self.cnt, self.maxn, self.done = [], cnt, maxn, -1

    def op(self, text, tag):
        a(text)
        self.ops.append(tag)

    def wait(self, tag):
        last = max(i for i, t in enumerate(self.ops) if t == tag)
        if last <= self.done:
            return
        n = min(len(self.ops) - 1 - last, self.maxn)
        self.done = len(self.ops) - 1 - n
        a("s_waitcnt %s(%d)" % (self.cnt, n))

    def all(self):
        self.done = len(self.ops) - 1
        a("s_waitcnt %s(0)" % self.cnt)


def stamp(k):
    if PROF:
        a("s_memtime s[98:99]")
        a("s_memrealtime s[100:101]")
        a("s_waitcnt lgkmcnt(0)")
        a("v_mov_b32 v0, s98")
        a("buffer_store_dword v0, off, s[92:95], s96 offset:%d" % (4 * k))
        a("v_mov_b32 v0, s100")
        a("buffer_store_dword v0, off, s[92:95], s96 offset:%d" % (4 * k + 64))


def rstamp(k):
    if PROF:
        a("s_memrealtime s[98:99]")
        a("s_waitcnt lgkmcnt(0)")
        a("v_mov_b32 v0, s98")
        a("buffer_store_dword v0, off, s[92:95], s96 offset:%d" % (4 * k))


def unpack(dst, src):
    a("v_lshlrev_b32 v%d, 16, v%d" % (dst, src))
    a("v_and_b32 v%d, 0xffff0000, v%d" % (dst + 1, src))


def cvt(d, x, y):
    a("v_cvt_pk_bf16_f32 v%d, v%d, v%d" % (d, x, y))


def round1(r):
    cvt(r, r, r)
    a("v_and_b32 v%d, 0xffff0000, v%d" % (r, r))


def ln_scalars(mean, var, M, SD, emit=None):
    e = emit or a
    e("v_cvt_pk_bf16_f32 v%d, v%d, v%d" % (M, var, mean))
    e("v_lshlrev_b32 v%d, 16, v%d" % (SD, M))
    e("v_and_b32 v%d, 0xffff0000, v%d" % (M, M))
    e("v_add_f32 v%d, %s, v%d" % (SD, f32bits(1e-5), SD))
    e("v_cvt_pk_bf16_f32 v%d, v%d, v%d" % (SD, SD, SD))
    e("v_and_b32 v%d, 0xffff0000, v%d" % (SD, SD))
    e("v_sqrt_f32 v%d, v%d" % (SD, SD))
    e("v_cvt_pk_bf16_f32 v%d, v%d, v%d" % (SD, SD, SD))
    e("v_and_b32 v%d, 0xffff0000, v%d" % (SD, SD))


def xsum(r, t, rows16=True, rows32=True, ror8=False):
    if ror8:
        a("v_add_f32_dpp v%d, v%d, v%d row_ror:8 row_mask:0xf bank_mask:0xf" % (r, r, r))
    a("v_mov_b32 v%d, v%d" % (t, r))
    a("v_permlane16_swap_b32 v%d, v%d" % (r, t))
    a("v_add_f32 v%d, v%d, v%d" % (r, r, t))
    a("v_mov_b32 v%d, v%d" % (t, r))
    a("v_permlane32_swap_b32 v%d, v%d" % (r, t))
    a("v_add_f32 v%d, v%d, v%d" % (r, r, t))


def mod_small(dst, src, n):
    if n == 1:
        a("s_mov_b32 %s, 0" % dst)
        return
    m = -(-4096 // n)
    assert all((t * m) >> 12 == t // n for t in range(32))
    a("s_mul_i32 %s, %s, %d" % (dst, src, m))
    a("s_lshr_b32 %s, %s, 12" % (dst, dst))
    a("s_mul_i32 %s, %s, %d" % (dst, dst, n))
    a("s_sub_u32 %s, %s, %s" % (dst, src, dst))


P_LN, P_QKV, P_W1, P_W2, P_MISC, P_END = 0, 256, 328, 472, 616, 617


def p_kernel():
    entry("p_kernel")
    a("s_cmp_ge_u32 s2, %d" % P_END)
    a("s_cbranch_scc1 L_exit")
    if PROF:
        a("s_memrealtime s[56:57]")
    a("s_load_dwordx16 s[4:19], s[0:1], 0")
    a("s_load_dwordx2 s[24:25], s[0:1], %d" % KA_WS)
    a("v_lshrrev_b32 v1, 6, v0")
    a("v_readfirstlane_b32 s3, v1")
    a("v_and_b32 v1, 63, v0")
    a("v_lshlrev_b32 v2, 4, v1")
    a("v_lshrrev_b32 v3, 4, v1")
    a("v_and_b32 v4, 15, v1")
    a("v_lshlrev_b32 v5, 4, v0")
    a("s_waitcnt lgkmcnt(0)")
    srd(40, 24, 0, WS_USED)
    if E("PTOUCH", 0):
        a("s_cmp_ge_u32 s2, 32")
        a("s_cbranch_scc1 P_nt")
        a("s_lshr_b32 s20, s2, 3")
        a("s_mul_i32 s20, s20, 576")
        a("v_add_u32 v62, s20, v0")
        a("v_min_u32 v62, %d, v62" % ((1 << (31 - E("PTOUCH", 0))) - 1))
        a("v_lshlrev_b32 v62, %d, v62" % E("PTOUCH", 0))
        a("buffer_load_dword v63, v62, s[40:43], 0 offen")
        a("P_nt:")
    a("s_cmp_lt_u32 s2, %d" % P_QKV)
    a("s_cbranch_scc1 P_ln")
    a("s_cmp_ge_u32 s2, %d" % P_MISC)
    a("s_cbranch_scc1 P_misc")
    a("s_cmp_ge_u32 s2, %d" % P_W1)
    a("s_cbranch_scc1 P_w12")
    a("s_sub_u32 s29, s2, %d" % P_QKV)
    srd(36, 6, 0, 576 * 1728 * 2)
    a("s_mul_i32 s20, s29, %d" % (8 * 3456))
    a("s_lshl_b32 s21, s3, 10")
    for n in range(3):
        a("s_add_u32 m0, s21, %d" % (n * 9216))
        a("s_add_u32 s22, s20, %d" % (n * 9216))
        a("buffer_load_dwordx4 v5, s[36:39], s22 offen" + PNT + " lds")
    srd(32, 8, 0, 576 * 576 * 2)
    a("s_mov_b32 s20, s29")
    a("s_lshr_b32 s21, s20, 2")
    a("s_and_b32 s22, s20, 3")
    a("v_mul_u32_u24 v6, 911, v0")
    a("v_lshrrev_b32 v6, 16, v6")
    a("v_mul_u32_u24 v7, 72, v6")
    a("v_sub_u32 v7, v0, v7")
    a("s_cmp_ge_u32 s21, 16")
    a("s_cbranch_scc1 P_wo_tail")
    a("s_mul_i32 s23, s21, 36")
    a("s_lshl_b32 s26, s22, 2")
    a("s_add_u32 s23, s23, s26")
    a("v_lshrrev_b32 v8, 2, v6")
    a("v_and_b32 v9, 3, v6")
    a("s_branch P_wo_go")
    a("P_wo_tail:")
    a("s_sub_u32 s23, s20, 64")
    a("s_mul_i32 s23, s23, 72")
    a("s_add_u32 s23, s23, 16")
    a("v_lshrrev_b32 v8, 1, v6")
    a("v_and_b32 v9, 1, v6")
    a("P_wo_go:")
    a("v_mul_u32_u24 v8, 18, v8")
    a("v_add_u32 v8, v8, v9")
    a("v_mul_u32_u24 v8, 1152, v8")
    a("v_lshl_add_u32 v8, v7, 4, v8")
    a("s_mul_i32 s23, s23, 1152")
    a("s_lshl_b32 s26, s3, 10")
    a("s_add_u32 m0, s26, 27648")
    a("buffer_load_dwordx4 v8, s[32:35], s23 offen" + PNT + " lds")
    a("s_mul_i32 s27, s21, 4608")
    a("s_add_u32 s27, s27, %s" % hex(WOP))
    a("v_lshrrev_b32 v8, 4, v7")
    a("v_lshlrev_b32 v8, 10, v8")
    a("v_and_b32 v9, 15, v7")
    a("v_lshl_add_u32 v8, v9, 4, v8")
    a("s_lshl_b32 s26, s22, 7")
    a("v_mov_b32 v10, s26")
    a("v_lshlrev_b32 v11, 1, v10")
    a("v_cmp_gt_u32 vcc, 64, v7")
    a("v_cndmask_b32 v10, v10, v11, vcc")
    a("v_add_u32 v8, v8, v10")
    a("s_mov_b32 s26, %d" % WOS)
    a("v_mad_u32_u24 v3, v6, s26, v8")
    a("v_lshlrev_b32 v4, 1, v0")
    a("s_lshr_b32 s22, s29, 2")
    a("s_lshl_b32 s22, s22, 12")
    a("s_and_b32 s23, s29, 3")
    a("s_lshl_b32 s23, s23, 8")
    a("s_add_u32 s22, s22, s23")
    a("v_mov_b32 v15, %s" % hex(OOB))
    for n in range(4):
        u, src, dst = 6, 48 + n, 52 + n
        a("v_add_u32 v6, %d, v0" % (n * 576))
        a("v_lshrrev_b32 v7, 6, v6")
        a("v_bfe_u32 v8, v6, 4, 2")
        a("v_and_b32 v9, 15, v6")
        a("v_mul_u32_u24 v10, 36, v7")
        a("v_mul_u32_u24 v11, 1152, v8")
        a("v_lshl_add_u32 v11, v9, 1, v11")
        a("v_lshrrev_b32 v12, 1, v9")
        a("v_mul_u32_u24 v12, 1152, v12")
        a("v_and_b32 v13, 1, v9")
        a("v_lshl_add_u32 v12, v13, 1, v12")
        a("v_add_u32 v12, 32, v12")
        a("v_cmp_eq_u32 vcc, 3, v8")
        a("v_cndmask_b32 v11, v11, v12, vcc")
        a("v_cmp_lt_u32 s[44:45], 5, v9")
        a("s_and_b64 s[%d:%d], vcc, s[44:45]" % (46 + 2 * n, 47 + 2 * n))
        a("v_cndmask_b32 v11, v11, 0, s[%d:%d]" % (46 + 2 * n, 47 + 2 * n))
        a("v_add_u32 v%d, v10, v11" % src)
        a("v_mul_u32_u24 v7, 73728, v7")
        a("v_lshl_add_u32 v7, v8, 10, v7")
        a("v_lshl_add_u32 v%d, v9, 4, v7" % dst)
        if n == 3:
            a("v_cmp_gt_u32 vcc, 2048, v6")
            a("v_cndmask_b32 v%d, v15, v%d, vcc" % (dst, dst))
            a("v_cndmask_b32 v%d, 0, v%d, vcc" % (src, src))
    a("s_waitcnt vmcnt(0)")
    a("s_barrier")
    for n in range(4):
        for j in range(8):
            a("ds_read_u16 v%d, v%d offset:%d" % (16 + n * 8 + j, 48 + n, j * 3456))
        if n % 2 == 1:
            a("s_waitcnt lgkmcnt(0)")
            for m in (n - 1, n):
                for k in range(4):
                    a("v_lshl_or_b32 v%d, v%d, 16, v%d" % (16 + m * 8 + k, 16 + m * 8 + 2 * k + 1, 16 + m * 8 + 2 * k))
                    a("v_cndmask_b32 v%d, v%d, 0, s[%d:%d]" % (16 + m * 8 + k, 16 + m * 8 + k, 46 + 2 * m, 47 + 2 * m))
                a("buffer_store_dwordx4 %s, v%d, s[40:43], s22 offen%s" % (q4(16 + m * 8), 52 + m, ST))
    for j in range(8):
        a("ds_read_u16 v%d, v4 offset:%d" % (56 + j, 27648 + j * 1152))
    a("s_waitcnt lgkmcnt(0)")
    for k in range(4):
        a("v_lshl_or_b32 v%d, v%d, 16, v%d" % (56 + k, 56 + 2 * k + 1, 56 + 2 * k))
    a("buffer_store_dwordx4 v[56:59], v3, s[40:43], s27 offen%s" % ST)
    a("s_branch P_end" if PROF else "s_endpgm")

    a("P_ln:")
    srd(36, 4, 0, ACT)
    a("s_sub_u32 s20, s2, %d" % P_LN)
    a("v_lshrrev_b32 v1, 3, v0")
    a("v_and_b32 v7, 7, v0")
    a("v_lshlrev_b32 v8, 4, v1")
    a("v_mul_u32_u24 v9, 1152, v7")
    a("v_add_u32 v9, v9, v8")
    a("s_mul_i32 s21, s20, %d" % (8 * 1152))
    a("buffer_load_dwordx4 v[16:19], v9, s[36:39], s21 offen" + PNT)
    a("v_lshlrev_b32 v3, 8, v1")
    a("v_lshl_add_u32 v3, v7, 4, v3")
    a("s_lshr_b32 s22, s20, 1")
    a("s_mul_i32 s22, s22, 18432")
    a("s_and_b32 s23, s20, 1")
    a("s_lshl_b32 s23, s23, 7")
    a("s_add_u32 s22, s22, s23")
    a("s_add_u32 s22, s22, %s" % hex(LB + oY))
    a("v_mul_u32_u24 v11, 48, v7")
    a("v_lshrrev_b32 v12, 6, v0")
    a("v_lshl_add_u32 v12, v12, 2, v11")
    AC, T, P = 24, 32, 48
    a("s_waitcnt vmcnt(0)")
    for k in range(4):
        unpack(AC + 2 * k, 16 + k)

    def reduce9(s, ldsoff, out):
        xsum(s, s + 1, ror8=True)
        a("ds_write_b32 v12, v%d offset:%d" % (s, ldsoff))
        a("s_waitcnt lgkmcnt(0)")
        a("s_barrier")
        a("ds_read_b128 %s, v11 offset:%d" % (q4(P), ldsoff))
        a("ds_read_b128 %s, v11 offset:%d" % (q4(P + 4), ldsoff + 16))
        a("ds_read_b32 v%d, v11 offset:%d" % (P + 8, ldsoff + 32))
        a("s_waitcnt lgkmcnt(0)")
        a("v_pk_add_f32 %s, %s, %s" % (q2(P), q2(P), q2(P + 2)))
        a("v_pk_add_f32 %s, %s, %s" % (q2(P + 4), q2(P + 4), q2(P + 6)))
        a("v_pk_add_f32 %s, %s, %s" % (q2(P), q2(P), q2(P + 4)))
        a("v_add_f32 v%d, v%d, v%d" % (P, P, P + 1))
        a("v_add_f32 v%d, v%d, v%d" % (P, P, P + 8))
        a("v_mul_f32 v%d, %s, v%d" % (out, f32bits(1.0 / 576.0), P))

    S, MEAN, VAR, M, SD = 40, 42, 43, 44, 45
    a("v_pk_add_f32 %s, %s, %s" % (q2(T), q2(AC), q2(AC + 2)))
    a("v_pk_add_f32 %s, %s, %s" % (q2(T + 2), q2(AC + 4), q2(AC + 6)))
    a("v_pk_add_f32 %s, %s, %s" % (q2(T), q2(T), q2(T + 2)))
    a("v_add_f32 v%d, v%d, v%d" % (S, T, T + 1))
    reduce9(S, 0, MEAN)
    for k in range(8):
        a("v_sub_f32 v%d, v%d, v%d" % (T + k, AC + k, MEAN))
    a("v_mul_f32 v%d, v%d, v%d" % (S, T, T))
    for k in range(1, 8):
        a("v_fmac_f32 v%d, v%d, v%d" % (S, T + k, T + k))
    reduce9(S, 512, VAR)
    ln_scalars(MEAN, VAR, M, SD)
    a("v_rcp_f32 v%d, v%d" % (SD, SD))
    for k in range(8):
        a("v_sub_f32 v%d, v%d, v%d" % (AC + k, AC + k, M))
    for k in range(4):
        cvt(T + k, AC + 2 * k, AC + 2 * k + 1)
    for k in range(4):
        unpack(AC + 2 * k, T + k)
    for k in range(8):
        a("v_mul_f32 v%d, v%d, v%d" % (AC + k, AC + k, SD))
    for k in range(4):
        cvt(T + k, AC + 2 * k, AC + 2 * k + 1)
    a("buffer_store_dwordx4 %s, v3, s[40:43], s22 offen%s" % (q4(T), ST))
    a("s_branch P_end" if PROF else "s_endpgm")

    a("P_w12:")
    a("v_lshrrev_b32 v5, 3, v1")
    a("v_and_b32 v6, 7, v1")
    a("v_lshlrev_b32 v6, 4, v6")
    a("v_bfe_u32 v7, v1, 2, 2")
    a("v_and_b32 v8, 3, v1")
    a("s_lshl_b32 s21, s3, 12")
    a("s_cmp_ge_u32 s2, %d" % P_W2)
    a("s_cbranch_scc1 P_w2")
    if "now1" in ABL:
        a("s_branch P_end")

    def w12(stride, second):
        for n in range(4):
            a("s_add_u32 m0, s21, %d" % (n * 1024))
            a("buffer_load_dwordx4 v9, s[36:39], s22 offen" + PNT + " lds")
            if n < 3:
                a("s_add_u32 s22, s22, %d" % (8 * stride))

    def w12b(second):
        for tl in range(4):
            a("ds_read_b64_tr_b16 %s, v10 offset:%d" % (q2(16 + tl * 4), tl * 32))
            a("ds_read_b64_tr_b16 %s, v10 offset:%d" % (q2(18 + tl * 4), tl * 32 + second))
        for tl in range(4):
            a("s_waitcnt lgkmcnt(%d)" % (6 - 2 * tl))
            a("s_add_u32 s26, s23, %d" % (tl * 18432))
            a("buffer_store_dwordx4 %s, v2, s[40:43], s26 offen%s" % (q4(16 + tl * 4), ST))

    srd(36, 12, 0, 576 * 4608 * 2)
    a("s_sub_u32 s28, s2, %d" % P_W1)
    a("s_lshr_b32 s20, s28, 1")
    a("s_and_b32 s28, s28, 1")
    a("s_mul_i32 s29, s28, 9")
    a("s_add_u32 s29, s29, s3")
    a("s_mul_i32 s22, s29, %d" % (32 * 9216))
    a("s_lshl_b32 s27, s20, 7")
    a("s_add_u32 s22, s22, s27")
    a("v_mul_u32_u24 v9, 9216, v5")
    a("v_add_u32 v9, v9, v6")
    w12(9216, 512)
    srd(32, 14, 0, 4608 * 2)
    a("v_lshlrev_b32 v5, 1, v1")
    a("buffer_load_ushort v40, v5, s[32:35], s27 offen")
    a("v_lshl_add_u32 v10, v3, 3, v7")
    a("v_lshlrev_b32 v10, 7, v10")
    a("v_lshl_add_u32 v10, v8, 3, v10")
    a("v_add_u32 v10, s21, v10")
    a("s_mul_i32 s23, s20, %d" % (4 * 18432))
    a("s_lshl_b32 s26, s29, 10")
    a("s_add_u32 s23, s23, s26")
    a("s_add_u32 s23, s23, %s" % hex(W1P))
    for k in range(4):
        a("v_mov_b32 v%d, 0x3f803f80" % (12 + k))
    a("s_lshl_b32 s26, s3, 8")
    a("s_add_u32 s26, s26, 36864")
    a("v_lshlrev_b32 v11, 4, v3")
    a("v_add_u32 v11, s26, v11")
    a("s_waitcnt vmcnt(0)")
    w12b(512)
    for tl in range(4):
        a("%s %s, %s, v[12:15], 0" % (MF, q4(48 + tl * 4), q4(16 + tl * 4)))
    for tl in range(4):
        a("ds_write_b128 v11, %s offset:%d" % (q4(48 + tl * 4), tl * 64))
    a("s_waitcnt lgkmcnt(0)")
    a("s_barrier")
    a("s_cmp_lg_u32 s3, 0")
    a("s_cbranch_scc1 P_end")
    a("v_lshlrev_b32 v11, 2, v1")
    for w in range(9):
        a("ds_read_b32 v%d, v11 offset:%d" % (48 + w, 36864 + w * 256))
    a("s_waitcnt lgkmcnt(0)")
    for w in range(1, 9):
        a("v_add_f32 v48, v48, v%d" % (48 + w))
    a("v_sub_f32 v48, 0, v48")
    cvt(60, 48, 48)
    a("v_and_b32 v49, 0xffff0000, v60")
    a("v_sub_f32 v49, v48, v49")
    cvt(49, 49, 49)
    a("v_and_b32 v49, 0xffff, v49")
    a("v_lshl_or_b32 v61, v40, 16, v49")
    a("s_lshl_b32 s27, s20, 10")
    a("s_lshl_b32 s28, s28, 3")
    a("s_add_u32 s27, s27, s28")
    a("s_add_u32 s27, s27, %s" % hex(AUG))
    a("buffer_store_dwordx2 v[60:61], v2, s[40:43], s27 offen%s" % ST)
    a("s_branch P_end" if PROF else "s_endpgm")

    a("P_w2:")
    if "now2" in ABL:
        a("s_cmp_ge_u32 s2, %d" % (P_W2 + 32))
        a("s_cbranch_scc1 P_end")
    srd(36, 16, 0, 576 * 4608 * 2)
    a("s_sub_u32 s20, s2, %d" % P_W2)
    a("s_mul_i32 s22, s20, %d" % (32 * 1152))
    a("s_lshl_b32 s23, s3, 7")
    a("s_add_u32 s22, s22, s23")
    a("v_mul_u32_u24 v9, 1152, v5")
    a("v_add_u32 v9, v9, v6")
    w12(1152, 2048)
    a("v_lshl_add_u32 v10, v3, 2, v7")
    a("v_lshlrev_b32 v10, 7, v10")
    a("v_lshl_add_u32 v10, v8, 3, v10")
    a("v_add_u32 v10, s21, v10")
    a("s_mul_i32 s26, s20, 3641")
    a("s_lshr_b32 s26, s26, 16")
    a("s_mul_i32 s27, s26, 18")
    a("s_sub_u32 s27, s20, s27")
    a("s_mul_i32 s23, s26, %d" % (36 * 18432))
    a("s_mul_i32 s26, s3, %d" % (4 * 18432))
    a("s_add_u32 s23, s23, s26")
    a("s_lshl_b32 s27, s27, 10")
    a("s_add_u32 s23, s23, s27")
    a("s_add_u32 s23, s23, %s" % hex(W2P))
    a("s_waitcnt vmcnt(0)")
    w12b(2048)
    a("s_branch P_end" if PROF else "s_endpgm")

    a("P_misc:")
    for k in range(4):
        a("v_mov_b32 v%d, 0" % (16 + k))
    a("v_lshlrev_b32 v5, 4, v0")
    srd(36, 24, CNT, CNTB)
    for k in range(4):
        a("s_mov_b32 s22, %d" % (k * 9216))
        a("buffer_store_dwordx4 v[16:19], v5, s[36:39], s22 offen%s" % ST)
    a("s_getpc_b64 s[20:21]")
    a("P_pc:")
    a("s_add_u32 s36, s20, main_kernel-P_pc")
    a("s_addc_u32 s37, s21, 0")
    a("s_mov_b32 s38, L_code_end-main_kernel")
    a("s_mov_b32 s39, 0x20000")
    a("s_mov_b32 s22, 0")
    for k in range(7):
        a("buffer_load_dwordx4 %s, v5, s[36:39], s22 offen" % q4(20 + 4 * k))
        a("s_add_u32 s22, s22, 9216")
    a("s_waitcnt vmcnt(0)")
    a("P_end:")
    if PROF:
        a("s_waitcnt vmcnt(0)")
        a("s_memrealtime s[58:59]")
        srd(36, 24, STAMP + (1 << 19), 1 << 19)
        a("s_lshl_b32 s60, s2, 4")
        a("s_add_u32 s60, s60, s3")
        a("s_lshl_b32 s60, s60, 3")
        a("s_waitcnt lgkmcnt(0)")
        a("v_mov_b32 v0, s56")
        a("v_mov_b32 v1, s58")
        a("buffer_store_dwordx2 v[0:1], off, s[36:39], s60")
    a("L_exit:")
    a("s_endpgm")


L_SCR, L_OX, L_Y, L_WA, L_WB = 0, 8192, 20480, 112640, 20480
MAIN_LDS = 163840
uid = [0]


def main_kernel():
    entry("main_kernel")
    a("s_cmp_ge_u32 s2, 256")
    a("s_cbranch_scc1 L_exit2")
    a("s_load_dwordx2 s[24:25], s[0:1], %d" % KA_WS)
    a("s_load_dwordx4 s[28:31], s[0:1], %d" % KA_B2)
    a("s_load_dwordx2 s[32:33], s[0:1], %d" % KA_X)
    a("s_mov_b32 s34, %d" % ACT)
    a("s_mov_b32 s35, 0x20000")
    vm = VM()
    lg = VM("lgkmcnt", 15)
    a("v_lshrrev_b32 v1, 6, v0")
    a("v_readfirstlane_b32 s3, v1")
    a("v_and_b32 v1, 63, v0")
    a("v_lshlrev_b32 v2, 4, v1")
    a("v_lshrrev_b32 v3, 4, v1")
    a("v_and_b32 v4, 15, v1")
    b = MAPB
    spx = 8 // b
    tpx = 32 // spx
    lb = {1: 0, 2: 1, 4: 2, 8: 3}
    a("s_and_b32 s6, s2, 7")
    a("s_lshr_b32 s7, s2, 3")
    a("s_and_b32 s4, s6, %d" % (b - 1))
    a("s_lshl_b32 s4, s4, %d" % lb[spx])
    a("s_and_b32 s8, s7, %d" % (spx - 1))
    a("s_add_u32 s4, s4, s8")
    a("s_lshr_b32 s5, s6, %d" % lb[b])
    a("s_mul_i32 s5, s5, %d" % tpx)
    a("s_lshr_b32 s8, s7, %d" % lb[spx])
    a("s_add_u32 s5, s5, s8")
    a("s_mov_b32 s44, %s" % hex(LB))
    a("s_mov_b32 s45, 0")
    a("s_mov_b32 s46, 8")
    a("s_mov_b32 s27, 1")
    a("s_mov_b32 s97, 1152")
    a("s_mul_i32 s47, s5, %d" % TB)

    KY, KW = 48, 54

    def k1_setup(rot):
        if rot:
            mod_small("s6", "s5", AROT)
            a("s_mul_i32 s6, s6, %d" % (6 // AROT))
        else:
            a("s_mov_b32 s6, 0")
        for G in range(6):
            a("s_mul_i32 s%d, s6, 3072" % (KY + G))
            a("s_add_u32 s%d, s%d, s44" % (KY + G, KY + G))
            a("s_mul_i32 s%d, s6, 12288" % (KW + G))
            if G < 5:
                a("s_add_u32 s6, s6, 1")
                a("s_cmp_eq_u32 s6, 6")
                a("s_cselect_b32 s6, 0, s6")
        a("s_mul_i32 s8, s3, 18432")
        a("s_add_u32 s8, s8, s47")
        a("v_add_u32 v7, s8, v2")
        a("s_min_u32 s9, s3, 2")
        a("s_lshl_b32 s11, s9, 10")
        a("s_add_u32 s8, s47, s11")
        a("s_sub_u32 s8, s8, 18432")
        a("s_cmp_eq_u32 s5, 0")
        a("s_cselect_b32 s8, %s, s8" % hex(OOB))
        a("v_add_u32 v8, s8, v2")
        a("s_add_u32 s11, s11, %d" % L_Y)
        a("s_mul_i32 s10, s3, 18432")
        a("s_add_u32 s10, s10, %d" % (L_Y + 18432))
        a("v_add_u32 v5, %d, v2" % L_Y)
        a("v_add_u32 v6, %d, v2" % (L_Y + 46080))

    def kw_voffs():
        a("s_lshl_b32 s12, s4, 2")
        a("s_add_u32 s12, s12, s3")
        a("s_mul_i32 s12, s12, 73728")
        a("v_add_u32 v9, s12, v2")
        a("v_add_u32 v10, 4096, v9")
        a("v_add_u32 v11, 8192, v9")

    k1_setup(True)
    kw_voffs()
    a("s_waitcnt lgkmcnt(0)")
    srd(40, 24, 0, WS_USED)
    a("s_add_u32 s20, s24, %s" % hex(CNT))
    a("s_addc_u32 s21, s25, 0")
    a("s_lshl_b32 s22, s5, 2")
    a("s_add_u32 s22, s22, s3")
    a("s_lshl_b32 s22, s22, 7")
    if PROF:
        srd(92, 24, STAMP, 1 << 20)
        a("s_lshl_b32 s96, s2, 2")
        a("s_add_u32 s96, s96, s3")
        a("s_lshl_b32 s96, s96, 8")
    rstamp(12)
    stamp(0)

    def arrive(off="s22", ret=True):
        if ret:
            a("s_mov_b32 s16, 1")
            a("s_atomic_add s16, s[20:21], %s glc" % off)
        else:
            a("s_atomic_add s27, s[20:21], %s" % off)

    def poll(target, offs=("s22",), issued=None):
        uid[0] += 1
        u = uid[0]

        def rd():
            for k, o in enumerate(offs):
                a("s_mov_b32 s%d, 0" % (16 + k))
                a("s_atomic_add s%d, s[20:21], %s glc" % (16 + k, o))
        a("s_mov_b32 s18, %d" % SPIN)
        if issued is None:
            rd()
        lg.all()
        if issued == "arrive":
            a("s_add_u32 s16, s16, 1")
        a("H%d_l:" % u)
        if len(offs) > 1:
            a("s_min_u32 s16, s16, s17")
        a("s_cmp_ge_u32 s16, %s" % target)
        a("s_cbranch_scc1 H%d_b" % u)
        a("s_sub_u32 s18, s18, 1")
        a("s_cbranch_scc1 H%d_b" % u)
        rd()
        a("s_waitcnt lgkmcnt(0)")
        a("s_branch H%d_l" % u)
        a("H%d_b:" % u)

    def hop(tag, pre_a=(), pre_b=()):
        for f in pre_a:
            f()
        vm.wait(tag)
        arrive()
        for f in pre_b:
            f()
        poll("s46", issued="arrive")
        a("s_add_u32 s46, s46, 8")

    QA, KA, VA, CA, YF = 16, 32, 52, 72, 92
    MSK, SM = 132, 136

    def wslot(i, t):
        return ((i % 16) * 4 + t) * 4

    def wload1(i, t, sreg=None):
        def f():
            s = sreg or "s%d" % (KW + i // 3)
            vm.op("buffer_load_dwordx4 %s, v%d, s[40:43], %s offen offset:%d" % (q4(wslot(i, t), "a"), 9 + i % 3, s, t * 1024), ("w", i))
        return f

    def ydma1(G, k):
        def f():
            if k < 3:
                a("s_add_u32 m0, s10, %d" % (G * 3072))
                vm.op("buffer_load_dwordx4 v7, s[40:43], s%d offen offset:%d%s lds" % (KY + G, k * 1024, LD), ("y", G))
            else:
                a("s_add_u32 m0, s11, %d" % (G * 3072))
                vm.op("buffer_load_dwordx4 v8, s[40:43], s%d offen%s lds" % (KY + G, LD), ("y", G))
        return f

    def yread1(i, T):
        def f():
            off = (T * 18 + i) * 1024
            base = 5
            if off >= 46080:
                off -= 46080
                base = 6
            a("ds_read_b128 %s, v%d offset:%d" % (q4(YF + (i % 2) * 20 + T * 4), base, off))
        return f

    def wodma(region, n):
        def f():
            a("s_add_u32 m0, s%d, %d" % ((13, 14)[region], (n // 4) * 4096))
            a("s_add_u32 s15, s%d, %d" % ((60, 61)[region], (n // 4) * 4096))
            vm.op("buffer_load_dwordx4 v2, s[40:43], s15 offen offset:%d lds" % ((n % 4) * 1024), "wo")
        return f

    def attn_consts():
        a("v_and_b32 v13, 1, v4")
        a("v_cmp_eq_u32 s[70:71], 1, v13")
        a("v_lshl_add_u32 v14, v3, 2, v13")
        a("v_cmp_ge_u32 s[72:73], v4, v14")
        a("v_add_u32 v14, 2, v14")
        a("v_cmp_ge_u32 s[74:75], v4, v14")
        a("v_mov_b32 v13, 0xffff")
        a("v_mov_b32 v14, 0xffff0000")
        a("v_cndmask_b32 v13, v13, v14, s[70:71]")
        a("v_cndmask_b32 v%d, v13, 0, s[72:73]" % (MSK + 0))
        a("v_cndmask_b32 v%d, v13, 0, s[74:75]" % (MSK + 1))
        a("v_cndmask_b32 v%d, 0, v13, s[72:73]" % (MSK + 2))
        a("v_cndmask_b32 v%d, 0, v13, s[74:75]" % (MSK + 3))
        a("s_cmp_eq_u32 s5, 0")
        a("s_cselect_b32 s14, %s, 0" % f32bits(-1e9 * math.sqrt(18.0)))
        for k in range(4):
            a("v_mov_b32 v%d, s14" % (SM + k))
        a("s_lshl_b32 s14, s3, 11")
        a("v_lshlrev_b32 v141, 9, v3")
        a("v_lshl_add_u32 v141, v4, 1, v141")
        a("v_add_u32 v141, s14, v141")
        a("v_and_b32 v142, 1, v4")
        a("v_mul_u32_u24 v142, 160, v142")
        a("v_lshl_add_u32 v142, v3, 3, v142")
        a("s_add_u32 s14, s14, 512")
        a("v_add_u32 v142, s14, v142")
        a("s_lshr_b32 s14, s3, 1")
        a("s_lshl_b32 s14, s14, 10")
        a("s_and_b32 s15, s3, 1")
        a("s_lshl_b32 s15, s15, 3")
        a("s_add_u32 s14, s14, s15")
        a("s_add_u32 s14, s14, %d" % L_OX)
        a("v_add_u32 v143, s14, v2")
        a("s_lshl_b32 s14, s3, 2")
        a("s_add_u32 s14, s14, %d" % (L_OX + 2048))
        a("v_add_u32 v144, s14, v2")
        a("s_mul_i32 s14, s3, 3072")
        a("s_add_u32 s14, s14, %d" % L_OX)
        a("v_add_u32 v145, s14, v2")
        a("s_mul_i32 s60, s4, %d" % WOS)
        a("s_add_u32 s60, s60, %s" % hex(WOP))
        a("s_mul_i32 s14, s3, 9216")
        a("s_add_u32 s61, s60, s14")
        a("s_add_u32 s61, s61, 46080")
        a("s_mul_i32 s14, s3, 18432")
        a("s_add_u32 s14, s14, %d" % L_Y)
        a("s_mul_i32 s13, s3, 12288")
        a("s_add_u32 s60, s60, s13")
        a("s_add_u32 s13, s13, %d" % L_WA)

    def qkv(pre):
        if not pre:
            for k in range(4):
                ydma1(0, k)()
            for t in range(4):
                wload1(0, t)()
            for k in range(4):
                ydma1(1, k)()
            for i in range(1, APRE):
                for t in range(4):
                    wload1(i, t)()
            if TOUCH:
                a("s_getpc_b64 s[36:37]")
                a("M_pc:")
                a("s_mov_b32 s38, L_code_end-M_pc")
                a("s_mov_b32 s39, 0x20000")
                a("s_lshr_b32 s6, s2, 3")
                a("s_lshl_b32 s6, s6, 2")
                a("s_add_u32 s6, s6, s3")
                a("s_lshl_b32 s6, s6, 9")
                a("v_lshlrev_b32 v249, 3, v1")
                vm.op("buffer_load_dword v250, v249, s[36:39], s6 offen", "t")
            attn_consts()
            ahead_y = 2
        else:
            for i in range(pre):
                vm.ops.append(("w", i))
            for G in range(3):
                for k in range(4):
                    ydma1(G, k)()
            ahead_y = 3
        vm.wait(("y", 0))
        a("s_barrier")
        for T in range(5):
            yread1(0, T)()
        wo_list = ([] if pre else [wodma(0, n) for n in range(12)]) + [wodma(1, n) for n in range(9)]
        for i in range(18):
            if i + 1 < 18 and (i + 1) % 3 == 0:
                vm.wait(("y", (i + 1) // 3))
                a("s_barrier")
            a("s_waitcnt lgkmcnt(0)")
            vm.wait(("w", i))
            mem = []
            if i // 3 + ahead_y < 6:
                mem += [ydma1(i // 3 + ahead_y, k) for k in ((0, 3), (1,), (2,))[i % 3]]
            nxt = i + APRE
            if pre:
                nxt = pre + i - 1 if i >= 1 else None
                if nxt is not None and nxt - 16 >= i:
                    nxt = None
            if nxt is not None and nxt < 18:
                mem += [wload1(nxt, t) for t in range(4)]
            if (i >= 11) if pre else (nxt >= 18):
                take = -(-len(wo_list) // (18 - i))
                assert i >= 11 or len(wo_list) - take >= 9
                mem += wo_list[:take]
                wo_list = wo_list[take:]
            rds = [yread1(i + 1, T) for T in range(5)] if i + 1 < 18 else []
            slots = {}
            for k, f in enumerate(mem):
                slots.setdefault(1 + (k * 18) // len(mem), []).append(f)
            for k, f in enumerate(rds):
                slots.setdefault(2 * k, []).append(f)
            m = 0
            for T in range(5):
                y = q4(YF + (i % 2) * 20 + T * 4)
                for t, base in ((1, KA), (2, VA), (3, CA), (0, QA)):
                    if t == 0 and T == 0:
                        continue
                    d = base + (T - 1 if t == 0 else T) * 4
                    w = q4(wslot(i, t), "a")
                    c = "0" if i == 0 else q4(d)
                    A_, B_ = (y, w) if t == 2 else (w, y)
                    a("%s %s, %s, %s, %s" % (MF, q4(d), A_, B_, c))
                    for f in slots.get(m, []):
                        f()
                    m += 1
        assert not wo_list, len(wo_list)

    qkv(0)
    a("s_branch K1_attn")
    a("K1_second:")
    vm.done = -1
    vm.ops = []
    qkv(PF)
    a("K1_attn:")
    vm.ops = []
    vm.done = -1
    stamp(1)
    vm.ops.append("wo")
    side = []
    XR = 208

    def k2_addr():
        a("s_mul_i32 s62, s3, 18432")
        a("s_add_u32 s62, s62, s47")
        a("s_add_u32 s62, s62, s44")
        a("s_mul_i32 s63, s4, 2304")
        a("s_add_u32 s63, s63, s62")
        a("v_and_b32 v220, 1, v3")
        a("v_lshlrev_b32 v220, 9, v220")
        a("v_lshl_add_u32 v220, v4, 4, v220")
        a("v_lshrrev_b32 v221, 5, v1")
        a("v_lshl_add_u32 v220, v221, 8, v220")
        a("v_mov_b32 v221, %s" % hex(OOB))
        a("v_cmp_eq_u32 vcc, 0, v3")
        a("v_cndmask_b32 v221, v221, v220, vcc")
        a("v_cndmask_b32 v222, 0, -1, vcc")
        a("s_add_u32 s65, s63, %s" % hex(oX1))
        a("s_sub_u32 s64, s63, s44")
        a("s_mul_i32 s6, s4, 144")
        a("s_sub_u32 s7, s62, s44")
        a("s_add_u32 s6, s6, s7")
        a("v_lshrrev_b32 v206, 4, v220")
        a("v_and_b32 v206, 0x30, v206")
        a("v_mad_u32_u24 v206, v4, s97, v206")
        a("s_cmp_eq_u32 s45, 0")
        a("s_cselect_b32 s64, s6, s64")
        a("s_cselect_b32 s6, 64, 1024")
        a("s_cselect_b64 s[8:9], -1, 0")
        a("v_cndmask_b32 v206, v220, v206, s[8:9]")
        a("v_add_u32 v207, s6, v206")
        a("v_add_u32 v223, s6, v207")
        a("v_cndmask_b32 v223, v221, v223, vcc")

    def xload(kk):
        def f():
            vm.op("buffer_load_dwordx4 %s, v%d, s[32:35], s64 offen%s" % (q4(XR + 4 * kk), (206, 207, 223)[kk], LD), "x")
        return f

    k2_addr()
    side += [xload(k) for k in range(3)]
    cnt = [0]

    def v(text):
        a(text)
        cnt[0] += 1
        if cnt[0] % 12 == 0 and side:
            side.pop(0)()

    QO, KO, VP, X0, V2 = 148, 164, 184, 194, 196
    for T in range(5):
        xd = X0 if T == 0 else QO + (T - 1) * 4 + 2
        v("v_cvt_pk_bf16_f32 v%d, v%d, v%d" % (xd, CA + T * 4, CA + T * 4 + 1))
        a("ds_write_b16 v141, v%d offset:%d" % (xd, T * 32))
        a("ds_write_b16_d16_hi v141, v%d offset:%d" % (xd, T * 32 + 160))
    for T in range(5):
        v("v_cvt_pk_bf16_f32 v%d, v%d, v%d" % (KO + T * 4 + 2, CA + T * 4 + 2, CA + T * 4 + 3))
        v("v_cvt_pk_bf16_f32 v%d, v%d, v%d" % (KO + T * 4, KA + T * 4, KA + T * 4 + 1))
        v("v_cvt_pk_bf16_f32 v%d, v%d, v%d" % (KO + T * 4 + 1, KA + T * 4 + 2, KA + T * 4 + 3))
        v("v_mov_b32 v%d, 0" % (KO + T * 4 + 3))
        if T:
            q = QO + (T - 1) * 4
            v("v_cvt_pk_bf16_f32 v%d, v%d, v%d" % (q, QA + (T - 1) * 4, QA + (T - 1) * 4 + 1))
            v("v_cvt_pk_bf16_f32 v%d, v%d, v%d" % (q + 1, QA + (T - 1) * 4 + 2, QA + (T - 1) * 4 + 3))
            v("v_mov_b32 v%d, 0" % (q + 3))
    for T in range(5):
        a("ds_read_b64 %s, v142 offset:%d" % (q2(V2 + 2 * T), T * 32))
    SP = YF
    Ts = range(1, 5)
    for T in Ts:
        q = q4(QO + (T - 1) * 4)
        sp = SP + (T - 1) * 8
        a("%s %s, %s, %s, %s" % (MF, q4(sp), q4(KO + (T - 1) * 4), q, q4(SM) if T == 1 else "0"))
        a("%s %s, %s, %s, 0" % (MF, q4(sp + 4), q4(KO + T * 4), q))
    for T in range(5):
        v("v_cvt_pk_bf16_f32 v%d, v%d, v%d" % (VP + 2 * T, VA + T * 4, VA + T * 4 + 1))
        v("v_cvt_pk_bf16_f32 v%d, v%d, v%d" % (VP + 2 * T + 1, VA + T * 4 + 2, VA + T * 4 + 3))
    a("s_mov_b32 s19, %s" % f32bits((18.0 ** -0.5) * math.log2(math.e)))
    W = lambda T, k: 16 + (T - 1) * 8 + k
    for T in Ts:
        sp = SP + (T - 1) * 8
        v("v_cndmask_b32 v%d, v%d, v%d, s[70:71]" % (W(T, 2), sp + 4, sp + 5))
        v("v_cndmask_b32 v%d, v%d, v%d, s[70:71]" % (W(T, 3), sp + 0, sp + 1))
        v("v_cndmask_b32 v%d, v%d, v%d, s[70:71]" % (W(T, 4), sp + 6, sp + 7))
        v("v_cndmask_b32 v%d, v%d, v%d, s[70:71]" % (W(T, 5), sp + 2, sp + 3))
        v("v_cndmask_b32 v%d, v%d, v%d, s[72:73]" % (W(T, 0), W(T, 3), W(T, 2)))
        v("v_cndmask_b32 v%d, v%d, v%d, s[74:75]" % (W(T, 1), W(T, 5), W(T, 4)))
        v("v_max_f32 v%d, v%d, v%d" % (W(T, 2), W(T, 0), W(T, 1)))
        v("v_mov_b32 v%d, v%d" % (W(T, 3), W(T, 2)))

    def xlane(op):
        for T in Ts:
            v("v_permlane16_swap_b32 v%d, v%d" % (W(T, 2), W(T, 3)))
        for T in Ts:
            v("%s v%d, v%d, v%d" % (op, W(T, 2), W(T, 2), W(T, 3)))
            v("v_mov_b32 v%d, v%d" % (W(T, 3), W(T, 2)))
        for T in Ts:
            v("v_permlane32_swap_b32 v%d, v%d" % (W(T, 2), W(T, 3)))
        for T in Ts:
            v("%s v%d, v%d, v%d" % (op, W(T, 2), W(T, 2), W(T, 3)))

    xlane("v_max_f32")
    for T in Ts:
        v("v_sub_f32 v%d, v%d, v%d" % (W(T, 0), W(T, 0), W(T, 2)))
        v("v_sub_f32 v%d, v%d, v%d" % (W(T, 1), W(T, 1), W(T, 2)))
        v("v_mul_f32 v%d, s19, v%d" % (W(T, 0), W(T, 0)))
        v("v_mul_f32 v%d, s19, v%d" % (W(T, 1), W(T, 1)))
    for T in Ts:
        v("v_exp_f32 v%d, v%d" % (W(T, 0), W(T, 0)))
        v("v_exp_f32 v%d, v%d" % (W(T, 1), W(T, 1)))
    for T in Ts:
        v("v_add_f32 v%d, v%d, v%d" % (W(T, 2), W(T, 0), W(T, 1)))
        v("v_mov_b32 v%d, v%d" % (W(T, 3), W(T, 2)))
    xlane("v_add_f32")
    for T in Ts:
        v("v_rcp_f32 v%d, v%d" % (W(T, 2), W(T, 2)))
    for T in Ts:
        v("v_mul_f32 v%d, v%d, v%d" % (W(T, 0), W(T, 0), W(T, 2)))
        v("v_mul_f32 v%d, v%d, v%d" % (W(T, 1), W(T, 1), W(T, 2)))
        v("v_cvt_pk_bf16_f32 v%d, v%d, v%d" % (W(T, 0), W(T, 0), W(T, 0)))
        v("v_cvt_pk_bf16_f32 v%d, v%d, v%d" % (W(T, 1), W(T, 1), W(T, 1)))
        v("v_and_b32 v%d, v%d, v%d" % (W(T, 4), W(T, 0), MSK + 0))
        v("v_and_b32 v%d, v%d, v%d" % (W(T, 5), W(T, 1), MSK + 1))
        v("v_and_b32 v%d, v%d, v%d" % (W(T, 6), W(T, 0), MSK + 2))
        v("v_and_b32 v%d, v%d, v%d" % (W(T, 7), W(T, 1), MSK + 3))
    while side:
        side.pop(0)()
    a("s_waitcnt lgkmcnt(0)")
    for T in Ts:
        sp = SP + (T - 1) * 8
        p = q4(W(T, 4))
        a("%s %s, %s, %s, 0" % (MF, q4(sp), q4(VP + 2 * (T - 1)), p))
        a("%s %s, %s, %s, 0" % (MF, q4(sp + 4), q4(V2 + 2 * (T - 1)), p))
    a("s_add_u32 s66, s62, %s" % hex(oO))
    a("s_lshl_b32 s67, s4, 11")
    a("s_add_u32 s67, s67, s66")
    a("s_lshl_b32 s68, s4, 8")
    a("s_add_u32 s68, s68, s66")
    a("s_add_u32 s68, s68, 16384")
    for T in Ts:
        sp = SP + (T - 1) * 8
        o = 48 + (T - 1) * 4
        cvt(o, sp, sp + 1)
        cvt(o + 1, sp + 2, sp + 3)
        cvt(o + 2, sp + 4, sp + 5)
        a("ds_write_b64 v143, %s offset:%d" % (q2(o), (T - 1) * 3072))
        a("ds_write_b32 v144, v%d offset:%d" % (o + 2, (T - 1) * 3072))
    a("s_waitcnt lgkmcnt(0)")
    vm.wait("wo")
    a("s_barrier")
    for st in range(3):
        a("ds_read_b128 %s, v145 offset:%d" % (q4(224 + st * 4), st * 1024))
    for st in range(3):
        a("s_waitcnt lgkmcnt(%d)" % (2 - st))
        if st < 2:
            vm.op("buffer_store_dwordx4 %s, v2, s[40:43], s67 offen offset:%d%s" % (q4(224 + st * 4), st * 1024, STF), "st")
        else:
            vm.op("buffer_store_dwordx4 %s, v221, s[40:43], s68 offen%s" % (q4(232), STF), "st")
    stamp(2)

    WS = 48
    ACC, FIN, AUGW, TMP, KC, AB = 144, 160, 176, 180, 192, 204
    PK = 204

    def ring(q):
        return 16 + (q % NR) * 4

    def m_voffs():
        a("s_mul_i32 s9, s4, 36")
        a("s_add_u32 s9, s9, s3")
        a("s_mul_i32 s11, s9, 18432")
        a("s_add_u32 s11, s11, %s" % hex(W1P))
        a("v_add_u32 v7, s11, v2")
        for k in range(1, 5):
            a("v_add_u32 v%d, %d, v7" % (7 + k, 4096 * k))
        a("s_lshl_b32 s11, s9, 8")
        a("s_add_u32 s11, s11, %s" % hex(AUG))
        a("v_lshl_add_u32 v12, v4, 4, s11")
        for n in range(9):
            a("s_mov_b32 s%d, %d" % (WS + n, n * 4 * 18432))

    W2T, STT = 76, 57
    sst = lambda n: (57 + n) if n < 3 else (85 + n - 3)

    def mload(q):
        def f():
            n, s = divmod(q, 18)
            sr = WS + n if n < 9 else W2T + n - 9
            vm.op("buffer_load_dwordx4 %s, v%d, s[40:43], s%d offen offset:%d" % (q4(ring(q)), 7 + s // 4, sr, (s % 4) * 1024), ("m", q))
        return f

    def aload(n):
        vm.op("buffer_load_dwordx4 %s, v12, s[40:43], s%d offen" % (q4(AUGW), 91), ("aug", n))

    def kslot(ks, tl):
        return ((ks % 12) * 5 + tl) * 4

    def kread(ks, tl):
        def f():
            base, off = (13, ks * 4608) if ks < 10 else (14, ((ks - 10) >> 1) * 18432 + ((ks - 10) & 1) * 4608)
            if tl == 4:
                base += 2
            lg.op("ds_read_b128 %s, v%d offset:%d" % (q4(kslot(ks, tl), "a"), base if base != 16 else 6, off + tl * 1024), ("k", ks))
        return f

    def k2_pre():
        a("v_add_u32 v13, %d, v2" % L_WA)
        a("v_add_u32 v14, %d, v2" % L_WB)
        a("v_and_b32 v15, 7, v4")
        a("v_lshlrev_b32 v15, 4, v15")
        a("v_lshl_add_u32 v15, v3, 7, v15")
        a("v_add_u32 v6, %d, v15" % L_WB)
        a("v_add_u32 v15, %d, v15" % L_WA)
        for ks in range(K2PRE):
            for tl in range(5):
                kread(ks, tl)()

    XU = 224
    def x_unpack():
        for k in range(12):
            unpack(XU + 2 * k, XR + k)

    m_voffs()
    hop("st", pre_a=[mload(q) for q in range(8)],
        pre_b=[k2_pre] + [mload(q) for q in range(8, 18)] + [x_unpack])
    stamp(3)

    OFR, KAC = 88, 160
    a("v_add_u32 v5, 4096, v2")
    rest = [kread(ks, tl) for ks in range(K2PRE, 12) for tl in range(5)]
    for ks in range(18):
        if ks % 8 == 0:
            a("s_add_u32 s15, s66, %d" % (ks * 1024))
        vm.op("buffer_load_dwordx4 %s, v%d, s[40:43], s15 offen offset:%d%s" % (q4(OFR + ks * 4), (2, 5)[(ks % 8) // 4], (ks % 4) * 1024, LD), ("o", ks))
        for f in rest[:3]:
            f()
        rest = rest[3:]
    assert not rest
    for ks in range(18):
        vm.wait(("o", ks))
        lg.wait(("k", ks))
        for tl in range(5):
            a("%s %s, %s, %s, %s" % (MF, q4(KAC + tl * 4), q4(kslot(ks, tl), "a"), q4(OFR + ks * 4), "0" if ks == 0 else q4(KAC + tl * 4)))
            if ks < 6:
                kread(ks + 12, tl)()
    a("s_barrier")
    TP, TU = 180, 88
    for tl in range(5):
        cvt(TP + 2 * tl, KAC + 4 * tl, KAC + 4 * tl + 1)
        cvt(TP + 2 * tl + 1, KAC + 4 * tl + 2, KAC + 4 * tl + 3)
    for kk in range(3):
        a("v_permlane16_swap_b32 v%d, v%d" % (TP + 4 * kk, TP + 4 * kk + 2))
        a("v_permlane16_swap_b32 v%d, v%d" % (TP + 4 * kk + 1, TP + 4 * kk + 3))
    for k in range(8, 12):
        a("v_and_b32 v%d, v%d, v222" % (TP + k, TP + k))
    for kk in range(3):
        for k in range(4 * kk, 4 * kk + 4):
            unpack(TU + 2 * k, TP + k)
        for k in range(4 * kk, 4 * kk + 4):
            a("v_pk_add_f32 %s, %s, %s" % (q2(TU + 2 * k), q2(TU + 2 * k), q2(XU + 2 * k)))
        for k in range(4 * kk, 4 * kk + 4):
            cvt(XR + k, TU + 2 * k, TU + 2 * k + 1)
        vm.op("buffer_store_dwordx4 %s, v%d, s[40:43], s65 offen offset:%d%s" % (q4(XR + 4 * kk), 220 if kk < 2 else 221, kk * 1024, STF), "st")
    for k in range(12):
        unpack(TU + 2 * k, XR + k)
    S0 = 112
    a("v_pk_add_f32 %s, %s, %s" % (q2(S0), q2(TU), q2(TU + 2)))
    a("v_pk_add_f32 %s, %s, %s" % (q2(S0 + 2), q2(TU + 4), q2(TU + 6)))
    for k in range(4, 12, 2):
        a("v_pk_add_f32 %s, %s, %s" % (q2(S0), q2(S0), q2(TU + 2 * k)))
        a("v_pk_add_f32 %s, %s, %s" % (q2(S0 + 2), q2(S0 + 2), q2(TU + 2 * k + 2)))
    a("v_pk_add_f32 %s, %s, %s" % (q2(S0), q2(S0), q2(S0 + 2)))
    a("v_add_f32 v%d, v%d, v%d" % (S0, S0, S0 + 1))
    xsum(S0, S0 + 1)
    a("v_mul_f32 v%d, %s, v%d" % (S0 + 4, f32bits(1.0 / 72.0), S0))
    a("v_sub_f32 v%d, 0, v%d" % (S0 + 6, S0 + 4))
    a("v_mov_b32 v%d, v%d" % (S0 + 7, S0 + 6))
    a("v_and_b32 v%d, v%d, v222" % (S0 + 8, S0 + 6))
    a("v_mov_b32 v%d, v%d" % (S0 + 9, S0 + 8))
    for k in range(12):
        a("v_pk_add_f32 %s, %s, %s" % (q2(TU + 2 * k), q2(TU + 2 * k), q2(S0 + 6 if k < 8 else S0 + 8)))
    a("v_pk_mul_f32 %s, %s, %s" % (q2(S0), q2(TU), q2(TU)))
    a("v_pk_mul_f32 %s, %s, %s" % (q2(S0 + 2), q2(TU + 2), q2(TU + 2)))
    for k in range(2, 12):
        r = S0 + 2 * (k % 2)
        a("v_pk_fma_f32 %s, %s, %s, %s" % (q2(r), q2(TU + 2 * k), q2(TU + 2 * k), q2(r)))
    a("v_pk_add_f32 %s, %s, %s" % (q2(S0), q2(S0), q2(S0 + 2)))
    a("v_add_f32 v%d, v%d, v%d" % (S0 + 5, S0, S0 + 1))
    xsum(S0 + 5, S0 + 1)
    a("s_lshl_b32 s15, s5, 12")
    a("s_add_u32 s69, s15, s44")
    a("s_add_u32 s69, s69, %s" % hex(oST))
    a("s_lshl_b32 s15, s4, 9")
    a("s_lshl_b32 s19, s3, 7")
    a("s_add_u32 s15, s15, s19")
    a("s_add_u32 s15, s15, s69")
    a("v_lshrrev_b32 v%d, 1, v221" % (S0 + 1))
    vm.op("buffer_store_dwordx2 %s, v%d, s[40:43], s15 offen%s" % (q2(S0 + 4), S0 + 1, STF), "st")
    stamp(4)

    def m_setup():
        mod_small("s6", "s5", MROT)
        a("s_mul_i32 s6, s6, %d" % (NROT // MROT))
        a("s_mul_i32 s10, s3, %d" % (8 * 18432))
        a("s_add_u32 s10, s10, %s" % hex(W2P - W1P))
        a("s_lshl_b32 s11, s5, 3")
        a("s_add_u32 s11, s11, s4")
        a("s_mul_i32 s11, s11, %d" % TB)
        a("s_add_u32 s11, s11, s44")
        a("s_add_u32 s11, s11, %s" % hex(oPART))
        a("s_mul_i32 s14, s3, 4608")
        a("s_add_u32 s11, s11, s14")
        for n in range(9):
            a("s_mul_i32 s%d, s6, 18432" % (W2T + n))
            a("s_add_u32 s%d, s%d, s10" % (W2T + n, W2T + n))
            a("s_lshl_b32 s%d, s6, 9" % sst(n))
            a("s_add_u32 s%d, s%d, s11" % (sst(n), sst(n)))
            if n < NROT - 1:
                a("s_add_u32 s6, s6, 1")
                a("s_cmp_eq_u32 s6, %d" % NROT)
                a("s_cselect_b32 s6, 0, s6")
            else:
                a("s_mov_b32 s6, %d" % (n + 1))
        a("v_add_u32 v13, 36864, v2")
        a("v_add_u32 v14, %d, v2" % TB)
        a("v_add_u32 v15, %d, v2" % (TB + 36864))
        a("v_and_b32 v5, 1, v3")
        a("v_mul_u32_u24 v5, 18432, v5")
        a("v_lshl_add_u32 v5, v4, 4, v5")
        a("v_lshrrev_b32 v6, 5, v1")
        a("v_lshl_add_u32 v5, v6, 8, v5")
        a("v_add_u32 v6, 36864, v5")
        a("s_lshr_b32 s14, s3, 1")
        a("s_lshl_b32 s14, s14, 10")
        a("s_and_b32 s15, s3, 1")
        a("s_lshl_b32 s15, s15, 3")
        a("s_add_u32 s14, s14, s15")
        a("v_add_u32 v222, s14, v14")
        a("v_add_u32 v223, s14, v15")
        a("v_lshlrev_b32 v220, 3, v1")
        a("s_mul_i32 s8, s3, 18432")
        a("s_add_u32 s62, s62, %s" % hex(oX1))
        a("s_mov_b32 s91, 0")

    hop("st", pre_a=[mload(q) for q in range(26, 32)],
        pre_b=[m_setup, lambda: aload(0)] + [mload(q) for q in range(18, 26)])
    stamp(5)

    def fr(T, s):
        k = s * 4 + T
        return q4(k * 4, "a") if k < 64 else q4(224 + (k - 64) * 4)

    for s in range(18):
        if s % 3 == 0:
            a("s_add_u32 m0, s8, %d" % (s * 1024))
            a("s_add_u32 s11, s62, %d" % (s * 1024))
        vm.op("buffer_load_dwordx4 v2, s[40:43], s11 offen offset:%d%s lds" % ((s % 3) * 1024, LD), ("y", XST[s]))

    c0 = -2.0 * math.sqrt(2.0 / math.pi) * math.log2(math.e)

    def stat_ops():
        ops = []
        e = lambda t, c=4: ops.append((t, c))
        m = lambda j: FIN + 2 * j
        t0 = TMP
        MEAN, VAR, M1, S1, M2, S2, RS = t0, t0 + 1, t0 + 2, t0 + 3, t0 + 4, t0 + 5, t0 + 6
        ops.append(("WAIT", 0))
        e("v_add_f32 v%d, v%d, v%d" % (MEAN, m(0), m(1)))
        e("v_add_f32 v%d, v%d, v%d" % (VAR, m(0) + 1, m(1) + 1))
        for j in range(2, 8):
            e("v_add_f32 v%d, v%d, v%d" % (MEAN, MEAN, m(j)))
            e("v_add_f32 v%d, v%d, v%d" % (VAR, VAR, m(j) + 1))
        e("v_mul_f32 v%d, %s, v%d" % (MEAN, f32bits(0.125), MEAN))
        e("v_mul_f32 v%d, %s, v%d" % (VAR, f32bits(1.0 / 72.0), VAR))
        for j in range(8):
            e("v_sub_f32 v%d, v%d, v%d" % (m(j), m(j), MEAN))
        for j in range(8):
            e("v_fmac_f32 v%d, v%d, v%d" % (VAR, m(j), m(j)))
        e("v_mul_f32 v%d, %s, v%d" % (VAR, f32bits(0.125), VAR))
        ln_scalars(MEAN, VAR, M1, S1, e)
        e("v_rcp_f32 v%d, v%d" % (RS, S1), 8)
        e("v_sub_f32 v%d, v%d, v%d" % (MEAN, MEAN, M1))
        e("v_mul_f32 v%d, v%d, v%d" % (MEAN, MEAN, RS))
        e("v_mul_f32 v%d, v%d, v%d" % (VAR, VAR, RS))
        e("v_mul_f32 v%d, v%d, v%d" % (VAR, VAR, RS))
        ln_scalars(MEAN, VAR, M2, S2, e)
        MU, R = M1, S1
        e("v_fmac_f32 v%d, v%d, v%d" % (MU, M2, S1))
        e("v_mul_f32 v%d, v%d, v%d" % (R, S1, S2))
        D0, D1, D2, H = t0 + 7, t0 + 8, t0 + 9, t0 + 10
        e("v_cvt_pk_bf16_f32 v%d, v%d, v%d" % (D1, MU, R))
        e("v_lshlrev_b32 v%d, 16, v%d" % (H, D1))
        e("v_sub_f32 v%d, v%d, v%d" % (H, MU, H))
        e("v_cvt_pk_bf16_f32 v%d, v%d, v%d" % (D0, MU, H))
        e("v_and_b32 v%d, 0xffff0000, v%d" % (H, D1))
        e("v_sub_f32 v%d, v%d, v%d" % (H, R, H))
        e("v_cvt_pk_bf16_f32 v%d, v%d, v%d" % (D2, MU, H))
        for T in range(4):
            e("v_cmp_eq_u32 vcc, %d, v3" % T)
            for k, d in enumerate((D0, D1, D0, D2)):
                e("v_cndmask_b32 v%d, 0, v%d, vcc" % (AB + 4 * T + k, d))
        r0, r1, r2, r3 = KC + 8, KC + 9, KC + 10, KC + 11
        e("v_mov_b32 v%d, v%d" % (r0, R))
        e("v_mov_b32 v%d, v%d" % (r2, R))
        e("v_permlane32_swap_b32 v%d, v%d" % (r0, r2))
        e("v_mov_b32 v%d, v%d" % (r1, r0))
        e("v_mov_b32 v%d, v%d" % (r3, r2))
        e("v_permlane16_swap_b32 v%d, v%d" % (r0, r1))
        e("v_permlane16_swap_b32 v%d, v%d" % (r2, r3))
        for T in range(4):
            e("v_rcp_f32 v%d, v%d" % (KC + T, KC + 8 + T), 8)
        for T in range(4):
            e("v_mul_f32 v%d, v%d, v%d" % (KC + 4 + T, KC + T, KC + T))
            e("v_mul_f32 v%d, %s, v%d" % (KC + T, f32bits(c0), KC + T))
            e("v_mul_f32 v%d, v%d, v%d" % (KC + 4 + T, KC + 4 + T, KC + T))
            e("v_mul_f32 v%d, %s, v%d" % (KC + 4 + T, f32bits(0.044715), KC + 4 + T))
        return ops

    def gelu_ops(tl):
        ops = []
        for T in range(4):
            x = [FIN + 4 * T + r for r in range(4)]
            t = [TMP + (T % 2) * 6 + r for r in range(4)]
            pk = TMP + (T % 2) * 6 + 4
            if "nogelu" in ABL:
                ops.append(("v_cvt_pk_bf16_f32 v%d, v%d, v%d" % (pk, x[0], x[1]), 4))
                ops.append(("v_cvt_pk_bf16_f32 v%d, v%d, v%d" % (pk + 1, x[2], x[3]), 4))
                ops.append(("ds_write_b64 v%d, %s offset:%d" % ((222, 223)[T // 2], q2(pk), (T % 2) * 18432 + tl * 2048), 4))
                continue
            for r in range(4):
                ops.append(("v_mul_f32 v%d, v%d, v%d" % (t[r], x[r], x[r]), 4))
            for r in range(4):
                ops.append(("v_fma_f32 v%d, v%d, v%d, v%d" % (t[r], t[r], KC + 4 + T, KC + T), 4))
            for r in range(4):
                ops.append(("v_mul_f32 v%d, v%d, v%d" % (t[r], t[r], x[r]), 4))
            for r in range(4):
                ops.append(("v_exp_f32 v%d, v%d" % (t[r], t[r]), 8))
            for r in range(4):
                ops.append(("v_fma_f32 v%d, v%d, v%d, v%d" % (t[r], t[r], KC + 8 + T, KC + 8 + T), 4))
            for r in range(4):
                ops.append(("v_rcp_f32 v%d, v%d" % (t[r], t[r]), 8))
            for r in range(4):
                ops.append(("v_mul_f32 v%d, v%d, v%d" % (t[r], t[r], x[r]), 4))
            ops.append(("v_cvt_pk_bf16_f32 v%d, v%d, v%d" % (pk, t[0], t[1]), 4))
            ops.append(("v_cvt_pk_bf16_f32 v%d, v%d, v%d" % (pk + 1, t[2], t[3]), 4))
            ops.append(("ds_write_b64 v%d, %s offset:%d" % ((222, 223)[T // 2], q2(pk), (T % 2) * 18432 + tl * 2048), 4))
        return ops

    def out_ops(n2):
        ops = []
        for T in range(4):
            ops.append(("v_cvt_pk_bf16_f32 v%d, v%d, v%d" % (PK + 2 * T, FIN + 4 * T, FIN + 4 * T + 1), 4))
            ops.append(("v_cvt_pk_bf16_f32 v%d, v%d, v%d" % (PK + 2 * T + 1, FIN + 4 * T + 2, FIN + 4 * T + 3), 4))
            if T % 2 == 1:
                ops.append(("v_permlane16_swap_b32 v%d, v%d" % (PK + 2 * T - 2, PK + 2 * T), 4))
                ops.append(("v_permlane16_swap_b32 v%d, v%d" % (PK + 2 * T - 1, PK + 2 * T + 1), 4))
                ops.append(("buffer_store_dwordx4 %s, v%d, s[40:43], s%d offen%s" % (q4(PK + 2 * T - 2), (5, 6)[T // 2], sst(n2), STF), 4))
        return ops

    cur = [0]

    def emit_fill(op):
        if op == "WAIT":
            vm.wait("stat")
        elif op.startswith("ds_"):
            lg.op(op, "hw")
        elif op.startswith("buffer_store"):
            vm.op(op, "st")
            cur[0] += 1
            if cur[0] == 2 * NE1:
                vm.ops[-1] = "st5"
        elif op.startswith("PL"):
            pload(int(op[2:]))
        else:
            if E("E64", 0) and op.split()[0] in ("v_mul_f32", "v_exp_f32", "v_rcp_f32") and "0x" not in op:
                op = op.replace("_f32 ", "_f32_e64 ", 1)
            a(op)

    def act1(T, s, second):
        off = ((T % 2) * 18 + s) * 1024
        base = ((2, 13), (14, 15))[second][T // 2]
        lg.op("ds_read_b128 %s, v%d offset:%d" % (fr(T, s), base, off), ("act", second, s))

    DT, XQ, BQ, SEL, XP = 88, 108, 128, 148, 156
    PR = lambda n: 32 + 4 * n if n < 14 else 16 + 4 * (n - 14)
    order = [(k, st, hf) for k in range(5) for st in range(2) for hf in range(2) if not (k == 4 and st == 1)]

    def r_addr_ops():
        ops = []
        e = lambda t: ops.append((t, 4))
        e("s_lshr_b32 s6, s4, 1")
        e("s_mul_i32 s6, s6, 18432")
        e("s_and_b32 s7, s4, 1")
        e("s_lshl_b32 s7, s7, 7")
        e("s_add_u32 s6, s6, s7")
        e("s_mul_i32 s7, s3, 4608")
        e("s_add_u32 s6, s6, s7")
        e("s_add_u32 s6, s6, s44")
        e("s_lshl_b32 s7, s47, 3")
        e("s_add_u32 s48, s6, s7")
        e("s_add_u32 s48, s48, %s" % hex(oPART))
        e("s_add_u32 s49, s48, %d" % (4 * TB))
        e("s_add_u32 s50, s48, 4096")
        e("s_add_u32 s51, s49, 4096")
        e("s_add_u32 s6, s6, s47")
        e("s_add_u32 s52, s6, %s" % hex(oX1))
        e("s_add_u32 s53, s52, 4096")
        e("s_add_u32 s54, s6, %s" % hex(LS + oXA))
        e("s_add_u32 s55, s6, %s" % hex(LS + oY))
        e("v_and_b32 v176, 7, v1")
        e("v_bfe_u32 v177, v1, 3, 1")
        e("v_lshlrev_b32 v178, 4, v176")
        e("v_lshl_add_u32 v178, v177, 8, v178")
        e("v_mul_u32_u24 v179, %d, v3" % TB)
        e("v_add_u32 v179, v179, v178")
        e("v_and_b32 v180, 1, v3")
        e("v_lshrrev_b32 v181, 1, v3")
        e("v_lshl_add_u32 v182, v181, 9, v178")
        e("v_lshl_add_u32 v183, v180, 10, v182")
        e("v_lshl_add_u32 v182, v180, 3, v182")
        e("v_lshlrev_b32 v184, 4, v177")
        e("v_lshl_add_u32 v184, v181, 5, v184")
        e("v_mul_u32_u24 v185, 1152, v176")
        e("v_add_u32 v185, v185, v184")
        e("v_lshl_add_u32 v185, v180, 6, v185")
        e("v_lshl_add_u32 v184, v180, 3, v184")
        e("v_mov_b32 v188, %s" % hex(OOB))
        e("v_cmp_eq_u32 vcc, 0, v3")
        e("v_add_u32 v186, 4096, v183")
        e("v_cndmask_b32 v186, v188, v186, vcc")
        e("v_cndmask_b32 v187, v188, v185, vcc")
        e("v_cmp_gt_u32 vcc, 2, v3")
        e("v_cndmask_b32 v188, 0, -1, vcc")
        e("s_lshl_b32 s66, s45, 31")
        e("s_add_u32 s60, s60, s66")
        for G in range(1, 6):
            e("s_add_u32 s%d, s66, %d" % (66 + G, G * 12288))
        return ops

    def r_setup():
        srd(36, 28, 0, 1152)
        a("s_mul_i32 s56, s3, 288")
        for k in range(5):
            vm.op("buffer_load_dwordx2 %s, v182, s[40:43], s%d offen offset:%d%s" % (q2(XP + 2 * k), 52 if k < 4 else 53, (k % 4) * 1024, LD), "rx")
            vm.op("buffer_load_dwordx2 %s, v184, s[36:39], s56 offen offset:%d" % (q2(XP + 10 + 2 * k), k * 64), "rx")
        a("v_and_b32 v189, 1, v4")
        a("v_lshlrev_b32 v189, 4, v189")
        a("v_mov_b32 v190, 0x3f80")
        a("v_lshlrev_b32 v189, v189, v190")
        a("v_lshrrev_b32 v190, 1, v4")
        for k in range(8):
            a("v_cmp_eq_u32 vcc, %d, v190" % k)
            a("v_cndmask_b32 v%d, 0, v189, vcc" % (SEL + k))
        a("v_mul_u32_u24 v190, 16, v176")
        a("s_lshl_b32 s7, s3, 2")
        a("v_add_u32 v191, s7, v190")


    def pload(n):
        k, st, hf = order[n]
        vm.op("buffer_load_dwordx4 %s, v179, s[40:43], s%d offen offset:%d%s" % (q4(PR(n)), 48 + hf + (2 if k == 4 else 0), ((4 * k + 2 * st) * 256) % 4096, LD), ("p", n))

    kpf = [wload1(i, t, "s%d" % (66 + i // 3)) for i in range(PF) for t in range(4)]
    PFT = E("PFT", 9)
    NQ = 18 * 18
    AHEAD = 3
    for n in range(18):
        gemm = 1 if n < 9 else 2
        npos = 19 if gemm == 1 else 18
        if n == 0:
            fill, g0, g1 = stat_ops(), 30, 70
        elif n <= 9:
            fill, g0, g1 = gelu_ops(n - 1), E("GG0", 0), (E("GG1", 74) if n < 9 else 50)
        elif n == 15:
            fill, g0, g1 = out_ops(n - 10) + r_addr_ops(), 8, 68
        else:
            fill, g0, g1 = out_ops(n - 10), 8, 24
        rd = n in (0, 9)
        if n == 0:
            vm.wait(("y", 0))
            a("s_barrier")
            for j in range(8):
                vm.op("buffer_load_dwordx2 %s, v220, s[40:43], s69 offen offset:%d%s" % (q2(FIN + 2 * j), j * 512, LD), "stat")
        if n == 16 and NE1:
            poll("s46", issued="poll")
            a("s_add_u32 s46, s46, 8")
        if n == 17:
            vm.wait("st")
            arrive(ret=False)
        if n == 1:
            stamp(6)
            if E("ALN", 0):
                a(".p2align 3")
                if E("ALN", 0) == 2:
                    a("s_nop 0")
        if n == 9:
            stamp(7)
            lg.wait("hw")
            a("s_barrier")
        if n == 10:
            stamp(8)
        if rd:
            for s in range(AHEAD):
                for T in range(4):
                    act1(T, s, n == 9)
        total = sum(c for _, c in fill)
        fi = spent = m = 0
        for s in range(npos):
            q = n * 18 + s
            if rd and s < 18:
                sa = s + AHEAD
                if sa < 18:
                    if n == 0 and XST[sa] != XST[sa - 1]:
                        vm.wait(("y", XST[sa]))
                        a("s_barrier")
                    if n == 9 and sa == 16:
                        assert fi == len(fill)
                        lg.wait("hw")
                        a("s_barrier")
                lg.wait(("act", n == 9, s))
            if NE1 and n == 10 + NE1 and s == 4:
                vm.wait("st5")
                arrive(ret=False)
            if NE1 and n == 15 and s == 10:
                a("s_mov_b32 s16, 0")
                a("s_atomic_add s16, s[20:21], s22 glc")
            if n == 16 and 7 <= s < 7 + 2 * NE1:
                pload(s - 7)
            if s == 18:
                assert fi == len(fill) or (n > 0 and fi > 3 * len(fill) // 4)
                vm.wait(("aug", n))
            elif s % WSTEP == 0:
                n0 = len(a.ins)
                for k in range(WSTEP):
                    vm.wait(("m", q + WSTEP - 1 - k))
                if E("E64", 0) and (len(a.ins) - n0) % 2:
                    a("s_nop 0")
            for T in range(4):
                last = s == npos - 1
                d = (FIN if last else ACC) + 4 * T
                c = "0" if s == 0 else q4(ACC + 4 * T)
                if s == 18:
                    a("%s %s, %s, %s, %s" % (MF, q4(d), q4(AUGW), q4(AB + 4 * T), c))
                else:
                    a("%s %s, %s, %s, %s" % (MF, q4(d), q4(ring(q)), fr(T, s), c))
                if rd and s + AHEAD < 18:
                    act1(T, s + AHEAD, n == 9)
                if T == 3:
                    if s < 18 and q + NR < NQ:
                        if "noload" in ABL:
                            vm.ops.append(("m", q + NR))
                        else:
                            mload(q + NR)()
                    if n == 16 and 4 <= s < 16:
                        wodma(0, s - 4)()
                    if n == 16 and s == 16:
                        kw_voffs()
                    if n == 17:
                        for k in range(s * PFT // 18, (s + 1) * PFT // 18):
                            assert k // 4 <= s
                            kpf[k]()
                    if s == 18 and n < 8:
                        a("s_add_u32 s91, s91, 1024")
                        aload(n + 1)
                if fill and g0 <= m <= g1:
                    budget = total * (m - g0 + 1) / (g1 - g0 + 1)
                    while fi < len(fill) and spent + fill[fi][1] / 2 <= budget:
                        emit_fill(fill[fi][0])
                        spent += fill[fi][1]
                        fi += 1
                m += 1
        assert fi == len(fill), (n, fi, len(fill))
    for op, _ in out_ops(8):
        emit_fill(op)
    stamp(9)

    def r_unpack():
        vm.wait("rx")
        for k in range(8, 10):
            a("v_and_b32 v%d, v%d, v188" % (XP + k, XP + k))
            a("v_and_b32 v%d, v%d, v188" % (XP + 10 + k, XP + 10 + k))
        for k in range(10):
            unpack(XQ + 2 * k, XP + k)
            unpack(BQ + 2 * k, XP + 10 + k)


    def pmfma(n):
        k, st, hf = order[n]
        vm.wait(("p", n))
        a("%s %s, %s, %s, %s" % (MF, q4(DT + 4 * k), q4(SEL + 4 * st), q4(PR(n)), q4(BQ + 4 * k) if (st == 0 and hf == 0) else q4(DT + 4 * k)))

    def early():
        a("s_mov_b32 s16, 0")
        a("s_atomic_add s16, s[20:21], s22 glc")
        r_setup()
        poll("s46", issued="poll")
        a("s_add_u32 s46, s46, 8")
        for n in range(2 * NE1, 2 * NE1 + 6):
            pload(n)

    def early2():
        for n in range(2 * NE1 + 6, 14):
            pload(n)
        r_unpack()
        for n in range(2 * NE1):
            pmfma(n)

    kpf = kpf[PFT:]
    n2 = E("PFB", 0)
    hop("st", pre_a=[early], pre_b=[early2] + kpf[:n2])
    kpf = kpf[n2:]
    stamp(10)
    for n in range(14, 18):
        pload(n)
    for n in range(2 * NE1, 18):
        pmfma(n)
    n4 = E("PFD", 0)
    for f in kpf[:n4]:
        f()
    kpf = kpf[n4:]
    TK = 192
    for k in range(10):
        cvt(TK + k, DT + 2 * k, DT + 2 * k + 1)
    for k in range(10):
        unpack(DT + 2 * k, TK + k)
    for k in range(10):
        a("v_pk_add_f32 %s, %s, %s" % (q2(DT + 2 * k), q2(DT + 2 * k), q2(XQ + 2 * k)))
    for k in range(10):
        cvt(TK + k, DT + 2 * k, DT + 2 * k + 1)
    for k in range(10):
        unpack(DT + 2 * k, TK + k)
    for kk in range(3):
        a("v_permlane16_swap_b32 v%d, v%d" % (TK + 4 * kk, TK + 4 * kk + 2))
        a("v_permlane16_swap_b32 v%d, v%d" % (TK + 4 * kk + 1, TK + 4 * kk + 3))
    a("s_cmp_eq_u32 s45, 0")
    a("s_cbranch_scc1 R_mid")
    srd(36, 30, 0, ACT)
    a("s_lshl_b32 s6, s5, 3")
    a("s_add_u32 s6, s6, s4")
    a("s_mul_i32 s6, s6, %d" % (8 * 1152))
    a("s_add_u32 s6, s6, s56")
    for kk in range(3):
        a("buffer_store_dwordx4 %s, v%d, s[36:39], s6 offen offset:%d" % (q4(TK + 4 * kk), 185 if kk < 2 else 187, kk * 128))
    stamp(11)
    rstamp(12)
    if os.environ.get("PDBG"):
        a("s_or_b32 s6, s2, s3")
        a("s_cmp_lg_u32 s6, 0")
        a("s_cbranch_scc1 L_exit2")
        a("s_load_dwordx2 s[6:7], s[0:1], %d" % KA_DBG)
        a("s_waitcnt vmcnt(0) lgkmcnt(0)")
        srd(36, 6, 0, 256)
        a("v_lshlrev_b32 v5, 2, v1")
        a("v_mov_b32 v6, %d" % (1 << 19))
        a("buffer_load_dwordx2 v[8:9], v6, s[92:95], 0 offen sc1")
        a("v_mov_b32 v6, %d" % ((1 << 19) + (P_MISC - 1) * 128))
        a("buffer_load_dwordx2 v[10:11], v6, s[92:95], 0 offen sc1")
        a("buffer_load_dword v12, v5, s[92:95], 0 offen offset:64 sc1")
        a("buffer_load_dword v13, off, s[92:95], 0 offset:%d sc1" % (128 + 64 + 44))
        a("s_waitcnt vmcnt(0)")
        a("v_sub_u32 v12, v12, v8")
        a("v_sub_u32 v13, v13, v8")
        a("v_sub_u32 v9, v9, v8")
        a("v_sub_u32 v11, v11, v8")
        a("v_cmp_gt_u32 vcc, 12, v1")
        a("v_mov_b32 v6, %s" % hex(OOB))
        a("v_cndmask_b32 v5, v6, v5, vcc")
        a("buffer_store_dword v12, v5, s[36:39], 0 offen")
        a("buffer_store_dword v13, off, s[36:39], 0 offset:48")
        a("buffer_store_dword v9, off, s[36:39], 0 offset:52")
        a("buffer_store_dword v11, off, s[36:39], 0 offset:56")
    a("L_exit2:")
    a("s_endpgm")
    a("R_mid:")
    for kk in range(3):
        vm.op("buffer_store_dwordx4 %s, v%d, s[40:43], s54 offen offset:%d%s" % (q4(TK + 4 * kk), 183 if kk < 2 else 186, (kk % 2) * 2048, ST), "st")
    S0 = XQ

    def reduce4(s, ldsoff, out):
        xsum(s, s + 1, ror8=True)
        a("ds_write_b32 v191, v%d offset:%d" % (s, ldsoff))
        a("s_waitcnt lgkmcnt(0)")
        a("s_barrier")
        a("ds_read_b128 %s, v190 offset:%d" % (q4(S0 + 4), ldsoff))
        a("s_waitcnt lgkmcnt(0)")
        a("v_pk_add_f32 %s, %s, %s" % (q2(S0 + 4), q2(S0 + 4), q2(S0 + 6)))
        a("v_add_f32 v%d, v%d, v%d" % (S0 + 4, S0 + 4, S0 + 5))
        a("v_mul_f32 v%d, %s, v%d" % (out, f32bits(1.0 / 576.0), S0 + 4))

    a("v_pk_add_f32 %s, %s, %s" % (q2(S0), q2(DT), q2(DT + 2)))
    a("v_pk_add_f32 %s, %s, %s" % (q2(S0 + 2), q2(DT + 4), q2(DT + 6)))
    for k in range(4, 10, 2):
        a("v_pk_add_f32 %s, %s, %s" % (q2(S0), q2(S0), q2(DT + 2 * k)))
        a("v_pk_add_f32 %s, %s, %s" % (q2(S0 + 2), q2(S0 + 2), q2(DT + 2 * k + 2)))
    a("v_pk_add_f32 %s, %s, %s" % (q2(S0), q2(S0), q2(S0 + 2)))
    a("v_add_f32 v%d, v%d, v%d" % (S0, S0, S0 + 1))
    MEAN, VAR, M, SD = S0 + 8, S0 + 9, S0 + 10, S0 + 12
    reduce4(S0, 0, MEAN)
    a("v_sub_f32 v%d, 0, v%d" % (S0 + 14, MEAN))
    a("v_mov_b32 v%d, v%d" % (S0 + 15, S0 + 14))
    a("v_and_b32 v%d, v%d, v188" % (S0 + 16, S0 + 14))
    a("v_mov_b32 v%d, v%d" % (S0 + 17, S0 + 16))
    for k in range(10):
        a("v_pk_add_f32 %s, %s, %s" % (q2(BQ + 2 * k), q2(DT + 2 * k), q2(S0 + 14 if k < 8 else S0 + 16)))
    a("v_pk_mul_f32 %s, %s, %s" % (q2(S0), q2(BQ), q2(BQ)))
    a("v_pk_mul_f32 %s, %s, %s" % (q2(S0 + 2), q2(BQ + 2), q2(BQ + 2)))
    for k in range(2, 10):
        r = S0 + 2 * (k % 2)
        a("v_pk_fma_f32 %s, %s, %s, %s" % (q2(r), q2(BQ + 2 * k), q2(BQ + 2 * k), q2(r)))
    a("v_pk_add_f32 %s, %s, %s" % (q2(S0), q2(S0), q2(S0 + 2)))
    a("v_add_f32 v%d, v%d, v%d" % (S0, S0, S0 + 1))
    reduce4(S0, 256, VAR)
    ln_scalars(MEAN, VAR, M, SD)
    a("v_rcp_f32 v%d, v%d" % (SD, SD))
    a("v_sub_f32 v%d, 0, v%d" % (M, M))
    a("v_mov_b32 v%d, v%d" % (M + 1, M))
    a("v_mov_b32 v%d, v%d" % (SD + 1, SD))
    for k in range(10):
        a("v_pk_add_f32 %s, %s, %s" % (q2(DT + 2 * k), q2(DT + 2 * k), q2(M)))
    TY = 204
    for k in range(10):
        cvt(TY + k, DT + 2 * k, DT + 2 * k + 1)
    for k in range(10):
        unpack(DT + 2 * k, TY + k)
    for k in range(10):
        a("v_pk_mul_f32 %s, %s, %s" % (q2(DT + 2 * k), q2(DT + 2 * k), q2(SD)))
    for k in range(10):
        cvt(TY + k, DT + 2 * k, DT + 2 * k + 1)
    for kk in range(3):
        a("v_permlane16_swap_b32 v%d, v%d" % (TY + 4 * kk, TY + 4 * kk + 2))
        a("v_permlane16_swap_b32 v%d, v%d" % (TY + 4 * kk + 1, TY + 4 * kk + 3))
    for kk in range(3):
        vm.op("buffer_store_dwordx4 %s, v%d, s[40:43], s55 offen offset:%d%s" % (q4(TY + 4 * kk), 183 if kk < 2 else 186, (kk % 2) * 2048, ST), "st")
    stamp(11)

    def next_layer():
        a("s_add_u32 s44, s44, %s" % hex(LS))
        a("s_mov_b32 s45, 1")
        a("s_add_u32 s32, s24, %s" % hex(LB + LS + oXA))
        a("s_addc_u32 s33, s25, 0")
        k1_setup(False)
        attn_consts()

    a("s_lshr_b32 s6, s4, 1")
    a("s_lshl_b32 s7, s5, 2")
    a("s_add_u32 s6, s6, s7")
    a("s_lshl_b32 s6, s6, 7")
    a("s_add_u32 s19, s6, 16384")
    a("s_add_u32 s23, s22, 16384")
    a("s_max_u32 s7, s7, 1")
    a("s_lshl_b32 s7, s7, 7")
    a("s_add_u32 s26, s7, %d" % (16384 - 128))
    for f in kpf[:10]:
        f()
    vm.wait("st")
    arrive("s19", ret=False)
    for f in kpf[10:]:
        f()
    next_layer()
    poll("8", offs=("s23", "s26"))
    if PROF:
        a("s_add_u32 s96, s96, 128")
    stamp(0)
    a("s_branch K1_second")
    a("L_code_end:")
    a("s_endpgm")


def descriptor(label, vgpr, accum, sgpr):
    return """.amdhsa_kernel %s
  .amdhsa_next_free_vgpr %d
  .amdhsa_next_free_sgpr %d
  .amdhsa_accum_offset %d
  .amdhsa_group_segment_fixed_size 0
  .amdhsa_kernarg_size 88
  .amdhsa_user_sgpr_count 2
  .amdhsa_user_sgpr_kernarg_segment_ptr 1
  .amdhsa_system_sgpr_workgroup_id_x 1
.end_amdhsa_kernel
""" % (label, vgpr, sgpr, accum)


def build():
    launches = [
        ("p_kernel", P_END, 576, 36864 + 2304, 64, 64, 64),
        ("main_kernel", 256, 256, MAIN_LDS, 512, 256, 102),
    ]
    p_kernel()
    main_kernel()
    for e in a.check_branch_seams():
        print("WARN", e, file=sys.stderr)
    head = "; generated by work/gen2.py (hand-written generator)\n"
    for l, g, b, lds, _, _, _ in launches:
        head += "; @launch kernel=%s grid=(%d,1,1) block=(%d,1,1) lds=%d\n" % (l, g, b, lds)
    head += '.amdgcn_target "amdgcn-amd-amdhsa--gfx950"\n.text\n'
    tail = '.section .rodata,"a"\n'
    for l, g, b, lds, v, ac, sg in launches:
        tail += ".p2align 6\n" + descriptor(l, v, ac, sg)
    return head + a.text() + tail


if __name__ == "__main__":
    out = sys.argv[1] if len(sys.argv) > 1 else "cdna_kernels/%s.s" % NAME
    open(out, "w").write(build())
    print("wrote", out)
```

```python
import sys, math, os
from asmlib import Asm, f32bits

NAME = "interleave_layers__sliding_local_dilated__mixer_channel_mlp__prompt"
ACT = 2048 * 576 * 2
TB = 73728
WOS = 82944
WQKVP = 0
WOP = WQKVP + 2304 * 1024
W1P = WOP + 672 * 1024
W2P = W1P + 5184 * 1024
AUG = W2P + 5184 * 1024
CNT = AUG + 72 * 1024
CNTB = 36864
LB = CNT + CNTB
oY, oO, oXA, oX1 = 0, ACT, 2 * ACT, 3 * ACT
oST = 4 * ACT
PSHARE = int(os.environ.get("PSHARE", "0"))
oPART = 4 * ACT + 128 * 1024
LS = oPART + (0 if PSHARE else 8 * ACT)
WS_USED = LB + 2 * LS + (8 * ACT if PSHARE else 0)
PARTB = LB + 2 * LS
WS_BYTES = 268435456
OOB = 0x80000000
ST = " sc1"
LD = " sc1"
STAMP = 200 * 1024 * 1024

E = lambda n, d: int(os.environ.get(n, str(d)))
PROF = os.environ.get("PROF", "")
MAPB = E("MAPB", 2)
MROT = E("MROT", 3)
AROT = E("AROT", 2)
APRE = E("APRE", 3)
PF = E("PF", 9)
K2PRE = E("K2PRE", 6)
TOUCH = E("TOUCH", 0)
NE1 = E("NE1", 0)
NROT = NE1 if NE1 else 7
PNT = os.environ.get("PNT", " nt").replace("_", " ")
PV = E("PV", 72)
ABL = os.environ.get("ABL", "")
XST = {0: [s // 6 for s in range(18)], 1: [0] * 3 + [1] * 5 + [2] * 5 + [3] * 5}[E("XS", 1)]
STF = "" if E("FAST", 0) else ST
WSTEP = E("WSTEP", 2)
NR = 32
SPIN = 1 << 16

KA_X, KA_WQKV, KA_WO, KA_BX, KA_W1, KA_B1, KA_W2, KA_B2, KA_OUT, KA_DBG, KA_WS = [8 * i for i in range(11)]
a = Asm()
MF = "v_mfma_f32_16x16x32_bf16"
q4 = lambda b, k="v": "%s[%d:%d]" % (k, b, b + 3)
q2 = lambda b: "v[%d:%d]" % (b, b + 1)


def srd(d, base, off, nbytes):
    if off == 0:
        a("s_mov_b32 s%d, s%d" % (d, base))
        a("s_mov_b32 s%d, s%d" % (d + 1, base + 1))
    else:
        a("s_add_u32 s%d, s%d, %s" % (d, base, off if isinstance(off, str) else hex(off)))
        a("s_addc_u32 s%d, s%d, 0" % (d + 1, base + 1))
    a("s_mov_b32 s%d, %s" % (d + 2, hex(nbytes)))
    a("s_mov_b32 s%d, 0x20000" % (d + 3))


def entry(label):
    a(".p2align 8")
    a(".globl %s" % label)
    a(".type %s,@function" % label)
    a("%s:" % label)


class VM:
    def __init__(self, cnt="vmcnt", maxn=63):
        self.ops, self.cnt, self.maxn, self.done = [], cnt, maxn, -1

    def op(self, text, tag):
        a(text)
        self.ops.append(tag)

    def wait(self, tag):
        last = max(i for i, t in enumerate(self.ops) if t == tag)
        if last <= self.done:
            return
        n = min(len(self.ops) - 1 - last, self.maxn)
        self.done = len(self.ops) - 1 - n
        a("s_waitcnt %s(%d)" % (self.cnt, n))

    def all(self):
        self.done = len(self.ops) - 1
        a("s_waitcnt %s(0)" % self.cnt)


def stamp(k):
    if PROF:
        a("s_memtime s[98:99]")
        a("s_memrealtime s[100:101]")
        a("s_waitcnt lgkmcnt(0)")
        a("v_mov_b32 v0, s98")
        a("buffer_store_dword v0, off, s[92:95], s96 offset:%d" % (4 * k))
        a("v_mov_b32 v0, s100")
        a("buffer_store_dword v0, off, s[92:95], s96 offset:%d" % (4 * k + 64))


def rstamp(k):
    if PROF:
        a("s_memrealtime s[98:99]")
        a("s_waitcnt lgkmcnt(0)")
        a("v_mov_b32 v0, s98")
        a("buffer_store_dword v0, off, s[92:95], s96 offset:%d" % (4 * k))


def unpack(dst, src):
    a("v_lshlrev_b32 v%d, 16, v%d" % (dst, src))
    a("v_and_b32 v%d, 0xffff0000, v%d" % (dst + 1, src))


def cvt(d, x, y):
    a("v_cvt_pk_bf16_f32 v%d, v%d, v%d" % (d, x, y))


def round1(r):
    cvt(r, r, r)
    a("v_and_b32 v%d, 0xffff0000, v%d" % (r, r))


def ln_scalars(mean, var, M, SD, emit=None):
    e = emit or a
    e("v_cvt_pk_bf16_f32 v%d, v%d, v%d" % (M, var, mean))
    e("v_lshlrev_b32 v%d, 16, v%d" % (SD, M))
    e("v_and_b32 v%d, 0xffff0000, v%d" % (M, M))
    e("v_add_f32 v%d, %s, v%d" % (SD, f32bits(1e-5), SD))
    e("v_cvt_pk_bf16_f32 v%d, v%d, v%d" % (SD, SD, SD))
    e("v_and_b32 v%d, 0xffff0000, v%d" % (SD, SD))
    e("v_sqrt_f32 v%d, v%d" % (SD, SD))
    e("v_cvt_pk_bf16_f32 v%d, v%d, v%d" % (SD, SD, SD))
    e("v_and_b32 v%d, 0xffff0000, v%d" % (SD, SD))


def xsum(r, t, rows16=True, rows32=True, ror8=False):
    if ror8:
        a("v_add_f32_dpp v%d, v%d, v%d row_ror:8 row_mask:0xf bank_mask:0xf" % (r, r, r))
    a("v_mov_b32 v%d, v%d" % (t, r))
    a("v_permlane16_swap_b32 v%d, v%d" % (r, t))
    a("v_add_f32 v%d, v%d, v%d" % (r, r, t))
    a("v_mov_b32 v%d, v%d" % (t, r))
    a("v_permlane32_swap_b32 v%d, v%d" % (r, t))
    a("v_add_f32 v%d, v%d, v%d" % (r, r, t))


def mod_small(dst, src, n):
    if n == 1:
        a("s_mov_b32 %s, 0" % dst)
        return
    m = -(-4096 // n)
    assert all((t * m) >> 12 == t // n for t in range(32))
    a("s_mul_i32 %s, %s, %d" % (dst, src, m))
    a("s_lshr_b32 %s, %s, 12" % (dst, dst))
    a("s_mul_i32 %s, %s, %d" % (dst, dst, n))
    a("s_sub_u32 %s, %s, %s" % (dst, src, dst))


P_LN, P_QKV, P_W1, P_W2, P_MISC, P_END = 0, 256, 328, 472, 616, 617


def p_kernel():
    entry("p_kernel")
    a("s_cmp_ge_u32 s2, %d" % P_END)
    a("s_cbranch_scc1 L_exit")
    if PROF:
        a("s_memrealtime s[56:57]")
    a("s_load_dwordx16 s[4:19], s[0:1], 0")
    a("s_load_dwordx2 s[24:25], s[0:1], %d" % KA_WS)
    a("v_lshrrev_b32 v1, 6, v0")
    a("v_readfirstlane_b32 s3, v1")
    a("v_and_b32 v1, 63, v0")
    a("v_lshlrev_b32 v2, 4, v1")
    a("v_lshrrev_b32 v3, 4, v1")
    a("v_and_b32 v4, 15, v1")
    a("v_lshlrev_b32 v5, 4, v0")
    a("s_waitcnt lgkmcnt(0)")
    srd(40, 24, 0, WS_USED)
    if E("PTOUCH", 0):
        a("s_cmp_ge_u32 s2, 32")
        a("s_cbranch_scc1 P_nt")
        a("s_lshr_b32 s20, s2, 3")
        a("s_mul_i32 s20, s20, 576")
        a("v_add_u32 v62, s20, v0")
        a("v_min_u32 v62, %d, v62" % ((1 << (31 - E("PTOUCH", 0))) - 1))
        a("v_lshlrev_b32 v62, %d, v62" % E("PTOUCH", 0))
        a("buffer_load_dword v63, v62, s[40:43], 0 offen")
        a("P_nt:")
    a("s_cmp_lt_u32 s2, %d" % P_QKV)
    a("s_cbranch_scc1 P_ln")
    a("s_cmp_ge_u32 s2, %d" % P_MISC)
    a("s_cbranch_scc1 P_misc")
    a("s_cmp_ge_u32 s2, %d" % P_W1)
    a("s_cbranch_scc1 P_w12")
    a("s_sub_u32 s29, s2, %d" % P_QKV)
    srd(36, 6, 0, 576 * 1728 * 2)
    a("s_mul_i32 s20, s29, %d" % (8 * 3456))
    a("s_lshl_b32 s21, s3, 10")
    for n in range(3):
        a("s_add_u32 m0, s21, %d" % (n * 9216))
        a("s_add_u32 s22, s20, %d" % (n * 9216))
        a("buffer_load_dwordx4 v5, s[36:39], s22 offen" + PNT + " lds")
    srd(32, 8, 0, 576 * 576 * 2)
    a("s_mov_b32 s20, s29")
    a("s_lshr_b32 s21, s20, 2")
    a("s_and_b32 s22, s20, 3")
    a("v_mul_u32_u24 v6, 911, v0")
    a("v_lshrrev_b32 v6, 16, v6")
    a("v_mul_u32_u24 v7, 72, v6")
    a("v_sub_u32 v7, v0, v7")
    a("s_cmp_ge_u32 s21, 16")
    a("s_cbranch_scc1 P_wo_tail")
    a("s_mul_i32 s23, s21, 36")
    a("s_lshl_b32 s26, s22, 2")
    a("s_add_u32 s23, s23, s26")
    a("v_lshrrev_b32 v8, 2, v6")
    a("v_and_b32 v9, 3, v6")
    a("s_branch P_wo_go")
    a("P_wo_tail:")
    a("s_sub_u32 s23, s20, 64")
    a("s_mul_i32 s23, s23, 72")
    a("s_add_u32 s23, s23, 16")
    a("v_lshrrev_b32 v8, 1, v6")
    a("v_and_b32 v9, 1, v6")
    a("P_wo_go:")
    a("v_mul_u32_u24 v8, 18, v8")
    a("v_add_u32 v8, v8, v9")
    a("v_mul_u32_u24 v8, 1152, v8")
    a("v_lshl_add_u32 v8, v7, 4, v8")
    a("s_mul_i32 s23, s23, 1152")
    a("s_lshl_b32 s26, s3, 10")
    a("s_add_u32 m0, s26, 27648")
    a("buffer_load_dwordx4 v8, s[32:35], s23 offen" + PNT + " lds")
    a("s_mul_i32 s27, s21, 4608")
    a("s_add_u32 s27, s27, %s" % hex(WOP))
    a("v_lshrrev_b32 v8, 4, v7")
    a("v_lshlrev_b32 v8, 10, v8")
    a("v_and_b32 v9, 15, v7")
    a("v_lshl_add_u32 v8, v9, 4, v8")
    a("s_lshl_b32 s26, s22, 7")
    a("v_mov_b32 v10, s26")
    a("v_lshlrev_b32 v11, 1, v10")
    a("v_cmp_gt_u32 vcc, 64, v7")
    a("v_cndmask_b32 v10, v10, v11, vcc")
    a("v_add_u32 v8, v8, v10")
    a("s_mov_b32 s26, %d" % WOS)
    a("v_mad_u32_u24 v3, v6, s26, v8")
    a("v_lshlrev_b32 v4, 1, v0")
    a("s_lshr_b32 s22, s29, 2")
    a("s_lshl_b32 s22, s22, 12")
    a("s_and_b32 s23, s29, 3")
    a("s_lshl_b32 s23, s23, 8")
    a("s_add_u32 s22, s22, s23")
    a("v_mov_b32 v15, %s" % hex(OOB))
    for n in range(4):
        u, src, dst = 6, 48 + n, 52 + n
        a("v_add_u32 v6, %d, v0" % (n * 576))
        a("v_lshrrev_b32 v7, 6, v6")
        a("v_bfe_u32 v8, v6, 4, 2")
        a("v_and_b32 v9, 15, v6")
        a("v_mul_u32_u24 v10, 36, v7")
        a("v_mul_u32_u24 v11, 1152, v8")
        a("v_lshl_add_u32 v11, v9, 1, v11")
        a("v_lshrrev_b32 v12, 1, v9")
        a("v_mul_u32_u24 v12, 1152, v12")
        a("v_and_b32 v13, 1, v9")
        a("v_lshl_add_u32 v12, v13, 1, v12")
        a("v_add_u32 v12, 32, v12")
        a("v_cmp_eq_u32 vcc, 3, v8")
        a("v_cndmask_b32 v11, v11, v12, vcc")
        a("v_cmp_lt_u32 s[44:45], 5, v9")
        a("s_and_b64 s[%d:%d], vcc, s[44:45]" % (46 + 2 * n, 47 + 2 * n))
        a("v_cndmask_b32 v11, v11, 0, s[%d:%d]" % (46 + 2 * n, 47 + 2 * n))
        a("v_add_u32 v%d, v10, v11" % src)
        a("v_mul_u32_u24 v7, 73728, v7")
        a("v_lshl_add_u32 v7, v8, 10, v7")
        a("v_lshl_add_u32 v%d, v9, 4, v7" % dst)
        if n == 3:
            a("v_cmp_gt_u32 vcc, 2048, v6")
            a("v_cndmask_b32 v%d, v15, v%d, vcc" % (dst, dst))
            a("v_cndmask_b32 v%d, 0, v%d, vcc" % (src, src))
    a("s_waitcnt vmcnt(0)")
    a("s_barrier")
    for n in range(4):
        for j in range(8):
            a("ds_read_u16 v%d, v%d offset:%d" % (16 + n * 8 + j, 48 + n, j * 3456))
        if n % 2 == 1:
            a("s_waitcnt lgkmcnt(0)")
            for m in (n - 1, n):
                for k in range(4):
                    a("v_lshl_or_b32 v%d, v%d, 16, v%d" % (16 + m * 8 + k, 16 + m * 8 + 2 * k + 1, 16 + m * 8 + 2 * k))
                    a("v_cndmask_b32 v%d, v%d, 0, s[%d:%d]" % (16 + m * 8 + k, 16 + m * 8 + k, 46 + 2 * m, 47 + 2 * m))
                a("buffer_store_dwordx4 %s, v%d, s[40:43], s22 offen%s" % (q4(16 + m * 8), 52 + m, ST))
    for j in range(8):
        a("ds_read_u16 v%d, v4 offset:%d" % (56 + j, 27648 + j * 1152))
    a("s_waitcnt lgkmcnt(0)")
    for k in range(4):
        a("v_lshl_or_b32 v%d, v%d, 16, v%d" % (56 + k, 56 + 2 * k + 1, 56 + 2 * k))
    a("buffer_store_dwordx4 v[56:59], v3, s[40:43], s27 offen%s" % ST)
    a("s_branch P_end" if PROF else "s_endpgm")

    a("P_ln:")
    srd(36, 4, 0, ACT)
    a("s_sub_u32 s20, s2, %d" % P_LN)
    a("v_lshrrev_b32 v1, 3, v0")
    a("v_and_b32 v7, 7, v0")
    a("v_lshlrev_b32 v8, 4, v1")
    a("v_mul_u32_u24 v9, 1152, v7")
    a("v_add_u32 v9, v9, v8")
    a("s_mul_i32 s21, s20, %d" % (8 * 1152))
    a("buffer_load_dwordx4 v[16:19], v9, s[36:39], s21 offen" + PNT)
    a("v_lshlrev_b32 v3, 8, v1")
    a("v_lshl_add_u32 v3, v7, 4, v3")
    a("s_lshr_b32 s22, s20, 1")
    a("s_mul_i32 s22, s22, 18432")
    a("s_and_b32 s23, s20, 1")
    a("s_lshl_b32 s23, s23, 7")
    a("s_add_u32 s22, s22, s23")
    a("s_add_u32 s22, s22, %s" % hex(LB + oY))
    a("v_mul_u32_u24 v11, 48, v7")
    a("v_lshrrev_b32 v12, 6, v0")
    a("v_lshl_add_u32 v12, v12, 2, v11")
    AC, T, P = 24, 32, 48
    a("s_waitcnt vmcnt(0)")
    for k in range(4):
        unpack(AC + 2 * k, 16 + k)

    def reduce9(s, ldsoff, out):
        xsum(s, s + 1, ror8=True)
        a("ds_write_b32 v12, v%d offset:%d" % (s, ldsoff))
        a("s_waitcnt lgkmcnt(0)")
        a("s_barrier")
        a("ds_read_b128 %s, v11 offset:%d" % (q4(P), ldsoff))
        a("ds_read_b128 %s, v11 offset:%d" % (q4(P + 4), ldsoff + 16))
        a("ds_read_b32 v%d, v11 offset:%d" % (P + 8, ldsoff + 32))
        a("s_waitcnt lgkmcnt(0)")
        a("v_pk_add_f32 %s, %s, %s" % (q2(P), q2(P), q2(P + 2)))
        a("v_pk_add_f32 %s, %s, %s" % (q2(P + 4), q2(P + 4), q2(P + 6)))
        a("v_pk_add_f32 %s, %s, %s" % (q2(P), q2(P), q2(P + 4)))
        a("v_add_f32 v%d, v%d, v%d" % (P, P, P + 1))
        a("v_add_f32 v%d, v%d, v%d" % (P, P, P + 8))
        a("v_mul_f32 v%d, %s, v%d" % (out, f32bits(1.0 / 576.0), P))

    S, MEAN, VAR, M, SD = 40, 42, 43, 44, 45
    a("v_pk_add_f32 %s, %s, %s" % (q2(T), q2(AC), q2(AC + 2)))
    a("v_pk_add_f32 %s, %s, %s" % (q2(T + 2), q2(AC + 4), q2(AC + 6)))
    a("v_pk_add_f32 %s, %s, %s" % (q2(T), q2(T), q2(T + 2)))
    a("v_add_f32 v%d, v%d, v%d" % (S, T, T + 1))
    reduce9(S, 0, MEAN)
    for k in range(8):
        a("v_sub_f32 v%d, v%d, v%d" % (T + k, AC + k, MEAN))
    a("v_mul_f32 v%d, v%d, v%d" % (S, T, T))
    for k in range(1, 8):
        a("v_fmac_f32 v%d, v%d, v%d" % (S, T + k, T + k))
    reduce9(S, 512, VAR)
    ln_scalars(MEAN, VAR, M, SD)
    a("v_rcp_f32 v%d, v%d" % (SD, SD))
    for k in range(8):
        a("v_sub_f32 v%d, v%d, v%d" % (AC + k, AC + k, M))
    for k in range(4):
        cvt(T + k, AC + 2 * k, AC + 2 * k + 1)
    for k in range(4):
        unpack(AC + 2 * k, T + k)
    for k in range(8):
        a("v_mul_f32 v%d, v%d, v%d" % (AC + k, AC + k, SD))
    for k in range(4):
        cvt(T + k, AC + 2 * k, AC + 2 * k + 1)
    a("buffer_store_dwordx4 %s, v3, s[40:43], s22 offen%s" % (q4(T), ST))
    a("s_branch P_end" if PROF else "s_endpgm")

    a("P_w12:")
    a("v_lshrrev_b32 v5, 3, v1")
    a("v_and_b32 v6, 7, v1")
    a("v_lshlrev_b32 v6, 4, v6")
    a("v_bfe_u32 v7, v1, 2, 2")
    a("v_and_b32 v8, 3, v1")
    a("s_lshl_b32 s21, s3, 12")
    a("s_cmp_ge_u32 s2, %d" % P_W2)
    a("s_cbranch_scc1 P_w2")
    if "now1" in ABL:
        a("s_branch P_end")

    def w12(stride, second):
        for n in range(4):
            a("s_add_u32 m0, s21, %d" % (n * 1024))
            a("buffer_load_dwordx4 v9, s[36:39], s22 offen" + PNT + " lds")
            if n < 3:
                a("s_add_u32 s22, s22, %d" % (8 * stride))

    def w12b(second):
        for tl in range(4):
            a("ds_read_b64_tr_b16 %s, v10 offset:%d" % (q2(16 + tl * 4), tl * 32))
            a("ds_read_b64_tr_b16 %s, v10 offset:%d" % (q2(18 + tl * 4), tl * 32 + second))
        for tl in range(4):
            a("s_waitcnt lgkmcnt(%d)" % (6 - 2 * tl))
            a("s_add_u32 s26, s23, %d" % (tl * 18432))
            a("buffer_store_dwordx4 %s, v2, s[40:43], s26 offen%s" % (q4(16 + tl * 4), ST))

    srd(36, 12, 0, 576 * 4608 * 2)
    a("s_sub_u32 s28, s2, %d" % P_W1)
    a("s_lshr_b32 s20, s28, 1")
    a("s_and_b32 s28, s28, 1")
    a("s_mul_i32 s29, s28, 9")
    a("s_add_u32 s29, s29, s3")
    a("s_mul_i32 s22, s29, %d" % (32 * 9216))
    a("s_lshl_b32 s27, s20, 7")
    a("s_add_u32 s22, s22, s27")
    a("v_mul_u32_u24 v9, 9216, v5")
    a("v_add_u32 v9, v9, v6")
    w12(9216, 512)
    srd(32, 14, 0, 4608 * 2)
    a("v_lshlrev_b32 v5, 1, v1")
    a("buffer_load_ushort v40, v5, s[32:35], s27 offen")
    a("v_lshl_add_u32 v10, v3, 3, v7")
    a("v_lshlrev_b32 v10, 7, v10")
    a("v_lshl_add_u32 v10, v8, 3, v10")
    a("v_add_u32 v10, s21, v10")
    a("s_mul_i32 s23, s20, %d" % (4 * 18432))
    a("s_lshl_b32 s26, s29, 10")
    a("s_add_u32 s23, s23, s26")
    a("s_add_u32 s23, s23, %s" % hex(W1P))
    for k in range(4):
        a("v_mov_b32 v%d, 0x3f803f80" % (12 + k))
    a("s_lshl_b32 s26, s3, 8")
    a("s_add_u32 s26, s26, 36864")
    a("v_lshlrev_b32 v11, 4, v3")
    a("v_add_u32 v11, s26, v11")
    a("s_waitcnt vmcnt(0)")
    w12b(512)
    for tl in range(4):
        a("%s %s, %s, v[12:15], 0" % (MF, q4(48 + tl * 4), q4(16 + tl * 4)))
    for tl in range(4):
        a("ds_write_b128 v11, %s offset:%d" % (q4(48 + tl * 4), tl * 64))
    a("s_waitcnt lgkmcnt(0)")
    a("s_barrier")
    a("s_cmp_lg_u32 s3, 0")
    a("s_cbranch_scc1 P_end")
    a("v_lshlrev_b32 v11, 2, v1")
    for w in range(9):
        a("ds_read_b32 v%d, v11 offset:%d" % (48 + w, 36864 + w * 256))
    a("s_waitcnt lgkmcnt(0)")
    for w in range(1, 9):
        a("v_add_f32 v48, v48, v%d" % (48 + w))
    a("v_sub_f32 v48, 0, v48")
    cvt(60, 48, 48)
    a("v_and_b32 v49, 0xffff0000, v60")
    a("v_sub_f32 v49, v48, v49")
    cvt(49, 49, 49)
    a("v_and_b32 v49, 0xffff, v49")
    a("v_lshl_or_b32 v61, v40, 16, v49")
    a("s_lshl_b32 s27, s20, 10")
    a("s_lshl_b32 s28, s28, 3")
    a("s_add_u32 s27, s27, s28")
    a("s_add_u32 s27, s27, %s" % hex(AUG))
    a("buffer_store_dwordx2 v[60:61], v2, s[40:43], s27 offen%s" % ST)
    a("s_branch P_end" if PROF else "s_endpgm")

    a("P_w2:")
    if "now2" in ABL:
        a("s_cmp_ge_u32 s2, %d" % (P_W2 + 32))
        a("s_cbranch_scc1 P_end")
    srd(36, 16, 0, 576 * 4608 * 2)
    a("s_sub_u32 s20, s2, %d" % P_W2)
    a("s_mul_i32 s22, s20, %d" % (32 * 1152))
    a("s_lshl_b32 s23, s3, 7")
    a("s_add_u32 s22, s22, s23")
    a("v_mul_u32_u24 v9, 1152, v5")
    a("v_add_u32 v9, v9, v6")
    w12(1152, 2048)
    a("v_lshl_add_u32 v10, v3, 2, v7")
    a("v_lshlrev_b32 v10, 7, v10")
    a("v_lshl_add_u32 v10, v8, 3, v10")
    a("v_add_u32 v10, s21, v10")
    a("s_mul_i32 s26, s20, 3641")
    a("s_lshr_b32 s26, s26, 16")
    a("s_mul_i32 s27, s26, 18")
    a("s_sub_u32 s27, s20, s27")
    a("s_mul_i32 s23, s26, %d" % (36 * 18432))
    a("s_mul_i32 s26, s3, %d" % (4 * 18432))
    a("s_add_u32 s23, s23, s26")
    a("s_lshl_b32 s27, s27, 10")
    a("s_add_u32 s23, s23, s27")
    a("s_add_u32 s23, s23, %s" % hex(W2P))
    a("s_waitcnt vmcnt(0)")
    w12b(2048)
    a("s_branch P_end" if PROF else "s_endpgm")

    a("P_misc:")
    for k in range(4):
        a("v_mov_b32 v%d, 0" % (16 + k))
    a("v_lshlrev_b32 v5, 4, v0")
    srd(36, 24, CNT, CNTB)
    for k in range(4):
        a("s_mov_b32 s22, %d" % (k * 9216))
        a("buffer_store_dwordx4 v[16:19], v5, s[36:39], s22 offen%s" % ST)
    a("s_getpc_b64 s[20:21]")
    a("P_pc:")
    a("s_add_u32 s36, s20, main_kernel-P_pc")
    a("s_addc_u32 s37, s21, 0")
    a("s_mov_b32 s38, L_code_end-main_kernel")
    a("s_mov_b32 s39, 0x20000")
    a("s_mov_b32 s22, 0")
    for k in range(7):
        a("buffer_load_dwordx4 %s, v5, s[36:39], s22 offen" % q4(20 + 4 * k))
        a("s_add_u32 s22, s22, 9216")
    a("s_waitcnt vmcnt(0)")
    a("P_end:")
    if PROF:
        a("s_waitcnt vmcnt(0)")
        a("s_memrealtime s[58:59]")
        srd(36, 24, STAMP + (1 << 19), 1 << 19)
        a("s_lshl_b32 s60, s2, 4")
        a("s_add_u32 s60, s60, s3")
        a("s_lshl_b32 s60, s60, 3")
        a("s_waitcnt lgkmcnt(0)")
        a("v_mov_b32 v0, s56")
        a("v_mov_b32 v1, s58")
        a("buffer_store_dwordx2 v[0:1], off, s[36:39], s60")
    a("L_exit:")
    a("s_endpgm")


L_SCR, L_OX, L_Y, L_WA, L_WB = 0, 8192, 20480, 112640, 20480
MAIN_LDS = 163840
uid = [0]


def main_kernel():
    entry("main_kernel")
    a("s_cmp_ge_u32 s2, 256")
    a("s_cbranch_scc1 L_exit2")
    a("s_load_dwordx2 s[24:25], s[0:1], %d" % KA_WS)
    a("s_load_dwordx4 s[28:31], s[0:1], %d" % KA_B2)
    a("s_load_dwordx2 s[32:33], s[0:1], %d" % KA_X)
    a("s_mov_b32 s34, %d" % ACT)
    a("s_mov_b32 s35, 0x20000")
    vm = VM()
    lg = VM("lgkmcnt", 15)
    a("v_lshrrev_b32 v1, 6, v0")
    a("v_readfirstlane_b32 s3, v1")
    a("v_and_b32 v1, 63, v0")
    a("v_lshlrev_b32 v2, 4, v1")
    a("v_lshrrev_b32 v3, 4, v1")
    a("v_and_b32 v4, 15, v1")
    b = MAPB
    spx = 8 // b
    tpx = 32 // spx
    lb = {1: 0, 2: 1, 4: 2, 8: 3}
    a("s_and_b32 s6, s2, 7")
    a("s_lshr_b32 s7, s2, 3")
    a("s_and_b32 s4, s6, %d" % (b - 1))
    a("s_lshl_b32 s4, s4, %d" % lb[spx])
    a("s_and_b32 s8, s7, %d" % (spx - 1))
    a("s_add_u32 s4, s4, s8")
    a("s_lshr_b32 s5, s6, %d" % lb[b])
    a("s_mul_i32 s5, s5, %d" % tpx)
    a("s_lshr_b32 s8, s7, %d" % lb[spx])
    a("s_add_u32 s5, s5, s8")
    a("s_mov_b32 s44, %s" % hex(LB))
    a("s_mov_b32 s45, 0")
    a("s_mov_b32 s46, 8")
    a("s_mov_b32 s27, 1")
    a("s_mov_b32 s97, 1152")
    a("s_mul_i32 s47, s5, %d" % TB)

    KY, KW = 48, 54

    def k1_setup(rot):
        if rot:
            mod_small("s6", "s5", AROT)
            a("s_mul_i32 s6, s6, %d" % (6 // AROT))
        else:
            a("s_mov_b32 s6, 0")
        for G in range(6):
            a("s_mul_i32 s%d, s6, 3072" % (KY + G))
            a("s_add_u32 s%d, s%d, s44" % (KY + G, KY + G))
            a("s_mul_i32 s%d, s6, 12288" % (KW + G))
            if G < 5:
                a("s_add_u32 s6, s6, 1")
                a("s_cmp_eq_u32 s6, 6")
                a("s_cselect_b32 s6, 0, s6")
        a("s_mul_i32 s8, s3, 18432")
        a("s_add_u32 s8, s8, s47")
        a("v_add_u32 v7, s8, v2")
        a("s_min_u32 s9, s3, 2")
        a("s_lshl_b32 s11, s9, 10")
        a("s_add_u32 s8, s47, s11")
        a("s_sub_u32 s8, s8, 18432")
        a("s_cmp_eq_u32 s5, 0")
        a("s_cselect_b32 s8, %s, s8" % hex(OOB))
        a("v_add_u32 v8, s8, v2")
        a("s_add_u32 s11, s11, %d" % L_Y)
        a("s_mul_i32 s10, s3, 18432")
        a("s_add_u32 s10, s10, %d" % (L_Y + 18432))
        a("v_add_u32 v5, %d, v2" % L_Y)
        a("v_add_u32 v6, %d, v2" % (L_Y + 46080))

    def kw_voffs():
        a("s_lshl_b32 s12, s4, 2")
        a("s_add_u32 s12, s12, s3")
        a("s_mul_i32 s12, s12, 73728")
        a("v_add_u32 v9, s12, v2")
        a("v_add_u32 v10, 4096, v9")
        a("v_add_u32 v11, 8192, v9")

    k1_setup(True)
    kw_voffs()
    a("s_waitcnt lgkmcnt(0)")
    srd(40, 24, 0, WS_USED)
    a("s_add_u32 s20, s24, %s" % hex(CNT))
    a("s_addc_u32 s21, s25, 0")
    a("s_lshl_b32 s22, s5, 2")
    a("s_add_u32 s22, s22, s3")
    a("s_lshl_b32 s22, s22, 7")
    if PROF:
        srd(92, 24, STAMP, 1 << 20)
        a("s_lshl_b32 s96, s2, 2")
        a("s_add_u32 s96, s96, s3")
        a("s_lshl_b32 s96, s96, 8")
    rstamp(12)
    stamp(0)

    def arrive(off="s22", ret=True):
        if ret:
            a("s_mov_b32 s16, 1")
            a("s_atomic_add s16, s[20:21], %s glc" % off)
        else:
            a("s_atomic_add s27, s[20:21], %s" % off)

    def poll(target, offs=("s22",), issued=None):
        uid[0] += 1
        u = uid[0]

        def rd():
            for k, o in enumerate(offs):
                a("s_mov_b32 s%d, 0" % (16 + k))
                a("s_atomic_add s%d, s[20:21], %s glc" % (16 + k, o))
        a("s_mov_b32 s18, %d" % SPIN)
        if issued is None:
            rd()
        lg.all()
        if issued == "arrive":
            a("s_add_u32 s16, s16, 1")
        a("H%d_l:" % u)
        if len(offs) > 1:
            a("s_min_u32 s16, s16, s17")
        a("s_cmp_ge_u32 s16, %s" % target)
        a("s_cbranch_scc1 H%d_b" % u)
        a("s_sub_u32 s18, s18, 1")
        a("s_cbranch_scc1 H%d_b" % u)
        rd()
        a("s_waitcnt lgkmcnt(0)")
        a("s_branch H%d_l" % u)
        a("H%d_b:" % u)

    def hop(tag, pre_a=(), pre_b=()):
        for f in pre_a:
            f()
        vm.wait(tag)
        arrive()
        for f in pre_b:
            f()
        poll("s46", issued="arrive")
        a("s_add_u32 s46, s46, 8")

    QA, KA, VA, CA, YF = 16, 32, 52, 72, 92
    MSK, SM = 132, 136

    def wslot(i, t):
        return ((i % 16) * 4 + t) * 4

    def wload1(i, t, sreg=None):
        def f():
            s = sreg or "s%d" % (KW + i // 3)
            vm.op("buffer_load_dwordx4 %s, v%d, s[40:43], %s offen offset:%d" % (q4(wslot(i, t), "a"), 9 + i % 3, s, t * 1024), ("w", i))
        return f

    def ydma1(G, k):
        def f():
            if k < 3:
                a("s_add_u32 m0, s10, %d" % (G * 3072))
                vm.op("buffer_load_dwordx4 v7, s[40:43], s%d offen offset:%d%s lds" % (KY + G, k * 1024, LD), ("y", G))
            else:
                a("s_add_u32 m0, s11, %d" % (G * 3072))
                vm.op("buffer_load_dwordx4 v8, s[40:43], s%d offen%s lds" % (KY + G, LD), ("y", G))
        return f

    def yread1(i, T):
        def f():
            off = (T * 18 + i) * 1024
            base = 5
            if off >= 46080:
                off -= 46080
                base = 6
            a("ds_read_b128 %s, v%d offset:%d" % (q4(YF + (i % 2) * 20 + T * 4), base, off))
        return f

    def wodma(region, n):
        def f():
            a("s_add_u32 m0, s%d, %d" % ((13, 14)[region], (n // 4) * 4096))
            a("s_add_u32 s15, s%d, %d" % ((60, 61)[region], (n // 4) * 4096))
            vm.op("buffer_load_dwordx4 v2, s[40:43], s15 offen offset:%d lds" % ((n % 4) * 1024), "wo")
        return f

    def attn_consts():
        a("v_and_b32 v13, 1, v4")
        a("v_cmp_eq_u32 s[70:71], 1, v13")
        a("v_lshl_add_u32 v14, v3, 2, v13")
        a("v_cmp_ge_u32 s[72:73], v4, v14")
        a("v_add_u32 v14, 2, v14")
        a("v_cmp_ge_u32 s[74:75], v4, v14")
        a("v_mov_b32 v13, 0xffff")
        a("v_mov_b32 v14, 0xffff0000")
        a("v_cndmask_b32 v13, v13, v14, s[70:71]")
        a("v_cndmask_b32 v%d, v13, 0, s[72:73]" % (MSK + 0))
        a("v_cndmask_b32 v%d, v13, 0, s[74:75]" % (MSK + 1))
        a("v_cndmask_b32 v%d, 0, v13, s[72:73]" % (MSK + 2))
        a("v_cndmask_b32 v%d, 0, v13, s[74:75]" % (MSK + 3))
        a("s_cmp_eq_u32 s5, 0")
        a("s_cselect_b32 s14, %s, 0" % f32bits(-1e9 * math.sqrt(18.0)))
        for k in range(4):
            a("v_mov_b32 v%d, s14" % (SM + k))
        a("s_lshl_b32 s14, s3, 11")
        a("v_lshlrev_b32 v141, 9, v3")
        a("v_lshl_add_u32 v141, v4, 1, v141")
        a("v_add_u32 v141, s14, v141")
        a("v_and_b32 v142, 1, v4")
        a("v_mul_u32_u24 v142, 160, v142")
        a("v_lshl_add_u32 v142, v3, 3, v142")
        a("s_add_u32 s14, s14, 512")
        a("v_add_u32 v142, s14, v142")
        a("s_lshr_b32 s14, s3, 1")
        a("s_lshl_b32 s14, s14, 10")
        a("s_and_b32 s15, s3, 1")
        a("s_lshl_b32 s15, s15, 3")
        a("s_add_u32 s14, s14, s15")
        a("s_add_u32 s14, s14, %d" % L_OX)
        a("v_add_u32 v143, s14, v2")
        a("s_lshl_b32 s14, s3, 2")
        a("s_add_u32 s14, s14, %d" % (L_OX + 2048))
        a("v_add_u32 v144, s14, v2")
        a("s_mul_i32 s14, s3, 3072")
        a("s_add_u32 s14, s14, %d" % L_OX)
        a("v_add_u32 v145, s14, v2")
        a("s_mul_i32 s60, s4, %d" % WOS)
        a("s_add_u32 s60, s60, %s" % hex(WOP))
        a("s_mul_i32 s14, s3, 9216")
        a("s_add_u32 s61, s60, s14")
        a("s_add_u32 s61, s61, 46080")
        a("s_mul_i32 s14, s3, 18432")
        a("s_add_u32 s14, s14, %d" % L_Y)
        a("s_mul_i32 s13, s3, 12288")
        a("s_add_u32 s60, s60, s13")
        a("s_add_u32 s13, s13, %d" % L_WA)

    def qkv(pre):
        if not pre:
            for k in range(4):
                ydma1(0, k)()
            for t in range(4):
                wload1(0, t)()
            for k in range(4):
                ydma1(1, k)()
            for i in range(1, APRE):
                for t in range(4):
                    wload1(i, t)()
            if TOUCH:
                a("s_getpc_b64 s[36:37]")
                a("M_pc:")
                a("s_mov_b32 s38, L_code_end-M_pc")
                a("s_mov_b32 s39, 0x20000")
                a("s_lshr_b32 s6, s2, 3")
                a("s_lshl_b32 s6, s6, 2")
                a("s_add_u32 s6, s6, s3")
                a("s_lshl_b32 s6, s6, 9")
                a("v_lshlrev_b32 v249, 3, v1")
                vm.op("buffer_load_dword v250, v249, s[36:39], s6 offen", "t")
            attn_consts()
            ahead_y = 2
        else:
            for i in range(pre):
                vm.ops.append(("w", i))
            for G in range(3):
                for k in range(4):
                    ydma1(G, k)()
            ahead_y = 3
        vm.wait(("y", 0))
        a("s_barrier")
        for T in range(5):
            yread1(0, T)()
        wo_list = ([] if pre else [wodma(0, n) for n in range(12)]) + [wodma(1, n) for n in range(9)]
        for i in range(18):
            if i + 1 < 18 and (i + 1) % 3 == 0:
                vm.wait(("y", (i + 1) // 3))
                a("s_barrier")
            a("s_waitcnt lgkmcnt(0)")
            vm.wait(("w", i))
            mem = []
            if i // 3 + ahead_y < 6:
                mem += [ydma1(i // 3 + ahead_y, k) for k in ((0, 3), (1,), (2,))[i % 3]]
            nxt = i + APRE
            if pre:
                nxt = pre + i - 1 if i >= 1 else None
                if nxt is not None and nxt - 16 >= i:
                    nxt = None
            if nxt is not None and nxt < 18:
                mem += [wload1(nxt, t) for t in range(4)]
            if (i >= 11) if pre else (nxt >= 18):
                take = -(-len(wo_list) // (18 - i))
                assert i >= 11 or len(wo_list) - take >= 9
                mem += wo_list[:take]
                wo_list = wo_list[take:]
            rds = [yread1(i + 1, T) for T in range(5)] if i + 1 < 18 else []
            slots = {}
            for k, f in enumerate(mem):
                slots.setdefault(1 + (k * 18) // len(mem), []).append(f)
            for k, f in enumerate(rds):
                slots.setdefault(2 * k, []).append(f)
            m = 0
            for T in range(5):
                y = q4(YF + (i % 2) * 20 + T * 4)
                for t, base in ((1, KA), (2, VA), (3, CA), (0, QA)):
                    if t == 0 and T == 0:
                        continue
                    d = base + (T - 1 if t == 0 else T) * 4
                    w = q4(wslot(i, t), "a")
                    c = "0" if i == 0 else q4(d)
                    A_, B_ = (y, w) if t == 2 else (w, y)
                    a("%s %s, %s, %s, %s" % (MF, q4(d), A_, B_, c))
                    for f in slots.get(m, []):
                        f()
                    m += 1
        assert not wo_list, len(wo_list)

    qkv(0)
    a("s_branch K1_attn")
    a("K1_second:")
    vm.done = -1
    vm.ops = []
    qkv(PF)
    a("K1_attn:")
    vm.ops = []
    vm.done = -1
    stamp(1)
    vm.ops.append("wo")
    side = []
    XR = 208

    def k2_addr():
        a("s_mul_i32 s62, s3, 18432")
        a("s_add_u32 s62, s62, s47")
        a("s_add_u32 s62, s62, s44")
        a("s_mul_i32 s63, s4, 2304")
        a("s_add_u32 s63, s63, s62")
        a("v_and_b32 v220, 1, v3")
        a("v_lshlrev_b32 v220, 9, v220")
        a("v_lshl_add_u32 v220, v4, 4, v220")
        a("v_lshrrev_b32 v221, 5, v1")
        a("v_lshl_add_u32 v220, v221, 8, v220")
        a("v_mov_b32 v221, %s" % hex(OOB))
        a("v_cmp_eq_u32 vcc, 0, v3")
        a("v_cndmask_b32 v221, v221, v220, vcc")
        a("v_cndmask_b32 v222, 0, -1, vcc")
        a("s_add_u32 s65, s63, %s" % hex(oX1))
        a("s_sub_u32 s64, s63, s44")
        a("s_mul_i32 s6, s4, 144")
        a("s_sub_u32 s7, s62, s44")
        a("s_add_u32 s6, s6, s7")
        a("v_lshrrev_b32 v206, 4, v220")
        a("v_and_b32 v206, 0x30, v206")
        a("v_mad_u32_u24 v206, v4, s97, v206")
        a("s_cmp_eq_u32 s45, 0")
        a("s_cselect_b32 s64, s6, s64")
        a("s_cselect_b32 s6, 64, 1024")
        a("s_cselect_b64 s[8:9], -1, 0")
        a("v_cndmask_b32 v206, v220, v206, s[8:9]")
        a("v_add_u32 v207, s6, v206")
        a("v_add_u32 v223, s6, v207")
        a("v_cndmask_b32 v223, v221, v223, vcc")

    def xload(kk):
        def f():
            vm.op("buffer_load_dwordx4 %s, v%d, s[32:35], s64 offen%s" % (q4(XR + 4 * kk), (206, 207, 223)[kk], LD), "x")
        return f

    k2_addr()
    side += [xload(k) for k in range(3)]
    cnt = [0]

    def v(text):
        a(text)
        cnt[0] += 1
        if cnt[0] % 12 == 0 and side:
            side.pop(0)()

    QO, KO, VP, X0, V2 = 148, 164, 184, 194, 196
    for T in range(5):
        xd = X0 if T == 0 else QO + (T - 1) * 4 + 2
        v("v_cvt_pk_bf16_f32 v%d, v%d, v%d" % (xd, CA + T * 4, CA + T * 4 + 1))
        a("ds_write_b16 v141, v%d offset:%d" % (xd, T * 32))
        a("ds_write_b16_d16_hi v141, v%d offset:%d" % (xd, T * 32 + 160))
    for T in range(5):
        v("v_cvt_pk_bf16_f32 v%d, v%d, v%d" % (KO + T * 4 + 2, CA + T * 4 + 2, CA + T * 4 + 3))
        v("v_cvt_pk_bf16_f32 v%d, v%d, v%d" % (KO + T * 4, KA + T * 4, KA + T * 4 + 1))
        v("v_cvt_pk_bf16_f32 v%d, v%d, v%d" % (KO + T * 4 + 1, KA + T * 4 + 2, KA + T * 4 + 3))
        v("v_mov_b32 v%d, 0" % (KO + T * 4 + 3))
        if T:
            q = QO + (T - 1) * 4
            v("v_cvt_pk_bf16_f32 v%d, v%d, v%d" % (q, QA + (T - 1) * 4, QA + (T - 1) * 4 + 1))
            v("v_cvt_pk_bf16_f32 v%d, v%d, v%d" % (q + 1, QA + (T - 1) * 4 + 2, QA + (T - 1) * 4 + 3))
            v("v_mov_b32 v%d, 0" % (q + 3))
    for T in range(5):
        a("ds_read_b64 %s, v142 offset:%d" % (q2(V2 + 2 * T), T * 32))
    SP = YF
    Ts = range(1, 5)
    for T in Ts:
        q = q4(QO + (T - 1) * 4)
        sp = SP + (T - 1) * 8
        a("%s %s, %s, %s, %s" % (MF, q4(sp), q4(KO + (T - 1) * 4), q, q4(SM) if T == 1 else "0"))
        a("%s %s, %s, %s, 0" % (MF, q4(sp + 4), q4(KO + T * 4), q))
    for T in range(5):
        v("v_cvt_pk_bf16_f32 v%d, v%d, v%d" % (VP + 2 * T, VA + T * 4, VA + T * 4 + 1))
        v("v_cvt_pk_bf16_f32 v%d, v%d, v%d" % (VP + 2 * T + 1, VA + T * 4 + 2, VA + T * 4 + 3))
    a("s_mov_b32 s19, %s" % f32bits((18.0 ** -0.5) * math.log2(math.e)))
    W = lambda T, k: 16 + (T - 1) * 8 + k
    for T in Ts:
        sp = SP + (T - 1) * 8
        v("v_cndmask_b32 v%d, v%d, v%d, s[70:71]" % (W(T, 2), sp + 4, sp + 5))
        v("v_cndmask_b32 v%d, v%d, v%d, s[70:71]" % (W(T, 3), sp + 0, sp + 1))
        v("v_cndmask_b32 v%d, v%d, v%d, s[70:71]" % (W(T, 4), sp + 6, sp + 7))
        v("v_cndmask_b32 v%d, v%d, v%d, s[70:71]" % (W(T, 5), sp + 2, sp + 3))
        v("v_cndmask_b32 v%d, v%d, v%d, s[72:73]" % (W(T, 0), W(T, 3), W(T, 2)))
        v("v_cndmask_b32 v%d, v%d, v%d, s[74:75]" % (W(T, 1), W(T, 5), W(T, 4)))
        v("v_max_f32 v%d, v%d, v%d" % (W(T, 2), W(T, 0), W(T, 1)))
        v("v_mov_b32 v%d, v%d" % (W(T, 3), W(T, 2)))

    def xlane(op):
        for T in Ts:
            v("v_permlane16_swap_b32 v%d, v%d" % (W(T, 2), W(T, 3)))
        for T in Ts:
            v("%s v%d, v%d, v%d" % (op, W(T, 2), W(T, 2), W(T, 3)))
            v("v_mov_b32 v%d, v%d" % (W(T, 3), W(T, 2)))
        for T in Ts:
            v("v_permlane32_swap_b32 v%d, v%d" % (W(T, 2), W(T, 3)))
        for T in Ts:
            v("%s v%d, v%d, v%d" % (op, W(T, 2), W(T, 2), W(T, 3)))

    xlane("v_max_f32")
    for T in Ts:
        v("v_sub_f32 v%d, v%d, v%d" % (W(T, 0), W(T, 0), W(T, 2)))
        v("v_sub_f32 v%d, v%d, v%d" % (W(T, 1), W(T, 1), W(T, 2)))
        v("v_mul_f32 v%d, s19, v%d" % (W(T, 0), W(T, 0)))
        v("v_mul_f32 v%d, s19, v%d" % (W(T, 1), W(T, 1)))
    for T in Ts:
        v("v_exp_f32 v%d, v%d" % (W(T, 0), W(T, 0)))
        v("v_exp_f32 v%d, v%d" % (W(T, 1), W(T, 1)))
    for T in Ts:
        v("v_add_f32 v%d, v%d, v%d" % (W(T, 2), W(T, 0), W(T, 1)))
        v("v_mov_b32 v%d, v%d" % (W(T, 3), W(T, 2)))
    xlane("v_add_f32")
    for T in Ts:
        v("v_rcp_f32 v%d, v%d" % (W(T, 2), W(T, 2)))
    for T in Ts:
        v("v_mul_f32 v%d, v%d, v%d" % (W(T, 0), W(T, 0), W(T, 2)))
        v("v_mul_f32 v%d, v%d, v%d" % (W(T, 1), W(T, 1), W(T, 2)))
        v("v_cvt_pk_bf16_f32 v%d, v%d, v%d" % (W(T, 0), W(T, 0), W(T, 0)))
        v("v_cvt_pk_bf16_f32 v%d, v%d, v%d" % (W(T, 1), W(T, 1), W(T, 1)))
        v("v_and_b32 v%d, v%d, v%d" % (W(T, 4), W(T, 0), MSK + 0))
        v("v_and_b32 v%d, v%d, v%d" % (W(T, 5), W(T, 1), MSK + 1))
        v("v_and_b32 v%d, v%d, v%d" % (W(T, 6), W(T, 0), MSK + 2))
        v("v_and_b32 v%d, v%d, v%d" % (W(T, 7), W(T, 1), MSK + 3))
    while side:
        side.pop(0)()
    a("s_waitcnt lgkmcnt(0)")
    for T in Ts:
        sp = SP + (T - 1) * 8
        p = q4(W(T, 4))
        a("%s %s, %s, %s, 0" % (MF, q4(sp), q4(VP + 2 * (T - 1)), p))
        a("%s %s, %s, %s, 0" % (MF, q4(sp + 4), q4(V2 + 2 * (T - 1)), p))
    a("s_add_u32 s66, s62, %s" % hex(oO))
    a("s_lshl_b32 s67, s4, 11")
    a("s_add_u32 s67, s67, s66")
    a("s_lshl_b32 s68, s4, 8")
    a("s_add_u32 s68, s68, s66")
    a("s_add_u32 s68, s68, 16384")
    for T in Ts:
        sp = SP + (T - 1) * 8
        o = 48 + (T - 1) * 4
        cvt(o, sp, sp + 1)
        cvt(o + 1, sp + 2, sp + 3)
        cvt(o + 2, sp + 4, sp + 5)
        a("ds_write_b64 v143, %s offset:%d" % (q2(o), (T - 1) * 3072))
        a("ds_write_b32 v144, v%d offset:%d" % (o + 2, (T - 1) * 3072))
    a("s_waitcnt lgkmcnt(0)")
    vm.wait("wo")
    a("s_barrier")
    for st in range(3):
        a("ds_read_b128 %s, v145 offset:%d" % (q4(224 + st * 4), st * 1024))
    for st in range(3):
        a("s_waitcnt lgkmcnt(%d)" % (2 - st))
        if st < 2:
            vm.op("buffer_store_dwordx4 %s, v2, s[40:43], s67 offen offset:%d%s" % (q4(224 + st * 4), st * 1024, STF), "st")
        else:
            vm.op("buffer_store_dwordx4 %s, v221, s[40:43], s68 offen%s" % (q4(232), STF), "st")
    stamp(2)

    WS = 48
    ACC, FIN, AUGW, TMP, KC, AB = 144, 160, 176, 180, 192, 204
    PK = 204

    def ring(q):
        return 16 + (q % NR) * 4

    def m_voffs():
        a("s_mul_i32 s9, s4, 36")
        a("s_add_u32 s9, s9, s3")
        a("s_mul_i32 s11, s9, 18432")
        a("s_add_u32 s11, s11, %s" % hex(W1P))
        a("v_add_u32 v7, s11, v2")
        for k in range(1, 5):
            a("v_add_u32 v%d, %d, v7" % (7 + k, 4096 * k))
        a("s_lshl_b32 s11, s9, 8")
        a("s_add_u32 s11, s11, %s" % hex(AUG))
        a("v_lshl_add_u32 v12, v4, 4, s11")
        for n in range(9):
            a("s_mov_b32 s%d, %d" % (WS + n, n * 4 * 18432))

    W2T, STT = 76, 57
    sst = lambda n: (57 + n) if n < 3 else (85 + n - 3)

    def mload(q):
        def f():
            n, s = divmod(q, 18)
            sr = WS + n if n < 9 else W2T + n - 9
            vm.op("buffer_load_dwordx4 %s, v%d, s[40:43], s%d offen offset:%d" % (q4(ring(q)), 7 + s // 4, sr, (s % 4) * 1024), ("m", q))
        return f

    def aload(n):
        vm.op("buffer_load_dwordx4 %s, v12, s[40:43], s%d offen" % (q4(AUGW), 91), ("aug", n))

    def kslot(ks, tl):
        return ((ks % 12) * 5 + tl) * 4

    def kread(ks, tl):
        def f():
            base, off = (13, ks * 4608) if ks < 10 else (14, ((ks - 10) >> 1) * 18432 + ((ks - 10) & 1) * 4608)
            if tl == 4:
                base += 2
            lg.op("ds_read_b128 %s, v%d offset:%d" % (q4(kslot(ks, tl), "a"), base if base != 16 else 6, off + tl * 1024), ("k", ks))
        return f

    def k2_pre():
        a("v_add_u32 v13, %d, v2" % L_WA)
        a("v_add_u32 v14, %d, v2" % L_WB)
        a("v_and_b32 v15, 7, v4")
        a("v_lshlrev_b32 v15, 4, v15")
        a("v_lshl_add_u32 v15, v3, 7, v15")
        a("v_add_u32 v6, %d, v15" % L_WB)
        a("v_add_u32 v15, %d, v15" % L_WA)
        for ks in range(K2PRE):
            for tl in range(5):
                kread(ks, tl)()

    XU = 224
    def x_unpack():
        for k in range(12):
            unpack(XU + 2 * k, XR + k)

    m_voffs()
    hop("st", pre_a=[mload(q) for q in range(8)],
        pre_b=[k2_pre] + [mload(q) for q in range(8, 18)] + [x_unpack])
    stamp(3)

    OFR, KAC = 88, 160
    a("v_add_u32 v5, 4096, v2")
    rest = [kread(ks, tl) for ks in range(K2PRE, 12) for tl in range(5)]
    for ks in range(18):
        if ks % 8 == 0:
            a("s_add_u32 s15, s66, %d" % (ks * 1024))
        vm.op("buffer_load_dwordx4 %s, v%d, s[40:43], s15 offen offset:%d%s" % (q4(OFR + ks * 4), (2, 5)[(ks % 8) // 4], (ks % 4) * 1024, LD), ("o", ks))
        for f in rest[:3]:
            f()
        rest = rest[3:]
    assert not rest
    for ks in range(18):
        vm.wait(("o", ks))
        lg.wait(("k", ks))
        for tl in range(5):
            a("%s %s, %s, %s, %s" % (MF, q4(KAC + tl * 4), q4(kslot(ks, tl), "a"), q4(OFR + ks * 4), "0" if ks == 0 else q4(KAC + tl * 4)))
            if ks < 6:
                kread(ks + 12, tl)()
    a("s_barrier")
    TP, TU = 180, 88
    for tl in range(5):
        cvt(TP + 2 * tl, KAC + 4 * tl, KAC + 4 * tl + 1)
        cvt(TP + 2 * tl + 1, KAC + 4 * tl + 2, KAC + 4 * tl + 3)
    for kk in range(3):
        a("v_permlane16_swap_b32 v%d, v%d" % (TP + 4 * kk, TP + 4 * kk + 2))
        a("v_permlane16_swap_b32 v%d, v%d" % (TP + 4 * kk + 1, TP + 4 * kk + 3))
    for k in range(8, 12):
        a("v_and_b32 v%d, v%d, v222" % (TP + k, TP + k))
    for kk in range(3):
        for k in range(4 * kk, 4 * kk + 4):
            unpack(TU + 2 * k, TP + k)
        for k in range(4 * kk, 4 * kk + 4):
            a("v_pk_add_f32 %s, %s, %s" % (q2(TU + 2 * k), q2(TU + 2 * k), q2(XU + 2 * k)))
        for k in range(4 * kk, 4 * kk + 4):
            cvt(XR + k, TU + 2 * k, TU + 2 * k + 1)
        vm.op("buffer_store_dwordx4 %s, v%d, s[40:43], s65 offen offset:%d%s" % (q4(XR + 4 * kk), 220 if kk < 2 else 221, kk * 1024, STF), "st")
    for k in range(12):
        unpack(TU + 2 * k, XR + k)
    S0 = 112
    a("v_pk_add_f32 %s, %s, %s" % (q2(S0), q2(TU), q2(TU + 2)))
    a("v_pk_add_f32 %s, %s, %s" % (q2(S0 + 2), q2(TU + 4), q2(TU + 6)))
    for k in range(4, 12, 2):
        a("v_pk_add_f32 %s, %s, %s" % (q2(S0), q2(S0), q2(TU + 2 * k)))
        a("v_pk_add_f32 %s, %s, %s" % (q2(S0 + 2), q2(S0 + 2), q2(TU + 2 * k + 2)))
    a("v_pk_add_f32 %s, %s, %s" % (q2(S0), q2(S0), q2(S0 + 2)))
    a("v_add_f32 v%d, v%d, v%d" % (S0, S0, S0 + 1))
    xsum(S0, S0 + 1)
    a("v_mul_f32 v%d, %s, v%d" % (S0 + 4, f32bits(1.0 / 72.0), S0))
    a("v_sub_f32 v%d, 0, v%d" % (S0 + 6, S0 + 4))
    a("v_mov_b32 v%d, v%d" % (S0 + 7, S0 + 6))
    a("v_and_b32 v%d, v%d, v222" % (S0 + 8, S0 + 6))
    a("v_mov_b32 v%d, v%d" % (S0 + 9, S0 + 8))
    for k in range(12):
        a("v_pk_add_f32 %s, %s, %s" % (q2(TU + 2 * k), q2(TU + 2 * k), q2(S0 + 6 if k < 8 else S0 + 8)))
    a("v_pk_mul_f32 %s, %s, %s" % (q2(S0), q2(TU), q2(TU)))
    a("v_pk_mul_f32 %s, %s, %s" % (q2(S0 + 2), q2(TU + 2), q2(TU + 2)))
    for k in range(2, 12):
        r = S0 + 2 * (k % 2)
        a("v_pk_fma_f32 %s, %s, %s, %s" % (q2(r), q2(TU + 2 * k), q2(TU + 2 * k), q2(r)))
    a("v_pk_add_f32 %s, %s, %s" % (q2(S0), q2(S0), q2(S0 + 2)))
    a("v_add_f32 v%d, v%d, v%d" % (S0 + 5, S0, S0 + 1))
    xsum(S0 + 5, S0 + 1)
    a("s_lshl_b32 s15, s5, 12")
    a("s_add_u32 s69, s15, s44")
    a("s_add_u32 s69, s69, %s" % hex(oST))
    a("s_lshl_b32 s15, s4, 9")
    a("s_lshl_b32 s19, s3, 7")
    a("s_add_u32 s15, s15, s19")
    a("s_add_u32 s15, s15, s69")
    a("v_lshrrev_b32 v%d, 1, v221" % (S0 + 1))
    vm.op("buffer_store_dwordx2 %s, v%d, s[40:43], s15 offen%s" % (q2(S0 + 4), S0 + 1, STF), "st")
    stamp(4)

    def m_setup():
        mod_small("s6", "s5", MROT)
        a("s_mul_i32 s6, s6, %d" % (NROT // MROT))
        a("s_mul_i32 s10, s3, %d" % (8 * 18432))
        a("s_add_u32 s10, s10, %s" % hex(W2P - W1P))
        a("s_lshl_b32 s11, s5, 3")
        a("s_add_u32 s11, s11, s4")
        a("s_mul_i32 s11, s11, %d" % TB)
        if PSHARE:
            a("s_add_u32 s11, s11, %s" % hex(PARTB))
        else:
            a("s_add_u32 s11, s11, s44")
            a("s_add_u32 s11, s11, %s" % hex(oPART))
        a("s_mul_i32 s14, s3, 4608")
        a("s_add_u32 s11, s11, s14")
        for n in range(9):
            a("s_mul_i32 s%d, s6, 18432" % (W2T + n))
            a("s_add_u32 s%d, s%d, s10" % (W2T + n, W2T + n))
            a("s_lshl_b32 s%d, s6, 9" % sst(n))
            a("s_add_u32 s%d, s%d, s11" % (sst(n), sst(n)))
            if n < NROT - 1:
                a("s_add_u32 s6, s6, 1")
                a("s_cmp_eq_u32 s6, %d" % NROT)
                a("s_cselect_b32 s6, 0, s6")
            else:
                a("s_mov_b32 s6, %d" % (n + 1))
        a("v_add_u32 v13, 36864, v2")
        a("v_add_u32 v14, %d, v2" % TB)
        a("v_add_u32 v15, %d, v2" % (TB + 36864))
        a("v_and_b32 v5, 1, v3")
        a("v_mul_u32_u24 v5, 18432, v5")
        a("v_lshl_add_u32 v5, v4, 4, v5")
        a("v_lshrrev_b32 v6, 5, v1")
        a("v_lshl_add_u32 v5, v6, 8, v5")
        a("v_add_u32 v6, 36864, v5")
        a("s_lshr_b32 s14, s3, 1")
        a("s_lshl_b32 s14, s14, 10")
        a("s_and_b32 s15, s3, 1")
        a("s_lshl_b32 s15, s15, 3")
        a("s_add_u32 s14, s14, s15")
        a("v_add_u32 v222, s14, v14")
        a("v_add_u32 v223, s14, v15")
        a("v_lshlrev_b32 v220, 3, v1")
        a("s_mul_i32 s8, s3, 18432")
        a("s_add_u32 s62, s62, %s" % hex(oX1))
        a("s_mov_b32 s91, 0")

    hop("st", pre_a=[mload(q) for q in range(26, 32)],
        pre_b=[m_setup, lambda: aload(0)] + [mload(q) for q in range(18, 26)])
    stamp(5)

    def fr(T, s):
        k = s * 4 + T
        return q4(k * 4, "a") if k < 64 else q4(224 + (k - 64) * 4)

    for s in range(18):
        if s % 3 == 0:
            a("s_add_u32 m0, s8, %d" % (s * 1024))
            a("s_add_u32 s11, s62, %d" % (s * 1024))
        vm.op("buffer_load_dwordx4 v2, s[40:43], s11 offen offset:%d%s lds" % ((s % 3) * 1024, LD), ("y", XST[s]))

    c0 = -2.0 * math.sqrt(2.0 / math.pi) * math.log2(math.e)

    def stat_ops():
        ops = []
        e = lambda t, c=4: ops.append((t, c))
        m = lambda j: FIN + 2 * j
        t0 = TMP
        MEAN, VAR, M1, S1, M2, S2, RS = t0, t0 + 1, t0 + 2, t0 + 3, t0 + 4, t0 + 5, t0 + 6
        ops.append(("WAIT", 0))
        e("v_add_f32 v%d, v%d, v%d" % (MEAN, m(0), m(1)))
        e("v_add_f32 v%d, v%d, v%d" % (VAR, m(0) + 1, m(1) + 1))
        for j in range(2, 8):
            e("v_add_f32 v%d, v%d, v%d" % (MEAN, MEAN, m(j)))
            e("v_add_f32 v%d, v%d, v%d" % (VAR, VAR, m(j) + 1))
        e("v_mul_f32 v%d, %s, v%d" % (MEAN, f32bits(0.125), MEAN))
        e("v_mul_f32 v%d, %s, v%d" % (VAR, f32bits(1.0 / 72.0), VAR))
        for j in range(8):
            e("v_sub_f32 v%d, v%d, v%d" % (m(j), m(j), MEAN))
        for j in range(8):
            e("v_fmac_f32 v%d, v%d, v%d" % (VAR, m(j), m(j)))
        e("v_mul_f32 v%d, %s, v%d" % (VAR, f32bits(0.125), VAR))
        ln_scalars(MEAN, VAR, M1, S1, e)
        e("v_rcp_f32 v%d, v%d" % (RS, S1), 8)
        e("v_sub_f32 v%d, v%d, v%d" % (MEAN, MEAN, M1))
        e("v_mul_f32 v%d, v%d, v%d" % (MEAN, MEAN, RS))
        e("v_mul_f32 v%d, v%d, v%d" % (VAR, VAR, RS))
        e("v_mul_f32 v%d, v%d, v%d" % (VAR, VAR, RS))
        ln_scalars(MEAN, VAR, M2, S2, e)
        MU, R = M1, S1
        e("v_fmac_f32 v%d, v%d, v%d" % (MU, M2, S1))
        e("v_mul_f32 v%d, v%d, v%d" % (R, S1, S2))
        D0, D1, D2, H = t0 + 7, t0 + 8, t0 + 9, t0 + 10
        e("v_cvt_pk_bf16_f32 v%d, v%d, v%d" % (D1, MU, R))
        e("v_lshlrev_b32 v%d, 16, v%d" % (H, D1))
        e("v_sub_f32 v%d, v%d, v%d" % (H, MU, H))
        e("v_cvt_pk_bf16_f32 v%d, v%d, v%d" % (D0, MU, H))
        e("v_and_b32 v%d, 0xffff0000, v%d" % (H, D1))
        e("v_sub_f32 v%d, v%d, v%d" % (H, R, H))
        e("v_cvt_pk_bf16_f32 v%d, v%d, v%d" % (D2, MU, H))
        for T in range(4):
            e("v_cmp_eq_u32 vcc, %d, v3" % T)
            for k, d in enumerate((D0, D1, D0, D2)):
                e("v_cndmask_b32 v%d, 0, v%d, vcc" % (AB + 4 * T + k, d))
        r0, r1, r2, r3 = KC + 8, KC + 9, KC + 10, KC + 11
        e("v_mov_b32 v%d, v%d" % (r0, R))
        e("v_mov_b32 v%d, v%d" % (r2, R))
        e("v_permlane32_swap_b32 v%d, v%d" % (r0, r2))
        e("v_mov_b32 v%d, v%d" % (r1, r0))
        e("v_mov_b32 v%d, v%d" % (r3, r2))
        e("v_permlane16_swap_b32 v%d, v%d" % (r0, r1))
        e("v_permlane16_swap_b32 v%d, v%d" % (r2, r3))
        for T in range(4):
            e("v_rcp_f32 v%d, v%d" % (KC + T, KC + 8 + T), 8)
        for T in range(4):
            e("v_mul_f32 v%d, v%d, v%d" % (KC + 4 + T, KC + T, KC + T))
            e("v_mul_f32 v%d, %s, v%d" % (KC + T, f32bits(c0), KC + T))
            e("v_mul_f32 v%d, v%d, v%d" % (KC + 4 + T, KC + 4 + T, KC + T))
            e("v_mul_f32 v%d, %s, v%d" % (KC + 4 + T, f32bits(0.044715), KC + 4 + T))
        return ops

    def gelu_ops(tl):
        ops = []
        for T in range(4):
            x = [FIN + 4 * T + r for r in range(4)]
            t = [TMP + (T % 2) * 6 + r for r in range(4)]
            pk = TMP + (T % 2) * 6 + 4
            if "nogelu" in ABL:
                ops.append(("v_cvt_pk_bf16_f32 v%d, v%d, v%d" % (pk, x[0], x[1]), 4))
                ops.append(("v_cvt_pk_bf16_f32 v%d, v%d, v%d" % (pk + 1, x[2], x[3]), 4))
                ops.append(("ds_write_b64 v%d, %s offset:%d" % ((222, 223)[T // 2], q2(pk), (T % 2) * 18432 + tl * 2048), 4))
                continue
            for r in range(4):
                ops.append(("v_mul_f32 v%d, v%d, v%d" % (t[r], x[r], x[r]), 4))
            for r in range(4):
                ops.append(("v_fma_f32 v%d, v%d, v%d, v%d" % (t[r], t[r], KC + 4 + T, KC + T), 4))
            for r in range(4):
                ops.append(("v_mul_f32 v%d, v%d, v%d" % (t[r], t[r], x[r]), 4))
            for r in range(4):
                ops.append(("v_exp_f32 v%d, v%d" % (t[r], t[r]), 8))
            for r in range(4):
                ops.append(("v_fma_f32 v%d, v%d, v%d, v%d" % (t[r], t[r], KC + 8 + T, KC + 8 + T), 4))
            for r in range(4):
                ops.append(("v_rcp_f32 v%d, v%d" % (t[r], t[r]), 8))
            for r in range(4):
                ops.append(("v_mul_f32 v%d, v%d, v%d" % (t[r], t[r], x[r]), 4))
            ops.append(("v_cvt_pk_bf16_f32 v%d, v%d, v%d" % (pk, t[0], t[1]), 4))
            ops.append(("v_cvt_pk_bf16_f32 v%d, v%d, v%d" % (pk + 1, t[2], t[3]), 4))
            ops.append(("ds_write_b64 v%d, %s offset:%d" % ((222, 223)[T // 2], q2(pk), (T % 2) * 18432 + tl * 2048), 4))
        return ops

    def out_ops(n2):
        ops = []
        for T in range(4):
            ops.append(("v_cvt_pk_bf16_f32 v%d, v%d, v%d" % (PK + 2 * T, FIN + 4 * T, FIN + 4 * T + 1), 4))
            ops.append(("v_cvt_pk_bf16_f32 v%d, v%d, v%d" % (PK + 2 * T + 1, FIN + 4 * T + 2, FIN + 4 * T + 3), 4))
            if T % 2 == 1:
                ops.append(("v_permlane16_swap_b32 v%d, v%d" % (PK + 2 * T - 2, PK + 2 * T), 4))
                ops.append(("v_permlane16_swap_b32 v%d, v%d" % (PK + 2 * T - 1, PK + 2 * T + 1), 4))
                ops.append(("buffer_store_dwordx4 %s, v%d, s[40:43], s%d offen%s" % (q4(PK + 2 * T - 2), (5, 6)[T // 2], sst(n2), STF), 4))
        return ops

    cur = [0]

    def emit_fill(op):
        if op == "WAIT":
            vm.wait("stat")
        elif op.startswith("ds_"):
            lg.op(op, "hw")
        elif op.startswith("buffer_store"):
            vm.op(op, "st")
            cur[0] += 1
            if cur[0] == 2 * NE1:
                vm.ops[-1] = "st5"
        elif op.startswith("PL"):
            pload(int(op[2:]))
        else:
            if E("E64", 0) and op.split()[0] in ("v_mul_f32", "v_exp_f32", "v_rcp_f32") and "0x" not in op:
                op = op.replace("_f32 ", "_f32_e64 ", 1)
            a(op)

    def act1(T, s, second):
        off = ((T % 2) * 18 + s) * 1024
        base = ((2, 13), (14, 15))[second][T // 2]
        lg.op("ds_read_b128 %s, v%d offset:%d" % (fr(T, s), base, off), ("act", second, s))

    DT, XQ, BQ, SEL, XP = 88, 108, 128, 148, 156
    PR = lambda n: 32 + 4 * n if n < 14 else 16 + 4 * (n - 14)
    order = [(k, st, hf) for k in range(5) for st in range(2) for hf in range(2) if not (k == 4 and st == 1)]

    def r_addr_ops():
        ops = []
        e = lambda t: ops.append((t, 4))
        e("s_lshr_b32 s6, s4, 1")
        e("s_mul_i32 s6, s6, 18432")
        e("s_and_b32 s7, s4, 1")
        e("s_lshl_b32 s7, s7, 7")
        e("s_add_u32 s6, s6, s7")
        e("s_mul_i32 s7, s3, 4608")
        e("s_add_u32 s6, s6, s7")
        e("s_add_u32 s6, s6, s44")
        e("s_lshl_b32 s7, s47, 3")
        e("s_add_u32 s48, s6, s7")
        if PSHARE:
            e("s_sub_u32 s48, s48, s44")
            e("s_add_u32 s48, s48, %s" % hex(PARTB))
        else:
            e("s_add_u32 s48, s48, %s" % hex(oPART))
        e("s_add_u32 s49, s48, %d" % (4 * TB))
        e("s_add_u32 s50, s48, 4096")
        e("s_add_u32 s51, s49, 4096")
        e("s_add_u32 s6, s6, s47")
        e("s_add_u32 s52, s6, %s" % hex(oX1))
        e("s_add_u32 s53, s52, 4096")
        e("s_add_u32 s54, s6, %s" % hex(LS + oXA))
        e("s_add_u32 s55, s6, %s" % hex(LS + oY))
        e("v_and_b32 v176, 7, v1")
        e("v_bfe_u32 v177, v1, 3, 1")
        e("v_lshlrev_b32 v178, 4, v176")
        e("v_lshl_add_u32 v178, v177, 8, v178")
        e("v_mul_u32_u24 v179, %d, v3" % TB)
        e("v_add_u32 v179, v179, v178")
        e("v_and_b32 v180, 1, v3")
        e("v_lshrrev_b32 v181, 1, v3")
        e("v_lshl_add_u32 v182, v181, 9, v178")
        e("v_lshl_add_u32 v183, v180, 10, v182")
        e("v_lshl_add_u32 v182, v180, 3, v182")
        e("v_lshlrev_b32 v184, 4, v177")
        e("v_lshl_add_u32 v184, v181, 5, v184")
        e("v_mul_u32_u24 v185, 1152, v176")
        e("v_add_u32 v185, v185, v184")
        e("v_lshl_add_u32 v185, v180, 6, v185")
        e("v_lshl_add_u32 v184, v180, 3, v184")
        e("v_mov_b32 v188, %s" % hex(OOB))
        e("v_cmp_eq_u32 vcc, 0, v3")
        e("v_add_u32 v186, 4096, v183")
        e("v_cndmask_b32 v186, v188, v186, vcc")
        e("v_cndmask_b32 v187, v188, v185, vcc")
        e("v_cmp_gt_u32 vcc, 2, v3")
        e("v_cndmask_b32 v188, 0, -1, vcc")
        e("s_lshl_b32 s66, s45, 31")
        e("s_add_u32 s60, s60, s66")
        for G in range(1, 6):
            e("s_add_u32 s%d, s66, %d" % (66 + G, G * 12288))
        return ops

    def r_setup():
        srd(36, 28, 0, 1152)
        a("s_mul_i32 s56, s3, 288")
        for k in range(5):
            vm.op("buffer_load_dwordx2 %s, v182, s[40:43], s%d offen offset:%d%s" % (q2(XP + 2 * k), 52 if k < 4 else 53, (k % 4) * 1024, LD), "rx")
            vm.op("buffer_load_dwordx2 %s, v184, s[36:39], s56 offen offset:%d" % (q2(XP + 10 + 2 * k), k * 64), "rx")
        a("v_and_b32 v189, 1, v4")
        a("v_lshlrev_b32 v189, 4, v189")
        a("v_mov_b32 v190, 0x3f80")
        a("v_lshlrev_b32 v189, v189, v190")
        a("v_lshrrev_b32 v190, 1, v4")
        for k in range(8):
            a("v_cmp_eq_u32 vcc, %d, v190" % k)
            a("v_cndmask_b32 v%d, 0, v189, vcc" % (SEL + k))
        a("v_mul_u32_u24 v190, 16, v176")
        a("s_lshl_b32 s7, s3, 2")
        a("v_add_u32 v191, s7, v190")


    def pload(n):
        k, st, hf = order[n]
        vm.op("buffer_load_dwordx4 %s, v179, s[40:43], s%d offen offset:%d%s" % (q4(PR(n)), 48 + hf + (2 if k == 4 else 0), ((4 * k + 2 * st) * 256) % 4096, LD), ("p", n))

    kpf = [wload1(i, t, "s%d" % (66 + i // 3)) for i in range(PF) for t in range(4)]
    PFT = E("PFT", 9)
    NQ = 18 * 18
    AHEAD = 3
    for n in range(18):
        gemm = 1 if n < 9 else 2
        npos = 19 if gemm == 1 else 18
        if n == 0:
            fill, g0, g1 = stat_ops(), 30, 70
        elif n <= 9:
            fill, g0, g1 = gelu_ops(n - 1), E("GG0", 0), (E("GG1", 74) if n < 9 else 50)
        elif n == 15:
            fill, g0, g1 = out_ops(n - 10) + r_addr_ops(), 8, 68
        else:
            fill, g0, g1 = out_ops(n - 10), 8, 24
        rd = n in (0, 9)
        if n == 0:
            vm.wait(("y", 0))
            a("s_barrier")
            for j in range(8):
                vm.op("buffer_load_dwordx2 %s, v220, s[40:43], s69 offen offset:%d%s" % (q2(FIN + 2 * j), j * 512, LD), "stat")
        if n == 16 and NE1:
            poll("s46", issued="poll")
            a("s_add_u32 s46, s46, 8")
        if n == 17:
            vm.wait("st")
            arrive(ret=False)
        if n == 1:
            stamp(6)
            if E("ALN", 0):
                a(".p2align 3")
                if E("ALN", 0) == 2:
                    a("s_nop 0")
        if n == 9:
            stamp(7)
            lg.wait("hw")
            a("s_barrier")
        if n == 10:
            stamp(8)
        if rd:
            for s in range(AHEAD):
                for T in range(4):
                    act1(T, s, n == 9)
        total = sum(c for _, c in fill)
        fi = spent = m = 0
        for s in range(npos):
            q = n * 18 + s
            if rd and s < 18:
                sa = s + AHEAD
                if sa < 18:
                    if n == 0 and XST[sa] != XST[sa - 1]:
                        vm.wait(("y", XST[sa]))
                        a("s_barrier")
                    if n == 9 and sa == 16:
                        assert fi == len(fill)
                        lg.wait("hw")
                        a("s_barrier")
                lg.wait(("act", n == 9, s))
            if NE1 and n == 10 + NE1 and s == 4:
                vm.wait("st5")
                arrive(ret=False)
            if NE1 and n == 15 and s == 10:
                a("s_mov_b32 s16, 0")
                a("s_atomic_add s16, s[20:21], s22 glc")
            if n == 16 and 7 <= s < 7 + 2 * NE1:
                pload(s - 7)
            if s == 18:
                assert fi == len(fill) or (n > 0 and fi > 3 * len(fill) // 4)
                vm.wait(("aug", n))
            elif s % WSTEP == 0:
                n0 = len(a.ins)
                for k in range(WSTEP):
                    vm.wait(("m", q + WSTEP - 1 - k))
                if E("E64", 0) and (len(a.ins) - n0) % 2:
                    a("s_nop 0")
            for T in range(4):
                last = s == npos - 1
                d = (FIN if last else ACC) + 4 * T
                c = "0" if s == 0 else q4(ACC + 4 * T)
                if s == 18:
                    a("%s %s, %s, %s, %s" % (MF, q4(d), q4(AUGW), q4(AB + 4 * T), c))
                else:
                    a("%s %s, %s, %s, %s" % (MF, q4(d), q4(ring(q)), fr(T, s), c))
                if rd and s + AHEAD < 18:
                    act1(T, s + AHEAD, n == 9)
                if T == 3:
                    if s < 18 and q + NR < NQ:
                        if "noload" in ABL:
                            vm.ops.append(("m", q + NR))
                        else:
                            mload(q + NR)()
                    if n == 16 and 4 <= s < 16:
                        wodma(0, s - 4)()
                    if n == 16 and s == 16:
                        kw_voffs()
                    if n == 17:
                        for k in range(s * PFT // 18, (s + 1) * PFT // 18):
                            assert k // 4 <= s
                            kpf[k]()
                    if s == 18 and n < 8:
                        a("s_add_u32 s91, s91, 1024")
                        aload(n + 1)
                if fill and g0 <= m <= g1:
                    budget = total * (m - g0 + 1) / (g1 - g0 + 1)
                    while fi < len(fill) and spent + fill[fi][1] / 2 <= budget:
                        emit_fill(fill[fi][0])
                        spent += fill[fi][1]
                        fi += 1
                m += 1
        assert fi == len(fill), (n, fi, len(fill))
    for op, _ in out_ops(8):
        emit_fill(op)
    stamp(9)

    def r_unpack():
        vm.wait("rx")
        for k in range(8, 10):
            a("v_and_b32 v%d, v%d, v188" % (XP + k, XP + k))
            a("v_and_b32 v%d, v%d, v188" % (XP + 10 + k, XP + 10 + k))
        for k in range(10):
            unpack(XQ + 2 * k, XP + k)
            unpack(BQ + 2 * k, XP + 10 + k)


    def pmfma(n):
        k, st, hf = order[n]
        vm.wait(("p", n))
        a("%s %s, %s, %s, %s" % (MF, q4(DT + 4 * k), q4(SEL + 4 * st), q4(PR(n)), q4(BQ + 4 * k) if (st == 0 and hf == 0) else q4(DT + 4 * k)))

    def early():
        a("s_mov_b32 s16, 0")
        a("s_atomic_add s16, s[20:21], s22 glc")
        r_setup()
        poll("s46", issued="poll")
        a("s_add_u32 s46, s46, 8")
        for n in range(2 * NE1, 2 * NE1 + 6):
            pload(n)

    def early2():
        for n in range(2 * NE1 + 6, 14):
            pload(n)
        r_unpack()
        for n in range(2 * NE1):
            pmfma(n)

    kpf = kpf[PFT:]
    n2 = E("PFB", 0)
    hop("st", pre_a=[early], pre_b=[early2] + kpf[:n2])
    kpf = kpf[n2:]
    stamp(10)
    for n in range(14, 18):
        pload(n)
    for n in range(2 * NE1, 18):
        pmfma(n)
    n4 = E("PFD", 0)
    for f in kpf[:n4]:
        f()
    kpf = kpf[n4:]
    TK = 192
    for k in range(10):
        cvt(TK + k, DT + 2 * k, DT + 2 * k + 1)
    for k in range(10):
        unpack(DT + 2 * k, TK + k)
    for k in range(10):
        a("v_pk_add_f32 %s, %s, %s" % (q2(DT + 2 * k), q2(DT + 2 * k), q2(XQ + 2 * k)))
    for k in range(10):
        cvt(TK + k, DT + 2 * k, DT + 2 * k + 1)
    for k in range(10):
        unpack(DT + 2 * k, TK + k)
    for kk in range(3):
        a("v_permlane16_swap_b32 v%d, v%d" % (TK + 4 * kk, TK + 4 * kk + 2))
        a("v_permlane16_swap_b32 v%d, v%d" % (TK + 4 * kk + 1, TK + 4 * kk + 3))
    a("s_cmp_eq_u32 s45, 0")
    a("s_cbranch_scc1 R_mid")
    srd(36, 30, 0, ACT)
    a("s_lshl_b32 s6, s5, 3")
    a("s_add_u32 s6, s6, s4")
    a("s_mul_i32 s6, s6, %d" % (8 * 1152))
    a("s_add_u32 s6, s6, s56")
    for kk in range(3):
        a("buffer_store_dwordx4 %s, v%d, s[36:39], s6 offen offset:%d" % (q4(TK + 4 * kk), 185 if kk < 2 else 187, kk * 128))
    stamp(11)
    rstamp(12)
    if os.environ.get("PDBG"):
        a("s_or_b32 s6, s2, s3")
        a("s_cmp_lg_u32 s6, 0")
        a("s_cbranch_scc1 L_exit2")
        a("s_load_dwordx2 s[6:7], s[0:1], %d" % KA_DBG)
        a("s_waitcnt vmcnt(0) lgkmcnt(0)")
        srd(36, 6, 0, 256)
        a("v_lshlrev_b32 v5, 2, v1")
        a("v_mov_b32 v6, %d" % (1 << 19))
        a("buffer_load_dwordx2 v[8:9], v6, s[92:95], 0 offen sc1")
        a("v_mov_b32 v6, %d" % ((1 << 19) + (P_MISC - 1) * 128))
        a("buffer_load_dwordx2 v[10:11], v6, s[92:95], 0 offen sc1")
        a("buffer_load_dword v12, v5, s[92:95], 0 offen offset:64 sc1")
        a("buffer_load_dword v13, off, s[92:95], 0 offset:%d sc1" % (128 + 64 + 44))
        a("s_waitcnt vmcnt(0)")
        a("v_sub_u32 v12, v12, v8")
        a("v_sub_u32 v13, v13, v8")
        a("v_sub_u32 v9, v9, v8")
        a("v_sub_u32 v11, v11, v8")
        a("v_cmp_gt_u32 vcc, 12, v1")
        a("v_mov_b32 v6, %s" % hex(OOB))
        a("v_cndmask_b32 v5, v6, v5, vcc")
        a("buffer_store_dword v12, v5, s[36:39], 0 offen")
        a("buffer_store_dword v13, off, s[36:39], 0 offset:48")
        a("buffer_store_dword v9, off, s[36:39], 0 offset:52")
        a("buffer_store_dword v11, off, s[36:39], 0 offset:56")
    a("L_exit2:")
    a("s_endpgm")
    a("R_mid:")
    for kk in range(3):
        vm.op("buffer_store_dwordx4 %s, v%d, s[40:43], s54 offen offset:%d%s" % (q4(TK + 4 * kk), 183 if kk < 2 else 186, (kk % 2) * 2048, ST), "st")
    S0 = XQ

    def reduce4(s, ldsoff, out):
        xsum(s, s + 1, ror8=True)
        a("ds_write_b32 v191, v%d offset:%d" % (s, ldsoff))
        a("s_waitcnt lgkmcnt(0)")
        a("s_barrier")
        a("ds_read_b128 %s, v190 offset:%d" % (q4(S0 + 4), ldsoff))
        a("s_waitcnt lgkmcnt(0)")
        a("v_pk_add_f32 %s, %s, %s" % (q2(S0 + 4), q2(S0 + 4), q2(S0 + 6)))
        a("v_add_f32 v%d, v%d, v%d" % (S0 + 4, S0 + 4, S0 + 5))
        a("v_mul_f32 v%d, %s, v%d" % (out, f32bits(1.0 / 576.0), S0 + 4))

    a("v_pk_add_f32 %s, %s, %s" % (q2(S0), q2(DT), q2(DT + 2)))
    a("v_pk_add_f32 %s, %s, %s" % (q2(S0 + 2), q2(DT + 4), q2(DT + 6)))
    for k in range(4, 10, 2):
        a("v_pk_add_f32 %s, %s, %s" % (q2(S0), q2(S0), q2(DT + 2 * k)))
        a("v_pk_add_f32 %s, %s, %s" % (q2(S0 + 2), q2(S0 + 2), q2(DT + 2 * k + 2)))
    a("v_pk_add_f32 %s, %s, %s" % (q2(S0), q2(S0), q2(S0 + 2)))
    a("v_add_f32 v%d, v%d, v%d" % (S0, S0, S0 + 1))
    MEAN, VAR, M, SD = S0 + 8, S0 + 9, S0 + 10, S0 + 12
    reduce4(S0, 0, MEAN)
    a("v_sub_f32 v%d, 0, v%d" % (S0 + 14, MEAN))
    a("v_mov_b32 v%d, v%d" % (S0 + 15, S0 + 14))
    a("v_and_b32 v%d, v%d, v188" % (S0 + 16, S0 + 14))
    a("v_mov_b32 v%d, v%d" % (S0 + 17, S0 + 16))
    for k in range(10):
        a("v_pk_add_f32 %s, %s, %s" % (q2(BQ + 2 * k), q2(DT + 2 * k), q2(S0 + 14 if k < 8 else S0 + 16)))
    a("v_pk_mul_f32 %s, %s, %s" % (q2(S0), q2(BQ), q2(BQ)))
    a("v_pk_mul_f32 %s, %s, %s" % (q2(S0 + 2), q2(BQ + 2), q2(BQ + 2)))
    for k in range(2, 10):
        r = S0 + 2 * (k % 2)
        a("v_pk_fma_f32 %s, %s, %s, %s" % (q2(r), q2(BQ + 2 * k), q2(BQ + 2 * k), q2(r)))
    a("v_pk_add_f32 %s, %s, %s" % (q2(S0), q2(S0), q2(S0 + 2)))
    a("v_add_f32 v%d, v%d, v%d" % (S0, S0, S0 + 1))
    reduce4(S0, 256, VAR)
    ln_scalars(MEAN, VAR, M, SD)
    a("v_rcp_f32 v%d, v%d" % (SD, SD))
    a("v_sub_f32 v%d, 0, v%d" % (M, M))
    a("v_mov_b32 v%d, v%d" % (M + 1, M))
    a("v_mov_b32 v%d, v%d" % (SD + 1, SD))
    for k in range(10):
        a("v_pk_add_f32 %s, %s, %s" % (q2(DT + 2 * k), q2(DT + 2 * k), q2(M)))
    TY = 204
    for k in range(10):
        cvt(TY + k, DT + 2 * k, DT + 2 * k + 1)
    for k in range(10):
        unpack(DT + 2 * k, TY + k)
    for k in range(10):
        a("v_pk_mul_f32 %s, %s, %s" % (q2(DT + 2 * k), q2(DT + 2 * k), q2(SD)))
    for k in range(10):
        cvt(TY + k, DT + 2 * k, DT + 2 * k + 1)
    for kk in range(3):
        a("v_permlane16_swap_b32 v%d, v%d" % (TY + 4 * kk, TY + 4 * kk + 2))
        a("v_permlane16_swap_b32 v%d, v%d" % (TY + 4 * kk + 1, TY + 4 * kk + 3))
    for kk in range(3):
        vm.op("buffer_store_dwordx4 %s, v%d, s[40:43], s55 offen offset:%d%s" % (q4(TY + 4 * kk), 183 if kk < 2 else 186, (kk % 2) * 2048, ST), "st")
    stamp(11)

    def next_layer():
        a("s_add_u32 s44, s44, %s" % hex(LS))
        a("s_mov_b32 s45, 1")
        a("s_add_u32 s32, s24, %s" % hex(LB + LS + oXA))
        a("s_addc_u32 s33, s25, 0")
        k1_setup(False)
        attn_consts()

    a("s_lshr_b32 s6, s4, 1")
    a("s_lshl_b32 s7, s5, 2")
    a("s_add_u32 s6, s6, s7")
    a("s_lshl_b32 s6, s6, 7")
    a("s_add_u32 s19, s6, 16384")
    a("s_add_u32 s23, s22, 16384")
    a("s_max_u32 s7, s7, 1")
    a("s_lshl_b32 s7, s7, 7")
    a("s_add_u32 s26, s7, %d" % (16384 - 128))
    for f in kpf[:10]:
        f()
    vm.wait("st")
    arrive("s19", ret=False)
    for f in kpf[10:]:
        f()
    next_layer()
    poll("8", offs=("s23", "s26"))
    if PROF:
        a("s_add_u32 s96, s96, 128")
    stamp(0)
    a("s_branch K1_second")
    a("L_code_end:")
    a("s_endpgm")


def descriptor(label, vgpr, accum, sgpr):
    return """.amdhsa_kernel %s
  .amdhsa_next_free_vgpr %d
  .amdhsa_next_free_sgpr %d
  .amdhsa_accum_offset %d
  .amdhsa_group_segment_fixed_size 0
  .amdhsa_kernarg_size 88
  .amdhsa_user_sgpr_count 2
  .amdhsa_user_sgpr_kernarg_segment_ptr 1
  .amdhsa_system_sgpr_workgroup_id_x 1
.end_amdhsa_kernel
""" % (label, vgpr, sgpr, accum)


def build():
    launches = [
        ("p_kernel", P_END, 576, 36864 + 2304, 64, 64, 64),
        ("main_kernel", 256, 256, MAIN_LDS, 512, 256, 102),
    ]
    p_kernel()
    main_kernel()
    for e in a.check_branch_seams():
        print("WARN", e, file=sys.stderr)
    head = "; generated by work/gen2.py (hand-written generator)\n"
    for l, g, b, lds, _, _, _ in launches:
        head += "; @launch kernel=%s grid=(%d,1,1) block=(%d,1,1) lds=%d\n" % (l, g, b, lds)
    head += '.amdgcn_target "amdgcn-amd-amdhsa--gfx950"\n.text\n'
    tail = '.section .rodata,"a"\n'
    for l, g, b, lds, v, ac, sg in launches:
        tail += ".p2align 6\n" + descriptor(l, v, ac, sg)
    return head + a.text() + tail


if __name__ == "__main__":
    out = sys.argv[1] if len(sys.argv) > 1 else "cdna_kernels/%s.s" % NAME
    open(out, "w").write(build())
    print("wrote", out)
```

```python
import sys, math, os
from asmlib import Asm, f32bits

NAME = "interleave_layers__sliding_local_dilated__mixer_channel_mlp__prompt"
ACT = 2048 * 576 * 2
TB = 73728
WOS = 82944
WQKVP = 0
WOP = WQKVP + 2304 * 1024
W1P = WOP + 672 * 1024
W2P = W1P + 5184 * 1024
AUG = W2P + 5184 * 1024
CNT = AUG + 72 * 1024
CST = int(os.environ.get('CST', '128'))
CNTB = (288 * CST + 4095) // 4096 * 4096
LB = CNT + CNTB
oY, oO, oXA, oX1 = 0, ACT, 2 * ACT, 3 * ACT
oST = 4 * ACT
PSHARE = int(os.environ.get("PSHARE", "0"))
oPART = 4 * ACT + 128 * 1024
LS = oPART + (0 if PSHARE else 8 * ACT)
WS_USED = LB + 2 * LS + (8 * ACT if PSHARE else 0)
PARTB = LB + 2 * LS
WS_BYTES = 268435456
OOB = 0x80000000
ST = " sc1"
LD = " sc1"
STAMP = 200 * 1024 * 1024

E = lambda n, d: int(os.environ.get(n, str(d)))
PROF = os.environ.get("PROF", "")
MAPB = E("MAPB", 2)
MROT = E("MROT", 3)
AROT = E("AROT", 2)
APRE = E("APRE", 3)
PF = E("PF", 9)
K2PRE = E("K2PRE", 6)
TOUCH = E("TOUCH", 0)
NE1 = E("NE1", 0)
NROT = NE1 if NE1 else 7
PNT = os.environ.get("PNT", " nt").replace("_", " ")
PV = E("PV", 72)
ABL = os.environ.get("ABL", "")
XST = {0: [s // 6 for s in range(18)], 1: [0] * 3 + [1] * 5 + [2] * 5 + [3] * 5}[E("XS", 1)]
STF = "" if E("FAST", 0) else ST
WSTEP = E("WSTEP", 2)
WOL = 21
W2D = E("W2D", 1)
NR = 32
SPIN = 1 << 16

KA_X, KA_WQKV, KA_WO, KA_BX, KA_W1, KA_B1, KA_W2, KA_B2, KA_OUT, KA_DBG, KA_WS = [8 * i for i in range(11)]
a = Asm()
MF = "v_mfma_f32_16x16x32_bf16"
q4 = lambda b, k="v": "%s[%d:%d]" % (k, b, b + 3)
q2 = lambda b: "v[%d:%d]" % (b, b + 1)


def srd(d, base, off, nbytes):
    if off == 0:
        a("s_mov_b32 s%d, s%d" % (d, base))
        a("s_mov_b32 s%d, s%d" % (d + 1, base + 1))
    else:
        a("s_add_u32 s%d, s%d, %s" % (d, base, off if isinstance(off, str) else hex(off)))
        a("s_addc_u32 s%d, s%d, 0" % (d + 1, base + 1))
    a("s_mov_b32 s%d, %s" % (d + 2, hex(nbytes)))
    a("s_mov_b32 s%d, 0x20000" % (d + 3))


def entry(label):
    a(".p2align 8")
    a(".globl %s" % label)
    a(".type %s,@function" % label)
    a("%s:" % label)


class VM:
    def __init__(self, cnt="vmcnt", maxn=63):
        self.ops, self.cnt, self.maxn, self.done = [], cnt, maxn, -1

    def op(self, text, tag):
        a(text)
        self.ops.append(tag)

    def wait(self, tag):
        last = max(i for i, t in enumerate(self.ops) if t == tag)
        if last <= self.done:
            return
        n = min(len(self.ops) - 1 - last, self.maxn)
        self.done = len(self.ops) - 1 - n
        a("s_waitcnt %s(%d)" % (self.cnt, n))

    def all(self):
        self.done = len(self.ops) - 1
        a("s_waitcnt %s(0)" % self.cnt)


def stamp(k):
    if PROF:
        a("s_memtime s[98:99]")
        a("s_memrealtime s[100:101]")
        a("s_waitcnt lgkmcnt(0)")
        a("v_mov_b32 v0, s98")
        a("buffer_store_dword v0, off, s[92:95], s96 offset:%d" % (4 * k))
        a("v_mov_b32 v0, s100")
        a("buffer_store_dword v0, off, s[92:95], s96 offset:%d" % (4 * k + 64))


def rstamp(k):
    if PROF:
        a("s_memrealtime s[98:99]")
        a("s_waitcnt lgkmcnt(0)")
        a("v_mov_b32 v0, s98")
        a("buffer_store_dword v0, off, s[92:95], s96 offset:%d" % (4 * k))


def unpack(dst, src):
    a("v_lshlrev_b32 v%d, 16, v%d" % (dst, src))
    a("v_and_b32 v%d, 0xffff0000, v%d" % (dst + 1, src))


def cvt(d, x, y):
    a("v_cvt_pk_bf16_f32 v%d, v%d, v%d" % (d, x, y))


def round1(r):
    cvt(r, r, r)
    a("v_and_b32 v%d, 0xffff0000, v%d" % (r, r))


def ln_scalars(mean, var, M, SD, emit=None):
    e = emit or a
    e("v_cvt_pk_bf16_f32 v%d, v%d, v%d" % (M, var, mean))
    e("v_lshlrev_b32 v%d, 16, v%d" % (SD, M))
    e("v_and_b32 v%d, 0xffff0000, v%d" % (M, M))
    e("v_add_f32 v%d, %s, v%d" % (SD, f32bits(1e-5), SD))
    e("v_cvt_pk_bf16_f32 v%d, v%d, v%d" % (SD, SD, SD))
    e("v_and_b32 v%d, 0xffff0000, v%d" % (SD, SD))
    e("v_sqrt_f32 v%d, v%d" % (SD, SD))
    e("v_cvt_pk_bf16_f32 v%d, v%d, v%d" % (SD, SD, SD))
    e("v_and_b32 v%d, 0xffff0000, v%d" % (SD, SD))


def xsum(r, t, rows16=True, rows32=True, ror8=False):
    if ror8:
        a("v_add_f32_dpp v%d, v%d, v%d row_ror:8 row_mask:0xf bank_mask:0xf" % (r, r, r))
    a("v_mov_b32 v%d, v%d" % (t, r))
    a("v_permlane16_swap_b32 v%d, v%d" % (r, t))
    a("v_add_f32 v%d, v%d, v%d" % (r, r, t))
    a("v_mov_b32 v%d, v%d" % (t, r))
    a("v_permlane32_swap_b32 v%d, v%d" % (r, t))
    a("v_add_f32 v%d, v%d, v%d" % (r, r, t))


def mod_small(dst, src, n):
    if n == 1:
        a("s_mov_b32 %s, 0" % dst)
        return
    m = -(-4096 // n)
    assert all((t * m) >> 12 == t // n for t in range(32))
    a("s_mul_i32 %s, %s, %d" % (dst, src, m))
    a("s_lshr_b32 %s, %s, 12" % (dst, dst))
    a("s_mul_i32 %s, %s, %d" % (dst, dst, n))
    a("s_sub_u32 %s, %s, %s" % (dst, src, dst))


P_LN, P_QKV, P_W1, P_W2 = 0, 256, 328, 472
P_MISC = P_W2 + (32 if W2D else 144)
P_END = P_MISC + 1


def p_kernel():
    entry("p_kernel")
    a("s_cmp_ge_u32 s2, %d" % P_END)
    a("s_cbranch_scc1 L_exit")
    if PROF:
        a("s_memrealtime s[56:57]")
    a("s_load_dwordx16 s[4:19], s[0:1], 0")
    a("s_load_dwordx2 s[24:25], s[0:1], %d" % KA_WS)
    a("v_lshrrev_b32 v1, 6, v0")
    a("v_readfirstlane_b32 s3, v1")
    a("v_and_b32 v1, 63, v0")
    a("v_lshlrev_b32 v2, 4, v1")
    a("v_lshrrev_b32 v3, 4, v1")
    a("v_and_b32 v4, 15, v1")
    a("v_lshlrev_b32 v5, 4, v0")
    a("s_waitcnt lgkmcnt(0)")
    srd(40, 24, 0, WS_USED)
    if E("PTOUCH", 0):
        a("s_cmp_ge_u32 s2, 32")
        a("s_cbranch_scc1 P_nt")
        a("s_lshr_b32 s20, s2, 3")
        a("s_mul_i32 s20, s20, 576")
        a("v_add_u32 v62, s20, v0")
        a("v_min_u32 v62, %d, v62" % ((1 << (31 - E("PTOUCH", 0))) - 1))
        a("v_lshlrev_b32 v62, %d, v62" % E("PTOUCH", 0))
        a("buffer_load_dword v63, v62, s[40:43], 0 offen")
        a("P_nt:")
    a("s_cmp_lt_u32 s2, %d" % P_QKV)
    a("s_cbranch_scc1 P_ln")
    a("s_cmp_ge_u32 s2, %d" % P_MISC)
    a("s_cbranch_scc1 P_misc")
    a("s_cmp_ge_u32 s2, %d" % P_W1)
    a("s_cbranch_scc1 P_w12")
    a("s_sub_u32 s29, s2, %d" % P_QKV)
    srd(36, 6, 0, 576 * 1728 * 2)
    a("s_mul_i32 s20, s29, %d" % (8 * 3456))
    a("s_lshl_b32 s21, s3, 10")
    for n in range(3):
        a("s_add_u32 m0, s21, %d" % (n * 9216))
        a("s_add_u32 s22, s20, %d" % (n * 9216))
        a("buffer_load_dwordx4 v5, s[36:39], s22 offen" + PNT + " lds")
    srd(32, 8, 0, 576 * 576 * 2)
    a("s_mov_b32 s20, s29")
    a("s_lshr_b32 s21, s20, 2")
    a("s_and_b32 s22, s20, 3")
    a("v_mul_u32_u24 v6, 911, v0")
    a("v_lshrrev_b32 v6, 16, v6")
    a("v_mul_u32_u24 v7, 72, v6")
    a("v_sub_u32 v7, v0, v7")
    a("s_cmp_ge_u32 s21, 16")
    a("s_cbranch_scc1 P_wo_tail")
    a("s_mul_i32 s23, s21, 36")
    a("s_lshl_b32 s26, s22, 2")
    a("s_add_u32 s23, s23, s26")
    a("v_lshrrev_b32 v8, 2, v6")
    a("v_and_b32 v9, 3, v6")
    a("s_branch P_wo_go")
    a("P_wo_tail:")
    a("s_sub_u32 s23, s20, 64")
    a("s_mul_i32 s23, s23, 72")
    a("s_add_u32 s23, s23, 16")
    a("v_lshrrev_b32 v8, 1, v6")
    a("v_and_b32 v9, 1, v6")
    a("P_wo_go:")
    a("v_mul_u32_u24 v8, 18, v8")
    a("v_add_u32 v8, v8, v9")
    a("v_mul_u32_u24 v8, 1152, v8")
    a("v_lshl_add_u32 v8, v7, 4, v8")
    a("s_mul_i32 s23, s23, 1152")
    a("s_lshl_b32 s26, s3, 10")
    a("s_add_u32 m0, s26, 27648")
    a("buffer_load_dwordx4 v8, s[32:35], s23 offen" + PNT + " lds")
    a("s_mul_i32 s27, s21, 4608")
    a("s_add_u32 s27, s27, %s" % hex(WOP))
    a("v_lshrrev_b32 v8, 4, v7")
    a("v_lshlrev_b32 v8, 10, v8")
    a("v_and_b32 v9, 15, v7")
    a("v_lshl_add_u32 v8, v9, 4, v8")
    a("s_lshl_b32 s26, s22, 7")
    a("v_mov_b32 v10, s26")
    a("v_lshlrev_b32 v11, 1, v10")
    a("v_cmp_gt_u32 vcc, 64, v7")
    a("v_cndmask_b32 v10, v10, v11, vcc")
    a("v_add_u32 v8, v8, v10")
    a("s_mov_b32 s26, %d" % WOS)
    a("v_mad_u32_u24 v3, v6, s26, v8")
    a("v_lshlrev_b32 v4, 1, v0")
    a("s_lshr_b32 s22, s29, 2")
    a("s_lshl_b32 s22, s22, 12")
    a("s_and_b32 s23, s29, 3")
    a("s_lshl_b32 s23, s23, 8")
    a("s_add_u32 s22, s22, s23")
    a("v_mov_b32 v15, %s" % hex(OOB))
    for n in range(4):
        u, src, dst = 6, 48 + n, 52 + n
        a("v_add_u32 v6, %d, v0" % (n * 576))
        a("v_lshrrev_b32 v7, 6, v6")
        a("v_bfe_u32 v8, v6, 4, 2")
        a("v_and_b32 v9, 15, v6")
        a("v_mul_u32_u24 v10, 36, v7")
        a("v_mul_u32_u24 v11, 1152, v8")
        a("v_lshl_add_u32 v11, v9, 1, v11")
        a("v_lshrrev_b32 v12, 1, v9")
        a("v_mul_u32_u24 v12, 1152, v12")
        a("v_and_b32 v13, 1, v9")
        a("v_lshl_add_u32 v12, v13, 1, v12")
        a("v_add_u32 v12, 32, v12")
        a("v_cmp_eq_u32 vcc, 3, v8")
        a("v_cndmask_b32 v11, v11, v12, vcc")
        a("v_cmp_lt_u32 s[44:45], 5, v9")
        a("s_and_b64 s[%d:%d], vcc, s[44:45]" % (46 + 2 * n, 47 + 2 * n))
        a("v_cndmask_b32 v11, v11, 0, s[%d:%d]" % (46 + 2 * n, 47 + 2 * n))
        a("v_add_u32 v%d, v10, v11" % src)
        a("v_mul_u32_u24 v7, 73728, v7")
        a("v_lshl_add_u32 v7, v8, 10, v7")
        a("v_lshl_add_u32 v%d, v9, 4, v7" % dst)
        if n == 3:
            a("v_cmp_gt_u32 vcc, 2048, v6")
            a("v_cndmask_b32 v%d, v15, v%d, vcc" % (dst, dst))
            a("v_cndmask_b32 v%d, 0, v%d, vcc" % (src, src))
    a("s_waitcnt vmcnt(0)")
    a("s_barrier")
    for n in range(4):
        for j in range(8):
            a("ds_read_u16 v%d, v%d offset:%d" % (16 + n * 8 + j, 48 + n, j * 3456))
        if n % 2 == 1:
            a("s_waitcnt lgkmcnt(0)")
            for m in (n - 1, n):
                for k in range(4):
                    a("v_lshl_or_b32 v%d, v%d, 16, v%d" % (16 + m * 8 + k, 16 + m * 8 + 2 * k + 1, 16 + m * 8 + 2 * k))
                    a("v_cndmask_b32 v%d, v%d, 0, s[%d:%d]" % (16 + m * 8 + k, 16 + m * 8 + k, 46 + 2 * m, 47 + 2 * m))
                a("buffer_store_dwordx4 %s, v%d, s[40:43], s22 offen%s" % (q4(16 + m * 8), 52 + m, ST))
    for j in range(8):
        a("ds_read_u16 v%d, v4 offset:%d" % (56 + j, 27648 + j * 1152))
    a("s_waitcnt lgkmcnt(0)")
    for k in range(4):
        a("v_lshl_or_b32 v%d, v%d, 16, v%d" % (56 + k, 56 + 2 * k + 1, 56 + 2 * k))
    a("buffer_store_dwordx4 v[56:59], v3, s[40:43], s27 offen%s" % ST)
    a("s_branch P_end" if PROF else "s_endpgm")

    a("P_ln:")
    srd(36, 4, 0, ACT)
    a("s_sub_u32 s20, s2, %d" % P_LN)
    a("v_lshrrev_b32 v1, 3, v0")
    a("v_and_b32 v7, 7, v0")
    a("v_lshlrev_b32 v8, 4, v1")
    a("v_mul_u32_u24 v9, 1152, v7")
    a("v_add_u32 v9, v9, v8")
    a("s_mul_i32 s21, s20, %d" % (8 * 1152))
    a("buffer_load_dwordx4 v[16:19], v9, s[36:39], s21 offen" + (PNT if E("XNT", 0) else ""))
    a("v_lshlrev_b32 v3, 8, v1")
    a("v_lshl_add_u32 v3, v7, 4, v3")
    a("s_lshr_b32 s22, s20, 1")
    a("s_mul_i32 s22, s22, 18432")
    a("s_and_b32 s23, s20, 1")
    a("s_lshl_b32 s23, s23, 7")
    a("s_add_u32 s22, s22, s23")
    a("s_add_u32 s22, s22, %s" % hex(LB + oY))
    a("v_mul_u32_u24 v11, 48, v7")
    a("v_lshrrev_b32 v12, 6, v0")
    a("v_lshl_add_u32 v12, v12, 2, v11")
    AC, T, P = 24, 32, 48
    a("s_waitcnt vmcnt(0)")
    for k in range(4):
        unpack(AC + 2 * k, 16 + k)

    def reduce9(s, ldsoff, out):
        xsum(s, s + 1, ror8=True)
        a("ds_write_b32 v12, v%d offset:%d" % (s, ldsoff))
        a("s_waitcnt lgkmcnt(0)")
        a("s_barrier")
        a("ds_read_b128 %s, v11 offset:%d" % (q4(P), ldsoff))
        a("ds_read_b128 %s, v11 offset:%d" % (q4(P + 4), ldsoff + 16))
        a("ds_read_b32 v%d, v11 offset:%d" % (P + 8, ldsoff + 32))
        a("s_waitcnt lgkmcnt(0)")
        a("v_pk_add_f32 %s, %s, %s" % (q2(P), q2(P), q2(P + 2)))
        a("v_pk_add_f32 %s, %s, %s" % (q2(P + 4), q2(P + 4), q2(P + 6)))
        a("v_pk_add_f32 %s, %s, %s" % (q2(P), q2(P), q2(P + 4)))
        a("v_add_f32 v%d, v%d, v%d" % (P, P, P + 1))
        a("v_add_f32 v%d, v%d, v%d" % (P, P, P + 8))
        a("v_mul_f32 v%d, %s, v%d" % (out, f32bits(1.0 / 576.0), P))

    S, MEAN, VAR, M, SD = 40, 42, 43, 44, 45
    a("v_pk_add_f32 %s, %s, %s" % (q2(T), q2(AC), q2(AC + 2)))
    a("v_pk_add_f32 %s, %s, %s" % (q2(T + 2), q2(AC + 4), q2(AC + 6)))
    a("v_pk_add_f32 %s, %s, %s" % (q2(T), q2(T), q2(T + 2)))
    a("v_add_f32 v%d, v%d, v%d" % (S, T, T + 1))
    reduce9(S, 0, MEAN)
    for k in range(8):
        a("v_sub_f32 v%d, v%d, v%d" % (T + k, AC + k, MEAN))
    a("v_mul_f32 v%d, v%d, v%d" % (S, T, T))
    for k in range(1, 8):
        a("v_fmac_f32 v%d, v%d, v%d" % (S, T + k, T + k))
    reduce9(S, 512, VAR)
    ln_scalars(MEAN, VAR, M, SD)
    a("v_rcp_f32 v%d, v%d" % (SD, SD))
    for k in range(8):
        a("v_sub_f32 v%d, v%d, v%d" % (AC + k, AC + k, M))
    for k in range(4):
        cvt(T + k, AC + 2 * k, AC + 2 * k + 1)
    for k in range(4):
        unpack(AC + 2 * k, T + k)
    for k in range(8):
        a("v_mul_f32 v%d, v%d, v%d" % (AC + k, AC + k, SD))
    for k in range(4):
        cvt(T + k, AC + 2 * k, AC + 2 * k + 1)
    a("buffer_store_dwordx4 %s, v3, s[40:43], s22 offen%s" % (q4(T), ST))
    a("s_branch P_end" if PROF else "s_endpgm")

    a("P_w12:")
    a("v_lshrrev_b32 v5, 3, v1")
    a("v_and_b32 v6, 7, v1")
    a("v_lshlrev_b32 v6, 4, v6")
    a("v_bfe_u32 v7, v1, 2, 2")
    a("v_and_b32 v8, 3, v1")
    a("s_lshl_b32 s21, s3, 12")
    a("s_cmp_ge_u32 s2, %d" % P_W2)
    a("s_cbranch_scc1 P_w2")
    if "now1" in ABL:
        a("s_branch P_end")

    def w12(stride, second):
        for n in range(4):
            a("s_add_u32 m0, s21, %d" % (n * 1024))
            a("buffer_load_dwordx4 v9, s[36:39], s22 offen" + PNT + " lds")
            if n < 3:
                a("s_add_u32 s22, s22, %d" % (8 * stride))

    def w12b(second):
        for tl in range(4):
            a("ds_read_b64_tr_b16 %s, v10 offset:%d" % (q2(16 + tl * 4), tl * 32))
            a("ds_read_b64_tr_b16 %s, v10 offset:%d" % (q2(18 + tl * 4), tl * 32 + second))
        for tl in range(4):
            a("s_waitcnt lgkmcnt(%d)" % (6 - 2 * tl))
            a("s_add_u32 s26, s23, %d" % (tl * 18432))
            a("buffer_store_dwordx4 %s, v2, s[40:43], s26 offen%s" % (q4(16 + tl * 4), ST))

    srd(36, 12, 0, 576 * 4608 * 2)
    a("s_sub_u32 s28, s2, %d" % P_W1)
    a("s_lshr_b32 s20, s28, 1")
    a("s_and_b32 s28, s28, 1")
    a("s_mul_i32 s29, s28, 9")
    a("s_add_u32 s29, s29, s3")
    a("s_mul_i32 s22, s29, %d" % (32 * 9216))
    a("s_lshl_b32 s27, s20, 7")
    a("s_add_u32 s22, s22, s27")
    a("v_mul_u32_u24 v9, 9216, v5")
    a("v_add_u32 v9, v9, v6")
    w12(9216, 512)
    srd(32, 14, 0, 4608 * 2)
    a("v_lshlrev_b32 v5, 1, v1")
    a("buffer_load_ushort v40, v5, s[32:35], s27 offen")
    a("v_lshl_add_u32 v10, v3, 3, v7")
    a("v_lshlrev_b32 v10, 7, v10")
    a("v_lshl_add_u32 v10, v8, 3, v10")
    a("v_add_u32 v10, s21, v10")
    a("s_mul_i32 s23, s20, %d" % (4 * 18432))
    a("s_lshl_b32 s26, s29, 10")
    a("s_add_u32 s23, s23, s26")
    a("s_add_u32 s23, s23, %s" % hex(W1P))
    for k in range(4):
        a("v_mov_b32 v%d, 0x3f803f80" % (12 + k))
    a("s_lshl_b32 s26, s3, 8")
    a("s_add_u32 s26, s26, 36864")
    a("v_lshlrev_b32 v11, 4, v3")
    a("v_add_u32 v11, s26, v11")
    a("s_waitcnt vmcnt(0)")
    w12b(512)
    for tl in range(4):
        a("%s %s, %s, v[12:15], 0" % (MF, q4(48 + tl * 4), q4(16 + tl * 4)))
    for tl in range(4):
        a("ds_write_b128 v11, %s offset:%d" % (q4(48 + tl * 4), tl * 64))
    a("s_waitcnt lgkmcnt(0)")
    a("s_barrier")
    a("s_cmp_lg_u32 s3, 0")
    a("s_cbranch_scc1 P_end")
    a("v_lshlrev_b32 v11, 2, v1")
    for w in range(9):
        a("ds_read_b32 v%d, v11 offset:%d" % (48 + w, 36864 + w * 256))
    a("s_waitcnt lgkmcnt(0)")
    for w in range(1, 9):
        a("v_add_f32 v48, v48, v%d" % (48 + w))
    a("v_sub_f32 v48, 0, v48")
    cvt(60, 48, 48)
    a("v_and_b32 v49, 0xffff0000, v60")
    a("v_sub_f32 v49, v48, v49")
    cvt(49, 49, 49)
    a("v_and_b32 v49, 0xffff, v49")
    a("v_lshl_or_b32 v61, v40, 16, v49")
    a("s_lshl_b32 s27, s20, 10")
    a("s_lshl_b32 s28, s28, 3")
    a("s_add_u32 s27, s27, s28")
    a("s_add_u32 s27, s27, %s" % hex(AUG))
    a("buffer_store_dwordx2 v[60:61], v2, s[40:43], s27 offen%s" % ST)
    a("s_branch P_end" if PROF else "s_endpgm")

    a("P_w2:")
    if "now2" in ABL:
        a("s_cmp_ge_u32 s2, %d" % (P_W2 + 32))
        a("s_cbranch_scc1 P_end")
    srd(36, 16, 0, 576 * 4608 * 2)
    a("s_sub_u32 s20, s2, %d" % P_W2)
    if W2D:
        a("s_lshr_b32 s22, s20, 2")
        a("s_mul_i32 s22, s22, 14")
        a("s_add_u32 s20, s20, s22")
        a("s_add_u32 s20, s20, 14")
    a("s_mul_i32 s22, s20, %d" % (32 * 1152))
    a("s_lshl_b32 s23, s3, 7")
    a("s_add_u32 s22, s22, s23")
    a("v_mul_u32_u24 v9, 1152, v5")
    a("v_add_u32 v9, v9, v6")
    w12(1152, 2048)
    a("v_lshl_add_u32 v10, v3, 2, v7")
    a("v_lshlrev_b32 v10, 7, v10")
    a("v_lshl_add_u32 v10, v8, 3, v10")
    a("v_add_u32 v10, s21, v10")
    a("s_mul_i32 s26, s20, 3641")
    a("s_lshr_b32 s26, s26, 16")
    a("s_mul_i32 s27, s26, 18")
    a("s_sub_u32 s27, s20, s27")
    a("s_mul_i32 s23, s26, %d" % (36 * 18432))
    a("s_mul_i32 s26, s3, %d" % (4 * 18432))
    a("s_add_u32 s23, s23, s26")
    a("s_lshl_b32 s27, s27, 10")
    a("s_add_u32 s23, s23, s27")
    a("s_add_u32 s23, s23, %s" % hex(W2P))
    a("s_waitcnt vmcnt(0)")
    w12b(2048)
    a("s_branch P_end" if PROF else "s_endpgm")

    a("P_misc:")
    for k in range(4):
        a("v_mov_b32 v%d, 0" % (16 + k))
    a("v_lshlrev_b32 v5, 4, v0")
    srd(36, 24, CNT, CNTB)
    a("s_mov_b32 s22, %d" % CST)
    a("v_mul_lo_u32 v6, v0, s22")
    a("buffer_store_dwordx4 v[16:19], v6, s[36:39], 0 offen%s" % ST)
    a("s_getpc_b64 s[20:21]")
    a("P_pc:")
    a("s_add_u32 s36, s20, main_kernel-P_pc")
    a("s_addc_u32 s37, s21, 0")
    a("s_mov_b32 s38, L_code_end-main_kernel")
    a("s_mov_b32 s39, 0x20000")
    a("s_mov_b32 s22, 0")
    for k in range(7):
        a("buffer_load_dwordx4 %s, v5, s[36:39], s22 offen" % q4(20 + 4 * k))
        a("s_add_u32 s22, s22, 9216")
    a("s_waitcnt vmcnt(0)")
    a("P_end:")
    if PROF:
        a("s_waitcnt vmcnt(0)")
        a("s_memrealtime s[58:59]")
        srd(36, 24, STAMP + (1 << 19), 1 << 19)
        a("s_lshl_b32 s60, s2, 4")
        a("s_add_u32 s60, s60, s3")
        a("s_lshl_b32 s60, s60, 3")
        a("s_waitcnt lgkmcnt(0)")
        a("v_mov_b32 v0, s56")
        a("v_mov_b32 v1, s58")
        a("buffer_store_dwordx2 v[0:1], off, s[36:39], s60")
    a("L_exit:")
    a("s_endpgm")


L_SCR, L_OX, L_Y, L_WA, L_WB = 0, 8192, 20480, 112640, 20480
MAIN_LDS = 163840
uid = [0]


def main_kernel():
    entry("main_kernel")
    a("s_cmp_ge_u32 s2, 256")
    a("s_cbranch_scc1 L_exit2")
    a("s_load_dwordx2 s[24:25], s[0:1], %d" % KA_WS)
    a("s_load_dwordx4 s[28:31], s[0:1], %d" % KA_B2)
    a("s_load_dwordx2 s[32:33], s[0:1], %d" % KA_X)
    a("s_load_dwordx2 s[36:37], s[0:1], %d" % KA_W2)
    a("s_mov_b32 s38, %d" % (576 * 4608 * 2))
    a("s_mov_b32 s39, 0x20000")
    a("s_mov_b32 s34, %d" % ACT)
    a("s_mov_b32 s35, 0x20000")
    vm = VM()
    lg = VM("lgkmcnt", 15)
    a("v_lshrrev_b32 v1, 6, v0")
    a("v_readfirstlane_b32 s3, v1")
    a("v_and_b32 v1, 63, v0")
    a("v_lshlrev_b32 v2, 4, v1")
    a("v_lshrrev_b32 v3, 4, v1")
    a("v_and_b32 v4, 15, v1")
    b = MAPB
    spx = 8 // b
    tpx = 32 // spx
    lb = {1: 0, 2: 1, 4: 2, 8: 3}
    a("s_and_b32 s6, s2, 7")
    a("s_lshr_b32 s7, s2, 3")
    a("s_and_b32 s4, s6, %d" % (b - 1))
    a("s_lshl_b32 s4, s4, %d" % lb[spx])
    a("s_and_b32 s8, s7, %d" % (spx - 1))
    a("s_add_u32 s4, s4, s8")
    a("s_lshr_b32 s5, s6, %d" % lb[b])
    a("s_mul_i32 s5, s5, %d" % tpx)
    a("s_lshr_b32 s8, s7, %d" % lb[spx])
    a("s_add_u32 s5, s5, s8")
    a("s_mov_b32 s44, %s" % hex(LB))
    a("s_mov_b32 s45, 0")
    a("s_mov_b32 s46, 8")
    a("s_mov_b32 s27, 1")
    a("s_mov_b32 s97, 1152")
    a("s_mul_i32 s47, s5, %d" % TB)

    KY, KW = 48, 54

    def k1_setup(rot):
        if rot:
            mod_small("s6", "s5", AROT)
            a("s_mul_i32 s6, s6, %d" % (6 // AROT))
        else:
            a("s_mov_b32 s6, 0")
        for G in range(6):
            a("s_mul_i32 s%d, s6, 3072" % (KY + G))
            a("s_add_u32 s%d, s%d, s44" % (KY + G, KY + G))
            a("s_mul_i32 s%d, s6, 12288" % (KW + G))
            if G < 5:
                a("s_add_u32 s6, s6, 1")
                a("s_cmp_eq_u32 s6, 6")
                a("s_cselect_b32 s6, 0, s6")
        a("s_mul_i32 s8, s3, 18432")
        a("s_add_u32 s8, s8, s47")
        a("v_add_u32 v7, s8, v2")
        a("s_min_u32 s9, s3, 2")
        a("s_lshl_b32 s11, s9, 10")
        a("s_add_u32 s8, s47, s11")
        a("s_sub_u32 s8, s8, 18432")
        a("s_cmp_eq_u32 s5, 0")
        a("s_cselect_b32 s8, %s, s8" % hex(OOB))
        a("v_add_u32 v8, s8, v2")
        a("s_add_u32 s11, s11, %d" % L_Y)
        a("s_mul_i32 s10, s3, 18432")
        a("s_add_u32 s10, s10, %d" % (L_Y + 18432))
        a("v_add_u32 v5, %d, v2" % L_Y)
        a("v_add_u32 v6, %d, v2" % (L_Y + 46080))

    def kw_voffs():
        a("s_lshl_b32 s12, s4, 2")
        a("s_add_u32 s12, s12, s3")
        a("s_mul_i32 s12, s12, 73728")
        a("v_add_u32 v9, s12, v2")
        a("v_add_u32 v10, 4096, v9")
        a("v_add_u32 v11, 8192, v9")

    k1_setup(True)
    kw_voffs()
    a("s_waitcnt lgkmcnt(0)")
    srd(40, 24, 0, WS_USED)
    a("s_add_u32 s20, s24, %s" % hex(CNT))
    a("s_addc_u32 s21, s25, 0")
    a("s_lshl_b32 s22, s5, 2")
    a("s_add_u32 s22, s22, s3")
    a("s_mul_i32 s22, s22, %d" % CST)
    if PROF:
        srd(92, 24, STAMP, 1 << 20)
        a("s_lshl_b32 s96, s2, 2")
        a("s_add_u32 s96, s96, s3")
        a("s_lshl_b32 s96, s96, 8")
    rstamp(12)
    stamp(0)

    def arrive(off="s22", ret=True):
        if ret:
            a("s_mov_b32 s16, 1")
            a("s_atomic_add s16, s[20:21], %s glc" % off)
        else:
            a("s_atomic_add s27, s[20:21], %s" % off)

    def poll(target, offs=("s22",), issued=None):
        uid[0] += 1
        u = uid[0]

        def rd():
            for k, o in enumerate(offs):
                a("s_mov_b32 s%d, 0" % (16 + k))
                a("s_atomic_add s%d, s[20:21], %s glc" % (16 + k, o))
        a("s_mov_b32 s18, %d" % SPIN)
        if issued is None:
            rd()
        lg.all()
        if issued == "arrive":
            a("s_add_u32 s16, s16, 1")
        a("H%d_l:" % u)
        if len(offs) > 1:
            a("s_min_u32 s16, s16, s17")
        a("s_cmp_ge_u32 s16, %s" % target)
        a("s_cbranch_scc1 H%d_b" % u)
        a("s_sub_u32 s18, s18, 1")
        a("s_cbranch_scc1 H%d_b" % u)
        rd()
        a("s_waitcnt lgkmcnt(0)")
        a("s_branch H%d_l" % u)
        a("H%d_b:" % u)

    def hop(tag, pre_a=(), pre_b=()):
        for f in pre_a:
            f()
        vm.wait(tag)
        arrive()
        for f in pre_b:
            f()
        poll("s46", issued="arrive")
        a("s_add_u32 s46, s46, 8")

    QA, KA, VA, CA, YF = 16, 32, 52, 72, 92
    MSK, SM = 132, 136

    def wslot(i, t):
        return ((i % 16) * 4 + t) * 4

    def wload1(i, t, sreg=None):
        def f():
            s = sreg or "s%d" % (KW + i // 3)
            vm.op("buffer_load_dwordx4 %s, v%d, s[40:43], %s offen offset:%d" % (q4(wslot(i, t), "a"), 9 + i % 3, s, t * 1024), ("w", i))
        return f

    def ydma1(G, k):
        def f():
            if k < 3:
                a("s_add_u32 m0, s10, %d" % (G * 3072))
                vm.op("buffer_load_dwordx4 v7, s[40:43], s%d offen offset:%d%s lds" % (KY + G, k * 1024, LD), ("y", G))
            else:
                a("s_add_u32 m0, s11, %d" % (G * 3072))
                vm.op("buffer_load_dwordx4 v8, s[40:43], s%d offen%s lds" % (KY + G, LD), ("y", G))
        return f

    def yread1(i, T):
        def f():
            off = (T * 18 + i) * 1024
            base = 5
            if off >= 46080:
                off -= 46080
                base = 6
            a("ds_read_b128 %s, v%d offset:%d" % (q4(YF + (i % 2) * 20 + T * 4), base, off))
        return f

    def wodma(region, n):
        def f():
            a("s_add_u32 m0, s%d, %d" % ((13, 14)[region], (n // 4) * 4096))
            a("s_add_u32 s15, s%d, %d" % ((60, 61)[region], (n // 4) * 4096))
            vm.op("buffer_load_dwordx4 v2, s[40:43], s15 offen offset:%d lds" % ((n % 4) * 1024), "wo")
        return f

    wo_all = [wodma(0, n) for n in range(12)] + [wodma(1, n) for n in range(9)]

    def attn_consts():
        a("v_and_b32 v13, 1, v4")
        a("v_cmp_eq_u32 s[70:71], 1, v13")
        a("v_lshl_add_u32 v14, v3, 2, v13")
        a("v_cmp_ge_u32 s[72:73], v4, v14")
        a("v_add_u32 v14, 2, v14")
        a("v_cmp_ge_u32 s[74:75], v4, v14")
        a("v_mov_b32 v13, 0xffff")
        a("v_mov_b32 v14, 0xffff0000")
        a("v_cndmask_b32 v13, v13, v14, s[70:71]")
        a("v_cndmask_b32 v%d, v13, 0, s[72:73]" % (MSK + 0))
        a("v_cndmask_b32 v%d, v13, 0, s[74:75]" % (MSK + 1))
        a("v_cndmask_b32 v%d, 0, v13, s[72:73]" % (MSK + 2))
        a("v_cndmask_b32 v%d, 0, v13, s[74:75]" % (MSK + 3))
        a("s_cmp_eq_u32 s5, 0")
        a("s_cselect_b32 s14, %s, 0" % f32bits(-1e9 * math.sqrt(18.0)))
        for k in range(4):
            a("v_mov_b32 v%d, s14" % (SM + k))
        a("s_lshl_b32 s14, s3, 11")
        a("v_lshlrev_b32 v141, 9, v3")
        a("v_lshl_add_u32 v141, v4, 1, v141")
        a("v_add_u32 v141, s14, v141")
        a("v_and_b32 v142, 1, v4")
        a("v_mul_u32_u24 v142, 160, v142")
        a("v_lshl_add_u32 v142, v3, 3, v142")
        a("s_add_u32 s14, s14, 512")
        a("v_add_u32 v142, s14, v142")
        a("s_lshr_b32 s14, s3, 1")
        a("s_lshl_b32 s14, s14, 10")
        a("s_and_b32 s15, s3, 1")
        a("s_lshl_b32 s15, s15, 3")
        a("s_add_u32 s14, s14, s15")
        a("s_add_u32 s14, s14, %d" % L_OX)
        a("v_add_u32 v143, s14, v2")
        a("s_lshl_b32 s14, s3, 2")
        a("s_add_u32 s14, s14, %d" % (L_OX + 2048))
        a("v_add_u32 v144, s14, v2")
        a("s_mul_i32 s14, s3, 3072")
        a("s_add_u32 s14, s14, %d" % L_OX)
        a("v_add_u32 v145, s14, v2")
        a("s_mul_i32 s60, s4, %d" % WOS)
        a("s_add_u32 s60, s60, %s" % hex(WOP))
        a("s_mul_i32 s14, s3, 9216")
        a("s_add_u32 s61, s60, s14")
        a("s_add_u32 s61, s61, 46080")
        a("s_mul_i32 s14, s3, 18432")
        a("s_add_u32 s14, s14, %d" % L_Y)
        a("s_mul_i32 s13, s3, 12288")
        a("s_add_u32 s60, s60, s13")
        a("s_add_u32 s13, s13, %d" % L_WA)

    def w2addr():
        a("s_lshl_b32 s6, s5, 2")
        a("s_add_u32 s6, s6, s3")
        a("s_mul_i32 s7, s6, 57")
        a("s_lshr_b32 s7, s7, 9")
        a("s_mul_i32 s8, s7, 9")
        a("s_sub_u32 s8, s6, s8")
        a("s_mul_i32 s9, s4, 18")
        a("s_add_u32 s9, s9, s7")
        a("s_mul_i32 s9, s9, %d" % (32 * 1152))
        a("s_lshl_b32 s12, s8, 7")
        a("s_add_u32 s76, s9, s12")
        for n in range(1, 4):
            a("s_add_u32 s%d, s76, %d" % (76 + n, n * 8 * 1152))
        a("s_mul_i32 s12, s4, 9")
        a("s_add_u32 s12, s12, s8")
        a("s_mul_i32 s12, s12, %d" % (4 * 18432))
        a("s_lshl_b32 s7, s7, 10")
        a("s_add_u32 s12, s12, s7")
        a("s_add_u32 s12, s12, %s" % hex(W2P))
        a("s_cmp_lt_u32 s6, 126")
        a("s_cselect_b32 s26, s12, %s" % hex(OOB))
        a("v_lshrrev_b32 v236, 3, v1")
        a("v_and_b32 v237, 7, v1")
        a("v_lshlrev_b32 v237, 4, v237")
        a("v_mad_u32_u24 v236, v236, s97, v237")

    def w2raw(n):
        return lambda: vm.op("buffer_load_dwordx4 %s, v236, s[36:39], s%d offen nt" % (q4(240 + 4 * n, "a"), 76 + n), "w2r")

    def w2pack1():
        if not W2D:
            return
        a("s_cmp_lg_u32 s45, 0")
        a("s_cbranch_scc1 W2_a")
        a("s_mul_i32 s6, s3, 18432")
        a("s_add_u32 s6, s6, %d" % (L_Y + 9216))
        a("v_add_u32 v236, s6, v2")
        for n in range(4):
            a("ds_write_b128 v236, %s offset:%d" % (q4(240 + 4 * n, "a"), n * 1024))
        a("v_bfe_u32 v237, v1, 2, 4")
        a("v_lshlrev_b32 v237, 7, v237")
        a("v_and_b32 v238, 3, v1")
        a("v_lshl_add_u32 v237, v238, 3, v237")
        a("v_add_u32 v237, s6, v237")
        for tl in range(4):
            a("ds_read_b64_tr_b16 %s, v237 offset:%d" % (q2(240 + tl * 4), tl * 32))
            a("ds_read_b64_tr_b16 %s, v237 offset:%d" % (q2(242 + tl * 4), tl * 32 + 2048))
        a("W2_a:")

    def w2pack2():
        if not W2D:
            return
        a("s_cmp_lg_u32 s45, 0")
        a("s_cbranch_scc1 W2_b")
        for tl in range(4):
            a("buffer_store_dwordx4 %s, v2, s[40:43], s26 offen%s" % (q4(240 + tl * 4), ST))
            a("s_add_u32 s26, s26, 18432")
        a("W2_b:")

    def qkv(pre):
        if not pre:
            for k in range(4):
                ydma1(0, k)()
            for t in range(4):
                wload1(0, t)()
            for k in range(4):
                ydma1(1, k)()
            for i in range(1, APRE):
                for t in range(4):
                    wload1(i, t)()
            if TOUCH:
                a("s_getpc_b64 s[36:37]")
                a("M_pc:")
                a("s_mov_b32 s38, L_code_end-M_pc")
                a("s_mov_b32 s39, 0x20000")
                a("s_lshr_b32 s6, s2, 3")
                a("s_lshl_b32 s6, s6, 2")
                a("s_add_u32 s6, s6, s3")
                a("s_lshl_b32 s6, s6, 9")
                a("v_lshlrev_b32 v249, 3, v1")
                vm.op("buffer_load_dword v250, v249, s[36:39], s6 offen", "t")
            attn_consts()
            if W2D:
                w2addr()
            ahead_y = 2
        else:
            for i in range(pre):
                vm.ops.append(("w", i))
            for G in range(3):
                for k in range(4):
                    ydma1(G, k)()
            ahead_y = 3
        vm.wait(("y", 0))
        a("s_barrier")
        if E("XP", 0) == 1:
            stamp(13)
        for T in range(5):
            yread1(0, T)()
        wo_list = [wodma(1, n) for n in range(9)] if pre else wo_all[:WOL]
        for i in range(18):
            if i + 1 < 18 and (i + 1) % 3 == 0:
                vm.wait(("y", (i + 1) // 3))
                a("s_barrier")
            a("s_waitcnt lgkmcnt(0)")
            vm.wait(("w", i))
            mem = []
            if i // 3 + ahead_y < 6:
                mem += [ydma1(i // 3 + ahead_y, k) for k in ((0, 3), (1,), (2,))[i % 3]]
            nxt = i + APRE
            if pre:
                nxt = pre + i - 1 if i >= 1 else None
                if nxt is not None and nxt - 16 >= i:
                    nxt = None
            if nxt is not None and nxt < 18:
                mem += [wload1(nxt, t) for t in range(4)]
            if (i >= 11) if pre else (nxt >= 18):
                take = -(-len(wo_list) // (18 - i))
                mem += wo_list[:take]
                wo_list = wo_list[take:]
            rds = [yread1(i + 1, T) for T in range(5)] if i + 1 < 18 else []
            slots = {}
            for k, f in enumerate(mem):
                slots.setdefault(1 + (k * 18) // len(mem), []).append(f)
            for k, f in enumerate(rds):
                slots.setdefault(2 * k, []).append(f)
            m = 0
            for T in range(5):
                y = q4(YF + (i % 2) * 20 + T * 4)
                for t, base in ((1, KA), (2, VA), (3, CA), (0, QA)):
                    if t == 0 and T == 0:
                        continue
                    d = base + (T - 1 if t == 0 else T) * 4
                    w = q4(wslot(i, t), "a")
                    c = "0" if i == 0 else q4(d)
                    A_, B_ = (y, w) if t == 2 else (w, y)
                    a("%s %s, %s, %s, %s" % (MF, q4(d), A_, B_, c))
                    for f in slots.get(m, []):
                        f()
                    m += 1
        assert not wo_list, len(wo_list)

    qkv(0)
    a("s_branch K1_attn")
    a("K1_second:")
    vm.done = -1
    vm.ops = []
    qkv(PF)
    a("K1_attn:")
    vm.ops = []
    vm.done = -1
    stamp(1)
    def wo_group(fs):
        def f():
            uid[0] += 1
            a("s_cmp_lg_u32 s45, 0")
            a("s_cbranch_scc1 W%d" % uid[0])
            n0 = len(vm.ops)
            for g in fs:
                g()
            del vm.ops[n0:]
            a("W%d:" % uid[0])
        return f

    assert WOL == 21
    vm.ops.append("wo")
    side = []
    XR = 208

    def k2_addr():
        a("s_mul_i32 s62, s3, 18432")
        a("s_add_u32 s62, s62, s47")
        a("s_add_u32 s62, s62, s44")
        a("s_mul_i32 s63, s4, 2304")
        a("s_add_u32 s63, s63, s62")
        a("v_and_b32 v220, 1, v3")
        a("v_lshlrev_b32 v220, 9, v220")
        a("v_lshl_add_u32 v220, v4, 4, v220")
        a("v_lshrrev_b32 v221, 5, v1")
        a("v_lshl_add_u32 v220, v221, 8, v220")
        a("v_mov_b32 v221, %s" % hex(OOB))
        a("v_cmp_eq_u32 vcc, 0, v3")
        a("v_cndmask_b32 v221, v221, v220, vcc")
        a("v_cndmask_b32 v222, 0, -1, vcc")
        a("s_add_u32 s65, s63, %s" % hex(oX1))
        a("s_sub_u32 s64, s63, s44")
        a("s_mul_i32 s6, s4, 144")
        a("s_sub_u32 s7, s62, s44")
        a("s_add_u32 s6, s6, s7")
        a("v_lshrrev_b32 v206, 4, v220")
        a("v_and_b32 v206, 0x30, v206")
        a("v_mad_u32_u24 v206, v4, s97, v206")
        a("s_cmp_eq_u32 s45, 0")
        a("s_cselect_b32 s64, s6, s64")
        a("s_cselect_b32 s6, 64, 1024")
        a("s_cselect_b64 s[8:9], -1, 0")
        a("v_cndmask_b32 v206, v220, v206, s[8:9]")
        a("v_add_u32 v207, s6, v206")
        a("v_add_u32 v223, s6, v207")
        a("v_cndmask_b32 v223, v221, v223, vcc")

    def xload(kk):
        def f():
            vm.op("buffer_load_dwordx4 %s, v%d, s[32:35], s64 offen%s" % (q4(XR + 4 * kk), (206, 207, 223)[kk], LD), "x")
        return f

    k2_addr()
    nop = lambda: None
    side += [xload(k) for k in range(3)] + [nop] * E("W2G", 0) + ([f for n in range(4) for f in (w2raw(n), nop, nop)] if W2D else [])
    cnt = [0]

    def v(text):
        a(text)
        cnt[0] += 1
        if cnt[0] % 4 == 0 and side:
            side.pop(0)()

    QO, KO, VP, X0, V2 = 148, 164, 184, 194, 196
    for T in range(5):
        xd = X0 if T == 0 else QO + (T - 1) * 4 + 2
        v("v_cvt_pk_bf16_f32 v%d, v%d, v%d" % (xd, CA + T * 4, CA + T * 4 + 1))
        a("ds_write_b16 v141, v%d offset:%d" % (xd, T * 32))
        a("ds_write_b16_d16_hi v141, v%d offset:%d" % (xd, T * 32 + 160))
    for T in range(5):
        v("v_cvt_pk_bf16_f32 v%d, v%d, v%d" % (KO + T * 4 + 2, CA + T * 4 + 2, CA + T * 4 + 3))
        v("v_cvt_pk_bf16_f32 v%d, v%d, v%d" % (KO + T * 4, KA + T * 4, KA + T * 4 + 1))
        v("v_cvt_pk_bf16_f32 v%d, v%d, v%d" % (KO + T * 4 + 1, KA + T * 4 + 2, KA + T * 4 + 3))
        v("v_mov_b32 v%d, 0" % (KO + T * 4 + 3))
        if T:
            q = QO + (T - 1) * 4
            v("v_cvt_pk_bf16_f32 v%d, v%d, v%d" % (q, QA + (T - 1) * 4, QA + (T - 1) * 4 + 1))
            v("v_cvt_pk_bf16_f32 v%d, v%d, v%d" % (q + 1, QA + (T - 1) * 4 + 2, QA + (T - 1) * 4 + 3))
            v("v_mov_b32 v%d, 0" % (q + 3))
    for T in range(5):
        a("ds_read_b64 %s, v142 offset:%d" % (q2(V2 + 2 * T), T * 32))
    SP = YF
    Ts = range(1, 5)
    for T in Ts:
        q = q4(QO + (T - 1) * 4)
        sp = SP + (T - 1) * 8
        a("%s %s, %s, %s, %s" % (MF, q4(sp), q4(KO + (T - 1) * 4), q, q4(SM) if T == 1 else "0"))
        a("%s %s, %s, %s, 0" % (MF, q4(sp + 4), q4(KO + T * 4), q))
    for T in range(5):
        v("v_cvt_pk_bf16_f32 v%d, v%d, v%d" % (VP + 2 * T, VA + T * 4, VA + T * 4 + 1))
        v("v_cvt_pk_bf16_f32 v%d, v%d, v%d" % (VP + 2 * T + 1, VA + T * 4 + 2, VA + T * 4 + 3))
    a("s_mov_b32 s19, %s" % f32bits((18.0 ** -0.5) * math.log2(math.e)))
    W = lambda T, k: 16 + (T - 1) * 8 + k
    for T in Ts:
        sp = SP + (T - 1) * 8
        v("v_cndmask_b32 v%d, v%d, v%d, s[70:71]" % (W(T, 2), sp + 4, sp + 5))
        v("v_cndmask_b32 v%d, v%d, v%d, s[70:71]" % (W(T, 3), sp + 0, sp + 1))
        v("v_cndmask_b32 v%d, v%d, v%d, s[70:71]" % (W(T, 4), sp + 6, sp + 7))
        v("v_cndmask_b32 v%d, v%d, v%d, s[70:71]" % (W(T, 5), sp + 2, sp + 3))
        v("v_cndmask_b32 v%d, v%d, v%d, s[72:73]" % (W(T, 0), W(T, 3), W(T, 2)))
        v("v_cndmask_b32 v%d, v%d, v%d, s[74:75]" % (W(T, 1), W(T, 5), W(T, 4)))
        v("v_max_f32 v%d, v%d, v%d" % (W(T, 2), W(T, 0), W(T, 1)))
        v("v_mov_b32 v%d, v%d" % (W(T, 3), W(T, 2)))

    def xlane(op):
        for T in Ts:
            v("v_permlane16_swap_b32 v%d, v%d" % (W(T, 2), W(T, 3)))
        for T in Ts:
            v("%s v%d, v%d, v%d" % (op, W(T, 2), W(T, 2), W(T, 3)))
            v("v_mov_b32 v%d, v%d" % (W(T, 3), W(T, 2)))
        for T in Ts:
            v("v_permlane32_swap_b32 v%d, v%d" % (W(T, 2), W(T, 3)))
        for T in Ts:
            v("%s v%d, v%d, v%d" % (op, W(T, 2), W(T, 2), W(T, 3)))

    xlane("v_max_f32")
    for T in Ts:
        v("v_sub_f32 v%d, v%d, v%d" % (W(T, 0), W(T, 0), W(T, 2)))
        v("v_sub_f32 v%d, v%d, v%d" % (W(T, 1), W(T, 1), W(T, 2)))
        v("v_mul_f32 v%d, s19, v%d" % (W(T, 0), W(T, 0)))
        v("v_mul_f32 v%d, s19, v%d" % (W(T, 1), W(T, 1)))
    for T in Ts:
        v("v_exp_f32 v%d, v%d" % (W(T, 0), W(T, 0)))
        v("v_exp_f32 v%d, v%d" % (W(T, 1), W(T, 1)))
    for T in Ts:
        v("v_add_f32 v%d, v%d, v%d" % (W(T, 2), W(T, 0), W(T, 1)))
        v("v_mov_b32 v%d, v%d" % (W(T, 3), W(T, 2)))
    xlane("v_add_f32")
    for T in Ts:
        v("v_rcp_f32 v%d, v%d" % (W(T, 2), W(T, 2)))
    for T in Ts:
        v("v_mul_f32 v%d, v%d, v%d" % (W(T, 0), W(T, 0), W(T, 2)))
        v("v_mul_f32 v%d, v%d, v%d" % (W(T, 1), W(T, 1), W(T, 2)))
        v("v_cvt_pk_bf16_f32 v%d, v%d, v%d" % (W(T, 0), W(T, 0), W(T, 0)))
        v("v_cvt_pk_bf16_f32 v%d, v%d, v%d" % (W(T, 1), W(T, 1), W(T, 1)))
        v("v_and_b32 v%d, v%d, v%d" % (W(T, 4), W(T, 0), MSK + 0))
        v("v_and_b32 v%d, v%d, v%d" % (W(T, 5), W(T, 1), MSK + 1))
        v("v_and_b32 v%d, v%d, v%d" % (W(T, 6), W(T, 0), MSK + 2))
        v("v_and_b32 v%d, v%d, v%d" % (W(T, 7), W(T, 1), MSK + 3))
    while side:
        side.pop(0)()
    a("s_waitcnt lgkmcnt(0)")
    for T in Ts:
        sp = SP + (T - 1) * 8
        p = q4(W(T, 4))
        a("%s %s, %s, %s, 0" % (MF, q4(sp), q4(VP + 2 * (T - 1)), p))
        a("%s %s, %s, %s, 0" % (MF, q4(sp + 4), q4(V2 + 2 * (T - 1)), p))
    a("s_add_u32 s66, s62, %s" % hex(oO))
    a("s_lshl_b32 s67, s4, 11")
    a("s_add_u32 s67, s67, s66")
    a("s_lshl_b32 s68, s4, 8")
    a("s_add_u32 s68, s68, s66")
    a("s_add_u32 s68, s68, 16384")
    for T in Ts:
        sp = SP + (T - 1) * 8
        o = 48 + (T - 1) * 4
        cvt(o, sp, sp + 1)
        cvt(o + 1, sp + 2, sp + 3)
        cvt(o + 2, sp + 4, sp + 5)
        a("ds_write_b64 v143, %s offset:%d" % (q2(o), (T - 1) * 3072))
        a("ds_write_b32 v144, v%d offset:%d" % (o + 2, (T - 1) * 3072))
    a("s_waitcnt lgkmcnt(0)")
    vm.wait("wo")
    a("s_barrier")
    for st in range(3):
        a("ds_read_b128 %s, v145 offset:%d" % (q4(224 + st * 4), st * 1024))
    for st in range(3):
        a("s_waitcnt lgkmcnt(%d)" % (2 - st))
        if st < 2:
            vm.op("buffer_store_dwordx4 %s, v2, s[40:43], s67 offen offset:%d%s" % (q4(224 + st * 4), st * 1024, STF), "st")
        else:
            vm.op("buffer_store_dwordx4 %s, v221, s[40:43], s68 offen%s" % (q4(232), STF), "st")
    stamp(2)

    WS = 48
    ACC, FIN, AUGW, TMP, KC, AB = 144, 160, 176, 180, 192, 204
    PK = 204

    def ring(q):
        return 16 + (q % NR) * 4

    def m_voffs():
        a("s_mul_i32 s9, s4, 36")
        a("s_add_u32 s9, s9, s3")
        a("s_mul_i32 s11, s9, 18432")
        a("s_add_u32 s11, s11, %s" % hex(W1P))
        a("v_add_u32 v7, s11, v2")
        for k in range(1, 5):
            a("v_add_u32 v%d, %d, v7" % (7 + k, 4096 * k))
        a("s_lshl_b32 s11, s9, 8")
        a("s_add_u32 s11, s11, %s" % hex(AUG))
        a("v_lshl_add_u32 v12, v4, 4, s11")
        for n in range(9):
            a("s_mov_b32 s%d, %d" % (WS + n, n * 4 * 18432))

    W2T, STT = 76, 57
    sst = lambda n: (57 + n) if n < 3 else (85 + n - 3)

    def mload(q):
        def f():
            n, s = divmod(q, 18)
            sr = WS + n if n < 9 else W2T + n - 9
            vm.op("buffer_load_dwordx4 %s, v%d, s[40:43], s%d offen offset:%d" % (q4(ring(q)), 7 + s // 4, sr, (s % 4) * 1024), ("m", q))
        return f

    def aload(n):
        vm.op("buffer_load_dwordx4 %s, v12, s[40:43], s%d offen" % (q4(AUGW), 91), ("aug", n))

    def kslot(ks, tl):
        return ((ks % 12) * 5 + tl) * 4

    def kread(ks, tl):
        def f():
            base, off = (13, ks * 4608) if ks < 10 else (14, ((ks - 10) >> 1) * 18432 + ((ks - 10) & 1) * 4608)
            if tl == 4:
                base += 2
            lg.op("ds_read_b128 %s, v%d offset:%d" % (q4(kslot(ks, tl), "a"), base if base != 16 else 6, off + tl * 1024), ("k", ks))
        return f

    def k2_pre():
        a("v_add_u32 v13, %d, v2" % L_WA)
        a("v_add_u32 v14, %d, v2" % L_WB)
        a("v_and_b32 v15, 7, v4")
        a("v_lshlrev_b32 v15, 4, v15")
        a("v_lshl_add_u32 v15, v3, 7, v15")
        a("v_add_u32 v6, %d, v15" % L_WB)
        a("v_add_u32 v15, %d, v15" % L_WA)
        for ks in range(K2PRE):
            for tl in range(5):
                kread(ks, tl)()

    XU = 224
    def x_unpack():
        for k in range(12):
            unpack(XU + 2 * k, XR + k)

    m_voffs()
    hop("st", pre_a=[mload(q) for q in range(8)],
        pre_b=[k2_pre] + [mload(q) for q in range(8, 18)] + [x_unpack])
    stamp(3)

    OFR, KAC = 88, 160
    a("v_add_u32 v5, 4096, v2")
    rest = [kread(ks, tl) for ks in range(K2PRE, 12) for tl in range(5)]
    a("s_add_u32 s14, s66, 8192")
    a("s_add_u32 s15, s66, 16384")

    def oload(ks):
        vm.op("buffer_load_dwordx4 %s, v%d, s[40:43], s%d offen offset:%d%s" % (q4(OFR + ks * 4), (2, 5)[(ks % 8) // 4], (66, 14, 15)[ks // 8], (ks % 4) * 1024, LD), ("o", ks))

    OA = E("OA", 10)
    for ks in range(OA):
        oload(ks)
        for f in rest[:3]:
            f()
        rest = rest[3:]
    for f in rest:
        f()
    for ks in range(18):
        vm.wait(("o", ks))
        lg.wait(("k", ks))
        for tl in range(5):
            a("%s %s, %s, %s, %s" % (MF, q4(KAC + tl * 4), q4(kslot(ks, tl), "a"), q4(OFR + ks * 4), "0" if ks == 0 else q4(KAC + tl * 4)))
            if ks < 6:
                kread(ks + 12, tl)()
            if tl in (0, 2) and OA + 2 * ks + tl // 2 < 18:
                oload(OA + 2 * ks + tl // 2)
    if E("XP", 0):
        stamp(14)
    TP, TU = 180, 88
    for tl in range(5):
        cvt(TP + 2 * tl, KAC + 4 * tl, KAC + 4 * tl + 1)
        cvt(TP + 2 * tl + 1, KAC + 4 * tl + 2, KAC + 4 * tl + 3)
    for kk in range(3):
        a("v_permlane16_swap_b32 v%d, v%d" % (TP + 4 * kk, TP + 4 * kk + 2))
        a("v_permlane16_swap_b32 v%d, v%d" % (TP + 4 * kk + 1, TP + 4 * kk + 3))
    for k in range(8, 12):
        a("v_and_b32 v%d, v%d, v222" % (TP + k, TP + k))
    for kk in range(3):
        for k in range(4 * kk, 4 * kk + 4):
            unpack(TU + 2 * k, TP + k)
        for k in range(4 * kk, 4 * kk + 4):
            a("v_pk_add_f32 %s, %s, %s" % (q2(TU + 2 * k), q2(TU + 2 * k), q2(XU + 2 * k)))
        for k in range(4 * kk, 4 * kk + 4):
            cvt(XR + k, TU + 2 * k, TU + 2 * k + 1)
        vm.op("buffer_store_dwordx4 %s, v%d, s[40:43], s65 offen offset:%d%s" % (q4(XR + 4 * kk), 220 if kk < 2 else 221, kk * 1024, STF), "st")
    for k in range(12):
        unpack(TU + 2 * k, XR + k)
    S0 = 112
    a("v_pk_add_f32 %s, %s, %s" % (q2(S0), q2(TU), q2(TU + 2)))
    a("v_pk_add_f32 %s, %s, %s" % (q2(S0 + 2), q2(TU + 4), q2(TU + 6)))
    for k in range(4, 12, 2):
        a("v_pk_add_f32 %s, %s, %s" % (q2(S0), q2(S0), q2(TU + 2 * k)))
        a("v_pk_add_f32 %s, %s, %s" % (q2(S0 + 2), q2(S0 + 2), q2(TU + 2 * k + 2)))
    a("v_pk_add_f32 %s, %s, %s" % (q2(S0), q2(S0), q2(S0 + 2)))
    a("v_add_f32 v%d, v%d, v%d" % (S0, S0, S0 + 1))
    xsum(S0, S0 + 1)
    a("v_mul_f32 v%d, %s, v%d" % (S0 + 4, f32bits(1.0 / 72.0), S0))
    a("v_sub_f32 v%d, 0, v%d" % (S0 + 6, S0 + 4))
    a("v_mov_b32 v%d, v%d" % (S0 + 7, S0 + 6))
    a("v_and_b32 v%d, v%d, v222" % (S0 + 8, S0 + 6))
    a("v_mov_b32 v%d, v%d" % (S0 + 9, S0 + 8))
    for k in range(12):
        a("v_pk_add_f32 %s, %s, %s" % (q2(TU + 2 * k), q2(TU + 2 * k), q2(S0 + 6 if k < 8 else S0 + 8)))
    a("v_pk_mul_f32 %s, %s, %s" % (q2(S0), q2(TU), q2(TU)))
    a("v_pk_mul_f32 %s, %s, %s" % (q2(S0 + 2), q2(TU + 2), q2(TU + 2)))
    for k in range(2, 12):
        r = S0 + 2 * (k % 2)
        a("v_pk_fma_f32 %s, %s, %s, %s" % (q2(r), q2(TU + 2 * k), q2(TU + 2 * k), q2(r)))
    a("v_pk_add_f32 %s, %s, %s" % (q2(S0), q2(S0), q2(S0 + 2)))
    a("v_add_f32 v%d, v%d, v%d" % (S0 + 5, S0, S0 + 1))
    xsum(S0 + 5, S0 + 1)
    a("s_lshl_b32 s15, s5, 12")
    a("s_add_u32 s69, s15, s44")
    a("s_add_u32 s69, s69, %s" % hex(oST))
    a("s_lshl_b32 s15, s4, 9")
    a("s_lshl_b32 s19, s3, 7")
    a("s_add_u32 s15, s15, s19")
    a("s_add_u32 s15, s15, s69")
    a("v_lshrrev_b32 v%d, 1, v221" % (S0 + 1))
    vm.op("buffer_store_dwordx2 %s, v%d, s[40:43], s15 offen%s" % (q2(S0 + 4), S0 + 1, STF), "st")
    stamp(4)

    def m_setup():
        mod_small("s6", "s5", MROT)
        a("s_mul_i32 s6, s6, %d" % (NROT // MROT))
        a("s_mul_i32 s10, s3, %d" % (8 * 18432))
        a("s_add_u32 s10, s10, %s" % hex(W2P - W1P))
        a("s_lshl_b32 s11, s5, 3")
        a("s_add_u32 s11, s11, s4")
        a("s_mul_i32 s11, s11, %d" % TB)
        if PSHARE:
            a("s_add_u32 s11, s11, %s" % hex(PARTB))
        else:
            a("s_add_u32 s11, s11, s44")
            a("s_add_u32 s11, s11, %s" % hex(oPART))
        a("s_mul_i32 s14, s3, 4608")
        a("s_add_u32 s11, s11, s14")
        for n in range(9):
            a("s_mul_i32 s%d, s6, 18432" % (W2T + n))
            a("s_add_u32 s%d, s%d, s10" % (W2T + n, W2T + n))
            a("s_lshl_b32 s%d, s6, 9" % sst(n))
            a("s_add_u32 s%d, s%d, s11" % (sst(n), sst(n)))
            if n < NROT - 1:
                a("s_add_u32 s6, s6, 1")
                a("s_cmp_eq_u32 s6, %d" % NROT)
                a("s_cselect_b32 s6, 0, s6")
            else:
                a("s_mov_b32 s6, %d" % (n + 1))
        a("v_add_u32 v13, 36864, v2")
        a("v_add_u32 v14, %d, v2" % TB)
        a("v_add_u32 v15, %d, v2" % (TB + 36864))
        a("v_and_b32 v5, 1, v3")
        a("v_mul_u32_u24 v5, 18432, v5")
        a("v_lshl_add_u32 v5, v4, 4, v5")
        a("v_lshrrev_b32 v6, 5, v1")
        a("v_lshl_add_u32 v5, v6, 8, v5")
        a("v_add_u32 v6, 36864, v5")
        a("s_lshr_b32 s14, s3, 1")
        a("s_lshl_b32 s14, s14, 10")
        a("s_and_b32 s15, s3, 1")
        a("s_lshl_b32 s15, s15, 3")
        a("s_add_u32 s14, s14, s15")
        a("v_add_u32 v222, s14, v14")
        a("v_add_u32 v223, s14, v15")
        a("v_lshlrev_b32 v220, 3, v1")
        a("s_mul_i32 s8, s3, 18432")
        a("s_add_u32 s62, s62, %s" % hex(oX1))
        a("s_mov_b32 s91, 0")

    def w2arrive():
        if W2D:
            a("s_add_u32 s23, s4, 256")
            a("s_mul_i32 s23, s23, %d" % CST)
            a("s_cmp_lg_u32 s45, 0")
            a("s_cbranch_scc1 W2_c")
            arrive("s23", ret=False)
            a("W2_c:")

    hop("st", pre_a=[w2pack1] + [mload(q) for q in range(26, 32)],
        pre_b=[m_setup, lambda: aload(0)] + [mload(q) for q in range(18, 26)])
    stamp(5)

    def fr(T, s):
        k = s * 4 + T
        return q4(k * 4, "a") if k < 64 else q4(224 + (k - 64) * 4)

    def xdma(s):
        a("s_add_u32 m0, s8, %d" % (s * 1024))
        a("s_add_u32 s11, s62, %d" % (s * 1024))
        vm.op("buffer_load_dwordx4 v2, s[40:43], s11 offen%s lds" % LD, ("y", XST[s]))

    a("s_barrier")
    XA = E("XA", 14)
    for s in range(XA):
        xdma(s)
        if s == 2:
            for j in range(8):
                vm.op("buffer_load_dwordx2 %s, v220, s[40:43], s69 offen offset:%d%s" % (q2(FIN + 2 * j), j * 512, LD), "stat")
    late = []

    c0 = -2.0 * math.sqrt(2.0 / math.pi) * math.log2(math.e)

    def stat_ops():
        ops = []
        e = lambda t, c=4: ops.append((t, c))
        m = lambda j: FIN + 2 * j
        t0 = TMP
        MEAN, VAR, M1, S1, M2, S2, RS = t0, t0 + 1, t0 + 2, t0 + 3, t0 + 4, t0 + 5, t0 + 6
        ops.append(("WAIT", 0))
        e("v_add_f32 v%d, v%d, v%d" % (MEAN, m(0), m(1)))
        e("v_add_f32 v%d, v%d, v%d" % (VAR, m(0) + 1, m(1) + 1))
        for j in range(2, 8):
            e("v_add_f32 v%d, v%d, v%d" % (MEAN, MEAN, m(j)))
            e("v_add_f32 v%d, v%d, v%d" % (VAR, VAR, m(j) + 1))
        e("v_mul_f32 v%d, %s, v%d" % (MEAN, f32bits(0.125), MEAN))
        e("v_mul_f32 v%d, %s, v%d" % (VAR, f32bits(1.0 / 72.0), VAR))
        for j in range(8):
            e("v_sub_f32 v%d, v%d, v%d" % (m(j), m(j), MEAN))
        for j in range(8):
            e("v_fmac_f32 v%d, v%d, v%d" % (VAR, m(j), m(j)))
        e("v_mul_f32 v%d, %s, v%d" % (VAR, f32bits(0.125), VAR))
        ln_scalars(MEAN, VAR, M1, S1, e)
        e("v_rcp_f32 v%d, v%d" % (RS, S1), 8)
        e("v_sub_f32 v%d, v%d, v%d" % (MEAN, MEAN, M1))
        e("v_mul_f32 v%d, v%d, v%d" % (MEAN, MEAN, RS))
        e("v_mul_f32 v%d, v%d, v%d" % (VAR, VAR, RS))
        e("v_mul_f32 v%d, v%d, v%d" % (VAR, VAR, RS))
        ln_scalars(MEAN, VAR, M2, S2, e)
        MU, R = M1, S1
        e("v_fmac_f32 v%d, v%d, v%d" % (MU, M2, S1))
        e("v_mul_f32 v%d, v%d, v%d" % (R, S1, S2))
        D0, D1, D2, H = t0 + 7, t0 + 8, t0 + 9, t0 + 10
        e("v_cvt_pk_bf16_f32 v%d, v%d, v%d" % (D1, MU, R))
        e("v_lshlrev_b32 v%d, 16, v%d" % (H, D1))
        e("v_sub_f32 v%d, v%d, v%d" % (H, MU, H))
        e("v_cvt_pk_bf16_f32 v%d, v%d, v%d" % (D0, MU, H))
        e("v_and_b32 v%d, 0xffff0000, v%d" % (H, D1))
        e("v_sub_f32 v%d, v%d, v%d" % (H, R, H))
        e("v_cvt_pk_bf16_f32 v%d, v%d, v%d" % (D2, MU, H))
        for T in range(4):
            e("v_cmp_eq_u32 vcc, %d, v3" % T)
            for k, d in enumerate((D0, D1, D0, D2)):
                e("v_cndmask_b32 v%d, 0, v%d, vcc" % (AB + 4 * T + k, d))
        r0, r1, r2, r3 = KC + 8, KC + 9, KC + 10, KC + 11
        e("v_mov_b32 v%d, v%d" % (r0, R))
        e("v_mov_b32 v%d, v%d" % (r2, R))
        e("v_permlane32_swap_b32 v%d, v%d" % (r0, r2))
        e("v_mov_b32 v%d, v%d" % (r1, r0))
        e("v_mov_b32 v%d, v%d" % (r3, r2))
        e("v_permlane16_swap_b32 v%d, v%d" % (r0, r1))
        e("v_permlane16_swap_b32 v%d, v%d" % (r2, r3))
        for T in range(4):
            e("v_rcp_f32 v%d, v%d" % (KC + T, KC + 8 + T), 8)
        for T in range(4):
            e("v_mul_f32 v%d, v%d, v%d" % (KC + 4 + T, KC + T, KC + T))
            e("v_mul_f32 v%d, %s, v%d" % (KC + T, f32bits(c0), KC + T))
            e("v_mul_f32 v%d, v%d, v%d" % (KC + 4 + T, KC + 4 + T, KC + T))
            e("v_mul_f32 v%d, %s, v%d" % (KC + 4 + T, f32bits(0.044715), KC + 4 + T))
        return ops

    def gelu_ops(tl):
        ops = []
        for T in range(4):
            x = [FIN + 4 * T + r for r in range(4)]
            t = [TMP + (T % 2) * 6 + r for r in range(4)]
            pk = TMP + (T % 2) * 6 + 4
            if "nogelu" in ABL:
                ops.append(("v_cvt_pk_bf16_f32 v%d, v%d, v%d" % (pk, x[0], x[1]), 4))
                ops.append(("v_cvt_pk_bf16_f32 v%d, v%d, v%d" % (pk + 1, x[2], x[3]), 4))
                ops.append(("ds_write_b64 v%d, %s offset:%d" % ((222, 223)[T // 2], q2(pk), (T % 2) * 18432 + tl * 2048), 4))
                continue
            for r in range(4):
                ops.append(("v_mul_f32 v%d, v%d, v%d" % (t[r], x[r], x[r]), 4))
            for r in range(4):
                ops.append(("v_fma_f32 v%d, v%d, v%d, v%d" % (t[r], t[r], KC + 4 + T, KC + T), 4))
            for r in range(4):
                ops.append(("v_mul_f32 v%d, v%d, v%d" % (t[r], t[r], x[r]), 4))
            for r in range(4):
                ops.append(("v_exp_f32 v%d, v%d" % (t[r], t[r]), 8))
            for r in range(4):
                ops.append(("v_fma_f32 v%d, v%d, v%d, v%d" % (t[r], t[r], KC + 8 + T, KC + 8 + T), 4))
            for r in range(4):
                ops.append(("v_rcp_f32 v%d, v%d" % (t[r], t[r]), 8))
            for r in range(4):
                ops.append(("v_mul_f32 v%d, v%d, v%d" % (t[r], t[r], x[r]), 4))
            ops.append(("v_cvt_pk_bf16_f32 v%d, v%d, v%d" % (pk, t[0], t[1]), 4))
            ops.append(("v_cvt_pk_bf16_f32 v%d, v%d, v%d" % (pk + 1, t[2], t[3]), 4))
            ops.append(("ds_write_b64 v%d, %s offset:%d" % ((222, 223)[T // 2], q2(pk), (T % 2) * 18432 + tl * 2048), 4))
        return ops

    def out_ops(n2):
        ops = []
        for T in range(4):
            ops.append(("v_cvt_pk_bf16_f32 v%d, v%d, v%d" % (PK + 2 * T, FIN + 4 * T, FIN + 4 * T + 1), 4))
            ops.append(("v_cvt_pk_bf16_f32 v%d, v%d, v%d" % (PK + 2 * T + 1, FIN + 4 * T + 2, FIN + 4 * T + 3), 4))
            if T % 2 == 1:
                ops.append(("v_permlane16_swap_b32 v%d, v%d" % (PK + 2 * T - 2, PK + 2 * T), 4))
                ops.append(("v_permlane16_swap_b32 v%d, v%d" % (PK + 2 * T - 1, PK + 2 * T + 1), 4))
                ops.append(("buffer_store_dwordx4 %s, v%d, s[40:43], s%d offen%s" % (q4(PK + 2 * T - 2), (5, 6)[T // 2], sst(n2), STF), 4))
        return ops

    cur = [0]

    def emit_fill(op):
        if op == "WAIT":
            vm.wait("stat")
        elif op.startswith("ds_"):
            lg.op(op, "hw")
        elif op.startswith("buffer_store"):
            vm.op(op, "st")
            cur[0] += 1
            if cur[0] == 2 * NE1:
                vm.ops[-1] = "st5"
        elif op.startswith("PL"):
            pload(int(op[2:]))
        else:
            if E("E64", 0) and op.split()[0] in ("v_mul_f32", "v_exp_f32", "v_rcp_f32") and "0x" not in op:
                op = op.replace("_f32 ", "_f32_e64 ", 1)
            a(op)

    def act1(T, s, second):
        off = ((T % 2) * 18 + s) * 1024
        base = ((2, 13), (14, 15))[second][T // 2]
        lg.op("ds_read_b128 %s, v%d offset:%d" % (fr(T, s), base, off), ("act", second, s))

    DT, XQ, BQ, SEL, XP = 88, 108, 128, 148, 156
    PR = lambda n: 32 + 4 * n if n < 14 else 16 + 4 * (n - 14)
    order = [(k, st, hf) for k in range(5) for st in range(2) for hf in range(2) if not (k == 4 and st == 1)]

    def r_addr_ops():
        ops = []
        e = lambda t: ops.append((t, 4))
        e("s_lshr_b32 s6, s4, 1")
        e("s_mul_i32 s6, s6, 18432")
        e("s_and_b32 s7, s4, 1")
        e("s_lshl_b32 s7, s7, 7")
        e("s_add_u32 s6, s6, s7")
        e("s_mul_i32 s7, s3, 4608")
        e("s_add_u32 s6, s6, s7")
        e("s_add_u32 s6, s6, s44")
        e("s_lshl_b32 s7, s47, 3")
        e("s_add_u32 s48, s6, s7")
        if PSHARE:
            e("s_sub_u32 s48, s48, s44")
            e("s_add_u32 s48, s48, %s" % hex(PARTB))
        else:
            e("s_add_u32 s48, s48, %s" % hex(oPART))
        e("s_add_u32 s49, s48, %d" % (4 * TB))
        e("s_add_u32 s50, s48, 4096")
        e("s_add_u32 s51, s49, 4096")
        e("s_add_u32 s6, s6, s47")
        e("s_add_u32 s52, s6, %s" % hex(oX1))
        e("s_add_u32 s53, s52, 4096")
        e("s_add_u32 s54, s6, %s" % hex(LS + oXA))
        e("s_add_u32 s55, s6, %s" % hex(LS + oY))
        e("v_and_b32 v176, 7, v1")
        e("v_bfe_u32 v177, v1, 3, 1")
        e("v_lshlrev_b32 v178, 4, v176")
        e("v_lshl_add_u32 v178, v177, 8, v178")
        e("v_mul_u32_u24 v179, %d, v3" % TB)
        e("v_add_u32 v179, v179, v178")
        e("v_and_b32 v180, 1, v3")
        e("v_lshrrev_b32 v181, 1, v3")
        e("v_lshl_add_u32 v182, v181, 9, v178")
        e("v_lshl_add_u32 v183, v180, 10, v182")
        e("v_lshl_add_u32 v182, v180, 3, v182")
        e("v_lshlrev_b32 v184, 4, v177")
        e("v_lshl_add_u32 v184, v181, 5, v184")
        e("v_mul_u32_u24 v185, 1152, v176")
        e("v_add_u32 v185, v185, v184")
        e("v_lshl_add_u32 v185, v180, 6, v185")
        e("v_lshl_add_u32 v184, v180, 3, v184")
        e("v_mov_b32 v188, %s" % hex(OOB))
        e("v_cmp_eq_u32 vcc, 0, v3")
        e("v_add_u32 v186, 4096, v183")
        e("v_cndmask_b32 v186, v188, v186, vcc")
        e("v_cndmask_b32 v187, v188, v185, vcc")
        e("v_cmp_gt_u32 vcc, 2, v3")
        e("v_cndmask_b32 v188, 0, -1, vcc")
        e("s_lshl_b32 s66, s45, 31")
        e("s_add_u32 s60, s60, s66")
        for G in range(1, 6):
            e("s_add_u32 s%d, s66, %d" % (66 + G, G * 12288))
        return ops

    def r_setup():
        srd(36, 28, 0, 1152)
        a("s_mul_i32 s56, s3, 288")
        for k in range(5):
            vm.op("buffer_load_dwordx2 %s, v182, s[40:43], s%d offen offset:%d%s" % (q2(XP + 2 * k), 52 if k < 4 else 53, (k % 4) * 1024, LD), "rx")
            vm.op("buffer_load_dwordx2 %s, v184, s[36:39], s56 offen offset:%d" % (q2(XP + 10 + 2 * k), k * 64), "rx")
        a("v_and_b32 v189, 1, v4")
        a("v_lshlrev_b32 v189, 4, v189")
        a("v_mov_b32 v190, 0x3f80")
        a("v_lshlrev_b32 v189, v189, v190")
        a("v_lshrrev_b32 v190, 1, v4")
        for k in range(8):
            a("v_cmp_eq_u32 vcc, %d, v190" % k)
            a("v_cndmask_b32 v%d, 0, v189, vcc" % (SEL + k))
        a("v_lshlrev_b32 v190, 5, v176")
        a("s_lshl_b32 s7, s3, 3")
        a("v_add_u32 v191, s7, v190")


    def pload(n):
        k, st, hf = order[n]
        vm.op("buffer_load_dwordx4 %s, v179, s[40:43], s%d offen offset:%d%s" % (q4(PR(n)), 48 + hf + (2 if k == 4 else 0), ((4 * k + 2 * st) * 256) % 4096, LD), ("p", n))

    kpf = [wload1(i, t, "s%d" % (66 + i // 3)) for i in range(PF) for t in range(4)]
    PFT = E("PFT", 9)
    NQ = 18 * 18
    AHEAD = 3
    for n in range(18):
        gemm = 1 if n < 9 else 2
        npos = 19 if gemm == 1 else 18
        if n == 0:
            fill, g0, g1 = stat_ops(), E("SG0", 12), 70
        elif n <= 9:
            fill, g0, g1 = gelu_ops(n - 1), E("GG0", 0), (E("GG1", 74) if n < 9 else 50)
        elif n == 15:
            fill, g0, g1 = out_ops(n - 10) + r_addr_ops(), 8, 68
        else:
            fill, g0, g1 = out_ops(n - 10), 8, 24
        rd = n in (0, 9)
        if n == 0:
            vm.wait(("y", 0))
            a("s_barrier")
            if E("XP", 0):
                stamp(15)
        if W2D and n == E("W2R", 5):
            a("s_mov_b32 s16, 128")
            a("s_cmp_lg_u32 s45, 0")
            a("s_cbranch_scc1 W2_d")
            a("s_mov_b32 s16, 0")
            a("s_atomic_add s16, s[20:21], s23 glc")
            a("W2_d:")
        if W2D and n == 7:
            poll("128", offs=("s23",), issued="poll")
        if n == 16 and NE1:
            poll("s46", issued="poll")
            a("s_add_u32 s46, s46, 8")
        if n == 17:
            vm.wait("st")
            arrive(ret=False)
        if n == 1:
            stamp(6)
            if E("ALN", 0):
                a(".p2align 3")
                if E("ALN", 0) == 2:
                    a("s_nop 0")
        if n == 9:
            stamp(7)
            lg.wait("hw")
            a("s_barrier")
        if n == 10:
            stamp(8)
        if rd:
            for s in range(AHEAD):
                for T in range(4):
                    act1(T, s, n == 9)
        total = sum(c for _, c in fill)
        fi = spent = m = 0
        for s in range(npos):
            q = n * 18 + s
            if rd and s < 18:
                sa = s + AHEAD
                if sa < 18:
                    if n == 0 and XST[sa] != XST[sa - 1]:
                        vm.wait(("y", XST[sa]))
                        a("s_barrier")
                    if n == 9 and sa == 16:
                        assert fi == len(fill)
                        lg.wait("hw")
                        a("s_barrier")
                lg.wait(("act", n == 9, s))
            if n == 0 and s == 11:
                w2pack2()
            if W2D and n == 1 and s == 6:
                vm.wait(("m", 11 + NR))
                w2arrive()
            if NE1 and n == 10 + NE1 and s == 4:
                vm.wait("st5")
                arrive(ret=False)
            if NE1 and n == 15 and s == 10:
                a("s_mov_b32 s16, 0")
                a("s_atomic_add s16, s[20:21], s22 glc")
            if n == 16 and 7 <= s < 7 + 2 * NE1:
                pload(s - 7)
            if s == 18:
                assert fi == len(fill) or (n > 0 and fi > 3 * len(fill) // 4)
                vm.wait(("aug", n))
            elif s % WSTEP == 0:
                n0 = len(a.ins)
                for k in range(WSTEP):
                    vm.wait(("m", q + WSTEP - 1 - k))
                if E("E64", 0) and (len(a.ins) - n0) % 2:
                    a("s_nop 0")
            for T in range(4):
                last = s == npos - 1
                d = (FIN if last else ACC) + 4 * T
                c = "0" if s == 0 else q4(ACC + 4 * T)
                if s == 18:
                    a("%s %s, %s, %s, %s" % (MF, q4(d), q4(AUGW), q4(AB + 4 * T), c))
                else:
                    a("%s %s, %s, %s, %s" % (MF, q4(d), q4(ring(q)), fr(T, s), c))
                if rd and s + AHEAD < 18:
                    act1(T, s + AHEAD, n == 9)
                if n == 0 and T in (0, 2) and XA + 2 * s + T // 2 < 18:
                    xdma(XA + 2 * s + T // 2)
                elif n == 0 and T == 1 and late and XA + 2 * s >= 18:
                    late.pop(0)()
                if T == 3:
                    if s < 18 and q + NR < NQ:
                        if "noload" in ABL:
                            vm.ops.append(("m", q + NR))
                        elif n == 0 and XA + 2 * s < 18:
                            late.append(mload(q + NR))
                        else:
                            mload(q + NR)()
                    if n == 16 and 4 <= s < 16:
                        wodma(0, s - 4)()
                    if n == 16 and s == 16:
                        kw_voffs()
                    if n == 17:
                        for k in range(s * PFT // 18, (s + 1) * PFT // 18):
                            assert k // 4 <= s
                            kpf[k]()
                    if s == 18 and n < 8:
                        a("s_add_u32 s91, s91, 1024")
                        aload(n + 1)
                if fill and g0 <= m <= g1:
                    budget = total * (m - g0 + 1) / (g1 - g0 + 1)
                    while fi < len(fill) and spent + fill[fi][1] / 2 <= budget:
                        emit_fill(fill[fi][0])
                        spent += fill[fi][1]
                        fi += 1
                m += 1
        assert fi == len(fill), (n, fi, len(fill))
    for op, _ in out_ops(8):
        emit_fill(op)
    stamp(9)

    def r_unpack():
        vm.wait("rx")
        for k in range(8, 10):
            a("v_and_b32 v%d, v%d, v188" % (XP + k, XP + k))
            a("v_and_b32 v%d, v%d, v188" % (XP + 10 + k, XP + 10 + k))
        for k in range(10):
            unpack(XQ + 2 * k, XP + k)
            unpack(BQ + 2 * k, XP + 10 + k)


    def pmfma(n):
        k, st, hf = order[n]
        vm.wait(("p", n))
        a("%s %s, %s, %s, %s" % (MF, q4(DT + 4 * k), q4(SEL + 4 * st), q4(PR(n)), q4(BQ + 4 * k) if (st == 0 and hf == 0) else q4(DT + 4 * k)))

    def early():
        a("s_mov_b32 s16, 0")
        a("s_atomic_add s16, s[20:21], s22 glc")
        r_setup()
        poll("s46", issued="poll")
        a("s_add_u32 s46, s46, 8")
        for n in range(2 * NE1, 2 * NE1 + 6):
            pload(n)

    def early2():
        for n in range(2 * NE1 + 6, 14):
            pload(n)
        r_unpack()
        for n in range(2 * NE1):
            pmfma(n)

    kpf = kpf[PFT:]
    n2 = E("PFB", 0)
    hop("st", pre_a=[early], pre_b=[early2] + kpf[:n2])
    kpf = kpf[n2:]
    stamp(10)
    for n in range(14, 18):
        pload(n)
    for n in range(2 * NE1, 18):
        pmfma(n)
    if E("XP", 0) == 2:
        stamp(13)
    n4 = E("PFD", 0)
    for f in kpf[:n4]:
        f()
    kpf = kpf[n4:]
    TK = 192
    for k in range(10):
        cvt(TK + k, DT + 2 * k, DT + 2 * k + 1)
    for k in range(10):
        unpack(DT + 2 * k, TK + k)
    for k in range(10):
        a("v_pk_add_f32 %s, %s, %s" % (q2(DT + 2 * k), q2(DT + 2 * k), q2(XQ + 2 * k)))
    for k in range(10):
        cvt(TK + k, DT + 2 * k, DT + 2 * k + 1)
    for k in range(10):
        unpack(DT + 2 * k, TK + k)
    for kk in range(3):
        a("v_permlane16_swap_b32 v%d, v%d" % (TK + 4 * kk, TK + 4 * kk + 2))
        a("v_permlane16_swap_b32 v%d, v%d" % (TK + 4 * kk + 1, TK + 4 * kk + 3))
    a("s_cmp_eq_u32 s45, 0")
    a("s_cbranch_scc1 R_mid")
    srd(36, 30, 0, ACT)
    a("s_lshl_b32 s6, s5, 3")
    a("s_add_u32 s6, s6, s4")
    a("s_mul_i32 s6, s6, %d" % (8 * 1152))
    a("s_add_u32 s6, s6, s56")
    for kk in range(3):
        a("buffer_store_dwordx4 %s, v%d, s[36:39], s6 offen offset:%d" % (q4(TK + 4 * kk), 185 if kk < 2 else 187, kk * 128))
    stamp(11)
    rstamp(12)
    if os.environ.get("PDBG"):
        a("s_or_b32 s6, s2, s3")
        a("s_cmp_lg_u32 s6, 0")
        a("s_cbranch_scc1 L_exit2")
        a("s_load_dwordx2 s[6:7], s[0:1], %d" % KA_DBG)
        a("s_waitcnt vmcnt(0) lgkmcnt(0)")
        srd(36, 6, 0, 256)
        a("v_lshlrev_b32 v5, 2, v1")
        a("v_mov_b32 v6, %d" % (1 << 19))
        a("buffer_load_dwordx2 v[8:9], v6, s[92:95], 0 offen sc1")
        a("v_mov_b32 v6, %d" % ((1 << 19) + (P_MISC - 1) * 128))
        a("buffer_load_dwordx2 v[10:11], v6, s[92:95], 0 offen sc1")
        a("buffer_load_dword v12, v5, s[92:95], 0 offen offset:64 sc1")
        a("buffer_load_dword v13, off, s[92:95], 0 offset:%d sc1" % (128 + 64 + 44))
        a("s_waitcnt vmcnt(0)")
        a("v_sub_u32 v12, v12, v8")
        a("v_sub_u32 v13, v13, v8")
        a("v_sub_u32 v9, v9, v8")
        a("v_sub_u32 v11, v11, v8")
        a("v_cmp_gt_u32 vcc, 12, v1")
        a("v_mov_b32 v6, %s" % hex(OOB))
        a("v_cndmask_b32 v5, v6, v5, vcc")
        a("buffer_store_dword v12, v5, s[36:39], 0 offen")
        a("buffer_store_dword v13, off, s[36:39], 0 offset:48")
        a("buffer_store_dword v9, off, s[36:39], 0 offset:52")
        a("buffer_store_dword v11, off, s[36:39], 0 offset:56")
    a("L_exit2:")
    a("s_endpgm")
    a("R_mid:")
    for kk in range(3):
        vm.op("buffer_store_dwordx4 %s, v%d, s[40:43], s54 offen offset:%d%s" % (q4(TK + 4 * kk), 183 if kk < 2 else 186, (kk % 2) * 2048, ST), "st")
    S0 = XQ

    a("v_pk_add_f32 %s, %s, %s" % (q2(S0), q2(DT), q2(DT + 2)))
    a("v_pk_add_f32 %s, %s, %s" % (q2(S0 + 2), q2(DT + 4), q2(DT + 6)))
    for k in range(4, 10, 2):
        a("v_pk_add_f32 %s, %s, %s" % (q2(S0), q2(S0), q2(DT + 2 * k)))
        a("v_pk_add_f32 %s, %s, %s" % (q2(S0 + 2), q2(S0 + 2), q2(DT + 2 * k + 2)))
    a("v_pk_add_f32 %s, %s, %s" % (q2(S0), q2(S0), q2(S0 + 2)))
    a("v_add_f32 v%d, v%d, v%d" % (S0, S0, S0 + 1))
    MEAN, VAR, M, SD = S0 + 8, S0 + 9, S0 + 10, S0 + 12
    xsum(S0, S0 + 1, ror8=True)
    a("v_mul_f32 v%d, %s, v%d" % (S0 + 14, f32bits(-1.0 / 144.0), S0))
    a("v_mov_b32 v%d, v%d" % (S0 + 15, S0 + 14))
    a("v_and_b32 v%d, v%d, v188" % (S0 + 16, S0 + 14))
    a("v_mov_b32 v%d, v%d" % (S0 + 17, S0 + 16))
    for k in range(10):
        a("v_pk_add_f32 %s, %s, %s" % (q2(BQ + 2 * k), q2(DT + 2 * k), q2(S0 + 14 if k < 8 else S0 + 16)))
    a("v_pk_mul_f32 %s, %s, %s" % (q2(S0), q2(BQ), q2(BQ)))
    a("v_pk_mul_f32 %s, %s, %s" % (q2(S0 + 2), q2(BQ + 2), q2(BQ + 2)))
    for k in range(2, 10):
        r = S0 + 2 * (k % 2)
        a("v_pk_fma_f32 %s, %s, %s, %s" % (q2(r), q2(BQ + 2 * k), q2(BQ + 2 * k), q2(r)))
    a("v_pk_add_f32 %s, %s, %s" % (q2(S0), q2(S0), q2(S0 + 2)))
    a("v_add_f32 v%d, v%d, v%d" % (S0 + 15, S0, S0 + 1))
    xsum(S0 + 15, S0 + 1, ror8=True)
    a("ds_write_b64 v191, %s" % q2(S0 + 14))
    a("s_waitcnt lgkmcnt(0)")
    a("s_barrier")
    a("ds_read_b128 %s, v190" % q4(S0))
    a("ds_read_b128 %s, v190 offset:16" % q4(S0 + 4))
    a("s_waitcnt lgkmcnt(0)")
    a("v_pk_add_f32 %s, %s, %s" % (q2(MEAN), q2(S0), q2(S0 + 2)))
    a("v_pk_add_f32 %s, %s, %s" % (q2(M), q2(S0 + 4), q2(S0 + 6)))
    a("v_pk_add_f32 %s, %s, %s" % (q2(MEAN), q2(MEAN), q2(M)))
    a("v_mul_f32 v%d, %s, v%d" % (MEAN, f32bits(-0.25), MEAN))
    a("v_mul_f32 v%d, %s, v%d" % (VAR, f32bits(1.0 / 144.0), VAR))
    for k in range(4):
        a("v_add_f32 v%d, v%d, v%d" % (S0 + 2 * k, S0 + 2 * k, MEAN))
    for k in range(4):
        a("v_fmac_f32 v%d, v%d, v%d" % (VAR, S0 + 2 * k, S0 + 2 * k))
    a("v_mul_f32 v%d, %s, v%d" % (VAR, f32bits(0.25), VAR))
    ln_scalars(MEAN, VAR, M, SD)
    a("v_rcp_f32 v%d, v%d" % (SD, SD))
    a("v_sub_f32 v%d, 0, v%d" % (M, M))
    a("v_mov_b32 v%d, v%d" % (M + 1, M))
    a("v_mov_b32 v%d, v%d" % (SD + 1, SD))
    for k in range(10):
        a("v_pk_add_f32 %s, %s, %s" % (q2(DT + 2 * k), q2(DT + 2 * k), q2(M)))
    TY = 204
    for k in range(10):
        cvt(TY + k, DT + 2 * k, DT + 2 * k + 1)
    for k in range(10):
        unpack(DT + 2 * k, TY + k)
    for k in range(10):
        a("v_pk_mul_f32 %s, %s, %s" % (q2(DT + 2 * k), q2(DT + 2 * k), q2(SD)))
    for k in range(10):
        cvt(TY + k, DT + 2 * k, DT + 2 * k + 1)
    for kk in range(3):
        a("v_permlane16_swap_b32 v%d, v%d" % (TY + 4 * kk, TY + 4 * kk + 2))
        a("v_permlane16_swap_b32 v%d, v%d" % (TY + 4 * kk + 1, TY + 4 * kk + 3))
    for kk in range(3):
        vm.op("buffer_store_dwordx4 %s, v%d, s[40:43], s55 offen offset:%d%s" % (q4(TY + 4 * kk), 183 if kk < 2 else 186, (kk % 2) * 2048, ST), "st")
    stamp(11)

    def next_layer():
        a("s_add_u32 s44, s44, %s" % hex(LS))
        a("s_mov_b32 s45, 1")
        a("s_add_u32 s32, s24, %s" % hex(LB + LS + oXA))
        a("s_addc_u32 s33, s25, 0")
        k1_setup(False)
        attn_consts()
        for n in range(4):
            a("s_mov_b32 s%d, %s" % (76 + n, hex(OOB)))
        a("v_mov_b32 v236, 0")

    a("s_lshr_b32 s6, s4, 1")
    a("s_lshl_b32 s7, s5, 2")
    a("s_add_u32 s6, s6, s7")
    a("s_mul_i32 s6, s6, %d" % CST)
    a("s_add_u32 s19, s6, %d" % (128 * CST))
    a("s_add_u32 s23, s22, %d" % (128 * CST))
    a("s_max_u32 s7, s7, 1")
    a("s_mul_i32 s7, s7, %d" % CST)
    a("s_add_u32 s26, s7, %d" % (127 * CST))
    for f in kpf[:10]:
        f()
    vm.wait("st")
    arrive("s19", ret=False)
    for f in kpf[10:]:
        f()
    next_layer()
    poll("8", offs=("s23", "s26"))
    if PROF:
        a("s_add_u32 s96, s96, 128")
    stamp(0)
    a("s_branch K1_second")
    a("L_code_end:")
    a("s_endpgm")


def descriptor(label, vgpr, accum, sgpr):
    return """.amdhsa_kernel %s
  .amdhsa_next_free_vgpr %d
  .amdhsa_next_free_sgpr %d
  .amdhsa_accum_offset %d
  .amdhsa_group_segment_fixed_size 0
  .amdhsa_kernarg_size 88
  .amdhsa_user_sgpr_count 2
  .amdhsa_user_sgpr_kernarg_segment_ptr 1
  .amdhsa_system_sgpr_workgroup_id_x 1
.end_amdhsa_kernel
""" % (label, vgpr, sgpr, accum)


def build():
    launches = [
        ("p_kernel", P_END, 576, 36864 + 2304, 64, 64, 64),
        ("main_kernel", 256, 256, MAIN_LDS, 512, 256, 102),
    ]
    p_kernel()
    main_kernel()
    for e in a.check_branch_seams():
        print("WARN", e, file=sys.stderr)
    head = "; generated by work/gen2.py (hand-written generator)\n"
    for l, g, b, lds, _, _, _ in launches:
        head += "; @launch kernel=%s grid=(%d,1,1) block=(%d,1,1) lds=%d\n" % (l, g, b, lds)
    head += '.amdgcn_target "amdgcn-amd-amdhsa--gfx950"\n.text\n'
    tail = '.section .rodata,"a"\n'
    for l, g, b, lds, v, ac, sg in launches:
        tail += ".p2align 6\n" + descriptor(l, v, ac, sg)
    return head + a.text() + tail


if __name__ == "__main__":
    out = sys.argv[1] if len(sys.argv) > 1 else "cdna_kernels/%s.s" % NAME
    open(out, "w").write(build())
    print("wrote", out)
```

```python
import sys, math, os
from asmlib import Asm, f32bits

NAME = "interleave_layers__sliding_local_dilated__mixer_channel_mlp__prompt"
ACT = 2048 * 576 * 2
TB = 73728
WOS = 82944
WQKVP = 0
WOP = WQKVP + 2304 * 1024
W1P = WOP + 672 * 1024
W2P = W1P + 5184 * 1024
AUG = W2P + 5184 * 1024
CNT = AUG + 72 * 1024
CST = int(os.environ.get('CST', '128'))
CNTB = (288 * CST + 4095) // 4096 * 4096
LB = CNT + CNTB
oY, oO, oXA, oX1 = 0, ACT, 2 * ACT, 3 * ACT
oST = 4 * ACT
PSHARE = int(os.environ.get("PSHARE", "0"))
oPART = 4 * ACT + 128 * 1024
LS = oPART + (0 if PSHARE else 8 * ACT)
WS_USED = LB + 2 * LS + (8 * ACT if PSHARE else 0)
PARTB = LB + 2 * LS
WS_BYTES = 268435456
OOB = 0x80000000
ST = " sc1"
LD = " sc1"
STAMP = 200 * 1024 * 1024

E = lambda n, d: int(os.environ.get(n, str(d)))
PROF = os.environ.get("PROF", "")
MAPB = E("MAPB", 2)
MROT = E("MROT", 3)
AROT = E("AROT", 2)
APRE = E("APRE", 3)
PF = E("PF", 9)
K2PRE = E("K2PRE", 6)
TOUCH = E("TOUCH", 0)
NE1 = E("NE1", 0)
NROT = NE1 if NE1 else 7
PNT = os.environ.get("PNT", " nt").replace("_", " ")
PV = E("PV", 72)
ABL = os.environ.get("ABL", "")
XST = {0: [s // 6 for s in range(18)], 1: [0] * 3 + [1] * 5 + [2] * 5 + [3] * 5}[E("XS", 1)]
STF = "" if E("FAST", 0) else ST
WSTEP = E("WSTEP", 2)
WOL = 21
W2D = E("W2D", 1)
MLD = os.environ.get("MLD", "").replace("_", " ")
GROT = E("GROT", 1)
NR = 32
SPIN = 1 << 18

KA_X, KA_WQKV, KA_WO, KA_BX, KA_W1, KA_B1, KA_W2, KA_B2, KA_OUT, KA_DBG, KA_WS = [8 * i for i in range(11)]
a = Asm()
MF = "v_mfma_f32_16x16x32_bf16"
q4 = lambda b, k="v": "%s[%d:%d]" % (k, b, b + 3)
q2 = lambda b: "v[%d:%d]" % (b, b + 1)


def srd(d, base, off, nbytes):
    if off == 0:
        a("s_mov_b32 s%d, s%d" % (d, base))
        a("s_mov_b32 s%d, s%d" % (d + 1, base + 1))
    else:
        a("s_add_u32 s%d, s%d, %s" % (d, base, off if isinstance(off, str) else hex(off)))
        a("s_addc_u32 s%d, s%d, 0" % (d + 1, base + 1))
    a("s_mov_b32 s%d, %s" % (d + 2, hex(nbytes)))
    a("s_mov_b32 s%d, 0x20000" % (d + 3))


def entry(label):
    a(".p2align 8")
    a(".globl %s" % label)
    a(".type %s,@function" % label)
    a("%s:" % label)


class VM:
    def __init__(self, cnt="vmcnt", maxn=63):
        self.ops, self.cnt, self.maxn, self.done = [], cnt, maxn, -1

    def op(self, text, tag):
        a(text)
        self.ops.append(tag)

    def wait(self, tag):
        last = max(i for i, t in enumerate(self.ops) if t == tag)
        if last <= self.done:
            return
        n = min(len(self.ops) - 1 - last, self.maxn)
        self.done = len(self.ops) - 1 - n
        a("s_waitcnt %s(%d)" % (self.cnt, n))

    def all(self):
        self.done = len(self.ops) - 1
        a("s_waitcnt %s(0)" % self.cnt)


def stamp(k):
    if PROF:
        a("s_memtime s[98:99]")
        a("s_memrealtime s[100:101]")
        a("s_waitcnt lgkmcnt(0)")
        a("v_mov_b32 v0, s98")
        a("buffer_store_dword v0, off, s[92:95], s96 offset:%d" % (4 * k))
        a("v_mov_b32 v0, s100")
        a("buffer_store_dword v0, off, s[92:95], s96 offset:%d" % (4 * k + 64))


def rstamp(k):
    if PROF:
        a("s_memrealtime s[98:99]")
        a("s_waitcnt lgkmcnt(0)")
        a("v_mov_b32 v0, s98")
        a("buffer_store_dword v0, off, s[92:95], s96 offset:%d" % (4 * k))


def unpack(dst, src):
    a("v_lshlrev_b32 v%d, 16, v%d" % (dst, src))
    a("v_and_b32 v%d, 0xffff0000, v%d" % (dst + 1, src))


def cvt(d, x, y):
    a("v_cvt_pk_bf16_f32 v%d, v%d, v%d" % (d, x, y))


def round1(r):
    cvt(r, r, r)
    a("v_and_b32 v%d, 0xffff0000, v%d" % (r, r))


def ln_scalars(mean, var, M, SD, emit=None):
    e = emit or a
    e("v_cvt_pk_bf16_f32 v%d, v%d, v%d" % (M, var, mean))
    e("v_lshlrev_b32 v%d, 16, v%d" % (SD, M))
    e("v_and_b32 v%d, 0xffff0000, v%d" % (M, M))
    e("v_add_f32 v%d, %s, v%d" % (SD, f32bits(1e-5), SD))
    e("v_cvt_pk_bf16_f32 v%d, v%d, v%d" % (SD, SD, SD))
    e("v_and_b32 v%d, 0xffff0000, v%d" % (SD, SD))
    e("v_sqrt_f32 v%d, v%d" % (SD, SD))
    e("v_cvt_pk_bf16_f32 v%d, v%d, v%d" % (SD, SD, SD))
    e("v_and_b32 v%d, 0xffff0000, v%d" % (SD, SD))


def xsum(r, t, rows16=True, rows32=True, ror8=False):
    if ror8:
        a("v_add_f32_dpp v%d, v%d, v%d row_ror:8 row_mask:0xf bank_mask:0xf" % (r, r, r))
    a("v_mov_b32 v%d, v%d" % (t, r))
    a("v_permlane16_swap_b32 v%d, v%d" % (r, t))
    a("v_add_f32 v%d, v%d, v%d" % (r, r, t))
    a("v_mov_b32 v%d, v%d" % (t, r))
    a("v_permlane32_swap_b32 v%d, v%d" % (r, t))
    a("v_add_f32 v%d, v%d, v%d" % (r, r, t))


def mod_small(dst, src, n):
    if n == 1:
        a("s_mov_b32 %s, 0" % dst)
        return
    m = -(-4096 // n)
    assert all((t * m) >> 12 == t // n for t in range(32))
    a("s_mul_i32 %s, %s, %d" % (dst, src, m))
    a("s_lshr_b32 %s, %s, 12" % (dst, dst))
    a("s_mul_i32 %s, %s, %d" % (dst, dst, n))
    a("s_sub_u32 %s, %s, %s" % (dst, src, dst))


P_LN, P_QKV, P_W1, P_W2 = 0, 256, 328, 472
P_MISC = P_W2 + (32 if W2D else 144)
P_END = P_MISC + 1


def p_kernel():
    entry("p_kernel")
    a("s_cmp_ge_u32 s2, %d" % P_END)
    a("s_cbranch_scc1 L_exit")
    if PROF:
        a("s_memrealtime s[56:57]")
    if E("PORD", 0):
        a("s_add_u32 s20, s2, 328")
        a("s_sub_u32 s21, s2, 144")
        a("s_cmp_lt_u32 s2, 144")
        a("s_cselect_b32 s20, s20, s21")
        a("s_cmp_lt_u32 s2, 472")
        a("s_cselect_b32 s2, s20, s2")
    a("s_load_dwordx16 s[4:19], s[0:1], 0")
    a("s_load_dwordx2 s[24:25], s[0:1], %d" % KA_WS)
    a("v_lshrrev_b32 v1, 6, v0")
    a("v_readfirstlane_b32 s3, v1")
    a("v_and_b32 v1, 63, v0")
    a("v_lshlrev_b32 v2, 4, v1")
    a("v_lshrrev_b32 v3, 4, v1")
    a("v_and_b32 v4, 15, v1")
    a("v_lshlrev_b32 v5, 4, v0")
    a("s_waitcnt lgkmcnt(0)")
    srd(40, 24, 0, WS_USED)
    if E("PTOUCH", 16):
        a("s_cmp_ge_u32 s2, 32")
        a("s_cbranch_scc1 P_nt")
        a("s_lshr_b32 s20, s2, 3")
        a("s_mul_i32 s20, s20, 576")
        a("v_add_u32 v62, s20, v0")
        a("v_min_u32 v62, %d, v62" % ((1 << (31 - E("PTOUCH", 16))) - 1))
        a("v_lshlrev_b32 v62, %d, v62" % E("PTOUCH", 16))
        a("buffer_load_dword v63, v62, s[40:43], 0 offen")
        a("P_nt:")
    a("s_cmp_lt_u32 s2, %d" % P_QKV)
    a("s_cbranch_scc1 P_ln")
    a("s_cmp_ge_u32 s2, %d" % P_MISC)
    a("s_cbranch_scc1 P_misc")
    a("s_cmp_ge_u32 s2, %d" % P_W1)
    a("s_cbranch_scc1 P_w12")
    a("s_sub_u32 s29, s2, %d" % P_QKV)
    srd(36, 6, 0, 576 * 1728 * 2)
    a("s_mul_i32 s20, s29, %d" % (8 * 3456))
    a("s_lshl_b32 s21, s3, 10")
    for n in range(3):
        a("s_add_u32 m0, s21, %d" % (n * 9216))
        a("s_add_u32 s22, s20, %d" % (n * 9216))
        a("buffer_load_dwordx4 v5, s[36:39], s22 offen" + PNT + " lds")
    srd(32, 8, 0, 576 * 576 * 2)
    a("s_mov_b32 s20, s29")
    a("s_lshr_b32 s21, s20, 2")
    a("s_and_b32 s22, s20, 3")
    a("v_mul_u32_u24 v6, 911, v0")
    a("v_lshrrev_b32 v6, 16, v6")
    a("v_mul_u32_u24 v7, 72, v6")
    a("v_sub_u32 v7, v0, v7")
    a("s_cmp_ge_u32 s21, 16")
    a("s_cbranch_scc1 P_wo_tail")
    a("s_mul_i32 s23, s21, 36")
    a("s_lshl_b32 s26, s22, 2")
    a("s_add_u32 s23, s23, s26")
    a("v_lshrrev_b32 v8, 2, v6")
    a("v_and_b32 v9, 3, v6")
    a("s_branch P_wo_go")
    a("P_wo_tail:")
    a("s_sub_u32 s23, s20, 64")
    a("s_mul_i32 s23, s23, 72")
    a("s_add_u32 s23, s23, 16")
    a("v_lshrrev_b32 v8, 1, v6")
    a("v_and_b32 v9, 1, v6")
    a("P_wo_go:")
    a("v_mul_u32_u24 v8, 18, v8")
    a("v_add_u32 v8, v8, v9")
    a("v_mul_u32_u24 v8, 1152, v8")
    a("v_lshl_add_u32 v8, v7, 4, v8")
    a("s_mul_i32 s23, s23, 1152")
    a("s_lshl_b32 s26, s3, 10")
    a("s_add_u32 m0, s26, 27648")
    a("buffer_load_dwordx4 v8, s[32:35], s23 offen" + PNT + " lds")
    a("s_mul_i32 s27, s21, 4608")
    a("s_add_u32 s27, s27, %s" % hex(WOP))
    a("v_lshrrev_b32 v8, 4, v7")
    a("v_lshlrev_b32 v8, 10, v8")
    a("v_and_b32 v9, 15, v7")
    a("v_lshl_add_u32 v8, v9, 4, v8")
    a("s_lshl_b32 s26, s22, 7")
    a("v_mov_b32 v10, s26")
    a("v_lshlrev_b32 v11, 1, v10")
    a("v_cmp_gt_u32 vcc, 64, v7")
    a("v_cndmask_b32 v10, v10, v11, vcc")
    a("v_add_u32 v8, v8, v10")
    a("s_mov_b32 s26, %d" % WOS)
    a("v_mad_u32_u24 v3, v6, s26, v8")
    a("v_lshlrev_b32 v4, 1, v0")
    a("s_lshr_b32 s22, s29, 2")
    a("s_lshl_b32 s22, s22, 12")
    a("s_and_b32 s23, s29, 3")
    a("s_lshl_b32 s23, s23, 8")
    a("s_add_u32 s22, s22, s23")
    a("v_mov_b32 v15, %s" % hex(OOB))
    for n in range(4):
        u, src, dst = 6, 48 + n, 52 + n
        a("v_add_u32 v6, %d, v0" % (n * 576))
        a("v_lshrrev_b32 v7, 6, v6")
        a("v_bfe_u32 v8, v6, 4, 2")
        a("v_and_b32 v9, 15, v6")
        a("v_mul_u32_u24 v10, 36, v7")
        a("v_mul_u32_u24 v11, 1152, v8")
        a("v_lshl_add_u32 v11, v9, 1, v11")
        a("v_lshrrev_b32 v12, 1, v9")
        a("v_mul_u32_u24 v12, 1152, v12")
        a("v_and_b32 v13, 1, v9")
        a("v_lshl_add_u32 v12, v13, 1, v12")
        a("v_add_u32 v12, 32, v12")
        a("v_cmp_eq_u32 vcc, 3, v8")
        a("v_cndmask_b32 v11, v11, v12, vcc")
        a("v_cmp_lt_u32 s[44:45], 5, v9")
        a("s_and_b64 s[%d:%d], vcc, s[44:45]" % (46 + 2 * n, 47 + 2 * n))
        a("v_cndmask_b32 v11, v11, 0, s[%d:%d]" % (46 + 2 * n, 47 + 2 * n))
        a("v_add_u32 v%d, v10, v11" % src)
        a("v_mul_u32_u24 v7, 73728, v7")
        a("v_lshl_add_u32 v7, v8, 10, v7")
        a("v_lshl_add_u32 v%d, v9, 4, v7" % dst)
        if n == 3:
            a("v_cmp_gt_u32 vcc, 2048, v6")
            a("v_cndmask_b32 v%d, v15, v%d, vcc" % (dst, dst))
            a("v_cndmask_b32 v%d, 0, v%d, vcc" % (src, src))
    a("s_waitcnt vmcnt(0)")
    a("s_barrier")
    for n in range(4):
        for j in range(8):
            a("ds_read_u16 v%d, v%d offset:%d" % (16 + n * 8 + j, 48 + n, j * 3456))
        if n % 2 == 1:
            a("s_waitcnt lgkmcnt(0)")
            for m in (n - 1, n):
                for k in range(4):
                    a("v_lshl_or_b32 v%d, v%d, 16, v%d" % (16 + m * 8 + k, 16 + m * 8 + 2 * k + 1, 16 + m * 8 + 2 * k))
                    a("v_cndmask_b32 v%d, v%d, 0, s[%d:%d]" % (16 + m * 8 + k, 16 + m * 8 + k, 46 + 2 * m, 47 + 2 * m))
                a("buffer_store_dwordx4 %s, v%d, s[40:43], s22 offen%s" % (q4(16 + m * 8), 52 + m, ST))
    for j in range(8):
        a("ds_read_u16 v%d, v4 offset:%d" % (56 + j, 27648 + j * 1152))
    a("s_waitcnt lgkmcnt(0)")
    for k in range(4):
        a("v_lshl_or_b32 v%d, v%d, 16, v%d" % (56 + k, 56 + 2 * k + 1, 56 + 2 * k))
    a("buffer_store_dwordx4 v[56:59], v3, s[40:43], s27 offen%s" % ST)
    a("s_branch P_end" if PROF else "s_endpgm")

    a("P_ln:")
    srd(36, 4, 0, ACT)
    a("s_sub_u32 s20, s2, %d" % P_LN)
    a("v_lshrrev_b32 v1, 3, v0")
    a("v_and_b32 v7, 7, v0")
    a("v_lshlrev_b32 v8, 4, v1")
    a("v_mul_u32_u24 v9, 1152, v7")
    a("v_add_u32 v9, v9, v8")
    a("s_mul_i32 s21, s20, %d" % (8 * 1152))
    a("buffer_load_dwordx4 v[16:19], v9, s[36:39], s21 offen" + (PNT if E("XNT", 0) else ""))
    a("v_lshlrev_b32 v3, 8, v1")
    a("v_lshl_add_u32 v3, v7, 4, v3")
    a("s_lshr_b32 s22, s20, 1")
    a("s_mul_i32 s22, s22, 18432")
    a("s_and_b32 s23, s20, 1")
    a("s_lshl_b32 s23, s23, 7")
    a("s_add_u32 s22, s22, s23")
    a("s_add_u32 s22, s22, %s" % hex(LB + oY))
    a("v_mul_u32_u24 v11, 48, v7")
    a("v_lshrrev_b32 v12, 6, v0")
    a("v_lshl_add_u32 v12, v12, 2, v11")
    AC, T, P = 24, 32, 48
    a("s_waitcnt vmcnt(0)")
    for k in range(4):
        unpack(AC + 2 * k, 16 + k)

    def reduce9(s, ldsoff, out):
        xsum(s, s + 1, ror8=True)
        a("ds_write_b32 v12, v%d offset:%d" % (s, ldsoff))
        a("s_waitcnt lgkmcnt(0)")
        a("s_barrier")
        a("ds_read_b128 %s, v11 offset:%d" % (q4(P), ldsoff))
        a("ds_read_b128 %s, v11 offset:%d" % (q4(P + 4), ldsoff + 16))
        a("ds_read_b32 v%d, v11 offset:%d" % (P + 8, ldsoff + 32))
        a("s_waitcnt lgkmcnt(0)")
        a("v_pk_add_f32 %s, %s, %s" % (q2(P), q2(P), q2(P + 2)))
        a("v_pk_add_f32 %s, %s, %s" % (q2(P + 4), q2(P + 4), q2(P + 6)))
        a("v_pk_add_f32 %s, %s, %s" % (q2(P), q2(P), q2(P + 4)))
        a("v_add_f32 v%d, v%d, v%d" % (P, P, P + 1))
        a("v_add_f32 v%d, v%d, v%d" % (P, P, P + 8))
        a("v_mul_f32 v%d, %s, v%d" % (out, f32bits(1.0 / 576.0), P))

    S, MEAN, VAR, M, SD = 40, 42, 43, 44, 45
    a("v_pk_add_f32 %s, %s, %s" % (q2(T), q2(AC), q2(AC + 2)))
    a("v_pk_add_f32 %s, %s, %s" % (q2(T + 2), q2(AC + 4), q2(AC + 6)))
    a("v_pk_add_f32 %s, %s, %s" % (q2(T), q2(T), q2(T + 2)))
    a("v_add_f32 v%d, v%d, v%d" % (S, T, T + 1))
    reduce9(S, 0, MEAN)
    for k in range(8):
        a("v_sub_f32 v%d, v%d, v%d" % (T + k, AC + k, MEAN))
    a("v_mul_f32 v%d, v%d, v%d" % (S, T, T))
    for k in range(1, 8):
        a("v_fmac_f32 v%d, v%d, v%d" % (S, T + k, T + k))
    reduce9(S, 512, VAR)
    ln_scalars(MEAN, VAR, M, SD)
    a("v_rcp_f32 v%d, v%d" % (SD, SD))
    for k in range(8):
        a("v_sub_f32 v%d, v%d, v%d" % (AC + k, AC + k, M))
    for k in range(4):
        cvt(T + k, AC + 2 * k, AC + 2 * k + 1)
    for k in range(4):
        unpack(AC + 2 * k, T + k)
    for k in range(8):
        a("v_mul_f32 v%d, v%d, v%d" % (AC + k, AC + k, SD))
    for k in range(4):
        cvt(T + k, AC + 2 * k, AC + 2 * k + 1)
    a("buffer_store_dwordx4 %s, v3, s[40:43], s22 offen%s" % (q4(T), ST))
    a("s_branch P_end" if PROF else "s_endpgm")

    a("P_w12:")
    a("v_lshrrev_b32 v5, 3, v1")
    a("v_and_b32 v6, 7, v1")
    a("v_lshlrev_b32 v6, 4, v6")
    a("v_bfe_u32 v7, v1, 2, 2")
    a("v_and_b32 v8, 3, v1")
    a("s_lshl_b32 s21, s3, 12")
    a("s_cmp_ge_u32 s2, %d" % P_W2)
    a("s_cbranch_scc1 P_w2")
    if "now1" in ABL:
        a("s_branch P_end")

    def w12(stride, second):
        for n in range(4):
            a("s_add_u32 m0, s21, %d" % (n * 1024))
            a("buffer_load_dwordx4 v9, s[36:39], s22 offen" + PNT + " lds")
            if n < 3:
                a("s_add_u32 s22, s22, %d" % (8 * stride))

    def w12b(second):
        for tl in range(4):
            a("ds_read_b64_tr_b16 %s, v10 offset:%d" % (q2(16 + tl * 4), tl * 32))
            a("ds_read_b64_tr_b16 %s, v10 offset:%d" % (q2(18 + tl * 4), tl * 32 + second))
        for tl in range(4):
            a("s_waitcnt lgkmcnt(%d)" % (6 - 2 * tl))
            a("s_add_u32 s26, s23, %d" % (tl * 18432))
            a("buffer_store_dwordx4 %s, v2, s[40:43], s26 offen%s" % (q4(16 + tl * 4), ST))

    srd(36, 12, 0, 576 * 4608 * 2)
    a("s_sub_u32 s28, s2, %d" % P_W1)
    a("s_lshr_b32 s20, s28, 1")
    a("s_and_b32 s28, s28, 1")
    a("s_mul_i32 s29, s28, 9")
    a("s_add_u32 s29, s29, s3")
    a("s_mul_i32 s22, s29, %d" % (32 * 9216))
    a("s_lshl_b32 s27, s20, 7")
    a("s_add_u32 s22, s22, s27")
    a("v_mul_u32_u24 v9, 9216, v5")
    a("v_add_u32 v9, v9, v6")
    w12(9216, 512)
    srd(32, 14, 0, 4608 * 2)
    a("v_lshlrev_b32 v5, 1, v1")
    a("buffer_load_ushort v40, v5, s[32:35], s27 offen")
    a("v_lshl_add_u32 v10, v3, 3, v7")
    a("v_lshlrev_b32 v10, 7, v10")
    a("v_lshl_add_u32 v10, v8, 3, v10")
    a("v_add_u32 v10, s21, v10")
    a("s_mul_i32 s23, s20, %d" % (4 * 18432))
    a("s_lshl_b32 s26, s29, 10")
    a("s_add_u32 s23, s23, s26")
    a("s_add_u32 s23, s23, %s" % hex(W1P))
    for k in range(4):
        a("v_mov_b32 v%d, 0x3f803f80" % (12 + k))
    a("s_lshl_b32 s26, s3, 8")
    a("s_add_u32 s26, s26, 36864")
    a("v_lshlrev_b32 v11, 4, v3")
    a("v_add_u32 v11, s26, v11")
    a("s_waitcnt vmcnt(0)")
    w12b(512)
    for tl in range(4):
        a("%s %s, %s, v[12:15], 0" % (MF, q4(48 + tl * 4), q4(16 + tl * 4)))
    for tl in range(4):
        a("ds_write_b128 v11, %s offset:%d" % (q4(48 + tl * 4), tl * 64))
    a("s_waitcnt lgkmcnt(0)")
    a("s_barrier")
    a("s_cmp_lg_u32 s3, 0")
    a("s_cbranch_scc1 P_end")
    a("v_lshlrev_b32 v11, 2, v1")
    for w in range(9):
        a("ds_read_b32 v%d, v11 offset:%d" % (48 + w, 36864 + w * 256))
    a("s_waitcnt lgkmcnt(0)")
    for w in range(1, 9):
        a("v_add_f32 v48, v48, v%d" % (48 + w))
    a("v_sub_f32 v48, 0, v48")
    cvt(60, 48, 48)
    a("v_and_b32 v49, 0xffff0000, v60")
    a("v_sub_f32 v49, v48, v49")
    cvt(49, 49, 49)
    a("v_and_b32 v49, 0xffff, v49")
    a("v_lshl_or_b32 v61, v40, 16, v49")
    a("s_lshl_b32 s27, s20, 10")
    a("s_lshl_b32 s28, s28, 3")
    a("s_add_u32 s27, s27, s28")
    a("s_add_u32 s27, s27, %s" % hex(AUG))
    a("buffer_store_dwordx2 v[60:61], v2, s[40:43], s27 offen%s" % ST)
    a("s_branch P_end" if PROF else "s_endpgm")

    a("P_w2:")
    if "now2" in ABL:
        a("s_cmp_ge_u32 s2, %d" % (P_W2 + 32))
        a("s_cbranch_scc1 P_end")
    srd(36, 16, 0, 576 * 4608 * 2)
    a("s_sub_u32 s20, s2, %d" % P_W2)
    if W2D:
        a("s_lshr_b32 s22, s20, 2")
        a("s_mul_i32 s22, s22, 14")
        a("s_add_u32 s20, s20, s22")
        a("s_add_u32 s20, s20, 14")
    a("s_mul_i32 s22, s20, %d" % (32 * 1152))
    a("s_lshl_b32 s23, s3, 7")
    a("s_add_u32 s22, s22, s23")
    a("v_mul_u32_u24 v9, 1152, v5")
    a("v_add_u32 v9, v9, v6")
    w12(1152, 2048)
    a("v_lshl_add_u32 v10, v3, 2, v7")
    a("v_lshlrev_b32 v10, 7, v10")
    a("v_lshl_add_u32 v10, v8, 3, v10")
    a("v_add_u32 v10, s21, v10")
    a("s_mul_i32 s26, s20, 3641")
    a("s_lshr_b32 s26, s26, 16")
    a("s_mul_i32 s27, s26, 18")
    a("s_sub_u32 s27, s20, s27")
    a("s_mul_i32 s23, s26, %d" % (36 * 18432))
    a("s_mul_i32 s26, s3, %d" % (4 * 18432))
    a("s_add_u32 s23, s23, s26")
    a("s_lshl_b32 s27, s27, 10")
    a("s_add_u32 s23, s23, s27")
    a("s_add_u32 s23, s23, %s" % hex(W2P))
    a("s_waitcnt vmcnt(0)")
    w12b(2048)
    a("s_branch P_end" if PROF else "s_endpgm")

    a("P_misc:")
    for k in range(4):
        a("v_mov_b32 v%d, 0" % (16 + k))
    a("v_lshlrev_b32 v5, 4, v0")
    srd(36, 24, CNT, CNTB)
    a("s_mov_b32 s22, %d" % CST)
    a("v_mul_lo_u32 v6, v0, s22")
    a("buffer_store_dwordx4 v[16:19], v6, s[36:39], 0 offen%s" % ST)
    a("s_getpc_b64 s[20:21]")
    a("P_pc:")
    a("s_add_u32 s36, s20, main_kernel-P_pc")
    a("s_addc_u32 s37, s21, 0")
    a("s_mov_b32 s38, L_code_end-main_kernel")
    a("s_mov_b32 s39, 0x20000")
    a("s_mov_b32 s22, 0")
    for k in range(7):
        a("buffer_load_dwordx4 %s, v5, s[36:39], s22 offen" % q4(20 + 4 * k))
        a("s_add_u32 s22, s22, 9216")
    a("s_waitcnt vmcnt(0)")
    a("P_end:")
    if PROF:
        a("s_waitcnt vmcnt(0)")
        a("s_memrealtime s[58:59]")
        srd(36, 24, STAMP + (1 << 19), 1 << 19)
        a("s_lshl_b32 s60, s2, 4")
        a("s_add_u32 s60, s60, s3")
        a("s_lshl_b32 s60, s60, 3")
        a("s_waitcnt lgkmcnt(0)")
        a("v_mov_b32 v0, s56")
        a("v_mov_b32 v1, s58")
        a("buffer_store_dwordx2 v[0:1], off, s[36:39], s60")
    a("L_exit:")
    a("s_endpgm")


L_SCR, L_OX, L_Y, L_WA, L_WB = 0, 8192, 20480, 112640, 20480
MAIN_LDS = 163840
uid = [0]


def main_kernel():
    entry("main_kernel")
    a("s_cmp_ge_u32 s2, 256")
    a("s_cbranch_scc1 L_exit2")
    a("s_load_dwordx2 s[24:25], s[0:1], %d" % KA_WS)
    a("s_load_dwordx4 s[28:31], s[0:1], %d" % KA_B2)
    a("s_load_dwordx2 s[32:33], s[0:1], %d" % KA_X)
    a("s_load_dwordx2 s[36:37], s[0:1], %d" % KA_W2)
    a("s_mov_b32 s38, %d" % (576 * 4608 * 2))
    a("s_mov_b32 s39, 0x20000")
    a("s_mov_b32 s34, %d" % ACT)
    a("s_mov_b32 s35, 0x20000")
    vm = VM()
    lg = VM("lgkmcnt", 15)
    a("v_lshrrev_b32 v1, 6, v0")
    a("v_readfirstlane_b32 s3, v1")
    a("v_and_b32 v1, 63, v0")
    a("v_lshlrev_b32 v2, 4, v1")
    a("v_lshrrev_b32 v3, 4, v1")
    a("v_and_b32 v4, 15, v1")
    b = MAPB
    spx = 8 // b
    tpx = 32 // spx
    lb = {1: 0, 2: 1, 4: 2, 8: 3}
    a("s_and_b32 s6, s2, 7")
    a("s_lshr_b32 s7, s2, 3")
    a("s_and_b32 s4, s6, %d" % (b - 1))
    a("s_lshl_b32 s4, s4, %d" % lb[spx])
    a("s_and_b32 s8, s7, %d" % (spx - 1))
    a("s_add_u32 s4, s4, s8")
    a("s_lshr_b32 s5, s6, %d" % lb[b])
    a("s_mul_i32 s5, s5, %d" % tpx)
    a("s_lshr_b32 s8, s7, %d" % lb[spx])
    a("s_add_u32 s5, s5, s8")
    a("s_mov_b32 s44, %s" % hex(LB))
    a("s_mov_b32 s45, 0")
    a("s_mov_b32 s46, 8")
    a("s_mov_b32 s27, 1")
    a("s_mov_b32 s97, 1152")
    a("s_mul_i32 s47, s5, %d" % TB)

    KY, KW = 48, 54

    def k1_setup(rot):
        if rot:
            mod_small("s6", "s5", AROT)
            a("s_mul_i32 s6, s6, %d" % (6 // AROT))
        else:
            a("s_mov_b32 s6, 0")
        for G in range(6):
            a("s_mul_i32 s%d, s6, 3072" % (KY + G))
            a("s_add_u32 s%d, s%d, s44" % (KY + G, KY + G))
            a("s_mul_i32 s%d, s6, 12288" % (KW + G))
            if G < 5:
                a("s_add_u32 s6, s6, 1")
                a("s_cmp_eq_u32 s6, 6")
                a("s_cselect_b32 s6, 0, s6")
        a("s_mul_i32 s8, s3, 18432")
        a("s_add_u32 s8, s8, s47")
        a("v_add_u32 v7, s8, v2")
        a("s_min_u32 s9, s3, 2")
        a("s_lshl_b32 s11, s9, 10")
        a("s_add_u32 s8, s47, s11")
        a("s_sub_u32 s8, s8, 18432")
        a("s_cmp_eq_u32 s5, 0")
        a("s_cselect_b32 s8, %s, s8" % hex(OOB))
        a("v_add_u32 v8, s8, v2")
        a("s_add_u32 s11, s11, %d" % L_Y)
        a("s_mul_i32 s10, s3, 18432")
        a("s_add_u32 s10, s10, %d" % (L_Y + 18432))
        a("v_add_u32 v5, %d, v2" % L_Y)
        a("v_add_u32 v6, %d, v2" % (L_Y + 46080))

    def kw_voffs():
        a("s_lshl_b32 s12, s4, 2")
        a("s_add_u32 s12, s12, s3")
        a("s_mul_i32 s12, s12, 73728")
        a("v_add_u32 v9, s12, v2")
        a("v_add_u32 v10, 4096, v9")
        a("v_add_u32 v11, 8192, v9")

    k1_setup(True)
    kw_voffs()
    a("s_waitcnt lgkmcnt(0)")
    srd(40, 24, 0, WS_USED)
    a("s_add_u32 s20, s24, %s" % hex(CNT))
    a("s_addc_u32 s21, s25, 0")
    a("s_lshl_b32 s22, s5, 2")
    a("s_add_u32 s22, s22, s3")
    a("s_mul_i32 s22, s22, %d" % CST)
    if PROF:
        srd(92, 24, STAMP, 1 << 20)
        a("s_lshl_b32 s96, s2, 2")
        a("s_add_u32 s96, s96, s3")
        a("s_lshl_b32 s96, s96, 8")
    rstamp(12)
    stamp(0)

    def arrive(off="s22", ret=True):
        if ret:
            a("s_mov_b32 s16, 1")
            a("s_atomic_add s16, s[20:21], %s glc" % off)
        else:
            a("s_atomic_add s27, s[20:21], %s" % off)

    def poll(target, offs=("s22",), issued=None):
        uid[0] += 1
        u = uid[0]

        def rd():
            for k, o in enumerate(offs):
                a("s_mov_b32 s%d, 0" % (16 + k))
                a("s_atomic_add s%d, s[20:21], %s glc" % (16 + k, o))
        a("s_mov_b32 s18, %d" % SPIN)
        if issued is None:
            rd()
        lg.all()
        if issued == "arrive":
            a("s_add_u32 s16, s16, 1")
        a("H%d_l:" % u)
        if len(offs) > 1:
            a("s_min_u32 s16, s16, s17")
        a("s_cmp_ge_u32 s16, %s" % target)
        a("s_cbranch_scc1 H%d_b" % u)
        a("s_sub_u32 s18, s18, 1")
        a("s_cbranch_scc1 H%d_b" % u)
        rd()
        a("s_waitcnt lgkmcnt(0)")
        a("s_branch H%d_l" % u)
        a("H%d_b:" % u)

    def hop(tag, pre_a=(), pre_b=()):
        for f in pre_a:
            f()
        vm.wait(tag)
        arrive()
        for f in pre_b:
            f()
        poll("s46", issued="arrive")
        a("s_add_u32 s46, s46, 8")

    QA, KA, VA, CA, YF = 16, 32, 52, 72, 92
    MSK, SM = 132, 136

    def wslot(i, t):
        return ((i % 16) * 4 + t) * 4

    def wload1(i, t, sreg=None):
        def f():
            s = sreg or "s%d" % (KW + i // 3)
            vm.op("buffer_load_dwordx4 %s, v%d, s[40:43], %s offen offset:%d" % (q4(wslot(i, t), "a"), 9 + i % 3, s, t * 1024), ("w", i))
        return f

    def ydma1(G, k):
        def f():
            if k < 3:
                a("s_add_u32 m0, s10, %d" % (G * 3072))
                vm.op("buffer_load_dwordx4 v7, s[40:43], s%d offen offset:%d%s lds" % (KY + G, k * 1024, LD), ("y", G))
            else:
                a("s_add_u32 m0, s11, %d" % (G * 3072))
                vm.op("buffer_load_dwordx4 v8, s[40:43], s%d offen%s lds" % (KY + G, LD), ("y", G))
        return f

    def yread1(i, T):
        def f():
            off = (T * 18 + i) * 1024
            base = 5
            if off >= 46080:
                off -= 46080
                base = 6
            a("ds_read_b128 %s, v%d offset:%d" % (q4(YF + (i % 2) * 20 + T * 4), base, off))
        return f

    def wodma(region, n):
        def f():
            a("s_add_u32 m0, s%d, %d" % ((13, 14)[region], (n // 4) * 4096))
            a("s_add_u32 s15, s%d, %d" % ((60, 61)[region], (n // 4) * 4096))
            vm.op("buffer_load_dwordx4 v2, s[40:43], s15 offen offset:%d lds" % ((n % 4) * 1024), "wo")
        return f

    wo_all = [wodma(0, n) for n in range(12)] + [wodma(1, n) for n in range(9)]

    def attn_consts():
        a("v_and_b32 v13, 1, v4")
        a("v_cmp_eq_u32 s[70:71], 1, v13")
        a("v_lshl_add_u32 v14, v3, 2, v13")
        a("v_cmp_ge_u32 s[72:73], v4, v14")
        a("v_add_u32 v14, 2, v14")
        a("v_cmp_ge_u32 s[74:75], v4, v14")
        a("v_mov_b32 v13, 0xffff")
        a("v_mov_b32 v14, 0xffff0000")
        a("v_cndmask_b32 v13, v13, v14, s[70:71]")
        a("v_cndmask_b32 v%d, v13, 0, s[72:73]" % (MSK + 0))
        a("v_cndmask_b32 v%d, v13, 0, s[74:75]" % (MSK + 1))
        a("v_cndmask_b32 v%d, 0, v13, s[72:73]" % (MSK + 2))
        a("v_cndmask_b32 v%d, 0, v13, s[74:75]" % (MSK + 3))
        a("s_cmp_eq_u32 s5, 0")
        a("s_cselect_b32 s14, %s, 0" % f32bits(-1e9 * math.sqrt(18.0)))
        for k in range(4):
            a("v_mov_b32 v%d, s14" % (SM + k))
        a("s_lshl_b32 s14, s3, 11")
        a("v_lshlrev_b32 v141, 9, v3")
        a("v_lshl_add_u32 v141, v4, 1, v141")
        a("v_add_u32 v141, s14, v141")
        a("v_and_b32 v142, 1, v4")
        a("v_mul_u32_u24 v142, 160, v142")
        a("v_lshl_add_u32 v142, v3, 3, v142")
        a("s_add_u32 s14, s14, 512")
        a("v_add_u32 v142, s14, v142")
        a("s_lshr_b32 s14, s3, 1")
        a("s_lshl_b32 s14, s14, 10")
        a("s_and_b32 s15, s3, 1")
        a("s_lshl_b32 s15, s15, 3")
        a("s_add_u32 s14, s14, s15")
        a("s_add_u32 s14, s14, %d" % L_OX)
        a("v_add_u32 v143, s14, v2")
        a("s_lshl_b32 s14, s3, 2")
        a("s_add_u32 s14, s14, %d" % (L_OX + 2048))
        a("v_add_u32 v144, s14, v2")
        a("s_mul_i32 s14, s3, 3072")
        a("s_add_u32 s14, s14, %d" % L_OX)
        a("v_add_u32 v145, s14, v2")
        a("s_mul_i32 s60, s4, %d" % WOS)
        a("s_add_u32 s60, s60, %s" % hex(WOP))
        a("s_mul_i32 s14, s3, 9216")
        a("s_add_u32 s61, s60, s14")
        a("s_add_u32 s61, s61, 46080")
        a("s_mul_i32 s14, s3, 18432")
        a("s_add_u32 s14, s14, %d" % L_Y)
        a("s_mul_i32 s13, s3, 12288")
        a("s_add_u32 s60, s60, s13")
        a("s_add_u32 s13, s13, %d" % L_WA)

    def w2addr():
        a("s_lshl_b32 s6, s5, 2")
        a("s_add_u32 s6, s6, s3")
        a("s_mul_i32 s7, s6, 57")
        a("s_lshr_b32 s7, s7, 9")
        a("s_mul_i32 s8, s7, 9")
        a("s_sub_u32 s8, s6, s8")
        a("s_mul_i32 s9, s4, 18")
        a("s_add_u32 s9, s9, s7")
        a("s_mul_i32 s9, s9, %d" % (32 * 1152))
        a("s_lshl_b32 s12, s8, 7")
        a("s_add_u32 s76, s9, s12")
        for n in range(1, 4):
            a("s_add_u32 s%d, s76, %d" % (76 + n, n * 8 * 1152))
        a("s_mul_i32 s12, s4, 9")
        a("s_add_u32 s12, s12, s8")
        a("s_mul_i32 s12, s12, %d" % (4 * 18432))
        a("s_lshl_b32 s7, s7, 10")
        a("s_add_u32 s12, s12, s7")
        a("s_add_u32 s12, s12, %s" % hex(W2P))
        a("s_cmp_lt_u32 s6, 126")
        a("s_cselect_b32 s26, s12, %s" % hex(OOB))
        a("v_lshrrev_b32 v236, 3, v1")
        a("v_and_b32 v237, 7, v1")
        a("v_lshlrev_b32 v237, 4, v237")
        a("v_mad_u32_u24 v236, v236, s97, v237")

    def w2raw(n):
        return lambda: vm.op("buffer_load_dwordx4 %s, v236, s[36:39], s%d offen nt" % (q4(240 + 4 * n, "a"), 76 + n), "w2r")

    def w2pack1():
        if not W2D:
            return
        a("s_cmp_lg_u32 s45, 0")
        a("s_cbranch_scc1 W2_a")
        a("s_mul_i32 s6, s3, 18432")
        a("s_add_u32 s6, s6, %d" % (L_Y + 9216))
        a("v_add_u32 v236, s6, v2")
        for n in range(4):
            a("ds_write_b128 v236, %s offset:%d" % (q4(240 + 4 * n, "a"), n * 1024))
        a("v_bfe_u32 v237, v1, 2, 4")
        a("v_lshlrev_b32 v237, 7, v237")
        a("v_and_b32 v238, 3, v1")
        a("v_lshl_add_u32 v237, v238, 3, v237")
        a("v_add_u32 v237, s6, v237")
        for tl in range(4):
            a("ds_read_b64_tr_b16 %s, v237 offset:%d" % (q2(240 + tl * 4), tl * 32))
            a("ds_read_b64_tr_b16 %s, v237 offset:%d" % (q2(242 + tl * 4), tl * 32 + 2048))
        a("W2_a:")

    def w2pack2():
        if not W2D:
            return
        a("s_cmp_lg_u32 s45, 0")
        a("s_cbranch_scc1 W2_b")
        for tl in range(4):
            a("buffer_store_dwordx4 %s, v2, s[40:43], s26 offen%s" % (q4(240 + tl * 4), ST))
            a("s_add_u32 s26, s26, 18432")
        a("W2_b:")

    def qkv(pre):
        if not pre:
            for k in range(4):
                ydma1(0, k)()
            for t in range(4):
                wload1(0, t)()
            for k in range(4):
                ydma1(1, k)()
            for i in range(1, APRE):
                for t in range(4):
                    wload1(i, t)()
            if TOUCH:
                a("s_getpc_b64 s[36:37]")
                a("M_pc:")
                a("s_mov_b32 s38, L_code_end-M_pc")
                a("s_mov_b32 s39, 0x20000")
                a("s_lshr_b32 s6, s2, 3")
                a("s_lshl_b32 s6, s6, 2")
                a("s_add_u32 s6, s6, s3")
                a("s_lshl_b32 s6, s6, 9")
                a("v_lshlrev_b32 v249, 3, v1")
                vm.op("buffer_load_dword v250, v249, s[36:39], s6 offen", "t")
            attn_consts()
            if W2D:
                w2addr()
            ahead_y = 2
        else:
            for i in range(pre):
                vm.ops.append(("w", i))
            for G in range(3):
                for k in range(4):
                    ydma1(G, k)()
            ahead_y = 3
        vm.wait(("y", 0))
        a("s_barrier")
        if E("XP", 0) == 1:
            stamp(13)
        for T in range(5):
            yread1(0, T)()
        wo_list = [wodma(1, n) for n in range(9)] if pre else wo_all[:WOL]
        for i in range(18):
            if i + 1 < 18 and (i + 1) % 3 == 0:
                vm.wait(("y", (i + 1) // 3))
                a("s_barrier")
            a("s_waitcnt lgkmcnt(0)")
            vm.wait(("w", i))
            mem = []
            if i // 3 + ahead_y < 6:
                mem += [ydma1(i // 3 + ahead_y, k) for k in ((0, 3), (1,), (2,))[i % 3]]
            nxt = i + APRE
            if pre:
                nxt = pre + i - 1 if i >= 1 else None
                if nxt is not None and nxt - 16 >= i:
                    nxt = None
            if nxt is not None and nxt < 18:
                mem += [wload1(nxt, t) for t in range(4)]
            if (i >= 11) if pre else (nxt >= 18):
                take = -(-len(wo_list) // (18 - i))
                mem += wo_list[:take]
                wo_list = wo_list[take:]
            rds = [yread1(i + 1, T) for T in range(5)] if i + 1 < 18 else []
            slots = {}
            for k, f in enumerate(mem):
                slots.setdefault(1 + (k * 18) // len(mem), []).append(f)
            for k, f in enumerate(rds):
                slots.setdefault(2 * k, []).append(f)
            m = 0
            for T in range(5):
                y = q4(YF + (i % 2) * 20 + T * 4)
                for t, base in ((1, KA), (2, VA), (3, CA), (0, QA)):
                    if t == 0 and T == 0:
                        continue
                    d = base + (T - 1 if t == 0 else T) * 4
                    w = q4(wslot(i, t), "a")
                    c = "0" if i == 0 else q4(d)
                    A_, B_ = (y, w) if t == 2 else (w, y)
                    a("%s %s, %s, %s, %s" % (MF, q4(d), A_, B_, c))
                    for f in slots.get(m, []):
                        f()
                    m += 1
        assert not wo_list, len(wo_list)

    qkv(0)
    a("s_branch K1_attn")
    a("K1_second:")
    vm.done = -1
    vm.ops = []
    qkv(PF)
    a("K1_attn:")
    vm.ops = []
    vm.done = -1
    stamp(1)
    def wo_group(fs):
        def f():
            uid[0] += 1
            a("s_cmp_lg_u32 s45, 0")
            a("s_cbranch_scc1 W%d" % uid[0])
            n0 = len(vm.ops)
            for g in fs:
                g()
            del vm.ops[n0:]
            a("W%d:" % uid[0])
        return f

    assert WOL == 21
    vm.ops.append("wo")
    side = []
    XR = 208

    def k2_addr():
        a("s_mul_i32 s62, s3, 18432")
        a("s_add_u32 s62, s62, s47")
        a("s_add_u32 s62, s62, s44")
        a("s_mul_i32 s63, s4, 2304")
        a("s_add_u32 s63, s63, s62")
        a("v_and_b32 v220, 1, v3")
        a("v_lshlrev_b32 v220, 9, v220")
        a("v_lshl_add_u32 v220, v4, 4, v220")
        a("v_lshrrev_b32 v221, 5, v1")
        a("v_lshl_add_u32 v220, v221, 8, v220")
        a("v_mov_b32 v221, %s" % hex(OOB))
        a("v_cmp_eq_u32 vcc, 0, v3")
        a("v_cndmask_b32 v221, v221, v220, vcc")
        a("v_cndmask_b32 v222, 0, -1, vcc")
        a("s_add_u32 s65, s63, %s" % hex(oX1))
        a("s_sub_u32 s64, s63, s44")
        a("s_mul_i32 s6, s4, 144")
        a("s_sub_u32 s7, s62, s44")
        a("s_add_u32 s6, s6, s7")
        a("v_lshrrev_b32 v206, 4, v220")
        a("v_and_b32 v206, 0x30, v206")
        a("v_mad_u32_u24 v206, v4, s97, v206")
        a("s_cmp_eq_u32 s45, 0")
        a("s_cselect_b32 s64, s6, s64")
        a("s_cselect_b32 s6, 64, 1024")
        a("s_cselect_b64 s[8:9], -1, 0")
        a("v_cndmask_b32 v206, v220, v206, s[8:9]")
        a("v_add_u32 v207, s6, v206")
        a("v_add_u32 v223, s6, v207")
        a("v_cndmask_b32 v223, v221, v223, vcc")

    def xload(kk):
        def f():
            vm.op("buffer_load_dwordx4 %s, v%d, s[32:35], s64 offen%s" % (q4(XR + 4 * kk), (206, 207, 223)[kk], LD), "x")
        return f

    k2_addr()
    nop = lambda: None
    side += [xload(k) for k in range(3)] + [nop] * E("W2G", 0) + ([f for n in range(4) for f in (w2raw(n), nop, nop)] if W2D else [])
    cnt = [0]

    def v(text):
        a(text)
        cnt[0] += 1
        if cnt[0] % 4 == 0 and side:
            side.pop(0)()

    QO, KO, VP, X0, V2 = 148, 164, 184, 194, 196
    for T in range(5):
        xd = X0 if T == 0 else QO + (T - 1) * 4 + 2
        v("v_cvt_pk_bf16_f32 v%d, v%d, v%d" % (xd, CA + T * 4, CA + T * 4 + 1))
        a("ds_write_b16 v141, v%d offset:%d" % (xd, T * 32))
        a("ds_write_b16_d16_hi v141, v%d offset:%d" % (xd, T * 32 + 160))
    for T in range(5):
        v("v_cvt_pk_bf16_f32 v%d, v%d, v%d" % (KO + T * 4 + 2, CA + T * 4 + 2, CA + T * 4 + 3))
        v("v_cvt_pk_bf16_f32 v%d, v%d, v%d" % (KO + T * 4, KA + T * 4, KA + T * 4 + 1))
        v("v_cvt_pk_bf16_f32 v%d, v%d, v%d" % (KO + T * 4 + 1, KA + T * 4 + 2, KA + T * 4 + 3))
        v("v_mov_b32 v%d, 0" % (KO + T * 4 + 3))
        if T:
            q = QO + (T - 1) * 4
            v("v_cvt_pk_bf16_f32 v%d, v%d, v%d" % (q, QA + (T - 1) * 4, QA + (T - 1) * 4 + 1))
            v("v_cvt_pk_bf16_f32 v%d, v%d, v%d" % (q + 1, QA + (T - 1) * 4 + 2, QA + (T - 1) * 4 + 3))
            v("v_mov_b32 v%d, 0" % (q + 3))
    for T in range(5):
        a("ds_read_b64 %s, v142 offset:%d" % (q2(V2 + 2 * T), T * 32))
    SP = YF
    Ts = range(1, 5)
    for T in Ts:
        q = q4(QO + (T - 1) * 4)
        sp = SP + (T - 1) * 8
        a("%s %s, %s, %s, %s" % (MF, q4(sp), q4(KO + (T - 1) * 4), q, q4(SM) if T == 1 else "0"))
        a("%s %s, %s, %s, 0" % (MF, q4(sp + 4), q4(KO + T * 4), q))
    for T in range(5):
        v("v_cvt_pk_bf16_f32 v%d, v%d, v%d" % (VP + 2 * T, VA + T * 4, VA + T * 4 + 1))
        v("v_cvt_pk_bf16_f32 v%d, v%d, v%d" % (VP + 2 * T + 1, VA + T * 4 + 2, VA + T * 4 + 3))
    a("s_mov_b32 s19, %s" % f32bits((18.0 ** -0.5) * math.log2(math.e)))
    W = lambda T, k: 16 + (T - 1) * 8 + k
    for T in Ts:
        sp = SP + (T - 1) * 8
        v("v_cndmask_b32 v%d, v%d, v%d, s[70:71]" % (W(T, 2), sp + 4, sp + 5))
        v("v_cndmask_b32 v%d, v%d, v%d, s[70:71]" % (W(T, 3), sp + 0, sp + 1))
        v("v_cndmask_b32 v%d, v%d, v%d, s[70:71]" % (W(T, 4), sp + 6, sp + 7))
        v("v_cndmask_b32 v%d, v%d, v%d, s[70:71]" % (W(T, 5), sp + 2, sp + 3))
        v("v_cndmask_b32 v%d, v%d, v%d, s[72:73]" % (W(T, 0), W(T, 3), W(T, 2)))
        v("v_cndmask_b32 v%d, v%d, v%d, s[74:75]" % (W(T, 1), W(T, 5), W(T, 4)))
        v("v_max_f32 v%d, v%d, v%d" % (W(T, 2), W(T, 0), W(T, 1)))
        v("v_mov_b32 v%d, v%d" % (W(T, 3), W(T, 2)))

    def xlane(op):
        for T in Ts:
            v("v_permlane16_swap_b32 v%d, v%d" % (W(T, 2), W(T, 3)))
        for T in Ts:
            v("%s v%d, v%d, v%d" % (op, W(T, 2), W(T, 2), W(T, 3)))
            v("v_mov_b32 v%d, v%d" % (W(T, 3), W(T, 2)))
        for T in Ts:
            v("v_permlane32_swap_b32 v%d, v%d" % (W(T, 2), W(T, 3)))
        for T in Ts:
            v("%s v%d, v%d, v%d" % (op, W(T, 2), W(T, 2), W(T, 3)))

    xlane("v_max_f32")
    for T in Ts:
        v("v_sub_f32 v%d, v%d, v%d" % (W(T, 0), W(T, 0), W(T, 2)))
        v("v_sub_f32 v%d, v%d, v%d" % (W(T, 1), W(T, 1), W(T, 2)))
        v("v_mul_f32 v%d, s19, v%d" % (W(T, 0), W(T, 0)))
        v("v_mul_f32 v%d, s19, v%d" % (W(T, 1), W(T, 1)))
    for T in Ts:
        v("v_exp_f32 v%d, v%d" % (W(T, 0), W(T, 0)))
        v("v_exp_f32 v%d, v%d" % (W(T, 1), W(T, 1)))
    for T in Ts:
        v("v_add_f32 v%d, v%d, v%d" % (W(T, 2), W(T, 0), W(T, 1)))
        v("v_mov_b32 v%d, v%d" % (W(T, 3), W(T, 2)))
    xlane("v_add_f32")
    for T in Ts:
        v("v_rcp_f32 v%d, v%d" % (W(T, 2), W(T, 2)))
    for T in Ts:
        v("v_mul_f32 v%d, v%d, v%d" % (W(T, 0), W(T, 0), W(T, 2)))
        v("v_mul_f32 v%d, v%d, v%d" % (W(T, 1), W(T, 1), W(T, 2)))
        v("v_cvt_pk_bf16_f32 v%d, v%d, v%d" % (W(T, 0), W(T, 0), W(T, 0)))
        v("v_cvt_pk_bf16_f32 v%d, v%d, v%d" % (W(T, 1), W(T, 1), W(T, 1)))
        v("v_and_b32 v%d, v%d, v%d" % (W(T, 4), W(T, 0), MSK + 0))
        v("v_and_b32 v%d, v%d, v%d" % (W(T, 5), W(T, 1), MSK + 1))
        v("v_and_b32 v%d, v%d, v%d" % (W(T, 6), W(T, 0), MSK + 2))
        v("v_and_b32 v%d, v%d, v%d" % (W(T, 7), W(T, 1), MSK + 3))
    while side:
        side.pop(0)()
    a("s_waitcnt lgkmcnt(0)")
    for T in Ts:
        sp = SP + (T - 1) * 8
        p = q4(W(T, 4))
        a("%s %s, %s, %s, 0" % (MF, q4(sp), q4(VP + 2 * (T - 1)), p))
        a("%s %s, %s, %s, 0" % (MF, q4(sp + 4), q4(V2 + 2 * (T - 1)), p))
    a("s_add_u32 s66, s62, %s" % hex(oO))
    a("s_lshl_b32 s67, s4, 11")
    a("s_add_u32 s67, s67, s66")
    a("s_lshl_b32 s68, s4, 8")
    a("s_add_u32 s68, s68, s66")
    a("s_add_u32 s68, s68, 16384")
    for T in Ts:
        sp = SP + (T - 1) * 8
        o = 48 + (T - 1) * 4
        cvt(o, sp, sp + 1)
        cvt(o + 1, sp + 2, sp + 3)
        cvt(o + 2, sp + 4, sp + 5)
        a("ds_write_b64 v143, %s offset:%d" % (q2(o), (T - 1) * 3072))
        a("ds_write_b32 v144, v%d offset:%d" % (o + 2, (T - 1) * 3072))
    a("s_waitcnt lgkmcnt(0)")
    vm.wait("wo")
    a("s_barrier")
    for st in range(3):
        a("ds_read_b128 %s, v145 offset:%d" % (q4(224 + st * 4), st * 1024))
    for st in range(3):
        a("s_waitcnt lgkmcnt(%d)" % (2 - st))
        if st < 2:
            vm.op("buffer_store_dwordx4 %s, v2, s[40:43], s67 offen offset:%d%s" % (q4(224 + st * 4), st * 1024, STF), "st")
        else:
            vm.op("buffer_store_dwordx4 %s, v221, s[40:43], s68 offen%s" % (q4(232), STF), "st")
    stamp(2)

    WS = 48
    ACC, FIN, AUGW, TMP, KC, AB = 144, 160, 176, 180, 192, 204
    PK = 204

    def ring(q):
        return 16 + (q % NR) * 4

    def m_voffs():
        a("s_mul_i32 s9, s4, 36")
        a("s_add_u32 s9, s9, s3")
        a("s_mul_i32 s11, s9, 18432")
        a("s_add_u32 s11, s11, %s" % hex(W1P))
        a("v_add_u32 v7, s11, v2")
        for k in range(1, 5):
            a("v_add_u32 v%d, %d, v7" % (7 + k, 4096 * k))
        a("s_lshl_b32 s11, s9, 8")
        a("s_add_u32 s11, s11, %s" % hex(AUG))
        a("v_lshl_add_u32 v12, v4, 4, s11")
        if GROT == 1:
            for n in range(9):
                a("s_mov_b32 s%d, %d" % (WS + n, n * 4 * 18432))
        else:
            a("s_and_b32 s12, s5, %d" % (GROT - 1))
            a("s_mul_i32 s12, s12, %d" % (8 // GROT))
            for n in range(8):
                a("s_add_u32 s11, s12, %d" % n)
                a("s_and_b32 s11, s11, 7")
                a("s_mul_i32 s%d, s11, %d" % (WS + n, 4 * 18432))
            a("s_mov_b32 s%d, %d" % (WS + 8, 8 * 4 * 18432))

    W2T, STT = 76, 57
    sst = lambda n: (57 + n) if n < 3 else (85 + n - 3)

    def mload(q):
        def f():
            n, s = divmod(q, 18)
            sr = WS + n if n < 9 else W2T + n - 9
            vm.op("buffer_load_dwordx4 %s, v%d, s[40:43], s%d offen offset:%d%s" % (q4(ring(q)), 7 + s // 4, sr, (s % 4) * 1024, LD if (n >= 9 and W2D and not E("NOSC", 0)) else MLD), ("m", q))
        return f

    def aload(n):
        vm.op("buffer_load_dwordx4 %s, v12, s[40:43], s%d offen" % (q4(AUGW), 91), ("aug", n))

    def kslot(ks, tl):
        return ((ks % 12) * 5 + tl) * 4

    def kread(ks, tl):
        def f():
            base, off = (13, ks * 4608) if ks < 10 else (14, ((ks - 10) >> 1) * 18432 + ((ks - 10) & 1) * 4608)
            if tl == 4:
                base += 2
            lg.op("ds_read_b128 %s, v%d offset:%d" % (q4(kslot(ks, tl), "a"), base if base != 16 else 6, off + tl * 1024), ("k", ks))
        return f

    def k2_pre():
        a("v_add_u32 v13, %d, v2" % L_WA)
        a("v_add_u32 v14, %d, v2" % L_WB)
        a("v_and_b32 v15, 7, v4")
        a("v_lshlrev_b32 v15, 4, v15")
        a("v_lshl_add_u32 v15, v3, 7, v15")
        a("v_add_u32 v6, %d, v15" % L_WB)
        a("v_add_u32 v15, %d, v15" % L_WA)
        for ks in range(K2PRE):
            for tl in range(5):
                kread(ks, tl)()

    XU = 224
    def x_unpack():
        for k in range(12):
            unpack(XU + 2 * k, XR + k)

    m_voffs()
    HBA, HBB, HCA, HCB = [int(x) for x in os.environ.get("HP", "8,10,6,8").split(",")]
    nb = HBA + HBB
    assert nb <= 18
    PRE = nb + HCA + HCB
    hc = list(range(nb, PRE))
    hca = [q for q in hc if q < 18 or q >= 26][:HCA]
    hcb = [q for q in hc if q not in hca]
    hop("st", pre_a=[mload(q) for q in range(HBA)],
        pre_b=[k2_pre] + [mload(q) for q in range(HBA, nb)] + [x_unpack])
    stamp(3)

    OFR, KAC = 88, 160
    a("v_add_u32 v5, 4096, v2")
    rest = [kread(ks, tl) for ks in range(K2PRE, 12) for tl in range(5)]
    a("s_add_u32 s14, s66, 8192")
    a("s_add_u32 s15, s66, 16384")

    def oload(ks):
        vm.op("buffer_load_dwordx4 %s, v%d, s[40:43], s%d offen offset:%d%s" % (q4(OFR + ks * 4), (2, 5)[(ks % 8) // 4], (66, 14, 15)[ks // 8], (ks % 4) * 1024, LD), ("o", ks))

    OA = E("OA", 10)
    for ks in range(OA):
        oload(ks)
        for f in rest[:3]:
            f()
        rest = rest[3:]
    for f in rest:
        f()
    for ks in range(18):
        vm.wait(("o", ks))
        lg.wait(("k", ks))
        for tl in range(5):
            a("%s %s, %s, %s, %s" % (MF, q4(KAC + tl * 4), q4(kslot(ks, tl), "a"), q4(OFR + ks * 4), "0" if ks == 0 else q4(KAC + tl * 4)))
            if ks < 6:
                kread(ks + 12, tl)()
            if tl in (0, 2) and OA + 2 * ks + tl // 2 < 18:
                oload(OA + 2 * ks + tl // 2)
    if E("XP", 0):
        stamp(14)
    TP, TU = 180, 88
    for tl in range(5):
        cvt(TP + 2 * tl, KAC + 4 * tl, KAC + 4 * tl + 1)
        cvt(TP + 2 * tl + 1, KAC + 4 * tl + 2, KAC + 4 * tl + 3)
    for kk in range(3):
        a("v_permlane16_swap_b32 v%d, v%d" % (TP + 4 * kk, TP + 4 * kk + 2))
        a("v_permlane16_swap_b32 v%d, v%d" % (TP + 4 * kk + 1, TP + 4 * kk + 3))
    for k in range(8, 12):
        a("v_and_b32 v%d, v%d, v222" % (TP + k, TP + k))
    for kk in range(3):
        for k in range(4 * kk, 4 * kk + 4):
            unpack(TU + 2 * k, TP + k)
        for k in range(4 * kk, 4 * kk + 4):
            a("v_pk_add_f32 %s, %s, %s" % (q2(TU + 2 * k), q2(TU + 2 * k), q2(XU + 2 * k)))
        for k in range(4 * kk, 4 * kk + 4):
            cvt(XR + k, TU + 2 * k, TU + 2 * k + 1)
        vm.op("buffer_store_dwordx4 %s, v%d, s[40:43], s65 offen offset:%d%s" % (q4(XR + 4 * kk), 220 if kk < 2 else 221, kk * 1024, STF), "st")
    for k in range(12):
        unpack(TU + 2 * k, XR + k)
    S0 = 112
    a("v_pk_add_f32 %s, %s, %s" % (q2(S0), q2(TU), q2(TU + 2)))
    a("v_pk_add_f32 %s, %s, %s" % (q2(S0 + 2), q2(TU + 4), q2(TU + 6)))
    for k in range(4, 12, 2):
        a("v_pk_add_f32 %s, %s, %s" % (q2(S0), q2(S0), q2(TU + 2 * k)))
        a("v_pk_add_f32 %s, %s, %s" % (q2(S0 + 2), q2(S0 + 2), q2(TU + 2 * k + 2)))
    a("v_pk_add_f32 %s, %s, %s" % (q2(S0), q2(S0), q2(S0 + 2)))
    a("v_add_f32 v%d, v%d, v%d" % (S0, S0, S0 + 1))
    xsum(S0, S0 + 1)
    a("v_mul_f32 v%d, %s, v%d" % (S0 + 4, f32bits(1.0 / 72.0), S0))
    a("v_sub_f32 v%d, 0, v%d" % (S0 + 6, S0 + 4))
    a("v_mov_b32 v%d, v%d" % (S0 + 7, S0 + 6))
    a("v_and_b32 v%d, v%d, v222" % (S0 + 8, S0 + 6))
    a("v_mov_b32 v%d, v%d" % (S0 + 9, S0 + 8))
    for k in range(12):
        a("v_pk_add_f32 %s, %s, %s" % (q2(TU + 2 * k), q2(TU + 2 * k), q2(S0 + 6 if k < 8 else S0 + 8)))
    a("v_pk_mul_f32 %s, %s, %s" % (q2(S0), q2(TU), q2(TU)))
    a("v_pk_mul_f32 %s, %s, %s" % (q2(S0 + 2), q2(TU + 2), q2(TU + 2)))
    for k in range(2, 12):
        r = S0 + 2 * (k % 2)
        a("v_pk_fma_f32 %s, %s, %s, %s" % (q2(r), q2(TU + 2 * k), q2(TU + 2 * k), q2(r)))
    a("v_pk_add_f32 %s, %s, %s" % (q2(S0), q2(S0), q2(S0 + 2)))
    a("v_add_f32 v%d, v%d, v%d" % (S0 + 5, S0, S0 + 1))
    xsum(S0 + 5, S0 + 1)
    a("s_lshl_b32 s15, s5, 12")
    a("s_add_u32 s69, s15, s44")
    a("s_add_u32 s69, s69, %s" % hex(oST))
    a("s_lshl_b32 s15, s4, 9")
    a("s_lshl_b32 s19, s3, 7")
    a("s_add_u32 s15, s15, s19")
    a("s_add_u32 s15, s15, s69")
    a("v_lshrrev_b32 v%d, 1, v221" % (S0 + 1))
    vm.op("buffer_store_dwordx2 %s, v%d, s[40:43], s15 offen%s" % (q2(S0 + 4), S0 + 1, STF), "st")
    stamp(4)

    def m_setup():
        mod_small("s6", "s5", MROT)
        a("s_mul_i32 s6, s6, %d" % (NROT // MROT))
        a("s_mul_i32 s10, s3, %d" % (8 * 18432))
        a("s_add_u32 s10, s10, %s" % hex(W2P - W1P))
        a("s_lshl_b32 s11, s5, 3")
        a("s_add_u32 s11, s11, s4")
        a("s_mul_i32 s11, s11, %d" % TB)
        if PSHARE:
            a("s_add_u32 s11, s11, %s" % hex(PARTB))
        else:
            a("s_add_u32 s11, s11, s44")
            a("s_add_u32 s11, s11, %s" % hex(oPART))
        a("s_mul_i32 s14, s3, 4608")
        a("s_add_u32 s11, s11, s14")
        for n in range(9):
            a("s_mul_i32 s%d, s6, 18432" % (W2T + n))
            a("s_add_u32 s%d, s%d, s10" % (W2T + n, W2T + n))
            a("s_lshl_b32 s%d, s6, 9" % sst(n))
            a("s_add_u32 s%d, s%d, s11" % (sst(n), sst(n)))
            if n < NROT - 1:
                a("s_add_u32 s6, s6, 1")
                a("s_cmp_eq_u32 s6, %d" % NROT)
                a("s_cselect_b32 s6, 0, s6")
            else:
                a("s_mov_b32 s6, %d" % (n + 1))
        a("v_add_u32 v13, 36864, v2")
        a("v_add_u32 v14, %d, v2" % TB)
        a("v_add_u32 v15, %d, v2" % (TB + 36864))
        a("v_and_b32 v5, 1, v3")
        a("v_mul_u32_u24 v5, 18432, v5")
        a("v_lshl_add_u32 v5, v4, 4, v5")
        a("v_lshrrev_b32 v6, 5, v1")
        a("v_lshl_add_u32 v5, v6, 8, v5")
        a("v_add_u32 v6, 36864, v5")
        a("s_lshr_b32 s14, s3, 1")
        a("s_lshl_b32 s14, s14, 10")
        a("s_and_b32 s15, s3, 1")
        a("s_lshl_b32 s15, s15, 3")
        a("s_add_u32 s14, s14, s15")
        a("v_add_u32 v222, s14, v14")
        a("v_add_u32 v223, s14, v15")
        a("v_lshlrev_b32 v220, 3, v1")
        a("s_mul_i32 s8, s3, 18432")
        a("s_add_u32 s62, s62, %s" % hex(oX1))
        if GROT == 1:
            a("s_mov_b32 s91, 0")
        else:
            a("s_lshl_b32 s91, s12, 10")
            a("s_lshl_b32 s19, s12, 11")
            a("v_add_u32 v222, s19, v222")
            a("v_add_u32 v223, s19, v223")

    def w2arrive():
        if W2D:
            a("s_add_u32 s23, s4, 256")
            a("s_mul_i32 s23, s23, %d" % CST)
            a("s_cmp_lg_u32 s45, 0")
            a("s_cbranch_scc1 W2_c")
            arrive("s23", ret=False)
            a("W2_c:")

    hop("st", pre_a=[w2pack1] + [mload(q) for q in hca],
        pre_b=[m_setup, lambda: aload(0)] + [mload(q) for q in hcb])
    stamp(5)

    def fr(T, s):
        k = s * 4 + T
        return q4(k * 4, "a") if k < 64 else q4(224 + (k - 64) * 4)

    def xdma(s):
        a("s_add_u32 m0, s8, %d" % (s * 1024))
        a("s_add_u32 s11, s62, %d" % (s * 1024))
        vm.op("buffer_load_dwordx4 v2, s[40:43], s11 offen%s lds" % LD, ("y", XST[s]))

    a("s_barrier")
    XA = E("XA", 14)
    for s in range(XA):
        xdma(s)
        if s == 2:
            for j in range(8):
                vm.op("buffer_load_dwordx2 %s, v220, s[40:43], s69 offen offset:%d%s" % (q2(FIN + 2 * j), j * 512, LD), "stat")
    late = []

    c0 = -2.0 * math.sqrt(2.0 / math.pi) * math.log2(math.e)

    def stat_ops():
        ops = []
        e = lambda t, c=4: ops.append((t, c))
        m = lambda j: FIN + 2 * j
        t0 = TMP
        MEAN, VAR, M1, S1, M2, S2, RS = t0, t0 + 1, t0 + 2, t0 + 3, t0 + 4, t0 + 5, t0 + 6
        ops.append(("WAIT", 0))
        e("v_add_f32 v%d, v%d, v%d" % (MEAN, m(0), m(1)))
        e("v_add_f32 v%d, v%d, v%d" % (VAR, m(0) + 1, m(1) + 1))
        for j in range(2, 8):
            e("v_add_f32 v%d, v%d, v%d" % (MEAN, MEAN, m(j)))
            e("v_add_f32 v%d, v%d, v%d" % (VAR, VAR, m(j) + 1))
        e("v_mul_f32 v%d, %s, v%d" % (MEAN, f32bits(0.125), MEAN))
        e("v_mul_f32 v%d, %s, v%d" % (VAR, f32bits(1.0 / 72.0), VAR))
        for j in range(8):
            e("v_sub_f32 v%d, v%d, v%d" % (m(j), m(j), MEAN))
        for j in range(8):
            e("v_fmac_f32 v%d, v%d, v%d" % (VAR, m(j), m(j)))
        e("v_mul_f32 v%d, %s, v%d" % (VAR, f32bits(0.125), VAR))
        ln_scalars(MEAN, VAR, M1, S1, e)
        e("v_rcp_f32 v%d, v%d" % (RS, S1), 8)
        e("v_sub_f32 v%d, v%d, v%d" % (MEAN, MEAN, M1))
        e("v_mul_f32 v%d, v%d, v%d" % (MEAN, MEAN, RS))
        e("v_mul_f32 v%d, v%d, v%d" % (VAR, VAR, RS))
        e("v_mul_f32 v%d, v%d, v%d" % (VAR, VAR, RS))
        ln_scalars(MEAN, VAR, M2, S2, e)
        MU, R = M1, S1
        e("v_fmac_f32 v%d, v%d, v%d" % (MU, M2, S1))
        e("v_mul_f32 v%d, v%d, v%d" % (R, S1, S2))
        D0, D1, D2, H = t0 + 7, t0 + 8, t0 + 9, t0 + 10
        e("v_cvt_pk_bf16_f32 v%d, v%d, v%d" % (D1, MU, R))
        e("v_lshlrev_b32 v%d, 16, v%d" % (H, D1))
        e("v_sub_f32 v%d, v%d, v%d" % (H, MU, H))
        e("v_cvt_pk_bf16_f32 v%d, v%d, v%d" % (D0, MU, H))
        e("v_and_b32 v%d, 0xffff0000, v%d" % (H, D1))
        e("v_sub_f32 v%d, v%d, v%d" % (H, R, H))
        e("v_cvt_pk_bf16_f32 v%d, v%d, v%d" % (D2, MU, H))
        for T in range(4):
            e("v_cmp_eq_u32 vcc, %d, v3" % T)
            for k, d in enumerate((D0, D1, D0, D2)):
                e("v_cndmask_b32 v%d, 0, v%d, vcc" % (AB + 4 * T + k, d))
        r0, r1, r2, r3 = KC + 8, KC + 9, KC + 10, KC + 11
        e("v_mov_b32 v%d, v%d" % (r0, R))
        e("v_mov_b32 v%d, v%d" % (r2, R))
        e("v_permlane32_swap_b32 v%d, v%d" % (r0, r2))
        e("v_mov_b32 v%d, v%d" % (r1, r0))
        e("v_mov_b32 v%d, v%d" % (r3, r2))
        e("v_permlane16_swap_b32 v%d, v%d" % (r0, r1))
        e("v_permlane16_swap_b32 v%d, v%d" % (r2, r3))
        for T in range(4):
            e("v_rcp_f32 v%d, v%d" % (KC + T, KC + 8 + T), 8)
        for T in range(4):
            e("v_mul_f32 v%d, v%d, v%d" % (KC + 4 + T, KC + T, KC + T))
            e("v_mul_f32 v%d, %s, v%d" % (KC + T, f32bits(c0), KC + T))
            e("v_mul_f32 v%d, v%d, v%d" % (KC + 4 + T, KC + 4 + T, KC + T))
            e("v_mul_f32 v%d, %s, v%d" % (KC + 4 + T, f32bits(0.044715), KC + 4 + T))
        return ops

    def gelu_ops(tl):
        ops = []
        for T in range(4):
            x = [FIN + 4 * T + r for r in range(4)]
            t = [TMP + (T % 2) * 6 + r for r in range(4)]
            pk = TMP + (T % 2) * 6 + 4
            if "nogelu" in ABL:
                ops.append(("v_cvt_pk_bf16_f32 v%d, v%d, v%d" % (pk, x[0], x[1]), 4))
                ops.append(("v_cvt_pk_bf16_f32 v%d, v%d, v%d" % (pk + 1, x[2], x[3]), 4))
                ops.append(("ds_write_b64 v%d, %s offset:%d" % ((222, 223)[T // 2], q2(pk), (T % 2) * 18432 + tl * 2048), 4))
                continue
            for r in range(4):
                ops.append(("v_mul_f32 v%d, v%d, v%d" % (t[r], x[r], x[r]), 4))
            for r in range(4):
                ops.append(("v_fma_f32 v%d, v%d, v%d, v%d" % (t[r], t[r], KC + 4 + T, KC + T), 4))
            for r in range(4):
                ops.append(("v_mul_f32 v%d, v%d, v%d" % (t[r], t[r], x[r]), 4))
            for r in range(4):
                ops.append(("v_exp_f32 v%d, v%d" % (t[r], t[r]), 8))
            for r in range(4):
                ops.append(("v_fma_f32 v%d, v%d, v%d, v%d" % (t[r], t[r], KC + 8 + T, KC + 8 + T), 4))
            for r in range(4):
                ops.append(("v_rcp_f32 v%d, v%d" % (t[r], t[r]), 8))
            for r in range(4):
                ops.append(("v_mul_f32 v%d, v%d, v%d" % (t[r], t[r], x[r]), 4))
            ops.append(("v_cvt_pk_bf16_f32 v%d, v%d, v%d" % (pk, t[0], t[1]), 4))
            ops.append(("v_cvt_pk_bf16_f32 v%d, v%d, v%d" % (pk + 1, t[2], t[3]), 4))
            ops.append(("ds_write_b64 v%d, %s offset:%d" % ((222, 223)[T // 2], q2(pk), (T % 2) * 18432 + (tl * 2048 if GROT == 1 else 0)), 4))
        if GROT > 1 and tl < 8:
            if tl < 7:
                ops.append(("s_add_u32 s6, s19, 2048", 1))
                ops.append(("s_and_b32 s6, s6, 0x3fff", 1))
            else:
                ops.append(("s_mov_b32 s6, 16384", 1))
            ops.append(("s_sub_u32 s7, s6, s19", 1))
            ops.append(("s_mov_b32 s19, s6", 1))
            ops.append(("v_add_u32 v222, s7, v222", 4))
            ops.append(("v_add_u32 v223, s7, v223", 4))
        return ops

    def out_ops(n2):
        ops = []
        for T in range(4):
            ops.append(("v_cvt_pk_bf16_f32 v%d, v%d, v%d" % (PK + 2 * T, FIN + 4 * T, FIN + 4 * T + 1), 4))
            ops.append(("v_cvt_pk_bf16_f32 v%d, v%d, v%d" % (PK + 2 * T + 1, FIN + 4 * T + 2, FIN + 4 * T + 3), 4))
            if T % 2 == 1:
                ops.append(("v_permlane16_swap_b32 v%d, v%d" % (PK + 2 * T - 2, PK + 2 * T), 4))
                ops.append(("v_permlane16_swap_b32 v%d, v%d" % (PK + 2 * T - 1, PK + 2 * T + 1), 4))
                ops.append(("buffer_store_dwordx4 %s, v%d, s[40:43], s%d offen%s" % (q4(PK + 2 * T - 2), (5, 6)[T // 2], sst(n2), STF), 4))
        return ops

    cur = [0]

    def emit_fill(op):
        if op == "WAIT":
            vm.wait("stat")
        elif op.startswith("ds_"):
            lg.op(op, "hw")
        elif op.startswith("buffer_store"):
            vm.op(op, "st")
            cur[0] += 1
            if cur[0] == 2 * NE1:
                vm.ops[-1] = "st5"
        elif op.startswith("PL"):
            pload(int(op[2:]))
        else:
            if E("E64", 0) and op.split()[0] in ("v_mul_f32", "v_exp_f32", "v_rcp_f32") and "0x" not in op:
                op = op.replace("_f32 ", "_f32_e64 ", 1)
            a(op)

    def act1(T, s, second):
        off = ((T % 2) * 18 + s) * 1024
        base = ((2, 13), (14, 15))[second][T // 2]
        lg.op("ds_read_b128 %s, v%d offset:%d" % (fr(T, s), base, off), ("act", second, s))

    DT, XQ, BQ, SEL, XP = 88, 108, 128, 148, 156
    PR = lambda n: 32 + 4 * n if n < 14 else 16 + 4 * (n - 14)
    order = [(k, st, hf) for k in range(5) for st in range(2) for hf in range(2) if not (k == 4 and st == 1)]

    def r_addr_ops():
        ops = []
        e = lambda t: ops.append((t, 4))
        e("s_lshr_b32 s6, s4, 1")
        e("s_mul_i32 s6, s6, 18432")
        e("s_and_b32 s7, s4, 1")
        e("s_lshl_b32 s7, s7, 7")
        e("s_add_u32 s6, s6, s7")
        e("s_mul_i32 s7, s3, 4608")
        e("s_add_u32 s6, s6, s7")
        e("s_add_u32 s6, s6, s44")
        e("s_lshl_b32 s7, s47, 3")
        e("s_add_u32 s48, s6, s7")
        if PSHARE:
            e("s_sub_u32 s48, s48, s44")
            e("s_add_u32 s48, s48, %s" % hex(PARTB))
        else:
            e("s_add_u32 s48, s48, %s" % hex(oPART))
        e("s_add_u32 s49, s48, %d" % (4 * TB))
        e("s_add_u32 s50, s48, 4096")
        e("s_add_u32 s51, s49, 4096")
        e("s_add_u32 s6, s6, s47")
        e("s_add_u32 s52, s6, %s" % hex(oX1))
        e("s_add_u32 s53, s52, 4096")
        e("s_add_u32 s54, s6, %s" % hex(LS + oXA))
        e("s_add_u32 s55, s6, %s" % hex(LS + oY))
        e("v_and_b32 v176, 7, v1")
        e("v_bfe_u32 v177, v1, 3, 1")
        e("v_lshlrev_b32 v178, 4, v176")
        e("v_lshl_add_u32 v178, v177, 8, v178")
        e("v_mul_u32_u24 v179, %d, v3" % TB)
        e("v_add_u32 v179, v179, v178")
        e("v_and_b32 v180, 1, v3")
        e("v_lshrrev_b32 v181, 1, v3")
        e("v_lshl_add_u32 v182, v181, 9, v178")
        e("v_lshl_add_u32 v183, v180, 10, v182")
        e("v_lshl_add_u32 v182, v180, 3, v182")
        e("v_lshlrev_b32 v184, 4, v177")
        e("v_lshl_add_u32 v184, v181, 5, v184")
        e("v_mul_u32_u24 v185, 1152, v176")
        e("v_add_u32 v185, v185, v184")
        e("v_lshl_add_u32 v185, v180, 6, v185")
        e("v_lshl_add_u32 v184, v180, 3, v184")
        e("v_mov_b32 v188, %s" % hex(OOB))
        e("v_cmp_eq_u32 vcc, 0, v3")
        e("v_add_u32 v186, 4096, v183")
        e("v_cndmask_b32 v186, v188, v186, vcc")
        e("v_cndmask_b32 v187, v188, v185, vcc")
        e("v_cmp_gt_u32 vcc, 2, v3")
        e("v_cndmask_b32 v188, 0, -1, vcc")
        e("s_lshl_b32 s66, s45, 31")
        e("s_add_u32 s60, s60, s66")
        for G in range(1, 6):
            e("s_add_u32 s%d, s66, %d" % (66 + G, G * 12288))
        return ops

    def r_setup():
        srd(36, 28, 0, 1152)
        a("s_mul_i32 s56, s3, 288")
        for k in range(5):
            vm.op("buffer_load_dwordx2 %s, v182, s[40:43], s%d offen offset:%d%s" % (q2(XP + 2 * k), 52 if k < 4 else 53, (k % 4) * 1024, LD), "rx")
            vm.op("buffer_load_dwordx2 %s, v184, s[36:39], s56 offen offset:%d" % (q2(XP + 10 + 2 * k), k * 64), "rx")
        a("v_and_b32 v189, 1, v4")
        a("v_lshlrev_b32 v189, 4, v189")
        a("v_mov_b32 v190, 0x3f80")
        a("v_lshlrev_b32 v189, v189, v190")
        a("v_lshrrev_b32 v190, 1, v4")
        for k in range(8):
            a("v_cmp_eq_u32 vcc, %d, v190" % k)
            a("v_cndmask_b32 v%d, 0, v189, vcc" % (SEL + k))
        a("v_lshlrev_b32 v190, 5, v176")
        a("s_lshl_b32 s7, s3, 3")
        a("v_add_u32 v191, s7, v190")


    def pload(n):
        k, st, hf = order[n]
        vm.op("buffer_load_dwordx4 %s, v179, s[40:43], s%d offen offset:%d%s" % (q4(PR(n)), 48 + hf + (2 if k == 4 else 0), ((4 * k + 2 * st) * 256) % 4096, LD), ("p", n))

    kpf = [wload1(i, t, "s%d" % (66 + i // 3)) for i in range(PF) for t in range(4)]
    PFT = E("PFT", 9)
    NQ = 18 * 18
    RAMP = E("RAMP", 144)
    sched = {}
    for q in range(PRE, NQ):
        c = max(q - NR, int((q - PRE) * RAMP / (RAMP + NR - PRE)))
        sched.setdefault(c, []).append(q)
    AHEAD = 3
    for n in range(18):
        gemm = 1 if n < 9 else 2
        npos = 19 if gemm == 1 else 18
        if n == 0:
            fill, g0, g1 = stat_ops(), E("SG0", 12), 70
        elif n <= 9:
            fill, g0, g1 = gelu_ops(n - 1), E("GG0", 0), (E("GG1", 74) if n < 9 else 50)
        elif n == 15:
            fill, g0, g1 = out_ops(n - 10) + r_addr_ops(), 8, 68
        else:
            fill, g0, g1 = out_ops(n - 10), 8, 24
        rd = n in (0, 9)
        if n == 0:
            vm.wait(("y", 0))
            a("s_barrier")
            if E("XP", 0):
                stamp(15)
        if W2D and n == E("W2R", 5):
            a("s_mov_b32 s16, 128")
            a("s_cmp_lg_u32 s45, 0")
            a("s_cbranch_scc1 W2_d")
            a("s_mov_b32 s16, 0")
            a("s_atomic_add s16, s[20:21], s23 glc")
            a("W2_d:")
        if W2D and n == 7:
            poll("128", offs=("s23",), issued="poll")
        if n == 16 and NE1:
            poll("s46", issued="poll")
            a("s_add_u32 s46, s46, 8")
        if n == 17:
            vm.wait("st")
            arrive(ret=False)
        if n == 1:
            stamp(6)
            if E("ALN", 0):
                a(".p2align 3")
                if E("ALN", 0) == 2:
                    a("s_nop 0")
        if n == 9:
            stamp(7)
            lg.wait("hw")
            a("s_barrier")
        if n == 10:
            stamp(8)
        if rd:
            for s in range(AHEAD):
                for T in range(4):
                    act1(T, s, n == 9)
        total = sum(c for _, c in fill)
        fi = spent = m = 0
        for s in range(npos):
            q = n * 18 + s
            if rd and s < 18:
                sa = s + AHEAD
                if sa < 18:
                    if n == 0 and XST[sa] != XST[sa - 1]:
                        vm.wait(("y", XST[sa]))
                        a("s_barrier")
                    if n == 9 and sa == 16:
                        assert fi == len(fill)
                        lg.wait("hw")
                        a("s_barrier")
                lg.wait(("act", n == 9, s))
            if n == 0 and s == 11:
                w2pack2()
            if W2D and n == 1 and s == 12:
                vm.wait(("aug", 1))
                w2arrive()
            if NE1 and n == 10 + NE1 and s == 4:
                vm.wait("st5")
                arrive(ret=False)
            if NE1 and n == 15 and s == 10:
                a("s_mov_b32 s16, 0")
                a("s_atomic_add s16, s[20:21], s22 glc")
            if n == 16 and 7 <= s < 7 + 2 * NE1:
                pload(s - 7)
            if s == 18:
                assert fi == len(fill) or (n > 0 and fi > 3 * len(fill) // 4)
                vm.wait(("aug", n))
            elif s % WSTEP == 0:
                n0 = len(a.ins)
                for k in range(WSTEP):
                    vm.wait(("m", q + WSTEP - 1 - k))
                if E("E64", 0) and (len(a.ins) - n0) % 2:
                    a("s_nop 0")
            for T in range(4):
                last = s == npos - 1
                d = (FIN if last else ACC) + 4 * T
                c = "0" if s == 0 else q4(ACC + 4 * T)
                if s == 18:
                    a("%s %s, %s, %s, %s" % (MF, q4(d), q4(AUGW), q4(AB + 4 * T), c))
                else:
                    a("%s %s, %s, %s, %s" % (MF, q4(d), q4(ring(q)), fr(T, s), c))
                if rd and s + AHEAD < 18:
                    act1(T, s + AHEAD, n == 9)
                if n == 0 and T in (0, 2) and XA + 2 * s + T // 2 < 18:
                    xdma(XA + 2 * s + T // 2)
                elif T == 1 and late and not (n == 0 and XA + 2 * s < 18):
                    late.pop(0)()
                if T == 3:
                    if s < 18:
                        for x in sched.get(q, []):
                            late.append(mload(x))
                        if late and not (n == 0 and XA + 2 * s < 18):
                            late.pop(0)()
                    if n == 16 and 4 <= s < 16:
                        wodma(0, s - 4)()
                    if n == 16 and s == 16:
                        kw_voffs()
                    if n == 17:
                        for k in range(s * PFT // 18, (s + 1) * PFT // 18):
                            assert k // 4 <= s
                            kpf[k]()
                    if s == 18 and n < 8:
                        a("s_add_u32 s91, s91, 1024")
                        if GROT > 1:
                            if n < 7:
                                a("s_and_b32 s91, s91, 0x1fff")
                            else:
                                a("s_mov_b32 s91, 8192")
                        aload(n + 1)
                if fill and g0 <= m <= g1:
                    budget = total * (m - g0 + 1) / (g1 - g0 + 1)
                    while fi < len(fill) and spent + fill[fi][1] / 2 <= budget:
                        emit_fill(fill[fi][0])
                        spent += fill[fi][1]
                        fi += 1
                m += 1
        assert fi == len(fill), (n, fi, len(fill))
    for op, _ in out_ops(8):
        emit_fill(op)
    stamp(9)

    def r_unpack():
        vm.wait("rx")
        for k in range(8, 10):
            a("v_and_b32 v%d, v%d, v188" % (XP + k, XP + k))
            a("v_and_b32 v%d, v%d, v188" % (XP + 10 + k, XP + 10 + k))
        for k in range(10):
            unpack(XQ + 2 * k, XP + k)
            unpack(BQ + 2 * k, XP + 10 + k)


    def pmfma(n):
        k, st, hf = order[n]
        vm.wait(("p", n))
        a("%s %s, %s, %s, %s" % (MF, q4(DT + 4 * k), q4(SEL + 4 * st), q4(PR(n)), q4(BQ + 4 * k) if (st == 0 and hf == 0) else q4(DT + 4 * k)))

    def early():
        a("s_mov_b32 s16, 0")
        a("s_atomic_add s16, s[20:21], s22 glc")
        r_setup()
        poll("s46", issued="poll")
        a("s_add_u32 s46, s46, 8")
        for n in range(2 * NE1, 2 * NE1 + 6):
            pload(n)

    def early2():
        for n in range(2 * NE1 + 6, 14):
            pload(n)
        r_unpack()
        for n in range(2 * NE1):
            pmfma(n)

    kpf = kpf[PFT:]
    n2 = E("PFB", 0)
    hop("st", pre_a=[early], pre_b=[early2] + kpf[:n2])
    kpf = kpf[n2:]
    stamp(10)
    for n in range(14, 18):
        pload(n)
    for n in range(2 * NE1, 18):
        pmfma(n)
    if E("XP", 0) == 2:
        stamp(13)
    n4 = E("PFD", 0)
    for f in kpf[:n4]:
        f()
    kpf = kpf[n4:]
    TK = 192
    for k in range(10):
        cvt(TK + k, DT + 2 * k, DT + 2 * k + 1)
    for k in range(10):
        unpack(DT + 2 * k, TK + k)
    for k in range(10):
        a("v_pk_add_f32 %s, %s, %s" % (q2(DT + 2 * k), q2(DT + 2 * k), q2(XQ + 2 * k)))
    for k in range(10):
        cvt(TK + k, DT + 2 * k, DT + 2 * k + 1)
    for k in range(10):
        unpack(DT + 2 * k, TK + k)
    for kk in range(3):
        a("v_permlane16_swap_b32 v%d, v%d" % (TK + 4 * kk, TK + 4 * kk + 2))
        a("v_permlane16_swap_b32 v%d, v%d" % (TK + 4 * kk + 1, TK + 4 * kk + 3))
    a("s_cmp_eq_u32 s45, 0")
    a("s_cbranch_scc1 R_mid")
    srd(36, 30, 0, ACT)
    a("s_lshl_b32 s6, s5, 3")
    a("s_add_u32 s6, s6, s4")
    a("s_mul_i32 s6, s6, %d" % (8 * 1152))
    a("s_add_u32 s6, s6, s56")
    for kk in range(3):
        a("buffer_store_dwordx4 %s, v%d, s[36:39], s6 offen offset:%d" % (q4(TK + 4 * kk), 185 if kk < 2 else 187, kk * 128))
    stamp(11)
    rstamp(12)
    if os.environ.get("PDBG"):
        a("s_or_b32 s6, s2, s3")
        a("s_cmp_lg_u32 s6, 0")
        a("s_cbranch_scc1 L_exit2")
        a("s_load_dwordx2 s[6:7], s[0:1], %d" % KA_DBG)
        a("s_waitcnt vmcnt(0) lgkmcnt(0)")
        srd(36, 6, 0, 256)
        a("v_lshlrev_b32 v5, 2, v1")
        a("v_mov_b32 v6, %d" % (1 << 19))
        a("buffer_load_dwordx2 v[8:9], v6, s[92:95], 0 offen sc1")
        a("v_mov_b32 v6, %d" % ((1 << 19) + (P_MISC - 1) * 128))
        a("buffer_load_dwordx2 v[10:11], v6, s[92:95], 0 offen sc1")
        a("buffer_load_dword v12, v5, s[92:95], 0 offen offset:64 sc1")
        a("buffer_load_dword v13, off, s[92:95], 0 offset:%d sc1" % (128 + 64 + 44))
        a("s_waitcnt vmcnt(0)")
        a("v_sub_u32 v12, v12, v8")
        a("v_sub_u32 v13, v13, v8")
        a("v_sub_u32 v9, v9, v8")
        a("v_sub_u32 v11, v11, v8")
        a("v_cmp_gt_u32 vcc, 12, v1")
        a("v_mov_b32 v6, %s" % hex(OOB))
        a("v_cndmask_b32 v5, v6, v5, vcc")
        a("buffer_store_dword v12, v5, s[36:39], 0 offen")
        a("buffer_store_dword v13, off, s[36:39], 0 offset:48")
        a("buffer_store_dword v9, off, s[36:39], 0 offset:52")
        a("buffer_store_dword v11, off, s[36:39], 0 offset:56")
    a("L_exit2:")
    a("s_endpgm")
    a("R_mid:")
    for kk in range(3):
        vm.op("buffer_store_dwordx4 %s, v%d, s[40:43], s54 offen offset:%d%s" % (q4(TK + 4 * kk), 183 if kk < 2 else 186, (kk % 2) * 2048, ST), "st")
    S0 = XQ

    a("v_pk_add_f32 %s, %s, %s" % (q2(S0), q2(DT), q2(DT + 2)))
    a("v_pk_add_f32 %s, %s, %s" % (q2(S0 + 2), q2(DT + 4), q2(DT + 6)))
    for k in range(4, 10, 2):
        a("v_pk_add_f32 %s, %s, %s" % (q2(S0), q2(S0), q2(DT + 2 * k)))
        a("v_pk_add_f32 %s, %s, %s" % (q2(S0 + 2), q2(S0 + 2), q2(DT + 2 * k + 2)))
    a("v_pk_add_f32 %s, %s, %s" % (q2(S0), q2(S0), q2(S0 + 2)))
    a("v_add_f32 v%d, v%d, v%d" % (S0, S0, S0 + 1))
    MEAN, VAR, M, SD = S0 + 8, S0 + 9, S0 + 10, S0 + 12
    xsum(S0, S0 + 1, ror8=True)
    a("v_mul_f32 v%d, %s, v%d" % (S0 + 14, f32bits(-1.0 / 144.0), S0))
    a("v_mov_b32 v%d, v%d" % (S0 + 15, S0 + 14))
    a("v_and_b32 v%d, v%d, v188" % (S0 + 16, S0 + 14))
    a("v_mov_b32 v%d, v%d" % (S0 + 17, S0 + 16))
    for k in range(10):
        a("v_pk_add_f32 %s, %s, %s" % (q2(BQ + 2 * k), q2(DT + 2 * k), q2(S0 + 14 if k < 8 else S0 + 16)))
    a("v_pk_mul_f32 %s, %s, %s" % (q2(S0), q2(BQ), q2(BQ)))
    a("v_pk_mul_f32 %s, %s, %s" % (q2(S0 + 2), q2(BQ + 2), q2(BQ + 2)))
    for k in range(2, 10):
        r = S0 + 2 * (k % 2)
        a("v_pk_fma_f32 %s, %s, %s, %s" % (q2(r), q2(BQ + 2 * k), q2(BQ + 2 * k), q2(r)))
    a("v_pk_add_f32 %s, %s, %s" % (q2(S0), q2(S0), q2(S0 + 2)))
    a("v_add_f32 v%d, v%d, v%d" % (S0 + 15, S0, S0 + 1))
    xsum(S0 + 15, S0 + 1, ror8=True)
    a("ds_write_b64 v191, %s" % q2(S0 + 14))
    a("s_waitcnt lgkmcnt(0)")
    a("s_barrier")
    a("ds_read_b128 %s, v190" % q4(S0))
    a("ds_read_b128 %s, v190 offset:16" % q4(S0 + 4))
    a("s_waitcnt lgkmcnt(0)")
    a("v_pk_add_f32 %s, %s, %s" % (q2(MEAN), q2(S0), q2(S0 + 2)))
    a("v_pk_add_f32 %s, %s, %s" % (q2(M), q2(S0 + 4), q2(S0 + 6)))
    a("v_pk_add_f32 %s, %s, %s" % (q2(MEAN), q2(MEAN), q2(M)))
    a("v_mul_f32 v%d, %s, v%d" % (MEAN, f32bits(-0.25), MEAN))
    a("v_mul_f32 v%d, %s, v%d" % (VAR, f32bits(1.0 / 144.0), VAR))
    for k in range(4):
        a("v_add_f32 v%d, v%d, v%d" % (S0 + 2 * k, S0 + 2 * k, MEAN))
    for k in range(4):
        a("v_fmac_f32 v%d, v%d, v%d" % (VAR, S0 + 2 * k, S0 + 2 * k))
    a("v_mul_f32 v%d, %s, v%d" % (VAR, f32bits(0.25), VAR))
    ln_scalars(MEAN, VAR, M, SD)
    a("v_rcp_f32 v%d, v%d" % (SD, SD))
    a("v_sub_f32 v%d, 0, v%d" % (M, M))
    a("v_mov_b32 v%d, v%d" % (M + 1, M))
    a("v_mov_b32 v%d, v%d" % (SD + 1, SD))
    for k in range(10):
        a("v_pk_add_f32 %s, %s, %s" % (q2(DT + 2 * k), q2(DT + 2 * k), q2(M)))
    TY = 204
    for k in range(10):
        cvt(TY + k, DT + 2 * k, DT + 2 * k + 1)
    for k in range(10):
        unpack(DT + 2 * k, TY + k)
    for k in range(10):
        a("v_pk_mul_f32 %s, %s, %s" % (q2(DT + 2 * k), q2(DT + 2 * k), q2(SD)))
    for k in range(10):
        cvt(TY + k, DT + 2 * k, DT + 2 * k + 1)
    for kk in range(3):
        a("v_permlane16_swap_b32 v%d, v%d" % (TY + 4 * kk, TY + 4 * kk + 2))
        a("v_permlane16_swap_b32 v%d, v%d" % (TY + 4 * kk + 1, TY + 4 * kk + 3))
    for kk in range(3):
        vm.op("buffer_store_dwordx4 %s, v%d, s[40:43], s55 offen offset:%d%s" % (q4(TY + 4 * kk), 183 if kk < 2 else 186, (kk % 2) * 2048, ST), "st")
    stamp(11)

    def next_layer():
        a("s_add_u32 s44, s44, %s" % hex(LS))
        a("s_mov_b32 s45, 1")
        a("s_add_u32 s32, s24, %s" % hex(LB + LS + oXA))
        a("s_addc_u32 s33, s25, 0")
        k1_setup(False)
        attn_consts()
        for n in range(4):
            a("s_mov_b32 s%d, %s" % (76 + n, hex(OOB)))
        a("v_mov_b32 v236, 0")

    a("s_lshr_b32 s6, s4, 1")
    a("s_lshl_b32 s7, s5, 2")
    a("s_add_u32 s6, s6, s7")
    a("s_mul_i32 s6, s6, %d" % CST)
    a("s_add_u32 s19, s6, %d" % (128 * CST))
    a("s_add_u32 s23, s22, %d" % (128 * CST))
    a("s_max_u32 s7, s7, 1")
    a("s_mul_i32 s7, s7, %d" % CST)
    a("s_add_u32 s26, s7, %d" % (127 * CST))
    for f in kpf[:10]:
        f()
    vm.wait("st")
    arrive("s19", ret=False)
    for f in kpf[10:]:
        f()
    next_layer()
    poll("8", offs=("s23", "s26"))
    if PROF:
        a("s_add_u32 s96, s96, 128")
    stamp(0)
    a("s_branch K1_second")
    a("L_code_end:")
    a("s_endpgm")


def descriptor(label, vgpr, accum, sgpr):
    return """.amdhsa_kernel %s
  .amdhsa_next_free_vgpr %d
  .amdhsa_next_free_sgpr %d
  .amdhsa_accum_offset %d
  .amdhsa_group_segment_fixed_size 0
  .amdhsa_kernarg_size 88
  .amdhsa_user_sgpr_count 2
  .amdhsa_user_sgpr_kernarg_segment_ptr 1
  .amdhsa_system_sgpr_workgroup_id_x 1
.end_amdhsa_kernel
""" % (label, vgpr, sgpr, accum)


def build():
    launches = [
        ("p_kernel", P_END, 576, 36864 + 2304, 64, 64, 64),
        ("main_kernel", 256, 256, MAIN_LDS, 512, 256, 102),
    ]
    p_kernel()
    main_kernel()
    for e in a.check_branch_seams():
        print("WARN", e, file=sys.stderr)
    head = "; generated by work/gen2.py (hand-written generator)\n"
    for l, g, b, lds, _, _, _ in launches:
        head += "; @launch kernel=%s grid=(%d,1,1) block=(%d,1,1) lds=%d\n" % (l, g, b, lds)
    head += '.amdgcn_target "amdgcn-amd-amdhsa--gfx950"\n.text\n'
    tail = '.section .rodata,"a"\n'
    for l, g, b, lds, v, ac, sg in launches:
        tail += ".p2align 6\n" + descriptor(l, v, ac, sg)
    return head + a.text() + tail


if __name__ == "__main__":
    out = sys.argv[1] if len(sys.argv) > 1 else "cdna_kernels/%s.s" % NAME
    open(out, "w").write(build())
    print("wrote", out)
```

```python
import sys, math, os
from asmlib import Asm, f32bits

NAME = "interleave_layers__sliding_local_dilated__mixer_channel_mlp__prompt"
ACT = 2048 * 576 * 2
TB = 73728
WOS = 82944
WQKVP = 0
WOP = WQKVP + 2304 * 1024
W1P = WOP + 672 * 1024
W2P = W1P + 5184 * 1024
AUG = W2P + 5184 * 1024
CNT = (AUG + 72 * 1024 + 16383) // 16384 * 16384
CST = int(os.environ.get('CST', '128'))
CNTB = (288 * CST + 4095) // 4096 * 4096
LB = CNT + CNTB
oY, oO, oXA, oX1 = 0, ACT, 2 * ACT, 3 * ACT
oST = 4 * ACT
PSHARE = int(os.environ.get("PSHARE", "0"))
oPART = 4 * ACT + 128 * 1024
LS = oPART + (0 if PSHARE else 8 * ACT)
WS_USED = LB + 2 * LS + (8 * ACT if PSHARE else 0)
PARTB = LB + 2 * LS
WS_BYTES = 268435456
OOB = 0x80000000
ST = " sc1"
LD = " sc1"
STAMP = 200 * 1024 * 1024

E = lambda n, d: int(os.environ.get(n, str(d)))
PROF = os.environ.get("PROF", "")
MAPB = E("MAPB", 2)
MROT = E("MROT", 3)
AROT = E("AROT", 2)
APRE = E("APRE", 3)
PF = E("PF", 9)
K2PRE = E("K2PRE", 6)
TOUCH = E("TOUCH", 0)
NE1 = E("NE1", 0)
NROT = NE1 if NE1 else 7
PNT = os.environ.get("PNT", " nt").replace("_", " ")
PV = E("PV", 72)
ABL = os.environ.get("ABL", "")
XST = {0: [s // 6 for s in range(18)], 1: [0] * 3 + [1] * 5 + [2] * 5 + [3] * 5}[E("XS", 1)]
STF = "" if E("FAST", 0) else ST
WSTEP = E("WSTEP", 2)
WOL = 21
W2D = E("W2D", 1)
MLD = os.environ.get("MLD", "").replace("_", " ")
GROT = E("GROT", 1)
NUMA = E("NUMA", 0)
NR = 32
SPIN = 1 << 18

KA_X, KA_WQKV, KA_WO, KA_BX, KA_W1, KA_B1, KA_W2, KA_B2, KA_OUT, KA_DBG, KA_WS = [8 * i for i in range(11)]
a = Asm()
MF = "v_mfma_f32_16x16x32_bf16"
q4 = lambda b, k="v": "%s[%d:%d]" % (k, b, b + 3)
q2 = lambda b: "v[%d:%d]" % (b, b + 1)


def srd(d, base, off, nbytes):
    if off == 0:
        a("s_mov_b32 s%d, s%d" % (d, base))
        a("s_mov_b32 s%d, s%d" % (d + 1, base + 1))
    else:
        a("s_add_u32 s%d, s%d, %s" % (d, base, off if isinstance(off, str) else hex(off)))
        a("s_addc_u32 s%d, s%d, 0" % (d + 1, base + 1))
    a("s_mov_b32 s%d, %s" % (d + 2, hex(nbytes)))
    a("s_mov_b32 s%d, 0x20000" % (d + 3))


def entry(label):
    a(".p2align 8")
    a(".globl %s" % label)
    a(".type %s,@function" % label)
    a("%s:" % label)


class VM:
    def __init__(self, cnt="vmcnt", maxn=63):
        self.ops, self.cnt, self.maxn, self.done = [], cnt, maxn, -1

    def op(self, text, tag):
        a(text)
        self.ops.append(tag)

    def wait(self, tag):
        last = max(i for i, t in enumerate(self.ops) if t == tag)
        if last <= self.done:
            return
        n = min(len(self.ops) - 1 - last, self.maxn)
        self.done = len(self.ops) - 1 - n
        a("s_waitcnt %s(%d)" % (self.cnt, n))

    def all(self):
        self.done = len(self.ops) - 1
        a("s_waitcnt %s(0)" % self.cnt)


def stamp(k):
    if PROF:
        a("s_memtime s[98:99]")
        a("s_memrealtime s[100:101]")
        a("s_waitcnt lgkmcnt(0)")
        a("v_mov_b32 v0, s98")
        a("buffer_store_dword v0, off, s[92:95], s96 offset:%d" % (4 * k))
        a("v_mov_b32 v0, s100")
        a("buffer_store_dword v0, off, s[92:95], s96 offset:%d" % (4 * k + 64))


def rstamp(k):
    if PROF:
        a("s_memrealtime s[98:99]")
        a("s_waitcnt lgkmcnt(0)")
        a("v_mov_b32 v0, s98")
        a("buffer_store_dword v0, off, s[92:95], s96 offset:%d" % (4 * k))


def unpack(dst, src):
    a("v_lshlrev_b32 v%d, 16, v%d" % (dst, src))
    a("v_and_b32 v%d, 0xffff0000, v%d" % (dst + 1, src))


def cvt(d, x, y):
    a("v_cvt_pk_bf16_f32 v%d, v%d, v%d" % (d, x, y))


def round1(r):
    cvt(r, r, r)
    a("v_and_b32 v%d, 0xffff0000, v%d" % (r, r))


def ln_scalars(mean, var, M, SD, emit=None):
    e = emit or a
    e("v_cvt_pk_bf16_f32 v%d, v%d, v%d" % (M, var, mean))
    e("v_lshlrev_b32 v%d, 16, v%d" % (SD, M))
    e("v_and_b32 v%d, 0xffff0000, v%d" % (M, M))
    e("v_add_f32 v%d, %s, v%d" % (SD, f32bits(1e-5), SD))
    e("v_cvt_pk_bf16_f32 v%d, v%d, v%d" % (SD, SD, SD))
    e("v_and_b32 v%d, 0xffff0000, v%d" % (SD, SD))
    e("v_sqrt_f32 v%d, v%d" % (SD, SD))
    e("v_cvt_pk_bf16_f32 v%d, v%d, v%d" % (SD, SD, SD))
    e("v_and_b32 v%d, 0xffff0000, v%d" % (SD, SD))


def xsum(r, t, rows16=True, rows32=True, ror8=False):
    if ror8:
        a("v_add_f32_dpp v%d, v%d, v%d row_ror:8 row_mask:0xf bank_mask:0xf" % (r, r, r))
    a("v_mov_b32 v%d, v%d" % (t, r))
    a("v_permlane16_swap_b32 v%d, v%d" % (r, t))
    a("v_add_f32 v%d, v%d, v%d" % (r, r, t))
    a("v_mov_b32 v%d, v%d" % (t, r))
    a("v_permlane32_swap_b32 v%d, v%d" % (r, t))
    a("v_add_f32 v%d, v%d, v%d" % (r, r, t))


def mod_small(dst, src, n):
    if n == 1:
        a("s_mov_b32 %s, 0" % dst)
        return
    m = -(-4096 // n)
    assert all((t * m) >> 12 == t // n for t in range(32))
    a("s_mul_i32 %s, %s, %d" % (dst, src, m))
    a("s_lshr_b32 %s, %s, 12" % (dst, dst))
    a("s_mul_i32 %s, %s, %d" % (dst, dst, n))
    a("s_sub_u32 %s, %s, %s" % (dst, src, dst))


P_LN, P_QKV, P_W1, P_W2 = 0, 256, 328, 472
P_MISC = P_W2 + (32 if W2D else 144)
P_END = P_MISC + 1


def p_kernel():
    entry("p_kernel")
    a("s_cmp_ge_u32 s2, %d" % P_END)
    a("s_cbranch_scc1 L_exit")
    if PROF:
        a("s_memrealtime s[56:57]")
    a("s_sub_u32 s2, s2, 1")
    a("s_cselect_b32 s2, %d, s2" % P_MISC)
    if E("PORD", 0):
        a("s_add_u32 s20, s2, 328")
        a("s_sub_u32 s21, s2, 144")
        a("s_cmp_lt_u32 s2, 144")
        a("s_cselect_b32 s20, s20, s21")
        a("s_cmp_lt_u32 s2, 472")
        a("s_cselect_b32 s2, s20, s2")
    a("s_load_dwordx16 s[4:19], s[0:1], 0")
    a("s_load_dwordx2 s[24:25], s[0:1], %d" % KA_WS)
    a("v_lshrrev_b32 v1, 6, v0")
    a("v_readfirstlane_b32 s3, v1")
    a("v_and_b32 v1, 63, v0")
    a("v_lshlrev_b32 v2, 4, v1")
    a("v_lshrrev_b32 v3, 4, v1")
    a("v_and_b32 v4, 15, v1")
    a("v_lshlrev_b32 v5, 4, v0")
    a("s_waitcnt lgkmcnt(0)")
    srd(40, 24, 0, WS_USED)
    if E("PTOUCH", 16):
        a("s_cmp_ge_u32 s2, 32")
        a("s_cbranch_scc1 P_nt")
        a("s_lshr_b32 s20, s2, 3")
        a("s_mul_i32 s20, s20, 576")
        a("v_add_u32 v62, s20, v0")
        a("v_min_u32 v62, %d, v62" % ((1 << (31 - E("PTOUCH", 16))) - 1))
        a("v_lshlrev_b32 v62, %d, v62" % E("PTOUCH", 16))
        a("buffer_load_dword v63, v62, s[40:43], 0 offen")
        a("P_nt:")
    a("s_cmp_lt_u32 s2, %d" % P_QKV)
    a("s_cbranch_scc1 P_ln")
    a("s_cmp_ge_u32 s2, %d" % P_MISC)
    a("s_cbranch_scc1 P_misc")
    a("s_cmp_ge_u32 s2, %d" % P_W1)
    a("s_cbranch_scc1 P_w12")
    a("s_sub_u32 s29, s2, %d" % P_QKV)
    srd(36, 6, 0, 576 * 1728 * 2)
    a("s_mul_i32 s20, s29, %d" % (8 * 3456))
    a("s_lshl_b32 s21, s3, 10")
    for n in range(3):
        a("s_add_u32 m0, s21, %d" % (n * 9216))
        a("s_add_u32 s22, s20, %d" % (n * 9216))
        a("buffer_load_dwordx4 v5, s[36:39], s22 offen" + PNT + " lds")
    srd(32, 8, 0, 576 * 576 * 2)
    a("s_mov_b32 s20, s29")
    a("s_lshr_b32 s21, s20, 2")
    a("s_and_b32 s22, s20, 3")
    a("v_mul_u32_u24 v6, 911, v0")
    a("v_lshrrev_b32 v6, 16, v6")
    a("v_mul_u32_u24 v7, 72, v6")
    a("v_sub_u32 v7, v0, v7")
    a("s_cmp_ge_u32 s21, 16")
    a("s_cbranch_scc1 P_wo_tail")
    a("s_mul_i32 s23, s21, 36")
    a("s_lshl_b32 s26, s22, 2")
    a("s_add_u32 s23, s23, s26")
    a("v_lshrrev_b32 v8, 2, v6")
    a("v_and_b32 v9, 3, v6")
    a("s_branch P_wo_go")
    a("P_wo_tail:")
    a("s_sub_u32 s23, s20, 64")
    a("s_mul_i32 s23, s23, 72")
    a("s_add_u32 s23, s23, 16")
    a("v_lshrrev_b32 v8, 1, v6")
    a("v_and_b32 v9, 1, v6")
    a("P_wo_go:")
    a("v_mul_u32_u24 v8, 18, v8")
    a("v_add_u32 v8, v8, v9")
    a("v_mul_u32_u24 v8, 1152, v8")
    a("v_lshl_add_u32 v8, v7, 4, v8")
    a("s_mul_i32 s23, s23, 1152")
    a("s_lshl_b32 s26, s3, 10")
    a("s_add_u32 m0, s26, 27648")
    a("buffer_load_dwordx4 v8, s[32:35], s23 offen" + PNT + " lds")
    a("s_mul_i32 s27, s21, 4608")
    a("s_add_u32 s27, s27, %s" % hex(WOP))
    a("v_lshrrev_b32 v8, 4, v7")
    a("v_lshlrev_b32 v8, 10, v8")
    a("v_and_b32 v9, 15, v7")
    a("v_lshl_add_u32 v8, v9, 4, v8")
    a("s_lshl_b32 s26, s22, 7")
    a("v_mov_b32 v10, s26")
    a("v_lshlrev_b32 v11, 1, v10")
    a("v_cmp_gt_u32 vcc, 64, v7")
    a("v_cndmask_b32 v10, v10, v11, vcc")
    a("v_add_u32 v8, v8, v10")
    a("s_mov_b32 s26, %d" % WOS)
    a("v_mad_u32_u24 v3, v6, s26, v8")
    a("v_lshlrev_b32 v4, 1, v0")
    a("s_lshr_b32 s22, s29, 2")
    a("s_mul_i32 s54, s22, 43")
    a("s_lshr_b32 s54, s54, 7")
    a("s_mul_i32 s55, s54, 3")
    a("s_sub_u32 s55, s22, s55")
    a("s_mul_i32 s22, s54, 10752")
    a("s_and_b32 s23, s29, 3")
    a("s_mul_i32 s54, s55, 3072")
    a("s_lshl_b32 s28, s23, 8")
    a("s_add_u32 s54, s54, s28")
    a("s_lshl_b32 s55, s55, 9")
    a("s_lshl_b32 s28, s23, 7")
    a("s_add_u32 s55, s55, s28")
    a("s_add_u32 s55, s55, %d" % (9216 - 3072))
    a("v_mov_b32 v15, %s" % hex(OOB))
    for n in range(4):
        u, src, dst = 6, 48 + n, 52 + n
        a("v_add_u32 v6, %d, v0" % (n * 576))
        a("v_lshrrev_b32 v7, 6, v6")
        a("v_bfe_u32 v8, v6, 4, 2")
        a("v_and_b32 v9, 15, v6")
        a("v_mul_u32_u24 v10, 36, v7")
        a("v_mul_u32_u24 v11, 1152, v8")
        a("v_lshl_add_u32 v11, v9, 1, v11")
        a("v_lshrrev_b32 v12, 1, v9")
        a("v_mul_u32_u24 v12, 1152, v12")
        a("v_and_b32 v13, 1, v9")
        a("v_lshl_add_u32 v12, v13, 1, v12")
        a("v_add_u32 v12, 32, v12")
        a("v_cmp_eq_u32 vcc, 3, v8")
        a("v_cndmask_b32 v11, v11, v12, vcc")
        a("v_cmp_lt_u32 s[44:45], 5, v9")
        a("s_and_b64 s[%d:%d], vcc, s[44:45]" % (46 + 2 * n, 47 + 2 * n))
        a("v_cndmask_b32 v11, v11, 0, s[%d:%d]" % (46 + 2 * n, 47 + 2 * n))
        a("v_add_u32 v%d, v10, v11" % src)
        a("v_mul_u32_u24 v7, 64512, v7")
        a("v_lshl_add_u32 v7, v8, 10, v7")
        a("v_lshl_add_u32 v7, v9, 4, v7")
        a("v_mov_b32 v12, s54")
        a("v_mov_b32 v13, s55")
        a("v_cndmask_b32 v12, v12, v13, vcc")
        a("v_add_u32 v%d, v7, v12" % dst)
        a("v_cmp_lt_u32 s[44:45], 7, v9")
        a("s_and_b64 s[44:45], vcc, s[44:45]")
        a("v_cndmask_b32 v%d, v%d, v15, s[44:45]" % (dst, dst))
        if n == 3:
            a("v_cmp_gt_u32 vcc, 2048, v6")
            a("v_cndmask_b32 v%d, v15, v%d, vcc" % (dst, dst))
            a("v_cndmask_b32 v%d, 0, v%d, vcc" % (src, src))
    a("s_waitcnt vmcnt(0)")
    a("s_barrier")
    for n in range(4):
        for j in range(8):
            a("ds_read_u16 v%d, v%d offset:%d" % (16 + n * 8 + j, 48 + n, j * 3456))
        if n % 2 == 1:
            a("s_waitcnt lgkmcnt(0)")
            for m in (n - 1, n):
                for k in range(4):
                    a("v_lshl_or_b32 v%d, v%d, 16, v%d" % (16 + m * 8 + k, 16 + m * 8 + 2 * k + 1, 16 + m * 8 + 2 * k))
                    a("v_cndmask_b32 v%d, v%d, 0, s[%d:%d]" % (16 + m * 8 + k, 16 + m * 8 + k, 46 + 2 * m, 47 + 2 * m))
                a("buffer_store_dwordx4 %s, v%d, s[40:43], s22 offen%s" % (q4(16 + m * 8), 52 + m, ST))
    for j in range(8):
        a("ds_read_u16 v%d, v4 offset:%d" % (56 + j, 27648 + j * 1152))
    a("s_waitcnt lgkmcnt(0)")
    for k in range(4):
        a("v_lshl_or_b32 v%d, v%d, 16, v%d" % (56 + k, 56 + 2 * k + 1, 56 + 2 * k))
    a("buffer_store_dwordx4 v[56:59], v3, s[40:43], s27 offen%s" % ST)
    a("s_branch P_end" if PROF else "s_endpgm")

    a("P_ln:")
    srd(36, 4, 0, ACT)
    a("s_sub_u32 s20, s2, %d" % P_LN)
    a("v_lshrrev_b32 v1, 3, v0")
    a("v_and_b32 v7, 7, v0")
    a("v_lshlrev_b32 v8, 4, v1")
    a("v_mul_u32_u24 v9, 1152, v7")
    a("v_add_u32 v9, v9, v8")
    a("s_mul_i32 s21, s20, %d" % (8 * 1152))
    a("buffer_load_dwordx4 v[16:19], v9, s[36:39], s21 offen" + (PNT if E("XNT", 0) else ""))
    a("v_lshlrev_b32 v3, 8, v1")
    a("v_lshl_add_u32 v3, v7, 4, v3")
    a("s_lshr_b32 s22, s20, 1")
    a("s_mul_i32 s22, s22, 18432")
    a("s_and_b32 s23, s20, 1")
    a("s_lshl_b32 s23, s23, 7")
    a("s_add_u32 s22, s22, s23")
    a("s_add_u32 s22, s22, %s" % hex(LB + oY))
    a("v_mul_u32_u24 v11, 48, v7")
    a("v_lshrrev_b32 v12, 6, v0")
    a("v_lshl_add_u32 v12, v12, 2, v11")
    AC, T, P = 24, 32, 48
    a("s_waitcnt vmcnt(0)")
    for k in range(4):
        unpack(AC + 2 * k, 16 + k)

    def reduce9(s, ldsoff, out):
        xsum(s, s + 1, ror8=True)
        a("ds_write_b32 v12, v%d offset:%d" % (s, ldsoff))
        a("s_waitcnt lgkmcnt(0)")
        a("s_barrier")
        a("ds_read_b128 %s, v11 offset:%d" % (q4(P), ldsoff))
        a("ds_read_b128 %s, v11 offset:%d" % (q4(P + 4), ldsoff + 16))
        a("ds_read_b32 v%d, v11 offset:%d" % (P + 8, ldsoff + 32))
        a("s_waitcnt lgkmcnt(0)")
        a("v_pk_add_f32 %s, %s, %s" % (q2(P), q2(P), q2(P + 2)))
        a("v_pk_add_f32 %s, %s, %s" % (q2(P + 4), q2(P + 4), q2(P + 6)))
        a("v_pk_add_f32 %s, %s, %s" % (q2(P), q2(P), q2(P + 4)))
        a("v_add_f32 v%d, v%d, v%d" % (P, P, P + 1))
        a("v_add_f32 v%d, v%d, v%d" % (P, P, P + 8))
        a("v_mul_f32 v%d, %s, v%d" % (out, f32bits(1.0 / 576.0), P))

    S, MEAN, VAR, M, SD = 40, 42, 43, 44, 45
    a("v_pk_add_f32 %s, %s, %s" % (q2(T), q2(AC), q2(AC + 2)))
    a("v_pk_add_f32 %s, %s, %s" % (q2(T + 2), q2(AC + 4), q2(AC + 6)))
    a("v_pk_add_f32 %s, %s, %s" % (q2(T), q2(T), q2(T + 2)))
    a("v_add_f32 v%d, v%d, v%d" % (S, T, T + 1))
    reduce9(S, 0, MEAN)
    for k in range(8):
        a("v_sub_f32 v%d, v%d, v%d" % (T + k, AC + k, MEAN))
    a("v_mul_f32 v%d, v%d, v%d" % (S, T, T))
    for k in range(1, 8):
        a("v_fmac_f32 v%d, v%d, v%d" % (S, T + k, T + k))
    reduce9(S, 512, VAR)
    ln_scalars(MEAN, VAR, M, SD)
    a("v_rcp_f32 v%d, v%d" % (SD, SD))
    for k in range(8):
        a("v_sub_f32 v%d, v%d, v%d" % (AC + k, AC + k, M))
    for k in range(4):
        cvt(T + k, AC + 2 * k, AC + 2 * k + 1)
    for k in range(4):
        unpack(AC + 2 * k, T + k)
    for k in range(8):
        a("v_mul_f32 v%d, v%d, v%d" % (AC + k, AC + k, SD))
    for k in range(4):
        cvt(T + k, AC + 2 * k, AC + 2 * k + 1)
    a("buffer_store_dwordx4 %s, v3, s[40:43], s22 offen%s" % (q4(T), ST))
    a("s_branch P_end" if PROF else "s_endpgm")

    a("P_w12:")
    a("v_lshrrev_b32 v5, 3, v1")
    a("v_and_b32 v6, 7, v1")
    a("v_lshlrev_b32 v6, 4, v6")
    a("v_bfe_u32 v7, v1, 2, 2")
    a("v_and_b32 v8, 3, v1")
    a("s_lshl_b32 s21, s3, 12")
    a("s_cmp_ge_u32 s2, %d" % P_W2)
    a("s_cbranch_scc1 P_w2")
    if "now1" in ABL:
        a("s_branch P_end")

    def w12(stride, second):
        for n in range(4):
            a("s_add_u32 m0, s21, %d" % (n * 1024))
            a("buffer_load_dwordx4 v9, s[36:39], s22 offen" + PNT + " lds")
            if n < 3:
                a("s_add_u32 s22, s22, %d" % (8 * stride))

    def w12b(second):
        for tl in range(4):
            a("ds_read_b64_tr_b16 %s, v10 offset:%d" % (q2(16 + tl * 4), tl * 32))
            a("ds_read_b64_tr_b16 %s, v10 offset:%d" % (q2(18 + tl * 4), tl * 32 + second))
        for tl in range(4):
            a("s_waitcnt lgkmcnt(%d)" % (6 - 2 * tl))
            a("s_add_u32 s26, s23, %d" % (tl * 18432))
            a("buffer_store_dwordx4 %s, v2, s[40:43], s26 offen%s" % (q4(16 + tl * 4), ST))

    srd(36, 12, 0, 576 * 4608 * 2)
    a("s_sub_u32 s28, s2, %d" % P_W1)
    a("s_lshr_b32 s20, s28, 1")
    a("s_and_b32 s28, s28, 1")
    a("s_mul_i32 s29, s28, 9")
    a("s_add_u32 s29, s29, s3")
    a("s_mul_i32 s22, s29, %d" % (32 * 9216))
    a("s_lshl_b32 s27, s20, 7")
    a("s_add_u32 s22, s22, s27")
    a("v_mul_u32_u24 v9, 9216, v5")
    a("v_add_u32 v9, v9, v6")
    w12(9216, 512)
    srd(32, 14, 0, 4608 * 2)
    a("v_lshlrev_b32 v5, 1, v1")
    a("buffer_load_ushort v40, v5, s[32:35], s27 offen")
    a("v_lshl_add_u32 v10, v3, 3, v7")
    a("v_lshlrev_b32 v10, 7, v10")
    a("v_lshl_add_u32 v10, v8, 3, v10")
    a("v_add_u32 v10, s21, v10")
    a("s_mul_i32 s23, s20, %d" % (4 * 18432))
    a("s_lshl_b32 s26, s29, 10")
    a("s_add_u32 s23, s23, s26")
    a("s_add_u32 s23, s23, %s" % hex(W1P))
    for k in range(4):
        a("v_mov_b32 v%d, 0x3f803f80" % (12 + k))
    a("s_lshl_b32 s26, s3, 8")
    a("s_add_u32 s26, s26, 36864")
    a("v_lshlrev_b32 v11, 4, v3")
    a("v_add_u32 v11, s26, v11")
    a("s_waitcnt vmcnt(0)")
    w12b(512)
    for tl in range(4):
        a("%s %s, %s, v[12:15], 0" % (MF, q4(48 + tl * 4), q4(16 + tl * 4)))
    for tl in range(4):
        a("ds_write_b128 v11, %s offset:%d" % (q4(48 + tl * 4), tl * 64))
    a("s_waitcnt lgkmcnt(0)")
    a("s_barrier")
    a("s_cmp_lg_u32 s3, 0")
    a("s_cbranch_scc1 P_end")
    a("v_lshlrev_b32 v11, 2, v1")
    for w in range(9):
        a("ds_read_b32 v%d, v11 offset:%d" % (48 + w, 36864 + w * 256))
    a("s_waitcnt lgkmcnt(0)")
    for w in range(1, 9):
        a("v_add_f32 v48, v48, v%d" % (48 + w))
    a("v_sub_f32 v48, 0, v48")
    cvt(60, 48, 48)
    a("v_and_b32 v49, 0xffff0000, v60")
    a("v_sub_f32 v49, v48, v49")
    cvt(49, 49, 49)
    a("v_and_b32 v49, 0xffff, v49")
    a("v_lshl_or_b32 v61, v40, 16, v49")
    a("s_lshl_b32 s27, s20, 10")
    a("s_lshl_b32 s28, s28, 3")
    a("s_add_u32 s27, s27, s28")
    a("s_add_u32 s27, s27, %s" % hex(AUG))
    a("buffer_store_dwordx2 v[60:61], v2, s[40:43], s27 offen%s" % ST)
    a("s_branch P_end" if PROF else "s_endpgm")

    a("P_w2:")
    if "now2" in ABL:
        a("s_cmp_ge_u32 s2, %d" % (P_W2 + 32))
        a("s_cbranch_scc1 P_end")
    srd(36, 16, 0, 576 * 4608 * 2)
    a("s_sub_u32 s20, s2, %d" % P_W2)
    if W2D:
        a("s_lshr_b32 s22, s20, 2")
        a("s_mul_i32 s22, s22, 14")
        a("s_add_u32 s20, s20, s22")
        a("s_add_u32 s20, s20, 14")
    a("s_mul_i32 s22, s20, %d" % (32 * 1152))
    a("s_lshl_b32 s23, s3, 7")
    a("s_add_u32 s22, s22, s23")
    a("v_mul_u32_u24 v9, 1152, v5")
    a("v_add_u32 v9, v9, v6")
    w12(1152, 2048)
    a("v_lshl_add_u32 v10, v3, 2, v7")
    a("v_lshlrev_b32 v10, 7, v10")
    a("v_lshl_add_u32 v10, v8, 3, v10")
    a("v_add_u32 v10, s21, v10")
    a("s_mul_i32 s26, s20, 3641")
    a("s_lshr_b32 s26, s26, 16")
    a("s_mul_i32 s27, s26, 18")
    a("s_sub_u32 s27, s20, s27")
    a("s_mul_i32 s23, s26, %d" % (36 * 18432))
    a("s_mul_i32 s26, s3, %d" % (4 * 18432))
    a("s_add_u32 s23, s23, s26")
    a("s_lshl_b32 s27, s27, 10")
    a("s_add_u32 s23, s23, s27")
    a("s_add_u32 s23, s23, %s" % hex(W2P))
    a("s_waitcnt vmcnt(0)")
    w12b(2048)
    a("s_branch P_end" if PROF else "s_endpgm")

    a("P_misc:")
    for k in range(4):
        a("v_mov_b32 v%d, 0" % (16 + k))
    a("v_lshlrev_b32 v5, 4, v0")
    srd(36, 24, CNT, CNTB)
    a("s_mov_b32 s22, %d" % CST)
    a("v_mul_lo_u32 v6, v0, s22")
    a("buffer_store_dwordx4 v[16:19], v6, s[36:39], 0 offen%s" % ST)
    a("s_getpc_b64 s[20:21]")
    a("P_pc:")
    a("s_add_u32 s36, s20, main_kernel-P_pc")
    a("s_addc_u32 s37, s21, 0")
    a("s_mov_b32 s38, L_code_end-main_kernel")
    a("s_mov_b32 s39, 0x20000")
    a("s_mov_b32 s22, 0")
    for k in range(7):
        a("buffer_load_dwordx4 %s, v5, s[36:39], s22 offen" % q4(20 + 4 * k))
        a("s_add_u32 s22, s22, 9216")
    if NUMA:
        a("s_cmp_lg_u32 s3, 8")
        a("s_cbranch_scc1 P_end")
        a("s_add_u32 s20, s24, %s" % hex(CNT))
        a("s_addc_u32 s21, s25, 0")
        a("s_mov_b32 s44, -1")
        a("s_mov_b32 s45, -1")
        for r in range(E("NREP", 4)):
            for k in range(2):
                a("s_mov_b32 s22, 0")
                a("s_memtime s[46:47]")
                a("s_waitcnt lgkmcnt(0)")
                a("s_atomic_add s22, s[20:21], %s glc" % hex(64 + k * 8192))
                a("s_waitcnt lgkmcnt(0)")
                a("s_memtime s[48:49]")
                a("s_waitcnt lgkmcnt(0)")
                a("s_sub_u32 s22, s48, s46")
                a("s_min_u32 s%d, s%d, s22" % (44 + k, 44 + k))
        a("s_getreg_b32 s22, hwreg(HW_REG_XCC_ID)")
        a("s_bfe_u32 s22, s22, 0x10002")
        a("s_cmp_gt_u32 s44, s45")
        a("s_cselect_b32 s23, 1, 0")
        a("s_xor_b32 s22, s22, s23")
        a("s_lshl_b32 s22, s22, 13")
        a("v_mov_b32 v16, s22")
        a("s_mov_b32 s23, %s" % hex(CNT + 287 * CST + 64))
        a("buffer_store_dword v16, off, s[40:43], s23%s" % ST)
    a("P_end:")
    if PROF:
        a("s_waitcnt vmcnt(0)")
        a("s_memrealtime s[58:59]")
        srd(36, 24, STAMP + (1 << 19), 1 << 19)
        a("s_lshl_b32 s60, s2, 4")
        a("s_add_u32 s60, s60, s3")
        a("s_lshl_b32 s60, s60, 3")
        a("s_waitcnt lgkmcnt(0)")
        a("v_mov_b32 v0, s56")
        a("v_mov_b32 v1, s58")
        a("buffer_store_dwordx2 v[0:1], off, s[36:39], s60")
    a("L_exit:")
    a("s_endpgm")


L_SCR, L_OX, L_Y, L_WA, L_WB = 0, 8192, 20480, 112640, 20480
MAIN_LDS = 163840
uid = [0]


def main_kernel():
    entry("main_kernel")
    a("s_cmp_ge_u32 s2, 256")
    a("s_cbranch_scc1 L_exit2")
    a("s_load_dwordx2 s[24:25], s[0:1], %d" % KA_WS)
    a("s_load_dwordx4 s[28:31], s[0:1], %d" % KA_B2)
    a("s_load_dwordx2 s[32:33], s[0:1], %d" % KA_X)
    a("s_load_dwordx2 s[36:37], s[0:1], %d" % KA_W2)
    a("s_mov_b32 s38, %d" % (576 * 4608 * 2))
    a("s_mov_b32 s39, 0x20000")
    a("s_mov_b32 s34, %d" % ACT)
    a("s_mov_b32 s35, 0x20000")
    vm = VM()
    lg = VM("lgkmcnt", 15)
    a("v_lshrrev_b32 v1, 6, v0")
    a("v_readfirstlane_b32 s3, v1")
    a("v_and_b32 v1, 63, v0")
    a("v_lshlrev_b32 v2, 4, v1")
    a("v_lshrrev_b32 v3, 4, v1")
    a("v_and_b32 v4, 15, v1")
    b = MAPB
    spx = 8 // b
    tpx = 32 // spx
    lb = {1: 0, 2: 1, 4: 2, 8: 3}
    a("s_and_b32 s6, s2, 7")
    a("s_lshr_b32 s7, s2, 3")
    a("s_and_b32 s4, s6, %d" % (b - 1))
    a("s_lshl_b32 s4, s4, %d" % lb[spx])
    a("s_and_b32 s8, s7, %d" % (spx - 1))
    a("s_add_u32 s4, s4, s8")
    a("s_lshr_b32 s5, s6, %d" % lb[b])
    a("s_mul_i32 s5, s5, %d" % tpx)
    a("s_lshr_b32 s8, s7, %d" % lb[spx])
    a("s_add_u32 s5, s5, s8")
    a("s_mov_b32 s44, %s" % hex(LB))
    a("s_mov_b32 s45, 0")
    a("s_mov_b32 s46, 8")
    a("s_mov_b32 s27, 1")
    a("s_mov_b32 s97, 1152")
    a("s_mul_i32 s47, s5, %d" % TB)

    KY, KW = 48, 54

    def k1_setup(rot):
        if rot:
            mod_small("s6", "s5", AROT)
            a("s_mul_i32 s6, s6, %d" % (6 // AROT))
        else:
            a("s_mov_b32 s6, 0")
        for G in range(6):
            a("s_mul_i32 s%d, s6, 3072" % (KY + G))
            a("s_add_u32 s%d, s%d, s44" % (KY + G, KY + G))
            a("s_mul_i32 s%d, s6, 10752" % (KW + G))
            if G < 5:
                a("s_add_u32 s6, s6, 1")
                a("s_cmp_eq_u32 s6, 6")
                a("s_cselect_b32 s6, 0, s6")
        a("s_mul_i32 s8, s3, 18432")
        a("s_add_u32 s8, s8, s47")
        a("v_add_u32 v7, s8, v2")
        a("s_min_u32 s9, s3, 2")
        a("s_lshl_b32 s11, s9, 10")
        a("s_add_u32 s8, s47, s11")
        a("s_sub_u32 s8, s8, 18432")
        a("s_cmp_eq_u32 s5, 0")
        a("s_cselect_b32 s8, %s, s8" % hex(OOB))
        a("v_add_u32 v8, s8, v2")
        a("s_add_u32 s11, s11, %d" % L_Y)
        a("s_mul_i32 s10, s3, 18432")
        a("s_add_u32 s10, s10, %d" % (L_Y + 18432))
        a("v_add_u32 v5, %d, v2" % L_Y)
        a("v_add_u32 v6, %d, v2" % (L_Y + 46080))

    def kw_voffs():
        a("s_lshl_b32 s12, s4, 2")
        a("s_add_u32 s12, s12, s3")
        a("s_mul_i32 s12, s12, 64512")
        a("v_add_u32 v9, s12, v2")
        a("v_add_u32 v10, 3072, v9")
        a("v_add_u32 v11, 6144, v9")
        a("s_add_u32 s12, s12, 9216")
        a("v_lshlrev_b32 v12, 28, v4")
        a("v_and_b32 v12, %s, v12" % hex(OOB))
        a("v_lshl_add_u32 v12, v4, 4, v12")
        a("v_lshl_add_u32 v12, v3, 7, v12")
        a("v_add_u32 v12, s12, v12")

    k1_setup(True)
    kw_voffs()
    a("s_waitcnt lgkmcnt(0)")
    srd(40, 24, 0, WS_USED)
    a("s_add_u32 s20, s24, %s" % hex(CNT))
    a("s_addc_u32 s21, s25, 0")
    a("s_lshl_b32 s22, s5, 2")
    a("s_add_u32 s22, s22, s3")
    a("s_mul_i32 s22, s22, %d" % CST)
    if NUMA:
        a("s_load_dword s80, s[20:21], %s" % hex(287 * CST + 64))
    if PROF:
        srd(92, 24, STAMP, 1 << 20)
        a("s_lshl_b32 s96, s2, 2")
        a("s_add_u32 s96, s96, s3")
        a("s_lshl_b32 s96, s96, 8")
    rstamp(12)
    stamp(0)

    def arrive(off="s22", ret=True):
        if ret:
            a("s_mov_b32 s16, 1")
            a("s_atomic_add s16, s[20:21], %s glc" % off)
        else:
            a("s_atomic_add s27, s[20:21], %s" % off)

    def poll(target, offs=("s22",), issued=None):
        uid[0] += 1
        u = uid[0]

        def rd():
            for k, o in enumerate(offs):
                a("s_mov_b32 s%d, 0" % (16 + k))
                a("s_atomic_add s%d, s[20:21], %s glc" % (16 + k, o))
        a("s_mov_b32 s18, %d" % SPIN)
        if issued is None:
            rd()
        lg.all()
        if issued in ("arrive", "arrive2"):
            a("s_add_u32 s16, s16, 1")
        if issued == "arrive2":
            a("s_max_u32 s16, s16, s17")
        a("H%d_l:" % u)
        if len(offs) > 1:
            a("s_min_u32 s16, s16, s17")
        a("s_cmp_ge_u32 s16, %s" % target)
        a("s_cbranch_scc1 H%d_b" % u)
        a("s_sub_u32 s18, s18, 1")
        a("s_cbranch_scc1 H%d_b" % u)
        rd()
        a("s_waitcnt lgkmcnt(0)")
        a("s_branch H%d_l" % u)
        a("H%d_b:" % u)

    def hop(tag, pre_a=(), pre_b=()):
        for f in pre_a:
            f()
        vm.wait(tag)
        arrive()
        mid = len(pre_b) * E("MIDP", 50) // 100
        for k, f in enumerate(pre_b):
            if k == mid and E("MIDP", 50) < 100:
                a("s_mov_b32 s17, 0")
                a("s_atomic_add s17, s[20:21], s22 glc")
            f()
        poll("s46", issued="arrive2" if E("MIDP", 50) < 100 else "arrive")
        a("s_add_u32 s46, s46, 8")

    QA, KA, VA, CA, YF = 16, 32, 52, 72, 92
    MSK, SM = 132, 136

    def wslot(i, t):
        return ((i % 16) * 4 + t) * 4

    def wload1(i, t, sreg=None):
        def f():
            s = sreg or "s%d" % (KW + i // 3)
            vo, off = (9 + i % 3, t * 1024) if t < 3 else (12, (i % 3) * 512)
            vm.op("buffer_load_dwordx4 %s, v%d, s[40:43], %s offen offset:%d" % (q4(wslot(i, t), "a"), vo, s, off), ("w", i))
        return f

    def ydma1(G, k):
        def f():
            if k < 3:
                a("s_add_u32 m0, s10, %d" % (G * 3072))
                vm.op("buffer_load_dwordx4 v7, s[40:43], s%d offen offset:%d%s lds" % (KY + G, k * 1024, LD), ("y", G))
            else:
                a("s_add_u32 m0, s11, %d" % (G * 3072))
                vm.op("buffer_load_dwordx4 v8, s[40:43], s%d offen%s lds" % (KY + G, LD), ("y", G))
        return f

    def yread1(i, T):
        def f():
            off = (T * 18 + i) * 1024
            base = 5
            if off >= 46080:
                off -= 46080
                base = 6
            a("ds_read_b128 %s, v%d offset:%d" % (q4(YF + (i % 2) * 20 + T * 4), base, off))
        return f

    def wodma(region, n):
        def f():
            a("s_add_u32 m0, s%d, %d" % ((13, 14)[region], (n // 4) * 4096))
            a("s_add_u32 s15, s%d, %d" % ((60, 61)[region], (n // 4) * 4096))
            vm.op("buffer_load_dwordx4 v2, s[40:43], s15 offen offset:%d lds" % ((n % 4) * 1024), "wo")
        return f

    wo_all = [wodma(0, n) for n in range(12)] + [wodma(1, n) for n in range(9)]

    def k2_addr():
        a("s_mul_i32 s62, s3, 18432")
        a("s_add_u32 s62, s62, s47")
        a("s_add_u32 s62, s62, s44")
        a("s_mul_i32 s63, s4, 2304")
        a("s_add_u32 s63, s63, s62")
        a("v_and_b32 v220, 1, v3")
        a("v_lshlrev_b32 v220, 9, v220")
        a("v_lshl_add_u32 v220, v4, 4, v220")
        a("v_lshrrev_b32 v221, 5, v1")
        a("v_lshl_add_u32 v220, v221, 8, v220")
        a("v_mov_b32 v221, %s" % hex(OOB))
        a("v_cmp_eq_u32 vcc, 0, v3")
        a("v_cndmask_b32 v221, v221, v220, vcc")
        a("v_cndmask_b32 v222, 0, -1, vcc")
        a("s_add_u32 s65, s63, %s" % hex(oX1))
        a("s_sub_u32 s64, s63, s44")
        a("s_mul_i32 s6, s4, 144")
        a("s_sub_u32 s7, s62, s44")
        a("s_add_u32 s6, s6, s7")
        a("v_lshrrev_b32 v206, 4, v220")
        a("v_and_b32 v206, 0x30, v206")
        a("v_mad_u32_u24 v206, v4, s97, v206")
        a("s_cmp_eq_u32 s45, 0")
        a("s_cselect_b32 s64, s6, s64")
        a("s_cselect_b32 s6, 64, 1024")
        a("s_cselect_b64 s[8:9], -1, 0")
        a("v_cndmask_b32 v206, v220, v206, s[8:9]")
        a("v_add_u32 v207, s6, v206")
        a("v_add_u32 v223, s6, v207")
        a("v_cndmask_b32 v223, v221, v223, vcc")

    def attn_consts():
        k2_addr()
        a("v_and_b32 v13, 1, v4")
        a("v_cmp_eq_u32 s[70:71], 1, v13")
        a("v_lshl_add_u32 v14, v3, 2, v13")
        a("v_cmp_ge_u32 s[72:73], v4, v14")
        a("v_add_u32 v14, 2, v14")
        a("v_cmp_ge_u32 s[74:75], v4, v14")
        a("v_mov_b32 v13, 0xffff")
        a("v_mov_b32 v14, 0xffff0000")
        a("v_cndmask_b32 v13, v13, v14, s[70:71]")
        a("v_cndmask_b32 v%d, v13, 0, s[72:73]" % (MSK + 0))
        a("v_cndmask_b32 v%d, v13, 0, s[74:75]" % (MSK + 1))
        a("v_cndmask_b32 v%d, 0, v13, s[72:73]" % (MSK + 2))
        a("v_cndmask_b32 v%d, 0, v13, s[74:75]" % (MSK + 3))
        a("s_cmp_eq_u32 s5, 0")
        a("s_cselect_b32 s14, %s, 0" % f32bits(-1e9 * math.sqrt(18.0)))
        for k in range(4):
            a("v_mov_b32 v%d, s14" % (SM + k))
        a("s_lshl_b32 s14, s3, 11")
        a("v_lshlrev_b32 v141, 9, v3")
        a("v_lshl_add_u32 v141, v4, 1, v141")
        a("v_add_u32 v141, s14, v141")
        a("v_and_b32 v142, 1, v4")
        a("v_mul_u32_u24 v142, 160, v142")
        a("v_lshl_add_u32 v142, v3, 3, v142")
        a("s_add_u32 s14, s14, 512")
        a("v_add_u32 v142, s14, v142")
        a("s_lshr_b32 s14, s3, 1")
        a("s_lshl_b32 s14, s14, 10")
        a("s_and_b32 s15, s3, 1")
        a("s_lshl_b32 s15, s15, 3")
        a("s_add_u32 s14, s14, s15")
        a("s_add_u32 s14, s14, %d" % L_OX)
        a("v_add_u32 v143, s14, v2")
        a("s_lshl_b32 s14, s3, 2")
        a("s_add_u32 s14, s14, %d" % (L_OX + 2048))
        a("v_add_u32 v144, s14, v2")
        a("s_mul_i32 s14, s3, 3072")
        a("s_add_u32 s14, s14, %d" % L_OX)
        a("v_add_u32 v145, s14, v2")
        a("s_mul_i32 s60, s4, %d" % WOS)
        a("s_add_u32 s60, s60, %s" % hex(WOP))
        a("s_mul_i32 s14, s3, 9216")
        a("s_add_u32 s61, s60, s14")
        a("s_add_u32 s61, s61, 46080")
        a("s_mul_i32 s14, s3, 18432")
        a("s_add_u32 s14, s14, %d" % L_Y)
        a("s_mul_i32 s13, s3, 12288")
        a("s_add_u32 s60, s60, s13")
        a("s_add_u32 s13, s13, %d" % L_WA)

    def w2addr():
        a("s_lshl_b32 s6, s5, 2")
        a("s_add_u32 s6, s6, s3")
        a("s_mul_i32 s7, s6, 57")
        a("s_lshr_b32 s7, s7, 9")
        a("s_mul_i32 s8, s7, 9")
        a("s_sub_u32 s8, s6, s8")
        a("s_mul_i32 s9, s4, 18")
        a("s_add_u32 s9, s9, s7")
        a("s_mul_i32 s9, s9, %d" % (32 * 1152))
        a("s_lshl_b32 s12, s8, 7")
        a("s_add_u32 s76, s9, s12")
        for n in range(1, 4):
            a("s_add_u32 s%d, s76, %d" % (76 + n, n * 8 * 1152))
        a("s_mul_i32 s12, s4, 9")
        a("s_add_u32 s12, s12, s8")
        a("s_mul_i32 s12, s12, %d" % (4 * 18432))
        a("s_lshl_b32 s7, s7, 10")
        a("s_add_u32 s12, s12, s7")
        a("s_add_u32 s12, s12, %s" % hex(W2P))
        a("s_cmp_lt_u32 s6, 126")
        a("s_cselect_b32 s26, s12, %s" % hex(OOB))
        a("v_lshrrev_b32 v236, 3, v1")
        a("v_and_b32 v237, 7, v1")
        a("v_lshlrev_b32 v237, 4, v237")
        a("v_mad_u32_u24 v236, v236, s97, v237")

    def w2raw(n):
        return lambda: vm.op("buffer_load_dwordx4 %s, v236, s[36:39], s%d offen nt" % (q4(240 + 4 * n, "a"), 76 + n), "w2r")

    def w2pack1():
        if not W2D:
            return
        a("s_cmp_lg_u32 s45, 0")
        a("s_cbranch_scc1 W2_a")
        a("s_mul_i32 s6, s3, 18432")
        a("s_add_u32 s6, s6, %d" % (L_Y + 9216))
        a("v_add_u32 v236, s6, v2")
        for n in range(4):
            a("ds_write_b128 v236, %s offset:%d" % (q4(240 + 4 * n, "a"), n * 1024))
        a("v_bfe_u32 v237, v1, 2, 4")
        a("v_lshlrev_b32 v237, 7, v237")
        a("v_and_b32 v238, 3, v1")
        a("v_lshl_add_u32 v237, v238, 3, v237")
        a("v_add_u32 v237, s6, v237")
        for tl in range(4):
            a("ds_read_b64_tr_b16 %s, v237 offset:%d" % (q2(240 + tl * 4), tl * 32))
            a("ds_read_b64_tr_b16 %s, v237 offset:%d" % (q2(242 + tl * 4), tl * 32 + 2048))
        a("W2_a:")

    def w2pack2():
        if not W2D:
            return
        a("s_cmp_lg_u32 s45, 0")
        a("s_cbranch_scc1 W2_b")
        for tl in range(4):
            a("buffer_store_dwordx4 %s, v2, s[40:43], s26 offen%s" % (q4(240 + tl * 4), ST))
            a("s_add_u32 s26, s26, 18432")
        a("W2_b:")

    def qkv(pre):
        if not pre:
            for k in range(4):
                ydma1(0, k)()
            for t in range(4):
                wload1(0, t)()
            for k in range(4):
                ydma1(1, k)()
            for i in range(1, APRE):
                for t in range(4):
                    wload1(i, t)()
            if TOUCH:
                a("s_getpc_b64 s[36:37]")
                a("M_pc:")
                a("s_mov_b32 s38, L_code_end-M_pc")
                a("s_mov_b32 s39, 0x20000")
                a("s_lshr_b32 s6, s2, 3")
                a("s_lshl_b32 s6, s6, 2")
                a("s_add_u32 s6, s6, s3")
                a("s_lshl_b32 s6, s6, 9")
                a("v_lshlrev_b32 v249, 3, v1")
                vm.op("buffer_load_dword v250, v249, s[36:39], s6 offen", "t")
            attn_consts()
            if W2D:
                w2addr()
            if NUMA:
                a("s_waitcnt lgkmcnt(0)")
                a("s_and_b32 s80, s80, 0x2000")
                a("s_xor_b32 s22, s22, s80")
            ahead_y = 2
        else:
            for i in range(pre):
                vm.ops.append(("w", i))
            for G in range(3):
                for k in range(4):
                    ydma1(G, k)()
            ahead_y = 3
        vm.wait(("y", 0))
        a("s_barrier")
        if E("XP", 0) == 1:
            stamp(13)
        for T in range(5):
            yread1(0, T)()
        wo_list = [wodma(1, n) for n in range(9)] if pre else wo_all[:WOL]
        for i in range(18):
            if i + 1 < 18 and (i + 1) % 3 == 0:
                vm.wait(("y", (i + 1) // 3))
                a("s_barrier")
            a("s_waitcnt lgkmcnt(0)")
            vm.wait(("w", i))
            mem = []
            if i // 3 + ahead_y < 6:
                mem += [ydma1(i // 3 + ahead_y, k) for k in ((0, 3), (1,), (2,))[i % 3]]
            nxt = i + APRE
            if pre:
                nxt = pre + i - 1 if i >= 1 else None
                if nxt is not None and nxt - 16 >= i:
                    nxt = None
            if nxt is not None and nxt < 18:
                mem += [wload1(nxt, t) for t in range(4)]
            if (i >= 11) if pre else (nxt >= 18):
                take = -(-len(wo_list) // (18 - i))
                mem += wo_list[:take]
                wo_list = wo_list[take:]
            rds = [yread1(i + 1, T) for T in range(5)] if i + 1 < 18 else []
            slots = {}
            for k, f in enumerate(mem):
                slots.setdefault(1 + (k * 18) // len(mem), []).append(f)
            for k, f in enumerate(rds):
                slots.setdefault(2 * k, []).append(f)
            m = 0
            for T in range(5):
                y = q4(YF + (i % 2) * 20 + T * 4)
                for t, base in ((1, KA), (2, VA), (3, CA), (0, QA)):
                    if t == 0 and T == 0:
                        continue
                    d = base + (T - 1 if t == 0 else T) * 4
                    w = q4(wslot(i, t), "a")
                    c = "0" if i == 0 else q4(d)
                    A_, B_ = (y, w) if t == 2 else (w, y)
                    a("%s %s, %s, %s, %s" % (MF, q4(d), A_, B_, c))
                    for f in slots.get(m, []):
                        f()
                    m += 1
        assert not wo_list, len(wo_list)

    qkv(0)
    a("s_branch K1_attn")
    a("K1_second:")
    vm.done = -1
    vm.ops = []
    qkv(PF)
    a("K1_attn:")
    vm.ops = []
    vm.done = -1
    stamp(1)
    def wo_group(fs):
        def f():
            uid[0] += 1
            a("s_cmp_lg_u32 s45, 0")
            a("s_cbranch_scc1 W%d" % uid[0])
            n0 = len(vm.ops)
            for g in fs:
                g()
            del vm.ops[n0:]
            a("W%d:" % uid[0])
        return f

    assert WOL == 21
    vm.ops.append("wo")
    side = []
    XR = 208

    def xload(kk):
        def f():
            vm.op("buffer_load_dwordx4 %s, v%d, s[32:35], s64 offen%s" % (q4(XR + 4 * kk), (206, 207, 223)[kk], LD), "x")
        return f

    nop = lambda: None
    side += [xload(k) for k in range(3)] + [nop] * E("W2G", 0) + ([f for n in range(4) for f in (w2raw(n), nop, nop)] if W2D else [])
    cnt = [0]

    def v(text):
        a(text)
        cnt[0] += 1
        if cnt[0] % 4 == 0 and side:
            side.pop(0)()

    QO, KO, VP, X0, V2 = 148, 164, 184, 194, 196
    for T in range(5):
        xd = X0 if T == 0 else QO + (T - 1) * 4 + 2
        v("v_cvt_pk_bf16_f32 v%d, v%d, v%d" % (xd, CA + T * 4, CA + T * 4 + 1))
        a("ds_write_b16 v141, v%d offset:%d" % (xd, T * 32))
        a("ds_write_b16_d16_hi v141, v%d offset:%d" % (xd, T * 32 + 160))
    for T in range(5):
        v("v_cvt_pk_bf16_f32 v%d, v%d, v%d" % (KO + T * 4 + 2, CA + T * 4 + 2, CA + T * 4 + 3))
        v("v_cvt_pk_bf16_f32 v%d, v%d, v%d" % (KO + T * 4, KA + T * 4, KA + T * 4 + 1))
        v("v_cvt_pk_bf16_f32 v%d, v%d, v%d" % (KO + T * 4 + 1, KA + T * 4 + 2, KA + T * 4 + 3))
        v("v_mov_b32 v%d, 0" % (KO + T * 4 + 3))
        if T:
            q = QO + (T - 1) * 4
            v("v_cvt_pk_bf16_f32 v%d, v%d, v%d" % (q, QA + (T - 1) * 4, QA + (T - 1) * 4 + 1))
            v("v_cvt_pk_bf16_f32 v%d, v%d, v%d" % (q + 1, QA + (T - 1) * 4 + 2, QA + (T - 1) * 4 + 3))
            v("v_mov_b32 v%d, 0" % (q + 3))
    for T in range(5):
        a("ds_read_b64 %s, v142 offset:%d" % (q2(V2 + 2 * T), T * 32))
    SP = YF
    Ts = range(1, 5)
    for T in Ts:
        q = q4(QO + (T - 1) * 4)
        sp = SP + (T - 1) * 8
        a("%s %s, %s, %s, %s" % (MF, q4(sp), q4(KO + (T - 1) * 4), q, q4(SM) if T == 1 else "0"))
        a("%s %s, %s, %s, 0" % (MF, q4(sp + 4), q4(KO + T * 4), q))
    for T in range(5):
        v("v_cvt_pk_bf16_f32 v%d, v%d, v%d" % (VP + 2 * T, VA + T * 4, VA + T * 4 + 1))
        v("v_cvt_pk_bf16_f32 v%d, v%d, v%d" % (VP + 2 * T + 1, VA + T * 4 + 2, VA + T * 4 + 3))
    a("s_mov_b32 s19, %s" % f32bits((18.0 ** -0.5) * math.log2(math.e)))
    W = lambda T, k: 16 + (T - 1) * 8 + k
    for T in Ts:
        sp = SP + (T - 1) * 8
        v("v_cndmask_b32 v%d, v%d, v%d, s[70:71]" % (W(T, 2), sp + 4, sp + 5))
        v("v_cndmask_b32 v%d, v%d, v%d, s[70:71]" % (W(T, 3), sp + 0, sp + 1))
        v("v_cndmask_b32 v%d, v%d, v%d, s[70:71]" % (W(T, 4), sp + 6, sp + 7))
        v("v_cndmask_b32 v%d, v%d, v%d, s[70:71]" % (W(T, 5), sp + 2, sp + 3))
        v("v_cndmask_b32 v%d, v%d, v%d, s[72:73]" % (W(T, 0), W(T, 3), W(T, 2)))
        v("v_cndmask_b32 v%d, v%d, v%d, s[74:75]" % (W(T, 1), W(T, 5), W(T, 4)))
        v("v_max_f32 v%d, v%d, v%d" % (W(T, 2), W(T, 0), W(T, 1)))
        v("v_mov_b32 v%d, v%d" % (W(T, 3), W(T, 2)))

    def xlane(op):
        for T in Ts:
            v("v_permlane16_swap_b32 v%d, v%d" % (W(T, 2), W(T, 3)))
        for T in Ts:
            v("%s v%d, v%d, v%d" % (op, W(T, 2), W(T, 2), W(T, 3)))
            v("v_mov_b32 v%d, v%d" % (W(T, 3), W(T, 2)))
        for T in Ts:
            v("v_permlane32_swap_b32 v%d, v%d" % (W(T, 2), W(T, 3)))
        for T in Ts:
            v("%s v%d, v%d, v%d" % (op, W(T, 2), W(T, 2), W(T, 3)))

    xlane("v_max_f32")
    for T in Ts:
        v("v_sub_f32 v%d, v%d, v%d" % (W(T, 0), W(T, 0), W(T, 2)))
        v("v_sub_f32 v%d, v%d, v%d" % (W(T, 1), W(T, 1), W(T, 2)))
        v("v_mul_f32 v%d, s19, v%d" % (W(T, 0), W(T, 0)))
        v("v_mul_f32 v%d, s19, v%d" % (W(T, 1), W(T, 1)))
    for T in Ts:
        v("v_exp_f32 v%d, v%d" % (W(T, 0), W(T, 0)))
        v("v_exp_f32 v%d, v%d" % (W(T, 1), W(T, 1)))
    for T in Ts:
        v("v_add_f32 v%d, v%d, v%d" % (W(T, 2), W(T, 0), W(T, 1)))
        v("v_mov_b32 v%d, v%d" % (W(T, 3), W(T, 2)))
    xlane("v_add_f32")
    for T in Ts:
        v("v_rcp_f32 v%d, v%d" % (W(T, 2), W(T, 2)))
    for T in Ts:
        v("v_mul_f32 v%d, v%d, v%d" % (W(T, 0), W(T, 0), W(T, 2)))
        v("v_mul_f32 v%d, v%d, v%d" % (W(T, 1), W(T, 1), W(T, 2)))
        v("v_cvt_pk_bf16_f32 v%d, v%d, v%d" % (W(T, 0), W(T, 0), W(T, 0)))
        v("v_cvt_pk_bf16_f32 v%d, v%d, v%d" % (W(T, 1), W(T, 1), W(T, 1)))
        v("v_and_b32 v%d, v%d, v%d" % (W(T, 4), W(T, 0), MSK + 0))
        v("v_and_b32 v%d, v%d, v%d" % (W(T, 5), W(T, 1), MSK + 1))
        v("v_and_b32 v%d, v%d, v%d" % (W(T, 6), W(T, 0), MSK + 2))
        v("v_and_b32 v%d, v%d, v%d" % (W(T, 7), W(T, 1), MSK + 3))
    while side:
        side.pop(0)()
    a("s_waitcnt lgkmcnt(0)")
    for T in Ts:
        sp = SP + (T - 1) * 8
        p = q4(W(T, 4))
        a("%s %s, %s, %s, 0" % (MF, q4(sp), q4(VP + 2 * (T - 1)), p))
        a("%s %s, %s, %s, 0" % (MF, q4(sp + 4), q4(V2 + 2 * (T - 1)), p))
    a("s_add_u32 s66, s62, %s" % hex(oO))
    a("s_lshl_b32 s67, s4, 11")
    a("s_add_u32 s67, s67, s66")
    a("s_lshl_b32 s68, s4, 8")
    a("s_add_u32 s68, s68, s66")
    a("s_add_u32 s68, s68, 16384")
    for T in Ts:
        sp = SP + (T - 1) * 8
        o = 48 + (T - 1) * 4
        cvt(o, sp, sp + 1)
        cvt(o + 1, sp + 2, sp + 3)
        cvt(o + 2, sp + 4, sp + 5)
        a("ds_write_b64 v143, %s offset:%d" % (q2(o), (T - 1) * 3072))
        a("ds_write_b32 v144, v%d offset:%d" % (o + 2, (T - 1) * 3072))
    a("s_waitcnt lgkmcnt(0)")
    vm.wait("wo")
    a("s_barrier")
    for st in range(3):
        a("ds_read_b128 %s, v145 offset:%d" % (q4(224 + st * 4), st * 1024))
    for st in range(3):
        a("s_waitcnt lgkmcnt(%d)" % (2 - st))
        if st < 2:
            vm.op("buffer_store_dwordx4 %s, v2, s[40:43], s67 offen offset:%d%s" % (q4(224 + st * 4), st * 1024, STF), "st")
        else:
            vm.op("buffer_store_dwordx4 %s, v221, s[40:43], s68 offen%s" % (q4(232), STF), "st")
    stamp(2)

    WS = 48
    ACC, FIN, AUGW, TMP, KC, AB = 144, 160, 176, 180, 192, 204
    PK = 204

    def ring(q):
        return 16 + (q % NR) * 4

    def m_voffs():
        a("s_mul_i32 s9, s4, 36")
        a("s_add_u32 s9, s9, s3")
        a("s_mul_i32 s11, s9, 18432")
        a("s_add_u32 s11, s11, %s" % hex(W1P))
        a("v_add_u32 v7, s11, v2")
        for k in range(1, 5):
            a("v_add_u32 v%d, %d, v7" % (7 + k, 4096 * k))
        a("s_lshl_b32 s11, s9, 8")
        a("s_add_u32 s11, s11, %s" % hex(AUG))
        a("v_lshl_add_u32 v12, v4, 4, s11")
        if GROT == 1:
            for n in range(9):
                a("s_mov_b32 s%d, %d" % (WS + n, n * 4 * 18432))
        else:
            a("s_and_b32 s12, s5, %d" % (GROT - 1))
            a("s_mul_i32 s12, s12, %d" % (8 // GROT))
            for n in range(8):
                a("s_add_u32 s11, s12, %d" % n)
                a("s_and_b32 s11, s11, 7")
                a("s_mul_i32 s%d, s11, %d" % (WS + n, 4 * 18432))
            a("s_mov_b32 s%d, %d" % (WS + 8, 8 * 4 * 18432))

    W2T, STT = 76, 57
    sst = lambda n: (57 + n) if n < 3 else (85 + n - 3)

    def mload(q):
        def f():
            n, s = divmod(q, 18)
            sr = WS + n if n < 9 else W2T + n - 9
            vm.op("buffer_load_dwordx4 %s, v%d, s[40:43], s%d offen offset:%d%s" % (q4(ring(q)), 7 + s // 4, sr, (s % 4) * 1024, LD if (n >= 9 and W2D and not E("NOSC", 0)) else MLD), ("m", q))
        return f

    def aload(n):
        vm.op("buffer_load_dwordx4 %s, v12, s[40:43], s%d offen" % (q4(AUGW), 91), ("aug", n))

    def kslot(ks, tl):
        return ((ks % 12) * 5 + tl) * 4

    def kread(ks, tl):
        def f():
            base, off = (13, ks * 4608) if ks < 10 else (14, ((ks - 10) >> 1) * 18432 + ((ks - 10) & 1) * 4608)
            if tl == 4:
                base += 2
            lg.op("ds_read_b128 %s, v%d offset:%d" % (q4(kslot(ks, tl), "a"), base if base != 16 else 6, off + tl * 1024), ("k", ks))
        return f

    def k2_pre():
        a("v_add_u32 v13, %d, v2" % L_WA)
        a("v_add_u32 v14, %d, v2" % L_WB)
        a("v_and_b32 v15, 7, v4")
        a("v_lshlrev_b32 v15, 4, v15")
        a("v_lshl_add_u32 v15, v3, 7, v15")
        a("v_add_u32 v6, %d, v15" % L_WB)
        a("v_add_u32 v15, %d, v15" % L_WA)
        for ks in range(K2PRE):
            for tl in range(5):
                kread(ks, tl)()

    XU = 224
    def x_unpack():
        for k in range(12):
            unpack(XU + 2 * k, XR + k)

    m_voffs()
    HBA, HBB, HCA, HCB = [int(x) for x in os.environ.get("HP", "8,10,6,8").split(",")]
    nb = HBA + HBB
    assert nb <= 18
    PRE = nb + HCA + HCB
    hc = list(range(nb, PRE))
    hca = [q for q in hc if q < 18 or q >= 26][:HCA]
    hcb = [q for q in hc if q not in hca]
    hop("st", pre_a=[mload(q) for q in range(HBA)],
        pre_b=[k2_pre] + [mload(q) for q in range(HBA, nb)] + [x_unpack])
    stamp(3)

    OFR, KAC = 88, 160
    a("v_add_u32 v5, 4096, v2")
    rest = [kread(ks, tl) for ks in range(K2PRE, 12) for tl in range(5)]
    a("s_add_u32 s14, s66, 8192")
    a("s_add_u32 s15, s66, 16384")

    def oload(ks):
        vm.op("buffer_load_dwordx4 %s, v%d, s[40:43], s%d offen offset:%d%s" % (q4(OFR + ks * 4), (2, 5)[(ks % 8) // 4], (66, 14, 15)[ks // 8], (ks % 4) * 1024, LD), ("o", ks))

    OA = E("OA", 10)
    for ks in range(OA):
        oload(ks)
        for f in rest[:3]:
            f()
        rest = rest[3:]
    for f in rest:
        f()
    for ks in range(18):
        vm.wait(("o", ks))
        lg.wait(("k", ks))
        for tl in range(5):
            a("%s %s, %s, %s, %s" % (MF, q4(KAC + tl * 4), q4(kslot(ks, tl), "a"), q4(OFR + ks * 4), "0" if ks == 0 else q4(KAC + tl * 4)))
            if ks < 6:
                kread(ks + 12, tl)()
            if tl in (0, 2) and OA + 2 * ks + tl // 2 < 18:
                oload(OA + 2 * ks + tl // 2)
    if E("XP", 0):
        stamp(14)
    TP, TU = 180, 88
    for tl in range(5):
        cvt(TP + 2 * tl, KAC + 4 * tl, KAC + 4 * tl + 1)
        cvt(TP + 2 * tl + 1, KAC + 4 * tl + 2, KAC + 4 * tl + 3)
    for kk in range(3):
        a("v_permlane16_swap_b32 v%d, v%d" % (TP + 4 * kk, TP + 4 * kk + 2))
        a("v_permlane16_swap_b32 v%d, v%d" % (TP + 4 * kk + 1, TP + 4 * kk + 3))
    for k in range(8, 12):
        a("v_and_b32 v%d, v%d, v222" % (TP + k, TP + k))
    for kk in range(3):
        for k in range(4 * kk, 4 * kk + 4):
            unpack(TU + 2 * k, TP + k)
        for k in range(4 * kk, 4 * kk + 4):
            a("v_pk_add_f32 %s, %s, %s" % (q2(TU + 2 * k), q2(TU + 2 * k), q2(XU + 2 * k)))
        for k in range(4 * kk, 4 * kk + 4):
            cvt(XR + k, TU + 2 * k, TU + 2 * k + 1)
        vm.op("buffer_store_dwordx4 %s, v%d, s[40:43], s65 offen offset:%d%s" % (q4(XR + 4 * kk), 220 if kk < 2 else 221, kk * 1024, STF), "st")
    for k in range(12):
        unpack(TU + 2 * k, XR + k)
    S0 = 112
    a("v_pk_add_f32 %s, %s, %s" % (q2(S0), q2(TU), q2(TU + 2)))
    a("v_pk_add_f32 %s, %s, %s" % (q2(S0 + 2), q2(TU + 4), q2(TU + 6)))
    for k in range(4, 12, 2):
        a("v_pk_add_f32 %s, %s, %s" % (q2(S0), q2(S0), q2(TU + 2 * k)))
        a("v_pk_add_f32 %s, %s, %s" % (q2(S0 + 2), q2(S0 + 2), q2(TU + 2 * k + 2)))
    a("v_pk_add_f32 %s, %s, %s" % (q2(S0), q2(S0), q2(S0 + 2)))
    a("v_add_f32 v%d, v%d, v%d" % (S0, S0, S0 + 1))
    xsum(S0, S0 + 1)
    a("v_mul_f32 v%d, %s, v%d" % (S0 + 4, f32bits(1.0 / 72.0), S0))
    a("v_sub_f32 v%d, 0, v%d" % (S0 + 6, S0 + 4))
    a("v_mov_b32 v%d, v%d" % (S0 + 7, S0 + 6))
    a("v_and_b32 v%d, v%d, v222" % (S0 + 8, S0 + 6))
    a("v_mov_b32 v%d, v%d" % (S0 + 9, S0 + 8))
    for k in range(12):
        a("v_pk_add_f32 %s, %s, %s" % (q2(TU + 2 * k), q2(TU + 2 * k), q2(S0 + 6 if k < 8 else S0 + 8)))
    a("v_pk_mul_f32 %s, %s, %s" % (q2(S0), q2(TU), q2(TU)))
    a("v_pk_mul_f32 %s, %s, %s" % (q2(S0 + 2), q2(TU + 2), q2(TU + 2)))
    for k in range(2, 12):
        r = S0 + 2 * (k % 2)
        a("v_pk_fma_f32 %s, %s, %s, %s" % (q2(r), q2(TU + 2 * k), q2(TU + 2 * k), q2(r)))
    a("v_pk_add_f32 %s, %s, %s" % (q2(S0), q2(S0), q2(S0 + 2)))
    a("v_add_f32 v%d, v%d, v%d" % (S0 + 5, S0, S0 + 1))
    xsum(S0 + 5, S0 + 1)
    a("s_lshl_b32 s15, s5, 12")
    a("s_add_u32 s69, s15, s44")
    a("s_add_u32 s69, s69, %s" % hex(oST))
    a("s_lshl_b32 s15, s4, 9")
    a("s_lshl_b32 s19, s3, 7")
    a("s_add_u32 s15, s15, s19")
    a("s_add_u32 s15, s15, s69")
    a("v_lshrrev_b32 v%d, 1, v221" % (S0 + 1))
    vm.op("buffer_store_dwordx2 %s, v%d, s[40:43], s15 offen%s" % (q2(S0 + 4), S0 + 1, STF), "st")
    stamp(4)

    def m_setup():
        mod_small("s6", "s5", MROT)
        a("s_mul_i32 s6, s6, %d" % (NROT // MROT))
        a("s_mul_i32 s10, s3, %d" % (8 * 18432))
        a("s_add_u32 s10, s10, %s" % hex(W2P - W1P))
        a("s_lshl_b32 s11, s5, 3")
        a("s_add_u32 s11, s11, s4")
        a("s_mul_i32 s11, s11, %d" % TB)
        if PSHARE:
            a("s_add_u32 s11, s11, %s" % hex(PARTB))
        else:
            a("s_add_u32 s11, s11, s44")
            a("s_add_u32 s11, s11, %s" % hex(oPART))
        a("s_mul_i32 s14, s3, 4608")
        a("s_add_u32 s11, s11, s14")
        for n in range(9):
            a("s_mul_i32 s%d, s6, 18432" % (W2T + n))
            a("s_add_u32 s%d, s%d, s10" % (W2T + n, W2T + n))
            a("s_lshl_b32 s%d, s6, 9" % sst(n))
            a("s_add_u32 s%d, s%d, s11" % (sst(n), sst(n)))
            if n < NROT - 1:
                a("s_add_u32 s6, s6, 1")
                a("s_cmp_eq_u32 s6, %d" % NROT)
                a("s_cselect_b32 s6, 0, s6")
            else:
                a("s_mov_b32 s6, %d" % (n + 1))
        a("v_add_u32 v13, 36864, v2")
        a("v_add_u32 v14, %d, v2" % TB)
        a("v_add_u32 v15, %d, v2" % (TB + 36864))
        a("v_and_b32 v5, 1, v3")
        a("v_mul_u32_u24 v5, 18432, v5")
        a("v_lshl_add_u32 v5, v4, 4, v5")
        a("v_lshrrev_b32 v6, 5, v1")
        a("v_lshl_add_u32 v5, v6, 8, v5")
        a("v_add_u32 v6, 36864, v5")
        a("s_lshr_b32 s14, s3, 1")
        a("s_lshl_b32 s14, s14, 10")
        a("s_and_b32 s15, s3, 1")
        a("s_lshl_b32 s15, s15, 3")
        a("s_add_u32 s14, s14, s15")
        a("v_add_u32 v222, s14, v14")
        a("v_add_u32 v223, s14, v15")
        a("v_lshlrev_b32 v220, 3, v1")
        a("s_mul_i32 s8, s3, 18432")
        a("s_add_u32 s62, s62, %s" % hex(oX1))
        if GROT == 1:
            a("s_mov_b32 s91, 0")
        else:
            a("s_lshl_b32 s91, s12, 10")
            a("s_lshl_b32 s19, s12, 11")
            a("v_add_u32 v222, s19, v222")
            a("v_add_u32 v223, s19, v223")

    def w2arrive():
        if W2D:
            a("s_add_u32 s23, s4, 256")
            a("s_mul_i32 s23, s23, %d" % CST)
            a("s_cmp_lg_u32 s45, 0")
            a("s_cbranch_scc1 W2_c")
            arrive("s23", ret=False)
            a("W2_c:")

    hop("st", pre_a=[w2pack1] + [mload(q) for q in hca],
        pre_b=[m_setup, lambda: aload(0)] + [mload(q) for q in hcb])
    stamp(5)

    def fr(T, s):
        k = s * 4 + T
        return q4(k * 4, "a") if k < 64 else q4(224 + (k - 64) * 4)

    def xdma(s):
        a("s_add_u32 m0, s8, %d" % (s * 1024))
        a("s_add_u32 s11, s62, %d" % (s * 1024))
        vm.op("buffer_load_dwordx4 v2, s[40:43], s11 offen%s lds" % LD, ("y", XST[s]))

    a("s_barrier")
    XA = E("XA", 14)
    for s in range(XA):
        xdma(s)
        if s == 2:
            for j in range(8):
                vm.op("buffer_load_dwordx2 %s, v220, s[40:43], s69 offen offset:%d%s" % (q2(FIN + 2 * j), j * 512, LD), "stat")
    late = []

    c0 = -2.0 * math.sqrt(2.0 / math.pi) * math.log2(math.e)

    def stat_ops():
        ops = []
        e = lambda t, c=4: ops.append((t, c))
        m = lambda j: FIN + 2 * j
        t0 = TMP
        MEAN, VAR, M1, S1, M2, S2, RS = t0, t0 + 1, t0 + 2, t0 + 3, t0 + 4, t0 + 5, t0 + 6
        ops.append(("WAIT", 0))
        e("v_add_f32 v%d, v%d, v%d" % (MEAN, m(0), m(1)))
        e("v_add_f32 v%d, v%d, v%d" % (VAR, m(0) + 1, m(1) + 1))
        for j in range(2, 8):
            e("v_add_f32 v%d, v%d, v%d" % (MEAN, MEAN, m(j)))
            e("v_add_f32 v%d, v%d, v%d" % (VAR, VAR, m(j) + 1))
        e("v_mul_f32 v%d, %s, v%d" % (MEAN, f32bits(0.125), MEAN))
        e("v_mul_f32 v%d, %s, v%d" % (VAR, f32bits(1.0 / 72.0), VAR))
        for j in range(8):
            e("v_sub_f32 v%d, v%d, v%d" % (m(j), m(j), MEAN))
        for j in range(8):
            e("v_fmac_f32 v%d, v%d, v%d" % (VAR, m(j), m(j)))
        e("v_mul_f32 v%d, %s, v%d" % (VAR, f32bits(0.125), VAR))
        ln_scalars(MEAN, VAR, M1, S1, e)
        e("v_rcp_f32 v%d, v%d" % (RS, S1), 8)
        e("v_sub_f32 v%d, v%d, v%d" % (MEAN, MEAN, M1))
        e("v_mul_f32 v%d, v%d, v%d" % (MEAN, MEAN, RS))
        e("v_mul_f32 v%d, v%d, v%d" % (VAR, VAR, RS))
        e("v_mul_f32 v%d, v%d, v%d" % (VAR, VAR, RS))
        ln_scalars(MEAN, VAR, M2, S2, e)
        MU, R = M1, S1
        e("v_fmac_f32 v%d, v%d, v%d" % (MU, M2, S1))
        e("v_mul_f32 v%d, v%d, v%d" % (R, S1, S2))
        D0, D1, D2, H = t0 + 7, t0 + 8, t0 + 9, t0 + 10
        e("v_cvt_pk_bf16_f32 v%d, v%d, v%d" % (D1, MU, R))
        e("v_lshlrev_b32 v%d, 16, v%d" % (H, D1))
        e("v_sub_f32 v%d, v%d, v%d" % (H, MU, H))
        e("v_cvt_pk_bf16_f32 v%d, v%d, v%d" % (D0, MU, H))
        e("v_and_b32 v%d, 0xffff0000, v%d" % (H, D1))
        e("v_sub_f32 v%d, v%d, v%d" % (H, R, H))
        e("v_cvt_pk_bf16_f32 v%d, v%d, v%d" % (D2, MU, H))
        for T in range(4):
            e("v_cmp_eq_u32 vcc, %d, v3" % T)
            for k, d in enumerate((D0, D1, D0, D2)):
                e("v_cndmask_b32 v%d, 0, v%d, vcc" % (AB + 4 * T + k, d))
        r0, r1, r2, r3 = KC + 8, KC + 9, KC + 10, KC + 11
        e("v_mov_b32 v%d, v%d" % (r0, R))
        e("v_mov_b32 v%d, v%d" % (r2, R))
        e("v_permlane32_swap_b32 v%d, v%d" % (r0, r2))
        e("v_mov_b32 v%d, v%d" % (r1, r0))
        e("v_mov_b32 v%d, v%d" % (r3, r2))
        e("v_permlane16_swap_b32 v%d, v%d" % (r0, r1))
        e("v_permlane16_swap_b32 v%d, v%d" % (r2, r3))
        for T in range(4):
            e("v_rcp_f32 v%d, v%d" % (KC + T, KC + 8 + T), 8)
        for T in range(4):
            e("v_mul_f32 v%d, v%d, v%d" % (KC + 4 + T, KC + T, KC + T))
            e("v_mul_f32 v%d, %s, v%d" % (KC + T, f32bits(c0), KC + T))
            e("v_mul_f32 v%d, v%d, v%d" % (KC + 4 + T, KC + 4 + T, KC + T))
            e("v_mul_f32 v%d, %s, v%d" % (KC + 4 + T, f32bits(0.044715), KC + 4 + T))
        return ops

    def gelu_ops(tl):
        ops = []
        for T in range(4):
            x = [FIN + 4 * T + r for r in range(4)]
            t = [TMP + (T % 2) * 6 + r for r in range(4)]
            pk = TMP + (T % 2) * 6 + 4
            if "nogelu" in ABL:
                ops.append(("v_cvt_pk_bf16_f32 v%d, v%d, v%d" % (pk, x[0], x[1]), 4))
                ops.append(("v_cvt_pk_bf16_f32 v%d, v%d, v%d" % (pk + 1, x[2], x[3]), 4))
                ops.append(("ds_write_b64 v%d, %s offset:%d" % ((222, 223)[T // 2], q2(pk), (T % 2) * 18432 + tl * 2048), 4))
                continue
            for r in range(4):
                ops.append(("v_mul_f32 v%d, v%d, v%d" % (t[r], x[r], x[r]), 4))
            for r in range(4):
                ops.append(("v_fma_f32 v%d, v%d, v%d, v%d" % (t[r], t[r], KC + 4 + T, KC + T), 4))
            for r in range(4):
                ops.append(("v_mul_f32 v%d, v%d, v%d" % (t[r], t[r], x[r]), 4))
            for r in range(4):
                ops.append(("v_exp_f32 v%d, v%d" % (t[r], t[r]), 8))
            for r in range(4):
                ops.append(("v_fma_f32 v%d, v%d, v%d, v%d" % (t[r], t[r], KC + 8 + T, KC + 8 + T), 4))
            for r in range(4):
                ops.append(("v_rcp_f32 v%d, v%d" % (t[r], t[r]), 8))
            for r in range(4):
                ops.append(("v_mul_f32 v%d, v%d, v%d" % (t[r], t[r], x[r]), 4))
            ops.append(("v_cvt_pk_bf16_f32 v%d, v%d, v%d" % (pk, t[0], t[1]), 4))
            ops.append(("v_cvt_pk_bf16_f32 v%d, v%d, v%d" % (pk + 1, t[2], t[3]), 4))
            ops.append(("ds_write_b64 v%d, %s offset:%d" % ((222, 223)[T // 2], q2(pk), (T % 2) * 18432 + (tl * 2048 if GROT == 1 else 0)), 4))
        if GROT > 1 and tl < 8:
            if tl < 7:
                ops.append(("s_add_u32 s6, s19, 2048", 1))
                ops.append(("s_and_b32 s6, s6, 0x3fff", 1))
            else:
                ops.append(("s_mov_b32 s6, 16384", 1))
            ops.append(("s_sub_u32 s7, s6, s19", 1))
            ops.append(("s_mov_b32 s19, s6", 1))
            ops.append(("v_add_u32 v222, s7, v222", 4))
            ops.append(("v_add_u32 v223, s7, v223", 4))
        return ops

    def out_ops(n2):
        ops = []
        for T in range(4):
            ops.append(("v_cvt_pk_bf16_f32 v%d, v%d, v%d" % (PK + 2 * T, FIN + 4 * T, FIN + 4 * T + 1), 4))
            ops.append(("v_cvt_pk_bf16_f32 v%d, v%d, v%d" % (PK + 2 * T + 1, FIN + 4 * T + 2, FIN + 4 * T + 3), 4))
            if T % 2 == 1:
                ops.append(("v_permlane16_swap_b32 v%d, v%d" % (PK + 2 * T - 2, PK + 2 * T), 4))
                ops.append(("v_permlane16_swap_b32 v%d, v%d" % (PK + 2 * T - 1, PK + 2 * T + 1), 4))
                ops.append(("buffer_store_dwordx4 %s, v%d, s[40:43], s%d offen%s" % (q4(PK + 2 * T - 2), (5, 6)[T // 2], sst(n2), STF), 4))
        return ops

    cur = [0]

    def emit_fill(op):
        if op == "WAIT":
            vm.wait("stat")
        elif op.startswith("ds_"):
            lg.op(op, "hw")
        elif op.startswith("buffer_store"):
            vm.op(op, "st")
            cur[0] += 1
            if cur[0] == 2 * NE1:
                vm.ops[-1] = "st5"
        elif op.startswith("PL"):
            pload(int(op[2:]))
        else:
            if E("E64", 0) and op.split()[0] in ("v_mul_f32", "v_exp_f32", "v_rcp_f32") and "0x" not in op:
                op = op.replace("_f32 ", "_f32_e64 ", 1)
            a(op)

    def act1(T, s, second):
        off = ((T % 2) * 18 + s) * 1024
        base = ((2, 13), (14, 15))[second][T // 2]
        lg.op("ds_read_b128 %s, v%d offset:%d" % (fr(T, s), base, off), ("act", second, s))

    DT, XQ, BQ, SEL, XP = 88, 108, 128, 148, 156
    PR = lambda n: 32 + 4 * n if n < 14 else 16 + 4 * (n - 14)
    order = [(k, st, hf) for k in range(5) for st in range(2) for hf in range(2) if not (k == 4 and st == 1)]

    def r_addr_ops():
        ops = []
        e = lambda t: ops.append((t, 4))
        e("s_lshr_b32 s6, s4, 1")
        e("s_mul_i32 s6, s6, 18432")
        e("s_and_b32 s7, s4, 1")
        e("s_lshl_b32 s7, s7, 7")
        e("s_add_u32 s6, s6, s7")
        e("s_mul_i32 s7, s3, 4608")
        e("s_add_u32 s6, s6, s7")
        e("s_add_u32 s6, s6, s44")
        e("s_lshl_b32 s7, s47, 3")
        e("s_add_u32 s48, s6, s7")
        if PSHARE:
            e("s_sub_u32 s48, s48, s44")
            e("s_add_u32 s48, s48, %s" % hex(PARTB))
        else:
            e("s_add_u32 s48, s48, %s" % hex(oPART))
        e("s_add_u32 s49, s48, %d" % (4 * TB))
        e("s_add_u32 s50, s48, 4096")
        e("s_add_u32 s51, s49, 4096")
        e("s_add_u32 s6, s6, s47")
        e("s_add_u32 s52, s6, %s" % hex(oX1))
        e("s_add_u32 s53, s52, 4096")
        e("s_add_u32 s54, s6, %s" % hex(LS + oXA))
        e("s_add_u32 s55, s6, %s" % hex(LS + oY))
        e("v_and_b32 v176, 7, v1")
        e("v_bfe_u32 v177, v1, 3, 1")
        e("v_lshlrev_b32 v178, 4, v176")
        e("v_lshl_add_u32 v178, v177, 8, v178")
        e("v_mul_u32_u24 v179, %d, v3" % TB)
        e("v_add_u32 v179, v179, v178")
        e("v_and_b32 v180, 1, v3")
        e("v_lshrrev_b32 v181, 1, v3")
        e("v_lshl_add_u32 v182, v181, 9, v178")
        e("v_lshl_add_u32 v183, v180, 10, v182")
        e("v_lshl_add_u32 v182, v180, 3, v182")
        e("v_lshlrev_b32 v184, 4, v177")
        e("v_lshl_add_u32 v184, v181, 5, v184")
        e("v_mul_u32_u24 v185, 1152, v176")
        e("v_add_u32 v185, v185, v184")
        e("v_lshl_add_u32 v185, v180, 6, v185")
        e("v_lshl_add_u32 v184, v180, 3, v184")
        e("v_mov_b32 v188, %s" % hex(OOB))
        e("v_cmp_eq_u32 vcc, 0, v3")
        e("v_add_u32 v186, 4096, v183")
        e("v_cndmask_b32 v186, v188, v186, vcc")
        e("v_cndmask_b32 v187, v188, v185, vcc")
        e("v_cmp_gt_u32 vcc, 2, v3")
        e("v_cndmask_b32 v188, 0, -1, vcc")
        e("s_lshl_b32 s66, s45, 30")
        e("s_add_u32 s60, s60, s66")
        for G in range(1, 6):
            e("s_add_u32 s%d, s66, %d" % (66 + G, G * 10752))
        return ops

    def r_setup():
        srd(36, 28, 0, 1152)
        a("s_mul_i32 s56, s3, 288")
        for k in range(5):
            vm.op("buffer_load_dwordx2 %s, v182, s[40:43], s%d offen offset:%d%s" % (q2(XP + 2 * k), 52 if k < 4 else 53, (k % 4) * 1024, LD), "rx")
            vm.op("buffer_load_dwordx2 %s, v184, s[36:39], s56 offen offset:%d" % (q2(XP + 10 + 2 * k), k * 64), "rx")
        a("v_and_b32 v189, 1, v4")
        a("v_lshlrev_b32 v189, 4, v189")
        a("v_mov_b32 v190, 0x3f80")
        a("v_lshlrev_b32 v189, v189, v190")
        a("v_lshrrev_b32 v190, 1, v4")
        for k in range(8):
            a("v_cmp_eq_u32 vcc, %d, v190" % k)
            a("v_cndmask_b32 v%d, 0, v189, vcc" % (SEL + k))
        a("v_lshlrev_b32 v190, 5, v176")
        a("s_lshl_b32 s7, s3, 3")
        a("v_add_u32 v191, s7, v190")


    def pload(n):
        k, st, hf = order[n]
        vm.op("buffer_load_dwordx4 %s, v179, s[40:43], s%d offen offset:%d%s" % (q4(PR(n)), 48 + hf + (2 if k == 4 else 0), ((4 * k + 2 * st) * 256) % 4096, LD), ("p", n))

    kpf = [wload1(i, t, "s%d" % (66 + i // 3)) for i in range(PF) for t in range(4)]
    PFT = E("PFT", 9)
    NQ = 18 * 18
    RAMP = E("RAMP", 144)
    sched = {}
    for q in range(PRE, NQ):
        c = max(q - NR, int((q - PRE) * RAMP / (RAMP + NR - PRE)))
        sched.setdefault(c, []).append(q)
    AHEAD = 3
    for n in range(18):
        gemm = 1 if n < 9 else 2
        npos = 19 if gemm == 1 else 18
        if n == 0:
            fill, g0, g1 = stat_ops(), E("SG0", 12), 70
        elif n <= 9:
            fill, g0, g1 = gelu_ops(n - 1), E("GG0", 0), (E("GG1", 74) if n < 9 else 50)
        elif n == 15:
            fill, g0, g1 = out_ops(n - 10) + r_addr_ops(), 8, 68
        else:
            fill, g0, g1 = out_ops(n - 10), 8, 24
        rd = n in (0, 9)
        if n == 0:
            vm.wait(("y", 0))
            a("s_barrier")
            if E("XP", 0):
                stamp(15)
        if W2D and n == E("W2R", 5):
            a("s_mov_b32 s16, 128")
            a("s_cmp_lg_u32 s45, 0")
            a("s_cbranch_scc1 W2_d")
            a("s_mov_b32 s16, 0")
            a("s_atomic_add s16, s[20:21], s23 glc")
            a("W2_d:")
        if W2D and n == 7:
            poll("128", offs=("s23",), issued="poll")
        if n == 16 and NE1:
            poll("s46", issued="poll")
            a("s_add_u32 s46, s46, 8")
        if n == 17:
            vm.wait("st")
            arrive(ret=False)
        if n == 1:
            stamp(6)
            if E("ALN", 0):
                a(".p2align 3")
                if E("ALN", 0) == 2:
                    a("s_nop 0")
        if n == 9:
            stamp(7)
            lg.wait("hw")
            a("s_barrier")
        if n == 10:
            stamp(8)
        if rd:
            for s in range(AHEAD):
                for T in range(4):
                    act1(T, s, n == 9)
        total = sum(c for _, c in fill)
        fi = spent = m = 0
        for s in range(npos):
            q = n * 18 + s
            if rd and s < 18:
                sa = s + AHEAD
                if sa < 18:
                    if n == 0 and XST[sa] != XST[sa - 1]:
                        vm.wait(("y", XST[sa]))
                        a("s_barrier")
                    if n == 9 and sa == 16:
                        assert fi == len(fill)
                        lg.wait("hw")
                        a("s_barrier")
                lg.wait(("act", n == 9, s))
            if n == 0 and s == E("W2S", 5):
                w2pack2()
                w2mark = len(vm.ops)
            if W2D and n == 1 and s == E("W2A", 0):
                vm.wait(vm.ops[w2mark])
                w2arrive()
            if NE1 and n == 10 + NE1 and s == 4:
                vm.wait("st5")
                arrive(ret=False)
            if NE1 and n == 15 and s == 10:
                a("s_mov_b32 s16, 0")
                a("s_atomic_add s16, s[20:21], s22 glc")
            if n == 16 and 7 <= s < 7 + 2 * NE1:
                pload(s - 7)
            if s == 18:
                assert fi == len(fill) or (n > 0 and fi > 3 * len(fill) // 4)
                vm.wait(("aug", n))
            elif s % WSTEP == 0:
                n0 = len(a.ins)
                for k in range(WSTEP):
                    vm.wait(("m", q + WSTEP - 1 - k))
                if E("E64", 0) and (len(a.ins) - n0) % 2:
                    a("s_nop 0")
            for T in range(4):
                last = s == npos - 1
                d = (FIN if last else ACC) + 4 * T
                c = "0" if s == 0 else q4(ACC + 4 * T)
                if s == 18:
                    a("%s %s, %s, %s, %s" % (MF, q4(d), q4(AUGW), q4(AB + 4 * T), c))
                else:
                    a("%s %s, %s, %s, %s" % (MF, q4(d), q4(ring(q)), fr(T, s), c))
                if rd and s + AHEAD < 18:
                    act1(T, s + AHEAD, n == 9)
                if n == 0 and T in (0, 2) and XA + 2 * s + T // 2 < 18:
                    xdma(XA + 2 * s + T // 2)
                elif T == 1 and late and not (n == 0 and XA + 2 * s < 18):
                    late.pop(0)()
                if T == 3:
                    if s < 18:
                        for x in sched.get(q, []):
                            late.append(mload(x))
                        if late and not (n == 0 and XA + 2 * s < 18):
                            late.pop(0)()
                    if n == 16 and 4 <= s < 16:
                        wodma(0, s - 4)()
                    if n == 16 and s == 16:
                        kw_voffs()
                    if n == 17:
                        for k in range(s * PFT // 18, (s + 1) * PFT // 18):
                            assert k // 4 <= s
                            kpf[k]()
                    if s == 18 and n < 8:
                        a("s_add_u32 s91, s91, 1024")
                        if GROT > 1:
                            if n < 7:
                                a("s_and_b32 s91, s91, 0x1fff")
                            else:
                                a("s_mov_b32 s91, 8192")
                        aload(n + 1)
                if fill and g0 <= m <= g1:
                    budget = total * (m - g0 + 1) / (g1 - g0 + 1)
                    while fi < len(fill) and spent + fill[fi][1] / 2 <= budget:
                        emit_fill(fill[fi][0])
                        spent += fill[fi][1]
                        fi += 1
                m += 1
        assert fi == len(fill), (n, fi, len(fill))
    for op, _ in out_ops(8):
        emit_fill(op)
    stamp(9)

    def r_unpack():
        vm.wait("rx")
        for k in range(8, 10):
            a("v_and_b32 v%d, v%d, v188" % (XP + k, XP + k))
            a("v_and_b32 v%d, v%d, v188" % (XP + 10 + k, XP + 10 + k))
        for k in range(10):
            unpack(XQ + 2 * k, XP + k)
            unpack(BQ + 2 * k, XP + 10 + k)


    def pmfma(n):
        k, st, hf = order[n]
        vm.wait(("p", n))
        a("%s %s, %s, %s, %s" % (MF, q4(DT + 4 * k), q4(SEL + 4 * st), q4(PR(n)), q4(BQ + 4 * k) if (st == 0 and hf == 0) else q4(DT + 4 * k)))

    def early():
        a("s_mov_b32 s16, 0")
        a("s_atomic_add s16, s[20:21], s22 glc")
        r_setup()
        poll("s46", issued="poll")
        a("s_add_u32 s46, s46, 8")
        for n in range(2 * NE1, 2 * NE1 + 6):
            pload(n)

    def early2():
        r_unpack()
        for n in range(2 * NE1):
            pmfma(n)

    kpf = kpf[PFT:]
    n2 = E("PFB", 0)
    hop("st", pre_a=[early], pre_b=[lambda n=n: pload(n) for n in range(2 * NE1 + 6, 14)] + [early2] + kpf[:n2])
    kpf = kpf[n2:]
    stamp(10)
    for n in range(14, 18):
        pload(n)
    for n in range(2 * NE1, 18):
        pmfma(n)
    if E("XP", 0) == 2:
        stamp(13)
    n4 = E("PFD", 0)
    for f in kpf[:n4]:
        f()
    kpf = kpf[n4:]
    TK = 192
    for k in range(10):
        cvt(TK + k, DT + 2 * k, DT + 2 * k + 1)
    for k in range(10):
        unpack(DT + 2 * k, TK + k)
    for k in range(10):
        a("v_pk_add_f32 %s, %s, %s" % (q2(DT + 2 * k), q2(DT + 2 * k), q2(XQ + 2 * k)))
    for k in range(10):
        cvt(TK + k, DT + 2 * k, DT + 2 * k + 1)
    for k in range(10):
        unpack(DT + 2 * k, TK + k)
    for kk in range(3):
        a("v_permlane16_swap_b32 v%d, v%d" % (TK + 4 * kk, TK + 4 * kk + 2))
        a("v_permlane16_swap_b32 v%d, v%d" % (TK + 4 * kk + 1, TK + 4 * kk + 3))
    a("s_cmp_eq_u32 s45, 0")
    a("s_cbranch_scc1 R_mid")
    srd(36, 30, 0, ACT)
    a("s_lshl_b32 s6, s5, 3")
    a("s_add_u32 s6, s6, s4")
    a("s_mul_i32 s6, s6, %d" % (8 * 1152))
    a("s_add_u32 s6, s6, s56")
    for kk in range(3):
        a("buffer_store_dwordx4 %s, v%d, s[36:39], s6 offen offset:%d" % (q4(TK + 4 * kk), 185 if kk < 2 else 187, kk * 128))
    stamp(11)
    rstamp(12)
    if os.environ.get("PDBG"):
        a("s_or_b32 s6, s2, s3")
        a("s_cmp_lg_u32 s6, 0")
        a("s_cbranch_scc1 L_exit2")
        a("s_load_dwordx2 s[6:7], s[0:1], %d" % KA_DBG)
        a("s_waitcnt vmcnt(0) lgkmcnt(0)")
        srd(36, 6, 0, 256)
        a("v_lshlrev_b32 v5, 2, v1")
        a("v_mov_b32 v6, %d" % (1 << 19))
        a("buffer_load_dwordx2 v[8:9], v6, s[92:95], 0 offen sc1")
        a("v_mov_b32 v6, %d" % ((1 << 19) + (P_MISC - 1) * 128))
        a("buffer_load_dwordx2 v[10:11], v6, s[92:95], 0 offen sc1")
        a("buffer_load_dword v12, v5, s[92:95], 0 offen offset:64 sc1")
        a("buffer_load_dword v13, off, s[92:95], 0 offset:%d sc1" % (128 + 64 + 44))
        a("s_waitcnt vmcnt(0)")
        a("v_sub_u32 v12, v12, v8")
        a("v_sub_u32 v13, v13, v8")
        a("v_sub_u32 v9, v9, v8")
        a("v_sub_u32 v11, v11, v8")
        a("v_cmp_gt_u32 vcc, 12, v1")
        a("v_mov_b32 v6, %s" % hex(OOB))
        a("v_cndmask_b32 v5, v6, v5, vcc")
        a("buffer_store_dword v12, v5, s[36:39], 0 offen")
        a("buffer_store_dword v13, off, s[36:39], 0 offset:48")
        a("buffer_store_dword v9, off, s[36:39], 0 offset:52")
        a("buffer_store_dword v11, off, s[36:39], 0 offset:56")
    a("L_exit2:")
    a("s_endpgm")
    a("R_mid:")
    for kk in range(3):
        vm.op("buffer_store_dwordx4 %s, v%d, s[40:43], s54 offen offset:%d%s" % (q4(TK + 4 * kk), 183 if kk < 2 else 186, (kk % 2) * 2048, ST), "st")
    S0 = XQ

    a("v_pk_add_f32 %s, %s, %s" % (q2(S0), q2(DT), q2(DT + 2)))
    a("v_pk_add_f32 %s, %s, %s" % (q2(S0 + 2), q2(DT + 4), q2(DT + 6)))
    for k in range(4, 10, 2):
        a("v_pk_add_f32 %s, %s, %s" % (q2(S0), q2(S0), q2(DT + 2 * k)))
        a("v_pk_add_f32 %s, %s, %s" % (q2(S0 + 2), q2(S0 + 2), q2(DT + 2 * k + 2)))
    a("v_pk_add_f32 %s, %s, %s" % (q2(S0), q2(S0), q2(S0 + 2)))
    a("v_add_f32 v%d, v%d, v%d" % (S0, S0, S0 + 1))
    MEAN, VAR, M, SD = S0 + 8, S0 + 9, S0 + 10, S0 + 12
    xsum(S0, S0 + 1, ror8=True)
    a("v_mul_f32 v%d, %s, v%d" % (S0 + 14, f32bits(-1.0 / 144.0), S0))
    a("v_mov_b32 v%d, v%d" % (S0 + 15, S0 + 14))
    a("v_and_b32 v%d, v%d, v188" % (S0 + 16, S0 + 14))
    a("v_mov_b32 v%d, v%d" % (S0 + 17, S0 + 16))
    for k in range(10):
        a("v_pk_add_f32 %s, %s, %s" % (q2(BQ + 2 * k), q2(DT + 2 * k), q2(S0 + 14 if k < 8 else S0 + 16)))
    a("v_pk_mul_f32 %s, %s, %s" % (q2(S0), q2(BQ), q2(BQ)))
    a("v_pk_mul_f32 %s, %s, %s" % (q2(S0 + 2), q2(BQ + 2), q2(BQ + 2)))
    for k in range(2, 10):
        r = S0 + 2 * (k % 2)
        a("v_pk_fma_f32 %s, %s, %s, %s" % (q2(r), q2(BQ + 2 * k), q2(BQ + 2 * k), q2(r)))
    a("v_pk_add_f32 %s, %s, %s" % (q2(S0), q2(S0), q2(S0 + 2)))
    a("v_add_f32 v%d, v%d, v%d" % (S0 + 15, S0, S0 + 1))
    xsum(S0 + 15, S0 + 1, ror8=True)
    a("ds_write_b64 v191, %s" % q2(S0 + 14))
    a("s_waitcnt lgkmcnt(0)")
    a("s_barrier")
    a("ds_read_b128 %s, v190" % q4(S0))
    a("ds_read_b128 %s, v190 offset:16" % q4(S0 + 4))
    a("s_waitcnt lgkmcnt(0)")
    a("v_pk_add_f32 %s, %s, %s" % (q2(MEAN), q2(S0), q2(S0 + 2)))
    a("v_pk_add_f32 %s, %s, %s" % (q2(M), q2(S0 + 4), q2(S0 + 6)))
    a("v_pk_add_f32 %s, %s, %s" % (q2(MEAN), q2(MEAN), q2(M)))
    a("v_mul_f32 v%d, %s, v%d" % (MEAN, f32bits(-0.25), MEAN))
    a("v_mul_f32 v%d, %s, v%d" % (VAR, f32bits(1.0 / 144.0), VAR))
    for k in range(4):
        a("v_add_f32 v%d, v%d, v%d" % (S0 + 2 * k, S0 + 2 * k, MEAN))
    for k in range(4):
        a("v_fmac_f32 v%d, v%d, v%d" % (VAR, S0 + 2 * k, S0 + 2 * k))
    a("v_mul_f32 v%d, %s, v%d" % (VAR, f32bits(0.25), VAR))
    ln_scalars(MEAN, VAR, M, SD)
    a("v_rcp_f32 v%d, v%d" % (SD, SD))
    a("v_sub_f32 v%d, 0, v%d" % (M, M))
    a("v_mov_b32 v%d, v%d" % (M + 1, M))
    a("v_mov_b32 v%d, v%d" % (SD + 1, SD))
    for k in range(10):
        a("v_pk_add_f32 %s, %s, %s" % (q2(DT + 2 * k), q2(DT + 2 * k), q2(M)))
    TY = 204
    for k in range(10):
        cvt(TY + k, DT + 2 * k, DT + 2 * k + 1)
    for k in range(10):
        unpack(DT + 2 * k, TY + k)
    for k in range(10):
        a("v_pk_mul_f32 %s, %s, %s" % (q2(DT + 2 * k), q2(DT + 2 * k), q2(SD)))
    for k in range(10):
        cvt(TY + k, DT + 2 * k, DT + 2 * k + 1)
    for kk in range(3):
        a("v_permlane16_swap_b32 v%d, v%d" % (TY + 4 * kk, TY + 4 * kk + 2))
        a("v_permlane16_swap_b32 v%d, v%d" % (TY + 4 * kk + 1, TY + 4 * kk + 3))
    for kk in range(3):
        vm.op("buffer_store_dwordx4 %s, v%d, s[40:43], s55 offen offset:%d%s" % (q4(TY + 4 * kk), 183 if kk < 2 else 186, (kk % 2) * 2048, ST), "st")
    stamp(11)

    def next_layer():
        a("s_add_u32 s44, s44, %s" % hex(LS))
        a("s_mov_b32 s45, 1")
        a("s_add_u32 s32, s24, %s" % hex(LB + LS + oXA))
        a("s_addc_u32 s33, s25, 0")
        k1_setup(False)
        attn_consts()
        for n in range(4):
            a("s_mov_b32 s%d, %s" % (76 + n, hex(OOB)))
        a("v_mov_b32 v236, 0")

    a("s_lshr_b32 s6, s4, 1")
    a("s_lshl_b32 s7, s5, 2")
    a("s_add_u32 s6, s6, s7")
    a("s_mul_i32 s6, s6, %d" % CST)
    a("s_add_u32 s19, s6, %d" % (128 * CST))
    a("s_add_u32 s23, s22, %d" % (128 * CST))
    a("s_max_u32 s7, s7, 1")
    a("s_mul_i32 s7, s7, %d" % CST)
    a("s_add_u32 s26, s7, %d" % (127 * CST))
    if NUMA:
        a("s_lshl_b32 s7, s5, 9")
        a("s_xor_b32 s7, s7, s22")
        a("s_and_b32 s7, s7, 0x2000")
        a("s_xor_b32 s19, s19, s7")
        a("s_xor_b32 s26, s26, s7")
    for f in kpf[:10]:
        f()
    vm.wait("st")
    arrive("s19", ret=False)
    for f in kpf[10:]:
        f()
    if E("MIDP", 50) < 100:
        for k, o in enumerate(("s23", "s26")):
            a("s_mov_b32 s%d, 0" % (16 + k))
            a("s_atomic_add s%d, s[20:21], %s glc" % (16 + k, o))
        next_layer()
        poll("8", offs=("s23", "s26"), issued="poll")
    else:
        next_layer()
        poll("8", offs=("s23", "s26"))
    if PROF:
        a("s_add_u32 s96, s96, 128")
    stamp(0)
    a("s_branch K1_second")
    a("L_code_end:")
    a("s_endpgm")


def descriptor(label, vgpr, accum, sgpr):
    return """.amdhsa_kernel %s
  .amdhsa_next_free_vgpr %d
  .amdhsa_next_free_sgpr %d
  .amdhsa_accum_offset %d
  .amdhsa_group_segment_fixed_size 0
  .amdhsa_kernarg_size 88
  .amdhsa_user_sgpr_count 2
  .amdhsa_user_sgpr_kernarg_segment_ptr 1
  .amdhsa_system_sgpr_workgroup_id_x 1
.end_amdhsa_kernel
""" % (label, vgpr, sgpr, accum)


def build():
    launches = [
        ("p_kernel", P_END, 576, 36864 + 2304, 64, 64, 64),
        ("main_kernel", 256, 256, MAIN_LDS, 512, 256, 102),
    ]
    p_kernel()
    main_kernel()
    for e in a.check_branch_seams():
        print("WARN", e, file=sys.stderr)
    head = "; generated by work/gen2.py (hand-written generator)\n"
    for l, g, b, lds, _, _, _ in launches:
        head += "; @launch kernel=%s grid=(%d,1,1) block=(%d,1,1) lds=%d\n" % (l, g, b, lds)
    head += '.amdgcn_target "amdgcn-amd-amdhsa--gfx950"\n.text\n'
    tail = '.section .rodata,"a"\n'
    for l, g, b, lds, v, ac, sg in launches:
        tail += ".p2align 6\n" + descriptor(l, v, ac, sg)
    return head + a.text() + tail


if __name__ == "__main__":
    out = sys.argv[1] if len(sys.argv) > 1 else "cdna_kernels/%s.s" % NAME
    open(out, "w").write(build())
    print("wrote", out)
```

```python
import sys, math, os
from asmlib import Asm, f32bits

NAME = "interleave_layers__sliding_local_dilated__mixer_channel_mlp__prompt"
ACT = 2048 * 576 * 2
TB = 73728
WOS = 82944
WQKVP = 0
WOP = WQKVP + 2304 * 1024
W1P = WOP + 672 * 1024
W2P = W1P + 5184 * 1024
AUG = W2P + 5184 * 1024
CNT = (AUG + 72 * 1024 + 16383) // 16384 * 16384
CST = int(os.environ.get('CST', '128'))
CNTB = (288 * CST + 4095) // 4096 * 4096
LB = CNT + CNTB
oY, oO, oXA, oX1 = 0, ACT, 2 * ACT, 3 * ACT
oST = 4 * ACT
PSHARE = int(os.environ.get("PSHARE", "0"))
oPART = 4 * ACT + 128 * 1024
LS = oPART + (0 if PSHARE else 8 * ACT)
WS_USED = LB + 2 * LS + (8 * ACT if PSHARE else 0)
PARTB = LB + 2 * LS
WS_BYTES = 268435456
OOB = 0x80000000
ST = " sc1"
LD = " sc1"
STAMP = 200 * 1024 * 1024

E = lambda n, d: int(os.environ.get(n, str(d)))
PROF = os.environ.get("PROF", "")
MAPB = E("MAPB", 2)
MROT = E("MROT", 3)
AROT = E("AROT", 2)
APRE = E("APRE", 3)
PF = E("PF", 9)
K2PRE = E("K2PRE", 6)
TOUCH = E("TOUCH", 0)
NE1 = E("NE1", 0)
NROT = NE1 if NE1 else 7
PNT = os.environ.get("PNT", " nt").replace("_", " ")
PV = E("PV", 72)
ABL = os.environ.get("ABL", "")
XST = {0: [s // 6 for s in range(18)], 1: [0] * 3 + [1] * 5 + [2] * 5 + [3] * 5}[E("XS", 1)]
STF = "" if E("FAST", 0) else ST
WSTEP = E("WSTEP", 2)
WOL = 21
W2D = E("W2D", 1)
MLD = os.environ.get("MLD", "").replace("_", " ")
GROT = E("GROT", 1)
NUMA = E("NUMA", 0)
LPF = E("LPF", 0)
SKIP = E("SKIP", 0)
LSLOT = {1: (1,), 3: (0, 1, 2)}[E("LSL", 1)]
OWN = E("OWN", 1)
NR = 32
SPIN = 1 << 18

KA_X, KA_WQKV, KA_WO, KA_BX, KA_W1, KA_B1, KA_W2, KA_B2, KA_OUT, KA_DBG, KA_WS = [8 * i for i in range(11)]
a = Asm()
MF = "v_mfma_f32_16x16x32_bf16"
q4 = lambda b, k="v": "%s[%d:%d]" % (k, b, b + 3)
q2 = lambda b: "v[%d:%d]" % (b, b + 1)


def srd(d, base, off, nbytes):
    if off == 0:
        a("s_mov_b32 s%d, s%d" % (d, base))
        a("s_mov_b32 s%d, s%d" % (d + 1, base + 1))
    else:
        a("s_add_u32 s%d, s%d, %s" % (d, base, off if isinstance(off, str) else hex(off)))
        a("s_addc_u32 s%d, s%d, 0" % (d + 1, base + 1))
    a("s_mov_b32 s%d, %s" % (d + 2, hex(nbytes)))
    a("s_mov_b32 s%d, 0x20000" % (d + 3))


def entry(label):
    a(".p2align 8")
    a(".globl %s" % label)
    a(".type %s,@function" % label)
    a("%s:" % label)


class VM:
    def __init__(self, cnt="vmcnt", maxn=63):
        self.ops, self.cnt, self.maxn, self.done = [], cnt, maxn, -1

    def op(self, text, tag):
        a(text)
        self.ops.append(tag)

    def wait(self, tag):
        last = max(i for i, t in enumerate(self.ops) if t == tag)
        if last <= self.done:
            return
        n = min(len(self.ops) - 1 - last, self.maxn)
        self.done = len(self.ops) - 1 - n
        a("s_waitcnt %s(%d)" % (self.cnt, n))

    def all(self):
        self.done = len(self.ops) - 1
        a("s_waitcnt %s(0)" % self.cnt)


def stamp(k):
    if PROF:
        a("s_memtime s[98:99]")
        a("s_memrealtime s[100:101]")
        a("s_waitcnt lgkmcnt(0)")
        a("v_mov_b32 v0, s98")
        a("buffer_store_dword v0, off, s[92:95], s96 offset:%d" % (4 * k))
        a("v_mov_b32 v0, s100")
        a("buffer_store_dword v0, off, s[92:95], s96 offset:%d" % (4 * k + 64))


def rstamp(k):
    if PROF:
        a("s_memrealtime s[98:99]")
        a("s_waitcnt lgkmcnt(0)")
        a("v_mov_b32 v0, s98")
        a("buffer_store_dword v0, off, s[92:95], s96 offset:%d" % (4 * k))


def unpack(dst, src):
    a("v_lshlrev_b32 v%d, 16, v%d" % (dst, src))
    a("v_and_b32 v%d, 0xffff0000, v%d" % (dst + 1, src))


def cvt(d, x, y):
    a("v_cvt_pk_bf16_f32 v%d, v%d, v%d" % (d, x, y))


def round1(r):
    cvt(r, r, r)
    a("v_and_b32 v%d, 0xffff0000, v%d" % (r, r))


def ln_scalars(mean, var, M, SD, emit=None):
    e = emit or a
    e("v_cvt_pk_bf16_f32 v%d, v%d, v%d" % (M, var, mean))
    e("v_lshlrev_b32 v%d, 16, v%d" % (SD, M))
    e("v_and_b32 v%d, 0xffff0000, v%d" % (M, M))
    e("v_add_f32 v%d, %s, v%d" % (SD, f32bits(1e-5), SD))
    e("v_cvt_pk_bf16_f32 v%d, v%d, v%d" % (SD, SD, SD))
    e("v_and_b32 v%d, 0xffff0000, v%d" % (SD, SD))
    e("v_sqrt_f32 v%d, v%d" % (SD, SD))
    e("v_cvt_pk_bf16_f32 v%d, v%d, v%d" % (SD, SD, SD))
    e("v_and_b32 v%d, 0xffff0000, v%d" % (SD, SD))


def xsum(r, t, rows16=True, rows32=True, ror8=False):
    if ror8:
        a("v_add_f32_dpp v%d, v%d, v%d row_ror:8 row_mask:0xf bank_mask:0xf" % (r, r, r))
    a("v_mov_b32 v%d, v%d" % (t, r))
    a("v_permlane16_swap_b32 v%d, v%d" % (r, t))
    a("v_add_f32 v%d, v%d, v%d" % (r, r, t))
    a("v_mov_b32 v%d, v%d" % (t, r))
    a("v_permlane32_swap_b32 v%d, v%d" % (r, t))
    a("v_add_f32 v%d, v%d, v%d" % (r, r, t))


def mod_small(dst, src, n):
    if n == 1:
        a("s_mov_b32 %s, 0" % dst)
        return
    m = -(-4096 // n)
    assert all((t * m) >> 12 == t // n for t in range(32))
    a("s_mul_i32 %s, %s, %d" % (dst, src, m))
    a("s_lshr_b32 %s, %s, 12" % (dst, dst))
    a("s_mul_i32 %s, %s, %d" % (dst, dst, n))
    a("s_sub_u32 %s, %s, %s" % (dst, src, dst))


P_LN, P_QKV, P_W1, P_W2 = 0, 256, 328, 472
P_MISC = P_W2 + (32 if W2D else 144)
P_END = P_MISC + 1


def p_kernel():
    entry("p_kernel")
    a("s_cmp_ge_u32 s2, %d" % P_END)
    a("s_cbranch_scc1 L_exit")
    if PROF:
        a("s_memrealtime s[56:57]")
    a("s_sub_u32 s2, s2, 1")
    a("s_cselect_b32 s2, %d, s2" % P_MISC)
    if E("PORD", 0):
        a("s_add_u32 s20, s2, 328")
        a("s_sub_u32 s21, s2, 144")
        a("s_cmp_lt_u32 s2, 144")
        a("s_cselect_b32 s20, s20, s21")
        a("s_cmp_lt_u32 s2, 472")
        a("s_cselect_b32 s2, s20, s2")
    a("s_load_dwordx16 s[4:19], s[0:1], 0")
    a("s_load_dwordx2 s[24:25], s[0:1], %d" % KA_WS)
    a("v_lshrrev_b32 v1, 6, v0")
    a("v_readfirstlane_b32 s3, v1")
    a("v_and_b32 v1, 63, v0")
    a("v_lshlrev_b32 v2, 4, v1")
    a("v_lshrrev_b32 v3, 4, v1")
    a("v_and_b32 v4, 15, v1")
    a("v_lshlrev_b32 v5, 4, v0")
    a("s_waitcnt lgkmcnt(0)")
    srd(40, 24, 0, WS_USED)
    if E("PTOUCH", 16):
        a("s_cmp_ge_u32 s2, 32")
        a("s_cbranch_scc1 P_nt")
        a("s_lshr_b32 s20, s2, 3")
        a("s_mul_i32 s20, s20, 576")
        a("v_add_u32 v62, s20, v0")
        a("v_min_u32 v62, %d, v62" % ((1 << (31 - E("PTOUCH", 16))) - 1))
        a("v_lshlrev_b32 v62, %d, v62" % E("PTOUCH", 16))
        a("buffer_load_dword v63, v62, s[40:43], 0 offen")
        a("P_nt:")
    a("s_cmp_lt_u32 s2, %d" % P_QKV)
    a("s_cbranch_scc1 P_ln")
    a("s_cmp_ge_u32 s2, %d" % P_MISC)
    a("s_cbranch_scc1 P_misc")
    a("s_cmp_ge_u32 s2, %d" % P_W1)
    a("s_cbranch_scc1 P_w12")
    a("s_sub_u32 s29, s2, %d" % P_QKV)
    srd(36, 6, 0, 576 * 1728 * 2)
    a("s_mul_i32 s20, s29, %d" % (8 * 3456))
    a("s_lshl_b32 s21, s3, 10")
    for n in range(3):
        a("s_add_u32 m0, s21, %d" % (n * 9216))
        a("s_add_u32 s22, s20, %d" % (n * 9216))
        a("buffer_load_dwordx4 v5, s[36:39], s22 offen" + PNT + " lds")
    srd(32, 8, 0, 576 * 576 * 2)
    a("s_mov_b32 s20, s29")
    a("s_lshr_b32 s21, s20, 2")
    a("s_and_b32 s22, s20, 3")
    a("v_mul_u32_u24 v6, 911, v0")
    a("v_lshrrev_b32 v6, 16, v6")
    a("v_mul_u32_u24 v7, 72, v6")
    a("v_sub_u32 v7, v0, v7")
    a("s_cmp_ge_u32 s21, 16")
    a("s_cbranch_scc1 P_wo_tail")
    a("s_mul_i32 s23, s21, 36")
    a("s_lshl_b32 s26, s22, 2")
    a("s_add_u32 s23, s23, s26")
    a("v_lshrrev_b32 v8, 2, v6")
    a("v_and_b32 v9, 3, v6")
    a("s_branch P_wo_go")
    a("P_wo_tail:")
    a("s_sub_u32 s23, s20, 64")
    a("s_mul_i32 s23, s23, 72")
    a("s_add_u32 s23, s23, 16")
    a("v_lshrrev_b32 v8, 1, v6")
    a("v_and_b32 v9, 1, v6")
    a("P_wo_go:")
    a("v_mul_u32_u24 v8, 18, v8")
    a("v_add_u32 v8, v8, v9")
    a("v_mul_u32_u24 v8, 1152, v8")
    a("v_lshl_add_u32 v8, v7, 4, v8")
    a("s_mul_i32 s23, s23, 1152")
    a("s_lshl_b32 s26, s3, 10")
    a("s_add_u32 m0, s26, 27648")
    a("buffer_load_dwordx4 v8, s[32:35], s23 offen" + PNT + " lds")
    a("s_mul_i32 s27, s21, 4608")
    a("s_add_u32 s27, s27, %s" % hex(WOP))
    a("v_lshrrev_b32 v8, 4, v7")
    a("v_lshlrev_b32 v8, 10, v8")
    a("v_and_b32 v9, 15, v7")
    a("v_lshl_add_u32 v8, v9, 4, v8")
    a("s_lshl_b32 s26, s22, 7")
    a("v_mov_b32 v10, s26")
    a("v_lshlrev_b32 v11, 1, v10")
    a("v_cmp_gt_u32 vcc, 64, v7")
    a("v_cndmask_b32 v10, v10, v11, vcc")
    a("v_add_u32 v8, v8, v10")
    a("s_mov_b32 s26, %d" % WOS)
    a("v_mad_u32_u24 v3, v6, s26, v8")
    a("v_lshlrev_b32 v4, 1, v0")
    a("s_lshr_b32 s22, s29, 2")
    a("s_mul_i32 s54, s22, 43")
    a("s_lshr_b32 s54, s54, 7")
    a("s_mul_i32 s55, s54, 3")
    a("s_sub_u32 s55, s22, s55")
    a("s_mul_i32 s22, s54, 10752")
    a("s_and_b32 s23, s29, 3")
    a("s_mul_i32 s54, s55, 3072")
    a("s_lshl_b32 s28, s23, 8")
    a("s_add_u32 s54, s54, s28")
    a("s_lshl_b32 s55, s55, 9")
    a("s_lshl_b32 s28, s23, 7")
    a("s_add_u32 s55, s55, s28")
    a("s_add_u32 s55, s55, %d" % (9216 - 3072))
    a("v_mov_b32 v15, %s" % hex(OOB))
    for n in range(4):
        u, src, dst = 6, 48 + n, 52 + n
        a("v_add_u32 v6, %d, v0" % (n * 576))
        a("v_lshrrev_b32 v7, 6, v6")
        a("v_bfe_u32 v8, v6, 4, 2")
        a("v_and_b32 v9, 15, v6")
        a("v_mul_u32_u24 v10, 36, v7")
        a("v_mul_u32_u24 v11, 1152, v8")
        a("v_lshl_add_u32 v11, v9, 1, v11")
        a("v_lshrrev_b32 v12, 1, v9")
        a("v_mul_u32_u24 v12, 1152, v12")
        a("v_and_b32 v13, 1, v9")
        a("v_lshl_add_u32 v12, v13, 1, v12")
        a("v_add_u32 v12, 32, v12")
        a("v_cmp_eq_u32 vcc, 3, v8")
        a("v_cndmask_b32 v11, v11, v12, vcc")
        a("v_cmp_lt_u32 s[44:45], 5, v9")
        a("s_and_b64 s[%d:%d], vcc, s[44:45]" % (46 + 2 * n, 47 + 2 * n))
        a("v_cndmask_b32 v11, v11, 0, s[%d:%d]" % (46 + 2 * n, 47 + 2 * n))
        a("v_add_u32 v%d, v10, v11" % src)
        a("v_mul_u32_u24 v7, 64512, v7")
        a("v_lshl_add_u32 v7, v8, 10, v7")
        a("v_lshl_add_u32 v7, v9, 4, v7")
        a("v_mov_b32 v12, s54")
        a("v_mov_b32 v13, s55")
        a("v_cndmask_b32 v12, v12, v13, vcc")
        a("v_add_u32 v%d, v7, v12" % dst)
        a("v_cmp_lt_u32 s[44:45], 7, v9")
        a("s_and_b64 s[44:45], vcc, s[44:45]")
        a("v_cndmask_b32 v%d, v%d, v15, s[44:45]" % (dst, dst))
        if n == 3:
            a("v_cmp_gt_u32 vcc, 2048, v6")
            a("v_cndmask_b32 v%d, v15, v%d, vcc" % (dst, dst))
            a("v_cndmask_b32 v%d, 0, v%d, vcc" % (src, src))
    a("s_waitcnt vmcnt(0)")
    a("s_barrier")
    for n in range(4):
        for j in range(8):
            a("ds_read_u16 v%d, v%d offset:%d" % (16 + n * 8 + j, 48 + n, j * 3456))
        if n % 2 == 1:
            a("s_waitcnt lgkmcnt(0)")
            for m in (n - 1, n):
                for k in range(4):
                    a("v_lshl_or_b32 v%d, v%d, 16, v%d" % (16 + m * 8 + k, 16 + m * 8 + 2 * k + 1, 16 + m * 8 + 2 * k))
                    a("v_cndmask_b32 v%d, v%d, 0, s[%d:%d]" % (16 + m * 8 + k, 16 + m * 8 + k, 46 + 2 * m, 47 + 2 * m))
                a("buffer_store_dwordx4 %s, v%d, s[40:43], s22 offen%s" % (q4(16 + m * 8), 52 + m, ST))
    for j in range(8):
        a("ds_read_u16 v%d, v4 offset:%d" % (56 + j, 27648 + j * 1152))
    a("s_waitcnt lgkmcnt(0)")
    for k in range(4):
        a("v_lshl_or_b32 v%d, v%d, 16, v%d" % (56 + k, 56 + 2 * k + 1, 56 + 2 * k))
    a("buffer_store_dwordx4 v[56:59], v3, s[40:43], s27 offen%s" % ST)
    a("s_branch P_end" if PROF else "s_endpgm")

    a("P_ln:")
    srd(36, 4, 0, ACT)
    a("s_sub_u32 s20, s2, %d" % P_LN)
    a("v_lshrrev_b32 v1, 3, v0")
    a("v_and_b32 v7, 7, v0")
    a("v_lshlrev_b32 v8, 4, v1")
    a("v_mul_u32_u24 v9, 1152, v7")
    a("v_add_u32 v9, v9, v8")
    a("s_mul_i32 s21, s20, %d" % (8 * 1152))
    a("buffer_load_dwordx4 v[16:19], v9, s[36:39], s21 offen" + (PNT if E("XNT", 0) else ""))
    a("v_lshlrev_b32 v3, 8, v1")
    a("v_lshl_add_u32 v3, v7, 4, v3")
    a("s_lshr_b32 s22, s20, 1")
    a("s_mul_i32 s22, s22, 18432")
    a("s_and_b32 s23, s20, 1")
    a("s_lshl_b32 s23, s23, 7")
    a("s_add_u32 s22, s22, s23")
    a("s_add_u32 s22, s22, %s" % hex(LB + oY))
    a("v_mul_u32_u24 v11, 48, v7")
    a("v_lshrrev_b32 v12, 6, v0")
    a("v_lshl_add_u32 v12, v12, 2, v11")
    AC, T, P = 24, 32, 48
    a("s_waitcnt vmcnt(0)")
    for k in range(4):
        unpack(AC + 2 * k, 16 + k)

    def reduce9(s, ldsoff, out):
        xsum(s, s + 1, ror8=True)
        a("ds_write_b32 v12, v%d offset:%d" % (s, ldsoff))
        a("s_waitcnt lgkmcnt(0)")
        a("s_barrier")
        a("ds_read_b128 %s, v11 offset:%d" % (q4(P), ldsoff))
        a("ds_read_b128 %s, v11 offset:%d" % (q4(P + 4), ldsoff + 16))
        a("ds_read_b32 v%d, v11 offset:%d" % (P + 8, ldsoff + 32))
        a("s_waitcnt lgkmcnt(0)")
        a("v_pk_add_f32 %s, %s, %s" % (q2(P), q2(P), q2(P + 2)))
        a("v_pk_add_f32 %s, %s, %s" % (q2(P + 4), q2(P + 4), q2(P + 6)))
        a("v_pk_add_f32 %s, %s, %s" % (q2(P), q2(P), q2(P + 4)))
        a("v_add_f32 v%d, v%d, v%d" % (P, P, P + 1))
        a("v_add_f32 v%d, v%d, v%d" % (P, P, P + 8))
        a("v_mul_f32 v%d, %s, v%d" % (out, f32bits(1.0 / 576.0), P))

    S, MEAN, VAR, M, SD = 40, 42, 43, 44, 45
    a("v_pk_add_f32 %s, %s, %s" % (q2(T), q2(AC), q2(AC + 2)))
    a("v_pk_add_f32 %s, %s, %s" % (q2(T + 2), q2(AC + 4), q2(AC + 6)))
    a("v_pk_add_f32 %s, %s, %s" % (q2(T), q2(T), q2(T + 2)))
    a("v_add_f32 v%d, v%d, v%d" % (S, T, T + 1))
    reduce9(S, 0, MEAN)
    for k in range(8):
        a("v_sub_f32 v%d, v%d, v%d" % (T + k, AC + k, MEAN))
    a("v_mul_f32 v%d, v%d, v%d" % (S, T, T))
    for k in range(1, 8):
        a("v_fmac_f32 v%d, v%d, v%d" % (S, T + k, T + k))
    reduce9(S, 512, VAR)
    ln_scalars(MEAN, VAR, M, SD)
    a("v_rcp_f32 v%d, v%d" % (SD, SD))
    for k in range(8):
        a("v_sub_f32 v%d, v%d, v%d" % (AC + k, AC + k, M))
    for k in range(4):
        cvt(T + k, AC + 2 * k, AC + 2 * k + 1)
    for k in range(4):
        unpack(AC + 2 * k, T + k)
    for k in range(8):
        a("v_mul_f32 v%d, v%d, v%d" % (AC + k, AC + k, SD))
    for k in range(4):
        cvt(T + k, AC + 2 * k, AC + 2 * k + 1)
    a("buffer_store_dwordx4 %s, v3, s[40:43], s22 offen%s" % (q4(T), ST))
    a("s_branch P_end" if PROF else "s_endpgm")

    a("P_w12:")
    a("v_lshrrev_b32 v5, 3, v1")
    a("v_and_b32 v6, 7, v1")
    a("v_lshlrev_b32 v6, 4, v6")
    a("v_bfe_u32 v7, v1, 2, 2")
    a("v_and_b32 v8, 3, v1")
    a("s_lshl_b32 s21, s3, 12")
    a("s_cmp_ge_u32 s2, %d" % P_W2)
    a("s_cbranch_scc1 P_w2")
    if "now1" in ABL:
        a("s_branch P_end")

    def w12(stride, second):
        for n in range(4):
            a("s_add_u32 m0, s21, %d" % (n * 1024))
            a("buffer_load_dwordx4 v9, s[36:39], s22 offen" + PNT + " lds")
            if n < 3:
                a("s_add_u32 s22, s22, %d" % (8 * stride))

    def w12b(second):
        for tl in range(4):
            a("ds_read_b64_tr_b16 %s, v10 offset:%d" % (q2(16 + tl * 4), tl * 32))
            a("ds_read_b64_tr_b16 %s, v10 offset:%d" % (q2(18 + tl * 4), tl * 32 + second))
        for tl in range(4):
            a("s_waitcnt lgkmcnt(%d)" % (6 - 2 * tl))
            a("s_add_u32 s26, s23, %d" % (tl * 18432))
            a("buffer_store_dwordx4 %s, v2, s[40:43], s26 offen%s" % (q4(16 + tl * 4), ST))

    srd(36, 12, 0, 576 * 4608 * 2)
    a("s_sub_u32 s28, s2, %d" % P_W1)
    a("s_lshr_b32 s20, s28, 1")
    a("s_and_b32 s28, s28, 1")
    a("s_mul_i32 s29, s28, 9")
    a("s_add_u32 s29, s29, s3")
    a("s_mul_i32 s22, s29, %d" % (32 * 9216))
    a("s_lshl_b32 s27, s20, 7")
    a("s_add_u32 s22, s22, s27")
    a("v_mul_u32_u24 v9, 9216, v5")
    a("v_add_u32 v9, v9, v6")
    w12(9216, 512)
    srd(32, 14, 0, 4608 * 2)
    a("v_lshlrev_b32 v5, 1, v1")
    a("buffer_load_ushort v40, v5, s[32:35], s27 offen")
    a("v_lshl_add_u32 v10, v3, 3, v7")
    a("v_lshlrev_b32 v10, 7, v10")
    a("v_lshl_add_u32 v10, v8, 3, v10")
    a("v_add_u32 v10, s21, v10")
    a("s_mul_i32 s23, s20, %d" % (4 * 18432))
    a("s_lshl_b32 s26, s29, 10")
    a("s_add_u32 s23, s23, s26")
    a("s_add_u32 s23, s23, %s" % hex(W1P))
    for k in range(4):
        a("v_mov_b32 v%d, 0x3f803f80" % (12 + k))
    a("s_lshl_b32 s26, s3, 8")
    a("s_add_u32 s26, s26, 36864")
    a("v_lshlrev_b32 v11, 4, v3")
    a("v_add_u32 v11, s26, v11")
    a("s_waitcnt vmcnt(0)")
    w12b(512)
    for tl in range(4):
        a("%s %s, %s, v[12:15], 0" % (MF, q4(48 + tl * 4), q4(16 + tl * 4)))
    for tl in range(4):
        a("ds_write_b128 v11, %s offset:%d" % (q4(48 + tl * 4), tl * 64))
    a("s_waitcnt lgkmcnt(0)")
    a("s_barrier")
    a("s_cmp_lg_u32 s3, 0")
    a("s_cbranch_scc1 P_end")
    a("v_lshlrev_b32 v11, 2, v1")
    for w in range(9):
        a("ds_read_b32 v%d, v11 offset:%d" % (48 + w, 36864 + w * 256))
    a("s_waitcnt lgkmcnt(0)")
    for w in range(1, 9):
        a("v_add_f32 v48, v48, v%d" % (48 + w))
    a("v_sub_f32 v48, 0, v48")
    cvt(60, 48, 48)
    a("v_and_b32 v49, 0xffff0000, v60")
    a("v_sub_f32 v49, v48, v49")
    cvt(49, 49, 49)
    a("v_and_b32 v49, 0xffff, v49")
    a("v_lshl_or_b32 v61, v40, 16, v49")
    a("s_lshl_b32 s27, s20, 10")
    a("s_lshl_b32 s28, s28, 3")
    a("s_add_u32 s27, s27, s28")
    a("s_add_u32 s27, s27, %s" % hex(AUG))
    a("buffer_store_dwordx2 v[60:61], v2, s[40:43], s27 offen%s" % ST)
    a("s_branch P_end" if PROF else "s_endpgm")

    a("P_w2:")
    if "now2" in ABL:
        a("s_cmp_ge_u32 s2, %d" % (P_W2 + 32))
        a("s_cbranch_scc1 P_end")
    srd(36, 16, 0, 576 * 4608 * 2)
    a("s_sub_u32 s20, s2, %d" % P_W2)
    if W2D:
        a("s_lshr_b32 s22, s20, 2")
        a("s_mul_i32 s22, s22, 14")
        a("s_add_u32 s20, s20, s22")
        a("s_add_u32 s20, s20, 14")
    a("s_mul_i32 s22, s20, %d" % (32 * 1152))
    a("s_lshl_b32 s23, s3, 7")
    a("s_add_u32 s22, s22, s23")
    a("v_mul_u32_u24 v9, 1152, v5")
    a("v_add_u32 v9, v9, v6")
    w12(1152, 2048)
    a("v_lshl_add_u32 v10, v3, 2, v7")
    a("v_lshlrev_b32 v10, 7, v10")
    a("v_lshl_add_u32 v10, v8, 3, v10")
    a("v_add_u32 v10, s21, v10")
    a("s_mul_i32 s26, s20, 3641")
    a("s_lshr_b32 s26, s26, 16")
    a("s_mul_i32 s27, s26, 18")
    a("s_sub_u32 s27, s20, s27")
    a("s_mul_i32 s23, s26, %d" % (36 * 18432))
    a("s_mul_i32 s26, s3, %d" % (4 * 18432))
    a("s_add_u32 s23, s23, s26")
    a("s_lshl_b32 s27, s27, 10")
    a("s_add_u32 s23, s23, s27")
    a("s_add_u32 s23, s23, %s" % hex(W2P))
    a("s_waitcnt vmcnt(0)")
    w12b(2048)
    a("s_branch P_end" if PROF else "s_endpgm")

    a("P_misc:")
    for k in range(4):
        a("v_mov_b32 v%d, 0" % (16 + k))
    a("v_lshlrev_b32 v5, 4, v0")
    srd(36, 24, CNT, CNTB)
    a("s_mov_b32 s22, %d" % CST)
    a("v_mul_lo_u32 v6, v0, s22")
    a("buffer_store_dwordx4 v[16:19], v6, s[36:39], 0 offen%s" % ST)
    a("s_getpc_b64 s[20:21]")
    a("P_pc:")
    a("s_add_u32 s36, s20, main_kernel-P_pc")
    a("s_addc_u32 s37, s21, 0")
    a("s_mov_b32 s38, L_code_end-main_kernel")
    a("s_mov_b32 s39, 0x20000")
    a("s_mov_b32 s22, 0")
    for k in range(7):
        a("buffer_load_dwordx4 %s, v5, s[36:39], s22 offen" % q4(20 + 4 * k))
        a("s_add_u32 s22, s22, 9216")
    if NUMA:
        a("s_cmp_lg_u32 s3, 8")
        a("s_cbranch_scc1 P_end")
        a("s_add_u32 s20, s24, %s" % hex(CNT))
        a("s_addc_u32 s21, s25, 0")
        a("s_mov_b32 s44, -1")
        a("s_mov_b32 s45, -1")
        for r in range(E("NREP", 4)):
            for k in range(2):
                a("s_mov_b32 s22, 0")
                a("s_memtime s[46:47]")
                a("s_waitcnt lgkmcnt(0)")
                a("s_atomic_add s22, s[20:21], %s glc" % hex(64 + k * 8192))
                a("s_waitcnt lgkmcnt(0)")
                a("s_memtime s[48:49]")
                a("s_waitcnt lgkmcnt(0)")
                a("s_sub_u32 s22, s48, s46")
                a("s_min_u32 s%d, s%d, s22" % (44 + k, 44 + k))
        a("s_getreg_b32 s22, hwreg(HW_REG_XCC_ID)")
        a("s_bfe_u32 s22, s22, 0x10002")
        a("s_cmp_gt_u32 s44, s45")
        a("s_cselect_b32 s23, 1, 0")
        a("s_xor_b32 s22, s22, s23")
        a("s_lshl_b32 s22, s22, 13")
        a("v_mov_b32 v16, s22")
        a("s_mov_b32 s23, %s" % hex(CNT + 287 * CST + 64))
        a("buffer_store_dword v16, off, s[40:43], s23%s" % ST)
    a("P_end:")
    if PROF:
        a("s_waitcnt vmcnt(0)")
        a("s_memrealtime s[58:59]")
        srd(36, 24, STAMP + (1 << 19), 1 << 19)
        a("s_lshl_b32 s60, s2, 4")
        a("s_add_u32 s60, s60, s3")
        a("s_lshl_b32 s60, s60, 3")
        a("s_waitcnt lgkmcnt(0)")
        a("v_mov_b32 v0, s56")
        a("v_mov_b32 v1, s58")
        a("buffer_store_dwordx2 v[0:1], off, s[36:39], s60")
    a("L_exit:")
    a("s_endpgm")


L_SCR, L_OX, L_Y, L_WA, L_WB = 0, 8192, 20480, 112640, 20480
MAIN_LDS = 163840
uid = [0]


def main_kernel():
    entry("main_kernel")
    a("s_cmp_ge_u32 s2, 256")
    a("s_cbranch_scc1 L_exit2")
    a("s_load_dwordx2 s[24:25], s[0:1], %d" % KA_WS)
    a("s_load_dwordx4 s[28:31], s[0:1], %d" % KA_B2)
    a("s_load_dwordx2 s[32:33], s[0:1], %d" % KA_X)
    a("s_load_dwordx2 s[36:37], s[0:1], %d" % KA_W2)
    a("s_mov_b32 s38, %d" % (576 * 4608 * 2))
    a("s_mov_b32 s39, 0x20000")
    a("s_mov_b32 s34, %d" % ACT)
    a("s_mov_b32 s35, 0x20000")
    vm = VM()
    lg = VM("lgkmcnt", 15)
    a("v_lshrrev_b32 v1, 6, v0")
    a("v_readfirstlane_b32 s3, v1")
    a("v_and_b32 v1, 63, v0")
    a("v_lshlrev_b32 v2, 4, v1")
    a("v_lshrrev_b32 v3, 4, v1")
    a("v_and_b32 v4, 15, v1")
    b = MAPB
    spx = 8 // b
    tpx = 32 // spx
    lb = {1: 0, 2: 1, 4: 2, 8: 3}
    a("s_and_b32 s6, s2, 7")
    a("s_lshr_b32 s7, s2, 3")
    a("s_and_b32 s4, s6, %d" % (b - 1))
    a("s_lshl_b32 s4, s4, %d" % lb[spx])
    a("s_and_b32 s8, s7, %d" % (spx - 1))
    a("s_add_u32 s4, s4, s8")
    a("s_lshr_b32 s5, s6, %d" % lb[b])
    a("s_mul_i32 s5, s5, %d" % tpx)
    a("s_lshr_b32 s8, s7, %d" % lb[spx])
    a("s_add_u32 s5, s5, s8")
    a("s_mov_b32 s44, %s" % hex(LB))
    a("s_mov_b32 s45, 0")
    a("s_mov_b32 s46, 8")
    a("s_mov_b32 s27, 1")
    a("s_mov_b32 s97, 1152")
    a("s_mul_i32 s47, s5, %d" % TB)

    KY, KW = 48, 54

    def k1_setup(rot):
        if rot:
            mod_small("s6", "s5", AROT)
            a("s_mul_i32 s6, s6, %d" % (6 // AROT))
        else:
            a("s_mov_b32 s6, 0")
        for G in range(6):
            a("s_mul_i32 s%d, s6, 3072" % (KY + G))
            a("s_add_u32 s%d, s%d, s44" % (KY + G, KY + G))
            a("s_mul_i32 s%d, s6, 10752" % (KW + G))
            if G < 5:
                a("s_add_u32 s6, s6, 1")
                a("s_cmp_eq_u32 s6, 6")
                a("s_cselect_b32 s6, 0, s6")
        a("s_mul_i32 s8, s3, 18432")
        a("s_add_u32 s8, s8, s47")
        a("v_add_u32 v7, s8, v2")
        a("s_min_u32 s9, s3, 2")
        a("s_lshl_b32 s11, s9, 10")
        a("s_add_u32 s8, s47, s11")
        a("s_sub_u32 s8, s8, 18432")
        a("s_cmp_eq_u32 s5, 0")
        a("s_cselect_b32 s8, %s, s8" % hex(OOB))
        a("v_add_u32 v8, s8, v2")
        a("s_add_u32 s11, s11, %d" % L_Y)
        a("s_mul_i32 s10, s3, 18432")
        a("s_add_u32 s10, s10, %d" % (L_Y + 18432))
        a("v_add_u32 v5, %d, v2" % L_Y)
        a("v_add_u32 v6, %d, v2" % (L_Y + 46080))

    def kw_voffs():
        a("s_lshl_b32 s12, s4, 2")
        a("s_add_u32 s12, s12, s3")
        a("s_mul_i32 s12, s12, 64512")
        a("v_add_u32 v9, s12, v2")
        a("v_add_u32 v10, 3072, v9")
        a("v_add_u32 v11, 6144, v9")
        a("s_add_u32 s12, s12, 9216")
        a("v_lshlrev_b32 v12, 28, v4")
        a("v_and_b32 v12, %s, v12" % hex(OOB))
        a("v_lshl_add_u32 v12, v4, 4, v12")
        a("v_lshl_add_u32 v12, v3, 7, v12")
        a("v_add_u32 v12, s12, v12")

    k1_setup(True)
    kw_voffs()
    a("s_waitcnt lgkmcnt(0)")
    srd(40, 24, 0, WS_USED)
    a("s_add_u32 s20, s24, %s" % hex(CNT))
    a("s_addc_u32 s21, s25, 0")
    a("s_lshl_b32 s22, s5, 2")
    a("s_add_u32 s22, s22, s3")
    a("s_mul_i32 s22, s22, %d" % CST)
    if NUMA:
        a("s_load_dword s80, s[20:21], %s" % hex(287 * CST + 64))
    if PROF:
        srd(92, 24, STAMP, 1 << 20)
        a("s_lshl_b32 s96, s2, 2")
        a("s_add_u32 s96, s96, s3")
        a("s_lshl_b32 s96, s96, 8")
    rstamp(12)
    stamp(0)

    def arrive(off="s22", ret=True):
        if ret:
            a("s_mov_b32 s16, 1")
            a("s_atomic_add s16, s[20:21], %s glc" % off)
        else:
            a("s_atomic_add s27, s[20:21], %s" % off)

    def poll(target, offs=("s22",), issued=None):
        uid[0] += 1
        u = uid[0]

        def rd():
            for k, o in enumerate(offs):
                a("s_mov_b32 s%d, 0" % (16 + k))
                a("s_atomic_add s%d, s[20:21], %s glc" % (16 + k, o))
        a("s_mov_b32 s18, %d" % SPIN)
        if issued is None:
            rd()
        lg.all()
        if issued in ("arrive", "arrive2"):
            a("s_add_u32 s16, s16, 1")
        if issued == "arrive2":
            a("s_max_u32 s16, s16, s17")
        a("H%d_l:" % u)
        if len(offs) > 1:
            a("s_min_u32 s16, s16, s17")
        a("s_cmp_ge_u32 s16, %s" % target)
        a("s_cbranch_scc1 H%d_b" % u)
        a("s_sub_u32 s18, s18, 1")
        a("s_cbranch_scc1 H%d_b" % u)
        rd()
        a("s_waitcnt lgkmcnt(0)")
        a("s_branch H%d_l" % u)
        a("H%d_b:" % u)

    def hop(tag, pre_a=(), pre_b=()):
        for f in pre_a:
            f()
        vm.wait(tag)
        lg.all()
        arrive()
        mid = len(pre_b) * E("MIDP", 50) // 100
        for k, f in enumerate(pre_b):
            if k == mid and E("MIDP", 50) < 100:
                a("s_mov_b32 s17, 0")
                a("s_atomic_add s17, s[20:21], s22 glc")
            f()
        poll("s46", issued="arrive2" if E("MIDP", 50) < 100 else "arrive")
        a("s_add_u32 s46, s46, 8")

    QA, KA, VA, CA, YF = 16, 32, 52, 72, 92
    MSK, SM = 132, 136

    def wslot(i, t):
        return ((i % 16) * 4 + t) * 4

    def wload1(i, t, sreg=None):
        def f():
            s = sreg or "s%d" % (KW + i // 3)
            vo, off = (9 + i % 3, t * 1024) if t < 3 else (12, (i % 3) * 512)
            vm.op("buffer_load_dwordx4 %s, v%d, s[40:43], %s offen offset:%d" % (q4(wslot(i, t), "a"), vo, s, off), ("w", i))
        return f

    def ydma1(G, k):
        def f():
            if k < 3:
                a("s_add_u32 m0, s10, %d" % (G * 3072))
                vm.op("buffer_load_dwordx4 v7, s[40:43], s%d offen offset:%d%s lds" % (KY + G, k * 1024, LD), ("y", G))
            else:
                a("s_add_u32 m0, s11, %d" % (G * 3072))
                vm.op("buffer_load_dwordx4 v8, s[40:43], s%d offen%s lds" % (KY + G, LD), ("y", G))
        return f

    def yread1(i, T):
        def f():
            off = (T * 18 + i) * 1024
            base = 5
            if off >= 46080:
                off -= 46080
                base = 6
            a("ds_read_b128 %s, v%d offset:%d" % (q4(YF + (i % 2) * 20 + T * 4), base, off))
        return f

    def wodma(region, n):
        def f():
            a("s_add_u32 m0, s%d, %d" % ((13, 14)[region], (n // 4) * 4096))
            a("s_add_u32 s15, s%d, %d" % ((60, 61)[region], (n // 4) * 4096))
            vm.op("buffer_load_dwordx4 v2, s[40:43], s15 offen offset:%d lds" % ((n % 4) * 1024), "wo")
        return f

    wo_all = [wodma(0, n) for n in range(12)] + [wodma(1, n) for n in range(9)]

    def k2_addr():
        a("s_mul_i32 s62, s3, 18432")
        a("s_add_u32 s62, s62, s47")
        a("s_add_u32 s62, s62, s44")
        a("s_mul_i32 s63, s4, 2304")
        a("s_add_u32 s63, s63, s62")
        a("v_and_b32 v220, 1, v3")
        a("v_lshlrev_b32 v220, 9, v220")
        a("v_lshl_add_u32 v220, v4, 4, v220")
        a("v_lshrrev_b32 v221, 5, v1")
        a("v_lshl_add_u32 v220, v221, 8, v220")
        a("v_mov_b32 v221, %s" % hex(OOB))
        a("v_cmp_eq_u32 vcc, 0, v3")
        a("v_cndmask_b32 v221, v221, v220, vcc")
        a("v_cndmask_b32 v222, 0, -1, vcc")
        a("s_add_u32 s65, s63, %s" % hex(oX1))
        a("s_sub_u32 s64, s63, s44")
        a("s_mul_i32 s6, s4, 144")
        a("s_sub_u32 s7, s62, s44")
        a("s_add_u32 s6, s6, s7")
        a("v_lshrrev_b32 v206, 4, v220")
        a("v_and_b32 v206, 0x30, v206")
        a("v_mad_u32_u24 v206, v4, s97, v206")
        a("s_cmp_eq_u32 s45, 0")
        a("s_cselect_b32 s64, s6, s64")
        a("s_cselect_b32 s6, 64, 1024")
        a("s_cselect_b64 s[8:9], -1, 0")
        a("v_cndmask_b32 v206, v220, v206, s[8:9]")
        a("v_add_u32 v207, s6, v206")
        a("v_add_u32 v223, s6, v207")
        a("v_cndmask_b32 v223, v221, v223, vcc")

    def attn_consts():
        k2_addr()
        a("v_and_b32 v13, 1, v4")
        a("v_cmp_eq_u32 s[70:71], 1, v13")
        a("v_lshl_add_u32 v14, v3, 2, v13")
        a("v_cmp_ge_u32 s[72:73], v4, v14")
        a("v_add_u32 v14, 2, v14")
        a("v_cmp_ge_u32 s[74:75], v4, v14")
        a("v_mov_b32 v13, 0xffff")
        a("v_mov_b32 v14, 0xffff0000")
        a("v_cndmask_b32 v13, v13, v14, s[70:71]")
        a("v_cndmask_b32 v%d, v13, 0, s[72:73]" % (MSK + 0))
        a("v_cndmask_b32 v%d, v13, 0, s[74:75]" % (MSK + 1))
        a("v_cndmask_b32 v%d, 0, v13, s[72:73]" % (MSK + 2))
        a("v_cndmask_b32 v%d, 0, v13, s[74:75]" % (MSK + 3))
        a("s_cmp_eq_u32 s5, 0")
        a("s_cselect_b32 s14, %s, 0" % f32bits(-1e9 * math.sqrt(18.0)))
        for k in range(4):
            a("v_mov_b32 v%d, s14" % (SM + k))
        a("s_lshl_b32 s14, s3, 11")
        a("v_lshlrev_b32 v141, 9, v3")
        a("v_lshl_add_u32 v141, v4, 1, v141")
        a("v_add_u32 v141, s14, v141")
        a("v_and_b32 v142, 1, v4")
        a("v_mul_u32_u24 v142, 160, v142")
        a("v_lshl_add_u32 v142, v3, 3, v142")
        a("s_add_u32 s14, s14, 512")
        a("v_add_u32 v142, s14, v142")
        a("s_lshr_b32 s14, s3, 1")
        a("s_lshl_b32 s14, s14, 10")
        a("s_and_b32 s15, s3, 1")
        a("s_lshl_b32 s15, s15, 3")
        a("s_add_u32 s14, s14, s15")
        a("s_add_u32 s14, s14, %d" % L_OX)
        a("v_add_u32 v143, s14, v2")
        a("s_lshl_b32 s14, s3, 2")
        a("s_add_u32 s14, s14, %d" % (L_OX + 2048))
        a("v_add_u32 v144, s14, v2")
        a("s_mul_i32 s14, s3, 3072")
        a("s_add_u32 s14, s14, %d" % L_OX)
        a("v_add_u32 v145, s14, v2")
        a("s_mul_i32 s60, s4, %d" % WOS)
        a("s_add_u32 s60, s60, %s" % hex(WOP))
        a("s_mul_i32 s14, s3, 9216")
        a("s_add_u32 s61, s60, s14")
        a("s_add_u32 s61, s61, 46080")
        a("s_mul_i32 s14, s3, 18432")
        a("s_add_u32 s14, s14, %d" % L_Y)
        a("s_mul_i32 s13, s3, 12288")
        a("s_add_u32 s60, s60, s13")
        a("s_add_u32 s13, s13, %d" % L_WA)

    def w2addr():
        a("s_lshl_b32 s6, s5, 2")
        a("s_add_u32 s6, s6, s3")
        a("s_mul_i32 s7, s6, 57")
        a("s_lshr_b32 s7, s7, 9")
        a("s_mul_i32 s8, s7, 9")
        a("s_sub_u32 s8, s6, s8")
        a("s_mul_i32 s9, s4, 18")
        a("s_add_u32 s9, s9, s7")
        a("s_mul_i32 s9, s9, %d" % (32 * 1152))
        a("s_lshl_b32 s12, s8, 7")
        a("s_add_u32 s76, s9, s12")
        for n in range(1, 4):
            a("s_add_u32 s%d, s76, %d" % (76 + n, n * 8 * 1152))
        a("s_mul_i32 s12, s4, 9")
        a("s_add_u32 s12, s12, s8")
        a("s_mul_i32 s12, s12, %d" % (4 * 18432))
        a("s_lshl_b32 s7, s7, 10")
        a("s_add_u32 s12, s12, s7")
        a("s_add_u32 s12, s12, %s" % hex(W2P))
        a("s_cmp_lt_u32 s6, 126")
        a("s_cselect_b32 s26, s12, %s" % hex(OOB))
        a("v_lshrrev_b32 v236, 3, v1")
        a("v_and_b32 v237, 7, v1")
        a("v_lshlrev_b32 v237, 4, v237")
        a("v_mad_u32_u24 v236, v236, s97, v237")

    def w2raw(n):
        return lambda: vm.op("buffer_load_dwordx4 %s, v236, s[36:39], s%d offen nt" % (q4(240 + 4 * n, "a"), 76 + n), "w2r")

    def w2pack1():
        if not W2D:
            return
        a("s_cmp_lg_u32 s45, 0")
        a("s_cbranch_scc1 W2_a")
        a("s_mul_i32 s6, s3, 18432")
        a("s_add_u32 s6, s6, %d" % (L_Y + 9216))
        a("v_add_u32 v236, s6, v2")
        for n in range(4):
            a("ds_write_b128 v236, %s offset:%d" % (q4(240 + 4 * n, "a"), n * 1024))
        a("v_bfe_u32 v237, v1, 2, 4")
        a("v_lshlrev_b32 v237, 7, v237")
        a("v_and_b32 v238, 3, v1")
        a("v_lshl_add_u32 v237, v238, 3, v237")
        a("v_add_u32 v237, s6, v237")
        for tl in range(4):
            a("ds_read_b64_tr_b16 %s, v237 offset:%d" % (q2(240 + tl * 4), tl * 32))
            a("ds_read_b64_tr_b16 %s, v237 offset:%d" % (q2(242 + tl * 4), tl * 32 + 2048))
        a("W2_a:")

    def w2pack2():
        if not W2D:
            return
        a("s_cmp_lg_u32 s45, 0")
        a("s_cbranch_scc1 W2_b")
        for tl in range(4):
            a("buffer_store_dwordx4 %s, v2, s[40:43], s26 offen%s" % (q4(240 + tl * 4), ST))
            a("s_add_u32 s26, s26, 18432")
        a("W2_b:")

    def qkv(pre):
        if not pre:
            for k in range(4):
                ydma1(0, k)()
            for t in range(4):
                wload1(0, t)()
            for k in range(4):
                ydma1(1, k)()
            for i in range(1, APRE):
                for t in range(4):
                    wload1(i, t)()
            if TOUCH:
                a("s_getpc_b64 s[36:37]")
                a("M_pc:")
                a("s_mov_b32 s38, L_code_end-M_pc")
                a("s_mov_b32 s39, 0x20000")
                a("s_lshr_b32 s6, s2, 3")
                a("s_lshl_b32 s6, s6, 2")
                a("s_add_u32 s6, s6, s3")
                a("s_lshl_b32 s6, s6, 9")
                a("v_lshlrev_b32 v249, 3, v1")
                vm.op("buffer_load_dword v250, v249, s[36:39], s6 offen", "t")
            attn_consts()
            if W2D:
                w2addr()
            if NUMA:
                a("s_waitcnt lgkmcnt(0)")
                a("s_and_b32 s80, s80, 0x2000")
                a("s_xor_b32 s22, s22, s80")
            ahead_y = 2
        else:
            for i in range(pre):
                vm.ops.append(("w", i))
            for G in range(3):
                for k in range(4):
                    ydma1(G, k)()
            ahead_y = 3
        vm.wait(("y", 0))
        a("s_barrier")
        if E("XP", 0) == 1:
            stamp(13)
        for T in range(5):
            yread1(0, T)()
        wo_list = [wodma(1, n) for n in range(9)] if pre else wo_all[:WOL]
        for i in range(18):
            if i + 1 < 18 and (i + 1) % 3 == 0:
                vm.wait(("y", (i + 1) // 3))
                a("s_barrier")
            a("s_waitcnt lgkmcnt(0)")
            vm.wait(("w", i))
            mem = []
            if i // 3 + ahead_y < 6:
                mem += [ydma1(i // 3 + ahead_y, k) for k in ((0, 3), (1,), (2,))[i % 3]]
            nxt = i + APRE
            if pre:
                nxt = pre + i - 1 if i >= 1 else None
                if nxt is not None and nxt - 16 >= i:
                    nxt = None
            if nxt is not None and nxt < 18:
                mem += [wload1(nxt, t) for t in range(4)]
            if (i >= 11) if pre else (nxt >= 18):
                take = -(-len(wo_list) // (18 - i))
                mem += wo_list[:take]
                wo_list = wo_list[take:]
            rds = [yread1(i + 1, T) for T in range(5)] if i + 1 < 18 else []
            slots = {}
            for k, f in enumerate(mem):
                slots.setdefault(1 + (k * 18) // len(mem), []).append(f)
            for k, f in enumerate(rds):
                slots.setdefault(2 * k, []).append(f)
            m = 0
            for T in range(5):
                y = q4(YF + (i % 2) * 20 + T * 4)
                for t, base in ((1, KA), (2, VA), (3, CA), (0, QA)):
                    if t == 0 and T == 0:
                        continue
                    d = base + (T - 1 if t == 0 else T) * 4
                    w = q4(wslot(i, t), "a")
                    c = "0" if i == 0 else q4(d)
                    A_, B_ = (y, w) if t == 2 else (w, y)
                    a("%s %s, %s, %s, %s" % (MF, q4(d), A_, B_, c))
                    for f in slots.get(m, []):
                        f()
                    m += 1
        assert not wo_list, len(wo_list)

    qkv(0)
    a("s_branch K1_attn")
    a("K1_second:")
    vm.done = -1
    vm.ops = []
    qkv(PF)
    a("K1_attn:")
    vm.ops = []
    vm.done = -1
    stamp(1)
    def wo_group(fs):
        def f():
            uid[0] += 1
            a("s_cmp_lg_u32 s45, 0")
            a("s_cbranch_scc1 W%d" % uid[0])
            n0 = len(vm.ops)
            for g in fs:
                g()
            del vm.ops[n0:]
            a("W%d:" % uid[0])
        return f

    assert WOL == 21
    vm.ops.append("wo")
    side = []
    XR = 208

    def xload(kk):
        def f():
            vm.op("buffer_load_dwordx4 %s, v%d, s[32:35], s64 offen%s" % (q4(XR + 4 * kk), (206, 207, 223)[kk], LD), "x")
        return f

    nop = lambda: None
    side += [xload(k) for k in range(3)] + [nop] * E("W2G", 0) + ([f for n in range(4) for f in (w2raw(n), nop, nop)] if W2D else [])
    cnt = [0]

    def v(text):
        a(text)
        cnt[0] += 1
        if cnt[0] % 4 == 0 and side:
            side.pop(0)()

    QO, KO, VP, X0, V2 = 148, 164, 184, 194, 196
    for T in range(5):
        xd = X0 if T == 0 else QO + (T - 1) * 4 + 2
        v("v_cvt_pk_bf16_f32 v%d, v%d, v%d" % (xd, CA + T * 4, CA + T * 4 + 1))
        a("ds_write_b16 v141, v%d offset:%d" % (xd, T * 32))
        a("ds_write_b16_d16_hi v141, v%d offset:%d" % (xd, T * 32 + 160))
    for T in range(5):
        v("v_cvt_pk_bf16_f32 v%d, v%d, v%d" % (KO + T * 4 + 2, CA + T * 4 + 2, CA + T * 4 + 3))
        v("v_cvt_pk_bf16_f32 v%d, v%d, v%d" % (KO + T * 4, KA + T * 4, KA + T * 4 + 1))
        v("v_cvt_pk_bf16_f32 v%d, v%d, v%d" % (KO + T * 4 + 1, KA + T * 4 + 2, KA + T * 4 + 3))
        v("v_mov_b32 v%d, 0" % (KO + T * 4 + 3))
        if T:
            q = QO + (T - 1) * 4
            v("v_cvt_pk_bf16_f32 v%d, v%d, v%d" % (q, QA + (T - 1) * 4, QA + (T - 1) * 4 + 1))
            v("v_cvt_pk_bf16_f32 v%d, v%d, v%d" % (q + 1, QA + (T - 1) * 4 + 2, QA + (T - 1) * 4 + 3))
            v("v_mov_b32 v%d, 0" % (q + 3))
    for T in range(5):
        a("ds_read_b64 %s, v142 offset:%d" % (q2(V2 + 2 * T), T * 32))
    SP = YF
    Ts = range(1, 5)
    for T in Ts:
        q = q4(QO + (T - 1) * 4)
        sp = SP + (T - 1) * 8
        a("%s %s, %s, %s, %s" % (MF, q4(sp), q4(KO + (T - 1) * 4), q, q4(SM) if T == 1 else "0"))
        a("%s %s, %s, %s, 0" % (MF, q4(sp + 4), q4(KO + T * 4), q))
    for T in range(5):
        v("v_cvt_pk_bf16_f32 v%d, v%d, v%d" % (VP + 2 * T, VA + T * 4, VA + T * 4 + 1))
        v("v_cvt_pk_bf16_f32 v%d, v%d, v%d" % (VP + 2 * T + 1, VA + T * 4 + 2, VA + T * 4 + 3))
    a("s_mov_b32 s19, %s" % f32bits((18.0 ** -0.5) * math.log2(math.e)))
    W = lambda T, k: 16 + (T - 1) * 8 + k
    for T in Ts:
        sp = SP + (T - 1) * 8
        v("v_cndmask_b32 v%d, v%d, v%d, s[70:71]" % (W(T, 2), sp + 4, sp + 5))
        v("v_cndmask_b32 v%d, v%d, v%d, s[70:71]" % (W(T, 3), sp + 0, sp + 1))
        v("v_cndmask_b32 v%d, v%d, v%d, s[70:71]" % (W(T, 4), sp + 6, sp + 7))
        v("v_cndmask_b32 v%d, v%d, v%d, s[70:71]" % (W(T, 5), sp + 2, sp + 3))
        v("v_cndmask_b32 v%d, v%d, v%d, s[72:73]" % (W(T, 0), W(T, 3), W(T, 2)))
        v("v_cndmask_b32 v%d, v%d, v%d, s[74:75]" % (W(T, 1), W(T, 5), W(T, 4)))
        v("v_max_f32 v%d, v%d, v%d" % (W(T, 2), W(T, 0), W(T, 1)))
        v("v_mov_b32 v%d, v%d" % (W(T, 3), W(T, 2)))

    def xlane(op):
        for T in Ts:
            v("v_permlane16_swap_b32 v%d, v%d" % (W(T, 2), W(T, 3)))
        for T in Ts:
            v("%s v%d, v%d, v%d" % (op, W(T, 2), W(T, 2), W(T, 3)))
            v("v_mov_b32 v%d, v%d" % (W(T, 3), W(T, 2)))
        for T in Ts:
            v("v_permlane32_swap_b32 v%d, v%d" % (W(T, 2), W(T, 3)))
        for T in Ts:
            v("%s v%d, v%d, v%d" % (op, W(T, 2), W(T, 2), W(T, 3)))

    xlane("v_max_f32")
    for T in Ts:
        v("v_sub_f32 v%d, v%d, v%d" % (W(T, 0), W(T, 0), W(T, 2)))
        v("v_sub_f32 v%d, v%d, v%d" % (W(T, 1), W(T, 1), W(T, 2)))
        v("v_mul_f32 v%d, s19, v%d" % (W(T, 0), W(T, 0)))
        v("v_mul_f32 v%d, s19, v%d" % (W(T, 1), W(T, 1)))
    for T in Ts:
        v("v_exp_f32 v%d, v%d" % (W(T, 0), W(T, 0)))
        v("v_exp_f32 v%d, v%d" % (W(T, 1), W(T, 1)))
    for T in Ts:
        v("v_add_f32 v%d, v%d, v%d" % (W(T, 2), W(T, 0), W(T, 1)))
        v("v_mov_b32 v%d, v%d" % (W(T, 3), W(T, 2)))
    xlane("v_add_f32")
    for T in Ts:
        v("v_rcp_f32 v%d, v%d" % (W(T, 2), W(T, 2)))
    for T in Ts:
        v("v_mul_f32 v%d, v%d, v%d" % (W(T, 0), W(T, 0), W(T, 2)))
        v("v_mul_f32 v%d, v%d, v%d" % (W(T, 1), W(T, 1), W(T, 2)))
        v("v_cvt_pk_bf16_f32 v%d, v%d, v%d" % (W(T, 0), W(T, 0), W(T, 0)))
        v("v_cvt_pk_bf16_f32 v%d, v%d, v%d" % (W(T, 1), W(T, 1), W(T, 1)))
        v("v_and_b32 v%d, v%d, v%d" % (W(T, 4), W(T, 0), MSK + 0))
        v("v_and_b32 v%d, v%d, v%d" % (W(T, 5), W(T, 1), MSK + 1))
        v("v_and_b32 v%d, v%d, v%d" % (W(T, 6), W(T, 0), MSK + 2))
        v("v_and_b32 v%d, v%d, v%d" % (W(T, 7), W(T, 1), MSK + 3))
    while side:
        side.pop(0)()
    a("s_waitcnt lgkmcnt(0)")
    for T in Ts:
        sp = SP + (T - 1) * 8
        p = q4(W(T, 4))
        a("%s %s, %s, %s, 0" % (MF, q4(sp), q4(VP + 2 * (T - 1)), p))
        a("%s %s, %s, %s, 0" % (MF, q4(sp + 4), q4(V2 + 2 * (T - 1)), p))
    a("s_add_u32 s66, s62, %s" % hex(oO))
    a("s_lshl_b32 s67, s4, 11")
    a("s_add_u32 s67, s67, s66")
    a("s_lshl_b32 s68, s4, 8")
    a("s_add_u32 s68, s68, s66")
    a("s_add_u32 s68, s68, 16384")
    for T in Ts:
        sp = SP + (T - 1) * 8
        o = 48 + (T - 1) * 4
        cvt(o, sp, sp + 1)
        cvt(o + 1, sp + 2, sp + 3)
        cvt(o + 2, sp + 4, sp + 5)
        a("ds_write_b64 v143, %s offset:%d" % (q2(o), (T - 1) * 3072))
        a("ds_write_b32 v144, v%d offset:%d" % (o + 2, (T - 1) * 3072))
    a("s_waitcnt lgkmcnt(0)")
    vm.wait("wo")
    a("s_barrier")
    for st in range(3):
        a("ds_read_b128 %s, v145 offset:%d" % (q4(224 + st * 4), st * 1024))
    for st in range(3):
        a("s_waitcnt lgkmcnt(%d)" % (2 - st))
        if st < 2:
            vm.op("buffer_store_dwordx4 %s, v2, s[40:43], s67 offen offset:%d%s" % (q4(224 + st * 4), st * 1024, STF), "st")
        else:
            vm.op("buffer_store_dwordx4 %s, v221, s[40:43], s68 offen%s" % (q4(232), STF), "st")
    stamp(2)

    WS = 48
    ACC, FIN, AUGW, TMP, KC, AB = 144, 160, 176, 180, 192, 204
    PK = 204

    def ring(q):
        return 16 + (q % NR) * 4

    def m_voffs():
        a("s_mul_i32 s9, s4, 36")
        a("s_add_u32 s9, s9, s3")
        a("s_mul_i32 s11, s9, 18432")
        a("s_add_u32 s11, s11, %s" % hex(W1P))
        a("v_add_u32 v7, s11, v2")
        for k in range(1, 5):
            a("v_add_u32 v%d, %d, v7" % (7 + k, 4096 * k))
        a("s_lshl_b32 s11, s9, 8")
        a("s_add_u32 s11, s11, %s" % hex(AUG))
        a("v_lshl_add_u32 v12, v4, 4, s11")
        if GROT == 1:
            for n in range(9):
                a("s_mov_b32 s%d, %d" % (WS + n, n * 4 * 18432))
        else:
            a("s_and_b32 s12, s5, %d" % (GROT - 1))
            a("s_mul_i32 s12, s12, %d" % (8 // GROT))
            for n in range(8):
                a("s_add_u32 s11, s12, %d" % n)
                a("s_and_b32 s11, s11, 7")
                a("s_mul_i32 s%d, s11, %d" % (WS + n, 4 * 18432))
            a("s_mov_b32 s%d, %d" % (WS + 8, 8 * 4 * 18432))

    W2T, STT = 76, 57
    sst = lambda n: (57 + n) if n < 3 else (85 + n - 3)

    def mload(q):
        def f():
            n, s = divmod(q, 18)
            sr = WS + n if n < 9 else W2T + n - 9
            vm.op("buffer_load_dwordx4 %s, v%d, s[40:43], s%d offen offset:%d%s" % (q4(ring(q)), 7 + s // 4, sr, (s % 4) * 1024, LD if (n >= 9 and W2D and not E("NOSC", 0)) else MLD), ("m", q))
        return f

    LQ0 = 18 * 18 - LPF

    def lpf_dma(k):
        n, s_ = divmod(LQ0 + k, 18)
        a("s_add_u32 m0, s8, %d" % (4096 + k * 1024 - (s_ % 4) * 1024))
        vm.op("buffer_load_dwordx4 v%d, s[40:43], s%d offen offset:%d%s lds" % (7 + s_ // 4, W2T + n - 9, (s_ % 4) * 1024, LD), ("l", k))

    def lpf_read(k):
        vm.wait(("l", k))
        lg.op("ds_read_b128 %s, v221 offset:%d" % (q4(ring(LQ0 + k)), k * 1024), ("lr", k))

    def aload(n):
        vm.op("buffer_load_dwordx4 %s, v12, s[40:43], s%d offen" % (q4(AUGW), 91), ("aug", n))

    def kslot(ks, tl):
        return ((ks % 12) * 5 + tl) * 4

    def kread(ks, tl):
        def f():
            base, off = (13, ks * 4608) if ks < 10 else (14, ((ks - 10) >> 1) * 18432 + ((ks - 10) & 1) * 4608)
            if tl == 4:
                base += 2
            lg.op("ds_read_b128 %s, v%d offset:%d" % (q4(kslot(ks, tl), "a"), base if base != 16 else 6, off + tl * 1024), ("k", ks))
        return f

    def k2_pre():
        a("v_add_u32 v13, %d, v2" % L_WA)
        a("v_add_u32 v14, %d, v2" % L_WB)
        a("v_and_b32 v15, 7, v4")
        a("v_lshlrev_b32 v15, 4, v15")
        a("v_lshl_add_u32 v15, v3, 7, v15")
        a("v_add_u32 v6, %d, v15" % L_WB)
        a("v_add_u32 v15, %d, v15" % L_WA)
        for ks in range(K2PRE):
            for tl in range(5):
                kread(ks, tl)()

    XU = 224
    def x_unpack():
        for k in range(12):
            unpack(XU + 2 * k, XR + k)

    m_voffs()
    HBA, HBB, HCA, HCB = [int(x) for x in os.environ.get("HP", "8,10,6,8").split(",")]
    nb = HBA + HBB
    assert nb <= 18
    PRE = nb + HCA + HCB
    hc = list(range(nb, PRE))
    hca = [q for q in hc if q < 18 or q >= 26][:HCA]
    hcb = [q for q in hc if q not in hca]
    hop("st", pre_a=[mload(q) for q in range(HBA)],
        pre_b=[k2_pre] + [mload(q) for q in range(HBA, nb)] + [x_unpack])
    stamp(3)

    OFR, KAC = 88, 160
    a("v_add_u32 v5, 4096, v2")
    rest = [kread(ks, tl) for ks in range(K2PRE, 12) for tl in range(5)]
    a("s_add_u32 s14, s66, 8192")
    a("s_add_u32 s15, s66, 16384")

    def oload(ks):
        vm.op("buffer_load_dwordx4 %s, v%d, s[40:43], s%d offen offset:%d%s" % (q4(OFR + ks * 4), (2, 5)[(ks % 8) // 4], (66, 14, 15)[ks // 8], (ks % 4) * 1024, LD), ("o", ks))

    OA = E("OA", 10)
    for ks in range(OA):
        oload(ks)
        for f in rest[:3]:
            f()
        rest = rest[3:]
    for f in rest:
        f()
    for ks in range(18):
        vm.wait(("o", ks))
        lg.wait(("k", ks))
        for tl in range(5):
            a("%s %s, %s, %s, %s" % (MF, q4(KAC + tl * 4), q4(kslot(ks, tl), "a"), q4(OFR + ks * 4), "0" if ks == 0 else q4(KAC + tl * 4)))
            if ks < 6:
                kread(ks + 12, tl)()
            if tl in (0, 2) and OA + 2 * ks + tl // 2 < 18:
                oload(OA + 2 * ks + tl // 2)
    if E("XP", 0):
        stamp(14)
    TP, TU = 180, 88
    for tl in range(5):
        cvt(TP + 2 * tl, KAC + 4 * tl, KAC + 4 * tl + 1)
        cvt(TP + 2 * tl + 1, KAC + 4 * tl + 2, KAC + 4 * tl + 3)
    for kk in range(3):
        a("v_permlane16_swap_b32 v%d, v%d" % (TP + 4 * kk, TP + 4 * kk + 2))
        a("v_permlane16_swap_b32 v%d, v%d" % (TP + 4 * kk + 1, TP + 4 * kk + 3))
    for k in range(8, 12):
        a("v_and_b32 v%d, v%d, v222" % (TP + k, TP + k))
    for kk in range(3):
        for k in range(4 * kk, 4 * kk + 4):
            unpack(TU + 2 * k, TP + k)
        for k in range(4 * kk, 4 * kk + 4):
            a("v_pk_add_f32 %s, %s, %s" % (q2(TU + 2 * k), q2(TU + 2 * k), q2(XU + 2 * k)))
        for k in range(4 * kk, 4 * kk + 4):
            cvt(XR + k, TU + 2 * k, TU + 2 * k + 1)
        vm.op("buffer_store_dwordx4 %s, v%d, s[40:43], s65 offen offset:%d%s" % (q4(XR + 4 * kk), 220 if kk < 2 else 221, kk * 1024, STF), "st")
    for k in range(12):
        unpack(TU + 2 * k, XR + k)
    S0 = 112
    a("v_pk_add_f32 %s, %s, %s" % (q2(S0), q2(TU), q2(TU + 2)))
    a("v_pk_add_f32 %s, %s, %s" % (q2(S0 + 2), q2(TU + 4), q2(TU + 6)))
    for k in range(4, 12, 2):
        a("v_pk_add_f32 %s, %s, %s" % (q2(S0), q2(S0), q2(TU + 2 * k)))
        a("v_pk_add_f32 %s, %s, %s" % (q2(S0 + 2), q2(S0 + 2), q2(TU + 2 * k + 2)))
    a("v_pk_add_f32 %s, %s, %s" % (q2(S0), q2(S0), q2(S0 + 2)))
    a("v_add_f32 v%d, v%d, v%d" % (S0, S0, S0 + 1))
    xsum(S0, S0 + 1)
    a("v_mul_f32 v%d, %s, v%d" % (S0 + 4, f32bits(1.0 / 72.0), S0))
    a("v_sub_f32 v%d, 0, v%d" % (S0 + 6, S0 + 4))
    a("v_mov_b32 v%d, v%d" % (S0 + 7, S0 + 6))
    a("v_and_b32 v%d, v%d, v222" % (S0 + 8, S0 + 6))
    a("v_mov_b32 v%d, v%d" % (S0 + 9, S0 + 8))
    for k in range(12):
        a("v_pk_add_f32 %s, %s, %s" % (q2(TU + 2 * k), q2(TU + 2 * k), q2(S0 + 6 if k < 8 else S0 + 8)))
    a("v_pk_mul_f32 %s, %s, %s" % (q2(S0), q2(TU), q2(TU)))
    a("v_pk_mul_f32 %s, %s, %s" % (q2(S0 + 2), q2(TU + 2), q2(TU + 2)))
    for k in range(2, 12):
        r = S0 + 2 * (k % 2)
        a("v_pk_fma_f32 %s, %s, %s, %s" % (q2(r), q2(TU + 2 * k), q2(TU + 2 * k), q2(r)))
    a("v_pk_add_f32 %s, %s, %s" % (q2(S0), q2(S0), q2(S0 + 2)))
    a("v_add_f32 v%d, v%d, v%d" % (S0 + 5, S0, S0 + 1))
    xsum(S0 + 5, S0 + 1)
    a("s_lshl_b32 s15, s5, 12")
    a("s_add_u32 s69, s15, s44")
    a("s_add_u32 s69, s69, %s" % hex(oST))
    a("s_lshl_b32 s15, s4, 9")
    a("s_lshl_b32 s19, s3, 7")
    a("s_add_u32 s15, s15, s19")
    a("s_add_u32 s15, s15, s69")
    a("v_lshrrev_b32 v%d, 1, v221" % (S0 + 1))
    vm.op("buffer_store_dwordx2 %s, v%d, s[40:43], s15 offen%s" % (q2(S0 + 4), S0 + 1, STF), "st")
    stamp(4)

    def m_setup():
        mod_small("s6", "s5", MROT)
        a("s_mul_i32 s6, s6, %d" % (NROT // MROT))
        a("s_mul_i32 s10, s3, %d" % (8 * 18432))
        a("s_add_u32 s10, s10, %s" % hex(W2P - W1P))
        a("s_lshl_b32 s11, s5, 3")
        a("s_add_u32 s11, s11, s4")
        a("s_mul_i32 s11, s11, %d" % TB)
        if PSHARE:
            a("s_add_u32 s11, s11, %s" % hex(PARTB))
        else:
            a("s_add_u32 s11, s11, s44")
            a("s_add_u32 s11, s11, %s" % hex(oPART))
        a("s_mul_i32 s14, s3, 4608")
        a("s_add_u32 s11, s11, s14")
        for n in range(9):
            a("s_mul_i32 s%d, s6, 18432" % (W2T + n))
            a("s_add_u32 s%d, s%d, s10" % (W2T + n, W2T + n))
            a("s_lshl_b32 s%d, s6, 9" % sst(n))
            a("s_add_u32 s%d, s%d, s11" % (sst(n), sst(n)))
            if n < NROT - 1:
                a("s_add_u32 s6, s6, 1")
                a("s_cmp_eq_u32 s6, %d" % NROT)
                a("s_cselect_b32 s6, 0, s6")
            else:
                a("s_mov_b32 s6, %d" % (n + 1))
        a("v_add_u32 v13, 36864, v2")
        a("v_add_u32 v14, %d, v2" % TB)
        a("v_add_u32 v15, %d, v2" % (TB + 36864))
        a("v_and_b32 v5, 1, v3")
        a("v_mul_u32_u24 v5, 18432, v5")
        a("v_lshl_add_u32 v5, v4, 4, v5")
        a("v_lshrrev_b32 v6, 5, v1")
        a("v_lshl_add_u32 v5, v6, 8, v5")
        a("v_add_u32 v6, 36864, v5")
        a("s_lshr_b32 s14, s3, 1")
        a("s_lshl_b32 s14, s14, 10")
        a("s_and_b32 s15, s3, 1")
        a("s_lshl_b32 s15, s15, 3")
        a("s_add_u32 s14, s14, s15")
        a("v_add_u32 v222, s14, v14")
        a("v_add_u32 v223, s14, v15")
        a("v_lshlrev_b32 v220, 3, v1")
        a("s_mul_i32 s8, s3, 18432")
        a("s_add_u32 s14, s8, 4096")
        a("v_add_u32 v221, s14, v2")
        a("s_add_u32 s62, s62, %s" % hex(oX1))
        if GROT == 1:
            a("s_mov_b32 s91, 0")
        else:
            a("s_lshl_b32 s91, s12, 10")
            a("s_lshl_b32 s19, s12, 11")
            a("v_add_u32 v222, s19, v222")
            a("v_add_u32 v223, s19, v223")

    def w2arrive():
        if W2D:
            a("s_add_u32 s23, s4, 256")
            a("s_mul_i32 s23, s23, %d" % CST)
            a("s_cmp_lg_u32 s45, 0")
            a("s_cbranch_scc1 W2_c")
            arrive("s23", ret=False)
            a("W2_c:")

    hop("st", pre_a=[w2pack1] + [mload(q) for q in hca],
        pre_b=[m_setup, lambda: aload(0)] + [mload(q) for q in hcb])
    stamp(5)

    def fr(T, s):
        k = s * 4 + T
        return q4(k * 4, "a") if k < 64 else q4(224 + (k - 64) * 4)

    def xdma(s):
        a("s_add_u32 m0, s8, %d" % (s * 1024))
        a("s_add_u32 s11, s62, %d" % (s * 1024))
        vm.op("buffer_load_dwordx4 v2, s[40:43], s11 offen%s lds" % LD, ("y", XST[s]))

    a("s_barrier")
    XA = E("XA", 14)
    for s in range(XA):
        xdma(s)
        if s == 2:
            for j in range(8):
                vm.op("buffer_load_dwordx2 %s, v220, s[40:43], s69 offen offset:%d%s" % (q2(FIN + 2 * j), j * 512, LD), "stat")
    late = []

    c0 = -2.0 * math.sqrt(2.0 / math.pi) * math.log2(math.e)

    def stat_ops():
        ops = []
        e = lambda t, c=4: ops.append((t, c))
        m = lambda j: FIN + 2 * j
        t0 = TMP
        MEAN, VAR, M1, S1, M2, S2, RS = t0, t0 + 1, t0 + 2, t0 + 3, t0 + 4, t0 + 5, t0 + 6
        ops.append(("WAIT", 0))
        e("v_add_f32 v%d, v%d, v%d" % (MEAN, m(0), m(1)))
        e("v_add_f32 v%d, v%d, v%d" % (VAR, m(0) + 1, m(1) + 1))
        for j in range(2, 8):
            e("v_add_f32 v%d, v%d, v%d" % (MEAN, MEAN, m(j)))
            e("v_add_f32 v%d, v%d, v%d" % (VAR, VAR, m(j) + 1))
        e("v_mul_f32 v%d, %s, v%d" % (MEAN, f32bits(0.125), MEAN))
        e("v_mul_f32 v%d, %s, v%d" % (VAR, f32bits(1.0 / 72.0), VAR))
        for j in range(8):
            e("v_sub_f32 v%d, v%d, v%d" % (m(j), m(j), MEAN))
        for j in range(8):
            e("v_fmac_f32 v%d, v%d, v%d" % (VAR, m(j), m(j)))
        e("v_mul_f32 v%d, %s, v%d" % (VAR, f32bits(0.125), VAR))
        ln_scalars(MEAN, VAR, M1, S1, e)
        e("v_rcp_f32 v%d, v%d" % (RS, S1), 8)
        e("v_sub_f32 v%d, v%d, v%d" % (MEAN, MEAN, M1))
        e("v_mul_f32 v%d, v%d, v%d" % (MEAN, MEAN, RS))
        e("v_mul_f32 v%d, v%d, v%d" % (VAR, VAR, RS))
        e("v_mul_f32 v%d, v%d, v%d" % (VAR, VAR, RS))
        ln_scalars(MEAN, VAR, M2, S2, e)
        MU, R = M1, S1
        e("v_fmac_f32 v%d, v%d, v%d" % (MU, M2, S1))
        e("v_mul_f32 v%d, v%d, v%d" % (R, S1, S2))
        D0, D1, D2, H = t0 + 7, t0 + 8, t0 + 9, t0 + 10
        e("v_cvt_pk_bf16_f32 v%d, v%d, v%d" % (D1, MU, R))
        e("v_lshlrev_b32 v%d, 16, v%d" % (H, D1))
        e("v_sub_f32 v%d, v%d, v%d" % (H, MU, H))
        e("v_cvt_pk_bf16_f32 v%d, v%d, v%d" % (D0, MU, H))
        e("v_and_b32 v%d, 0xffff0000, v%d" % (H, D1))
        e("v_sub_f32 v%d, v%d, v%d" % (H, R, H))
        e("v_cvt_pk_bf16_f32 v%d, v%d, v%d" % (D2, MU, H))
        for T in range(4):
            e("v_cmp_eq_u32 vcc, %d, v3" % T)
            for k, d in enumerate((D0, D1, D0, D2)):
                e("v_cndmask_b32 v%d, 0, v%d, vcc" % (AB + 4 * T + k, d))
        r0, r1, r2, r3 = KC + 8, KC + 9, KC + 10, KC + 11
        e("v_mov_b32 v%d, v%d" % (r0, R))
        e("v_mov_b32 v%d, v%d" % (r2, R))
        e("v_permlane32_swap_b32 v%d, v%d" % (r0, r2))
        e("v_mov_b32 v%d, v%d" % (r1, r0))
        e("v_mov_b32 v%d, v%d" % (r3, r2))
        e("v_permlane16_swap_b32 v%d, v%d" % (r0, r1))
        e("v_permlane16_swap_b32 v%d, v%d" % (r2, r3))
        for T in range(4):
            e("v_rcp_f32 v%d, v%d" % (KC + T, KC + 8 + T), 8)
        for T in range(4):
            e("v_mul_f32 v%d, v%d, v%d" % (KC + 4 + T, KC + T, KC + T))
            e("v_mul_f32 v%d, %s, v%d" % (KC + T, f32bits(c0), KC + T))
            e("v_mul_f32 v%d, v%d, v%d" % (KC + 4 + T, KC + 4 + T, KC + T))
            e("v_mul_f32 v%d, %s, v%d" % (KC + 4 + T, f32bits(0.044715), KC + 4 + T))
        return ops

    def gelu_ops(tl):
        ops = []
        for T in range(4):
            x = [FIN + 4 * T + r for r in range(4)]
            t = [TMP + (T % 2) * 6 + r for r in range(4)]
            pk = TMP + (T % 2) * 6 + 4
            if "nogelu" in ABL:
                ops.append(("v_cvt_pk_bf16_f32 v%d, v%d, v%d" % (pk, x[0], x[1]), 4))
                ops.append(("v_cvt_pk_bf16_f32 v%d, v%d, v%d" % (pk + 1, x[2], x[3]), 4))
                ops.append(("ds_write_b64 v%d, %s offset:%d" % ((222, 223)[T // 2], q2(pk), (T % 2) * 18432 + tl * 2048), 4))
                continue
            for r in range(4):
                ops.append(("v_mul_f32 v%d, v%d, v%d" % (t[r], x[r], x[r]), 4))
            for r in range(4):
                ops.append(("v_fma_f32 v%d, v%d, v%d, v%d" % (t[r], t[r], KC + 4 + T, KC + T), 4))
            for r in range(4):
                ops.append(("v_mul_f32 v%d, v%d, v%d" % (t[r], t[r], x[r]), 4))
            for r in range(4):
                ops.append(("v_exp_f32 v%d, v%d" % (t[r], t[r]), 8))
            for r in range(4):
                ops.append(("v_fma_f32 v%d, v%d, v%d, v%d" % (t[r], t[r], KC + 8 + T, KC + 8 + T), 4))
            for r in range(4):
                ops.append(("v_rcp_f32 v%d, v%d" % (t[r], t[r]), 8))
            for r in range(4):
                ops.append(("v_mul_f32 v%d, v%d, v%d" % (t[r], t[r], x[r]), 4))
            ops.append(("v_cvt_pk_bf16_f32 v%d, v%d, v%d" % (pk, t[0], t[1]), 4))
            ops.append(("v_cvt_pk_bf16_f32 v%d, v%d, v%d" % (pk + 1, t[2], t[3]), 4))
            ops.append(("ds_write_b64 v%d, %s offset:%d" % ((222, 223)[T // 2], q2(pk), (T % 2) * 18432 + (tl * 2048 if GROT == 1 else 0)), 4))
        if GROT > 1 and tl < 8:
            if tl < 7:
                ops.append(("s_add_u32 s6, s19, 2048", 1))
                ops.append(("s_and_b32 s6, s6, 0x3fff", 1))
            else:
                ops.append(("s_mov_b32 s6, 16384", 1))
            ops.append(("s_sub_u32 s7, s6, s19", 1))
            ops.append(("s_mov_b32 s19, s6", 1))
            ops.append(("v_add_u32 v222, s7, v222", 4))
            ops.append(("v_add_u32 v223, s7, v223", 4))
        return ops

    STB = [int(x) for x in os.environ.get("STB", "0,1,2,3,4,5,6,7,8").split(",")]

    def own_setup():
        ops = []
        e = lambda t: ops.append((t, 4))
        e("v_bfe_u32 v216, v1, 3, 2")
        e("s_and_b32 s6, s4, 3")
        e("v_cmp_eq_u32 vcc, s6, v216")
        e("s_cmp_lt_u32 s4, 4")
        e("s_cselect_b64 s[6:7], vcc, 0")
        e("s_cselect_b64 s[10:11], 0, vcc")
        e("v_mov_b32 v216, %s" % hex(OOB >> 1))
        e("v_cndmask_b32 v5, v5, v216, s[6:7]")
        e("v_cndmask_b32 v6, v6, v216, s[10:11]")
        e("v_lshrrev_b32 v216, 5, v1")
        e("v_and_b32 v217, 7, v1")
        e("v_lshlrev_b32 v217, 4, v217")
        e("v_lshl_add_u32 v216, v216, 7, v217")
        e("s_sub_u32 s14, s%d, s%d" % (sst(0), sst(8)))
        e("s_ashr_i32 s14, s14, 1")
        e("s_add_u32 s14, s14, s8")
        e("s_add_u32 s15, s14, %d" % (8192 + 2048))
        e("s_add_u32 s14, s14, %d" % (4096 + 2048))
        e("v_add_u32 v216, s14, v216")
        e("v_mov_b32 v217, s15")
        e("v_cndmask_b32 v220, v217, v216, s[6:7]")
        e("v_cndmask_b32 v221, v217, v216, s[10:11]")
        return ops

    def out_ops(n2):
        ops = own_setup() if (OWN and n2 == 0) else []
        pk = 192 + 8 * (n2 % 3)
        if OWN and n2 > 0:
            ops.append(("s_sub_u32 s14, s%d, s%d" % (sst(n2), sst(n2 - 1)), 1))
            ops.append(("s_ashr_i32 s14, s14, 1", 1))
            ops.append(("v_add_u32 v220, s14, v220", 4))
            ops.append(("v_add_u32 v221, s14, v221", 4))
        for T in range(4):
            ops.append(("v_cvt_pk_bf16_f32 v%d, v%d, v%d" % (pk + 2 * T, FIN + 4 * T, FIN + 4 * T + 1), 4))
            ops.append(("v_cvt_pk_bf16_f32 v%d, v%d, v%d" % (pk + 2 * T + 1, FIN + 4 * T + 2, FIN + 4 * T + 3), 4))
            if T % 2 == 1:
                ops.append(("v_permlane16_swap_b32 v%d, v%d" % (pk + 2 * T - 2, pk + 2 * T), 4))
                ops.append(("v_permlane16_swap_b32 v%d, v%d" % (pk + 2 * T - 1, pk + 2 * T + 1), 4))
        for i in range(9):
            if STB[i] == n2:
                assert n2 - i < 3
                for h in range(2):
                    ops.append(("buffer_store_dwordx4 %s, v%d, s[40:43], s%d offen%s" % (q4(192 + 8 * (i % 3) + 4 * h), (5, 6)[h], sst(i), STF), 4))
        if OWN:
            for h in range(2):
                ops.append(("ds_write_b128 v%d, %s" % (220 + h, q4(pk + 4 * h)), 4))
        return ops

    cur = [0]

    def emit_fill(op):
        if op == "WAIT":
            vm.wait("stat")
        elif op.startswith("ds_"):
            lg.op(op, "hw")
        elif op.startswith("buffer_store"):
            vm.op(op, "st")
            cur[0] += 1
            if cur[0] == 2 * NE1:
                vm.ops[-1] = "st5"
        elif op.startswith("PL"):
            pload(int(op[2:]))
        else:
            if E("E64", 0) and op.split()[0] in ("v_mul_f32", "v_exp_f32", "v_rcp_f32") and "0x" not in op:
                op = op.replace("_f32 ", "_f32_e64 ", 1)
            a(op)

    def act1(T, s, second):
        off = ((T % 2) * 18 + s) * 1024
        base = ((2, 13), (14, 15))[second][T // 2]
        lg.op("ds_read_b128 %s, v%d offset:%d" % (fr(T, s), base, off), ("act", second, s))

    DT, XQ, BQ, SEL, XP = 88, 108, 128, 148, 156
    PR = lambda n: 32 + 4 * n if n < 14 else 16 + 4 * (n - 14)
    order = [(k, st, hf) for k in range(5) for st in range(2) for hf in range(2) if not (k == 4 and st == 1)]

    def r_addr_ops():
        ops = []
        e = lambda t: ops.append((t, 4))
        e("s_lshr_b32 s6, s4, 1")
        e("s_mul_i32 s6, s6, 18432")
        e("s_and_b32 s7, s4, 1")
        e("s_lshl_b32 s7, s7, 7")
        e("s_add_u32 s6, s6, s7")
        e("s_mul_i32 s7, s3, 4608")
        e("s_add_u32 s6, s6, s7")
        e("s_add_u32 s6, s6, s44")
        e("s_lshl_b32 s7, s47, 3")
        e("s_add_u32 s48, s6, s7")
        if PSHARE:
            e("s_sub_u32 s48, s48, s44")
            e("s_add_u32 s48, s48, %s" % hex(PARTB))
        else:
            e("s_add_u32 s48, s48, %s" % hex(oPART))
        e("s_add_u32 s49, s48, %d" % (4 * TB))
        e("s_add_u32 s50, s48, 4096")
        e("s_add_u32 s51, s49, 4096")
        e("s_add_u32 s6, s6, s47")
        e("s_add_u32 s52, s6, %s" % hex(oX1))
        e("s_add_u32 s53, s52, 4096")
        e("s_add_u32 s54, s6, %s" % hex(LS + oXA))
        e("s_add_u32 s55, s6, %s" % hex(LS + oY))
        e("v_and_b32 v176, 7, v1")
        e("v_bfe_u32 v177, v1, 3, 1")
        e("v_lshlrev_b32 v178, 4, v176")
        e("v_lshl_add_u32 v178, v177, 8, v178")
        e("v_mul_u32_u24 v179, %d, v3" % TB)
        e("v_add_u32 v179, v179, v178")
        if OWN:
            e("s_and_b32 s7, s4, 3")
            e("v_cmp_eq_u32 vcc, s7, v3")
            e("s_cmp_lt_u32 s4, 4")
            e("s_cselect_b64 s[10:11], 0, vcc")
            e("s_cselect_b64 vcc, vcc, 0")
            e("v_mov_b32 v218, %s" % hex(OOB))
            e("v_cndmask_b32 v219, v179, v218, s[10:11]")
            e("v_cndmask_b32 v179, v179, v218, vcc")
        e("v_and_b32 v180, 1, v3")
        e("v_lshrrev_b32 v181, 1, v3")
        e("v_lshl_add_u32 v182, v181, 9, v178")
        e("v_lshl_add_u32 v183, v180, 10, v182")
        e("v_lshl_add_u32 v182, v180, 3, v182")
        if OWN:
            e("v_lshlrev_b32 v218, 4, v4")
            e("v_lshl_add_u32 v218, v181, 8, v218")
            e("v_lshl_add_u32 v218, v180, 3, v218")
            e("v_add_u32 v218, s8, v218")
        e("v_lshlrev_b32 v184, 4, v177")
        e("v_lshl_add_u32 v184, v181, 5, v184")
        e("v_mul_u32_u24 v185, 1152, v176")
        e("v_add_u32 v185, v185, v184")
        e("v_lshl_add_u32 v185, v180, 6, v185")
        e("v_lshl_add_u32 v184, v180, 3, v184")
        e("v_mov_b32 v188, %s" % hex(OOB))
        e("v_cmp_eq_u32 vcc, 0, v3")
        e("v_add_u32 v186, 4096, v183")
        e("v_cndmask_b32 v186, v188, v186, vcc")
        e("v_cndmask_b32 v187, v188, v185, vcc")
        e("v_cmp_gt_u32 vcc, 2, v3")
        e("v_cndmask_b32 v188, 0, -1, vcc")
        e("s_lshl_b32 s66, s45, 30")
        e("s_add_u32 s60, s60, s66")
        for G in range(1, 6):
            e("s_add_u32 s%d, s66, %d" % (66 + G, G * 10752))
        return ops

    def r_setup():
        srd(36, 28, 0, 1152)
        a("s_mul_i32 s56, s3, 288")
        for k in range(5):
            vm.op("buffer_load_dwordx2 %s, v182, s[40:43], s%d offen offset:%d%s" % (q2(XP + 2 * k), 52 if k < 4 else 53, (k % 4) * 1024, LD), "rx")
            vm.op("buffer_load_dwordx2 %s, v184, s[36:39], s56 offen offset:%d" % (q2(XP + 10 + 2 * k), k * 64), "rx")
        a("v_and_b32 v189, 1, v4")
        a("v_lshlrev_b32 v189, 4, v189")
        a("v_mov_b32 v190, 0x3f80")
        a("v_lshlrev_b32 v189, v189, v190")
        a("v_lshrrev_b32 v190, 1, v4")
        for k in range(8):
            a("v_cmp_eq_u32 vcc, %d, v190" % k)
            a("v_cndmask_b32 v%d, 0, v189, vcc" % (SEL + k))
        if OWN:
            for k in range(5):
                a("ds_read_b64 %s, v218 offset:%d" % (q2(224 + 2 * k), 4096 + k * 512))
        a("v_lshlrev_b32 v190, 5, v176")
        a("s_lshl_b32 s7, s3, 3")
        a("v_add_u32 v191, s7, v190")


    def pload(n):
        k, st, hf = order[n]
        vm.op("buffer_load_dwordx4 %s, v%d, s[40:43], s%d offen offset:%d%s" % (q4(PR(n)), 219 if (OWN and hf) else 179, 48 + hf + (2 if k == 4 else 0), ((4 * k + 2 * st) * 256) % 4096, LD), ("p", n))

    kpf = [wload1(i, t, "s%d" % (66 + i // 3)) for i in range(PF) for t in range(4)]
    PFT = E("PFT", 9)
    NQ = 18 * 18
    RAMP = E("RAMP", 144)
    sched = {}
    for q in range(PRE, NQ):
        c = max(q - NR, int((q - PRE) * RAMP / (RAMP + NR - PRE)))
        sched.setdefault(c, []).append(q)
    AHEAD = 3
    for n in range(18):
        gemm = 1 if n < 9 else 2
        npos = 19 if gemm == 1 else 18
        if n == 0:
            fill, g0, g1 = stat_ops(), E("SG0", 12), 70
        elif n <= 9:
            fill, g0, g1 = gelu_ops(n - 1), E("GG0", 0), (E("GG1", 74) if n < 9 else 50)
        elif n == 15:
            fill, g0, g1 = out_ops(n - 10) + r_addr_ops(), 8, 68
        else:
            fill, g0, g1 = out_ops(n - 10), 8, E("OG1", 28)
        rd = n in (0, 9)
        if n == 0:
            vm.wait(("y", 0))
            a("s_barrier")
            if E("XP", 0):
                stamp(15)
        if W2D and n == E("W2R", 5):
            a("s_mov_b32 s16, 128")
            a("s_cmp_lg_u32 s45, 0")
            a("s_cbranch_scc1 W2_d")
            a("s_mov_b32 s16, 0")
            a("s_atomic_add s16, s[20:21], s23 glc")
            a("W2_d:")
        if W2D and n == 7:
            poll("128", offs=("s23",), issued="poll")
        if n == 16 and NE1:
            poll("s46", issued="poll")
            a("s_add_u32 s46, s46, 8")
        if n == 17:
            lg.all()
            if SKIP:
                vm.ops += ["u"] * 0
            vm.wait("st")
            arrive(ret=False)
        if n == 1:
            stamp(6)
            if E("ALN", 0):
                a(".p2align 3")
                if E("ALN", 0) == 2:
                    a("s_nop 0")
        if n == 9:
            stamp(7)
            lg.wait("hw")
            a("s_barrier")
        if n == 10:
            stamp(8)
        if E("XT", 0) and n in (E("XT", 0), E("XT", 0) + 1, E("XT", 0) + 2):
            stamp(13 + n - E("XT", 0))
        if rd:
            for s in range(AHEAD):
                for T in range(4):
                    act1(T, s, n == 9)
        SPOS = [int(x) for x in os.environ.get("SPOS", "").split(",") if x]
        SGAP = E("SGAP", 14)
        held = []
        if SPOS and n >= 10:
            held = [f for f in fill if f[0].startswith("buffer_store")]
            fill = [f for f in fill if not f[0].startswith("buffer_store")]
            g0, g1 = (3, 9) if n != 15 else (3, 68)
            if n == 15:
                fill = [(t, 1 if k < 12 else c) for k, (t, c) in enumerate(fill)]
        quiet = lambda m: bool(held or n >= 10) and any(p - E("SPRE", 0) <= m < p + SGAP for p in SPOS)
        total = sum(c for _, c in fill)
        fi = spent = m = 0
        for s in range(npos):
            q = n * 18 + s
            if rd and s < 18:
                sa = s + AHEAD
                if sa < 18:
                    if n == 0 and XST[sa] != XST[sa - 1]:
                        vm.wait(("y", XST[sa]))
                        a("s_barrier")
                    if n == 9 and sa == 16:
                        assert fi == len(fill)
                        lg.wait("hw")
                        a("s_barrier")
                lg.wait(("act", n == 9, s))
            if n == 0 and s == E("W2S", 5):
                w2pack2()
                w2mark = len(vm.ops)
            if W2D and n == 1 and s == E("W2A", 0):
                vm.wait(vm.ops[w2mark])
                lg.all()
                w2arrive()
            if NE1 and n == 10 + NE1 and s == 4:
                vm.wait("st5")
                arrive(ret=False)
            if NE1 and n == 15 and s == 10:
                a("s_mov_b32 s16, 0")
                a("s_atomic_add s16, s[20:21], s22 glc")
            if n == 16 and 7 <= s < 7 + 2 * NE1:
                pload(s - 7)
            if s == 18:
                assert fi == len(fill) or (n > 0 and fi > 3 * len(fill) // 4)
                vm.wait(("aug", n))
            elif s % WSTEP == 0:
                n0 = len(a.ins)
                for k in range(WSTEP):
                    x = q + WSTEP - 1 - k
                    if x >= LQ0:
                        lg.wait(("lr", x - LQ0))
                    else:
                        vm.wait(("m", x))
                if E("E64", 0) and (len(a.ins) - n0) % 2:
                    a("s_nop 0")
            for T in range(4):
                last = s == npos - 1
                d = (FIN if last else ACC) + 4 * T
                c = "0" if s == 0 else q4(ACC + 4 * T)
                if s == 18:
                    a("%s %s, %s, %s, %s" % (MF, q4(d), q4(AUGW), q4(AB + 4 * T), c))
                else:
                    a("%s %s, %s, %s, %s" % (MF, q4(d), q4(ring(q)), fr(T, s), c))
                if rd and s + AHEAD < 18:
                    act1(T, s + AHEAD, n == 9)
                if n == 0 and T in (0, 2) and XA + 2 * s + T // 2 < 18:
                    xdma(XA + 2 * s + T // 2)
                elif T in LSLOT and late and not (n == 0 and XA + 2 * s < 18) and not quiet(m):
                    late.pop(0)()
                if n == 9 and T == 1 and E("LP0", 4) <= s < E("LP0", 4) + LPF:
                    lpf_dma(s - E("LP0", 4))
                if T == 3:
                    if s < 18:
                        for x in sched.get(q, []):
                            if x >= LQ0:
                                lpf_read(x - LQ0)
                            else:
                                late.append(mload(x))
                        if late and not (n == 0 and XA + 2 * s < 18) and not quiet(m):
                            late.pop(0)()
                    if SKIP:
                        grp = []
                        if n == 16 and s in (4, 7, 10, 13):
                            grp = [wodma(0, k) for k in range(s - 4, s - 1)]
                        if n == 17 and s % 2 == 1 and 3 * (s // 2) < PFT:
                            grp = kpf[3 * (s // 2):min(3 * (s // 2) + 3, PFT)]
                        if grp:
                            wo_group(grp)()
                    else:
                        if n == 16 and 4 <= s < 16:
                            wodma(0, s - 4)()
                        if n == 17:
                            for k in range(s * PFT // 18, (s + 1) * PFT // 18):
                                assert k // 4 <= s
                                kpf[k]()
                    if n == 16 and s == 16:
                        kw_voffs()
                    if s == 18 and n < 8:
                        a("s_add_u32 s91, s91, 1024")
                        if GROT > 1:
                            if n < 7:
                                a("s_and_b32 s91, s91, 0x1fff")
                            else:
                                a("s_mov_b32 s91, 8192")
                        aload(n + 1)
                if fill and g0 <= m <= g1:
                    budget = total * (m - g0 + 1) / (g1 - g0 + 1)
                    while fi < len(fill) and spent + fill[fi][1] / 2 <= budget:
                        emit_fill(fill[fi][0])
                        spent += fill[fi][1]
                        fi += 1
                if held and m in SPOS:
                    assert fi >= 12
                    emit_fill(held.pop(0)[0])
                m += 1
        assert fi == len(fill), (n, fi, len(fill))
    for op, _ in out_ops(8):
        emit_fill(op)
    stamp(9)

    def r_unpack():
        vm.wait("rx")
        for k in range(8, 10):
            a("v_and_b32 v%d, v%d, v188" % (XP + k, XP + k))
            a("v_and_b32 v%d, v%d, v188" % (XP + 10 + k, XP + 10 + k))
        for k in range(10):
            unpack(XQ + 2 * k, XP + k)
            unpack(BQ + 2 * k, XP + 10 + k)
        if OWN:
            for k in range(8, 10):
                a("v_and_b32 v%d, v%d, v188" % (224 + k, 224 + k))
            for k in range(10):
                unpack(234 + 2 * k, 224 + k)
            for k in range(10):
                a("v_pk_add_f32 %s, %s, %s" % (q2(BQ + 2 * k), q2(BQ + 2 * k), q2(234 + 2 * k)))


    def pmfma(n):
        k, st, hf = order[n]
        vm.wait(("p", n))
        a("%s %s, %s, %s, %s" % (MF, q4(DT + 4 * k), q4(SEL + 4 * st), q4(PR(n)), q4(BQ + 4 * k) if (st == 0 and hf == 0) else q4(DT + 4 * k)))

    def early():
        a("s_mov_b32 s16, 0")
        a("s_atomic_add s16, s[20:21], s22 glc")
        r_setup()
        poll("s46", issued="poll")
        a("s_add_u32 s46, s46, 8")
        for n in range(2 * NE1, 2 * NE1 + 6):
            pload(n)

    def early2():
        r_unpack()
        for n in range(2 * NE1):
            pmfma(n)

    kpf = kpf[PFT:]
    n2 = E("PFB", 0)
    hop("st", pre_a=[early], pre_b=[lambda n=n: pload(n) for n in range(2 * NE1 + 6, 14)] + [early2] + kpf[:n2])
    kpf = kpf[n2:]
    stamp(10)
    for n in range(14, 18):
        pload(n)
    for n in range(2 * NE1, 18):
        pmfma(n)
    if E("XP", 0) == 2:
        stamp(13)
    n4 = E("PFD", 0)
    for f in kpf[:n4]:
        f()
    kpf = kpf[n4:]
    TK = 192
    for k in range(10):
        cvt(TK + k, DT + 2 * k, DT + 2 * k + 1)
    for k in range(10):
        unpack(DT + 2 * k, TK + k)
    for k in range(10):
        a("v_pk_add_f32 %s, %s, %s" % (q2(DT + 2 * k), q2(DT + 2 * k), q2(XQ + 2 * k)))
    for k in range(10):
        cvt(TK + k, DT + 2 * k, DT + 2 * k + 1)
    for k in range(10):
        unpack(DT + 2 * k, TK + k)
    for kk in range(3):
        a("v_permlane16_swap_b32 v%d, v%d" % (TK + 4 * kk, TK + 4 * kk + 2))
        a("v_permlane16_swap_b32 v%d, v%d" % (TK + 4 * kk + 1, TK + 4 * kk + 3))
    a("s_cmp_eq_u32 s45, 0")
    a("s_cbranch_scc1 R_mid")
    srd(36, 30, 0, ACT)
    a("s_lshl_b32 s6, s5, 3")
    a("s_add_u32 s6, s6, s4")
    a("s_mul_i32 s6, s6, %d" % (8 * 1152))
    a("s_add_u32 s6, s6, s56")
    for kk in range(3):
        a("buffer_store_dwordx4 %s, v%d, s[36:39], s6 offen offset:%d" % (q4(TK + 4 * kk), 185 if kk < 2 else 187, kk * 128))
    stamp(11)
    rstamp(12)
    if os.environ.get("PDBG"):
        a("s_or_b32 s6, s2, s3")
        a("s_cmp_lg_u32 s6, 0")
        a("s_cbranch_scc1 L_exit2")
        a("s_load_dwordx2 s[6:7], s[0:1], %d" % KA_DBG)
        a("s_waitcnt vmcnt(0) lgkmcnt(0)")
        srd(36, 6, 0, 256)
        a("v_lshlrev_b32 v5, 2, v1")
        a("v_mov_b32 v6, %d" % (1 << 19))
        a("buffer_load_dwordx2 v[8:9], v6, s[92:95], 0 offen sc1")
        a("v_mov_b32 v6, %d" % ((1 << 19) + (P_MISC - 1) * 128))
        a("buffer_load_dwordx2 v[10:11], v6, s[92:95], 0 offen sc1")
        a("buffer_load_dword v12, v5, s[92:95], 0 offen offset:64 sc1")
        a("buffer_load_dword v13, off, s[92:95], 0 offset:%d sc1" % (128 + 64 + 44))
        a("s_waitcnt vmcnt(0)")
        a("v_sub_u32 v12, v12, v8")
        a("v_sub_u32 v13, v13, v8")
        a("v_sub_u32 v9, v9, v8")
        a("v_sub_u32 v11, v11, v8")
        a("v_cmp_gt_u32 vcc, 12, v1")
        a("v_mov_b32 v6, %s" % hex(OOB))
        a("v_cndmask_b32 v5, v6, v5, vcc")
        a("buffer_store_dword v12, v5, s[36:39], 0 offen")
        a("buffer_store_dword v13, off, s[36:39], 0 offset:48")
        a("buffer_store_dword v9, off, s[36:39], 0 offset:52")
        a("buffer_store_dword v11, off, s[36:39], 0 offset:56")
    a("L_exit2:")
    a("s_endpgm")
    a("R_mid:")
    for kk in range(3):
        vm.op("buffer_store_dwordx4 %s, v%d, s[40:43], s54 offen offset:%d%s" % (q4(TK + 4 * kk), 183 if kk < 2 else 186, (kk % 2) * 2048, ST), "st")
    S0 = XQ

    a("v_pk_add_f32 %s, %s, %s" % (q2(S0), q2(DT), q2(DT + 2)))
    a("v_pk_add_f32 %s, %s, %s" % (q2(S0 + 2), q2(DT + 4), q2(DT + 6)))
    for k in range(4, 10, 2):
        a("v_pk_add_f32 %s, %s, %s" % (q2(S0), q2(S0), q2(DT + 2 * k)))
        a("v_pk_add_f32 %s, %s, %s" % (q2(S0 + 2), q2(S0 + 2), q2(DT + 2 * k + 2)))
    a("v_pk_add_f32 %s, %s, %s" % (q2(S0), q2(S0), q2(S0 + 2)))
    a("v_add_f32 v%d, v%d, v%d" % (S0, S0, S0 + 1))
    MEAN, VAR, M, SD = S0 + 8, S0 + 9, S0 + 10, S0 + 12
    xsum(S0, S0 + 1, ror8=True)
    a("v_mul_f32 v%d, %s, v%d" % (S0 + 14, f32bits(-1.0 / 144.0), S0))
    a("v_mov_b32 v%d, v%d" % (S0 + 15, S0 + 14))
    a("v_and_b32 v%d, v%d, v188" % (S0 + 16, S0 + 14))
    a("v_mov_b32 v%d, v%d" % (S0 + 17, S0 + 16))
    for k in range(10):
        a("v_pk_add_f32 %s, %s, %s" % (q2(BQ + 2 * k), q2(DT + 2 * k), q2(S0 + 14 if k < 8 else S0 + 16)))
    a("v_pk_mul_f32 %s, %s, %s" % (q2(S0), q2(BQ), q2(BQ)))
    a("v_pk_mul_f32 %s, %s, %s" % (q2(S0 + 2), q2(BQ + 2), q2(BQ + 2)))
    for k in range(2, 10):
        r = S0 + 2 * (k % 2)
        a("v_pk_fma_f32 %s, %s, %s, %s" % (q2(r), q2(BQ + 2 * k), q2(BQ + 2 * k), q2(r)))
    a("v_pk_add_f32 %s, %s, %s" % (q2(S0), q2(S0), q2(S0 + 2)))
    a("v_add_f32 v%d, v%d, v%d" % (S0 + 15, S0, S0 + 1))
    xsum(S0 + 15, S0 + 1, ror8=True)
    a("ds_write_b64 v191, %s" % q2(S0 + 14))
    a("s_waitcnt lgkmcnt(0)")
    a("s_barrier")
    a("ds_read_b128 %s, v190" % q4(S0))
    a("ds_read_b128 %s, v190 offset:16" % q4(S0 + 4))
    a("s_waitcnt lgkmcnt(0)")
    a("v_pk_add_f32 %s, %s, %s" % (q2(MEAN), q2(S0), q2(S0 + 2)))
    a("v_pk_add_f32 %s, %s, %s" % (q2(M), q2(S0 + 4), q2(S0 + 6)))
    a("v_pk_add_f32 %s, %s, %s" % (q2(MEAN), q2(MEAN), q2(M)))
    a("v_mul_f32 v%d, %s, v%d" % (MEAN, f32bits(-0.25), MEAN))
    a("v_mul_f32 v%d, %s, v%d" % (VAR, f32bits(1.0 / 144.0), VAR))
    for k in range(4):
        a("v_add_f32 v%d, v%d, v%d" % (S0 + 2 * k, S0 + 2 * k, MEAN))
    for k in range(4):
        a("v_fmac_f32 v%d, v%d, v%d" % (VAR, S0 + 2 * k, S0 + 2 * k))
    a("v_mul_f32 v%d, %s, v%d" % (VAR, f32bits(0.25), VAR))
    ln_scalars(MEAN, VAR, M, SD)
    a("v_rcp_f32 v%d, v%d" % (SD, SD))
    a("v_sub_f32 v%d, 0, v%d" % (M, M))
    a("v_mov_b32 v%d, v%d" % (M + 1, M))
    a("v_mov_b32 v%d, v%d" % (SD + 1, SD))
    for k in range(10):
        a("v_pk_add_f32 %s, %s, %s" % (q2(DT + 2 * k), q2(DT + 2 * k), q2(M)))
    TY = 204
    for k in range(10):
        cvt(TY + k, DT + 2 * k, DT + 2 * k + 1)
    for k in range(10):
        unpack(DT + 2 * k, TY + k)
    for k in range(10):
        a("v_pk_mul_f32 %s, %s, %s" % (q2(DT + 2 * k), q2(DT + 2 * k), q2(SD)))
    for k in range(10):
        cvt(TY + k, DT + 2 * k, DT + 2 * k + 1)
    for kk in range(3):
        a("v_permlane16_swap_b32 v%d, v%d" % (TY + 4 * kk, TY + 4 * kk + 2))
        a("v_permlane16_swap_b32 v%d, v%d" % (TY + 4 * kk + 1, TY + 4 * kk + 3))
    for kk in range(3):
        vm.op("buffer_store_dwordx4 %s, v%d, s[40:43], s55 offen offset:%d%s" % (q4(TY + 4 * kk), 183 if kk < 2 else 186, (kk % 2) * 2048, ST), "st")
    stamp(11)

    def next_layer():
        a("s_add_u32 s44, s44, %s" % hex(LS))
        a("s_mov_b32 s45, 1")
        a("s_add_u32 s32, s24, %s" % hex(LB + LS + oXA))
        a("s_addc_u32 s33, s25, 0")
        k1_setup(False)
        attn_consts()
        for n in range(4):
            a("s_mov_b32 s%d, %s" % (76 + n, hex(OOB)))
        a("v_mov_b32 v236, 0")

    a("s_lshr_b32 s6, s4, 1")
    a("s_lshl_b32 s7, s5, 2")
    a("s_add_u32 s6, s6, s7")
    a("s_mul_i32 s6, s6, %d" % CST)
    a("s_add_u32 s19, s6, %d" % (128 * CST))
    a("s_add_u32 s23, s22, %d" % (128 * CST))
    a("s_max_u32 s7, s7, 1")
    a("s_mul_i32 s7, s7, %d" % CST)
    a("s_add_u32 s26, s7, %d" % (127 * CST))
    if NUMA:
        a("s_lshl_b32 s7, s5, 9")
        a("s_xor_b32 s7, s7, s22")
        a("s_and_b32 s7, s7, 0x2000")
        a("s_xor_b32 s19, s19, s7")
        a("s_xor_b32 s26, s26, s7")
    for f in kpf[:10]:
        f()
    vm.wait("st")
    arrive("s19", ret=False)
    for f in kpf[10:]:
        f()
    if E("MIDP", 50) < 100:
        for k, o in enumerate(("s23", "s26")):
            a("s_mov_b32 s%d, 0" % (16 + k))
            a("s_atomic_add s%d, s[20:21], %s glc" % (16 + k, o))
        next_layer()
        poll("8", offs=("s23", "s26"), issued="poll")
    else:
        next_layer()
        poll("8", offs=("s23", "s26"))
    if PROF:
        a("s_add_u32 s96, s96, 128")
    stamp(0)
    a("s_branch K1_second")
    a("L_code_end:")
    a("s_endpgm")


def descriptor(label, vgpr, accum, sgpr):
    return """.amdhsa_kernel %s
  .amdhsa_next_free_vgpr %d
  .amdhsa_next_free_sgpr %d
  .amdhsa_accum_offset %d
  .amdhsa_group_segment_fixed_size 0
  .amdhsa_kernarg_size 88
  .amdhsa_user_sgpr_count 2
  .amdhsa_user_sgpr_kernarg_segment_ptr 1
  .amdhsa_system_sgpr_workgroup_id_x 1
.end_amdhsa_kernel
""" % (label, vgpr, sgpr, accum)


def build():
    launches = [
        ("p_kernel", P_END, 576, 36864 + 2304, 64, 64, 64),
        ("main_kernel", 256, 256, MAIN_LDS, 512, 256, 102),
    ]
    p_kernel()
    main_kernel()
    for e in a.check_branch_seams():
        print("WARN", e, file=sys.stderr)
    head = "; generated by work/gen2.py (hand-written generator)\n"
    for l, g, b, lds, _, _, _ in launches:
        head += "; @launch kernel=%s grid=(%d,1,1) block=(%d,1,1) lds=%d\n" % (l, g, b, lds)
    head += '.amdgcn_target "amdgcn-amd-amdhsa--gfx950"\n.text\n'
    tail = '.section .rodata,"a"\n'
    for l, g, b, lds, v, ac, sg in launches:
        tail += ".p2align 6\n" + descriptor(l, v, ac, sg)
    return head + a.text() + tail


if __name__ == "__main__":
    out = sys.argv[1] if len(sys.argv) > 1 else "cdna_kernels/%s.s" % NAME
    open(out, "w").write(build())
    print("wrote", out)
```

```python
import sys, math, os
from asmlib import Asm, f32bits

NAME = "interleave_layers__sliding_local_dilated__mixer_channel_mlp__prompt"
ACT = 2048 * 576 * 2
TB = 73728
WOS = 82944
WQKVP = 0
WOP = WQKVP + 2304 * 1024
W1P = WOP + 672 * 1024
W2P = W1P + 5184 * 1024
AUG = W2P + 5184 * 1024
CNT = (AUG + 72 * 1024 + 16383) // 16384 * 16384
CST = int(os.environ.get('CST', '128'))
CNTB = (288 * CST + 4095) // 4096 * 4096
LB = CNT + CNTB
oY, oO, oXA, oX1 = 0, ACT, 2 * ACT, 3 * ACT
oST = 4 * ACT
PSHARE = int(os.environ.get("PSHARE", "0"))
oPART = 4 * ACT + 128 * 1024
LS = oPART + (0 if PSHARE else 8 * ACT)
WS_USED = LB + 2 * LS + (8 * ACT if PSHARE else 0)
PARTB = LB + 2 * LS
WS_BYTES = 268435456
OOB = 0x80000000
ST = " sc1"
LD = " sc1"
STAMP = 200 * 1024 * 1024

E = lambda n, d: int(os.environ.get(n, str(d)))
PROF = os.environ.get("PROF", "")
MAPB = E("MAPB", 2)
MROT = E("MROT", 3)
AROT = E("AROT", 2)
APRE = E("APRE", 3)
PF = E("PF", 9)
K2PRE = E("K2PRE", 6)
TOUCH = E("TOUCH", 0)
NE1 = E("NE1", 0)
NROT = NE1 if NE1 else 7
PNT = os.environ.get("PNT", " nt").replace("_", " ")
PV = E("PV", 72)
ABL = os.environ.get("ABL", "")
XST = {0: [s // 6 for s in range(18)], 1: [0] * 3 + [1] * 5 + [2] * 5 + [3] * 5}[E("XS", 1)]
STF = "" if E("FAST", 0) else ST
WSTEP = E("WSTEP", 2)
WOL = 21
W2D = E("W2D", 1)
MLD = os.environ.get("MLD", "").replace("_", " ")
GROT = E("GROT", 1)
NUMA = E("NUMA", 0)
LPF = E("LPF", 0)
SKIP = E("SKIP", 0)
LSLOT = {1: (1,), 3: (0, 1, 2)}[E("LSL", 1)]
OWN = E("OWN", 1)
MST = E("MST", 1)
NR = 32
SPIN = 1 << 18

KA_X, KA_WQKV, KA_WO, KA_BX, KA_W1, KA_B1, KA_W2, KA_B2, KA_OUT, KA_DBG, KA_WS = [8 * i for i in range(11)]
a = Asm()
MF = "v_mfma_f32_16x16x32_bf16"
q4 = lambda b, k="v": "%s[%d:%d]" % (k, b, b + 3)
q2 = lambda b: "v[%d:%d]" % (b, b + 1)


def srd(d, base, off, nbytes):
    if off == 0:
        a("s_mov_b32 s%d, s%d" % (d, base))
        a("s_mov_b32 s%d, s%d" % (d + 1, base + 1))
    else:
        a("s_add_u32 s%d, s%d, %s" % (d, base, off if isinstance(off, str) else hex(off)))
        a("s_addc_u32 s%d, s%d, 0" % (d + 1, base + 1))
    a("s_mov_b32 s%d, %s" % (d + 2, hex(nbytes)))
    a("s_mov_b32 s%d, 0x20000" % (d + 3))


def entry(label):
    a(".p2align 8")
    a(".globl %s" % label)
    a(".type %s,@function" % label)
    a("%s:" % label)


class VM:
    def __init__(self, cnt="vmcnt", maxn=63):
        self.ops, self.cnt, self.maxn, self.done = [], cnt, maxn, -1

    def op(self, text, tag):
        a(text)
        self.ops.append(tag)

    def wait(self, tag):
        last = max(i for i, t in enumerate(self.ops) if t == tag)
        if last <= self.done:
            return
        n = min(len(self.ops) - 1 - last, self.maxn)
        self.done = len(self.ops) - 1 - n
        a("s_waitcnt %s(%d)" % (self.cnt, n))

    def all(self):
        self.done = len(self.ops) - 1
        a("s_waitcnt %s(0)" % self.cnt)


def stamp(k):
    if PROF:
        a("s_memtime s[98:99]")
        a("s_memrealtime s[100:101]")
        a("s_waitcnt lgkmcnt(0)")
        a("v_mov_b32 v0, s98")
        a("buffer_store_dword v0, off, s[92:95], s96 offset:%d" % (4 * k))
        a("v_mov_b32 v0, s100")
        a("buffer_store_dword v0, off, s[92:95], s96 offset:%d" % (4 * k + 64))


def rstamp(k):
    if PROF:
        a("s_memrealtime s[98:99]")
        a("s_waitcnt lgkmcnt(0)")
        a("v_mov_b32 v0, s98")
        a("buffer_store_dword v0, off, s[92:95], s96 offset:%d" % (4 * k))


def unpack(dst, src):
    a("v_lshlrev_b32 v%d, 16, v%d" % (dst, src))
    a("v_and_b32 v%d, 0xffff0000, v%d" % (dst + 1, src))


def cvt(d, x, y):
    a("v_cvt_pk_bf16_f32 v%d, v%d, v%d" % (d, x, y))


def round1(r):
    cvt(r, r, r)
    a("v_and_b32 v%d, 0xffff0000, v%d" % (r, r))


def ln_scalars(mean, var, M, SD, emit=None):
    e = emit or a
    e("v_cvt_pk_bf16_f32 v%d, v%d, v%d" % (M, var, mean))
    e("v_lshlrev_b32 v%d, 16, v%d" % (SD, M))
    e("v_and_b32 v%d, 0xffff0000, v%d" % (M, M))
    e("v_add_f32 v%d, %s, v%d" % (SD, f32bits(1e-5), SD))
    e("v_cvt_pk_bf16_f32 v%d, v%d, v%d" % (SD, SD, SD))
    e("v_and_b32 v%d, 0xffff0000, v%d" % (SD, SD))
    e("v_sqrt_f32 v%d, v%d" % (SD, SD))
    e("v_cvt_pk_bf16_f32 v%d, v%d, v%d" % (SD, SD, SD))
    e("v_and_b32 v%d, 0xffff0000, v%d" % (SD, SD))


def xsum(r, t, rows16=True, rows32=True, ror8=False):
    if ror8:
        a("v_add_f32_dpp v%d, v%d, v%d row_ror:8 row_mask:0xf bank_mask:0xf" % (r, r, r))
    a("v_mov_b32 v%d, v%d" % (t, r))
    a("v_permlane16_swap_b32 v%d, v%d" % (r, t))
    a("v_add_f32 v%d, v%d, v%d" % (r, r, t))
    a("v_mov_b32 v%d, v%d" % (t, r))
    a("v_permlane32_swap_b32 v%d, v%d" % (r, t))
    a("v_add_f32 v%d, v%d, v%d" % (r, r, t))


def mod_small(dst, src, n):
    if n == 1:
        a("s_mov_b32 %s, 0" % dst)
        return
    m = -(-4096 // n)
    assert all((t * m) >> 12 == t // n for t in range(32))
    a("s_mul_i32 %s, %s, %d" % (dst, src, m))
    a("s_lshr_b32 %s, %s, 12" % (dst, dst))
    a("s_mul_i32 %s, %s, %d" % (dst, dst, n))
    a("s_sub_u32 %s, %s, %s" % (dst, src, dst))


P_LN, P_QKV, P_W1, P_W2 = 0, 256, 328, 472
P_MISC = P_W2 + (32 if W2D else 144)
P_END = P_MISC + 1


def p_kernel():
    entry("p_kernel")
    a("s_cmp_ge_u32 s2, %d" % P_END)
    a("s_cbranch_scc1 L_exit")
    if PROF:
        a("s_memrealtime s[56:57]")
    a("s_sub_u32 s2, s2, 1")
    a("s_cselect_b32 s2, %d, s2" % P_MISC)
    if E("PORD", 0):
        a("s_add_u32 s20, s2, 328")
        a("s_sub_u32 s21, s2, 144")
        a("s_cmp_lt_u32 s2, 144")
        a("s_cselect_b32 s20, s20, s21")
        a("s_cmp_lt_u32 s2, 472")
        a("s_cselect_b32 s2, s20, s2")
    a("s_load_dwordx16 s[4:19], s[0:1], 0")
    a("s_load_dwordx2 s[24:25], s[0:1], %d" % KA_WS)
    a("v_lshrrev_b32 v1, 6, v0")
    a("v_readfirstlane_b32 s3, v1")
    a("v_and_b32 v1, 63, v0")
    a("v_lshlrev_b32 v2, 4, v1")
    a("v_lshrrev_b32 v3, 4, v1")
    a("v_and_b32 v4, 15, v1")
    a("v_lshlrev_b32 v5, 4, v0")
    a("s_waitcnt lgkmcnt(0)")
    srd(40, 24, 0, WS_USED)
    if E("PTOUCH", 16):
        a("s_cmp_ge_u32 s2, 32")
        a("s_cbranch_scc1 P_nt")
        a("s_lshr_b32 s20, s2, 3")
        a("s_mul_i32 s20, s20, 576")
        a("v_add_u32 v62, s20, v0")
        a("v_min_u32 v62, %d, v62" % ((1 << (31 - E("PTOUCH", 16))) - 1))
        a("v_lshlrev_b32 v62, %d, v62" % E("PTOUCH", 16))
        a("buffer_load_dword v63, v62, s[40:43], 0 offen")
        a("P_nt:")
    a("s_cmp_lt_u32 s2, %d" % P_QKV)
    a("s_cbranch_scc1 P_ln")
    a("s_cmp_ge_u32 s2, %d" % P_MISC)
    a("s_cbranch_scc1 P_misc")
    a("s_cmp_ge_u32 s2, %d" % P_W1)
    a("s_cbranch_scc1 P_w12")
    a("s_sub_u32 s29, s2, %d" % P_QKV)
    srd(36, 6, 0, 576 * 1728 * 2)
    a("s_mul_i32 s20, s29, %d" % (8 * 3456))
    a("s_lshl_b32 s21, s3, 10")
    for n in range(3):
        a("s_add_u32 m0, s21, %d" % (n * 9216))
        a("s_add_u32 s22, s20, %d" % (n * 9216))
        a("buffer_load_dwordx4 v5, s[36:39], s22 offen" + PNT + " lds")
    srd(32, 8, 0, 576 * 576 * 2)
    a("s_mov_b32 s20, s29")
    a("s_lshr_b32 s21, s20, 2")
    a("s_and_b32 s22, s20, 3")
    a("v_mul_u32_u24 v6, 911, v0")
    a("v_lshrrev_b32 v6, 16, v6")
    a("v_mul_u32_u24 v7, 72, v6")
    a("v_sub_u32 v7, v0, v7")
    a("s_cmp_ge_u32 s21, 16")
    a("s_cbranch_scc1 P_wo_tail")
    a("s_mul_i32 s23, s21, 36")
    a("s_lshl_b32 s26, s22, 2")
    a("s_add_u32 s23, s23, s26")
    a("v_lshrrev_b32 v8, 2, v6")
    a("v_and_b32 v9, 3, v6")
    a("s_branch P_wo_go")
    a("P_wo_tail:")
    a("s_sub_u32 s23, s20, 64")
    a("s_mul_i32 s23, s23, 72")
    a("s_add_u32 s23, s23, 16")
    a("v_lshrrev_b32 v8, 1, v6")
    a("v_and_b32 v9, 1, v6")
    a("P_wo_go:")
    a("v_mul_u32_u24 v8, 18, v8")
    a("v_add_u32 v8, v8, v9")
    a("v_mul_u32_u24 v8, 1152, v8")
    a("v_lshl_add_u32 v8, v7, 4, v8")
    a("s_mul_i32 s23, s23, 1152")
    a("s_lshl_b32 s26, s3, 10")
    a("s_add_u32 m0, s26, 27648")
    a("buffer_load_dwordx4 v8, s[32:35], s23 offen" + PNT + " lds")
    a("s_mul_i32 s27, s21, 4608")
    a("s_add_u32 s27, s27, %s" % hex(WOP))
    a("v_lshrrev_b32 v8, 4, v7")
    a("v_lshlrev_b32 v8, 10, v8")
    a("v_and_b32 v9, 15, v7")
    a("v_lshl_add_u32 v8, v9, 4, v8")
    a("s_lshl_b32 s26, s22, 7")
    a("v_mov_b32 v10, s26")
    a("v_lshlrev_b32 v11, 1, v10")
    a("v_cmp_gt_u32 vcc, 64, v7")
    a("v_cndmask_b32 v10, v10, v11, vcc")
    a("v_add_u32 v8, v8, v10")
    a("s_mov_b32 s26, %d" % WOS)
    a("v_mad_u32_u24 v3, v6, s26, v8")
    a("v_lshlrev_b32 v4, 1, v0")
    a("s_lshr_b32 s22, s29, 2")
    a("s_mul_i32 s54, s22, 43")
    a("s_lshr_b32 s54, s54, 7")
    a("s_mul_i32 s55, s54, 3")
    a("s_sub_u32 s55, s22, s55")
    a("s_mul_i32 s22, s54, 10752")
    a("s_and_b32 s23, s29, 3")
    a("s_mul_i32 s54, s55, 3072")
    a("s_lshl_b32 s28, s23, 8")
    a("s_add_u32 s54, s54, s28")
    a("s_lshl_b32 s55, s55, 9")
    a("s_lshl_b32 s28, s23, 7")
    a("s_add_u32 s55, s55, s28")
    a("s_add_u32 s55, s55, %d" % (9216 - 3072))
    a("v_mov_b32 v15, %s" % hex(OOB))
    for n in range(4):
        u, src, dst = 6, 48 + n, 52 + n
        a("v_add_u32 v6, %d, v0" % (n * 576))
        a("v_lshrrev_b32 v7, 6, v6")
        a("v_bfe_u32 v8, v6, 4, 2")
        a("v_and_b32 v9, 15, v6")
        a("v_mul_u32_u24 v10, 36, v7")
        a("v_mul_u32_u24 v11, 1152, v8")
        a("v_lshl_add_u32 v11, v9, 1, v11")
        a("v_lshrrev_b32 v12, 1, v9")
        a("v_mul_u32_u24 v12, 1152, v12")
        a("v_and_b32 v13, 1, v9")
        a("v_lshl_add_u32 v12, v13, 1, v12")
        a("v_add_u32 v12, 32, v12")
        a("v_cmp_eq_u32 vcc, 3, v8")
        a("v_cndmask_b32 v11, v11, v12, vcc")
        a("v_cmp_lt_u32 s[44:45], 5, v9")
        a("s_and_b64 s[%d:%d], vcc, s[44:45]" % (46 + 2 * n, 47 + 2 * n))
        a("v_cndmask_b32 v11, v11, 0, s[%d:%d]" % (46 + 2 * n, 47 + 2 * n))
        a("v_add_u32 v%d, v10, v11" % src)
        a("v_mul_u32_u24 v7, 64512, v7")
        a("v_lshl_add_u32 v7, v8, 10, v7")
        a("v_lshl_add_u32 v7, v9, 4, v7")
        a("v_mov_b32 v12, s54")
        a("v_mov_b32 v13, s55")
        a("v_cndmask_b32 v12, v12, v13, vcc")
        a("v_add_u32 v%d, v7, v12" % dst)
        a("v_cmp_lt_u32 s[44:45], 7, v9")
        a("s_and_b64 s[44:45], vcc, s[44:45]")
        a("v_cndmask_b32 v%d, v%d, v15, s[44:45]" % (dst, dst))
        if n == 3:
            a("v_cmp_gt_u32 vcc, 2048, v6")
            a("v_cndmask_b32 v%d, v15, v%d, vcc" % (dst, dst))
            a("v_cndmask_b32 v%d, 0, v%d, vcc" % (src, src))
    a("s_waitcnt vmcnt(0)")
    a("s_barrier")
    for n in range(4):
        for j in range(8):
            a("ds_read_u16 v%d, v%d offset:%d" % (16 + n * 8 + j, 48 + n, j * 3456))
        if n % 2 == 1:
            a("s_waitcnt lgkmcnt(0)")
            for m in (n - 1, n):
                for k in range(4):
                    a("v_lshl_or_b32 v%d, v%d, 16, v%d" % (16 + m * 8 + k, 16 + m * 8 + 2 * k + 1, 16 + m * 8 + 2 * k))
                    a("v_cndmask_b32 v%d, v%d, 0, s[%d:%d]" % (16 + m * 8 + k, 16 + m * 8 + k, 46 + 2 * m, 47 + 2 * m))
                a("buffer_store_dwordx4 %s, v%d, s[40:43], s22 offen%s" % (q4(16 + m * 8), 52 + m, ST))
    for j in range(8):
        a("ds_read_u16 v%d, v4 offset:%d" % (56 + j, 27648 + j * 1152))
    a("s_waitcnt lgkmcnt(0)")
    for k in range(4):
        a("v_lshl_or_b32 v%d, v%d, 16, v%d" % (56 + k, 56 + 2 * k + 1, 56 + 2 * k))
    a("buffer_store_dwordx4 v[56:59], v3, s[40:43], s27 offen%s" % ST)
    a("s_branch P_end" if PROF else "s_endpgm")

    a("P_ln:")
    srd(36, 4, 0, ACT)
    a("s_sub_u32 s20, s2, %d" % P_LN)
    a("v_lshrrev_b32 v1, 3, v0")
    a("v_and_b32 v7, 7, v0")
    a("v_lshlrev_b32 v8, 4, v1")
    a("v_mul_u32_u24 v9, 1152, v7")
    a("v_add_u32 v9, v9, v8")
    a("s_mul_i32 s21, s20, %d" % (8 * 1152))
    a("buffer_load_dwordx4 v[16:19], v9, s[36:39], s21 offen" + (PNT if E("XNT", 0) else ""))
    a("v_lshlrev_b32 v3, 8, v1")
    a("v_lshl_add_u32 v3, v7, 4, v3")
    a("s_lshr_b32 s22, s20, 1")
    a("s_mul_i32 s22, s22, 18432")
    a("s_and_b32 s23, s20, 1")
    a("s_lshl_b32 s23, s23, 7")
    a("s_add_u32 s22, s22, s23")
    a("s_add_u32 s22, s22, %s" % hex(LB + oY))
    a("v_mul_u32_u24 v11, 48, v7")
    a("v_lshrrev_b32 v12, 6, v0")
    a("v_lshl_add_u32 v12, v12, 2, v11")
    AC, T, P = 24, 32, 48
    a("s_waitcnt vmcnt(0)")
    for k in range(4):
        unpack(AC + 2 * k, 16 + k)

    def reduce9(s, ldsoff, out):
        xsum(s, s + 1, ror8=True)
        a("ds_write_b32 v12, v%d offset:%d" % (s, ldsoff))
        a("s_waitcnt lgkmcnt(0)")
        a("s_barrier")
        a("ds_read_b128 %s, v11 offset:%d" % (q4(P), ldsoff))
        a("ds_read_b128 %s, v11 offset:%d" % (q4(P + 4), ldsoff + 16))
        a("ds_read_b32 v%d, v11 offset:%d" % (P + 8, ldsoff + 32))
        a("s_waitcnt lgkmcnt(0)")
        a("v_pk_add_f32 %s, %s, %s" % (q2(P), q2(P), q2(P + 2)))
        a("v_pk_add_f32 %s, %s, %s" % (q2(P + 4), q2(P + 4), q2(P + 6)))
        a("v_pk_add_f32 %s, %s, %s" % (q2(P), q2(P), q2(P + 4)))
        a("v_add_f32 v%d, v%d, v%d" % (P, P, P + 1))
        a("v_add_f32 v%d, v%d, v%d" % (P, P, P + 8))
        a("v_mul_f32 v%d, %s, v%d" % (out, f32bits(1.0 / 576.0), P))

    S, MEAN, VAR, M, SD = 40, 42, 43, 44, 45
    a("v_pk_add_f32 %s, %s, %s" % (q2(T), q2(AC), q2(AC + 2)))
    a("v_pk_add_f32 %s, %s, %s" % (q2(T + 2), q2(AC + 4), q2(AC + 6)))
    a("v_pk_add_f32 %s, %s, %s" % (q2(T), q2(T), q2(T + 2)))
    a("v_add_f32 v%d, v%d, v%d" % (S, T, T + 1))
    reduce9(S, 0, MEAN)
    for k in range(8):
        a("v_sub_f32 v%d, v%d, v%d" % (T + k, AC + k, MEAN))
    a("v_mul_f32 v%d, v%d, v%d" % (S, T, T))
    for k in range(1, 8):
        a("v_fmac_f32 v%d, v%d, v%d" % (S, T + k, T + k))
    reduce9(S, 512, VAR)
    ln_scalars(MEAN, VAR, M, SD)
    a("v_rcp_f32 v%d, v%d" % (SD, SD))
    for k in range(8):
        a("v_sub_f32 v%d, v%d, v%d" % (AC + k, AC + k, M))
    for k in range(4):
        cvt(T + k, AC + 2 * k, AC + 2 * k + 1)
    for k in range(4):
        unpack(AC + 2 * k, T + k)
    for k in range(8):
        a("v_mul_f32 v%d, v%d, v%d" % (AC + k, AC + k, SD))
    for k in range(4):
        cvt(T + k, AC + 2 * k, AC + 2 * k + 1)
    a("buffer_store_dwordx4 %s, v3, s[40:43], s22 offen%s" % (q4(T), ST))
    a("s_branch P_end" if PROF else "s_endpgm")

    a("P_w12:")
    a("v_lshrrev_b32 v5, 3, v1")
    a("v_and_b32 v6, 7, v1")
    a("v_lshlrev_b32 v6, 4, v6")
    a("v_bfe_u32 v7, v1, 2, 2")
    a("v_and_b32 v8, 3, v1")
    a("s_lshl_b32 s21, s3, 12")
    a("s_cmp_ge_u32 s2, %d" % P_W2)
    a("s_cbranch_scc1 P_w2")
    if "now1" in ABL:
        a("s_branch P_end")

    def w12(stride, second):
        for n in range(4):
            a("s_add_u32 m0, s21, %d" % (n * 1024))
            a("buffer_load_dwordx4 v9, s[36:39], s22 offen" + PNT + " lds")
            if n < 3:
                a("s_add_u32 s22, s22, %d" % (8 * stride))

    def w12b(second):
        for tl in range(4):
            a("ds_read_b64_tr_b16 %s, v10 offset:%d" % (q2(16 + tl * 4), tl * 32))
            a("ds_read_b64_tr_b16 %s, v10 offset:%d" % (q2(18 + tl * 4), tl * 32 + second))
        for tl in range(4):
            a("s_waitcnt lgkmcnt(%d)" % (6 - 2 * tl))
            a("s_add_u32 s26, s23, %d" % (tl * 18432))
            a("buffer_store_dwordx4 %s, v2, s[40:43], s26 offen%s" % (q4(16 + tl * 4), ST))

    srd(36, 12, 0, 576 * 4608 * 2)
    a("s_sub_u32 s28, s2, %d" % P_W1)
    a("s_lshr_b32 s20, s28, 1")
    a("s_and_b32 s28, s28, 1")
    a("s_mul_i32 s29, s28, 9")
    a("s_add_u32 s29, s29, s3")
    a("s_mul_i32 s22, s29, %d" % (32 * 9216))
    a("s_lshl_b32 s27, s20, 7")
    a("s_add_u32 s22, s22, s27")
    a("v_mul_u32_u24 v9, 9216, v5")
    a("v_add_u32 v9, v9, v6")
    w12(9216, 512)
    srd(32, 14, 0, 4608 * 2)
    a("v_lshlrev_b32 v5, 1, v1")
    a("buffer_load_ushort v40, v5, s[32:35], s27 offen")
    a("v_lshl_add_u32 v10, v3, 3, v7")
    a("v_lshlrev_b32 v10, 7, v10")
    a("v_lshl_add_u32 v10, v8, 3, v10")
    a("v_add_u32 v10, s21, v10")
    a("s_mul_i32 s23, s20, %d" % (4 * 18432))
    a("s_lshl_b32 s26, s29, 10")
    a("s_add_u32 s23, s23, s26")
    a("s_add_u32 s23, s23, %s" % hex(W1P))
    for k in range(4):
        a("v_mov_b32 v%d, 0x3f803f80" % (12 + k))
    a("s_lshl_b32 s26, s3, 8")
    a("s_add_u32 s26, s26, 36864")
    a("v_lshlrev_b32 v11, 4, v3")
    a("v_add_u32 v11, s26, v11")
    a("s_waitcnt vmcnt(0)")
    w12b(512)
    for tl in range(4):
        a("%s %s, %s, v[12:15], 0" % (MF, q4(48 + tl * 4), q4(16 + tl * 4)))
    for tl in range(4):
        a("ds_write_b128 v11, %s offset:%d" % (q4(48 + tl * 4), tl * 64))
    a("s_waitcnt lgkmcnt(0)")
    a("s_barrier")
    a("s_cmp_lg_u32 s3, 0")
    a("s_cbranch_scc1 P_end")
    a("v_lshlrev_b32 v11, 2, v1")
    for w in range(9):
        a("ds_read_b32 v%d, v11 offset:%d" % (48 + w, 36864 + w * 256))
    a("s_waitcnt lgkmcnt(0)")
    for w in range(1, 9):
        a("v_add_f32 v48, v48, v%d" % (48 + w))
    a("v_sub_f32 v48, 0, v48")
    cvt(60, 48, 48)
    a("v_and_b32 v49, 0xffff0000, v60")
    a("v_sub_f32 v49, v48, v49")
    cvt(49, 49, 49)
    a("v_and_b32 v49, 0xffff, v49")
    a("v_lshl_or_b32 v61, v40, 16, v49")
    a("s_lshl_b32 s27, s20, 10")
    a("s_lshl_b32 s28, s28, 3")
    a("s_add_u32 s27, s27, s28")
    a("s_add_u32 s27, s27, %s" % hex(AUG))
    a("buffer_store_dwordx2 v[60:61], v2, s[40:43], s27 offen%s" % ST)
    a("s_branch P_end" if PROF else "s_endpgm")

    a("P_w2:")
    if "now2" in ABL:
        a("s_cmp_ge_u32 s2, %d" % (P_W2 + 32))
        a("s_cbranch_scc1 P_end")
    srd(36, 16, 0, 576 * 4608 * 2)
    a("s_sub_u32 s20, s2, %d" % P_W2)
    if W2D:
        a("s_lshr_b32 s22, s20, 2")
        a("s_mul_i32 s22, s22, 14")
        a("s_add_u32 s20, s20, s22")
        a("s_add_u32 s20, s20, 14")
    a("s_mul_i32 s22, s20, %d" % (32 * 1152))
    a("s_lshl_b32 s23, s3, 7")
    a("s_add_u32 s22, s22, s23")
    a("v_mul_u32_u24 v9, 1152, v5")
    a("v_add_u32 v9, v9, v6")
    w12(1152, 2048)
    a("v_lshl_add_u32 v10, v3, 2, v7")
    a("v_lshlrev_b32 v10, 7, v10")
    a("v_lshl_add_u32 v10, v8, 3, v10")
    a("v_add_u32 v10, s21, v10")
    a("s_mul_i32 s26, s20, 3641")
    a("s_lshr_b32 s26, s26, 16")
    a("s_mul_i32 s27, s26, 18")
    a("s_sub_u32 s27, s20, s27")
    a("s_mul_i32 s23, s26, %d" % (36 * 18432))
    a("s_mul_i32 s26, s3, %d" % (4 * 18432))
    a("s_add_u32 s23, s23, s26")
    a("s_lshl_b32 s27, s27, 10")
    a("s_add_u32 s23, s23, s27")
    a("s_add_u32 s23, s23, %s" % hex(W2P))
    a("s_waitcnt vmcnt(0)")
    w12b(2048)
    a("s_branch P_end" if PROF else "s_endpgm")

    a("P_misc:")
    for k in range(4):
        a("v_mov_b32 v%d, 0" % (16 + k))
    a("v_lshlrev_b32 v5, 4, v0")
    srd(36, 24, CNT, CNTB)
    a("s_mov_b32 s22, %d" % CST)
    a("v_mul_lo_u32 v6, v0, s22")
    a("buffer_store_dwordx4 v[16:19], v6, s[36:39], 0 offen%s" % ST)
    a("s_getpc_b64 s[20:21]")
    a("P_pc:")
    a("s_add_u32 s36, s20, main_kernel-P_pc")
    a("s_addc_u32 s37, s21, 0")
    a("s_mov_b32 s38, L_code_end-main_kernel")
    a("s_mov_b32 s39, 0x20000")
    a("s_mov_b32 s22, 0")
    for k in range(7):
        a("buffer_load_dwordx4 %s, v5, s[36:39], s22 offen" % q4(20 + 4 * k))
        a("s_add_u32 s22, s22, 9216")
    if NUMA:
        a("s_cmp_lg_u32 s3, 8")
        a("s_cbranch_scc1 P_end")
        a("s_add_u32 s20, s24, %s" % hex(CNT))
        a("s_addc_u32 s21, s25, 0")
        a("s_mov_b32 s44, -1")
        a("s_mov_b32 s45, -1")
        for r in range(E("NREP", 4)):
            for k in range(2):
                a("s_mov_b32 s22, 0")
                a("s_memtime s[46:47]")
                a("s_waitcnt lgkmcnt(0)")
                a("s_atomic_add s22, s[20:21], %s glc" % hex(64 + k * 8192))
                a("s_waitcnt lgkmcnt(0)")
                a("s_memtime s[48:49]")
                a("s_waitcnt lgkmcnt(0)")
                a("s_sub_u32 s22, s48, s46")
                a("s_min_u32 s%d, s%d, s22" % (44 + k, 44 + k))
        a("s_getreg_b32 s22, hwreg(HW_REG_XCC_ID)")
        a("s_bfe_u32 s22, s22, 0x10002")
        a("s_cmp_gt_u32 s44, s45")
        a("s_cselect_b32 s23, 1, 0")
        a("s_xor_b32 s22, s22, s23")
        a("s_lshl_b32 s22, s22, 13")
        a("v_mov_b32 v16, s22")
        a("s_mov_b32 s23, %s" % hex(CNT + 287 * CST + 64))
        a("buffer_store_dword v16, off, s[40:43], s23%s" % ST)
    a("P_end:")
    if PROF:
        a("s_waitcnt vmcnt(0)")
        a("s_memrealtime s[58:59]")
        srd(36, 24, STAMP + (1 << 19), 1 << 19)
        a("s_lshl_b32 s60, s2, 4")
        a("s_add_u32 s60, s60, s3")
        a("s_lshl_b32 s60, s60, 3")
        a("s_waitcnt lgkmcnt(0)")
        a("v_mov_b32 v0, s56")
        a("v_mov_b32 v1, s58")
        a("buffer_store_dwordx2 v[0:1], off, s[36:39], s60")
    a("L_exit:")
    a("s_endpgm")


L_SCR, L_OX, L_Y, L_WA, L_WB = 0, 8192, 20480, 112640, 20480
MAIN_LDS = 163840
uid = [0]


def main_kernel():
    entry("main_kernel")
    a("s_cmp_ge_u32 s2, 256")
    a("s_cbranch_scc1 L_exit2")
    a("s_load_dwordx2 s[24:25], s[0:1], %d" % KA_WS)
    a("s_load_dwordx4 s[28:31], s[0:1], %d" % KA_B2)
    a("s_load_dwordx2 s[32:33], s[0:1], %d" % KA_X)
    a("s_load_dwordx2 s[36:37], s[0:1], %d" % KA_W2)
    a("s_mov_b32 s38, %d" % (576 * 4608 * 2))
    a("s_mov_b32 s39, 0x20000")
    a("s_mov_b32 s34, %d" % ACT)
    a("s_mov_b32 s35, 0x20000")
    vm = VM()
    lg = VM("lgkmcnt", 15)
    a("v_lshrrev_b32 v1, 6, v0")
    a("v_readfirstlane_b32 s3, v1")
    a("v_and_b32 v1, 63, v0")
    a("v_lshlrev_b32 v2, 4, v1")
    a("v_lshrrev_b32 v3, 4, v1")
    a("v_and_b32 v4, 15, v1")
    b = MAPB
    spx = 8 // b
    tpx = 32 // spx
    lb = {1: 0, 2: 1, 4: 2, 8: 3}
    a("s_and_b32 s6, s2, 7")
    a("s_lshr_b32 s7, s2, 3")
    a("s_and_b32 s4, s6, %d" % (b - 1))
    a("s_lshl_b32 s4, s4, %d" % lb[spx])
    a("s_and_b32 s8, s7, %d" % (spx - 1))
    a("s_add_u32 s4, s4, s8")
    a("s_lshr_b32 s5, s6, %d" % lb[b])
    a("s_mul_i32 s5, s5, %d" % tpx)
    a("s_lshr_b32 s8, s7, %d" % lb[spx])
    a("s_add_u32 s5, s5, s8")
    a("s_mov_b32 s44, %s" % hex(LB))
    a("s_mov_b32 s45, 0")
    a("s_mov_b32 s46, 8")
    a("s_mov_b32 s27, 1")
    a("s_mov_b32 s97, 1152")
    a("s_mul_i32 s47, s5, %d" % TB)

    KY, KW = 48, 54

    def k1_setup(rot):
        if rot:
            mod_small("s6", "s5", AROT)
            a("s_mul_i32 s6, s6, %d" % (6 // AROT))
        else:
            a("s_mov_b32 s6, 0")
        for G in range(6):
            a("s_mul_i32 s%d, s6, 3072" % (KY + G))
            a("s_add_u32 s%d, s%d, s44" % (KY + G, KY + G))
            a("s_mul_i32 s%d, s6, 10752" % (KW + G))
            if G < 5:
                a("s_add_u32 s6, s6, 1")
                a("s_cmp_eq_u32 s6, 6")
                a("s_cselect_b32 s6, 0, s6")
        a("s_mul_i32 s8, s3, 18432")
        a("s_add_u32 s8, s8, s47")
        a("v_add_u32 v7, s8, v2")
        a("s_min_u32 s9, s3, 2")
        a("s_lshl_b32 s11, s9, 10")
        a("s_add_u32 s8, s47, s11")
        a("s_sub_u32 s8, s8, 18432")
        a("s_cmp_eq_u32 s5, 0")
        a("s_cselect_b32 s8, %s, s8" % hex(OOB))
        a("v_add_u32 v8, s8, v2")
        a("s_add_u32 s11, s11, %d" % L_Y)
        a("s_mul_i32 s10, s3, 18432")
        a("s_add_u32 s10, s10, %d" % (L_Y + 18432))
        a("v_add_u32 v5, %d, v2" % L_Y)
        a("v_add_u32 v6, %d, v2" % (L_Y + 46080))

    def kw_voffs():
        a("s_lshl_b32 s12, s4, 2")
        a("s_add_u32 s12, s12, s3")
        a("s_mul_i32 s12, s12, 64512")
        a("v_add_u32 v9, s12, v2")
        a("v_add_u32 v10, 3072, v9")
        a("v_add_u32 v11, 6144, v9")
        a("s_add_u32 s12, s12, 9216")
        a("v_lshlrev_b32 v12, 28, v4")
        a("v_and_b32 v12, %s, v12" % hex(OOB))
        a("v_lshl_add_u32 v12, v4, 4, v12")
        a("v_lshl_add_u32 v12, v3, 7, v12")
        a("v_add_u32 v12, s12, v12")

    k1_setup(True)
    kw_voffs()
    a("s_waitcnt lgkmcnt(0)")
    srd(40, 24, 0, WS_USED)
    a("s_add_u32 s20, s24, %s" % hex(CNT))
    a("s_addc_u32 s21, s25, 0")
    a("s_lshl_b32 s22, s5, 2")
    a("s_add_u32 s22, s22, s3")
    a("s_mul_i32 s22, s22, %d" % CST)
    if NUMA:
        a("s_load_dword s80, s[20:21], %s" % hex(287 * CST + 64))
    if PROF:
        srd(92, 24, STAMP, 1 << 20)
        a("s_lshl_b32 s96, s2, 2")
        a("s_add_u32 s96, s96, s3")
        a("s_lshl_b32 s96, s96, 8")
    rstamp(12)
    stamp(0)

    def arrive(off="s22", ret=True):
        if ret:
            a("s_mov_b32 s16, 1")
            a("s_atomic_add s16, s[20:21], %s glc" % off)
        else:
            a("s_atomic_add s27, s[20:21], %s" % off)

    def poll(target, offs=("s22",), issued=None):
        uid[0] += 1
        u = uid[0]

        def rd():
            for k, o in enumerate(offs):
                a("s_mov_b32 s%d, 0" % (16 + k))
                a("s_atomic_add s%d, s[20:21], %s glc" % (16 + k, o))
        a("s_mov_b32 s18, %d" % SPIN)
        if issued is None:
            rd()
        lg.all()
        if issued in ("arrive", "arrive2"):
            a("s_add_u32 s16, s16, 1")
        if issued == "arrive2":
            a("s_max_u32 s16, s16, s17")
        a("H%d_l:" % u)
        if len(offs) > 1:
            a("s_min_u32 s16, s16, s17")
        a("s_cmp_ge_u32 s16, %s" % target)
        a("s_cbranch_scc1 H%d_b" % u)
        a("s_sub_u32 s18, s18, 1")
        a("s_cbranch_scc1 H%d_b" % u)
        rd()
        a("s_waitcnt lgkmcnt(0)")
        a("s_branch H%d_l" % u)
        a("H%d_b:" % u)

    def hop(tag, pre_a=(), pre_b=()):
        for f in pre_a:
            f()
        vm.wait(tag)
        lg.all()
        arrive()
        mid = len(pre_b) * E("MIDP", 50) // 100
        for k, f in enumerate(pre_b):
            if k == mid and E("MIDP", 50) < 100:
                a("s_mov_b32 s17, 0")
                a("s_atomic_add s17, s[20:21], s22 glc")
            f()
        poll("s46", issued="arrive2" if E("MIDP", 50) < 100 else "arrive")
        a("s_add_u32 s46, s46, 8")

    QA, KA, VA, CA, YF = 16, 32, 52, 72, 92
    MSK, SM = 132, 136

    def wslot(i, t):
        return ((i % 16) * 4 + t) * 4

    def wload1(i, t, sreg=None):
        def f():
            s = sreg or "s%d" % (KW + i // 3)
            vo, off = (9 + i % 3, t * 1024) if t < 3 else (12, (i % 3) * 512)
            vm.op("buffer_load_dwordx4 %s, v%d, s[40:43], %s offen offset:%d" % (q4(wslot(i, t), "a"), vo, s, off), ("w", i))
        return f

    def ydma1(G, k):
        def f():
            if k < 3:
                a("s_add_u32 m0, s10, %d" % (G * 3072))
                vm.op("buffer_load_dwordx4 v7, s[40:43], s%d offen offset:%d%s lds" % (KY + G, k * 1024, LD), ("y", G))
            else:
                a("s_add_u32 m0, s11, %d" % (G * 3072))
                vm.op("buffer_load_dwordx4 v8, s[40:43], s%d offen%s lds" % (KY + G, LD), ("y", G))
        return f

    def yread1(i, T):
        def f():
            off = (T * 18 + i) * 1024
            base = 5
            if off >= 46080:
                off -= 46080
                base = 6
            a("ds_read_b128 %s, v%d offset:%d" % (q4(YF + (i % 2) * 20 + T * 4), base, off))
        return f

    def wodma(region, n):
        def f():
            a("s_add_u32 m0, s%d, %d" % ((13, 14)[region], (n // 4) * 4096))
            a("s_add_u32 s15, s%d, %d" % ((60, 61)[region], (n // 4) * 4096))
            vm.op("buffer_load_dwordx4 v2, s[40:43], s15 offen offset:%d lds" % ((n % 4) * 1024), "wo")
        return f

    wo_all = [wodma(0, n) for n in range(12)] + [wodma(1, n) for n in range(9)]

    def k2_addr():
        a("s_mul_i32 s62, s3, 18432")
        a("s_add_u32 s62, s62, s47")
        a("s_add_u32 s62, s62, s44")
        a("s_mul_i32 s63, s4, 2304")
        a("s_add_u32 s63, s63, s62")
        a("v_and_b32 v220, 1, v3")
        a("v_lshlrev_b32 v220, 9, v220")
        a("v_lshl_add_u32 v220, v4, 4, v220")
        a("v_lshrrev_b32 v221, 5, v1")
        a("v_lshl_add_u32 v220, v221, 8, v220")
        a("v_mov_b32 v221, %s" % hex(OOB))
        a("v_cmp_eq_u32 vcc, 0, v3")
        a("v_cndmask_b32 v221, v221, v220, vcc")
        a("v_cndmask_b32 v222, 0, -1, vcc")
        a("s_add_u32 s65, s63, %s" % hex(oX1))
        a("s_sub_u32 s64, s63, s44")
        a("s_mul_i32 s6, s4, 144")
        a("s_sub_u32 s7, s62, s44")
        a("s_add_u32 s6, s6, s7")
        a("v_lshrrev_b32 v206, 4, v220")
        a("v_and_b32 v206, 0x30, v206")
        a("v_mad_u32_u24 v206, v4, s97, v206")
        a("s_cmp_eq_u32 s45, 0")
        a("s_cselect_b32 s64, s6, s64")
        a("s_cselect_b32 s6, 64, 1024")
        a("s_cselect_b64 s[8:9], -1, 0")
        a("v_cndmask_b32 v206, v220, v206, s[8:9]")
        a("v_add_u32 v207, s6, v206")
        a("v_add_u32 v223, s6, v207")
        a("v_cndmask_b32 v223, v221, v223, vcc")

    def attn_consts():
        k2_addr()
        a("v_and_b32 v13, 1, v4")
        a("v_cmp_eq_u32 s[70:71], 1, v13")
        a("v_lshl_add_u32 v14, v3, 2, v13")
        a("v_cmp_ge_u32 s[72:73], v4, v14")
        a("v_add_u32 v14, 2, v14")
        a("v_cmp_ge_u32 s[74:75], v4, v14")
        a("v_mov_b32 v13, 0xffff")
        a("v_mov_b32 v14, 0xffff0000")
        a("v_cndmask_b32 v13, v13, v14, s[70:71]")
        a("v_cndmask_b32 v%d, v13, 0, s[72:73]" % (MSK + 0))
        a("v_cndmask_b32 v%d, v13, 0, s[74:75]" % (MSK + 1))
        a("v_cndmask_b32 v%d, 0, v13, s[72:73]" % (MSK + 2))
        a("v_cndmask_b32 v%d, 0, v13, s[74:75]" % (MSK + 3))
        a("s_cmp_eq_u32 s5, 0")
        a("s_cselect_b32 s14, %s, 0" % f32bits(-1e9 * math.sqrt(18.0)))
        for k in range(4):
            a("v_mov_b32 v%d, s14" % (SM + k))
        a("s_lshl_b32 s14, s3, 11")
        a("v_lshlrev_b32 v141, 9, v3")
        a("v_lshl_add_u32 v141, v4, 1, v141")
        a("v_add_u32 v141, s14, v141")
        a("v_and_b32 v142, 1, v4")
        a("v_mul_u32_u24 v142, 160, v142")
        a("v_lshl_add_u32 v142, v3, 3, v142")
        a("s_add_u32 s14, s14, 512")
        a("v_add_u32 v142, s14, v142")
        a("s_lshr_b32 s14, s3, 1")
        a("s_lshl_b32 s14, s14, 10")
        a("s_and_b32 s15, s3, 1")
        a("s_lshl_b32 s15, s15, 3")
        a("s_add_u32 s14, s14, s15")
        a("s_add_u32 s14, s14, %d" % L_OX)
        a("v_add_u32 v143, s14, v2")
        a("s_lshl_b32 s14, s3, 2")
        a("s_add_u32 s14, s14, %d" % (L_OX + 2048))
        a("v_add_u32 v144, s14, v2")
        a("s_mul_i32 s14, s3, 3072")
        a("s_add_u32 s14, s14, %d" % L_OX)
        a("v_add_u32 v145, s14, v2")
        a("s_mul_i32 s60, s4, %d" % WOS)
        a("s_add_u32 s60, s60, %s" % hex(WOP))
        a("s_mul_i32 s14, s3, 9216")
        a("s_add_u32 s61, s60, s14")
        a("s_add_u32 s61, s61, 46080")
        a("s_mul_i32 s14, s3, 18432")
        a("s_add_u32 s14, s14, %d" % L_Y)
        a("s_mul_i32 s13, s3, 12288")
        a("s_add_u32 s60, s60, s13")
        a("s_add_u32 s13, s13, %d" % L_WA)

    def w2addr():
        a("s_lshl_b32 s6, s5, 2")
        a("s_add_u32 s6, s6, s3")
        a("s_mul_i32 s7, s6, 57")
        a("s_lshr_b32 s7, s7, 9")
        a("s_mul_i32 s8, s7, 9")
        a("s_sub_u32 s8, s6, s8")
        a("s_mul_i32 s9, s4, 18")
        a("s_add_u32 s9, s9, s7")
        a("s_mul_i32 s9, s9, %d" % (32 * 1152))
        a("s_lshl_b32 s12, s8, 7")
        a("s_add_u32 s76, s9, s12")
        for n in range(1, 4):
            a("s_add_u32 s%d, s76, %d" % (76 + n, n * 8 * 1152))
        a("s_mul_i32 s12, s4, 9")
        a("s_add_u32 s12, s12, s8")
        a("s_mul_i32 s12, s12, %d" % (4 * 18432))
        a("s_lshl_b32 s7, s7, 10")
        a("s_add_u32 s12, s12, s7")
        a("s_add_u32 s12, s12, %s" % hex(W2P))
        a("s_cmp_lt_u32 s6, 126")
        a("s_cselect_b32 s26, s12, %s" % hex(OOB))
        a("v_lshrrev_b32 v236, 3, v1")
        a("v_and_b32 v237, 7, v1")
        a("v_lshlrev_b32 v237, 4, v237")
        a("v_mad_u32_u24 v236, v236, s97, v237")

    def w2raw(n):
        return lambda: vm.op("buffer_load_dwordx4 %s, v236, s[36:39], s%d offen nt" % (q4(240 + 4 * n, "a"), 76 + n), "w2r")

    def w2pack1():
        if not W2D:
            return
        a("s_cmp_lg_u32 s45, 0")
        a("s_cbranch_scc1 W2_a")
        a("s_mul_i32 s6, s3, 18432")
        a("s_add_u32 s6, s6, %d" % (L_Y + 9216))
        a("v_add_u32 v236, s6, v2")
        for n in range(4):
            a("ds_write_b128 v236, %s offset:%d" % (q4(240 + 4 * n, "a"), n * 1024))
        a("v_bfe_u32 v237, v1, 2, 4")
        a("v_lshlrev_b32 v237, 7, v237")
        a("v_and_b32 v238, 3, v1")
        a("v_lshl_add_u32 v237, v238, 3, v237")
        a("v_add_u32 v237, s6, v237")
        for tl in range(4):
            a("ds_read_b64_tr_b16 %s, v237 offset:%d" % (q2(240 + tl * 4), tl * 32))
            a("ds_read_b64_tr_b16 %s, v237 offset:%d" % (q2(242 + tl * 4), tl * 32 + 2048))
        a("W2_a:")

    def w2pack2():
        if not W2D:
            return
        a("s_cmp_lg_u32 s45, 0")
        a("s_cbranch_scc1 W2_b")
        for tl in range(4):
            a("buffer_store_dwordx4 %s, v2, s[40:43], s26 offen%s" % (q4(240 + tl * 4), ST))
            a("s_add_u32 s26, s26, 18432")
        a("W2_b:")

    def qkv(pre):
        if not pre:
            for k in range(4):
                ydma1(0, k)()
            for t in range(4):
                wload1(0, t)()
            for k in range(4):
                ydma1(1, k)()
            for i in range(1, APRE):
                for t in range(4):
                    wload1(i, t)()
            if TOUCH:
                a("s_getpc_b64 s[36:37]")
                a("M_pc:")
                a("s_mov_b32 s38, L_code_end-M_pc")
                a("s_mov_b32 s39, 0x20000")
                a("s_lshr_b32 s6, s2, 3")
                a("s_lshl_b32 s6, s6, 2")
                a("s_add_u32 s6, s6, s3")
                a("s_lshl_b32 s6, s6, 9")
                a("v_lshlrev_b32 v249, 3, v1")
                vm.op("buffer_load_dword v250, v249, s[36:39], s6 offen", "t")
            attn_consts()
            if W2D:
                w2addr()
            if NUMA:
                a("s_waitcnt lgkmcnt(0)")
                a("s_and_b32 s80, s80, 0x2000")
                a("s_xor_b32 s22, s22, s80")
            ahead_y = 2
        else:
            for i in range(pre):
                vm.ops.append(("w", i))
            for G in range(3):
                for k in range(4):
                    ydma1(G, k)()
            ahead_y = 3
        vm.wait(("y", 0))
        a("s_barrier")
        if E("XP", 0) == 1:
            stamp(13)
        for T in range(5):
            yread1(0, T)()
        wo_list = [wodma(1, n) for n in range(9)] if pre else wo_all[:WOL]
        for i in range(18):
            if i + 1 < 18 and (i + 1) % 3 == 0:
                vm.wait(("y", (i + 1) // 3))
                a("s_barrier")
            a("s_waitcnt lgkmcnt(0)")
            vm.wait(("w", i))
            mem = []
            if i // 3 + ahead_y < 6:
                mem += [ydma1(i // 3 + ahead_y, k) for k in ((0, 3), (1,), (2,))[i % 3]]
            nxt = i + APRE
            if pre:
                nxt = pre + i - 1 if i >= 1 else None
                if nxt is not None and nxt - 16 >= i:
                    nxt = None
            if nxt is not None and nxt < 18:
                mem += [wload1(nxt, t) for t in range(4)]
            if (i >= 11) if pre else (nxt >= 18):
                take = -(-len(wo_list) // (18 - i))
                mem += wo_list[:take]
                wo_list = wo_list[take:]
            rds = [yread1(i + 1, T) for T in range(5)] if i + 1 < 18 else []
            slots = {}
            for k, f in enumerate(mem):
                slots.setdefault(1 + (k * 18) // len(mem), []).append(f)
            for k, f in enumerate(rds):
                slots.setdefault(2 * k, []).append(f)
            m = 0
            for T in range(5):
                y = q4(YF + (i % 2) * 20 + T * 4)
                for t, base in ((1, KA), (2, VA), (3, CA), (0, QA)):
                    if t == 0 and T == 0:
                        continue
                    d = base + (T - 1 if t == 0 else T) * 4
                    w = q4(wslot(i, t), "a")
                    c = "0" if i == 0 else q4(d)
                    A_, B_ = (y, w) if t == 2 else (w, y)
                    a("%s %s, %s, %s, %s" % (MF, q4(d), A_, B_, c))
                    for f in slots.get(m, []):
                        f()
                    m += 1
        assert not wo_list, len(wo_list)

    qkv(0)
    a("s_branch K1_attn")
    a("K1_second:")
    vm.done = -1
    vm.ops = []
    qkv(PF)
    a("K1_attn:")
    vm.ops = []
    vm.done = -1
    stamp(1)
    def wo_group(fs):
        def f():
            uid[0] += 1
            a("s_cmp_lg_u32 s45, 0")
            a("s_cbranch_scc1 W%d" % uid[0])
            n0 = len(vm.ops)
            for g in fs:
                g()
            del vm.ops[n0:]
            a("W%d:" % uid[0])
        return f

    assert WOL == 21
    vm.ops.append("wo")
    side = []
    XR = 208

    def xload(kk):
        def f():
            vm.op("buffer_load_dwordx4 %s, v%d, s[32:35], s64 offen%s" % (q4(XR + 4 * kk), (206, 207, 223)[kk], LD), "x")
        return f

    nop = lambda: None
    side += [xload(k) for k in range(3)] + [nop] * E("W2G", 0) + ([f for n in range(4) for f in (w2raw(n), nop, nop)] if W2D else [])
    cnt = [0]

    def v(text):
        a(text)
        cnt[0] += 1
        if cnt[0] % 4 == 0 and side:
            side.pop(0)()

    QO, KO, VP, X0, V2 = 148, 164, 184, 194, 196
    for T in range(5):
        xd = X0 if T == 0 else QO + (T - 1) * 4 + 2
        v("v_cvt_pk_bf16_f32 v%d, v%d, v%d" % (xd, CA + T * 4, CA + T * 4 + 1))
        a("ds_write_b16 v141, v%d offset:%d" % (xd, T * 32))
        a("ds_write_b16_d16_hi v141, v%d offset:%d" % (xd, T * 32 + 160))
    for T in range(5):
        v("v_cvt_pk_bf16_f32 v%d, v%d, v%d" % (KO + T * 4 + 2, CA + T * 4 + 2, CA + T * 4 + 3))
        v("v_cvt_pk_bf16_f32 v%d, v%d, v%d" % (KO + T * 4, KA + T * 4, KA + T * 4 + 1))
        v("v_cvt_pk_bf16_f32 v%d, v%d, v%d" % (KO + T * 4 + 1, KA + T * 4 + 2, KA + T * 4 + 3))
        v("v_mov_b32 v%d, 0" % (KO + T * 4 + 3))
        if T:
            q = QO + (T - 1) * 4
            v("v_cvt_pk_bf16_f32 v%d, v%d, v%d" % (q, QA + (T - 1) * 4, QA + (T - 1) * 4 + 1))
            v("v_cvt_pk_bf16_f32 v%d, v%d, v%d" % (q + 1, QA + (T - 1) * 4 + 2, QA + (T - 1) * 4 + 3))
            v("v_mov_b32 v%d, 0" % (q + 3))
    for T in range(5):
        a("ds_read_b64 %s, v142 offset:%d" % (q2(V2 + 2 * T), T * 32))
    SP = YF
    Ts = range(1, 5)
    for T in Ts:
        q = q4(QO + (T - 1) * 4)
        sp = SP + (T - 1) * 8
        a("%s %s, %s, %s, %s" % (MF, q4(sp), q4(KO + (T - 1) * 4), q, q4(SM) if T == 1 else "0"))
        a("%s %s, %s, %s, 0" % (MF, q4(sp + 4), q4(KO + T * 4), q))
    for T in range(5):
        v("v_cvt_pk_bf16_f32 v%d, v%d, v%d" % (VP + 2 * T, VA + T * 4, VA + T * 4 + 1))
        v("v_cvt_pk_bf16_f32 v%d, v%d, v%d" % (VP + 2 * T + 1, VA + T * 4 + 2, VA + T * 4 + 3))
    a("s_mov_b32 s19, %s" % f32bits((18.0 ** -0.5) * math.log2(math.e)))
    W = lambda T, k: 16 + (T - 1) * 8 + k
    for T in Ts:
        sp = SP + (T - 1) * 8
        v("v_cndmask_b32 v%d, v%d, v%d, s[70:71]" % (W(T, 2), sp + 4, sp + 5))
        v("v_cndmask_b32 v%d, v%d, v%d, s[70:71]" % (W(T, 3), sp + 0, sp + 1))
        v("v_cndmask_b32 v%d, v%d, v%d, s[70:71]" % (W(T, 4), sp + 6, sp + 7))
        v("v_cndmask_b32 v%d, v%d, v%d, s[70:71]" % (W(T, 5), sp + 2, sp + 3))
        v("v_cndmask_b32 v%d, v%d, v%d, s[72:73]" % (W(T, 0), W(T, 3), W(T, 2)))
        v("v_cndmask_b32 v%d, v%d, v%d, s[74:75]" % (W(T, 1), W(T, 5), W(T, 4)))
        v("v_max_f32 v%d, v%d, v%d" % (W(T, 2), W(T, 0), W(T, 1)))
        v("v_mov_b32 v%d, v%d" % (W(T, 3), W(T, 2)))

    def xlane(op):
        for T in Ts:
            v("v_permlane16_swap_b32 v%d, v%d" % (W(T, 2), W(T, 3)))
        for T in Ts:
            v("%s v%d, v%d, v%d" % (op, W(T, 2), W(T, 2), W(T, 3)))
            v("v_mov_b32 v%d, v%d" % (W(T, 3), W(T, 2)))
        for T in Ts:
            v("v_permlane32_swap_b32 v%d, v%d" % (W(T, 2), W(T, 3)))
        for T in Ts:
            v("%s v%d, v%d, v%d" % (op, W(T, 2), W(T, 2), W(T, 3)))

    xlane("v_max_f32")
    for T in Ts:
        v("v_sub_f32 v%d, v%d, v%d" % (W(T, 0), W(T, 0), W(T, 2)))
        v("v_sub_f32 v%d, v%d, v%d" % (W(T, 1), W(T, 1), W(T, 2)))
        v("v_mul_f32 v%d, s19, v%d" % (W(T, 0), W(T, 0)))
        v("v_mul_f32 v%d, s19, v%d" % (W(T, 1), W(T, 1)))
    for T in Ts:
        v("v_exp_f32 v%d, v%d" % (W(T, 0), W(T, 0)))
        v("v_exp_f32 v%d, v%d" % (W(T, 1), W(T, 1)))
    for T in Ts:
        v("v_add_f32 v%d, v%d, v%d" % (W(T, 2), W(T, 0), W(T, 1)))
        v("v_mov_b32 v%d, v%d" % (W(T, 3), W(T, 2)))
    xlane("v_add_f32")
    for T in Ts:
        v("v_rcp_f32 v%d, v%d" % (W(T, 2), W(T, 2)))
    for T in Ts:
        v("v_mul_f32 v%d, v%d, v%d" % (W(T, 0), W(T, 0), W(T, 2)))
        v("v_mul_f32 v%d, v%d, v%d" % (W(T, 1), W(T, 1), W(T, 2)))
        v("v_cvt_pk_bf16_f32 v%d, v%d, v%d" % (W(T, 0), W(T, 0), W(T, 0)))
        v("v_cvt_pk_bf16_f32 v%d, v%d, v%d" % (W(T, 1), W(T, 1), W(T, 1)))
        v("v_and_b32 v%d, v%d, v%d" % (W(T, 4), W(T, 0), MSK + 0))
        v("v_and_b32 v%d, v%d, v%d" % (W(T, 5), W(T, 1), MSK + 1))
        v("v_and_b32 v%d, v%d, v%d" % (W(T, 6), W(T, 0), MSK + 2))
        v("v_and_b32 v%d, v%d, v%d" % (W(T, 7), W(T, 1), MSK + 3))
    while side:
        side.pop(0)()
    a("s_waitcnt lgkmcnt(0)")
    for T in Ts:
        sp = SP + (T - 1) * 8
        p = q4(W(T, 4))
        a("%s %s, %s, %s, 0" % (MF, q4(sp), q4(VP + 2 * (T - 1)), p))
        a("%s %s, %s, %s, 0" % (MF, q4(sp + 4), q4(V2 + 2 * (T - 1)), p))
    a("s_add_u32 s66, s62, %s" % hex(oO))
    a("s_lshl_b32 s67, s4, 11")
    a("s_add_u32 s67, s67, s66")
    a("s_lshl_b32 s68, s4, 8")
    a("s_add_u32 s68, s68, s66")
    a("s_add_u32 s68, s68, 16384")
    for T in Ts:
        sp = SP + (T - 1) * 8
        o = 48 + (T - 1) * 4
        cvt(o, sp, sp + 1)
        cvt(o + 1, sp + 2, sp + 3)
        cvt(o + 2, sp + 4, sp + 5)
        a("ds_write_b64 v143, %s offset:%d" % (q2(o), (T - 1) * 3072))
        a("ds_write_b32 v144, v%d offset:%d" % (o + 2, (T - 1) * 3072))
    a("s_waitcnt lgkmcnt(0)")
    vm.wait("wo")
    a("s_barrier")
    for st in range(3):
        a("ds_read_b128 %s, v145 offset:%d" % (q4(224 + st * 4), st * 1024))
    for st in range(3):
        a("s_waitcnt lgkmcnt(%d)" % (2 - st))
        if st < 2:
            vm.op("buffer_store_dwordx4 %s, v2, s[40:43], s67 offen offset:%d%s" % (q4(224 + st * 4), st * 1024, STF), "st")
        else:
            vm.op("buffer_store_dwordx4 %s, v221, s[40:43], s68 offen%s" % (q4(232), STF), "st")
    stamp(2)

    WS = 48
    ACC, FIN, AUGW, TMP, KC, AB = 144, 160, 176, 180, 192, 204
    PK = 204

    def ring(q):
        return 16 + (q % NR) * 4

    def m_voffs():
        a("s_mul_i32 s9, s4, 36")
        a("s_add_u32 s9, s9, s3")
        a("s_mul_i32 s11, s9, 18432")
        a("s_add_u32 s11, s11, %s" % hex(W1P))
        a("v_add_u32 v7, s11, v2")
        for k in range(1, 5):
            a("v_add_u32 v%d, %d, v7" % (7 + k, 4096 * k))
        a("s_lshl_b32 s11, s9, 8")
        a("s_add_u32 s11, s11, %s" % hex(AUG))
        a("v_lshl_add_u32 v12, v4, 4, s11")
        if GROT == 1:
            for n in range(9):
                a("s_mov_b32 s%d, %d" % (WS + n, n * 4 * 18432))
        else:
            a("s_and_b32 s12, s5, %d" % (GROT - 1))
            a("s_mul_i32 s12, s12, %d" % (8 // GROT))
            for n in range(8):
                a("s_add_u32 s11, s12, %d" % n)
                a("s_and_b32 s11, s11, 7")
                a("s_mul_i32 s%d, s11, %d" % (WS + n, 4 * 18432))
            a("s_mov_b32 s%d, %d" % (WS + 8, 8 * 4 * 18432))

    W2T, STT = 76, 57
    sst = lambda n: (57 + n) if n < 3 else (85 + n - 3)

    def mload(q):
        def f():
            n, s = divmod(q, 18)
            sr = WS + n if n < 9 else W2T + n - 9
            vm.op("buffer_load_dwordx4 %s, v%d, s[40:43], s%d offen offset:%d%s" % (q4(ring(q)), 7 + s // 4, sr, (s % 4) * 1024, LD if (n >= 9 and W2D and not E("NOSC", 0)) else MLD), ("m", q))
        return f

    LQ0 = 18 * 18 - LPF

    def lpf_dma(k):
        n, s_ = divmod(LQ0 + k, 18)
        a("s_add_u32 m0, s8, %d" % (4096 + k * 1024 - (s_ % 4) * 1024))
        vm.op("buffer_load_dwordx4 v%d, s[40:43], s%d offen offset:%d%s lds" % (7 + s_ // 4, W2T + n - 9, (s_ % 4) * 1024, LD), ("l", k))

    def lpf_read(k):
        vm.wait(("l", k))
        lg.op("ds_read_b128 %s, v221 offset:%d" % (q4(ring(LQ0 + k)), k * 1024), ("lr", k))

    def aload(n):
        vm.op("buffer_load_dwordx4 %s, v12, s[40:43], s%d offen" % (q4(AUGW), 91), ("aug", n))

    def kslot(ks, tl):
        return ((ks % 12) * 5 + tl) * 4

    def kread(ks, tl):
        def f():
            base, off = (13, ks * 4608) if ks < 10 else (14, ((ks - 10) >> 1) * 18432 + ((ks - 10) & 1) * 4608)
            if tl == 4:
                base += 2
            lg.op("ds_read_b128 %s, v%d offset:%d" % (q4(kslot(ks, tl), "a"), base if base != 16 else 6, off + tl * 1024), ("k", ks))
        return f

    def k2_pre():
        a("v_add_u32 v13, %d, v2" % L_WA)
        a("v_add_u32 v14, %d, v2" % L_WB)
        a("v_and_b32 v15, 7, v4")
        a("v_lshlrev_b32 v15, 4, v15")
        a("v_lshl_add_u32 v15, v3, 7, v15")
        a("v_add_u32 v6, %d, v15" % L_WB)
        a("v_add_u32 v15, %d, v15" % L_WA)
        for ks in range(K2PRE):
            for tl in range(5):
                kread(ks, tl)()

    XU = 224
    def x_unpack():
        for k in range(12):
            unpack(XU + 2 * k, XR + k)
        if MST:
            for k in range(4):
                a("v_mov_b32 v%d, 0x3f803f80" % (248 + k))
            a("v_and_b32 v252, 2, v4")
            a("v_cmp_eq_u32 s[72:73], 2, v252")
            a("v_lshrrev_b32 v252, 2, v4")
            a("v_cmp_eq_u32 vcc, v252, v3")
            a("v_lshlrev_b32 v252, 3, v4")
            a("v_mov_b32 v253, %s" % hex(OOB))
            a("v_cndmask_b32 v252, v253, v252, vcc")

    m_voffs()
    HBA, HBB, HCA, HCB = [int(x) for x in os.environ.get("HP", "8,10,6,8").split(",")]
    nb = HBA + HBB
    assert nb <= 18
    PRE = nb + HCA + HCB
    hc = list(range(nb, PRE))
    hca = [q for q in hc if q < 18 or q >= 26][:HCA]
    hcb = [q for q in hc if q not in hca]
    hop("st", pre_a=[mload(q) for q in range(HBA)],
        pre_b=[k2_pre] + [mload(q) for q in range(HBA, nb)] + [x_unpack])
    stamp(3)

    OFR, KAC = 88, 160
    a("v_add_u32 v5, 4096, v2")
    rest = [kread(ks, tl) for ks in range(K2PRE, 12) for tl in range(5)]
    a("s_add_u32 s14, s66, 8192")
    a("s_add_u32 s15, s66, 16384")

    def oload(ks):
        vm.op("buffer_load_dwordx4 %s, v%d, s[40:43], s%d offen offset:%d%s" % (q4(OFR + ks * 4), (2, 5)[(ks % 8) // 4], (66, 14, 15)[ks // 8], (ks % 4) * 1024, LD), ("o", ks))

    OA = E("OA", 10)
    for ks in range(OA):
        oload(ks)
        for f in rest[:3]:
            f()
        rest = rest[3:]
    for f in rest:
        f()
    for ks in range(18):
        vm.wait(("o", ks))
        lg.wait(("k", ks))
        for tl in range(5):
            a("%s %s, %s, %s, %s" % (MF, q4(KAC + tl * 4), q4(kslot(ks, tl), "a"), q4(OFR + ks * 4), "0" if ks == 0 else q4(KAC + tl * 4)))
            if ks < 6:
                kread(ks + 12, tl)()
            if tl in (0, 2) and OA + 2 * ks + tl // 2 < 18:
                oload(OA + 2 * ks + tl // 2)
    if E("XP", 0):
        stamp(14)
    TP, TU = 180, 88
    for tl in range(5):
        cvt(TP + 2 * tl, KAC + 4 * tl, KAC + 4 * tl + 1)
        cvt(TP + 2 * tl + 1, KAC + 4 * tl + 2, KAC + 4 * tl + 3)
    for kk in range(3):
        a("v_permlane16_swap_b32 v%d, v%d" % (TP + 4 * kk, TP + 4 * kk + 2))
        a("v_permlane16_swap_b32 v%d, v%d" % (TP + 4 * kk + 1, TP + 4 * kk + 3))
    for k in range(8, 12):
        a("v_and_b32 v%d, v%d, v222" % (TP + k, TP + k))
    for kk in range(3):
        for k in range(4 * kk, 4 * kk + 4):
            unpack(TU + 2 * k, TP + k)
        for k in range(4 * kk, 4 * kk + 4):
            a("v_pk_add_f32 %s, %s, %s" % (q2(TU + 2 * k), q2(TU + 2 * k), q2(XU + 2 * k)))
        for k in range(4 * kk, 4 * kk + 4):
            cvt(XR + k, TU + 2 * k, TU + 2 * k + 1)
        vm.op("buffer_store_dwordx4 %s, v%d, s[40:43], s65 offen offset:%d%s" % (q4(XR + 4 * kk), 220 if kk < 2 else 221, kk * 1024, STF), "st")
    S0 = 112
    if MST:
        for kk in range(3):
            a("%s %s, %s, %s, %s" % (MF, q4(KAC), q4(248), q4(XR + 4 * kk), "0" if kk == 0 else q4(KAC)))
            a("%s %s, %s, %s, %s" % (MF, q4(KAC + 4), q4(XR + 4 * kk), q4(XR + 4 * kk), "0" if kk == 0 else q4(KAC + 4)))
    else:
        for k in range(12):
            unpack(TU + 2 * k, XR + k)
        a("v_pk_add_f32 %s, %s, %s" % (q2(S0), q2(TU), q2(TU + 2)))
        a("v_pk_add_f32 %s, %s, %s" % (q2(S0 + 2), q2(TU + 4), q2(TU + 6)))
        for k in range(4, 12, 2):
            a("v_pk_add_f32 %s, %s, %s" % (q2(S0), q2(S0), q2(TU + 2 * k)))
            a("v_pk_add_f32 %s, %s, %s" % (q2(S0 + 2), q2(S0 + 2), q2(TU + 2 * k + 2)))
        a("v_pk_add_f32 %s, %s, %s" % (q2(S0), q2(S0), q2(S0 + 2)))
        a("v_add_f32 v%d, v%d, v%d" % (S0, S0, S0 + 1))
        xsum(S0, S0 + 1)
        a("v_mul_f32 v%d, %s, v%d" % (S0 + 4, f32bits(1.0 / 72.0), S0))
        a("v_sub_f32 v%d, 0, v%d" % (S0 + 6, S0 + 4))
        a("v_mov_b32 v%d, v%d" % (S0 + 7, S0 + 6))
        a("v_and_b32 v%d, v%d, v222" % (S0 + 8, S0 + 6))
        a("v_mov_b32 v%d, v%d" % (S0 + 9, S0 + 8))
        for k in range(12):
            a("v_pk_add_f32 %s, %s, %s" % (q2(TU + 2 * k), q2(TU + 2 * k), q2(S0 + 6 if k < 8 else S0 + 8)))
        a("v_pk_mul_f32 %s, %s, %s" % (q2(S0), q2(TU), q2(TU)))
        a("v_pk_mul_f32 %s, %s, %s" % (q2(S0 + 2), q2(TU + 2), q2(TU + 2)))
        for k in range(2, 12):
            r = S0 + 2 * (k % 2)
            a("v_pk_fma_f32 %s, %s, %s, %s" % (q2(r), q2(TU + 2 * k), q2(TU + 2 * k), q2(r)))
        a("v_pk_add_f32 %s, %s, %s" % (q2(S0), q2(S0), q2(S0 + 2)))
        a("v_add_f32 v%d, v%d, v%d" % (S0 + 5, S0, S0 + 1))
        xsum(S0 + 5, S0 + 1)
    a("s_lshl_b32 s15, s5, 12")
    a("s_add_u32 s69, s15, s44")
    a("s_add_u32 s69, s69, %s" % hex(oST))
    a("s_lshl_b32 s15, s4, 9")
    a("s_lshl_b32 s19, s3, 7")
    a("s_add_u32 s15, s15, s19")
    a("s_add_u32 s15, s15, s69")
    if MST:
        a("v_cndmask_b32 v%d, v%d, v%d, s[70:71]" % (S0, KAC + 4, KAC + 5))
        a("v_cndmask_b32 v%d, v%d, v%d, s[70:71]" % (S0 + 1, KAC + 6, KAC + 7))
        a("v_mul_f32 v%d, %s, v%d" % (S0 + 4, f32bits(1.0 / 72.0), KAC))
        a("v_cndmask_b32 v%d, v%d, v%d, s[72:73]" % (S0, S0, S0 + 1))
        a("v_fma_f32 v%d, -v%d, v%d, v%d" % (S0 + 5, S0 + 4, KAC, S0))
        a("v_max_f32 v%d, 0, v%d" % (S0 + 5, S0 + 5))
        vm.op("buffer_store_dwordx2 %s, v252, s[40:43], s15 offen%s" % (q2(S0 + 4), STF), "st")
    else:
        a("v_lshrrev_b32 v%d, 1, v221" % (S0 + 1))
        vm.op("buffer_store_dwordx2 %s, v%d, s[40:43], s15 offen%s" % (q2(S0 + 4), S0 + 1, STF), "st")
    stamp(4)

    def m_setup():
        mod_small("s6", "s5", MROT)
        a("s_mul_i32 s6, s6, %d" % (NROT // MROT))
        a("s_mul_i32 s10, s3, %d" % (8 * 18432))
        a("s_add_u32 s10, s10, %s" % hex(W2P - W1P))
        a("s_lshl_b32 s11, s5, 3")
        a("s_add_u32 s11, s11, s4")
        a("s_mul_i32 s11, s11, %d" % TB)
        if PSHARE:
            a("s_add_u32 s11, s11, %s" % hex(PARTB))
        else:
            a("s_add_u32 s11, s11, s44")
            a("s_add_u32 s11, s11, %s" % hex(oPART))
        a("s_mul_i32 s14, s3, 4608")
        a("s_add_u32 s11, s11, s14")
        for n in range(9):
            a("s_mul_i32 s%d, s6, 18432" % (W2T + n))
            a("s_add_u32 s%d, s%d, s10" % (W2T + n, W2T + n))
            a("s_lshl_b32 s%d, s6, 9" % sst(n))
            a("s_add_u32 s%d, s%d, s11" % (sst(n), sst(n)))
            if n < NROT - 1:
                a("s_add_u32 s6, s6, 1")
                a("s_cmp_eq_u32 s6, %d" % NROT)
                a("s_cselect_b32 s6, 0, s6")
            else:
                a("s_mov_b32 s6, %d" % (n + 1))
        a("v_add_u32 v13, 36864, v2")
        a("v_add_u32 v14, %d, v2" % TB)
        a("v_add_u32 v15, %d, v2" % (TB + 36864))
        a("v_and_b32 v5, 1, v3")
        a("v_mul_u32_u24 v5, 18432, v5")
        a("v_lshl_add_u32 v5, v4, 4, v5")
        a("v_lshrrev_b32 v6, 5, v1")
        a("v_lshl_add_u32 v5, v6, 8, v5")
        a("v_add_u32 v6, 36864, v5")
        a("s_lshr_b32 s14, s3, 1")
        a("s_lshl_b32 s14, s14, 10")
        a("s_and_b32 s15, s3, 1")
        a("s_lshl_b32 s15, s15, 3")
        a("s_add_u32 s14, s14, s15")
        a("v_add_u32 v222, s14, v14")
        a("v_add_u32 v223, s14, v15")
        a("v_lshlrev_b32 v220, 3, v1")
        a("s_mul_i32 s8, s3, 18432")
        a("s_add_u32 s14, s8, 4096")
        a("v_add_u32 v221, s14, v2")
        a("s_add_u32 s62, s62, %s" % hex(oX1))
        if GROT == 1:
            a("s_mov_b32 s91, 0")
        else:
            a("s_lshl_b32 s91, s12, 10")
            a("s_lshl_b32 s19, s12, 11")
            a("v_add_u32 v222, s19, v222")
            a("v_add_u32 v223, s19, v223")

    def w2arrive():
        if W2D:
            a("s_add_u32 s23, s4, 256")
            a("s_mul_i32 s23, s23, %d" % CST)
            a("s_cmp_lg_u32 s45, 0")
            a("s_cbranch_scc1 W2_c")
            arrive("s23", ret=False)
            a("W2_c:")

    hop("st", pre_a=[w2pack1] + [mload(q) for q in hca],
        pre_b=[m_setup, lambda: aload(0)] + [mload(q) for q in hcb])
    stamp(5)

    def fr(T, s):
        k = s * 4 + T
        return q4(k * 4, "a") if k < 64 else q4(224 + (k - 64) * 4)

    def xdma(s):
        a("s_add_u32 m0, s8, %d" % (s * 1024))
        a("s_add_u32 s11, s62, %d" % (s * 1024))
        vm.op("buffer_load_dwordx4 v2, s[40:43], s11 offen%s lds" % LD, ("y", XST[s]))

    a("s_barrier")
    XA = E("XA", 14)
    for s in range(XA):
        xdma(s)
        if s == 2:
            for j in range(8):
                vm.op("buffer_load_dwordx2 %s, v220, s[40:43], s69 offen offset:%d%s" % (q2(FIN + 2 * j), j * 512, LD), "stat")
    late = []

    c0 = -2.0 * math.sqrt(2.0 / math.pi) * math.log2(math.e)

    def stat_ops():
        ops = []
        e = lambda t, c=4: ops.append((t, c))
        m = lambda j: FIN + 2 * j
        t0 = TMP
        MEAN, VAR, M1, S1, M2, S2, RS = t0, t0 + 1, t0 + 2, t0 + 3, t0 + 4, t0 + 5, t0 + 6
        ops.append(("WAIT", 0))
        e("v_add_f32 v%d, v%d, v%d" % (MEAN, m(0), m(1)))
        e("v_add_f32 v%d, v%d, v%d" % (VAR, m(0) + 1, m(1) + 1))
        for j in range(2, 8):
            e("v_add_f32 v%d, v%d, v%d" % (MEAN, MEAN, m(j)))
            e("v_add_f32 v%d, v%d, v%d" % (VAR, VAR, m(j) + 1))
        e("v_mul_f32 v%d, %s, v%d" % (MEAN, f32bits(0.125), MEAN))
        e("v_mul_f32 v%d, %s, v%d" % (VAR, f32bits(1.0 / 72.0), VAR))
        for j in range(8):
            e("v_sub_f32 v%d, v%d, v%d" % (m(j), m(j), MEAN))
        for j in range(8):
            e("v_fmac_f32 v%d, v%d, v%d" % (VAR, m(j), m(j)))
        e("v_mul_f32 v%d, %s, v%d" % (VAR, f32bits(0.125), VAR))
        ln_scalars(MEAN, VAR, M1, S1, e)
        e("v_rcp_f32 v%d, v%d" % (RS, S1), 8)
        e("v_sub_f32 v%d, v%d, v%d" % (MEAN, MEAN, M1))
        e("v_mul_f32 v%d, v%d, v%d" % (MEAN, MEAN, RS))
        e("v_mul_f32 v%d, v%d, v%d" % (VAR, VAR, RS))
        e("v_mul_f32 v%d, v%d, v%d" % (VAR, VAR, RS))
        ln_scalars(MEAN, VAR, M2, S2, e)
        MU, R = M1, S1
        e("v_fmac_f32 v%d, v%d, v%d" % (MU, M2, S1))
        e("v_mul_f32 v%d, v%d, v%d" % (R, S1, S2))
        D0, D1, D2, H = t0 + 7, t0 + 8, t0 + 9, t0 + 10
        e("v_cvt_pk_bf16_f32 v%d, v%d, v%d" % (D1, MU, R))
        e("v_lshlrev_b32 v%d, 16, v%d" % (H, D1))
        e("v_sub_f32 v%d, v%d, v%d" % (H, MU, H))
        e("v_cvt_pk_bf16_f32 v%d, v%d, v%d" % (D0, MU, H))
        e("v_and_b32 v%d, 0xffff0000, v%d" % (H, D1))
        e("v_sub_f32 v%d, v%d, v%d" % (H, R, H))
        e("v_cvt_pk_bf16_f32 v%d, v%d, v%d" % (D2, MU, H))
        for T in range(4):
            e("v_cmp_eq_u32 vcc, %d, v3" % T)
            for k, d in enumerate((D0, D1, D0, D2)):
                e("v_cndmask_b32 v%d, 0, v%d, vcc" % (AB + 4 * T + k, d))
        r0, r1, r2, r3 = KC + 8, KC + 9, KC + 10, KC + 11
        e("v_mov_b32 v%d, v%d" % (r0, R))
        e("v_mov_b32 v%d, v%d" % (r2, R))
        e("v_permlane32_swap_b32 v%d, v%d" % (r0, r2))
        e("v_mov_b32 v%d, v%d" % (r1, r0))
        e("v_mov_b32 v%d, v%d" % (r3, r2))
        e("v_permlane16_swap_b32 v%d, v%d" % (r0, r1))
        e("v_permlane16_swap_b32 v%d, v%d" % (r2, r3))
        for T in range(4):
            e("v_rcp_f32 v%d, v%d" % (KC + T, KC + 8 + T), 8)
        for T in range(4):
            e("v_mul_f32 v%d, v%d, v%d" % (KC + 4 + T, KC + T, KC + T))
            e("v_mul_f32 v%d, %s, v%d" % (KC + T, f32bits(c0), KC + T))
            e("v_mul_f32 v%d, v%d, v%d" % (KC + 4 + T, KC + 4 + T, KC + T))
            e("v_mul_f32 v%d, %s, v%d" % (KC + 4 + T, f32bits(0.044715), KC + 4 + T))
        return ops

    def gelu_ops(tl):
        ops = []
        for T in range(4):
            x = [FIN + 4 * T + r for r in range(4)]
            t = [TMP + (T % 2) * 6 + r for r in range(4)]
            pk = TMP + (T % 2) * 6 + 4
            if "nogelu" in ABL:
                ops.append(("v_cvt_pk_bf16_f32 v%d, v%d, v%d" % (pk, x[0], x[1]), 4))
                ops.append(("v_cvt_pk_bf16_f32 v%d, v%d, v%d" % (pk + 1, x[2], x[3]), 4))
                ops.append(("ds_write_b64 v%d, %s offset:%d" % ((222, 223)[T // 2], q2(pk), (T % 2) * 18432 + tl * 2048), 4))
                continue
            for r in range(4):
                ops.append(("v_mul_f32 v%d, v%d, v%d" % (t[r], x[r], x[r]), 4))
            for r in range(4):
                ops.append(("v_fma_f32 v%d, v%d, v%d, v%d" % (t[r], t[r], KC + 4 + T, KC + T), 4))
            for r in range(4):
                ops.append(("v_mul_f32 v%d, v%d, v%d" % (t[r], t[r], x[r]), 4))
            for r in range(4):
                ops.append(("v_exp_f32 v%d, v%d" % (t[r], t[r]), 8))
            for r in range(4):
                ops.append(("v_fma_f32 v%d, v%d, v%d, v%d" % (t[r], t[r], KC + 8 + T, KC + 8 + T), 4))
            for r in range(4):
                ops.append(("v_rcp_f32 v%d, v%d" % (t[r], t[r]), 8))
            for r in range(4):
                ops.append(("v_mul_f32 v%d, v%d, v%d" % (t[r], t[r], x[r]), 4))
            ops.append(("v_cvt_pk_bf16_f32 v%d, v%d, v%d" % (pk, t[0], t[1]), 4))
            ops.append(("v_cvt_pk_bf16_f32 v%d, v%d, v%d" % (pk + 1, t[2], t[3]), 4))
            ops.append(("ds_write_b64 v%d, %s offset:%d" % ((222, 223)[T // 2], q2(pk), (T % 2) * 18432 + (tl * 2048 if GROT == 1 else 0)), 4))
        if GROT > 1 and tl < 8:
            if tl < 7:
                ops.append(("s_add_u32 s6, s19, 2048", 1))
                ops.append(("s_and_b32 s6, s6, 0x3fff", 1))
            else:
                ops.append(("s_mov_b32 s6, 16384", 1))
            ops.append(("s_sub_u32 s7, s6, s19", 1))
            ops.append(("s_mov_b32 s19, s6", 1))
            ops.append(("v_add_u32 v222, s7, v222", 4))
            ops.append(("v_add_u32 v223, s7, v223", 4))
        return ops

    STB = [int(x) for x in os.environ.get("STB", "0,1,2,3,4,5,6,7,8").split(",")]

    def own_setup():
        ops = []
        e = lambda t: ops.append((t, 4))
        e("v_bfe_u32 v216, v1, 3, 2")
        e("s_and_b32 s6, s4, 3")
        e("v_cmp_eq_u32 vcc, s6, v216")
        e("s_cmp_lt_u32 s4, 4")
        e("s_cselect_b64 s[6:7], vcc, 0")
        e("s_cselect_b64 s[10:11], 0, vcc")
        e("v_mov_b32 v216, %s" % hex(OOB >> 1))
        e("v_cndmask_b32 v5, v5, v216, s[6:7]")
        e("v_cndmask_b32 v6, v6, v216, s[10:11]")
        e("v_lshrrev_b32 v216, 5, v1")
        e("v_and_b32 v217, 7, v1")
        e("v_lshlrev_b32 v217, 4, v217")
        e("v_lshl_add_u32 v216, v216, 7, v217")
        e("s_sub_u32 s14, s%d, s%d" % (sst(0), sst(8)))
        e("s_ashr_i32 s14, s14, 1")
        e("s_add_u32 s14, s14, s8")
        e("s_add_u32 s15, s14, %d" % (8192 + 2048))
        e("s_add_u32 s14, s14, %d" % (4096 + 2048))
        e("v_add_u32 v216, s14, v216")
        e("v_mov_b32 v217, s15")
        e("v_cndmask_b32 v220, v217, v216, s[6:7]")
        e("v_cndmask_b32 v221, v217, v216, s[10:11]")
        return ops

    def out_ops(n2):
        ops = own_setup() if (OWN and n2 == 0) else []
        pk = 192 + 8 * (n2 % 3)
        if OWN and n2 > 0:
            ops.append(("s_sub_u32 s14, s%d, s%d" % (sst(n2), sst(n2 - 1)), 1))
            ops.append(("s_ashr_i32 s14, s14, 1", 1))
            ops.append(("v_add_u32 v220, s14, v220", 4))
            ops.append(("v_add_u32 v221, s14, v221", 4))
        for T in range(4):
            ops.append(("v_cvt_pk_bf16_f32 v%d, v%d, v%d" % (pk + 2 * T, FIN + 4 * T, FIN + 4 * T + 1), 4))
            ops.append(("v_cvt_pk_bf16_f32 v%d, v%d, v%d" % (pk + 2 * T + 1, FIN + 4 * T + 2, FIN + 4 * T + 3), 4))
            if T % 2 == 1:
                ops.append(("v_permlane16_swap_b32 v%d, v%d" % (pk + 2 * T - 2, pk + 2 * T), 4))
                ops.append(("v_permlane16_swap_b32 v%d, v%d" % (pk + 2 * T - 1, pk + 2 * T + 1), 4))
        for i in range(9):
            if STB[i] == n2:
                assert n2 - i < 3
                for h in range(2):
                    ops.append(("buffer_store_dwordx4 %s, v%d, s[40:43], s%d offen%s" % (q4(192 + 8 * (i % 3) + 4 * h), (5, 6)[h], sst(i), STF), 4))
        if OWN:
            for h in range(2):
                ops.append(("ds_write_b128 v%d, %s" % (220 + h, q4(pk + 4 * h)), 4))
        return ops

    cur = [0]

    def emit_fill(op):
        if op == "WAIT":
            vm.wait("stat")
        elif op.startswith("ds_"):
            lg.op(op, "hw")
        elif op.startswith("buffer_store"):
            vm.op(op, "st")
            cur[0] += 1
            if cur[0] == 2 * NE1:
                vm.ops[-1] = "st5"
        elif op.startswith("PL"):
            pload(int(op[2:]))
        else:
            if E("E64", 0) and op.split()[0] in ("v_mul_f32", "v_exp_f32", "v_rcp_f32") and "0x" not in op:
                op = op.replace("_f32 ", "_f32_e64 ", 1)
            a(op)

    def act1(T, s, second):
        off = ((T % 2) * 18 + s) * 1024
        base = ((2, 13), (14, 15))[second][T // 2]
        lg.op("ds_read_b128 %s, v%d offset:%d" % (fr(T, s), base, off), ("act", second, s))

    DT, XQ, BQ, SEL, XP = 88, 108, 128, 148, 156
    PR = lambda n: 32 + 4 * n if n < 14 else 16 + 4 * (n - 14)
    order = [(k, st, hf) for k in range(5) for st in range(2) for hf in range(2) if not (k == 4 and st == 1)]

    def r_addr_ops():
        ops = []
        e = lambda t: ops.append((t, 4))
        e("s_lshr_b32 s6, s4, 1")
        e("s_mul_i32 s6, s6, 18432")
        e("s_and_b32 s7, s4, 1")
        e("s_lshl_b32 s7, s7, 7")
        e("s_add_u32 s6, s6, s7")
        e("s_mul_i32 s7, s3, 4608")
        e("s_add_u32 s6, s6, s7")
        e("s_add_u32 s6, s6, s44")
        e("s_lshl_b32 s7, s47, 3")
        e("s_add_u32 s48, s6, s7")
        if PSHARE:
            e("s_sub_u32 s48, s48, s44")
            e("s_add_u32 s48, s48, %s" % hex(PARTB))
        else:
            e("s_add_u32 s48, s48, %s" % hex(oPART))
        e("s_add_u32 s49, s48, %d" % (4 * TB))
        e("s_add_u32 s50, s48, 4096")
        e("s_add_u32 s51, s49, 4096")
        e("s_add_u32 s6, s6, s47")
        e("s_add_u32 s52, s6, %s" % hex(oX1))
        e("s_add_u32 s53, s52, 4096")
        e("s_add_u32 s54, s6, %s" % hex(LS + oXA))
        e("s_add_u32 s55, s6, %s" % hex(LS + oY))
        e("v_and_b32 v176, 7, v1")
        e("v_bfe_u32 v177, v1, 3, 1")
        e("v_lshlrev_b32 v178, 4, v176")
        e("v_lshl_add_u32 v178, v177, 8, v178")
        e("v_mul_u32_u24 v179, %d, v3" % TB)
        e("v_add_u32 v179, v179, v178")
        if OWN:
            e("s_and_b32 s7, s4, 3")
            e("v_cmp_eq_u32 vcc, s7, v3")
            e("s_cmp_lt_u32 s4, 4")
            e("s_cselect_b64 s[10:11], 0, vcc")
            e("s_cselect_b64 vcc, vcc, 0")
            e("v_mov_b32 v218, %s" % hex(OOB))
            e("v_cndmask_b32 v219, v179, v218, s[10:11]")
            e("v_cndmask_b32 v179, v179, v218, vcc")
        e("v_and_b32 v180, 1, v3")
        e("v_lshrrev_b32 v181, 1, v3")
        e("v_lshl_add_u32 v182, v181, 9, v178")
        e("v_lshl_add_u32 v183, v180, 10, v182")
        e("v_lshl_add_u32 v182, v180, 3, v182")
        if OWN:
            e("v_lshlrev_b32 v218, 4, v4")
            e("v_lshl_add_u32 v218, v181, 8, v218")
            e("v_lshl_add_u32 v218, v180, 3, v218")
            e("v_add_u32 v218, s8, v218")
        e("v_lshlrev_b32 v184, 4, v177")
        e("v_lshl_add_u32 v184, v181, 5, v184")
        e("v_mul_u32_u24 v185, 1152, v176")
        e("v_add_u32 v185, v185, v184")
        e("v_lshl_add_u32 v185, v180, 6, v185")
        e("v_lshl_add_u32 v184, v180, 3, v184")
        e("v_mov_b32 v188, %s" % hex(OOB))
        e("v_cmp_eq_u32 vcc, 0, v3")
        e("v_add_u32 v186, 4096, v183")
        e("v_cndmask_b32 v186, v188, v186, vcc")
        e("v_cndmask_b32 v187, v188, v185, vcc")
        e("v_cmp_gt_u32 vcc, 2, v3")
        e("v_cndmask_b32 v188, 0, -1, vcc")
        e("s_lshl_b32 s66, s45, 30")
        e("s_add_u32 s60, s60, s66")
        for G in range(1, 6):
            e("s_add_u32 s%d, s66, %d" % (66 + G, G * 10752))
        return ops

    def r_setup():
        srd(36, 28, 0, 1152)
        a("s_mul_i32 s56, s3, 288")
        for k in range(5):
            vm.op("buffer_load_dwordx2 %s, v182, s[40:43], s%d offen offset:%d%s" % (q2(XP + 2 * k), 52 if k < 4 else 53, (k % 4) * 1024, LD), "rx")
            vm.op("buffer_load_dwordx2 %s, v184, s[36:39], s56 offen offset:%d" % (q2(XP + 10 + 2 * k), k * 64), "rx")
        a("v_and_b32 v189, 1, v4")
        a("v_lshlrev_b32 v189, 4, v189")
        a("v_mov_b32 v190, 0x3f80")
        a("v_lshlrev_b32 v189, v189, v190")
        a("v_lshrrev_b32 v190, 1, v4")
        for k in range(8):
            a("v_cmp_eq_u32 vcc, %d, v190" % k)
            a("v_cndmask_b32 v%d, 0, v189, vcc" % (SEL + k))
        if OWN:
            for k in range(5):
                a("ds_read_b64 %s, v218 offset:%d" % (q2(224 + 2 * k), 4096 + k * 512))
        a("v_lshlrev_b32 v190, 5, v176")
        a("s_lshl_b32 s7, s3, 3")
        a("v_add_u32 v191, s7, v190")


    def pload(n):
        k, st, hf = order[n]
        vm.op("buffer_load_dwordx4 %s, v%d, s[40:43], s%d offen offset:%d%s" % (q4(PR(n)), 219 if (OWN and hf) else 179, 48 + hf + (2 if k == 4 else 0), ((4 * k + 2 * st) * 256) % 4096, LD), ("p", n))

    kpf = [wload1(i, t, "s%d" % (66 + i // 3)) for i in range(PF) for t in range(4)]
    PFT = E("PFT", 9)
    NQ = 18 * 18
    RAMP = E("RAMP", 144)
    sched = {}
    for q in range(PRE, NQ):
        c = max(q - NR, int((q - PRE) * RAMP / (RAMP + NR - PRE)))
        sched.setdefault(c, []).append(q)
    AHEAD = 3
    for n in range(18):
        gemm = 1 if n < 9 else 2
        npos = 19 if gemm == 1 else 18
        if n == 0:
            fill, g0, g1 = stat_ops(), E("SG0", 12), 70
        elif n <= 9:
            fill, g0, g1 = gelu_ops(n - 1), E("GG0", 0), (E("GG1", 74) if n < 9 else 50)
        elif n == 15:
            fill, g0, g1 = out_ops(n - 10) + r_addr_ops(), 8, 68
        else:
            fill, g0, g1 = out_ops(n - 10), 8, E("OG1", 28)
        rd = n in (0, 9)
        if n == 0:
            vm.wait(("y", 0))
            a("s_barrier")
            if E("XP", 0):
                stamp(15)
        if W2D and n == E("W2R", 5):
            a("s_mov_b32 s16, 128")
            a("s_cmp_lg_u32 s45, 0")
            a("s_cbranch_scc1 W2_d")
            a("s_mov_b32 s16, 0")
            a("s_atomic_add s16, s[20:21], s23 glc")
            a("W2_d:")
        if W2D and n == 7:
            poll("128", offs=("s23",), issued="poll")
        if n == 16 and NE1:
            poll("s46", issued="poll")
            a("s_add_u32 s46, s46, 8")
        if n == 17:
            lg.all()
            if SKIP:
                vm.ops += ["u"] * 0
            vm.wait("st")
            arrive(ret=False)
        if n == 1:
            stamp(6)
            if E("ALN", 0):
                a(".p2align 3")
                if E("ALN", 0) == 2:
                    a("s_nop 0")
        if n == 9:
            stamp(7)
            lg.wait("hw")
            a("s_barrier")
        if n == 10:
            stamp(8)
        if E("XT", 0) and n in (E("XT", 0), E("XT", 0) + 1, E("XT", 0) + 2):
            stamp(13 + n - E("XT", 0))
        if rd:
            for s in range(AHEAD):
                for T in range(4):
                    act1(T, s, n == 9)
        SPOS = [int(x) for x in os.environ.get("SPOS", "").split(",") if x]
        SGAP = E("SGAP", 14)
        held = []
        if SPOS and n >= 10:
            held = [f for f in fill if f[0].startswith("buffer_store")]
            fill = [f for f in fill if not f[0].startswith("buffer_store")]
            g0, g1 = (3, 9) if n != 15 else (3, 68)
            if n == 15:
                fill = [(t, 1 if k < 12 else c) for k, (t, c) in enumerate(fill)]
        quiet = lambda m: bool(held or n >= 10) and any(p - E("SPRE", 0) <= m < p + SGAP for p in SPOS)
        total = sum(c for _, c in fill)
        fi = spent = m = 0
        for s in range(npos):
            q = n * 18 + s
            if rd and s < 18:
                sa = s + AHEAD
                if sa < 18:
                    if n == 0 and XST[sa] != XST[sa - 1]:
                        vm.wait(("y", XST[sa]))
                        a("s_barrier")
                    if n == 9 and sa == 16:
                        assert fi == len(fill)
                        lg.wait("hw")
                        a("s_barrier")
                lg.wait(("act", n == 9, s))
            if n == 0 and s == E("W2S", 5):
                w2pack2()
                w2mark = len(vm.ops)
            if W2D and n == 1 and s == E("W2A", 0):
                vm.wait(vm.ops[w2mark])
                lg.all()
                w2arrive()
            if NE1 and n == 10 + NE1 and s == 4:
                vm.wait("st5")
                arrive(ret=False)
            if NE1 and n == 15 and s == 10:
                a("s_mov_b32 s16, 0")
                a("s_atomic_add s16, s[20:21], s22 glc")
            if n == 16 and 7 <= s < 7 + 2 * NE1:
                pload(s - 7)
            if s == 18:
                assert fi == len(fill) or (n > 0 and fi > 3 * len(fill) // 4)
                vm.wait(("aug", n))
            elif s % WSTEP == 0:
                n0 = len(a.ins)
                for k in range(WSTEP):
                    x = q + WSTEP - 1 - k
                    if x >= LQ0:
                        lg.wait(("lr", x - LQ0))
                    else:
                        vm.wait(("m", x))
                if E("E64", 0) and (len(a.ins) - n0) % 2:
                    a("s_nop 0")
            for T in range(4):
                last = s == npos - 1
                d = (FIN if last else ACC) + 4 * T
                c = "0" if s == 0 else q4(ACC + 4 * T)
                if s == 18:
                    a("%s %s, %s, %s, %s" % (MF, q4(d), q4(AUGW), q4(AB + 4 * T), c))
                else:
                    a("%s %s, %s, %s, %s" % (MF, q4(d), q4(ring(q)), fr(T, s), c))
                if rd and s + AHEAD < 18:
                    act1(T, s + AHEAD, n == 9)
                if n == 0 and T in (0, 2) and XA + 2 * s + T // 2 < 18:
                    xdma(XA + 2 * s + T // 2)
                elif T in LSLOT and late and not (n == 0 and XA + 2 * s < 18) and not quiet(m):
                    late.pop(0)()
                if n == 9 and T == 1 and E("LP0", 4) <= s < E("LP0", 4) + LPF:
                    lpf_dma(s - E("LP0", 4))
                if T == 3:
                    if s < 18:
                        for x in sched.get(q, []):
                            if x >= LQ0:
                                lpf_read(x - LQ0)
                            else:
                                late.append(mload(x))
                        if late and not (n == 0 and XA + 2 * s < 18) and not quiet(m):
                            late.pop(0)()
                    if SKIP:
                        grp = []
                        if n == 16 and s in (4, 7, 10, 13):
                            grp = [wodma(0, k) for k in range(s - 4, s - 1)]
                        if n == 17 and s % 2 == 1 and 3 * (s // 2) < PFT:
                            grp = kpf[3 * (s // 2):min(3 * (s // 2) + 3, PFT)]
                        if grp:
                            wo_group(grp)()
                    else:
                        if n == 16 and 4 <= s < 16:
                            wodma(0, s - 4)()
                        if n == 17:
                            for k in range(s * PFT // 18, (s + 1) * PFT // 18):
                                assert k // 4 <= s
                                kpf[k]()
                    if n == 16 and s == 16:
                        kw_voffs()
                    if s == 18 and n < 8:
                        a("s_add_u32 s91, s91, 1024")
                        if GROT > 1:
                            if n < 7:
                                a("s_and_b32 s91, s91, 0x1fff")
                            else:
                                a("s_mov_b32 s91, 8192")
                        aload(n + 1)
                if fill and g0 <= m <= g1:
                    budget = total * (m - g0 + 1) / (g1 - g0 + 1)
                    while fi < len(fill) and spent + fill[fi][1] / 2 <= budget:
                        emit_fill(fill[fi][0])
                        spent += fill[fi][1]
                        fi += 1
                if held and m in SPOS:
                    assert fi >= 12
                    emit_fill(held.pop(0)[0])
                m += 1
        assert fi == len(fill), (n, fi, len(fill))
    for op, _ in out_ops(8):
        emit_fill(op)
    stamp(9)

    def r_unpack():
        vm.wait("rx")
        for k in range(8, 10):
            a("v_and_b32 v%d, v%d, v188" % (XP + k, XP + k))
            a("v_and_b32 v%d, v%d, v188" % (XP + 10 + k, XP + 10 + k))
        for k in range(10):
            unpack(XQ + 2 * k, XP + k)
            unpack(BQ + 2 * k, XP + 10 + k)
        if OWN:
            for k in range(8, 10):
                a("v_and_b32 v%d, v%d, v188" % (224 + k, 224 + k))
            for k in range(10):
                unpack(234 + 2 * k, 224 + k)
            for k in range(10):
                a("v_pk_add_f32 %s, %s, %s" % (q2(BQ + 2 * k), q2(BQ + 2 * k), q2(234 + 2 * k)))


    def pmfma(n):
        k, st, hf = order[n]
        vm.wait(("p", n))
        a("%s %s, %s, %s, %s" % (MF, q4(DT + 4 * k), q4(SEL + 4 * st), q4(PR(n)), q4(BQ + 4 * k) if (st == 0 and hf == 0) else q4(DT + 4 * k)))

    def early():
        a("s_mov_b32 s16, 0")
        a("s_atomic_add s16, s[20:21], s22 glc")
        r_setup()
        poll("s46", issued="poll")
        a("s_add_u32 s46, s46, 8")
        for n in range(2 * NE1, 2 * NE1 + 6):
            pload(n)

    def early2():
        r_unpack()
        for n in range(2 * NE1):
            pmfma(n)

    kpf = kpf[PFT:]
    n2 = E("PFB", 0)
    hop("st", pre_a=[early], pre_b=[lambda n=n: pload(n) for n in range(2 * NE1 + 6, 14)] + [early2] + kpf[:n2])
    kpf = kpf[n2:]
    stamp(10)
    for n in range(14, 18):
        pload(n)
    for n in range(2 * NE1, 18):
        pmfma(n)
    if E("XP", 0) == 2:
        stamp(13)
    n4 = E("PFD", 0)
    for f in kpf[:n4]:
        f()
    kpf = kpf[n4:]
    TK = 192
    for k in range(10):
        cvt(TK + k, DT + 2 * k, DT + 2 * k + 1)
    for k in range(10):
        unpack(DT + 2 * k, TK + k)
    for k in range(10):
        a("v_pk_add_f32 %s, %s, %s" % (q2(DT + 2 * k), q2(DT + 2 * k), q2(XQ + 2 * k)))
    for k in range(10):
        cvt(TK + k, DT + 2 * k, DT + 2 * k + 1)
    for k in range(10):
        unpack(DT + 2 * k, TK + k)
    for kk in range(3):
        a("v_permlane16_swap_b32 v%d, v%d" % (TK + 4 * kk, TK + 4 * kk + 2))
        a("v_permlane16_swap_b32 v%d, v%d" % (TK + 4 * kk + 1, TK + 4 * kk + 3))
    a("s_cmp_eq_u32 s45, 0")
    a("s_cbranch_scc1 R_mid")
    srd(36, 30, 0, ACT)
    a("s_lshl_b32 s6, s5, 3")
    a("s_add_u32 s6, s6, s4")
    a("s_mul_i32 s6, s6, %d" % (8 * 1152))
    a("s_add_u32 s6, s6, s56")
    for kk in range(3):
        a("buffer_store_dwordx4 %s, v%d, s[36:39], s6 offen offset:%d" % (q4(TK + 4 * kk), 185 if kk < 2 else 187, kk * 128))
    stamp(11)
    rstamp(12)
    if os.environ.get("PDBG"):
        a("s_or_b32 s6, s2, s3")
        a("s_cmp_lg_u32 s6, 0")
        a("s_cbranch_scc1 L_exit2")
        a("s_load_dwordx2 s[6:7], s[0:1], %d" % KA_DBG)
        a("s_waitcnt vmcnt(0) lgkmcnt(0)")
        srd(36, 6, 0, 256)
        a("v_lshlrev_b32 v5, 2, v1")
        a("v_mov_b32 v6, %d" % (1 << 19))
        a("buffer_load_dwordx2 v[8:9], v6, s[92:95], 0 offen sc1")
        a("v_mov_b32 v6, %d" % ((1 << 19) + (P_MISC - 1) * 128))
        a("buffer_load_dwordx2 v[10:11], v6, s[92:95], 0 offen sc1")
        a("buffer_load_dword v12, v5, s[92:95], 0 offen offset:64 sc1")
        a("buffer_load_dword v13, off, s[92:95], 0 offset:%d sc1" % (128 + 64 + 44))
        a("s_waitcnt vmcnt(0)")
        a("v_sub_u32 v12, v12, v8")
        a("v_sub_u32 v13, v13, v8")
        a("v_sub_u32 v9, v9, v8")
        a("v_sub_u32 v11, v11, v8")
        a("v_cmp_gt_u32 vcc, 12, v1")
        a("v_mov_b32 v6, %s" % hex(OOB))
        a("v_cndmask_b32 v5, v6, v5, vcc")
        a("buffer_store_dword v12, v5, s[36:39], 0 offen")
        a("buffer_store_dword v13, off, s[36:39], 0 offset:48")
        a("buffer_store_dword v9, off, s[36:39], 0 offset:52")
        a("buffer_store_dword v11, off, s[36:39], 0 offset:56")
    a("L_exit2:")
    a("s_endpgm")
    a("R_mid:")
    for kk in range(3):
        vm.op("buffer_store_dwordx4 %s, v%d, s[40:43], s54 offen offset:%d%s" % (q4(TK + 4 * kk), 183 if kk < 2 else 186, (kk % 2) * 2048, ST), "st")
    S0 = XQ

    a("v_pk_add_f32 %s, %s, %s" % (q2(S0), q2(DT), q2(DT + 2)))
    a("v_pk_add_f32 %s, %s, %s" % (q2(S0 + 2), q2(DT + 4), q2(DT + 6)))
    for k in range(4, 10, 2):
        a("v_pk_add_f32 %s, %s, %s" % (q2(S0), q2(S0), q2(DT + 2 * k)))
        a("v_pk_add_f32 %s, %s, %s" % (q2(S0 + 2), q2(S0 + 2), q2(DT + 2 * k + 2)))
    a("v_pk_add_f32 %s, %s, %s" % (q2(S0), q2(S0), q2(S0 + 2)))
    a("v_add_f32 v%d, v%d, v%d" % (S0, S0, S0 + 1))
    MEAN, VAR, M, SD = S0 + 8, S0 + 9, S0 + 10, S0 + 12
    xsum(S0, S0 + 1, ror8=True)
    a("v_mul_f32 v%d, %s, v%d" % (S0 + 14, f32bits(-1.0 / 144.0), S0))
    a("v_mov_b32 v%d, v%d" % (S0 + 15, S0 + 14))
    a("v_and_b32 v%d, v%d, v188" % (S0 + 16, S0 + 14))
    a("v_mov_b32 v%d, v%d" % (S0 + 17, S0 + 16))
    for k in range(10):
        a("v_pk_add_f32 %s, %s, %s" % (q2(BQ + 2 * k), q2(DT + 2 * k), q2(S0 + 14 if k < 8 else S0 + 16)))
    a("v_pk_mul_f32 %s, %s, %s" % (q2(S0), q2(BQ), q2(BQ)))
    a("v_pk_mul_f32 %s, %s, %s" % (q2(S0 + 2), q2(BQ + 2), q2(BQ + 2)))
    for k in range(2, 10):
        r = S0 + 2 * (k % 2)
        a("v_pk_fma_f32 %s, %s, %s, %s" % (q2(r), q2(BQ + 2 * k), q2(BQ + 2 * k), q2(r)))
    a("v_pk_add_f32 %s, %s, %s" % (q2(S0), q2(S0), q2(S0 + 2)))
    a("v_add_f32 v%d, v%d, v%d" % (S0 + 15, S0, S0 + 1))
    xsum(S0 + 15, S0 + 1, ror8=True)
    a("ds_write_b64 v191, %s" % q2(S0 + 14))
    a("s_waitcnt lgkmcnt(0)")
    a("s_barrier")
    a("ds_read_b128 %s, v190" % q4(S0))
    a("ds_read_b128 %s, v190 offset:16" % q4(S0 + 4))
    a("s_waitcnt lgkmcnt(0)")
    a("v_pk_add_f32 %s, %s, %s" % (q2(MEAN), q2(S0), q2(S0 + 2)))
    a("v_pk_add_f32 %s, %s, %s" % (q2(M), q2(S0 + 4), q2(S0 + 6)))
    a("v_pk_add_f32 %s, %s, %s" % (q2(MEAN), q2(MEAN), q2(M)))
    a("v_mul_f32 v%d, %s, v%d" % (MEAN, f32bits(-0.25), MEAN))
    a("v_mul_f32 v%d, %s, v%d" % (VAR, f32bits(1.0 / 144.0), VAR))
    for k in range(4):
        a("v_add_f32 v%d, v%d, v%d" % (S0 + 2 * k, S0 + 2 * k, MEAN))
    for k in range(4):
        a("v_fmac_f32 v%d, v%d, v%d" % (VAR, S0 + 2 * k, S0 + 2 * k))
    a("v_mul_f32 v%d, %s, v%d" % (VAR, f32bits(0.25), VAR))
    ln_scalars(MEAN, VAR, M, SD)
    a("v_rcp_f32 v%d, v%d" % (SD, SD))
    a("v_sub_f32 v%d, 0, v%d" % (M, M))
    a("v_mov_b32 v%d, v%d" % (M + 1, M))
    a("v_mov_b32 v%d, v%d" % (SD + 1, SD))
    for k in range(10):
        a("v_pk_add_f32 %s, %s, %s" % (q2(DT + 2 * k), q2(DT + 2 * k), q2(M)))
    TY = 204
    for k in range(10):
        cvt(TY + k, DT + 2 * k, DT + 2 * k + 1)
    for k in range(10):
        unpack(DT + 2 * k, TY + k)
    for k in range(10):
        a("v_pk_mul_f32 %s, %s, %s" % (q2(DT + 2 * k), q2(DT + 2 * k), q2(SD)))
    for k in range(10):
        cvt(TY + k, DT + 2 * k, DT + 2 * k + 1)
    for kk in range(3):
        a("v_permlane16_swap_b32 v%d, v%d" % (TY + 4 * kk, TY + 4 * kk + 2))
        a("v_permlane16_swap_b32 v%d, v%d" % (TY + 4 * kk + 1, TY + 4 * kk + 3))
    for kk in range(3):
        vm.op("buffer_store_dwordx4 %s, v%d, s[40:43], s55 offen offset:%d%s" % (q4(TY + 4 * kk), 183 if kk < 2 else 186, (kk % 2) * 2048, ST), "st")
    stamp(11)

    def next_layer():
        a("s_add_u32 s44, s44, %s" % hex(LS))
        a("s_mov_b32 s45, 1")
        a("s_add_u32 s32, s24, %s" % hex(LB + LS + oXA))
        a("s_addc_u32 s33, s25, 0")
        k1_setup(False)
        attn_consts()
        for n in range(4):
            a("s_mov_b32 s%d, %s" % (76 + n, hex(OOB)))
        a("v_mov_b32 v236, 0")

    a("s_lshr_b32 s6, s4, 1")
    a("s_lshl_b32 s7, s5, 2")
    a("s_add_u32 s6, s6, s7")
    a("s_mul_i32 s6, s6, %d" % CST)
    a("s_add_u32 s19, s6, %d" % (128 * CST))
    a("s_add_u32 s23, s22, %d" % (128 * CST))
    a("s_max_u32 s7, s7, 1")
    a("s_mul_i32 s7, s7, %d" % CST)
    a("s_add_u32 s26, s7, %d" % (127 * CST))
    if NUMA:
        a("s_lshl_b32 s7, s5, 9")
        a("s_xor_b32 s7, s7, s22")
        a("s_and_b32 s7, s7, 0x2000")
        a("s_xor_b32 s19, s19, s7")
        a("s_xor_b32 s26, s26, s7")
    for f in kpf[:10]:
        f()
    vm.wait("st")
    arrive("s19", ret=False)
    for f in kpf[10:]:
        f()
    if E("MIDP", 50) < 100:
        for k, o in enumerate(("s23", "s26")):
            a("s_mov_b32 s%d, 0" % (16 + k))
            a("s_atomic_add s%d, s[20:21], %s glc" % (16 + k, o))
        next_layer()
        poll("8", offs=("s23", "s26"), issued="poll")
    else:
        next_layer()
        poll("8", offs=("s23", "s26"))
    if PROF:
        a("s_add_u32 s96, s96, 128")
    stamp(0)
    a("s_branch K1_second")
    a("L_code_end:")
    a("s_endpgm")


def descriptor(label, vgpr, accum, sgpr):
    return """.amdhsa_kernel %s
  .amdhsa_next_free_vgpr %d
  .amdhsa_next_free_sgpr %d
  .amdhsa_accum_offset %d
  .amdhsa_group_segment_fixed_size 0
  .amdhsa_kernarg_size 88
  .amdhsa_user_sgpr_count 2
  .amdhsa_user_sgpr_kernarg_segment_ptr 1
  .amdhsa_system_sgpr_workgroup_id_x 1
.end_amdhsa_kernel
""" % (label, vgpr, sgpr, accum)


def build():
    launches = [
        ("p_kernel", P_END, 576, 36864 + 2304, 64, 64, 64),
        ("main_kernel", 256, 256, MAIN_LDS, 512, 256, 102),
    ]
    p_kernel()
    main_kernel()
    for e in a.check_branch_seams():
        print("WARN", e, file=sys.stderr)
    head = "; generated by work/gen2.py (hand-written generator)\n"
    for l, g, b, lds, _, _, _ in launches:
        head += "; @launch kernel=%s grid=(%d,1,1) block=(%d,1,1) lds=%d\n" % (l, g, b, lds)
    head += '.amdgcn_target "amdgcn-amd-amdhsa--gfx950"\n.text\n'
    tail = '.section .rodata,"a"\n'
    for l, g, b, lds, v, ac, sg in launches:
        tail += ".p2align 6\n" + descriptor(l, v, ac, sg)
    return head + a.text() + tail


if __name__ == "__main__":
    out = sys.argv[1] if len(sys.argv) > 1 else "cdna_kernels/%s.s" % NAME
    open(out, "w").write(build())
    print("wrote", out)
```
